```python
import torch

def _softmax(x, axis=-1):
    return torch.softmax(x, dim=axis)
def _gelu(x):
    return torch.nn.functional.gelu(x, approximate="tanh")
def _silu(x):
    return torch.nn.functional.silu(x)
def _sigmoid(x):
    return torch.sigmoid(x)
def _layernorm(x, axis=-1, eps=1e-5):
    m = x.mean(dim=axis, keepdim=True)
    v = x.var(dim=axis, keepdim=True, unbiased=False)
    return (x - m) / torch.sqrt(v + eps)
def _scatter_add(tgt, idx, src, axis=0):
    return tgt.clone().index_add_(axis, idx, src)
def _segment_sum(src, seg, n):
    out = torch.zeros((n,) + src.shape[1:], dtype=src.dtype)
    return out.index_add_(0, seg, src)
def _pad(x, pw):
    flat = tuple(v for pair in reversed(pw) for v in pair)
    return torch.nn.functional.pad(x, flat)

kernel_name = 'recurrent_scan__sliding_block_cached__geglu_ffn__decode'

def setup_inputs():

    _w = (lambda a: (lambda t: t.to(torch.bfloat16) if t.is_floating_point() else t)(torch.as_tensor(a)))
    def _A_setup():
        B, Sq, D = 1, 1, 1024
        Hq, Hkv, Sk, Dh = 32, 4, 65536, 128
        assert Hq % Hkv == 0, (Hq, Hkv)
        return {
            "x": _w((lambda *s: torch.randn(*s, dtype=torch.bfloat16) * 0.05)(B, Sq, D)),
            "k_cache": _w((lambda *s: torch.randn(*s, dtype=torch.bfloat16) * 1.6)(B, Hkv, Sk, Dh)),
            "v_cache": _w((lambda *s: torch.randn(*s, dtype=torch.bfloat16) * 0.2)(B, Hkv, Sk, Dh)),
            "wq": _w((lambda *s: torch.randn(*s, dtype=torch.bfloat16) * 1.6)(D, Hq * Dh) * (D ** -0.5)),
            "wo": _w((lambda *s: torch.randn(*s, dtype=torch.bfloat16) * 0.2)(Hq * Dh, D) * ((Hq * Dh) ** -0.5)),
        }
    _A_in = _A_setup()

    def _B_setup():
        B, S, D, F = 1, 1, 1024, 3584
        return {
            "x": _w((lambda *s: torch.randn(*s, dtype=torch.bfloat16) * 0.05)(B, S, D)),
            "w_gate": _w((lambda *s: torch.randn(*s, dtype=torch.bfloat16) * 0.1)(D, F)),
            "w_up": _w((lambda *s: torch.randn(*s, dtype=torch.bfloat16) * 0.1)(D, F)),
            "w_down": _w((lambda *s: torch.randn(*s, dtype=torch.bfloat16) * 0.1)(F, D)),
        }
    _B_in = _B_setup()

    return {
        "A_x": _A_in["x"],
        "A_k_cache": _A_in["k_cache"],
        "A_v_cache": _A_in["v_cache"],
        "A_wq": _A_in["wq"],
        "A_wo": _A_in["wo"],
        "B_x": _B_in["x"],
        "B_w_gate": _B_in["w_gate"],
        "B_w_up": _B_in["w_up"],
        "B_w_down": _B_in["w_down"],
    }

def reference(A_x, A_k_cache, A_v_cache, A_wq, A_wo, B_x, B_w_gate, B_w_up, B_w_down):
    def _A_ref(x, k_cache, v_cache, wq, wo):
        B, Sq, D = x.shape
        Hq, Dh = 32, 128
        Hkv, Sk = k_cache.shape[1], k_cache.shape[2]
        W = min(4096, max(256, Sk // 4))
        rep = Hq // Hkv
        q = (lambda x, *d: x.permute(*d))((x @ wq).reshape(B, Sq, Hq, Dh), 0, 2, 1, 3)
        k = (lambda x, n, axis: torch.repeat_interleave(x, n, dim=axis))(k_cache[:, :, Sk - W:, :], rep, axis=1)
        v = (lambda x, n, axis: torch.repeat_interleave(x, n, dim=axis))(v_cache[:, :, Sk - W:, :], rep, axis=1)
        scores = torch.einsum("bhqd,bhkd->bhqk", q, k) * (Dh ** -0.5)
        p = _softmax(scores, axis=-1)
        o = torch.einsum("bhqk,bhkd->bhqd", p, v)
        return (lambda x, *d: x.permute(*d))(o, 0, 2, 1, 3).reshape(B, Sq, Hq * Dh) @ wo

    def _B_ref(x, w_gate, w_up, w_down):
        return (_gelu(x @ w_gate) * (x @ w_up)) @ w_down

    x = A_x
    xn = _layernorm(x, axis=-1)
    s = _A_ref(xn, A_k_cache, A_v_cache, A_wq, A_wo)
    g = _silu(_B_ref(xn, B_w_gate, B_w_up, B_w_down))
    return x + s * g
```

```python
import sys, struct

KN = "recurrent_scan__sliding_block_cached__geglu_ffn__decode_kernel"

def f2u(x):
    return struct.unpack("<I", struct.pack("<f", x))[0]

WS_E   = 0x0
WS_FLD = 0x1000
NREP   = 16
REPP   = 1280
WS_FLA = 0x2000
WS_FLB = 0x8000
WS_BQ  = 0x10000
WS_BML = 0x20000
WS_BD  = 0x30000
ROWP   = 4352
WS_BS  = 0x50000
WS_BF  = 0x98000
WS_BO  = 0x100000
WS_ST  = 0x400000

L_K    = 0
L_V    = 16384
L_RQ   = 32768
L_RG   = L_RQ + 2048
L_QL   = L_RG + 4096
QLP    = 272
L_OR   = L_QL + 2304
L_ML   = L_OR + 4096
L_OBF  = L_ML + 2048
L_HBF  = L_OBF + 128
L_XN   = L_HBF + 128
L_CNT  = L_XN + 512
C_Q, C_G, C_KV, C_QL, C_P, C_O, C_FO, C_FH, C_SD = [L_CNT + 4*i for i in range(9)]
LDS_BYTES = L_CNT + 64

TAGM = 0x3FF
LOG2E = 1.4426950408889634
SPIN_MAX = 1 << 20

sX, sY, sRB, sT8, sCT, sFT, sG, sCH = 28, 29, 30, 31, 32, 33, 34, 35
sT32, sT10, sSPIN, sTMP = 36, 37, 38, 39
sW = 3
sP = 48
sSTAMP = 64


class Gen:
    def __init__(self, W=6, stamps=False, prefetch=True, dbg=False):
        self.L = []
        self.W = W
        self.stamps = stamps
        self.prefetch = prefetch
        self.dbg = dbg
        self.nlab = 0

    def A(self, s):
        for line in s.strip("\n").split("\n"):
            self.L.append("    " + line.strip() if not line.strip().endswith(":") else line.strip())

    def lab(self, p="L"):
        self.nlab += 1
        return f"{p}_{self.nlab}"

    def stamp(self, k):
        if self.stamps:
            self.A(f"s_memrealtime s[{sSTAMP+2*k}:{sSTAMP+2*k+1}]")

    def mask(self, reg, val):
        lo, hi = val & 0xFFFFFFFF, val >> 32
        self.A(f"s_mov_b32 {reg[0]}, {lo:#x}\ns_mov_b32 {reg[1]}, {hi:#x}")

    def exec_set(self, val):
        if val == -1:
            self.A("s_mov_b64 exec, -1")
        elif val <= 64:
            self.A(f"s_mov_b64 exec, {val}")
        elif val < (1 << 31):
            self.A(f"s_mov_b64 exec, {val:#x}")
        else:
            self.mask(("exec_lo", "exec_hi"), val)

    def arrive(self, cnt, want_old=True):
        self.A(f"""
        s_mov_b64 exec, 1
        v_mov_b32 v1, {cnt}
        v_mov_b32 v2, 1""")
        if want_old:
            self.A(f"""
            ds_add_rtn_u32 v2, v1, v2
            s_waitcnt lgkmcnt(0)
            v_readfirstlane_b32 s{sTMP}, v2""")
        else:
            self.A("ds_add_u32 v1, v2")
        self.A("s_mov_b64 exec, -1")

    def lds_spin(self, cnt, val, sleep=1):
        l = self.lab("Lspin"); d = self.lab("Lgot")
        self.A(f"""
        v_mov_b32 v1, {cnt}
        s_mov_b32 s{sSPIN}, 0
        {l}:
        ds_read_b32 v2, v1
        s_add_u32 s{sSPIN}, s{sSPIN}, 1
        s_cmp_gt_u32 s{sSPIN}, {SPIN_MAX}
        s_cbranch_scc1 L_end
        s_waitcnt lgkmcnt(0)
        v_readfirstlane_b32 s{sTMP}, v2
        s_cmp_eq_u32 s{sTMP}, {val}
        s_cbranch_scc1 {d}""")
        if sleep:
            self.A(f"s_sleep {sleep}")
        self.A(f"s_branch {l}\n{d}:")

    def flag_poll(self, n):
        l = self.lab("Lpoll"); r = self.lab("Lretry"); d = self.lab("Lflag")
        self.A(f"""
        s_mov_b32 s{sSPIN}, 0
        s_mov_b32 s42, s{sT32}
        s_mov_b32 s43, s{sT32}
        s_branch {l}
        {r}:
        s_sleep 1
        {l}:
        s_load_dwordx{n} s[{sP}:{sP+n-1}], s[26:27], s40 glc
        s_add_u32 s{sSPIN}, s{sSPIN}, 1
        s_cmp_gt_u32 s{sSPIN}, {SPIN_MAX}
        s_cbranch_scc1 L_end
        s_waitcnt lgkmcnt(0)""")
        for i in range(0, n, 2):
            self.A(f"s_cmp_eq_u64 s[{sP+i}:{sP+i+1}], s[42:43]\ns_cbranch_scc0 {r}")
        self.A(f"{d}:")

    def flag_store(self, n):
        self.exec_set((1 << n) - 1)
        self.A(f"""
        v_mul_u32_u24 v1, {REPP}, v0
        v_add_u32 v1, s40, v1
        v_mov_b32 v2, s{sT32}
        global_store_dword v1, v2, s[26:27] sc1
        s_mov_b64 exec, -1""")

    def tagcheck(self, regs, vacc, vt):
        first = True
        for r in regs:
            if first:
                self.A(f"v_bitop3_b32 v{vacc}, v{r}, v{r+1}, s{sT10} bitop3:0x7e")
                self.A(f"v_bitop3_b32 v{vt}, v{r+2}, v{r+3}, s{sT10} bitop3:0x7e")
                self.A(f"v_or_b32 v{vacc}, v{vacc}, v{vt}")
                first = False
            else:
                self.A(f"v_bitop3_b32 v{vt}, v{r}, v{r+1}, s{sT10} bitop3:0x7e")
                self.A(f"v_bitop3_b32 v{vt+1}, v{r+2}, v{r+3}, s{sT10} bitop3:0x7e")
                self.A(f"v_or3_b32 v{vacc}, v{vacc}, v{vt}, v{vt+1}")

    def tagtest(self, vacc, retry):
        self.A(f"""
        v_and_b32 v{vacc}, {TAGM:#x}, v{vacc}
        v_cmp_ne_u32 vcc, 0, v{vacc}
        s_add_u32 s{sSPIN}, s{sSPIN}, 1
        s_cmp_gt_u32 s{sSPIN}, {SPIN_MAX}
        s_cbranch_scc1 L_end
        s_nop 1
        s_cbranch_vccnz {retry}""")

    def tag(self, r):
        self.A(f"v_bfi_b32 v{r}, s44, v3, v{r}")

    def reduce_scatter_rows(self, a):
        self.A(f"""
        s_nop 1
        v_permlane32_swap_b32 v{a}, v{a+2}
        v_permlane32_swap_b32 v{a+1}, v{a+3}
        v_add_f32 v{a}, v{a}, v{a+2}
        v_add_f32 v{a+1}, v{a+1}, v{a+3}
        s_nop 1
        v_permlane16_swap_b32 v{a}, v{a+1}
        v_add_f32 v{a}, v{a}, v{a+1}""")

    def allreduce_rows(self, a, t, op):
        self.A(f"""
        v_mov_b32 v{t}, v{a}
        s_nop 1
        v_permlane32_swap_b32 v{t}, v{a}
        {op} v{a}, v{a}, v{t}
        s_nop 0
        v_mov_b32 v{t}, v{a}
        s_nop 1
        v_permlane16_swap_b32 v{t}, v{a}
        {op} v{a}, v{a}, v{t}""")

    def allreduce_in_row(self, a, op="v_add_f32"):
        for m in ("quad_perm:[1,0,3,2]", "quad_perm:[2,3,0,1]", "row_half_mirror", "row_mirror"):
            self.A(f"s_nop 1\n{op}_dpp v{a}, v{a}, v{a} {m} row_mask:0xf bank_mask:0xf")

    def bf16_round(self, d, s):
        self.A(f"v_cvt_pk_bf16_f32 v{d}, v{s}, v{s}\nv_and_b32 v{d}, 0xffff0000, v{d}")

    def build(self):
        A = self.A
        self.L.append(f"; @launch grid=(256,1,1) block=(512,1,1) lds={LDS_BYTES}")
        self.L.append('.amdgcn_target "amdgcn-amd-amdhsa--gfx950"')
        self.L += [".text", f".globl {KN}", ".p2align 8", f".type {KN},@function", f"{KN}:"]
        self.stamp(0)
        A(f"""
        s_cmp_ge_u32 s2, 256
        s_cbranch_scc1 L_end
        s_load_dwordx16 s[4:19], s[0:1], 0
        s_load_dwordx8 s[20:27], s[0:1], 64
        v_lshrrev_b32 v1, 6, v0
        v_and_b32 v0, 63, v0
        v_readfirstlane_b32 s{sW}, v1
        s_and_b32 s{sX}, s2, 7
        s_lshr_b32 s{sY}, s2, 3
        s_and_b32 s{sRB}, s{sY}, 3
        s_lshr_b32 s{sT8}, s{sY}, 2
        s_lshl3_add_u32 s{sCT}, s{sX}, s{sT8}
        s_sub_u32 s{sFT}, s{sCT}, s{sX}
        s_lshr_b32 s{sG}, s{sX}, 1
        s_and_b32 s{sCH}, s{sX}, 1
        s_lshl_b32 s{sCH}, s{sCH}, 5
        s_add_u32 s{sCH}, s{sCH}, s{sY}
        s_movk_i32 s44, {TAGM:#x}
        s_mov_b32 s94, s{sW}
        s_cmp_ge_u32 s{sW}, 4
        s_cbranch_scc1 L_awave""")
        self.swave()
        self.awave()
        A("L_end:")
        A("s_endpgm")
        self.L.append("L_codeend:")
        nv = 216
        self.L += ['.section .rodata,"a"', ".p2align 6", f".amdhsa_kernel {KN}",
                   f"  .amdhsa_next_free_vgpr {nv}", "  .amdhsa_next_free_sgpr 96", f"  .amdhsa_accum_offset {nv}",
                   "  .amdhsa_group_segment_fixed_size 0", "  .amdhsa_kernarg_size 96", "  .amdhsa_user_sgpr_count 2",
                   "  .amdhsa_user_sgpr_kernarg_segment_ptr 1", "  .amdhsa_system_sgpr_workgroup_id_x 1",
                   "  .amdhsa_float_denorm_mode_32 3", ".end_amdhsa_kernel"]
        return "\n".join(self.L) + "\n"

    def write_stamps(self, n):
        if not self.stamps:
            return
        self.stamp(n)
        A = self.A
        A(f"""
        s_waitcnt lgkmcnt(0)
        s_mov_b64 exec, -1
        s_lshl3_add_u32 s40, s2, s94
        s_lshl_b32 s40, s40, 6
        s_add_u32 s40, s40, {WS_ST:#x}
        v_mov_b32 v1, 0""")
        for k in range(n + 1):
            A(f"v_writelane_b32 v1, s{sSTAMP+2*k}, {k}")
        A(f"""
        s_getreg_b32 s41, hwreg(HW_REG_XCC_ID)
        v_writelane_b32 v1, s41, 15
        v_lshl_add_u32 v2, v0, 2, s40
        s_mov_b64 exec, 0xffff
        global_store_dword v2, v1, s[26:27]""")

    def swave(self):
        A = self.A
        W = self.W
        vPS, vXN, vSEL, aQ, aG, aU = 16, 24, 28, 32, 36, 40
        vWQ, vGA, vUP, vDN, vWO = 56, 88, 120, 152, 184
        vAq, vAg, vAd, vAo, vAk, vAv, vRed, vPub = 4, 5, 6, 7, 8, 9, 10, 11
        vT = 44
        A(f"""
        s_lshl_b32 s40, s{sRB}, 8
        s_lshl_b32 s41, s{sW}, 6
        s_add_u32 s40, s40, s41
        v_lshrrev_b32 v12, 3, v0
        v_and_b32 v13, 7, v0
        v_lshlrev_b32 v14, 5, v0
        v_add_u32 v15, s40, v12
        v_add_lshl_u32 v1, v0, s40, 1
        v_lshlrev_b32 v13, 4, v13
        s_lshl_b32 s41, s{sCT}, 7
        v_lshl_add_u32 v{vAq}, v15, 13, v13
        v_add_u32 v{vAq}, s41, v{vAq}
        s_mov_b32 s45, 0x10000
        s_waitcnt lgkmcnt(0)
        global_load_dwordx4 v[{vGA}:{vGA+3}], v14, s[4:5]
        global_load_dwordx4 v[{vGA+4}:{vGA+7}], v14, s[4:5] offset:16
        global_load_ushort v{vGA+8}, v1, s[4:5]""")
        for m in range(8):
            A(f"global_load_dwordx4 v[{vWQ+4*m}:{vWQ+4*m+3}], v{vAq}, s[10:11] nt")
            if m < 7:
                A(f"v_add_u32 v{vAq}, s45, v{vAq}")
        A(f"s_load_dword s{sT32}, s[26:27], {WS_E}")
        self.stamp(1)
        A(f"""
        v_mul_u32_u24 v{vAg}, 7168, v15
        s_mov_b32 s46, {7168*8}
        s_movk_i32 s45, 0x4000
        s_lshl_b32 s41, s{sFT}, 7
        v_add3_u32 v{vAg}, v{vAg}, v13, s41
        ; down / wo: rows tile*64 + 8*m + (l>>3), columns rb*256 + sw*64 + 8*(l&7)
        v_lshl_add_u32 v1, v12, 11, v13
        s_lshl_b32 s40, s40, 1
        s_lshl_b32 s41, s{sFT}, 17
        s_add_u32 s41, s41, s40
        v_add_u32 v{vAd}, s41, v1
        s_lshl_b32 s41, s{sCT}, 17
        s_add_u32 s41, s41, s40
        v_add_u32 v{vAo}, s41, v1
        s_lshl_b32 s40, s{sG}, 24
        s_lshl_b32 s41, s{sCH}, 14
        s_add_u32 s40, s40, s41
        s_lshl_b32 s47, s{sW}, 12
        s_add_u32 s40, s40, s47
        s_add_u32 s40, s40, {(65536-4096)*256:#x}
        v_lshrrev_b32 v1, 4, v0
        v_and_b32 v2, 15, v0
        v_xor_b32 v3, v2, v1
        v_lshlrev_b32 v3, 4, v3
        v_lshl_add_u32 v3, v1, 8, v3
        v_add_u32 v{vAk}, s40, v3
        v_lshlrev_b32 v3, 1, v1
        v_xor_b32 v3, v2, v3
        v_lshlrev_b32 v3, 4, v3
        v_lshl_add_u32 v3, v1, 8, v3
        v_add_u32 v{vAv}, s40, v3
        v_and_b32 v3, 1, v1
        v_lshlrev_b32 v3, 4, v3
        v_lshl_add_u32 v3, v13, 1, v3
        v_lshrrev_b32 v2, 5, v0
        v_lshl_add_u32 v{vRed}, v2, 8, v3
        s_lshl_b32 s40, s{sW}, 9
        v_add_u32 v{vRed}, s40, v{vRed}
        s_lshl_b32 s40, s{sRB}, 10
        s_lshl_b32 s41, s{sW}, 8
        s_add_u32 s40, s40, s41
        v_add_u32 v{vPub}, s40, v3
        s_mov_b32 s40, 0xaaaaaaaa
        s_mov_b32 s41, 0xaaaaaaaa
        v_mov_b32 v1, 0x0c0c0100
        v_mov_b32 v2, 0x01000c0c
        v_cndmask_b32 v1, v1, v2, s[40:41]
        v_mov_b32 v2, 0x0c0c0302
        v_mov_b32 v3, 0x03020c0c
        v_cndmask_b32 v2, v2, v3, s[40:41]
        v_mov_b32 v3, 0x0c0c0c0c""")
        for d in range(4):
            m = 0x03030303 << (2*d)
            A(f"""
            s_mov_b32 s40, {m:#x}
            s_mov_b32 s41, {m:#x}
            v_cndmask_b32 v{vPS+d}, v3, v1, s[40:41]
            v_cndmask_b32 v{vPS+4+d}, v3, v2, s[40:41]""")
        A("s_barrier")
        x0 = vUP
        A("s_waitcnt vmcnt(8)")
        self.stamp(2)
        for i in range(8):
            A(f"v_lshlrev_b32 v{x0+2*i}, 16, v{vGA+i}\nv_and_b32 v{x0+2*i+1}, 0xffff0000, v{vGA+i}")
        A(f"v_pk_add_f32 v[{vT}:{vT+1}], v[{x0}:{x0+1}], v[{x0+2}:{x0+3}]")
        for i in range(2, 8):
            A(f"v_pk_add_f32 v[{vT}:{vT+1}], v[{vT}:{vT+1}], v[{x0+2*i}:{x0+2*i+1}]")
        A(f"v_add_f32 v{vT}, v{vT}, v{vT+1}")
        self.allreduce_in_row(vT)
        self.allreduce_rows(vT, vT+1, "v_add_f32")
        A(f"v_mul_f32 v{vT}, {f2u(1.0/1024):#x}, v{vT}")
        for i in range(8):
            A(f"v_pk_add_f32 v[{x0+2*i}:{x0+2*i+1}], v[{x0+2*i}:{x0+2*i+1}], v[{vT}:{vT+1}] op_sel_hi:[1,0] neg_lo:[0,1] neg_hi:[0,1]")
        A(f"v_pk_mul_f32 v[{vT+2}:{vT+3}], v[{x0}:{x0+1}], v[{x0}:{x0+1}]")
        for i in range(1, 8):
            A(f"v_pk_fma_f32 v[{vT+2}:{vT+3}], v[{x0+2*i}:{x0+2*i+1}], v[{x0+2*i}:{x0+2*i+1}], v[{vT+2}:{vT+3}]")
        A(f"v_add_f32 v{vT+2}, v{vT+2}, v{vT+3}")
        self.allreduce_in_row(vT+2)
        self.allreduce_rows(vT+2, vT+3, "v_add_f32")
        A(f"v_mul_f32 v{vT+2}, {f2u(1.0/1024):#x}, v{vT+2}")
        self.bf16_round(vT, vT)
        self.bf16_round(vT+2, vT+2)
        A(f"v_add_f32 v{vT+2}, {f2u(1e-5):#x}, v{vT+2}")
        self.bf16_round(vT+2, vT+2)
        A(f"v_sqrt_f32 v{vT+2}, v{vT+2}\ns_nop 0")
        self.bf16_round(vT+2, vT+2)
        A(f"v_rcp_f32 v{vT+2}, v{vT+2}")
        r = vGA + 8
        A(f"""
        v_lshlrev_b32 v{r}, 16, v{r}
        v_sub_f32 v{r}, v{r}, v{vT}
        s_lshl_b32 s40, s{sW}, 7
        v_lshl_add_u32 v1, v12, 1, v13""")
        self.bf16_round(r, r)
        A(f"""
        v_mul_f32 v{r}, v{r}, v{vT+2}
        v_add_u32 v1, s40, v1
        v_cvt_pk_bf16_f32 v{r}, v{r}, v{r}
        v_lshl_add_u32 v2, v12, 4, s40
        ds_write_b16 v1, v{r} offset:{L_XN}
        ds_read_b128 v[{vXN}:{vXN+3}], v2 offset:{L_XN}""")
        A(f"""
        s_waitcnt lgkmcnt(0)
        s_add_u32 s{sT32}, s{sT32}, 1
        s_and_b32 s{sT10}, s{sT32}, s44
        v_mov_b32 v3, s{sT10}""")
        self.stamp(3)

        def sel(m, dst=vSEL, src=vXN):
            for d in range(4):
                A(f"v_perm_b32 v{dst+d}, v{src+(m>>1)}, v{src+(m>>1)}, v{vPS+4*(m&1)+d}")

        def mfma(acc, s, w, first):
            c = "0" if first else f"v[{acc}:{acc+3}]"
            A(f"v_mfma_f32_16x16x32_bf16 v[{acc}:{acc+3}], v[{s}:{s+3}], v[{w}:{w+3}], {c}")

        def red_publish(accs, lbase, cnt, nl, wsoff_code, floff_code, nrep):
            done = self.lab("Lnotlast")
            A("s_nop 7")
            self.exec_set(0xFF00FF0000FF00FF)
            for i, a in enumerate(accs):
                A(f"ds_write_b128 v{vRed}, v[{a}:{a+3}] offset:{lbase + 2048*i}")
            self.arrive(cnt)
            A(f"s_cmp_eq_u32 s{sTMP}, 3\ns_cbranch_scc0 {done}")
            self.exec_set((1 << nl) - 1)
            A(f"""
            v_and_b32 v1, 15, v0
            v_lshrrev_b32 v2, 4, v0
            v_lshlrev_b32 v1, 4, v1
            v_lshl_add_u32 v1, v2, 11, v1""")
            t = vT
            A(f"ds_read_b128 v[{t}:{t+3}], v1 offset:{lbase}")
            A(f"ds_read_b128 v[{t+4}:{t+7}], v1 offset:{lbase+256}")
            A(wsoff_code)
            A(f"v_lshl_add_u32 v2, v0, 4, s40")
            for k in range(2, 8):
                b = t + 8 if k % 2 == 0 else t + 4
                if k > 2:
                    pass
                A(f"ds_read_b128 v[{aT+4*(k-2)}:{aT+4*(k-2)+3}], v1 offset:{lbase+256*k}")
            A("s_waitcnt lgkmcnt(0)")
            A(f"v_pk_add_f32 v[{t}:{t+1}], v[{t}:{t+1}], v[{t+4}:{t+5}]\nv_pk_add_f32 v[{t+2}:{t+3}], v[{t+2}:{t+3}], v[{t+6}:{t+7}]")
            for k in range(6):
                b = aT + 4*k
                A(f"v_pk_add_f32 v[{t}:{t+1}], v[{t}:{t+1}], v[{b}:{b+1}]\nv_pk_add_f32 v[{t+2}:{t+3}], v[{t+2}:{t+3}], v[{b+2}:{b+3}]")
            for r in range(4):
                self.tag(t + r)
            A(f"global_store_dwordx4 v2, v[{t}:{t+3}], s[26:27] sc1")
            A(floff_code)
            self.flag_store(nrep)
            A(f"{done}:")

        aT = vWQ

        def q_publish():
            red_publish([aQ], L_RQ, C_Q, 16,
                        f"s_lshl2_add_u32 s40, s{sCT}, s{sRB}\ns_lshl_b32 s40, s40, 8\ns_add_u32 s40, s40, {WS_BQ:#x}",
                        f"s_lshl2_add_u32 s40, s{sCT}, s{sRB}\ns_lshl_b32 s40, s40, 2\ns_add_u32 s40, s40, {WS_FLA:#x}", NREP)
            self.stamp(4)

        def g_publish():
            red_publish([aG, aU], L_RG, C_G, 32,
                        f"s_lshl2_add_u32 s40, s{sFT}, s{sRB}\ns_lshl_b32 s40, s40, 9\ns_add_u32 s40, s40, {WS_BD:#x}",
                        f"s_lshl4_add_u32 s40, s{sFT}, s{sRB}\ns_lshl_b32 s40, s40, 2\ns_add_u32 s40, s40, {WS_FLD:#x}", 1)
            self.stamp(6)

        def issue(op):
            kind, m = op
            if kind == "k":
                if m == 0:
                    A(f"s_mov_b32 m0, s47")
                    A(f"v_mov_b32 v1, v{vAk}")
                else:
                    A(f"v_xor_b32 v1, {64*m}, v{vAk}")
                A(f"global_load_lds_dwordx4 v1, s[6:7] offset:{1024*m} nt")
            elif kind == "v":
                if m == 0:
                    A(f"s_add_u32 s47, s47, {L_V}\ns_mov_b32 m0, s47")
                A(f"v_xor_b32 v1, {128*(m&1)}, v{vAv}")
                A(f"global_load_lds_dwordx4 v1, s[8:9] offset:{1024*m} nt")
            elif kind == "g":
                A(f"global_load_dwordx4 v[{vGA+4*m}:{vGA+4*m+3}], v{vAg}, s[16:17] nt")
            elif kind == "u":
                A(f"global_load_dwordx4 v[{vUP+4*m}:{vUP+4*m+3}], v{vAg}, s[18:19] nt")
                if m < 7:
                    A(f"v_add_u32 v{vAg}, s46, v{vAg}")
            elif kind in "do":
                va, base, sb = (vAd, vDN, 20) if kind == "d" else (vAo, vWO, 12)
                A(f"global_load_dwordx4 v[{base+4*m}:{base+4*m+3}], v{va}, s[{sb}:{sb+1}] nt")
                if m < 7:
                    A(f"v_add_u32 v{va}, s45, v{va}")

        def process(op):
            kind, m = op
            if kind == "q":
                mfma(aQ, vSEL, vWQ + 4*m, m == 0)
                if m < 7:
                    sel(m + 1)
                    A("s_nop 1")
                else:
                    q_publish()
                    sel(0)
            elif kind == "v" and m == 3:
                self.arrive(C_KV, want_old=False)
                self.stamp(5)
            elif kind == "g":
                mfma(aG, vSEL, vGA + 4*m, m == 0)
            elif kind == "u":
                mfma(aU, vSEL, vUP + 4*m, m == 0)
                if m < 7:
                    sel(m + 1)
                    A("s_nop 1")
                else:
                    g_publish()

        def final_gemv(flag, lsrc, selbase, data, counts, wsrow_code, st):
            self.lds_spin(flag, 1, sleep=1)
            A(f"v_lshlrev_b32 v1, 4, v12\nds_read_b128 v[{vXN}:{vXN+3}], v1 offset:{lsrc}")
            A(wsrow_code)
            A(f"v_add_u32 v2, s40, v{vPub}")
            A("s_waitcnt lgkmcnt(0)")
            for m in range(8):
                sel(m, selbase + 4*m)
            self.stamp(st)
            for m in range(8):
                if counts[m] is not None:
                    A(f"s_waitcnt vmcnt({counts[m]})")
                mfma(aQ, selbase + 4*m, data + 4*m, m == 0)
            g = vT
            A(f"""
            s_nop 7
            v_permlane32_swap_b32 v{aQ}, v{aQ+2}
            v_permlane32_swap_b32 v{aQ+1}, v{aQ+3}
            s_nop 0
            v_add_f32_dpp v{g}, v{aQ+2}, v{aQ} row_shl:8 row_mask:0xf bank_mask:0xf bound_ctrl:1
            v_add_f32_dpp v{g+1}, v{aQ+3}, v{aQ+1} row_shl:8 row_mask:0xf bank_mask:0xf bound_ctrl:1""")
            self.tag(g); self.tag(g + 1)
            A(f"""
            s_nop 0
            v_permlane32_swap_b32 v{g}, v{g+2}
            v_permlane32_swap_b32 v{g+1}, v{g+3}
            s_mov_b64 exec, 0x00ff00ff
            global_store_dwordx4 v2, v[{g}:{g+3}], s[26:27] sc1
            s_mov_b64 exec, -1""")

        def stream(ops):
            landed = 0
            for i in range(8, len(ops)):
                A(f"s_waitcnt vmcnt({W-1})")
                issue(ops[i])
                while landed <= i - W:
                    process(ops[landed]); landed += 1
            return landed

        head = [("q", m) for m in range(8)] + [("k", m) for m in range(4)] + [("v", m) for m in range(4)]
        wo = [("o", m) for m in range(8)]
        srow = f"s_mul_i32 s40, s{sCT}, {ROWP}\ns_add_u32 s40, s40, {WS_BS:#x}"
        frow = f"s_mul_i32 s40, s{sFT}, {ROWP}\ns_add_u32 s40, s40, {WS_BF:#x}"
        sel(0)
        A(f"s_cmp_eq_u32 s{sT8}, 7\ns_cbranch_scc1 L_slight")
        ops = head + [(k, m) for m in range(8) for k in "gu"] + [("d", m) for m in range(8)] + wo
        landed = stream(ops)
        assert landed >= 32 and landed == 48 - W
        self.arrive(C_SD, want_old=False)
        self.stamp(7)
        cnt = [(47 - (32 + m)) if 32 + m >= landed else None for m in range(8)]
        final_gemv(C_FH, L_HBF, vGA, vDN, cnt, frow, 8)
        cnt = [(47 - (40 + m)) + 1 for m in range(8)]
        final_gemv(C_FO, L_OBF, vWQ, vWO, cnt, srow, 9)
        self.write_stamps(10)
        A("s_endpgm")
        A("L_slight:")
        ops = head + wo
        landed = stream(ops)
        assert landed >= 16
        self.arrive(C_SD, want_old=False)
        self.stamp(7)
        cnt = [(23 - (16 + m)) for m in range(8)]
        final_gemv(C_FO, L_OBF, vWQ, vWO, cnt, srow, 9)
        self.write_stamps(10)
        A("s_endpgm")

    def awave(self):
        A = self.A
        vKF, vVF, vQF, vS, vGT = 56, 120, 136, 152, 168
        vI, vJ = 4, 5
        vA0, vA1, vA2 = 6, 7, 8
        vXF = 9
        vTP = 13
        vT = 16
        A(f"""
        L_awave:
        s_setprio 3
        s_sub_u32 s{sW}, s{sW}, 4
        v_and_b32 v{vI}, 15, v0
        v_lshrrev_b32 v{vJ}, 4, v0
        v_mov_b32 v1, 0
        v_lshlrev_b32 v2, 2, v{vI}
        ds_write_b32 v2, v1 offset:{L_CNT}
        s_waitcnt lgkmcnt(0)
        s_load_dword s{sT32}, s[26:27], {WS_E}""")
        if self.prefetch:
            A(f"""
            s_getpc_b64 s[40:41]
            L_pc:
            s_sub_u32 s40, s40, L_pc-{KN}
            s_subb_u32 s41, s41, 0
            s_mul_i32 s42, s{sY}, 384
            v_lshl_add_u32 v1, v0, 7, s42
            v_min_u32 v1, L_codeend-{KN}-4, v1
            s_mov_b64 exec, 7
            global_load_dword v55, v1, s[40:41]
            s_mov_b64 exec, -1""")
        A(f"""
        s_lshl_b32 s42, s{sX}, 5
        s_add_u32 s42, s42, s{sY}
        s_lshl_b32 s43, s42, 3
        v_lshl_add_u32 v{vA2}, v{vJ}, 1, s43
        global_load_ushort v{vXF}, v{vA2}, s[4:5]
        v_and_b32 v1, 1, v0
        v_lshl_add_u32 v1, v1, 2, v{vJ}
        v_and_b32 v2, 14, v0
        v_lshl_add_u32 v{vTP}, v1, 4, v2
        s_barrier
        s_waitcnt lgkmcnt(0)
        s_add_u32 s{sT32}, s{sT32}, 1
        s_and_b32 s{sT10}, s{sT32}, s44
        v_mov_b32 v3, s{sT10}""")
        self.stamp(1)
        A(f"""
        s_lshl2_add_u32 s41, s{sG}, s{sW}
        s_lshl_b32 s40, s41, 12
        s_add_u32 s40, s40, {WS_BQ:#x}
        v_lshlrev_b32 v1, 4, v{vI}
        v_lshl_add_u32 v1, v{vJ}, 10, v1
        v_add_u32 v{vA0}, s40, v1
        s_and_b32 s95, s{sCH}, {NREP-1}
        s_mul_i32 s95, s95, {REPP}
        s_lshl_b32 s40, s41, 6
        s_add_u32 s40, s40, s95
        s_add_u32 s40, s40, {WS_FLA:#x}""")
        self.flag_poll(16)
        self.stamp(2)
        rq = self.lab("Lgq")
        A(f"s_mov_b32 s45, 0\n{rq}:")
        for n in range(4):
            A(f"global_load_dwordx4 v[{vGT+4*n}:{vGT+4*n+3}], v{vA0}, s[26:27] offset:{256*n} sc1")
        skip = self.lab("Lkvdone")
        A(f"s_cmp_lg_u32 s45, 0\ns_cbranch_scc1 {skip}\ns_mov_b32 s45, 1")
        self.lds_spin(C_KV, 4, sleep=1)
        A(f"""
        v_xor_b32 v1, v{vI}, v{vJ}
        v_lshlrev_b32 v1, 4, v1
        v_lshl_add_u32 v1, v{vI}, 8, v1""")
        for s in range(4):
            if s:
                A(f"v_xor_b32 v2, {64*s}, v1")
            for t in range(4):
                r = vKF + 16*t + 4*s
                A(f"ds_read_b128 v[{r}:{r+3}], v{2 if s else 1} offset:{L_K + 4096*t}")
            if s == 1:
                A("s_waitcnt lgkmcnt(0)")
        A(f"""
        v_bfe_u32 v10, v0, 2, 2
        v_lshl_add_u32 v10, v{vJ}, 2, v10
        v_and_b32 v11, 7, v10
        v_lshlrev_b32 v11, 1, v11
        v_bfe_u32 v12, v0, 1, 1
        s_lshl_b32 s40, s{sW}, 2
        v_add_u32 v12, s40, v12
        v_xor_b32 v11, v11, v12
        v_lshlrev_b32 v11, 4, v11
        v_lshl_add_u32 v11, v10, 8, v11
        v_and_b32 v12, 1, v0
        v_lshl_add_u32 v11, v12, 3, v11
        v_xor_b32 v12, 32, v11
        s_waitcnt lgkmcnt(0)""")
        for u in range(2):
            for t in range(4):
                r = vVF + 8*u + 2*t
                A(f"ds_read_b64_tr_b16 v[{r}:{r+1}], v{11+u} offset:{L_V + 4096*t}")
        A(f"s_mov_b32 s{sSPIN}, 0\n{skip}:")
        self.stamp(3)
        A("s_waitcnt vmcnt(0)")
        self.tagcheck([vGT+4*n for n in range(4)], vT, vT+1)
        self.tagtest(vT, rq)
        self.stamp(4)
        for h in (0, 2):
            A(f"v_pk_add_f32 v[{vGT+h}:{vGT+h+1}], v[{vGT+h}:{vGT+h+1}], v[{vGT+4+h}:{vGT+5+h}]")
            A(f"v_pk_add_f32 v[{vGT+8+h}:{vGT+9+h}], v[{vGT+8+h}:{vGT+9+h}], v[{vGT+12+h}:{vGT+13+h}]")
        for h in (0, 2):
            A(f"v_pk_add_f32 v[{vGT+h}:{vGT+h+1}], v[{vGT+h}:{vGT+h+1}], v[{vGT+8+h}:{vGT+9+h}]")
        A(f"""
        v_cvt_pk_bf16_f32 v{vGT}, v{vGT}, v{vGT+1}
        v_cvt_pk_bf16_f32 v{vGT+1}, v{vGT+2}, v{vGT+3}
        v_lshrrev_b32 v1, 1, v{vJ}
        v_mul_u32_u24 v1, {QLP}, v1
        v_and_b32 v2, 1, v{vJ}
        v_lshl_add_u32 v1, v2, 7, v1
        v_lshl_add_u32 v1, v{vI}, 3, v1
        s_mul_i32 s40, s{sW}, {2*QLP}
        v_add_u32 v1, s40, v1
        ds_write_b64 v1, v[{vGT}:{vGT+1}] offset:{L_QL}""")
        self.arrive(C_QL, want_old=False)
        self.lds_spin(C_QL, 4, sleep=0)
        A(f"""
        v_and_b32 v1, 7, v0
        v_mul_u32_u24 v1, {QLP}, v1
        v_lshl_add_u32 v1, v{vJ}, 4, v1""")
        for s in range(4):
            A(f"ds_read_b128 v[{vQF+4*s}:{vQF+4*s+3}], v1 offset:{L_QL + 64*s}")
        A(f"""
        s_lshl_b32 s40, s{sG}, 4
        s_lshr_b32 s41, s{sW}, 1
        s_add_u32 s40, s40, s41
        s_lshl_b32 s40, s40, 6
        s_add_u32 s40, s40, s{sCH}
        s_lshl_b32 s40, s40, 1
        s_and_b32 s41, s{sW}, 1
        s_add_u32 s40, s40, s41
        s_lshl_b32 s40, s40, 7
        s_add_u32 s40, s40, {WS_BO:#x}
        v_and_b32 v1, 7, v0
        v_lshlrev_b32 v{vA0}, 15, v1
        v_bfe_u32 v2, v0, 3, 1
        v_lshl_add_u32 v{vA0}, v2, 6, v{vA0}
        v_lshl_add_u32 v{vA0}, v{vJ}, 4, v{vA0}
        v_add_u32 v{vA0}, s40, v{vA0}
        s_lshl_b32 s40, s{sG}, 9
        s_add_u32 s40, s40, s{sCH}
        s_lshl_b32 s40, s40, 4
        s_add_u32 s40, s40, {WS_BML:#x}
        v_lshl_add_u32 v{vA1}, v1, 10, s40
        s_mov_b32 s46, {f2u(128 ** -0.5):#x}
        s_mov_b32 s47, {f2u(128 ** -0.5):#x}
        s_waitcnt lgkmcnt(0)""")
        for s in range(4):
            for t in range(4):
                c = "0" if s == 0 else f"v[{vS+4*t}:{vS+4*t+3}]"
                r = vKF + 16*t + 4*s
                A(f"v_mfma_f32_16x16x32_bf16 v[{vS+4*t}:{vS+4*t+3}], v[{r}:{r+3}], v[{vQF+4*s}:{vQF+4*s+3}], {c}")
        A("s_nop 4")
        for p in range(8):
            r = vS + 2*p
            A(f"""
            v_cvt_pk_bf16_f32 v1, v{r}, v{r+1}
            v_lshlrev_b32 v{r}, 16, v1
            v_and_b32 v{r+1}, 0xffff0000, v1
            v_pk_mul_f32 v[{r}:{r+1}], v[{r}:{r+1}], s[46:47]
            v_cvt_pk_bf16_f32 v1, v{r}, v{r+1}
            v_lshlrev_b32 v{r}, 16, v1
            v_and_b32 v{r+1}, 0xffff0000, v1""")
        vM, vL = vT, vT + 1
        A(f"v_max3_f32 v{vM}, v{vS}, v{vS+1}, v{vS+2}")
        for k in range(3, 15, 2):
            A(f"v_max3_f32 v{vM}, v{vM}, v{vS+k}, v{vS+k+1}")
        A(f"v_max_f32 v{vM}, v{vM}, v{vS+15}")
        self.allreduce_rows(vM, vT + 2, "v_max_f32")
        A(f"s_mov_b32 s45, {f2u(LOG2E):#x}\nv_mul_f32 v{vT+2}, s45, v{vM}")
        for k in range(16):
            A(f"v_fma_f32 v{vS+k}, v{vS+k}, s45, -v{vT+2}")
        for k in range(16):
            A(f"v_exp_f32 v{vS+k}, v{vS+k}")
        A("s_nop 0")
        A(f"v_pk_add_f32 v[{vT+4}:{vT+5}], v[{vS}:{vS+1}], v[{vS+2}:{vS+3}]")
        for k in range(2, 8):
            A(f"v_pk_add_f32 v[{vT+4}:{vT+5}], v[{vT+4}:{vT+5}], v[{vS+2*k}:{vS+2*k+1}]")
        for k in range(8):
            A(f"v_cvt_pk_bf16_f32 v{vQF+k}, v{vS+2*k}, v{vS+2*k+1}")
        A(f"v_add_f32 v{vL}, v{vT+4}, v{vT+5}\ns_nop 0")
        o0, o1 = vS, vS + 4
        for u, o in ((0, o0), (1, o1)):
            A(f"v_mfma_f32_16x16x32_bf16 v[{o}:{o+3}], v[{vVF+8*u}:{vVF+8*u+3}], v[{vQF}:{vQF+3}], 0")
        for u, o in ((0, o0), (1, o1)):
            A(f"v_mfma_f32_16x16x32_bf16 v[{o}:{o+3}], v[{vVF+8*u+4}:{vVF+8*u+7}], v[{vQF+4}:{vQF+7}], v[{o}:{o+3}]")
        self.allreduce_rows(vL, vT + 2, "v_add_f32")
        self.mask(("s40", "s41"), 0xFF00FF00FF00FF00)
        for r in range(4):
            A(f"v_cndmask_b32 v{o0+r}, v{o0+r}, v{o1+r}, s[40:41]")
        for r in range(4):
            self.tag(o0 + r)
        A(f"global_store_dwordx4 v{vA0}, v[{o0}:{o0+3}], s[26:27] sc1")
        nml = self.lab("Lnoml")
        A(f"s_cmp_lg_u32 s{sW}, 0\ns_cbranch_scc1 {nml}")
        self.tag(vM); self.tag(vL)
        A(f"""
        v_mov_b32 v{vT+2}, v3
        v_mov_b32 v{vT+3}, v3
        s_mov_b64 exec, 0xff
        global_store_dwordx4 v{vA1}, v[{vT}:{vT+3}], s[26:27] sc1
        s_mov_b64 exec, -1
        {nml}:""")
        self.arrive(C_P)
        nfl = self.lab("Lnofl")
        A(f"""
        s_cmp_eq_u32 s{sTMP}, 3
        s_cbranch_scc0 {nfl}
        s_lshl_b32 s40, s{sG}, 6
        s_add_u32 s40, s40, s{sCH}
        s_lshl_b32 s40, s40, 2
        s_add_u32 s40, s40, {WS_FLB:#x}""")
        self.flag_store(NREP)
        A(f"{nfl}:")
        self.stamp(5)
        A(f"""
        s_lshl2_add_u32 s40, s{sCT}, s{sW}
        s_lshl_b32 s40, s40, 12
        s_add_u32 s40, s40, {WS_BO:#x}
        v_lshl_add_u32 v{vA0}, v0, 4, s40
        s_lshr_b32 s40, s{sCT}, 1
        s_lshl2_add_u32 s40, s40, s{sW}
        s_lshl_b32 s40, s40, 8
        s_add_u32 s40, s40, {WS_BML:#x}
        v_lshl_add_u32 v{vA1}, v{vJ}, 4, s40
        s_lshl2_add_u32 s40, s{sG}, s{sW}
        s_lshl_b32 s40, s40, 6
        s_add_u32 s40, s40, s95
        s_add_u32 s40, s40, {WS_FLB:#x}""")
        self.flag_poll(16)
        self.stamp(6)
        rb_ = self.lab("Lgo")
        vO, vML = vGT, vGT + 16
        A(f"{rb_}:")
        for n in range(4):
            A(f"global_load_dwordx4 v[{vML+4*n}:{vML+4*n+3}], v{vA1}, s[26:27] offset:{64*n} sc1")
        for n in range(4):
            A(f"global_load_dwordx4 v[{vO+4*n}:{vO+4*n+3}], v{vA0}, s[26:27] offset:{1024*n} sc1")
        A("s_waitcnt vmcnt(0)")
        self.tagcheck([vGT + 4*n for n in range(8)], vT, vT + 1)
        self.tagtest(vT, rb_)
        self.stamp(7)

        def combine(ms, ls, os_, cross):
            A(f"v_max3_f32 v{vT}, v{ms[0]}, v{ms[1]}, v{ms[2]}\nv_max_f32 v{vT}, v{vT}, v{ms[3]}")
            if cross:
                self.allreduce_rows(vT, vT + 2, "v_max_f32")
            for n in range(4):
                A(f"v_sub_f32 v{vT+8+2*n}, v{ms[n]}, v{vT}")
            for n in range(4):
                A(f"v_mul_f32 v{vT+8+2*n}, s45, v{vT+8+2*n}")
            for n in range(4):
                A(f"v_exp_f32 v{vT+8+2*n}, v{vT+8+2*n}")
            A("s_nop 0")
            A(f"v_mul_f32 v{vT+1}, v{vT+8}, v{ls[0]}")
            for h in (0, 2):
                A(f"v_pk_mul_f32 v[{vT+4+h}:{vT+5+h}], v[{os_[0]+h}:{os_[0]+h+1}], v[{vT+8}:{vT+9}] op_sel_hi:[1,0]")
            for n in range(1, 4):
                w = vT + 8 + 2*n
                A(f"v_fmac_f32 v{vT+1}, v{w}, v{ls[n]}")
                for h in (0, 2):
                    A(f"v_pk_fma_f32 v[{vT+4+h}:{vT+5+h}], v[{os_[n]+h}:{os_[n]+h+1}], v[{w}:{w+1}], v[{vT+4+h}:{vT+5+h}] op_sel_hi:[1,0,1]")

        for n in range(4):
            A(f"v_and_b32 v{vML+4*n}, 0xffff0000, v{vML+4*n}")
        combine([vML+4*n for n in range(4)], [vML+4*n+1 for n in range(4)], [vO+4*n for n in range(4)], False)
        A(f"""
        s_lshl_b32 s40, s{sW}, 10
        v_lshl_add_u32 v1, v0, 4, s40
        ds_write_b128 v1, v[{vT+4}:{vT+7}] offset:{L_OR}
        v_lshrrev_b32 v1, 1, v1
        ds_write_b64 v1, v[{vT}:{vT+1}] offset:{L_ML}""")
        self.arrive(C_O)
        nl = self.lab("Lnotlasto")
        A(f"""
        s_cmp_eq_u32 s{sTMP}, 3
        s_cbranch_scc0 {nl}
        v_lshlrev_b32 v1, 4, v0
        v_lshlrev_b32 v2, 3, v0""")
        for n in range(4):
            A(f"ds_read_b64 v[{vML+2*n}:{vML+2*n+1}], v2 offset:{L_ML + 512*n}")
        for n in range(4):
            A(f"ds_read_b128 v[{vO+4*n}:{vO+4*n+3}], v1 offset:{L_OR + 1024*n}")
        A("s_waitcnt lgkmcnt(0)")
        combine([vML+2*n for n in range(4)], [vML+2*n+1 for n in range(4)], [vO+4*n for n in range(4)], True)
        self.allreduce_rows(vT + 1, vT + 2, "v_add_f32")
        self.reduce_scatter_rows(vT + 4)
        A(f"""
        v_rcp_f32 v{vT+1}, v{vT+1}
        s_nop 0
        v_mul_f32 v{vT+4}, v{vT+4}, v{vT+1}
        v_cvt_pk_bf16_f32 v{vT+4}, v{vT+4}, v{vT+4}
        ds_write_b16 v{vTP}, v{vT+4} offset:{L_OBF}
        v_mov_b32 v1, {C_FO}
        v_mov_b32 v2, 1
        s_mov_b64 exec, 1
        ds_write_b32 v1, v2
        s_mov_b64 exec, -1
        {nl}:""")
        self.stamp(8)
        A(f"""
        s_cmp_eq_u32 s{sW}, 0
        s_cbranch_scc1 L_final
        s_cmp_eq_u32 s{sW}, 3
        s_cbranch_scc0 L_adone
        s_cmp_eq_u32 s{sT8}, 7
        s_cbranch_scc1 L_adone""")
        A(f"""
        s_lshl_b32 s40, s{sFT}, 11
        s_add_u32 s40, s40, {WS_BD:#x}
        v_lshlrev_b32 v1, 4, v{vI}
        v_lshl_add_u32 v1, v{vJ}, 9, v1
        v_add_u32 v{vA0}, s40, v1
        s_lshl_b32 s40, s{sFT}, 6
        s_add_u32 s40, s40, {WS_FLD:#x}""")
        self.flag_poll(4)
        self.stamp(9)
        rd = self.lab("Lgd")
        A(f"""
        {rd}:
        global_load_dwordx4 v[{vGT}:{vGT+3}], v{vA0}, s[26:27] sc1
        global_load_dwordx4 v[{vGT+4}:{vGT+7}], v{vA0}, s[26:27] offset:256 sc1
        s_waitcnt vmcnt(0)""")
        self.tagcheck([vGT, vGT + 4], vT, vT + 1)
        self.tagtest(vT, rd)
        self.reduce_scatter_rows(vGT)
        self.reduce_scatter_rows(vGT + 4)
        c1 = -2.0 * 0.7978845608028654 * LOG2E
        c2 = c1 * 0.044715
        g, u = vGT, vGT + 4
        self.bf16_round(g, g)
        self.bf16_round(u, u)
        A(f"""
        v_mul_f32 v{vT}, v{g}, v{g}
        v_mov_b32 v{vT+1}, {f2u(c1):#x}
        v_fmac_f32 v{vT+1}, {f2u(c2):#x}, v{vT}
        v_mul_f32 v{vT}, v{g}, v{vT+1}
        v_exp_f32 v{vT}, v{vT}
        s_nop 0
        v_add_f32 v{vT}, 1.0, v{vT}
        v_rcp_f32 v{vT}, v{vT}
        s_nop 0
        v_mul_f32 v{g}, v{g}, v{vT}""")
        self.bf16_round(g, g)
        A(f"""
        v_mul_f32 v{g}, v{g}, v{u}
        v_cvt_pk_bf16_f32 v{g}, v{g}, v{g}
        ds_write_b16 v{vTP}, v{g} offset:{L_HBF}
        v_mov_b32 v1, {C_FH}
        v_mov_b32 v2, 1
        s_mov_b64 exec, 1
        ds_write_b32 v1, v2
        s_mov_b64 exec, -1
        L_adone:""")
        self.write_stamps(10)
        A("s_endpgm")
        A(f"""
        L_final:
        s_lshl_b32 s42, s{sX}, 5
        s_add_u32 s42, s42, s{sY}
        s_lshl_b32 s42, s42, 4
        v_mul_u32_u24 v1, {ROWP}, v0
        s_add_u32 s40, s42, {WS_BF:#x}
        v_add_u32 v{vA0}, s40, v1
        s_add_u32 s40, s42, {WS_BS:#x}
        v_add_u32 v{vA1}, s40, v1""")
        for r in range(4):
            A(f"v_mov_b32 v{vGT+r}, v3")
        self.lds_spin(C_SD, 4, sleep=2)
        A(f"s_mov_b32 s{sSPIN}, 0")
        rf = self.lab("Lgf"); rf1 = self.lab("Lgf1")
        A(f"""
        s_branch {rf1}
        {rf}:
        s_sleep 4
        {rf1}:""")
        self.exec_set((1 << 56) - 1)
        A(f"""
        global_load_dwordx4 v[{vGT}:{vGT+3}], v{vA0}, s[26:27] sc1
        s_mov_b64 exec, -1
        s_waitcnt vmcnt(0)""")
        self.tagcheck([vGT], vT, vT + 1)
        self.tagtest(vT, rf)
        self.stamp(9)
        rs = self.lab("Lgs")
        A(f"global_load_dwordx4 v[{vGT+4}:{vGT+7}], v{vA1}, s[26:27] sc1")
        self.reduce_scatter_rows(vGT)
        self.allreduce_in_row(vGT)
        f = vGT
        self.bf16_round(f, f)
        A(f"""
        v_mul_f32 v{vT+4}, {f2u(-LOG2E):#x}, v{f}
        v_exp_f32 v{vT+4}, v{vT+4}
        v_lshlrev_b32 v{vXF}, 16, v{vXF}
        v_add_f32 v{vT+4}, 1.0, v{vT+4}
        v_rcp_f32 v{vT+4}, v{vT+4}
        s_nop 0
        v_mul_f32 v{f}, v{f}, v{vT+4}""")
        self.bf16_round(f, f)
        rs1 = self.lab("Lgs1")
        A(f"""
        s_branch {rs1}
        {rs}:
        global_load_dwordx4 v[{vGT+4}:{vGT+7}], v{vA1}, s[26:27] sc1
        {rs1}:
        s_waitcnt vmcnt(0)""")
        self.tagcheck([vGT + 4], vT, vT + 1)
        self.tagtest(vT, rs)
        s = vGT + 4
        self.reduce_scatter_rows(s)
        self.allreduce_in_row(s)
        self.bf16_round(s, s)
        A(f"v_mul_f32 v{s}, v{s}, v{f}")
        self.bf16_round(s, s)
        A(f"""
        v_add_f32 v{s}, v{s}, v{vXF}
        v_cvt_pk_bf16_f32 v{s}, v{s}, v{s}""")
        self.exec_set(0x0001000100010001)
        A(f"global_store_short v{vA2}, v{s}, s[22:23]")
        ne = self.lab("Lnoe")
        A(f"""
        s_cmp_lg_u32 s2, 0
        s_cbranch_scc1 {ne}
        s_mov_b64 exec, 1
        v_mov_b32 v1, {WS_E}
        v_mov_b32 v2, s{sT32}
        global_store_dword v1, v2, s[26:27]
        {ne}:""")
        self.write_stamps(10)


if __name__ == "__main__":
    import argparse
    ap = argparse.ArgumentParser()
    ap.add_argument("-o", default="recurrent_scan__sliding_block_cached__geglu_ffn__decode.s")
    ap.add_argument("-W", type=int, default=6)
    ap.add_argument("--stamps", action="store_true")
    a = ap.parse_args()
    open(a.o, "w").write(Gen(W=a.W, stamps=a.stamps).build())
```

```python
import sys, struct

KN = "recurrent_scan__sliding_block_cached__geglu_ffn__decode_kernel"

def f2u(x):
    return struct.unpack("<I", struct.pack("<f", x))[0]

WS_E   = 0x0
WS_FLD = 0x1000
NREP   = 16
REPP   = 1280
WS_FLA = 0x2000
WS_FLB = 0x8000
WS_BQ  = 0x10000
WS_BML = 0x20000
WS_BD  = 0x30000
ROWP   = 4352
WS_BS  = 0x50000
WS_BF  = 0x98000
WS_BO  = 0x100000
WS_ST  = 0x400000

L_K    = 0
L_V    = 16384
L_RQ   = 32768
L_RG   = L_RQ + 2048
L_QL   = L_RG + 4096
QLP    = 272
L_OR   = L_QL + 2304
L_ML   = L_OR + 4096
L_OBF  = L_ML + 2048
L_HBF  = L_OBF + 128
L_XN   = L_HBF + 128
L_CNT  = L_XN + 512
C_Q, C_G, C_KV, C_QL, C_P, C_O, C_FO, C_FH, C_SD = [L_CNT + 4*i for i in range(9)]
LDS_BYTES = L_CNT + 64

TAGM = 0x3FF
LOG2E = 1.4426950408889634
SPIN_MAX = 1 << 20

sX, sY, sRB, sT8, sCT, sFT, sG, sCH = 28, 29, 30, 31, 32, 33, 34, 35
sT32, sT10, sSPIN, sTMP = 36, 37, 38, 39
sW = 3
sP = 48
sSTAMP = 64


class Gen:
    def __init__(self, W=6, stamps=False, prefetch=True, dbg=False, probe=None):
        self.probe = probe
        self.L = []
        self.W = W
        self.stamps = stamps
        self.prefetch = prefetch
        self.dbg = dbg
        self.nlab = 0

    def A(self, s):
        for line in s.strip("\n").split("\n"):
            self.L.append("    " + line.strip() if not line.strip().endswith(":") else line.strip())

    def lab(self, p="L"):
        self.nlab += 1
        return f"{p}_{self.nlab}"

    def stamp(self, k):
        if self.stamps or (self.probe and k in (0, self.probe[2])):
            self.A(f"s_memrealtime s[{sSTAMP+2*k}:{sSTAMP+2*k+1}]")

    def mask(self, reg, val):
        lo, hi = val & 0xFFFFFFFF, val >> 32
        self.A(f"s_mov_b32 {reg[0]}, {lo:#x}\ns_mov_b32 {reg[1]}, {hi:#x}")

    def exec_set(self, val):
        if val == -1:
            self.A("s_mov_b64 exec, -1")
        elif val <= 64:
            self.A(f"s_mov_b64 exec, {val}")
        elif val < (1 << 31):
            self.A(f"s_mov_b64 exec, {val:#x}")
        else:
            self.mask(("exec_lo", "exec_hi"), val)

    def arrive(self, cnt, want_old=True):
        self.A(f"""
        s_mov_b64 exec, 1
        v_mov_b32 v1, {cnt}
        v_mov_b32 v2, 1""")
        if want_old:
            self.A(f"""
            ds_add_rtn_u32 v2, v1, v2
            s_waitcnt lgkmcnt(0)
            v_readfirstlane_b32 s{sTMP}, v2""")
        else:
            self.A("ds_add_u32 v1, v2")
        self.A("s_mov_b64 exec, -1")

    def lds_spin(self, cnt, val, sleep=1):
        l = self.lab("Lspin"); d = self.lab("Lgot")
        self.A(f"""
        v_mov_b32 v1, {cnt}
        s_mov_b32 s{sSPIN}, 0
        {l}:
        ds_read_b32 v2, v1
        s_add_u32 s{sSPIN}, s{sSPIN}, 1
        s_cmp_gt_u32 s{sSPIN}, {SPIN_MAX}
        s_cbranch_scc1 L_end
        s_waitcnt lgkmcnt(0)
        v_readfirstlane_b32 s{sTMP}, v2
        s_cmp_eq_u32 s{sTMP}, {val}
        s_cbranch_scc1 {d}""")
        if sleep:
            self.A(f"s_sleep {sleep}")
        self.A(f"s_branch {l}\n{d}:")

    def flag_poll(self, n):
        l = self.lab("Lpoll"); r = self.lab("Lretry"); d = self.lab("Lflag")
        self.A(f"""
        s_mov_b32 s{sSPIN}, 0
        s_mov_b32 s42, s{sT32}
        s_mov_b32 s43, s{sT32}
        s_branch {l}
        {r}:
        s_sleep 1
        {l}:
        s_load_dwordx{n} s[{sP}:{sP+n-1}], s[26:27], s40 glc
        s_add_u32 s{sSPIN}, s{sSPIN}, 1
        s_cmp_gt_u32 s{sSPIN}, {SPIN_MAX}
        s_cbranch_scc1 L_end
        s_waitcnt lgkmcnt(0)""")
        for i in range(0, n, 2):
            self.A(f"s_cmp_eq_u64 s[{sP+i}:{sP+i+1}], s[42:43]\ns_cbranch_scc0 {r}")
        self.A(f"{d}:")

    def flag_store(self, n):
        self.exec_set((1 << n) - 1)
        self.A(f"""
        v_mul_u32_u24 v1, {REPP}, v0
        v_add_u32 v1, s40, v1
        v_mov_b32 v2, s{sT32}
        global_store_dword v1, v2, s[26:27] sc1
        s_mov_b64 exec, -1""")

    def tagcheck(self, regs, vacc, vt):
        first = True
        for r in regs:
            if first:
                self.A(f"v_bitop3_b32 v{vacc}, v{r}, v{r+1}, s{sT10} bitop3:0x7e")
                self.A(f"v_bitop3_b32 v{vt}, v{r+2}, v{r+3}, s{sT10} bitop3:0x7e")
                self.A(f"v_or_b32 v{vacc}, v{vacc}, v{vt}")
                first = False
            else:
                self.A(f"v_bitop3_b32 v{vt}, v{r}, v{r+1}, s{sT10} bitop3:0x7e")
                self.A(f"v_bitop3_b32 v{vt+1}, v{r+2}, v{r+3}, s{sT10} bitop3:0x7e")
                self.A(f"v_or3_b32 v{vacc}, v{vacc}, v{vt}, v{vt+1}")

    def tagtest(self, vacc, retry):
        self.A(f"""
        v_and_b32 v{vacc}, {TAGM:#x}, v{vacc}
        v_cmp_ne_u32 vcc, 0, v{vacc}
        s_add_u32 s{sSPIN}, s{sSPIN}, 1
        s_cmp_gt_u32 s{sSPIN}, {SPIN_MAX}
        s_cbranch_scc1 L_end
        s_nop 1
        s_cbranch_vccnz {retry}""")

    def tag(self, r):
        self.A(f"v_bfi_b32 v{r}, s44, v3, v{r}")

    def reduce_scatter_rows(self, a):
        self.A(f"""
        s_nop 1
        v_permlane32_swap_b32 v{a}, v{a+2}
        v_permlane32_swap_b32 v{a+1}, v{a+3}
        v_add_f32 v{a}, v{a}, v{a+2}
        v_add_f32 v{a+1}, v{a+1}, v{a+3}
        s_nop 1
        v_permlane16_swap_b32 v{a}, v{a+1}
        v_add_f32 v{a}, v{a}, v{a+1}""")

    def allreduce_rows(self, a, t, op):
        self.A(f"""
        v_mov_b32 v{t}, v{a}
        s_nop 1
        v_permlane32_swap_b32 v{t}, v{a}
        {op} v{a}, v{a}, v{t}
        s_nop 0
        v_mov_b32 v{t}, v{a}
        s_nop 1
        v_permlane16_swap_b32 v{t}, v{a}
        {op} v{a}, v{a}, v{t}""")

    def allreduce_in_row(self, a, op="v_add_f32"):
        for m in ("quad_perm:[1,0,3,2]", "quad_perm:[2,3,0,1]", "row_half_mirror", "row_mirror"):
            self.A(f"s_nop 1\n{op}_dpp v{a}, v{a}, v{a} {m} row_mask:0xf bank_mask:0xf")

    def bf16_round(self, d, s):
        self.A(f"v_cvt_pk_bf16_f32 v{d}, v{s}, v{s}\nv_and_b32 v{d}, 0xffff0000, v{d}")

    def build(self):
        A = self.A
        self.L.append(f"; @launch grid=(256,1,1) block=(512,1,1) lds={LDS_BYTES}")
        self.L.append('.amdgcn_target "amdgcn-amd-amdhsa--gfx950"')
        self.L += [".text", f".globl {KN}", ".p2align 8", f".type {KN},@function", f"{KN}:"]
        self.stamp(0)
        A(f"""
        s_cmp_ge_u32 s2, 256
        s_cbranch_scc1 L_end
        s_load_dwordx16 s[4:19], s[0:1], 0
        s_load_dwordx8 s[20:27], s[0:1], 64
        v_lshrrev_b32 v1, 6, v0
        v_and_b32 v0, 63, v0
        v_readfirstlane_b32 s{sW}, v1
        s_and_b32 s{sX}, s2, 7
        s_lshr_b32 s{sY}, s2, 3
        s_and_b32 s{sRB}, s{sY}, 3
        s_lshr_b32 s{sT8}, s{sY}, 2
        s_lshl3_add_u32 s{sCT}, s{sX}, s{sT8}
        s_sub_u32 s{sFT}, s{sCT}, s{sX}
        s_lshr_b32 s{sG}, s{sX}, 1
        s_and_b32 s{sCH}, s{sX}, 1
        s_lshl_b32 s{sCH}, s{sCH}, 5
        s_add_u32 s{sCH}, s{sCH}, s{sY}
        s_movk_i32 s44, {TAGM:#x}
        s_mov_b32 s94, s{sW}
        s_cmp_ge_u32 s{sW}, 4
        s_cbranch_scc1 L_awave""")
        self.swave()
        self.awave()
        A("L_end:")
        A("s_endpgm")
        self.L.append("L_codeend:")
        nv = 216
        self.L += ['.section .rodata,"a"', ".p2align 6", f".amdhsa_kernel {KN}",
                   f"  .amdhsa_next_free_vgpr {nv}", "  .amdhsa_next_free_sgpr 96", f"  .amdhsa_accum_offset {nv}",
                   "  .amdhsa_group_segment_fixed_size 0", "  .amdhsa_kernarg_size 96", "  .amdhsa_user_sgpr_count 2",
                   "  .amdhsa_user_sgpr_kernarg_segment_ptr 1", "  .amdhsa_system_sgpr_workgroup_id_x 1",
                   "  .amdhsa_float_denorm_mode_32 3", ".end_amdhsa_kernel"]
        return "\n".join(self.L) + "\n"

    def write_stamps(self, n):
        if self.probe:
            wg, wave, k = self.probe
            self.stamp(n)
            d = self.lab("Lprobe_done"); l = self.lab("Lprobe")
            self.A(f"""
            s_waitcnt lgkmcnt(0)
            s_cmp_eq_u32 s2, {wg}
            s_cbranch_scc0 {d}
            s_cmp_eq_u32 s94, {wave}
            s_cbranch_scc0 {d}
            s_add_u32 s40, s{sSTAMP+2*k}, 4000
            {l}:
            s_memrealtime s[42:43]
            s_waitcnt lgkmcnt(0)
            s_sub_u32 s41, s42, s40
            s_cmp_lt_i32 s41, 0
            s_cbranch_scc1 {l}
            {d}:""")
            return
        if not self.stamps:
            return
        self.stamp(n)
        A = self.A
        A(f"""
        s_waitcnt lgkmcnt(0)
        s_mov_b64 exec, -1
        s_lshl3_add_u32 s40, s2, s94
        s_lshl_b32 s40, s40, 6
        s_add_u32 s40, s40, {WS_ST:#x}
        v_mov_b32 v1, 0""")
        for k in range(n + 1):
            A(f"v_writelane_b32 v1, s{sSTAMP+2*k}, {k}")
        A(f"""
        s_getreg_b32 s41, hwreg(HW_REG_XCC_ID)
        v_writelane_b32 v1, s41, 15
        v_lshl_add_u32 v2, v0, 2, s40
        s_mov_b64 exec, 0xffff
        global_store_dword v2, v1, s[26:27]""")

    def swave(self):
        A = self.A
        W = self.W
        vPS, vXN, vSEL, aQ, aG, aU = 16, 24, 28, 32, 36, 40
        vWQ, vGA, vUP, vDN, vWO = 56, 88, 120, 152, 184
        vAq, vAg, vAd, vAo, vAk, vAv, vRed, vPub = 4, 5, 6, 7, 8, 9, 10, 11
        vT = 44
        A(f"""
        s_lshl_b32 s40, s{sRB}, 8
        s_lshl_b32 s41, s{sW}, 6
        s_add_u32 s40, s40, s41
        v_lshrrev_b32 v12, 3, v0
        v_and_b32 v13, 7, v0
        v_lshlrev_b32 v14, 5, v0
        v_add_u32 v15, s40, v12
        v_add_lshl_u32 v1, v0, s40, 1
        v_lshlrev_b32 v13, 4, v13
        s_lshl_b32 s41, s{sCT}, 7
        v_lshl_add_u32 v{vAq}, v15, 13, v13
        v_add_u32 v{vAq}, s41, v{vAq}
        s_mov_b32 s45, 0x10000
        s_waitcnt lgkmcnt(0)
        global_load_dwordx4 v[{vGA}:{vGA+3}], v14, s[4:5]
        global_load_dwordx4 v[{vGA+4}:{vGA+7}], v14, s[4:5] offset:16
        global_load_ushort v{vGA+8}, v1, s[4:5]""")
        for m in range(8):
            A(f"global_load_dwordx4 v[{vWQ+4*m}:{vWQ+4*m+3}], v{vAq}, s[10:11] nt")
            if m < 7:
                A(f"v_add_u32 v{vAq}, s45, v{vAq}")
        A(f"s_load_dword s{sT32}, s[26:27], {WS_E}")
        self.stamp(1)
        A(f"""
        v_mul_u32_u24 v{vAg}, 7168, v15
        s_mov_b32 s46, {7168*8}
        s_movk_i32 s45, 0x4000
        s_lshl_b32 s41, s{sFT}, 7
        v_add3_u32 v{vAg}, v{vAg}, v13, s41
        ; down / wo: rows tile*64 + 8*m + (l>>3), columns rb*256 + sw*64 + 8*(l&7)
        v_lshl_add_u32 v1, v12, 11, v13
        s_lshl_b32 s40, s40, 1
        s_lshl_b32 s41, s{sFT}, 17
        s_add_u32 s41, s41, s40
        v_add_u32 v{vAd}, s41, v1
        s_lshl_b32 s41, s{sCT}, 17
        s_add_u32 s41, s41, s40
        v_add_u32 v{vAo}, s41, v1
        s_lshl_b32 s40, s{sG}, 24
        s_lshl_b32 s41, s{sCH}, 14
        s_add_u32 s40, s40, s41
        s_lshl_b32 s47, s{sW}, 12
        s_add_u32 s40, s40, s47
        s_add_u32 s40, s40, {(65536-4096)*256:#x}
        v_lshrrev_b32 v1, 4, v0
        v_and_b32 v2, 15, v0
        v_xor_b32 v3, v2, v1
        v_lshlrev_b32 v3, 4, v3
        v_lshl_add_u32 v3, v1, 8, v3
        v_add_u32 v{vAk}, s40, v3
        v_lshlrev_b32 v3, 1, v1
        v_xor_b32 v3, v2, v3
        v_lshlrev_b32 v3, 4, v3
        v_lshl_add_u32 v3, v1, 8, v3
        v_add_u32 v{vAv}, s40, v3
        v_and_b32 v3, 1, v1
        v_lshlrev_b32 v3, 4, v3
        v_lshl_add_u32 v3, v13, 1, v3
        v_lshrrev_b32 v2, 5, v0
        v_lshl_add_u32 v{vRed}, v2, 8, v3
        s_lshl_b32 s40, s{sW}, 9
        v_add_u32 v{vRed}, s40, v{vRed}
        s_lshl_b32 s40, s{sRB}, 10
        s_lshl_b32 s41, s{sW}, 8
        s_add_u32 s40, s40, s41
        v_add_u32 v{vPub}, s40, v3
        s_mov_b32 s40, 0xaaaaaaaa
        s_mov_b32 s41, 0xaaaaaaaa
        v_mov_b32 v1, 0x0c0c0100
        v_mov_b32 v2, 0x01000c0c
        v_cndmask_b32 v1, v1, v2, s[40:41]
        v_mov_b32 v2, 0x0c0c0302
        v_mov_b32 v3, 0x03020c0c
        v_cndmask_b32 v2, v2, v3, s[40:41]
        v_mov_b32 v3, 0x0c0c0c0c""")
        for d in range(4):
            m = 0x03030303 << (2*d)
            A(f"""
            s_mov_b32 s40, {m:#x}
            s_mov_b32 s41, {m:#x}
            v_cndmask_b32 v{vPS+d}, v3, v1, s[40:41]
            v_cndmask_b32 v{vPS+4+d}, v3, v2, s[40:41]""")
        A("s_barrier")
        x0 = vUP
        A("s_waitcnt vmcnt(8)")
        self.stamp(2)
        for i in range(8):
            A(f"v_lshlrev_b32 v{x0+2*i}, 16, v{vGA+i}\nv_and_b32 v{x0+2*i+1}, 0xffff0000, v{vGA+i}")
        A(f"v_pk_add_f32 v[{vT}:{vT+1}], v[{x0}:{x0+1}], v[{x0+2}:{x0+3}]")
        for i in range(2, 8):
            A(f"v_pk_add_f32 v[{vT}:{vT+1}], v[{vT}:{vT+1}], v[{x0+2*i}:{x0+2*i+1}]")
        A(f"v_add_f32 v{vT}, v{vT}, v{vT+1}")
        self.allreduce_in_row(vT)
        self.allreduce_rows(vT, vT+1, "v_add_f32")
        A(f"v_mul_f32 v{vT}, {f2u(1.0/1024):#x}, v{vT}")
        for i in range(8):
            A(f"v_pk_add_f32 v[{x0+2*i}:{x0+2*i+1}], v[{x0+2*i}:{x0+2*i+1}], v[{vT}:{vT+1}] op_sel_hi:[1,0] neg_lo:[0,1] neg_hi:[0,1]")
        A(f"v_pk_mul_f32 v[{vT+2}:{vT+3}], v[{x0}:{x0+1}], v[{x0}:{x0+1}]")
        for i in range(1, 8):
            A(f"v_pk_fma_f32 v[{vT+2}:{vT+3}], v[{x0+2*i}:{x0+2*i+1}], v[{x0+2*i}:{x0+2*i+1}], v[{vT+2}:{vT+3}]")
        A(f"v_add_f32 v{vT+2}, v{vT+2}, v{vT+3}")
        self.allreduce_in_row(vT+2)
        self.allreduce_rows(vT+2, vT+3, "v_add_f32")
        A(f"v_mul_f32 v{vT+2}, {f2u(1.0/1024):#x}, v{vT+2}")
        self.bf16_round(vT, vT)
        self.bf16_round(vT+2, vT+2)
        A(f"v_add_f32 v{vT+2}, {f2u(1e-5):#x}, v{vT+2}")
        self.bf16_round(vT+2, vT+2)
        A(f"v_sqrt_f32 v{vT+2}, v{vT+2}\ns_nop 0")
        self.bf16_round(vT+2, vT+2)
        A(f"v_rcp_f32 v{vT+2}, v{vT+2}")
        r = vGA + 8
        A(f"""
        v_lshlrev_b32 v{r}, 16, v{r}
        v_sub_f32 v{r}, v{r}, v{vT}
        s_lshl_b32 s40, s{sW}, 7
        v_lshl_add_u32 v1, v12, 1, v13""")
        self.bf16_round(r, r)
        A(f"""
        v_mul_f32 v{r}, v{r}, v{vT+2}
        v_add_u32 v1, s40, v1
        v_cvt_pk_bf16_f32 v{r}, v{r}, v{r}
        v_lshl_add_u32 v2, v12, 4, s40
        ds_write_b16 v1, v{r} offset:{L_XN}
        ds_read_b128 v[{vXN}:{vXN+3}], v2 offset:{L_XN}""")
        A(f"""
        s_waitcnt lgkmcnt(0)
        s_add_u32 s{sT32}, s{sT32}, 1
        s_and_b32 s{sT10}, s{sT32}, s44
        v_mov_b32 v3, s{sT10}""")
        self.stamp(3)

        def sel(m, dst=vSEL, src=vXN):
            for d in range(4):
                A(f"v_perm_b32 v{dst+d}, v{src+(m>>1)}, v{src+(m>>1)}, v{vPS+4*(m&1)+d}")

        def mfma(acc, s, w, first):
            c = "0" if first else f"v[{acc}:{acc+3}]"
            A(f"v_mfma_f32_16x16x32_bf16 v[{acc}:{acc+3}], v[{s}:{s+3}], v[{w}:{w+3}], {c}")

        def red_publish(accs, lbase, cnt, nl, wsoff_code, floff_code, nrep):
            done = self.lab("Lnotlast")
            A("s_nop 7")
            self.exec_set(0xFF00FF0000FF00FF)
            for i, a in enumerate(accs):
                A(f"ds_write_b128 v{vRed}, v[{a}:{a+3}] offset:{lbase + 2048*i}")
            self.arrive(cnt)
            A(f"s_cmp_eq_u32 s{sTMP}, 3\ns_cbranch_scc0 {done}")
            self.exec_set((1 << nl) - 1)
            A(f"""
            v_and_b32 v1, 15, v0
            v_lshrrev_b32 v2, 4, v0
            v_lshlrev_b32 v1, 4, v1
            v_lshl_add_u32 v1, v2, 11, v1""")
            t = vT
            A(f"ds_read_b128 v[{t}:{t+3}], v1 offset:{lbase}")
            A(f"ds_read_b128 v[{t+4}:{t+7}], v1 offset:{lbase+256}")
            A(wsoff_code)
            A(f"v_lshl_add_u32 v2, v0, 4, s40")
            for k in range(2, 8):
                b = t + 8 if k % 2 == 0 else t + 4
                if k > 2:
                    pass
                A(f"ds_read_b128 v[{aT+4*(k-2)}:{aT+4*(k-2)+3}], v1 offset:{lbase+256*k}")
            A("s_waitcnt lgkmcnt(0)")
            A(f"v_pk_add_f32 v[{t}:{t+1}], v[{t}:{t+1}], v[{t+4}:{t+5}]\nv_pk_add_f32 v[{t+2}:{t+3}], v[{t+2}:{t+3}], v[{t+6}:{t+7}]")
            for k in range(6):
                b = aT + 4*k
                A(f"v_pk_add_f32 v[{t}:{t+1}], v[{t}:{t+1}], v[{b}:{b+1}]\nv_pk_add_f32 v[{t+2}:{t+3}], v[{t+2}:{t+3}], v[{b+2}:{b+3}]")
            for r in range(4):
                self.tag(t + r)
            A(f"global_store_dwordx4 v2, v[{t}:{t+3}], s[26:27] sc1")
            A(floff_code)
            self.flag_store(nrep)
            A(f"{done}:")

        aT = vWQ

        def q_publish():
            red_publish([aQ], L_RQ, C_Q, 16,
                        f"s_lshl2_add_u32 s40, s{sCT}, s{sRB}\ns_lshl_b32 s40, s40, 8\ns_add_u32 s40, s40, {WS_BQ:#x}",
                        f"s_lshl2_add_u32 s40, s{sCT}, s{sRB}\ns_lshl_b32 s40, s40, 2\ns_add_u32 s40, s40, {WS_FLA:#x}", NREP)
            self.stamp(4)

        def g_publish():
            red_publish([aG, aU], L_RG, C_G, 32,
                        f"s_lshl2_add_u32 s40, s{sFT}, s{sRB}\ns_lshl_b32 s40, s40, 9\ns_add_u32 s40, s40, {WS_BD:#x}",
                        f"s_lshl4_add_u32 s40, s{sFT}, s{sRB}\ns_lshl_b32 s40, s40, 2\ns_add_u32 s40, s40, {WS_FLD:#x}", 1)
            self.stamp(6)

        def issue(op):
            kind, m = op
            if kind == "k":
                if m == 0:
                    A(f"s_mov_b32 m0, s47")
                    A(f"v_mov_b32 v1, v{vAk}")
                else:
                    A(f"v_xor_b32 v1, {64*m}, v{vAk}")
                A(f"global_load_lds_dwordx4 v1, s[6:7] offset:{1024*m} nt")
            elif kind == "v":
                if m == 0:
                    A(f"s_add_u32 s47, s47, {L_V}\ns_mov_b32 m0, s47")
                A(f"v_xor_b32 v1, {128*(m&1)}, v{vAv}")
                A(f"global_load_lds_dwordx4 v1, s[8:9] offset:{1024*m} nt")
            elif kind == "g":
                A(f"global_load_dwordx4 v[{vGA+4*m}:{vGA+4*m+3}], v{vAg}, s[16:17] nt")
            elif kind == "u":
                A(f"global_load_dwordx4 v[{vUP+4*m}:{vUP+4*m+3}], v{vAg}, s[18:19] nt")
                if m < 7:
                    A(f"v_add_u32 v{vAg}, s46, v{vAg}")
            elif kind in "do":
                va, base, sb = (vAd, vDN, 20) if kind == "d" else (vAo, vWO, 12)
                A(f"global_load_dwordx4 v[{base+4*m}:{base+4*m+3}], v{va}, s[{sb}:{sb+1}] nt")
                if m < 7:
                    A(f"v_add_u32 v{va}, s45, v{va}")

        def process(op):
            kind, m = op
            if kind == "q":
                mfma(aQ, vSEL, vWQ + 4*m, m == 0)
                if m < 7:
                    sel(m + 1)
                    A("s_nop 1")
                else:
                    q_publish()
                    sel(0)
            elif kind == "v" and m == 3:
                self.arrive(C_KV, want_old=False)
                self.stamp(5)
            elif kind == "g":
                mfma(aG, vSEL, vGA + 4*m, m == 0)
            elif kind == "u":
                mfma(aU, vSEL, vUP + 4*m, m == 0)
                if m < 7:
                    sel(m + 1)
                    A("s_nop 1")
                else:
                    g_publish()

        def final_gemv(flag, lsrc, selbase, data, counts, wsrow_code, st):
            self.lds_spin(flag, 1, sleep=1)
            A(f"v_lshlrev_b32 v1, 4, v12\nds_read_b128 v[{vXN}:{vXN+3}], v1 offset:{lsrc}")
            A(wsrow_code)
            A(f"v_add_u32 v2, s40, v{vPub}")
            A("s_waitcnt lgkmcnt(0)")
            for m in range(8):
                sel(m, selbase + 4*m)
            self.stamp(st)
            for m in range(8):
                if counts[m] is not None:
                    A(f"s_waitcnt vmcnt({counts[m]})")
                mfma(aQ, selbase + 4*m, data + 4*m, m == 0)
            g = vT
            A(f"""
            s_nop 7
            v_permlane32_swap_b32 v{aQ}, v{aQ+2}
            v_permlane32_swap_b32 v{aQ+1}, v{aQ+3}
            s_nop 0
            v_add_f32_dpp v{g}, v{aQ+2}, v{aQ} row_shl:8 row_mask:0xf bank_mask:0xf bound_ctrl:1
            v_add_f32_dpp v{g+1}, v{aQ+3}, v{aQ+1} row_shl:8 row_mask:0xf bank_mask:0xf bound_ctrl:1""")
            self.tag(g); self.tag(g + 1)
            A(f"""
            s_nop 0
            v_permlane32_swap_b32 v{g}, v{g+2}
            v_permlane32_swap_b32 v{g+1}, v{g+3}
            s_mov_b64 exec, 0x00ff00ff
            global_store_dwordx4 v2, v[{g}:{g+3}], s[26:27] sc1
            s_mov_b64 exec, -1""")

        def stream(ops):
            landed = 0
            for i in range(8, len(ops)):
                A(f"s_waitcnt vmcnt({W-1})")
                issue(ops[i])
                while landed <= i - W:
                    process(ops[landed]); landed += 1
            return landed

        head = [("q", m) for m in range(8)] + [("k", m) for m in range(4)] + [("v", m) for m in range(4)]
        wo = [("o", m) for m in range(8)]
        srow = f"s_mul_i32 s40, s{sCT}, {ROWP}\ns_add_u32 s40, s40, {WS_BS:#x}"
        frow = f"s_mul_i32 s40, s{sFT}, {ROWP}\ns_add_u32 s40, s40, {WS_BF:#x}"
        sel(0)
        A(f"s_cmp_eq_u32 s{sT8}, 7\ns_cbranch_scc1 L_slight")
        ops = head + [(k, m) for m in range(8) for k in "gu"] + [("d", m) for m in range(8)] + wo
        landed = stream(ops)
        assert landed >= 32 and landed == 48 - W
        self.arrive(C_SD, want_old=False)
        self.stamp(7)
        cnt = [(47 - (32 + m)) if 32 + m >= landed else None for m in range(8)]
        final_gemv(C_FH, L_HBF, vGA, vDN, cnt, frow, 8)
        cnt = [(47 - (40 + m)) + 1 for m in range(8)]
        final_gemv(C_FO, L_OBF, vWQ, vWO, cnt, srow, 9)
        self.write_stamps(10)
        A("s_endpgm")
        A("L_slight:")
        ops = head + wo
        landed = stream(ops)
        assert landed >= 16
        self.arrive(C_SD, want_old=False)
        self.stamp(7)
        cnt = [(23 - (16 + m)) for m in range(8)]
        final_gemv(C_FO, L_OBF, vWQ, vWO, cnt, srow, 9)
        self.write_stamps(10)
        A("s_endpgm")

    def awave(self):
        A = self.A
        vKF, vVF, vQF, vS, vGT = 56, 120, 136, 152, 168
        vI, vJ = 4, 5
        vA0, vA1, vA2 = 6, 7, 8
        vXF = 9
        vTP = 13
        vT = 16
        A(f"""
        L_awave:
        s_setprio 3
        s_sub_u32 s{sW}, s{sW}, 4
        v_and_b32 v{vI}, 15, v0
        v_lshrrev_b32 v{vJ}, 4, v0
        v_mov_b32 v1, 0
        v_lshlrev_b32 v2, 2, v{vI}
        ds_write_b32 v2, v1 offset:{L_CNT}
        s_waitcnt lgkmcnt(0)
        s_load_dword s{sT32}, s[26:27], {WS_E}""")
        if self.prefetch:
            A(f"""
            s_getpc_b64 s[40:41]
            L_pc:
            s_sub_u32 s40, s40, L_pc-{KN}
            s_subb_u32 s41, s41, 0
            s_mul_i32 s42, s{sY}, 384
            v_lshl_add_u32 v1, v0, 7, s42
            v_min_u32 v1, L_codeend-{KN}-4, v1
            s_mov_b64 exec, 7
            global_load_dword v55, v1, s[40:41]
            s_mov_b64 exec, -1""")
        A(f"""
        s_lshl_b32 s42, s{sX}, 5
        s_add_u32 s42, s42, s{sY}
        s_lshl_b32 s43, s42, 3
        v_lshl_add_u32 v{vA2}, v{vJ}, 1, s43
        global_load_ushort v{vXF}, v{vA2}, s[4:5]
        v_and_b32 v1, 1, v0
        v_lshl_add_u32 v1, v1, 2, v{vJ}
        v_and_b32 v2, 14, v0
        v_lshl_add_u32 v{vTP}, v1, 4, v2
        s_barrier
        s_waitcnt lgkmcnt(0)
        s_add_u32 s{sT32}, s{sT32}, 1
        s_and_b32 s{sT10}, s{sT32}, s44
        v_mov_b32 v3, s{sT10}""")
        self.stamp(1)
        A(f"""
        s_lshl2_add_u32 s41, s{sG}, s{sW}
        s_lshl_b32 s40, s41, 12
        s_add_u32 s40, s40, {WS_BQ:#x}
        v_lshlrev_b32 v1, 4, v{vI}
        v_lshl_add_u32 v1, v{vJ}, 10, v1
        v_add_u32 v{vA0}, s40, v1
        s_and_b32 s95, s{sCH}, {NREP-1}
        s_mul_i32 s95, s95, {REPP}
        s_lshl_b32 s40, s41, 6
        s_add_u32 s40, s40, s95
        s_add_u32 s40, s40, {WS_FLA:#x}""")
        self.flag_poll(16)
        self.stamp(2)
        rq = self.lab("Lgq")
        A(f"s_mov_b32 s45, 0\n{rq}:")
        for n in range(4):
            A(f"global_load_dwordx4 v[{vGT+4*n}:{vGT+4*n+3}], v{vA0}, s[26:27] offset:{256*n} sc1")
        skip = self.lab("Lkvdone")
        A(f"s_cmp_lg_u32 s45, 0\ns_cbranch_scc1 {skip}\ns_mov_b32 s45, 1")
        self.lds_spin(C_KV, 4, sleep=1)
        A(f"""
        v_xor_b32 v1, v{vI}, v{vJ}
        v_lshlrev_b32 v1, 4, v1
        v_lshl_add_u32 v1, v{vI}, 8, v1""")
        for s in range(4):
            if s:
                A(f"v_xor_b32 v2, {64*s}, v1")
            for t in range(4):
                r = vKF + 16*t + 4*s
                A(f"ds_read_b128 v[{r}:{r+3}], v{2 if s else 1} offset:{L_K + 4096*t}")
            if s == 1:
                A("s_waitcnt lgkmcnt(0)")
        A(f"""
        v_bfe_u32 v10, v0, 2, 2
        v_lshl_add_u32 v10, v{vJ}, 2, v10
        v_and_b32 v11, 7, v10
        v_lshlrev_b32 v11, 1, v11
        v_bfe_u32 v12, v0, 1, 1
        s_lshl_b32 s40, s{sW}, 2
        v_add_u32 v12, s40, v12
        v_xor_b32 v11, v11, v12
        v_lshlrev_b32 v11, 4, v11
        v_lshl_add_u32 v11, v10, 8, v11
        v_and_b32 v12, 1, v0
        v_lshl_add_u32 v11, v12, 3, v11
        v_xor_b32 v12, 32, v11
        s_waitcnt lgkmcnt(0)""")
        for u in range(2):
            for t in range(4):
                r = vVF + 8*u + 2*t
                A(f"ds_read_b64_tr_b16 v[{r}:{r+1}], v{11+u} offset:{L_V + 4096*t}")
        A(f"s_mov_b32 s{sSPIN}, 0\n{skip}:")
        self.stamp(3)
        A("s_waitcnt vmcnt(0)")
        self.tagcheck([vGT+4*n for n in range(4)], vT, vT+1)
        self.tagtest(vT, rq)
        self.stamp(4)
        for h in (0, 2):
            A(f"v_pk_add_f32 v[{vGT+h}:{vGT+h+1}], v[{vGT+h}:{vGT+h+1}], v[{vGT+4+h}:{vGT+5+h}]")
            A(f"v_pk_add_f32 v[{vGT+8+h}:{vGT+9+h}], v[{vGT+8+h}:{vGT+9+h}], v[{vGT+12+h}:{vGT+13+h}]")
        for h in (0, 2):
            A(f"v_pk_add_f32 v[{vGT+h}:{vGT+h+1}], v[{vGT+h}:{vGT+h+1}], v[{vGT+8+h}:{vGT+9+h}]")
        A(f"""
        v_cvt_pk_bf16_f32 v{vGT}, v{vGT}, v{vGT+1}
        v_cvt_pk_bf16_f32 v{vGT+1}, v{vGT+2}, v{vGT+3}
        v_lshrrev_b32 v1, 1, v{vJ}
        v_mul_u32_u24 v1, {QLP}, v1
        v_and_b32 v2, 1, v{vJ}
        v_lshl_add_u32 v1, v2, 7, v1
        v_lshl_add_u32 v1, v{vI}, 3, v1
        s_mul_i32 s40, s{sW}, {2*QLP}
        v_add_u32 v1, s40, v1
        ds_write_b64 v1, v[{vGT}:{vGT+1}] offset:{L_QL}""")
        self.arrive(C_QL, want_old=False)
        self.lds_spin(C_QL, 4, sleep=0)
        A(f"""
        v_and_b32 v1, 7, v0
        v_mul_u32_u24 v1, {QLP}, v1
        v_lshl_add_u32 v1, v{vJ}, 4, v1""")
        for s in range(4):
            A(f"ds_read_b128 v[{vQF+4*s}:{vQF+4*s+3}], v1 offset:{L_QL + 64*s}")
        A(f"""
        s_lshl_b32 s40, s{sG}, 4
        s_lshr_b32 s41, s{sW}, 1
        s_add_u32 s40, s40, s41
        s_lshl_b32 s40, s40, 6
        s_add_u32 s40, s40, s{sCH}
        s_lshl_b32 s40, s40, 1
        s_and_b32 s41, s{sW}, 1
        s_add_u32 s40, s40, s41
        s_lshl_b32 s40, s40, 7
        s_add_u32 s40, s40, {WS_BO:#x}
        v_and_b32 v1, 7, v0
        v_lshlrev_b32 v{vA0}, 15, v1
        v_bfe_u32 v2, v0, 3, 1
        v_lshl_add_u32 v{vA0}, v2, 6, v{vA0}
        v_lshl_add_u32 v{vA0}, v{vJ}, 4, v{vA0}
        v_add_u32 v{vA0}, s40, v{vA0}
        s_lshl_b32 s40, s{sG}, 9
        s_add_u32 s40, s40, s{sCH}
        s_lshl_b32 s40, s40, 4
        s_add_u32 s40, s40, {WS_BML:#x}
        v_lshl_add_u32 v{vA1}, v1, 10, s40
        s_mov_b32 s46, {f2u(128 ** -0.5):#x}
        s_mov_b32 s47, {f2u(128 ** -0.5):#x}
        s_waitcnt lgkmcnt(0)""")
        for s in range(4):
            for t in range(4):
                c = "0" if s == 0 else f"v[{vS+4*t}:{vS+4*t+3}]"
                r = vKF + 16*t + 4*s
                A(f"v_mfma_f32_16x16x32_bf16 v[{vS+4*t}:{vS+4*t+3}], v[{r}:{r+3}], v[{vQF+4*s}:{vQF+4*s+3}], {c}")
        A("s_nop 4")
        for p in range(8):
            r = vS + 2*p
            A(f"""
            v_cvt_pk_bf16_f32 v1, v{r}, v{r+1}
            v_lshlrev_b32 v{r}, 16, v1
            v_and_b32 v{r+1}, 0xffff0000, v1
            v_pk_mul_f32 v[{r}:{r+1}], v[{r}:{r+1}], s[46:47]
            v_cvt_pk_bf16_f32 v1, v{r}, v{r+1}
            v_lshlrev_b32 v{r}, 16, v1
            v_and_b32 v{r+1}, 0xffff0000, v1""")
        vM, vL = vT, vT + 1
        A(f"v_max3_f32 v{vM}, v{vS}, v{vS+1}, v{vS+2}")
        for k in range(3, 15, 2):
            A(f"v_max3_f32 v{vM}, v{vM}, v{vS+k}, v{vS+k+1}")
        A(f"v_max_f32 v{vM}, v{vM}, v{vS+15}")
        self.allreduce_rows(vM, vT + 2, "v_max_f32")
        A(f"s_mov_b32 s45, {f2u(LOG2E):#x}\nv_mul_f32 v{vT+2}, s45, v{vM}")
        for k in range(16):
            A(f"v_fma_f32 v{vS+k}, v{vS+k}, s45, -v{vT+2}")
        for k in range(16):
            A(f"v_exp_f32 v{vS+k}, v{vS+k}")
        A("s_nop 0")
        A(f"v_pk_add_f32 v[{vT+4}:{vT+5}], v[{vS}:{vS+1}], v[{vS+2}:{vS+3}]")
        for k in range(2, 8):
            A(f"v_pk_add_f32 v[{vT+4}:{vT+5}], v[{vT+4}:{vT+5}], v[{vS+2*k}:{vS+2*k+1}]")
        for k in range(8):
            A(f"v_cvt_pk_bf16_f32 v{vQF+k}, v{vS+2*k}, v{vS+2*k+1}")
        A(f"v_add_f32 v{vL}, v{vT+4}, v{vT+5}\ns_nop 0")
        o0, o1 = vS, vS + 4
        for u, o in ((0, o0), (1, o1)):
            A(f"v_mfma_f32_16x16x32_bf16 v[{o}:{o+3}], v[{vVF+8*u}:{vVF+8*u+3}], v[{vQF}:{vQF+3}], 0")
        for u, o in ((0, o0), (1, o1)):
            A(f"v_mfma_f32_16x16x32_bf16 v[{o}:{o+3}], v[{vVF+8*u+4}:{vVF+8*u+7}], v[{vQF+4}:{vQF+7}], v[{o}:{o+3}]")
        self.allreduce_rows(vL, vT + 2, "v_add_f32")
        self.mask(("s40", "s41"), 0xFF00FF00FF00FF00)
        for r in range(4):
            A(f"v_cndmask_b32 v{o0+r}, v{o0+r}, v{o1+r}, s[40:41]")
        for r in range(4):
            self.tag(o0 + r)
        A(f"global_store_dwordx4 v{vA0}, v[{o0}:{o0+3}], s[26:27] sc1")
        nml = self.lab("Lnoml")
        A(f"s_cmp_lg_u32 s{sW}, 0\ns_cbranch_scc1 {nml}")
        self.tag(vM); self.tag(vL)
        A(f"""
        v_mov_b32 v{vT+2}, v3
        v_mov_b32 v{vT+3}, v3
        s_mov_b64 exec, 0xff
        global_store_dwordx4 v{vA1}, v[{vT}:{vT+3}], s[26:27] sc1
        s_mov_b64 exec, -1
        {nml}:""")
        self.arrive(C_P)
        nfl = self.lab("Lnofl")
        A(f"""
        s_cmp_eq_u32 s{sTMP}, 3
        s_cbranch_scc0 {nfl}
        s_lshl_b32 s40, s{sG}, 6
        s_add_u32 s40, s40, s{sCH}
        s_lshl_b32 s40, s40, 2
        s_add_u32 s40, s40, {WS_FLB:#x}""")
        self.flag_store(NREP)
        A(f"{nfl}:")
        self.stamp(5)
        A(f"""
        s_lshl2_add_u32 s40, s{sCT}, s{sW}
        s_lshl_b32 s40, s40, 12
        s_add_u32 s40, s40, {WS_BO:#x}
        v_lshl_add_u32 v{vA0}, v0, 4, s40
        s_lshr_b32 s40, s{sCT}, 1
        s_lshl2_add_u32 s40, s40, s{sW}
        s_lshl_b32 s40, s40, 8
        s_add_u32 s40, s40, {WS_BML:#x}
        v_lshl_add_u32 v{vA1}, v{vJ}, 4, s40
        s_lshl2_add_u32 s40, s{sG}, s{sW}
        s_lshl_b32 s40, s40, 6
        s_add_u32 s40, s40, s95
        s_add_u32 s40, s40, {WS_FLB:#x}""")
        self.flag_poll(16)
        self.stamp(6)
        rb_ = self.lab("Lgo")
        vO, vML = vGT, vGT + 16
        A(f"{rb_}:")
        for n in range(4):
            A(f"global_load_dwordx4 v[{vML+4*n}:{vML+4*n+3}], v{vA1}, s[26:27] offset:{64*n} sc1")
        for n in range(4):
            A(f"global_load_dwordx4 v[{vO+4*n}:{vO+4*n+3}], v{vA0}, s[26:27] offset:{1024*n} sc1")
        A("s_waitcnt vmcnt(0)")
        self.tagcheck([vGT + 4*n for n in range(8)], vT, vT + 1)
        self.tagtest(vT, rb_)
        self.stamp(7)

        def combine(ms, ls, os_, cross):
            A(f"v_max3_f32 v{vT}, v{ms[0]}, v{ms[1]}, v{ms[2]}\nv_max_f32 v{vT}, v{vT}, v{ms[3]}")
            if cross:
                self.allreduce_rows(vT, vT + 2, "v_max_f32")
            for n in range(4):
                A(f"v_sub_f32 v{vT+8+2*n}, v{ms[n]}, v{vT}")
            for n in range(4):
                A(f"v_mul_f32 v{vT+8+2*n}, s45, v{vT+8+2*n}")
            for n in range(4):
                A(f"v_exp_f32 v{vT+8+2*n}, v{vT+8+2*n}")
            A("s_nop 0")
            A(f"v_mul_f32 v{vT+1}, v{vT+8}, v{ls[0]}")
            for h in (0, 2):
                A(f"v_pk_mul_f32 v[{vT+4+h}:{vT+5+h}], v[{os_[0]+h}:{os_[0]+h+1}], v[{vT+8}:{vT+9}] op_sel_hi:[1,0]")
            for n in range(1, 4):
                w = vT + 8 + 2*n
                A(f"v_fmac_f32 v{vT+1}, v{w}, v{ls[n]}")
                for h in (0, 2):
                    A(f"v_pk_fma_f32 v[{vT+4+h}:{vT+5+h}], v[{os_[n]+h}:{os_[n]+h+1}], v[{w}:{w+1}], v[{vT+4+h}:{vT+5+h}] op_sel_hi:[1,0,1]")

        for n in range(4):
            A(f"v_and_b32 v{vML+4*n}, 0xffff0000, v{vML+4*n}")
        combine([vML+4*n for n in range(4)], [vML+4*n+1 for n in range(4)], [vO+4*n for n in range(4)], False)
        A(f"""
        s_lshl_b32 s40, s{sW}, 10
        v_lshl_add_u32 v1, v0, 4, s40
        ds_write_b128 v1, v[{vT+4}:{vT+7}] offset:{L_OR}
        v_lshrrev_b32 v1, 1, v1
        ds_write_b64 v1, v[{vT}:{vT+1}] offset:{L_ML}""")
        self.arrive(C_O)
        nl = self.lab("Lnotlasto")
        A(f"""
        s_cmp_eq_u32 s{sTMP}, 3
        s_cbranch_scc0 {nl}
        v_lshlrev_b32 v1, 4, v0
        v_lshlrev_b32 v2, 3, v0""")
        for n in range(4):
            A(f"ds_read_b64 v[{vML+2*n}:{vML+2*n+1}], v2 offset:{L_ML + 512*n}")
        for n in range(4):
            A(f"ds_read_b128 v[{vO+4*n}:{vO+4*n+3}], v1 offset:{L_OR + 1024*n}")
        A("s_waitcnt lgkmcnt(0)")
        combine([vML+2*n for n in range(4)], [vML+2*n+1 for n in range(4)], [vO+4*n for n in range(4)], True)
        self.allreduce_rows(vT + 1, vT + 2, "v_add_f32")
        self.reduce_scatter_rows(vT + 4)
        A(f"""
        v_rcp_f32 v{vT+1}, v{vT+1}
        s_nop 0
        v_mul_f32 v{vT+4}, v{vT+4}, v{vT+1}
        v_cvt_pk_bf16_f32 v{vT+4}, v{vT+4}, v{vT+4}
        ds_write_b16 v{vTP}, v{vT+4} offset:{L_OBF}
        v_mov_b32 v1, {C_FO}
        v_mov_b32 v2, 1
        s_mov_b64 exec, 1
        ds_write_b32 v1, v2
        s_mov_b64 exec, -1
        {nl}:""")
        self.stamp(8)
        A(f"""
        s_cmp_eq_u32 s{sW}, 0
        s_cbranch_scc1 L_final
        s_cmp_eq_u32 s{sW}, 3
        s_cbranch_scc0 L_adone
        s_cmp_eq_u32 s{sT8}, 7
        s_cbranch_scc1 L_adone""")
        A(f"""
        s_lshl_b32 s40, s{sFT}, 11
        s_add_u32 s40, s40, {WS_BD:#x}
        v_lshlrev_b32 v1, 4, v{vI}
        v_lshl_add_u32 v1, v{vJ}, 9, v1
        v_add_u32 v{vA0}, s40, v1
        s_lshl_b32 s40, s{sFT}, 6
        s_add_u32 s40, s40, {WS_FLD:#x}""")
        self.flag_poll(4)
        self.stamp(9)
        rd = self.lab("Lgd")
        A(f"""
        {rd}:
        global_load_dwordx4 v[{vGT}:{vGT+3}], v{vA0}, s[26:27] sc1
        global_load_dwordx4 v[{vGT+4}:{vGT+7}], v{vA0}, s[26:27] offset:256 sc1
        s_waitcnt vmcnt(0)""")
        self.tagcheck([vGT, vGT + 4], vT, vT + 1)
        self.tagtest(vT, rd)
        self.reduce_scatter_rows(vGT)
        self.reduce_scatter_rows(vGT + 4)
        c1 = -2.0 * 0.7978845608028654 * LOG2E
        c2 = c1 * 0.044715
        g, u = vGT, vGT + 4
        self.bf16_round(g, g)
        self.bf16_round(u, u)
        A(f"""
        v_mul_f32 v{vT}, v{g}, v{g}
        v_mov_b32 v{vT+1}, {f2u(c1):#x}
        v_fmac_f32 v{vT+1}, {f2u(c2):#x}, v{vT}
        v_mul_f32 v{vT}, v{g}, v{vT+1}
        v_exp_f32 v{vT}, v{vT}
        s_nop 0
        v_add_f32 v{vT}, 1.0, v{vT}
        v_rcp_f32 v{vT}, v{vT}
        s_nop 0
        v_mul_f32 v{g}, v{g}, v{vT}""")
        self.bf16_round(g, g)
        A(f"""
        v_mul_f32 v{g}, v{g}, v{u}
        v_cvt_pk_bf16_f32 v{g}, v{g}, v{g}
        ds_write_b16 v{vTP}, v{g} offset:{L_HBF}
        v_mov_b32 v1, {C_FH}
        v_mov_b32 v2, 1
        s_mov_b64 exec, 1
        ds_write_b32 v1, v2
        s_mov_b64 exec, -1
        L_adone:""")
        self.write_stamps(10)
        A("s_endpgm")
        A(f"""
        L_final:
        s_lshl_b32 s42, s{sX}, 5
        s_add_u32 s42, s42, s{sY}
        s_lshl_b32 s42, s42, 4
        v_mul_u32_u24 v1, {ROWP}, v0
        s_add_u32 s40, s42, {WS_BF:#x}
        v_add_u32 v{vA0}, s40, v1
        s_add_u32 s40, s42, {WS_BS:#x}
        v_add_u32 v{vA1}, s40, v1""")
        for r in range(4):
            A(f"v_mov_b32 v{vGT+r}, v3")
        self.lds_spin(C_SD, 4, sleep=2)
        A(f"s_mov_b32 s{sSPIN}, 0")
        rf = self.lab("Lgf"); rf1 = self.lab("Lgf1")
        A(f"""
        s_branch {rf1}
        {rf}:
        s_sleep 4
        {rf1}:""")
        self.exec_set((1 << 56) - 1)
        A(f"""
        global_load_dwordx4 v[{vGT}:{vGT+3}], v{vA0}, s[26:27] sc1
        s_mov_b64 exec, -1
        s_waitcnt vmcnt(0)""")
        self.tagcheck([vGT], vT, vT + 1)
        self.tagtest(vT, rf)
        self.stamp(9)
        rs = self.lab("Lgs")
        A(f"global_load_dwordx4 v[{vGT+4}:{vGT+7}], v{vA1}, s[26:27] sc1")
        self.reduce_scatter_rows(vGT)
        self.allreduce_in_row(vGT)
        f = vGT
        self.bf16_round(f, f)
        A(f"""
        v_mul_f32 v{vT+4}, {f2u(-LOG2E):#x}, v{f}
        v_exp_f32 v{vT+4}, v{vT+4}
        v_lshlrev_b32 v{vXF}, 16, v{vXF}
        v_add_f32 v{vT+4}, 1.0, v{vT+4}
        v_rcp_f32 v{vT+4}, v{vT+4}
        s_nop 0
        v_mul_f32 v{f}, v{f}, v{vT+4}""")
        self.bf16_round(f, f)
        rs1 = self.lab("Lgs1")
        A(f"""
        s_branch {rs1}
        {rs}:
        global_load_dwordx4 v[{vGT+4}:{vGT+7}], v{vA1}, s[26:27] sc1
        {rs1}:
        s_waitcnt vmcnt(0)""")
        self.tagcheck([vGT + 4], vT, vT + 1)
        self.tagtest(vT, rs)
        s = vGT + 4
        self.reduce_scatter_rows(s)
        self.allreduce_in_row(s)
        self.bf16_round(s, s)
        A(f"v_mul_f32 v{s}, v{s}, v{f}")
        self.bf16_round(s, s)
        A(f"""
        v_add_f32 v{s}, v{s}, v{vXF}
        v_cvt_pk_bf16_f32 v{s}, v{s}, v{s}""")
        self.exec_set(0x0001000100010001)
        A(f"global_store_short v{vA2}, v{s}, s[22:23]")
        ne = self.lab("Lnoe")
        A(f"""
        s_cmp_lg_u32 s2, 0
        s_cbranch_scc1 {ne}
        s_mov_b64 exec, 1
        v_mov_b32 v1, {WS_E}
        v_mov_b32 v2, s{sT32}
        global_store_dword v1, v2, s[26:27]
        {ne}:""")
        self.write_stamps(10)


if __name__ == "__main__":
    import argparse
    ap = argparse.ArgumentParser()
    ap.add_argument("-o", default="recurrent_scan__sliding_block_cached__geglu_ffn__decode.s")
    ap.add_argument("-W", type=int, default=6)
    ap.add_argument("--stamps", action="store_true")
    ap.add_argument("--probe", default=None)
    a = ap.parse_args()
    open(a.o, "w").write(Gen(W=a.W, stamps=a.stamps, probe=tuple(map(int, a.probe.split(','))) if a.probe else None).build())
```

```python
import sys, struct

KN = "recurrent_scan__sliding_block_cached__geglu_ffn__decode_kernel"

def f2u(x):
    return struct.unpack("<I", struct.pack("<f", x))[0]

WS_E   = 0x0
WS_FLD = 0x1000
NREP   = 32
REPP   = 17 * 128
WS_FLA = 0x260000
WS_FLB = 0x280000
TLIGHT = 3
WS_BQ  = 0x10000
WS_BML = 0x20000
WS_BD  = 0x30000
ROWP   = 4352
WS_BS  = 0x50000
WS_BF  = 0xD8000
WS_BO  = 0x160000
WS_ST  = 0x400000

L_K    = 0
L_V    = 16384
L_RQ   = 32768
L_RG   = L_RQ + 2048
L_QL   = L_RG + 4096
QLP    = 272
L_WT   = L_QL + 2304
L_OBF  = L_WT + 256
L_HBF  = L_OBF + 64
L_XN   = L_HBF + 64
L_CNT  = L_XN + 512
C_Q, C_G, C_KV, C_QL, C_P, C_FO, C_FH, C_SD, C_B1, C_XN = [L_CNT + 4*i for i in range(10)]
LDS_BYTES = L_CNT + 64

TAGM = 0x3FF
LOG2E = 1.4426950408889634
SPIN_MAX = 1 << 20

sX, sY, sRB, sT8, sCT, sFT, sG, sCH = 28, 29, 30, 31, 32, 33, 34, 35
sT32, sT10, sSPIN, sTMP = 36, 37, 38, 39
sW = 3
sP = 48
sSTAMP = 64


class Gen:
    def __init__(self, W=6, stamps=False, prefetch=True, dbg=False, probe=None, abl='', xnpos=11, finstart='pub', wlast=None, nrep=32, stmod='sc1'):
        self.nrep = nrep
        self.stmod = stmod
        self.abl = abl
        self.xnpos = xnpos
        self.finstart = finstart
        self.wfun = lambda i, n: (wlast if (wlast and i >= n - 16) else W)
        self.probe = probe
        self.L = []
        self.W = W
        self.stamps = stamps
        self.prefetch = prefetch
        self.dbg = dbg
        self.nlab = 0

    def A(self, s):
        for line in s.strip("\n").split("\n"):
            if line.strip():
                self.L.append("    " + line.strip() if not line.strip().endswith(":") else line.strip())

    def lab(self, p="L"):
        self.nlab += 1
        return f"{p}_{self.nlab}"

    def stamp(self, k):
        if self.stamps or (self.probe and k in (0, self.probe[2])):
            self.A(f"s_memrealtime s[{sSTAMP+2*k}:{sSTAMP+2*k+1}]")

    def mask(self, reg, val):
        lo, hi = val & 0xFFFFFFFF, val >> 32
        self.A(f"s_mov_b32 {reg[0]}, {lo:#x}\ns_mov_b32 {reg[1]}, {hi:#x}")

    def exec_set(self, val):
        if val == -1:
            self.A("s_mov_b64 exec, -1")
        elif val <= 64:
            self.A(f"s_mov_b64 exec, {val}")
        elif val < (1 << 31):
            self.A(f"s_mov_b64 exec, {val:#x}")
        else:
            self.mask(("exec_lo", "exec_hi"), val)

    def arrive(self, cnt, want_old=True):
        self.A(f"""
        s_mov_b64 exec, 1
        v_mov_b32 v1, {cnt}
        v_mov_b32 v2, 1""")
        if want_old:
            self.A(f"""
            ds_add_rtn_u32 v2, v1, v2
            s_waitcnt lgkmcnt(0)
            v_readfirstlane_b32 s{sTMP}, v2""")
        else:
            self.A("ds_add_u32 v1, v2")
        self.A("s_mov_b64 exec, -1")

    def lds_spin(self, cnt, val, sleep=1):
        l = self.lab("Lspin"); d = self.lab("Lgot")
        self.A(f"""
        v_mov_b32 v1, {cnt}
        s_mov_b32 s{sSPIN}, 0
        {l}:
        ds_read_b32 v2, v1
        s_add_u32 s{sSPIN}, s{sSPIN}, 1
        s_cmp_gt_u32 s{sSPIN}, {SPIN_MAX}
        s_cbranch_scc1 L_end
        s_waitcnt lgkmcnt(0)
        v_readfirstlane_b32 s{sTMP}, v2
        s_cmp_eq_u32 s{sTMP}, {val}
        s_cbranch_scc1 {d}""")
        if sleep:
            self.A(f"s_sleep {sleep}")
        self.A(f"s_branch {l}\n{d}:")

    def flag_poll(self, n, two=False):
        if 'nopoll' in self.abl:
            return
        l = self.lab("Lpoll"); r = self.lab("Lretry"); d = self.lab("Lflag")
        self.A(f"""
        s_mov_b32 s{sSPIN}, 0
        s_mov_b32 s42, s{sT32}
        s_mov_b32 s43, s{sT32}
        s_branch {l}
        {r}:
        s_sleep 1
        {l}:
        s_load_dwordx{n} s[{sP}:{sP+n-1}], s[26:27], s40 glc
        {'s_load_dwordx16 s[4:19], s[26:27], s41 glc' if two else ''}
        s_add_u32 s{sSPIN}, s{sSPIN}, 1
        s_cmp_gt_u32 s{sSPIN}, {SPIN_MAX}
        s_cbranch_scc1 L_end
        s_waitcnt lgkmcnt(0)""")
        for b in ((sP, 4) if two else (sP,)):
            for i in range(0, n, 2):
                self.A(f"s_cmp_eq_u64 s[{b+i}:{b+i+1}], s[42:43]\ns_cbranch_scc0 {r}")
        self.A(f"{d}:")

    def flag_store(self, n, vaddr=None):
        self.exec_set((1 << n) - 1)
        self.A(f"""
        {f'v_mul_u32_u24 v1, {REPP}, v0' if vaddr is None else ''}
        v_add_u32 v1, s40, v{1 if vaddr is None else vaddr}
        v_mov_b32 v2, s{sT32}
        global_store_dword v1, v2, s[26:27] sc1
        s_mov_b64 exec, -1""")

    def tagcheck(self, regs, vacc, vt):
        first = True
        for r in regs:
            if first:
                self.A(f"v_bitop3_b32 v{vacc}, v{r}, v{r+1}, s{sT10} bitop3:0x7e")
                self.A(f"v_bitop3_b32 v{vt}, v{r+2}, v{r+3}, s{sT10} bitop3:0x7e")
                self.A(f"v_or_b32 v{vacc}, v{vacc}, v{vt}")
                first = False
            else:
                self.A(f"v_bitop3_b32 v{vt}, v{r}, v{r+1}, s{sT10} bitop3:0x7e")
                self.A(f"v_bitop3_b32 v{vt+1}, v{r+2}, v{r+3}, s{sT10} bitop3:0x7e")
                self.A(f"v_or3_b32 v{vacc}, v{vacc}, v{vt}, v{vt+1}")

    def tagtest(self, vacc, retry):
        if 'notag' in self.abl:
            return
        self.A(f"""
        v_and_b32 v{vacc}, {TAGM:#x}, v{vacc}
        v_cmp_ne_u32 vcc, 0, v{vacc}
        s_add_u32 s{sSPIN}, s{sSPIN}, 1
        s_cmp_gt_u32 s{sSPIN}, {SPIN_MAX}
        s_cbranch_scc1 L_end
        s_nop 1
        s_cbranch_vccnz {retry}""")

    def tag(self, r):
        self.A(f"v_bfi_b32 v{r}, s44, v3, v{r}")

    def reduce_scatter_rows(self, a):
        self.A(f"""
        s_nop 1
        v_permlane32_swap_b32 v{a}, v{a+2}
        v_permlane32_swap_b32 v{a+1}, v{a+3}
        v_add_f32 v{a}, v{a}, v{a+2}
        v_add_f32 v{a+1}, v{a+1}, v{a+3}
        s_nop 1
        v_permlane16_swap_b32 v{a}, v{a+1}
        v_add_f32 v{a}, v{a}, v{a+1}""")

    def allreduce_rows(self, a, t, op):
        self.A(f"""
        v_mov_b32 v{t}, v{a}
        s_nop 1
        v_permlane32_swap_b32 v{t}, v{a}
        {op} v{a}, v{a}, v{t}
        s_nop 0
        v_mov_b32 v{t}, v{a}
        s_nop 1
        v_permlane16_swap_b32 v{t}, v{a}
        {op} v{a}, v{a}, v{t}""")

    def allreduce_in_row(self, a, op="v_add_f32"):
        for m in ("quad_perm:[1,0,3,2]", "quad_perm:[2,3,0,1]", "row_half_mirror", "row_mirror"):
            self.A(f"s_nop 1\n{op}_dpp v{a}, v{a}, v{a} {m} row_mask:0xf bank_mask:0xf")

    def bf16_round(self, d, s):
        self.A(f"v_cvt_pk_bf16_f32 v{d}, v{s}, v{s}\nv_and_b32 v{d}, 0xffff0000, v{d}")

    def build(self):
        A = self.A
        self.L.append(f"; @launch grid=(256,1,1) block=(512,1,1) lds={LDS_BYTES}")
        self.L.append('.amdgcn_target "amdgcn-amd-amdhsa--gfx950"')
        self.L += [".text", f".globl {KN}", ".p2align 8", f".type {KN},@function", f"{KN}:"]
        self.stamp(0)
        A(f"""
        s_cmp_ge_u32 s2, 256
        s_cbranch_scc1 L_end
        s_load_dwordx16 s[4:19], s[0:1], 0
        s_load_dwordx8 s[20:27], s[0:1], 64
        v_lshrrev_b32 v1, 6, v0
        v_and_b32 v0, 63, v0
        v_readfirstlane_b32 s{sW}, v1
        s_and_b32 s{sX}, s2, 7
        s_lshr_b32 s{sY}, s2, 3
        s_and_b32 s{sRB}, s{sY}, 3
        s_lshr_b32 s{sT8}, s{sY}, 2
        s_lshl3_add_u32 s{sCT}, s{sX}, s{sT8}
        s_sub_u32 s{sFT}, s{sCT}, s{sX}
        s_cmp_gt_u32 s{sT8}, {TLIGHT}
        s_subb_u32 s{sFT}, s{sFT}, 0
        s_lshr_b32 s{sG}, s{sX}, 1
        s_and_b32 s{sCH}, s{sX}, 1
        s_lshl_b32 s{sCH}, s{sCH}, 5
        s_add_u32 s{sCH}, s{sCH}, s{sY}
        s_movk_i32 s44, {TAGM:#x}
        s_mov_b32 s94, s{sW}""")
        if self.probe:
            A(f"s_waitcnt lgkmcnt(0)\ns_mov_b32 s{sSTAMP+2*self.probe[2]}, s{sSTAMP}")
        A(f"""
        s_cmp_ge_u32 s{sW}, 4
        s_cbranch_scc1 L_swave""")
        self.awave()
        self.swave()
        A("L_end:")
        A("s_endpgm")
        self.L.append("L_codeend:")
        nv = 216
        self.L += ['.section .rodata,"a"', ".p2align 6", f".amdhsa_kernel {KN}",
                   f"  .amdhsa_next_free_vgpr {nv}", "  .amdhsa_next_free_sgpr 96", f"  .amdhsa_accum_offset {nv}",
                   "  .amdhsa_group_segment_fixed_size 0", "  .amdhsa_kernarg_size 96", "  .amdhsa_user_sgpr_count 2",
                   "  .amdhsa_user_sgpr_kernarg_segment_ptr 1", "  .amdhsa_system_sgpr_workgroup_id_x 1",
                   "  .amdhsa_float_denorm_mode_32 3", ".end_amdhsa_kernel"]
        txt = "\n".join(self.L) + "\n"
        if self.stmod != "sc1":
            import re
            txt = re.sub(r"(global_store_\w+ .*) sc1\n", lambda m: m.group(1) + " " + self.stmod + "\n", txt)
        return txt

    def write_stamps(self, n):
        if self.probe:
            wg, wave, k = self.probe
            self.stamp(n)
            d = self.lab("Lprobe_done"); l = self.lab("Lprobe")
            self.A(f"""
            s_waitcnt lgkmcnt(0)
            s_cmp_eq_u32 s2, {wg if wg >= 0 else 's2'}
            s_cbranch_scc0 {d}
            s_cmp_eq_u32 s94, {wave}
            s_cbranch_scc0 {d}
            s_add_u32 s40, s{sSTAMP+2*k}, 4000
            {l}:
            s_memrealtime s[42:43]
            s_waitcnt lgkmcnt(0)
            s_sub_u32 s41, s42, s40
            s_cmp_lt_i32 s41, 0
            s_cbranch_scc1 {l}
            {d}:""")
            return
        if not self.stamps:
            return
        self.stamp(n)
        A = self.A
        A(f"""
        s_waitcnt lgkmcnt(0)
        s_mov_b64 exec, -1
        s_lshl3_add_u32 s40, s2, s94
        s_lshl_b32 s40, s40, 6
        s_add_u32 s40, s40, {WS_ST:#x}
        v_mov_b32 v1, 0""")
        for k in range(n + 1):
            A(f"v_writelane_b32 v1, s{sSTAMP+2*k}, {k}")
        A(f"""
        s_getreg_b32 s41, hwreg(HW_REG_XCC_ID)
        v_writelane_b32 v1, s41, 15
        v_lshl_add_u32 v2, v0, 2, s40
        s_mov_b64 exec, 0xffff
        global_store_dword v2, v1, s[26:27]""")

    def swave(self):
        A = self.A
        W = self.W
        vPS, vXN, vSEL, aQ, aG, aU = 16, 24, 28, 32, 36, 40
        vWQ, vGA, vUP, vDN, vWO = 56, 88, 120, 152, 184
        vAq, vAg, vAd, vAo, vAk, vAv, vRed, vPub = 4, 5, 6, 7, 8, 9, 10, 11
        vAu = vAq
        vT = 44
        A(f"""
        L_swave:
        s_sub_u32 s{sW}, s{sW}, 4
        s_lshl_b32 s40, s{sRB}, 8
        s_lshl_b32 s41, s{sW}, 6
        s_add_u32 s40, s40, s41
        v_lshrrev_b32 v12, 3, v0
        v_and_b32 v13, 7, v0
        v_add_u32 v15, s40, v12
        v_lshlrev_b32 v13, 4, v13
        s_lshl_b32 s41, s{sCT}, 7
        v_lshl_add_u32 v{vAq}, v15, 13, v13
        v_add_u32 v{vAq}, s41, v{vAq}
        s_mov_b32 s45, 0x10000
        s_waitcnt lgkmcnt(0)""")
        for m in range(8):
            A(f"global_load_dwordx4 v[{vWQ+4*m}:{vWQ+4*m+3}], v{vAq}, s[10:11] nt")
            if m < 7:
                A(f"v_add_u32 v{vAq}, s45, v{vAq}")
        A(f"s_load_dword s{sT32}, s[26:27], {WS_E}")
        self.stamp(1)
        A(f"""
        v_mul_u32_u24 v{vAg}, 7168, v15
        s_mov_b32 s46, {7168*8}
        s_movk_i32 s45, 0x2000
        s_lshl_b32 s41, s{sFT}, 7
        s_xor_b32 s42, s41, 512
        v_add3_u32 v{vAu}, v{vAg}, v13, s42
        v_add3_u32 v{vAg}, v{vAg}, v13, s41
        ; down / wo: rows tile*64 + (rb>>1)*32 + 4*m + (l>>4), columns (rb&1)*512 + sw*128 + 8*(l&15)
        v_lshrrev_b32 v14, 4, v0
        v_and_b32 v2, 15, v0
        v_lshlrev_b32 v1, 4, v2
        v_lshl_add_u32 v1, v14, 11, v1
        s_lshr_b32 s40, s{sRB}, 1
        s_lshl_b32 s40, s40, 16
        s_and_b32 s42, s{sRB}, 1
        s_lshl2_add_u32 s42, s42, s{sW}
        s_lshl_b32 s41, s42, 8
        s_add_u32 s40, s40, s41
        s_lshl_b32 s41, s{sFT}, 17
        s_add_u32 s41, s41, s40
        v_add_u32 v{vAd}, s41, v1
        s_lshl_b32 s41, s{sCT}, 17
        s_add_u32 s41, s41, s40
        v_add_u32 v{vAo}, s41, v1
        ; publish offset inside a final partial row: ((rb&1)*4 + sw)*512 + (2*(l&15) + (l>>4))*16
        s_lshl_b32 s42, s42, 9
        v_lshl_add_u32 v1, v2, 1, v14
        v_lshl_add_u32 v{vPub}, v1, 4, s42
        s_lshl_b32 s40, s{sG}, 24
        s_lshl_b32 s41, s{sCH}, 14
        s_add_u32 s40, s40, s41
        s_lshl_b32 s47, s{sW}, 12
        s_add_u32 s40, s40, s47
        s_add_u32 s40, s40, {(65536-4096)*256:#x}
        v_xor_b32 v3, v2, v14
        v_lshlrev_b32 v3, 4, v3
        v_lshl_add_u32 v3, v14, 8, v3
        v_add_u32 v{vAk}, s40, v3
        v_lshlrev_b32 v3, 1, v14
        v_xor_b32 v3, v2, v3
        v_lshlrev_b32 v3, 4, v3
        v_lshl_add_u32 v3, v14, 8, v3
        v_add_u32 v{vAv}, s40, v3
        v_and_b32 v3, 1, v14
        v_lshlrev_b32 v3, 4, v3
        v_lshl_add_u32 v3, v13, 1, v3
        v_lshrrev_b32 v2, 5, v0
        v_lshl_add_u32 v{vRed}, v2, 8, v3
        s_lshl_b32 s40, s{sW}, 9
        v_add_u32 v{vRed}, s40, v{vRed}
        s_mov_b32 s40, 0xaaaaaaaa
        s_mov_b32 s41, 0xaaaaaaaa
        v_mov_b32 v1, 0x0c0c0100
        v_mov_b32 v2, 0x01000c0c
        v_cndmask_b32 v1, v1, v2, s[40:41]
        v_mov_b32 v2, 0x0c0c0302
        v_mov_b32 v3, 0x03020c0c
        v_cndmask_b32 v2, v2, v3, s[40:41]
        v_mov_b32 v3, 0x0c0c0c0c""")
        for d in range(4):
            m = 0x03030303 << (2*d)
            A(f"""
            s_mov_b32 s40, {m:#x}
            s_mov_b32 s41, {m:#x}
            v_cndmask_b32 v{vPS+d}, v3, v1, s[40:41]
            v_cndmask_b32 v{vPS+4+d}, v3, v2, s[40:41]""")
        A(f"""
        s_barrier
        s_waitcnt lgkmcnt(0)
        s_add_u32 s{sT32}, s{sT32}, 1
        s_and_b32 s{sT10}, s{sT32}, s44
        v_mov_b32 v3, s{sT10}""")

        def sel(m, dst=vSEL, src=vXN):
            for d in range(4):
                A(f"v_perm_b32 v{dst+d}, v{src+(m>>1)}, v{src+(m>>1)}, v{vPS+4*(m&1)+d}")

        def mfma(acc, s, w, first):
            c = "0" if first else f"v[{acc}:{acc+3}]"
            A(f"v_mfma_f32_16x16x32_bf16 v[{acc}:{acc+3}], v[{s}:{s+3}], v[{w}:{w+3}], {c}")

        def get_xn():
            A(f"s_lshl_b32 s41, s{sW}, 2\ns_add_u32 s41, s41, {C_XN}")
            self.lds_spin("s41", 1, sleep=0)
            A(f"""
            s_lshl_b32 s40, s{sW}, 7
            v_lshl_add_u32 v2, v12, 4, s40
            ds_read_b128 v[{vXN}:{vXN+3}], v2 offset:{L_XN}
            s_waitcnt lgkmcnt(0)""")
            self.stamp(3)
            sel(0)
            A("s_nop 1")

        def red_write(accs, lbase, cnt):
            self.exec_set(0xFF00FF0000FF00FF)
            for i, a in enumerate(accs):
                A(f"ds_write_b128 v{vRed}, v[{a}:{a+3}] offset:{lbase + 2048*i}")
            self.arrive(cnt, want_old=False)

        def issue(op):
            kind, m = op
            if kind == "k":
                if m == 0:
                    A(f"s_mov_b32 m0, s47")
                    A(f"v_mov_b32 v1, v{vAk}")
                else:
                    A(f"v_xor_b32 v1, {64*m}, v{vAk}")
                A(f"global_load_lds_dwordx4 v1, s[6:7] offset:{1024*m} nt")
            elif kind == "v":
                if m == 0:
                    A(f"s_add_u32 s47, s47, {L_V}\ns_mov_b32 m0, s47")
                A(f"v_xor_b32 v1, {128*(m&1)}, v{vAv}")
                A(f"global_load_lds_dwordx4 v1, s[8:9] offset:{1024*m} nt")
            elif kind == "g":
                A(f"global_load_dwordx4 v[{vGA+4*m}:{vGA+4*m+3}], v{vAg}, s[16:17] nt")
                if m < 7:
                    A(f"v_add_u32 v{vAg}, s46, v{vAg}")
            elif kind == "u":
                A(f"global_load_dwordx4 v[{vUP+4*m}:{vUP+4*m+3}], v{vAu}, s[18:19] nt")
                if m < 7:
                    A(f"v_add_u32 v{vAu}, s46, v{vAu}")
            elif kind in "do":
                va, base, sb = (vAd, vDN, 20) if kind == "d" else (vAo, vWO, 12)
                A(f"global_load_dwordx4 v[{base+4*m}:{base+4*m+3}], v{va}, s[{sb}:{sb+1}] nt")
                if m < 7:
                    A(f"v_add_u32 v{va}, s45, v{va}")

        def process(op):
            kind, m = op
            if kind == "q":
                mfma(aQ, vSEL, vWQ + 4*m, m == 0)
                sel((m + 1) % 8)
                if m < 7:
                    A("s_nop 1")
                else:
                    A("s_nop 3")
                    red_write([aQ], L_RQ, C_Q)
                    self.stamp(4)
            elif kind == "v" and m == 3:
                self.arrive(C_KV, want_old=False)
                self.stamp(5)
            elif kind == "g":
                mfma(aG, vSEL, vGA + 4*m, m == 0)
            elif kind == "u":
                mfma(aU, vSEL, vUP + 4*m, m == 0)
                if m < 7:
                    sel(m + 1)
                    A("s_nop 1")
                else:
                    A("s_nop 7")
                    red_write([aG, aU], L_RG, C_G)
                    self.stamp(6)

        def final_gemv(flag, lsrc, selbase, data, counts, wsrow_code, st):
            if 'noa' not in self.abl and 'nofin' not in self.abl:
                self.lds_spin(flag, 1, sleep=1)
            A(f"v_lshlrev_b32 v1, 4, v14\nds_read_b128 v[{vXN}:{vXN+3}], v1 offset:{lsrc}")
            A(wsrow_code)
            A(f"v_add_u32 v2, s40, v{vPub}")
            A("s_waitcnt lgkmcnt(0)")
            for m in range(8):
                sel(m, selbase + 4*m)
            self.stamp(st)
            for m in range(8):
                if counts[m] is not None:
                    A(f"s_waitcnt vmcnt({counts[m]})")
                mfma(aQ, selbase + 4*m, data + 4*m, m == 0)
            A("s_mov_b32 exec_hi, 0\ns_nop 6")
            for r in range(4):
                A(f"v_bfi_b32 v{vT+r}, s44, v3, v{aQ+r}")
            A(f"""
            global_store_dwordx4 v2, v[{vT}:{vT+3}], s[26:27] sc1
            s_mov_b64 exec, -1""")

        def stream(ops):
            landed = 0
            wprev = None
            for i in range(8, len(ops)):
                w = self.wfun(i, len(ops))
                A(f"s_waitcnt vmcnt({w-1})")
                issue(ops[i])
                if i < self.xnpos:
                    continue
                if i == self.xnpos:
                    get_xn()
                while landed <= i - w:
                    process(ops[landed]); landed += 1
            return landed

        head = [("q", m) for m in range(8)] + [("k", m) for m in range(4)] + [("v", m) for m in range(4)]
        wo = [("o", m) for m in range(8)]
        half = f"s_lshr_b32 s41, s{sRB}, 1\n"
        srow = half + f"s_lshl1_add_u32 s40, s{sCT}, s41\ns_mul_i32 s40, s40, {ROWP}\ns_add_u32 s40, s40, {WS_BS:#x}"
        frow = half + f"s_lshl1_add_u32 s40, s{sFT}, s41\ns_mul_i32 s40, s40, {ROWP}\ns_add_u32 s40, s40, {WS_BF:#x}"
        A(f"s_cmp_eq_u32 s{sT8}, {TLIGHT}\ns_cbranch_scc1 L_slight")
        ops = head + [(k, m) for m in range(8) for k in "gu"] + [("d", m) for m in range(8)] + wo
        landed = stream(ops)
        assert landed >= 32
        self.arrive(C_SD, want_old=False)
        self.stamp(7)
        cnt = [(47 - (32 + m)) if 32 + m >= landed else None for m in range(8)]
        final_gemv(C_FH, L_HBF, vGA, vDN, cnt, frow, 8)
        cnt = [(47 - (40 + m)) + 1 for m in range(8)]
        final_gemv(C_FO, L_OBF, vWQ, vWO, cnt, srow, 9)
        if self.finstart == "pub":
            self.arrive(C_SD, want_old=False)
        self.write_stamps(10)
        A("s_endpgm")
        A("L_slight:")
        ops = head + wo
        landed = stream(ops)
        assert landed >= 16
        self.arrive(C_SD, want_old=False)
        self.stamp(7)
        cnt = [(23 - (16 + m)) for m in range(8)]
        final_gemv(C_FO, L_OBF, vWQ, vWO, cnt, srow, 9)
        if self.finstart == "pub":
            self.arrive(C_SD, want_old=False)
        self.write_stamps(10)

    def red_publish(self, lbase, cnt, nl, wsoff_code, floff_code, nrep, flagv=None):
        A = self.A
        t, aT = 16, 24
        A(f"""
        v_and_b32 v10, 15, v0
        v_lshrrev_b32 v11, 4, v0
        v_lshlrev_b32 v10, 4, v10
        v_lshl_add_u32 v10, v11, 11, v10""")
        A(wsoff_code)
        A(floff_code)
        self.lds_spin(cnt, 4, sleep=0)
        self.exec_set((1 << nl) - 1)
        for k in range(8):
            A(f"ds_read_b128 v[{t+4*k}:{t+4*k+3}], v10 offset:{lbase+256*k}")
        for lvl, wait in ((0, 4), (4, 0)):
            A(f"s_waitcnt lgkmcnt({wait})" if not (self.stamps or self.probe) else "s_waitcnt lgkmcnt(0)")
            b = t + 4*lvl
            for h in (0, 2):
                A(f"v_pk_add_f32 v[{b+h}:{b+h+1}], v[{b+h}:{b+h+1}], v[{b+4+h}:{b+5+h}]")
                A(f"v_pk_add_f32 v[{b+8+h}:{b+9+h}], v[{b+8+h}:{b+9+h}], v[{b+12+h}:{b+13+h}]")
            for h in (0, 2):
                A(f"v_pk_add_f32 v[{b+h}:{b+h+1}], v[{b+h}:{b+h+1}], v[{b+8+h}:{b+9+h}]")
        for h in (0, 2):
            A(f"v_pk_add_f32 v[{t+h}:{t+h+1}], v[{t+h}:{t+h+1}], v[{t+16+h}:{t+17+h}]")
        for r in range(4):
            self.tag(t + r)
        A(f"global_store_dwordx4 v11, v[{t}:{t+3}], s[26:27] sc1")
        self.flag_store(nrep, flagv)

    def awave(self):
        A = self.A
        vKF, vVF, vQF, vS, vGT = 56, 120, 152, 168, 184
        vI, vJ = 4, 5
        vA0, vA1, vA2 = 6, 7, 8
        vXF = 9
        vTP = 13
        vT = 16
        x0, xr = 56, 72
        A(f"""
        s_setprio 3
        s_lshl_b32 s40, s{sRB}, 8
        s_lshl_b32 s41, s{sW}, 6
        s_add_u32 s40, s40, s41
        v_lshlrev_b32 v14, 5, v0
        v_add_lshl_u32 v1, v0, s40, 1
        v_and_b32 v{vI}, 15, v0
        v_lshrrev_b32 v{vJ}, 4, v0
        v_mov_b32 v10, 0
        v_lshlrev_b32 v2, 2, v{vI}
        ds_write_b32 v2, v10 offset:{L_CNT}
        s_waitcnt lgkmcnt(0)
        global_load_dwordx4 v[{xr}:{xr+3}], v14, s[4:5]
        global_load_dwordx4 v[{xr+4}:{xr+7}], v14, s[4:5] offset:16
        global_load_ushort v{xr+8}, v1, s[4:5]
        s_load_dword s{sT32}, s[26:27], {WS_E}""")
        A(f"""
        s_lshl_b32 s42, s{sX}, 5
        s_add_u32 s42, s42, s{sY}
        s_lshl_b32 s43, s42, 3
        v_lshl_add_u32 v{vA2}, v{vJ}, 1, s43
        global_load_ushort v{vXF}, v{vA2}, s[4:5]""")
        if self.prefetch:
            A(f"""
            s_getpc_b64 s[40:41]
            L_pc:
            s_sub_u32 s40, s40, L_pc-{KN}
            s_subb_u32 s41, s41, 0
            s_lshl2_add_u32 s42, s{sY}, s{sW}
            s_lshl_b32 s42, s42, 7
            s_min_u32 s42, s42, L_codeend-{KN}-4
            v_mov_b32 v1, s42
            s_mov_b64 exec, 1
            global_load_dword v55, v1, s[40:41]
            s_mov_b64 exec, -1""")
        A(f"""
        v_and_b32 v1, 7, v0
        v_lshlrev_b32 v1, 1, v1
        v_lshl_add_u32 v{vTP}, v{vJ}, 4, v1
        s_barrier""")
        self.stamp(1)
        A(f"s_waitcnt vmcnt({2 if self.prefetch else 1})")
        self.stamp(11)
        for i in range(8):
            A(f"v_lshlrev_b32 v{x0+2*i}, 16, v{xr+i}\nv_and_b32 v{x0+2*i+1}, 0xffff0000, v{xr+i}")
        A(f"v_pk_add_f32 v[{vT}:{vT+1}], v[{x0}:{x0+1}], v[{x0+2}:{x0+3}]")
        A(f"v_pk_add_f32 v[{vT+2}:{vT+3}], v[{x0+4}:{x0+5}], v[{x0+6}:{x0+7}]")
        for i in range(4, 8, 2):
            A(f"v_pk_add_f32 v[{vT}:{vT+1}], v[{vT}:{vT+1}], v[{x0+2*i}:{x0+2*i+1}]")
            A(f"v_pk_add_f32 v[{vT+2}:{vT+3}], v[{vT+2}:{vT+3}], v[{x0+2*i+2}:{x0+2*i+3}]")
        A(f"v_pk_add_f32 v[{vT}:{vT+1}], v[{vT}:{vT+1}], v[{vT+2}:{vT+3}]")
        A(f"v_add_f32 v{vT}, v{vT}, v{vT+1}")
        self.allreduce_in_row(vT)
        self.allreduce_rows(vT, vT+1, "v_add_f32")
        A(f"v_mul_f32 v{vT}, {f2u(1.0/1024):#x}, v{vT}")
        for i in range(8):
            A(f"v_pk_add_f32 v[{x0+2*i}:{x0+2*i+1}], v[{x0+2*i}:{x0+2*i+1}], v[{vT}:{vT+1}] op_sel_hi:[1,0] neg_lo:[0,1] neg_hi:[0,1]")
        A(f"v_pk_mul_f32 v[{vT+2}:{vT+3}], v[{x0}:{x0+1}], v[{x0}:{x0+1}]")
        A(f"v_pk_mul_f32 v[{vT+4}:{vT+5}], v[{x0+2}:{x0+3}], v[{x0+2}:{x0+3}]")
        for i in range(2, 8):
            d = vT + 2 + 2*(i & 1)
            A(f"v_pk_fma_f32 v[{d}:{d+1}], v[{x0+2*i}:{x0+2*i+1}], v[{x0+2*i}:{x0+2*i+1}], v[{d}:{d+1}]")
        A(f"v_pk_add_f32 v[{vT+2}:{vT+3}], v[{vT+2}:{vT+3}], v[{vT+4}:{vT+5}]")
        A(f"v_add_f32 v{vT+2}, v{vT+2}, v{vT+3}")
        r = xr + 8
        self.bf16_round(vT, vT)
        self.allreduce_in_row(vT+2)
        A(f"v_lshlrev_b32 v{r}, 16, v{r}\nv_sub_f32 v{r}, v{r}, v{vT}")
        self.allreduce_rows(vT+2, vT+3, "v_add_f32")
        A(f"v_mul_f32 v{vT+2}, {f2u(1.0/1024):#x}, v{vT+2}")
        self.bf16_round(vT+2, vT+2)
        A(f"v_add_f32 v{vT+2}, {f2u(1e-5):#x}, v{vT+2}")
        self.bf16_round(vT+2, vT+2)
        A(f"v_sqrt_f32 v{vT+2}, v{vT+2}")
        self.bf16_round(r, r)
        self.bf16_round(vT+2, vT+2)
        A(f"""
        v_rcp_f32 v{vT+2}, v{vT+2}
        v_and_b32 v1, 7, v0
        v_lshrrev_b32 v2, 3, v0
        v_lshlrev_b32 v2, 1, v2
        v_mul_f32 v{r}, v{r}, v{vT+2}
        v_lshl_add_u32 v1, v1, 4, v2
        s_lshl_b32 s40, s{sW}, 7
        v_add_u32 v1, s40, v1
        v_cvt_pk_bf16_f32 v{r}, v{r}, v{r}
        s_lshl_b32 s40, s{sW}, 2
        v_mov_b32 v2, s40
        v_mov_b32 v10, 1
        ds_write_b16 v1, v{r} offset:{L_XN}
        s_mov_b64 exec, 1
        ds_write_b32 v2, v10 offset:{C_XN}
        s_mov_b64 exec, -1
        s_waitcnt lgkmcnt(0)
        s_add_u32 s{sT32}, s{sT32}, 1
        s_and_b32 s{sT10}, s{sT32}, s44
        v_mov_b32 v3, s{sT10}""")
        self.stamp(12)
        if 'noa' in self.abl:
            A("s_branch L_adone")
        nq = self.lab("Lnoq")
        A(f"s_cmp_eq_u32 s{sW}, 3\ns_cbranch_scc0 {nq}")
        self.red_publish(L_RQ, C_Q, 16,
                         f"s_lshl2_add_u32 s41, s{sCT}, s{sRB}\ns_lshl_b32 s40, s41, 8\ns_add_u32 s40, s40, {WS_BQ:#x}\nv_lshl_add_u32 v11, v0, 4, s40",
                         f"s_lshr_b32 s40, s41, 4\ns_and_b32 s41, s41, 15\ns_lshl_b32 s40, s40, 5\ns_add_u32 s40, s40, s41\ns_lshl_b32 s40, s40, 2\ns_add_u32 s40, s40, {WS_FLA:#x}", self.nrep)
        self.stamp(13)
        A(f"{nq}:")
        if 'stop1' in self.abl:
            A("s_branch L_adone")
        A(f"""
        s_lshl2_add_u32 s41, s{sG}, s{sW}
        s_lshl_b32 s40, s41, 12
        s_add_u32 s40, s40, {WS_BQ:#x}
        v_lshlrev_b32 v1, 4, v{vI}
        v_lshl_add_u32 v1, v{vJ}, 10, v1
        v_add_u32 v{vA0}, s40, v1
        s_and_b32 s95, s{sCH}, {self.nrep-1}
        s_mul_i32 s95, s95, {REPP}
        s_lshl_b32 s40, s41, 7
        s_add_u32 s40, s40, s95
        s_add_u32 s40, s40, {WS_FLA:#x}""")
        self.flag_poll(16)
        self.stamp(2)
        if 'stop2' in self.abl:
            A("s_branch L_adone")
        rq = self.lab("Lgq")
        A(f"s_lshr_b32 s45, s{sW}, 1\n{rq}:")
        for n in range(4):
            A(f"global_load_dwordx4 v[{vGT+4*n}:{vGT+4*n+3}], v{vA0}, s[26:27] offset:{256*n} sc1")
        skip = self.lab("Lkvdone")
        A(f"s_cmp_lg_u32 s45, 0\ns_cbranch_scc1 {skip}\ns_mov_b32 s45, 1")
        self.lds_spin(C_KV, 4, sleep=1)
        A(f"""
        v_xor_b32 v1, v{vI}, v{vJ}
        v_lshlrev_b32 v1, 4, v1
        v_lshl_add_u32 v1, v{vI}, 8, v1""")
        for s in range(4):
            if s:
                A(f"v_xor_b32 v2, {64*s}, v1")
            for t in range(4):
                r = vKF + 16*t + 4*s
                A(f"ds_read_b128 v[{r}:{r+3}], v{2 if s else 1} offset:{L_K + 4096*t}")
        A(f"""
        v_bfe_u32 v10, v0, 2, 2
        v_lshl_add_u32 v10, v{vJ}, 2, v10
        v_and_b32 v11, 7, v10
        v_lshlrev_b32 v11, 1, v11
        v_bfe_u32 v12, v0, 1, 1
        s_lshl_b32 s40, s{sW}, 3
        v_add_u32 v12, s40, v12
        v_xor_b32 v11, v11, v12
        v_lshlrev_b32 v11, 4, v11
        v_lshl_add_u32 v11, v10, 8, v11
        v_and_b32 v12, 1, v0
        v_lshl_add_u32 v11, v12, 3, v11""")
        for u in range(4):
            if u:
                A(f"v_xor_b32 v12, {32*u}, v11")
            for t in range(4):
                r = vVF + 8*u + 2*t
                A(f"ds_read_b64_tr_b16 v[{r}:{r+1}], v{12 if u else 11} offset:{L_V + 4096*t}")
        A(f"s_mov_b32 s{sSPIN}, 0\n{skip}:")
        self.stamp(3)
        A("s_waitcnt vmcnt(0)")
        self.tagcheck([vGT+4*n for n in range(4)], vT, vT+1)
        self.tagtest(vT, rq)
        self.stamp(4)
        for h in (0, 2):
            A(f"v_pk_add_f32 v[{vGT+h}:{vGT+h+1}], v[{vGT+h}:{vGT+h+1}], v[{vGT+4+h}:{vGT+5+h}]")
            A(f"v_pk_add_f32 v[{vGT+8+h}:{vGT+9+h}], v[{vGT+8+h}:{vGT+9+h}], v[{vGT+12+h}:{vGT+13+h}]")
        for h in (0, 2):
            A(f"v_pk_add_f32 v[{vGT+h}:{vGT+h+1}], v[{vGT+h}:{vGT+h+1}], v[{vGT+8+h}:{vGT+9+h}]")
        A(f"""
        v_cvt_pk_bf16_f32 v{vGT}, v{vGT}, v{vGT+1}
        v_cvt_pk_bf16_f32 v{vGT+1}, v{vGT+2}, v{vGT+3}
        v_lshrrev_b32 v1, 1, v{vJ}
        v_mul_u32_u24 v1, {QLP}, v1
        v_and_b32 v2, 1, v{vJ}
        v_lshl_add_u32 v1, v2, 7, v1
        v_lshl_add_u32 v1, v{vI}, 3, v1
        s_mul_i32 s40, s{sW}, {2*QLP}
        v_add_u32 v1, s40, v1
        ds_write_b64 v1, v[{vGT}:{vGT+1}] offset:{L_QL}""")
        self.arrive(C_QL, want_old=False)
        if 'stop3' in self.abl:
            A("s_branch L_adone")
        A(f"""
        s_cmp_eq_u32 s{sW}, 2
        s_cbranch_scc1 L_ffn
        s_cmp_eq_u32 s{sW}, 3
        s_cbranch_scc1 L_final""")
        A(f"""
        s_lshl_b32 s40, s{sG}, 4
        s_add_u32 s40, s40, s{sW}
        s_lshl_b32 s40, s40, 7
        s_add_u32 s40, s40, s{sCH}
        s_lshl_b32 s40, s40, 7
        s_add_u32 s40, s40, {WS_BO + 4096:#x}
        v_and_b32 v10, 7, v0
        v_lshlrev_b32 v{vA0}, 15, v10
        v_bfe_u32 v11, v0, 3, 1
        v_lshl_add_u32 v{vA0}, v11, 6, v{vA0}
        v_lshl_add_u32 v{vA0}, v{vJ}, 4, v{vA0}
        v_add_u32 v{vA0}, s40, v{vA0}
        v_add_u32 v12, 4096, v{vA0}
        s_lshl_b32 s40, s{sG}, 9
        s_add_u32 s40, s40, s{sCH}
        s_lshl_b32 s40, s40, 4
        s_add_u32 s40, s40, {WS_BML:#x}
        v_lshl_add_u32 v{vA1}, v10, 10, s40
        v_mul_u32_u24 v10, {QLP}, v10
        v_lshl_add_u32 v10, v{vJ}, 4, v10
        s_mov_b32 s46, {f2u(128 ** -0.5):#x}
        s_mov_b32 s47, {f2u(128 ** -0.5):#x}
        s_mov_b32 s45, {f2u(LOG2E):#x}""")
        self.mask(("s92", "s93"), 0xFF00FF00FF00FF00)
        self.lds_spin(C_QL, 4, sleep=0)
        for s in range(4):
            A(f"ds_read_b128 v[{vQF+4*s}:{vQF+4*s+3}], v10 offset:{L_QL + 64*s}")
        for s in range(4):
            A(f"s_waitcnt lgkmcnt({3-s})" if not (self.stamps or self.probe) else "s_waitcnt lgkmcnt(0)")
            for t in (0, 2, 1, 3):
                c = "0" if s == 0 else f"v[{vS+4*t}:{vS+4*t+3}]"
                r = vKF + 16*t + 4*s
                A(f"v_mfma_f32_16x16x32_bf16 v[{vS+4*t}:{vS+4*t+3}], v[{r}:{r+3}], v[{vQF+4*s}:{vQF+4*s+3}], {c}")
        A("s_nop 5")
        U = vT + 8
        for k in range(8):
            A(f"v_cndmask_b32 v{U+k}, v{vS+k}, v{vS+8+k}, s[92:93]")
        for p in range(4):
            A(f"v_cvt_pk_bf16_f32 v{vS+p}, v{U+2*p}, v{U+2*p+1}")
        for p in range(4):
            A(f"v_lshlrev_b32 v{U+2*p}, 16, v{vS+p}\nv_and_b32 v{U+2*p+1}, 0xffff0000, v{vS+p}")
        for p in range(4):
            A(f"v_pk_mul_f32 v[{U+2*p}:{U+2*p+1}], v[{U+2*p}:{U+2*p+1}], s[46:47]")
        for p in range(4):
            A(f"v_cvt_pk_bf16_f32 v{vS+p}, v{U+2*p}, v{U+2*p+1}")
        for p in range(4):
            A(f"v_lshlrev_b32 v{U+2*p}, 16, v{vS+p}\nv_and_b32 v{U+2*p+1}, 0xffff0000, v{vS+p}")
        vM, vL = vT, vT + 1
        A(f"""
        v_max3_f32 v{vM}, v{U}, v{U+1}, v{U+2}
        v_max3_f32 v{vT+2}, v{U+3}, v{U+4}, v{U+5}
        v_max3_f32 v{vM}, v{vM}, v{U+6}, v{U+7}
        v_max_f32 v{vM}, v{vM}, v{vT+2}
        s_nop 1
        v_max_f32_dpp v{vM}, v{vM}, v{vM} row_ror:8 row_mask:0xf bank_mask:0xf""")
        self.allreduce_rows(vM, vT + 2, "v_max_f32")
        A(f"v_mul_f32 v{vT+2}, s45, v{vM}")
        for k in range(8):
            A(f"v_fma_f32 v{U+k}, v{U+k}, s45, -v{vT+2}")
        for k in range(8):
            A(f"v_exp_f32 v{U+k}, v{U+k}")
        P, R = vQF, vQF + 4
        A("s_nop 0")
        for k in range(4):
            A(f"v_cvt_pk_bf16_f32 v{P+k}, v{U+2*k}, v{U+2*k+1}")
        A(f"v_pk_add_f32 v[{vT+4}:{vT+5}], v[{U}:{U+1}], v[{U+2}:{U+3}]")
        for k in range(4):
            A(f"v_mov_b32_dpp v{R+k}, v{P+k} row_ror:8 row_mask:0xf bank_mask:0xf")
        A(f"v_pk_add_f32 v[{vT+6}:{vT+7}], v[{U+4}:{U+5}], v[{U+6}:{U+7}]")
        A(f"v_pk_add_f32 v[{vT+4}:{vT+5}], v[{vT+4}:{vT+5}], v[{vT+6}:{vT+7}]")
        for half in range(2):
            for u in range(4):
                o = vS + 4*u
                b = (P, R)[(u & 1) ^ half]
                c = "0" if half == 0 else f"v[{o}:{o+3}]"
                A(f"v_mfma_f32_16x16x32_bf16 v[{o}:{o+3}], v[{vVF+8*u+4*half}:{vVF+8*u+4*half+3}], v[{b}:{b+3}], {c}")
        A(f"""
        v_add_f32 v{vL}, v{vT+4}, v{vT+5}
        s_nop 1
        v_add_f32_dpp v{vL}, v{vL}, v{vL} row_ror:8 row_mask:0xf bank_mask:0xf""")
        self.allreduce_rows(vL, vT + 2, "v_add_f32")
        for k in range(2):
            for r in range(4):
                A(f"v_cndmask_b32 v{vS+8*k+r}, v{vS+8*k+r}, v{vS+8*k+4+r}, s[92:93]")
            for r in range(4):
                self.tag(vS + 8*k + r)
            A(f"global_store_dwordx4 v{vA0 if k == 0 else 12}, v[{vS+8*k}:{vS+8*k+3}], s[26:27] offset:{-4096 if k == 0 else 0} sc1")
        nml = self.lab("Lnoml")
        A(f"s_cmp_lg_u32 s{sW}, 0\ns_cbranch_scc1 {nml}")
        self.tag(vM); self.tag(vL)
        A(f"""
        v_mov_b32 v{vT+2}, v3
        v_mov_b32 v{vT+3}, v3
        s_mov_b64 exec, 0xff
        global_store_dwordx4 v{vA1}, v[{vT}:{vT+3}], s[26:27] sc1
        {nml}:""")
        self.arrive(C_P)
        nfl = self.lab("Lnofl")
        A(f"""
        s_cmp_eq_u32 s{sTMP}, 1
        s_cbranch_scc0 {nfl}
        s_lshr_b32 s40, s{sCH}, 4
        s_lshl2_add_u32 s40, s{sG}, s40
        s_lshl_b32 s40, s40, 5
        s_and_b32 s41, s{sCH}, 15
        s_add_u32 s40, s40, s41
        s_lshl_b32 s40, s40, 2
        s_add_u32 s40, s40, {WS_FLB:#x}""")
        self.flag_store(self.nrep)
        A(f"{nfl}:")
        self.stamp(5)
        if 'stop4' in self.abl:
            A("s_branch L_adone")
        A(f"""
        s_lshr_b32 s41, s{sRB}, 1
        s_lshl1_add_u32 s40, s{sCT}, s41
        s_lshl_b32 s40, s40, 13
        s_add_u32 s40, s40, {WS_BO + 4096:#x}
        v_lshl_add_u32 v{vA0}, v0, 4, s40
        s_lshr_b32 s40, s{sCT}, 1
        s_lshl_b32 s40, s40, 10
        s_add_u32 s40, s40, {WS_BML:#x}
        v_lshl_add_u32 v{vA1}, v0, 4, s40
        v_and_b32 v1, 7, v0
        v_lshrrev_b32 v2, 3, v0
        v_lshlrev_b32 v11, 5, v2
        v_lshlrev_b32 v2, 2, v2
        v_lshl_add_u32 v10, v1, 5, v2
        s_lshl1_add_u32 s40, s{sG}, s{sW}
        s_lshl_b32 s40, s40, 8
        s_add_u32 s40, s40, s95
        s_add_u32 s40, s40, {WS_FLB:#x}
        s_add_u32 s41, s40, 128""")
        self.flag_poll(16, two=True)
        b0 = self.lab("Lb0")
        A(f"s_cmp_eq_u32 s{sW}, 0\ns_cbranch_scc1 {b0}")
        self.arrive(C_B1, want_old=False)
        A(f"s_branch L_adone\n{b0}:")
        self.lds_spin(C_B1, 1, sleep=0)
        self.stamp(6)
        rb_ = self.lab("Lgo")
        vO, vML = vKF, vKF + 32
        A(f"{rb_}:")
        A(f"global_load_dwordx4 v[{vML}:{vML+3}], v{vA1}, s[26:27] sc1")
        for n in range(8):
            A(f"global_load_dwordx4 v[{vO+4*n}:{vO+4*n+3}], v{vA0}, s[26:27] offset:{1024*n-4096} sc1")
        A("s_waitcnt vmcnt(8)")
        A(f"v_and_b32 v{vT+4}, 0xffff0000, v{vML}\nv_mov_b32 v{vT}, v{vT+4}")
        self.allreduce_in_row(vT, "v_max_f32")
        self.allreduce_rows(vT, vT + 2, "v_max_f32")
        A(f"""
        v_sub_f32 v{vT+4}, v{vT+4}, v{vT}
        v_mul_f32 v{vT+4}, s45, v{vT+4}
        v_exp_f32 v{vT+4}, v{vT+4}
        s_nop 0
        ds_write_b32 v10, v{vT+4} offset:{L_WT}
        ds_read_b128 v[{vT+8}:{vT+11}], v11 offset:{L_WT}
        ds_read_b128 v[{vT+12}:{vT+15}], v11 offset:{L_WT+16}
        v_mul_f32 v{vT+1}, v{vT+4}, v{vML+1}""")
        self.allreduce_in_row(vT + 1)
        self.allreduce_rows(vT + 1, vT + 2, "v_add_f32")
        A(f"v_rcp_f32 v{vT+1}, v{vT+1}")
        A("s_waitcnt vmcnt(0)")
        self.tagcheck([vML] + [vO + 4*n for n in range(8)], vT + 16, vT + 17)
        self.tagtest(vT + 16, rb_)
        self.stamp(7)
        A("s_waitcnt lgkmcnt(0)")
        acc = vT + 4
        for n in range(8):
            w = vT + 8 + (n & ~1)
            os_ = f"op_sel:[0,{n&1}] op_sel_hi:[1,{n&1}]" if n == 0 else f"op_sel:[0,{n&1},0] op_sel_hi:[1,{n&1},1]"
            for h in (0, 2):
                if n == 0:
                    A(f"v_pk_mul_f32 v[{acc+h}:{acc+h+1}], v[{vO+h}:{vO+h+1}], v[{w}:{w+1}] {os_}")
                else:
                    A(f"v_pk_fma_f32 v[{acc+h}:{acc+h+1}], v[{vO+4*n+h}:{vO+4*n+h+1}], v[{w}:{w+1}], v[{acc+h}:{acc+h+1}] {os_}")
        self.reduce_scatter_rows(acc)
        A(f"""
        s_nop 1
        v_add_f32_dpp v{acc}, v{acc}, v{acc} row_ror:8 row_mask:0xf bank_mask:0xf
        v_mov_b32 v1, {C_FO}
        v_mul_f32 v{acc}, v{acc}, v{vT+1}
        v_mov_b32 v2, 1
        v_cvt_pk_bf16_f32 v{acc}, v{acc}, v{acc}""")
        self.exec_set(0x00FF00FF00FF00FF)
        A(f"""
        ds_write_b16 v{vTP}, v{acc} offset:{L_OBF}
        s_mov_b64 exec, 1
        ds_write_b32 v1, v2
        s_mov_b64 exec, -1""")
        self.stamp(8)
        A("L_adone:")
        self.write_stamps(14)
        A("s_endpgm")
        A(f"""
        L_ffn:
        s_cmp_eq_u32 s{sT8}, {TLIGHT}
        s_cbranch_scc1 L_adone""")
        if 'noffn' in self.abl:
            A("s_branch L_adone")
        self.red_publish(L_RG, C_G, 32,
                         f"""s_lshl2_add_u32 s40, s{sFT}, s{sRB}
                         s_lshl_b32 s40, s40, 9
                         v_lshl_add_u32 v11, v0, 4, s40
                         v_lshlrev_b32 v12, 13, v{vJ}
                         v_xor_b32 v11, v11, v12
                         v_add_u32 v11, {WS_BD:#x}, v11""",
                         f"""s_lshl_b32 s40, s{sFT}, 5
                         s_add_u32 s40, s40, s{sRB}
                         s_lshl_b32 s40, s40, 2
                         v_mul_u32_u24 v12, 0x210, v0
                         v_xor_b32 v12, s40, v12
                         s_movk_i32 s40, {WS_FLD:#x}""", 2, 12)
        self.stamp(5)
        A(f"""
        s_lshr_b32 s41, s{sRB}, 1
        s_lshl4_add_u32 s40, s{sFT}, s41
        s_lshl_b32 s40, s40, 7
        s_add_u32 s40, s40, {WS_BD:#x}
        v_and_b32 v1, 7, v0
        v_lshlrev_b32 v1, 4, v1
        v_lshrrev_b32 v2, 3, v0
        v_lshl_add_u32 v1, v2, 8, v1
        v_add_u32 v{vA0}, s40, v1
        s_lshl_b32 s40, s{sFT}, 7
        s_add_u32 s40, s40, {WS_FLD:#x}""")
        self.flag_poll(8)
        self.stamp(6)
        rd = self.lab("Lgd")
        A(f"""
        {rd}:
        global_load_dwordx4 v[{vGT}:{vGT+3}], v{vA0}, s[26:27] sc1
        s_waitcnt vmcnt(0)""")
        self.tagcheck([vGT], vT, vT + 1)
        self.tagtest(vT, rd)
        self.stamp(7)
        self.reduce_scatter_rows(vGT)
        c1 = -2.0 * 0.7978845608028654 * LOG2E
        c2 = c1 * 0.044715
        g, u = vGT, vGT + 4
        self.bf16_round(g, g)
        A(f"""
        v_mov_b32 v{vT+1}, {f2u(c1):#x}
        v_mul_f32 v{vT}, v{g}, v{g}
        v_mov_b32_dpp v{u}, v{g} row_ror:8 row_mask:0xf bank_mask:0xf
        v_fmac_f32 v{vT+1}, {f2u(c2):#x}, v{vT}
        v_mul_f32 v{vT}, v{g}, v{vT+1}
        v_exp_f32 v{vT}, v{vT}
        v_mov_b32 v1, {C_FH}
        v_add_f32 v{vT}, 1.0, v{vT}
        v_rcp_f32 v{vT}, v{vT}
        v_mov_b32 v2, 1
        v_mul_f32 v{g}, v{g}, v{vT}""")
        self.bf16_round(g, g)
        A(f"""
        v_mul_f32 v{g}, v{g}, v{u}
        v_cvt_pk_bf16_f32 v{g}, v{g}, v{g}""")
        self.exec_set(0x00FF00FF00FF00FF)
        A(f"""
        ds_write_b16 v{vTP}, v{g} offset:{L_HBF}
        s_mov_b64 exec, 1
        ds_write_b32 v1, v2
        s_mov_b64 exec, -1""")
        self.stamp(8)
        A("s_branch L_adone")
        F0, F1, S0, S1 = vGT, vGT + 4, vGT + 8, vGT + 12
        sets = {F0: (vA0, 0, 48), F1: (10, 0, 50), S0: (vA1, 0, 52), S1: (11, 0, 54)}
        A(f"""
        L_final:
        s_lshl_b32 s42, s{sX}, 5
        s_add_u32 s42, s42, s{sY}
        s_lshl_b32 s42, s42, 4
        v_mul_u32_u24 v1, {ROWP}, v0
        s_add_u32 s40, s42, {WS_BF:#x}
        v_add_u32 v{vA0}, s40, v1
        v_add_u32 v10, {64*ROWP}, v{vA0}
        s_add_u32 s40, s42, {WS_BS:#x}
        v_add_u32 v{vA1}, s40, v1
        v_add_u32 v11, {64*ROWP}, v{vA1}
        v_lshlrev_b32 v{vXF}, 16, v{vXF}""")
        if 'nofinal' in self.abl:
            A("s_branch L_adone")
        for r in range(4):
            A(f"v_mov_b32 v{F1+r}, v3")
        for k, (va, off, sm) in sets.items():
            if k == F1:
                self.mask((f"s{sm}", f"s{sm+1}"), (1 << 48) - 1)
            else:
                A(f"s_mov_b64 s[{sm}:{sm+1}], -1")
        self.lds_spin(C_SD, 8 if self.finstart == "pub" else 4, sleep=2)
        self.stamp(5)
        A(f"s_mov_b32 s{sSPIN}, 0")

        def loads(ks):
            for k in ks:
                va, off, sm = sets[k]
                l = self.lab("Lsk")
                A(f"""
                s_mov_b64 exec, s[{sm}:{sm+1}]
                s_cbranch_execz {l}
                global_load_dwordx4 v[{k}:{k+3}], v{va}, s[26:27] sc1
                {l}:""")
            A("s_mov_b64 exec, -1")

        def checks(ks):
            for i, k in enumerate(ks):
                A(f"v_bitop3_b32 v{vT+2*i}, v{k}, v{k+1}, s{sT10} bitop3:0x7e")
                A(f"v_bitop3_b32 v{vT+2*i+1}, v{k+2}, v{k+3}, s{sT10} bitop3:0x7e")
            for i, k in enumerate(ks):
                A(f"v_bitop3_b32 v{vT+2*i}, v{vT+2*i}, v{vT+2*i+1}, s44 bitop3:0xa8")
            for i, k in enumerate(ks):
                sm = sets[k][2]
                A(f"v_cmp_ne_u32 s[{sm}:{sm+1}], 0, v{vT+2*i}")

        def again(ks, lab):
            a, b = sets[ks[0]][2], sets[ks[1]][2]
            A(f"""
            s_add_u32 s{sSPIN}, s{sSPIN}, 1
            s_cmp_gt_u32 s{sSPIN}, {SPIN_MAX}
            s_cbranch_scc1 L_end
            s_or_b64 s[40:41], s[{a}:{a+1}], s[{b}:{b+1}]
            s_cbranch_scc1 {lab}""")

        l1 = self.lab("Lfin1")
        A(f"{l1}:")
        loads([F0, F1, S0, S1])
        A("s_waitcnt vmcnt(0)")
        checks([F0, F1, S0, S1])
        again([F0, F1], l1)
        self.stamp(6)
        loads([S0, S1])
        for h in (0, 2):
            A(f"v_pk_add_f32 v[{F0+h}:{F0+h+1}], v[{F0+h}:{F0+h+1}], v[{F1+h}:{F1+h+1}]")
        self.reduce_scatter_rows(F0)
        self.allreduce_in_row(F0)
        f = F0
        self.bf16_round(f, f)
        A(f"""
        v_mul_f32 v{vT+12}, {f2u(-LOG2E):#x}, v{f}
        v_exp_f32 v{vT+12}, v{vT+12}
        s_nop 0
        v_add_f32 v{vT+12}, 1.0, v{vT+12}
        v_rcp_f32 v{vT+12}, v{vT+12}
        s_nop 0
        v_mul_f32 v{f}, v{f}, v{vT+12}""")
        self.bf16_round(f, f)
        l2 = self.lab("Lfin2"); l3 = self.lab("Lfin3")
        A(f"s_branch {l3}\n{l2}:")
        loads([S0, S1])
        A(f"{l3}:\ns_waitcnt vmcnt(0)")
        checks([S0, S1])
        again([S0, S1], l2)
        self.stamp(7)
        s = S0
        for h in (0, 2):
            A(f"v_pk_add_f32 v[{S0+h}:{S0+h+1}], v[{S0+h}:{S0+h+1}], v[{S1+h}:{S1+h+1}]")
        self.reduce_scatter_rows(s)
        self.allreduce_in_row(s)
        self.bf16_round(s, s)
        A(f"v_mul_f32 v{s}, v{s}, v{f}")
        self.bf16_round(s, s)
        A(f"""
        v_add_f32 v{s}, v{s}, v{vXF}
        v_cvt_pk_bf16_f32 v{s}, v{s}, v{s}""")
        self.exec_set(0x0001000100010001)
        A(f"global_store_short v{vA2}, v{s}, s[22:23]")
        A(f"""
        s_cmp_lg_u32 s2, 0
        s_cbranch_scc1 L_adone
        s_mov_b64 exec, 1
        v_mov_b32 v1, {WS_E}
        v_mov_b32 v2, s{sT32}
        global_store_dword v1, v2, s[26:27]
        s_branch L_adone""")


if __name__ == "__main__":
    import argparse
    ap = argparse.ArgumentParser()
    ap.add_argument("-o", default="recurrent_scan__sliding_block_cached__geglu_ffn__decode.s")
    ap.add_argument("-W", type=int, default=6)
    ap.add_argument("--stamps", action="store_true")
    ap.add_argument("--probe", default=None)
    ap.add_argument("--kw", default="")
    a = ap.parse_args()
    open(a.o, "w").write(Gen(W=a.W, stamps=a.stamps, probe=tuple(map(int, a.probe.split(','))) if a.probe else None, **eval(f'dict({a.kw})')).build())
```

```python
import sys, struct

KN = "recurrent_scan__sliding_block_cached__geglu_ffn__decode_kernel"

def f2u(x):
    return struct.unpack("<I", struct.pack("<f", x))[0]

WS_E   = 0x0
WS_FLD = 0x1000
WS_BML = 0x4000
WS_BQ  = 0x10000
WS_BD  = 0x30000
ROWP   = 4352
WS_BS  = 0x50000
WS_BF  = 0x78000
WS_BO  = 0xA0000
BOP    = 4096 + 128
REPP   = 17 * 128
WS_FLA = 0x130000
WS_FLB = 0x148000
WS_ST  = 0x400000

L_RQ   = 0
L_RG   = L_RQ + 2048
L_QL   = L_RG + 4096
QLP    = 272
L_WT   = L_QL + 2304
L_VEC  = L_WT + 512
L_XQ   = L_VEC + 256
L_XG   = L_XQ + 256
L_RF   = L_XG + 512
L_CNT  = L_RF + 2048
C_Q, C_G, C_X, C_QL, C_P, C_FO, C_GA, C_B1, C_F1 = [L_CNT + 4*i for i in range(9)]
C_XN, C_K, C_V = L_CNT + 48, L_CNT + 64, L_CNT + 80
L_K    = 12288
L_V    = L_K + 32768
assert L_CNT + 128 <= L_K
LDS_BYTES = L_V + 32768
YF, YL = 16, 30

TAGM = 0x3FF
LOG2E = 1.4426950408889634
SPIN_MAX = 1 << 20

sX, sY, sRB, sHQ, sRBQ, sTL, sG, sCH = 28, 29, 30, 31, 32, 33, 34, 35
sT32, sT10, sSPIN, sTMP = 36, 37, 38, 39
sW = 3
sP = 48
sSTAMP = 64


class Gen:
    def __init__(self, stamps=False, prefetch=True, probe=None, abl='', xnpos=11, nrepA=4, nrepB=4, psleep=1,
                 WA=(6, 6, 5), WF=(6, 8, 8), pause='gather', fthr=6, wtest=None, fsleep=16, upx=2):
        self.fsleep = fsleep
        self.upx = upx
        self.wtest = wtest
        self.fthr = fthr
        self.L = []
        self.stamps = stamps
        self.prefetch = prefetch
        self.probe = probe
        self.abl = abl
        self.xnpos = xnpos
        self.nrepA, self.nrepB = nrepA, nrepB
        self.psleep = psleep
        self.relwait = False
        self.WA, self.WF = WA, WF
        self.pause = pause
        self.nlab = 0

    def A(self, s):
        for line in s.strip("\n").split("\n"):
            if line.strip():
                self.L.append("    " + line.strip() if not line.strip().endswith(":") else line.strip())

    def lab(self, p="L"):
        self.nlab += 1
        return f"{p}_{self.nlab}"

    def stamp(self, k):
        if self.stamps or (self.probe and k in (0, self.probe[2])):
            self.A(f"s_memrealtime s[{sSTAMP+2*k}:{sSTAMP+2*k+1}]")

    def mask(self, reg, val):
        lo, hi = val & 0xFFFFFFFF, val >> 32
        self.A(f"s_mov_b32 {reg[0]}, {lo:#x}\ns_mov_b32 {reg[1]}, {hi:#x}")

    def exec_set(self, val):
        if val == -1:
            self.A("s_mov_b64 exec, -1")
        elif val <= 64:
            self.A(f"s_mov_b64 exec, {val}")
        elif val < (1 << 31):
            self.A(f"s_mov_b64 exec, {val:#x}")
        else:
            self.mask(("exec_lo", "exec_hi"), val)

    def arrive(self, cnt, want_old=True):
        self.A(f"""
        s_mov_b64 exec, 1
        v_mov_b32 v1, {cnt}
        v_mov_b32 v2, 1""")
        if want_old:
            self.A(f"""
            ds_add_rtn_u32 v2, v1, v2
            s_waitcnt lgkmcnt(0)
            v_readfirstlane_b32 s{sTMP}, v2""")
        else:
            self.A("ds_add_u32 v1, v2")
        self.A("s_mov_b64 exec, -1")

    def lds_spin(self, cnt, val, sleep=1):
        l = self.lab("Lspin"); d = self.lab("Lgot")
        self.A(f"""
        v_mov_b32 v1, {cnt}
        s_mov_b32 s{sSPIN}, 0
        {l}:
        ds_read_b32 v2, v1
        s_add_u32 s{sSPIN}, s{sSPIN}, 1
        s_cmp_gt_u32 s{sSPIN}, {SPIN_MAX}
        s_cbranch_scc1 L_end
        s_waitcnt lgkmcnt(0)
        v_readfirstlane_b32 s{sTMP}, v2
        s_cmp_eq_u32 s{sTMP}, {val}
        s_cbranch_scc1 {d}""")
        if sleep:
            self.A(f"s_sleep {sleep}")
        self.A(f"s_branch {l}\n{d}:")

    def flag_poll(self, n, two=False):
        if 'nopoll' in self.abl:
            return
        l = self.lab("Lpoll"); r = self.lab("Lretry"); d = self.lab("Lflag")
        self.A(f"""
        s_mov_b32 s{sSPIN}, 0
        s_mov_b32 s42, s{sT32}
        s_mov_b32 s43, s{sT32}
        s_branch {l}
        {r}:
        s_sleep {self.psleep}
        {l}:
        s_load_dwordx{n} s[{sP}:{sP+n-1}], s[26:27], s40 glc
        {'s_load_dwordx16 s[4:19], s[26:27], s41 glc' if two else ''}
        s_add_u32 s{sSPIN}, s{sSPIN}, 1
        s_cmp_gt_u32 s{sSPIN}, {SPIN_MAX}
        s_cbranch_scc1 L_end
        s_waitcnt lgkmcnt(0)""")
        for b in ((sP, 4) if two else (sP,)):
            for i in range(0, n, 2):
                self.A(f"s_cmp_eq_u64 s[{b+i}:{b+i+1}], s[42:43]\ns_cbranch_scc0 {r}")
        self.A(f"{d}:")

    def flag_store(self, n, vaddr=None):
        self.exec_set((1 << n) - 1)
        self.A(f"""
        {f'v_mul_u32_u24 v1, {REPP}, v0' if vaddr is None else ''}
        v_add_u32 v1, s40, v{1 if vaddr is None else vaddr}
        v_mov_b32 v2, s{sT32}
        {'s_waitcnt vmcnt(0)' if self.relwait else ''}
        global_store_dword v1, v2, s[26:27] sc1
        s_mov_b64 exec, -1""")

    def tagcheck(self, regs, vacc, vt):
        first = True
        for r in regs:
            if first:
                self.A(f"v_bitop3_b32 v{vacc}, v{r}, v{r+1}, s{sT10} bitop3:0x7e")
                self.A(f"v_bitop3_b32 v{vt}, v{r+2}, v{r+3}, s{sT10} bitop3:0x7e")
                self.A(f"v_or_b32 v{vacc}, v{vacc}, v{vt}")
                first = False
            else:
                self.A(f"v_bitop3_b32 v{vt}, v{r}, v{r+1}, s{sT10} bitop3:0x7e")
                self.A(f"v_bitop3_b32 v{vt+1}, v{r+2}, v{r+3}, s{sT10} bitop3:0x7e")
                self.A(f"v_or3_b32 v{vacc}, v{vacc}, v{vt}, v{vt+1}")

    def tagtest(self, vacc, retry):
        if 'notag' in self.abl:
            return
        self.A(f"""
        v_and_b32 v{vacc}, {TAGM:#x}, v{vacc}
        v_cmp_ne_u32 vcc, 0, v{vacc}
        {'s_add_u32 s96, s96, 1' if self.stamps else ''}
        s_add_u32 s{sSPIN}, s{sSPIN}, 1
        s_cmp_gt_u32 s{sSPIN}, {SPIN_MAX}
        s_cbranch_scc1 L_end
        s_nop 1
        s_cbranch_vccnz {retry}""")

    def tag(self, r):
        self.A(f"v_bfi_b32 v{r}, s44, v3, v{r}")

    def reduce_scatter_rows(self, a):
        self.A(f"""
        s_nop 1
        v_permlane32_swap_b32 v{a}, v{a+2}
        v_permlane32_swap_b32 v{a+1}, v{a+3}
        v_add_f32 v{a}, v{a}, v{a+2}
        v_add_f32 v{a+1}, v{a+1}, v{a+3}
        s_nop 1
        v_permlane16_swap_b32 v{a}, v{a+1}
        v_add_f32 v{a}, v{a}, v{a+1}""")

    def allreduce_rows(self, a, t, op):
        self.A(f"""
        v_mov_b32 v{t}, v{a}
        s_nop 1
        v_permlane32_swap_b32 v{t}, v{a}
        {op} v{a}, v{a}, v{t}
        s_nop 0
        v_mov_b32 v{t}, v{a}
        s_nop 1
        v_permlane16_swap_b32 v{t}, v{a}
        {op} v{a}, v{a}, v{t}""")

    def allreduce_in_row(self, a, op="v_add_f32"):
        for m in ("quad_perm:[1,0,3,2]", "quad_perm:[2,3,0,1]", "row_half_mirror", "row_mirror"):
            self.A(f"s_nop 1\n{op}_dpp v{a}, v{a}, v{a} {m} row_mask:0xf bank_mask:0xf")

    def bf16_round(self, d, s):
        self.A(f"v_cvt_pk_bf16_f32 v{d}, v{s}, v{s}\nv_and_b32 v{d}, 0xffff0000, v{d}")

    def build(self):
        A = self.A
        self.L.append(f"; @launch grid=(256,1,1) block=(512,1,1) lds={LDS_BYTES}")
        self.L.append('.amdgcn_target "amdgcn-amd-amdhsa--gfx950"')
        self.L += [".text", f".globl {KN}", ".p2align 8", f".type {KN},@function", f"{KN}:"]
        self.stamp(0)
        A(f"""
        s_cmp_ge_u32 s2, 256
        s_cbranch_scc1 L_end
        s_load_dwordx16 s[4:19], s[0:1], 0
        s_load_dwordx8 s[20:27], s[0:1], 64
        v_lshrrev_b32 v1, 6, v0
        v_and_b32 v0, 63, v0
        v_readfirstlane_b32 s{sW}, v1
        s_and_b32 s{sX}, s2, 7
        s_lshr_b32 s{sY}, s2, 3
        s_lshr_b32 s{sHQ}, s{sY}, 3
        s_lshl2_add_u32 s{sHQ}, s{sX}, s{sHQ}
        s_and_b32 s{sRBQ}, s{sY}, 7
        s_lshr_b32 s{sG}, s{sX}, 1
        s_and_b32 s{sCH}, s{sX}, 1
        s_lshl4_add_u32 s{sCH}, s{sCH}, s{sY}
        s_lshl4_add_u32 s40, s{sX}, s{sY}
        s_mul_i32 s41, s{sX}, 14
        s_add_u32 s41, s41, s{sY}
        s_sub_u32 s41, s41, {YF}
        s_cmp_lt_u32 s{sY}, {YF}
        s_cselect_b32 s40, s40, s41
        s_lshr_b32 s{sTL}, s40, 2
        s_and_b32 s{sRB}, s40, 3
        s_movk_i32 s44, {TAGM:#x}
        v_and_b32 v4, 15, v0
        v_lshrrev_b32 v5, 4, v0""")
        if self.stamps or self.probe:
            A(f"s_mov_b32 s96, 0\ns_mov_b32 s94, s{sW}")
        if self.probe:
            A(f"s_waitcnt lgkmcnt(0)\ns_mov_b32 s{sSTAMP+2*self.probe[2]}, s{sSTAMP}")
        A(f"""
        s_cmp_ge_u32 s{sW}, 4
        s_cbranch_scc1 L_swave""")
        self.awave()
        self.swave()
        self.final()
        A("L_end:")
        A("s_endpgm")
        self.L.append("L_codeend:")
        nv = 200
        self.L += ['.section .rodata,"a"', ".p2align 6", f".amdhsa_kernel {KN}",
                   f"  .amdhsa_next_free_vgpr {nv}", "  .amdhsa_next_free_sgpr 98", f"  .amdhsa_accum_offset {nv}",
                   "  .amdhsa_group_segment_fixed_size 0", "  .amdhsa_kernarg_size 96", "  .amdhsa_user_sgpr_count 2",
                   "  .amdhsa_user_sgpr_kernarg_segment_ptr 1", "  .amdhsa_system_sgpr_workgroup_id_x 1",
                   "  .amdhsa_float_denorm_mode_32 3", ".end_amdhsa_kernel"]
        return "\n".join(self.L) + "\n"

    def write_stamps(self, n):
        if self.probe:
            wg, wave, k = self.probe
            self.stamp(n)
            d = self.lab("Lprobe_done"); l = self.lab("Lprobe")
            self.A(f"""
            s_waitcnt lgkmcnt(0)
            s_cmp_eq_u32 s2, {wg if wg >= 0 else 's2'}
            s_cbranch_scc0 {d}
            s_cmp_eq_u32 s94, {wave}
            s_cbranch_scc0 {d}
            s_add_u32 s40, s{sSTAMP+2*k}, 4000
            {l}:
            s_memrealtime s[42:43]
            s_waitcnt lgkmcnt(0)
            s_sub_u32 s41, s42, s40
            s_cmp_lt_i32 s41, 0
            s_cbranch_scc1 {l}
            {d}:""")
            return
        if not self.stamps:
            return
        self.stamp(n)
        A = self.A
        A(f"""
        s_waitcnt lgkmcnt(0)
        s_mov_b64 exec, -1
        s_lshl3_add_u32 s40, s2, s94
        s_lshl_b32 s40, s40, 6
        s_add_u32 s40, s40, {WS_ST:#x}
        v_mov_b32 v1, 0""")
        for k in range(n + 1):
            A(f"v_writelane_b32 v1, s{sSTAMP+2*k}, {k}")
        A(f"""
        s_getreg_b32 s41, hwreg(HW_REG_XCC_ID)
        s_and_b32 s41, s41, 0xf
        s_lshl4_add_u32 s41, s96, s41
        v_writelane_b32 v1, s41, 15
        v_lshl_add_u32 v2, v0, 2, s40
        s_mov_b64 exec, 0xffff
        global_store_dword v2, v1, s[26:27]""")

    def swave(self):
        A = self.A
        vI, vJ = 4, 5
        vAq, vA1, vA2, vA3, vAw, vRed, vPub = 6, 7, 8, 9, 10, 11, 14
        vPS, vXQ, vXG, vSEL, aQ, aG, aU, vT = 16, 24, 28, 36, 40, 44, 48, 52
        RING, BIG = 56, 120
        A(f"""
        L_swave:
        s_sub_u32 s{sW}, s{sW}, 4
        s_lshl2_add_u32 s40, s{sRBQ}, s{sW}
        s_lshl_b32 s40, s40, 18
        s_lshl_b32 s41, s{sHQ}, 8
        s_add_u32 s40, s40, s41
        v_lshlrev_b32 v13, 4, v{vI}
        v_lshl_add_u32 v{vAq}, v{vJ}, 13, v13
        v_add_u32 v{vAq}, s40, v{vAq}
        s_mov_b32 s45, 0x8000
        s_waitcnt lgkmcnt(0)""")
        for m in range(8):
            A(f"global_load_dwordx4 v[{RING+4*m}:{RING+4*m+3}], v{vAq}, s[10:11] nt")
            if m < 7:
                A(f"v_add_u32 v{vAq}, s45, v{vAq}")
        A(f"s_load_dword s{sT32}, s[26:27], {WS_E}")
        self.stamp(1)
        A(f"""
        ; wo / down: rows tile*128 + 8*m + (l>>3), columns cb*256 + sw*64 + 8*(l&7)
        v_lshrrev_b32 v12, 3, v0
        v_and_b32 v1, 7, v0
        v_lshlrev_b32 v2, 4, v1
        v_lshl_add_u32 v{vAw}, v12, 11, v2
        s_lshl2_add_u32 s42, s{sRB}, s{sW}
        s_lshl_b32 s40, s42, 7
        s_lshl_b32 s41, s{sTL}, 18
        s_add_u32 s40, s40, s41
        v_add_u32 v{vAw}, s40, v{vAw}
        s_movk_i32 s45, 0x4000
        v_lshl_add_u32 v1, v1, 1, v{vJ}
        s_lshl_b32 s40, s42, 8
        v_lshl_add_u32 v{vPub}, v1, 4, s40
        v_lshl_add_u32 v{vRed}, v{vI}, 1, v{vJ}
        v_lshlrev_b32 v{vRed}, 4, v{vRed}
        s_mov_b32 s40, 0xaaaaaaaa
        s_mov_b32 s41, 0xaaaaaaaa
        v_mov_b32 v1, 0x0c0c0100
        v_mov_b32 v2, 0x01000c0c
        v_cndmask_b32 v1, v1, v2, s[40:41]
        v_mov_b32 v2, 0x0c0c0302
        v_mov_b32 v3, 0x03020c0c
        v_cndmask_b32 v2, v2, v3, s[40:41]
        v_mov_b32 v3, 0x0c0c0c0c""")
        for d in range(4):
            m = 0x03030303 << (2*d)
            A(f"""
            s_mov_b32 s40, {m:#x}
            s_mov_b32 s41, {m:#x}
            v_cndmask_b32 v{vPS+d}, v3, v1, s[40:41]
            v_cndmask_b32 v{vPS+4+d}, v3, v2, s[40:41]""")
        A(f"""
        s_barrier
        s_waitcnt lgkmcnt(0)
        s_add_u32 s{sT32}, s{sT32}, 1
        s_and_b32 s{sT10}, s{sT32}, s44
        v_mov_b32 v3, s{sT10}
        s_cmp_ge_u32 s{sY}, {YF}
        s_cbranch_scc1 L_s_notattn""")

        def sel(m, dst, src):
            for d in range(4):
                A(f"v_perm_b32 v{dst+d}, v{src+(m>>1)}, v{src+(m>>1)}, v{vPS+4*(m&1)+d}")

        def mfma(acc, s, w, first):
            c = "0" if first else f"v[{acc}:{acc+3}]"
            A(f"v_mfma_f32_16x16x32_bf16 v[{acc}:{acc+3}], v[{s}:{s+3}], v[{w}:{w+3}], {c}")

        def get_xn(ffn):
            A(f"s_lshl_b32 s41, s{sW}, 2\ns_add_u32 s41, s41, {C_XN}")
            self.lds_spin("s41", 1, sleep=0)
            A(f"""
            s_lshl_b32 s40, s{sW}, 6
            v_lshl_add_u32 v2, v{vJ}, 4, s40
            ds_read_b128 v[{vXQ}:{vXQ+3}], v2 offset:{L_XQ}""")
            if ffn:
                A(f"""
                v_lshlrev_b32 v2, 1, v2
                ds_read_b128 v[{vXG}:{vXG+3}], v2 offset:{L_XG}
                ds_read_b128 v[{vXG+4}:{vXG+7}], v2 offset:{L_XG+16}""")
            A("s_waitcnt lgkmcnt(0)")
            self.stamp(3)
            sel(0, vSEL, vXQ)
            A("s_nop 1")

        def red_write(accs, lbase, shift, cnt):
            A(f"s_lshl_b32 s40, s{sW}, {shift}\nv_add_u32 v1, s40, v{vRed}\ns_mov_b32 exec_hi, 0")
            for i, a in enumerate(accs):
                A(f"ds_write_b128 v1, v[{a}:{a+3}] offset:{lbase + 512*i}")
            self.arrive(cnt, want_old=False)

        def kvflag(c):
            A(f"""
            s_lshl_b32 s40, s{sW}, 2
            s_mov_b64 exec, 1
            v_mov_b32 v1, s40
            v_mov_b32 v2, 1
            ds_write_b32 v1, v2 offset:{c}
            s_mov_b64 exec, -1""")

        def issue(op, i):
            kind, m = op
            slot = RING + 4*(i % 16)
            if kind in "kv":
                va, sb, x = (vA1, 6, 64*(m & 3)) if kind == "k" else (vA2, 8, 128*(m & 1))
                if m % 4 == 0:
                    if i > 8:
                        A(f"s_add_u32 s47, s47, {4096 if m == 4 else L_V - L_K - 4096}")
                    A("s_mov_b32 m0, s47")
                    if m == 4:
                        A(f"v_add_u32 v{va}, 4096, v{va}")
                A(f"v_xor_b32 v1, {x}, v{va}")
                A(f"global_load_lds_dwordx4 v1, s[{sb}:{sb+1}] offset:{1024*(m&3)} nt")
            elif kind in "gu":
                va, sb = (vA1, 16) if kind == "g" else (vA2, 18)
                A(f"global_load_dwordx4 v[{slot}:{slot+3}], v{va}, s[{sb}:{sb+1}] nt")
                if m < 15:
                    A(f"v_add_u32 v{va}, s46, v{va}")
            elif kind in "do":
                sb = 20 if kind == "d" else 12
                A(f"global_load_dwordx4 v[{BIG+4*m}:{BIG+4*m+3}], v{vAw}, s[{sb}:{sb+1}] nt")
                if m < 15:
                    A(f"v_add_u32 v{vAw}, s45, v{vAw}")

        def process(op, i, ffn):
            kind, m = op
            slot = RING + 4*(i % 16)
            if kind == "q":
                mfma(aQ, vSEL, slot, m == 0)
                if m < 7:
                    sel(m + 1, vSEL, vXQ)
                    A("s_nop 1")
                else:
                    if ffn:
                        sel(0, vSEL, vXG)
                        A("s_nop 0")
                    else:
                        A("s_nop 4")
                    red_write([aQ], L_RQ, 9, C_Q)
                    self.stamp(4)
            elif kind in "kv" and m == 7:
                l = self.lab("Lkvf")
                if kind == "v":
                    A(f"s_cmp_lg_u32 s43, 0\ns_cbranch_scc1 {l}")
                kvflag(C_K if kind == "k" else C_V)
                if kind == "v":
                    self.stamp(5)
                    A(f"{l}:")
            elif kind == "g":
                mfma(aG, vSEL, slot, m == 0)
            elif kind == "u":
                mfma(aU, vSEL, slot, m == 0)
                if m < 15:
                    sel(m + 1, vSEL, vXG)
                    A("s_nop 1")
                else:
                    A("s_nop 4")
                    red_write([aG, aU], L_RG, 10, C_G)
                    self.stamp(6)

        def stream(ops, wfun, ffn, start=8, landed=0):
            for i in range(start, len(ops)):
                w = wfun(i)
                A(f"s_waitcnt vmcnt({w-1})")
                issue(ops[i], i)
                if i < self.xnpos:
                    continue
                if i == self.xnpos:
                    get_xn(ffn)
                while landed <= i - w:
                    process(ops[landed], landed, ffn); landed += 1
            return landed

        def drain(ops, landed, upto, ffn):
            n = len(ops)
            while landed < upto:
                if ops[landed][0] in "qgu":
                    A(f"s_waitcnt vmcnt({n - 1 - landed})")
                    process(ops[landed], landed, ffn)
                landed += 1
            return landed

        def final_gemv(val, first, nops, landed, wsb):
            if 'noa' not in self.abl and 'nofin' not in self.abl:
                self.lds_spin(C_FO, val, sleep=0)
            A(f"""
            v_lshlrev_b32 v1, 5, v12
            ds_read_b128 v[{vXG}:{vXG+3}], v1 offset:{L_VEC}
            ds_read_b128 v[{vXG+4}:{vXG+7}], v1 offset:{L_VEC+16}
            s_mul_i32 s40, s{sTL}, {ROWP}
            s_add_u32 s40, s40, {wsb:#x}
            v_add_u32 v2, s40, v{vPub}
            s_waitcnt lgkmcnt(0)""")
            self.stamp(8)
            late = [m for m in range(16) if first + m >= landed]
            early = [m for m in range(16) if first + m < landed]
            for k, m in enumerate(early):
                sel(m, RING + 4*m, vXG)
                if k:
                    mfma(aQ, RING + 4*early[k-1], BIG + 4*early[k-1], k == 1)
            for k, m in enumerate(late):
                sel(m, RING + 4*m, vXG)
                if k == 0 and early:
                    mfma(aQ, RING + 4*early[-1], BIG + 4*early[-1], len(early) == 1)
            self.stamp(9)
            for k, m in enumerate(late):
                A(f"s_waitcnt vmcnt({nops - 1 - (first + m)})")
                mfma(aQ, RING + 4*m, BIG + 4*m, k == 0 and not early)
            g = vT
            A(f"""
            s_nop 7
            v_permlane32_swap_b32 v{aQ}, v{aQ+2}
            v_permlane32_swap_b32 v{aQ+1}, v{aQ+3}
            s_nop 0
            v_add_f32_dpp v{g}, v{aQ+2}, v{aQ} row_shl:8 row_mask:0xf bank_mask:0xf bound_ctrl:1
            v_add_f32_dpp v{g+1}, v{aQ+3}, v{aQ+1} row_shl:8 row_mask:0xf bank_mask:0xf bound_ctrl:1""")
            self.tag(g); self.tag(g + 1)
            A(f"""
            s_nop 0
            v_permlane32_swap_b32 v{g}, v{g+2}
            v_permlane32_swap_b32 v{g+1}, v{g+3}
            s_mov_b64 exec, 0x00ff00ff
            global_store_dwordx4 v2, v[{g}:{g+3}], s[26:27] sc1
            s_mov_b64 exec, -1""")

        qops = [("q", m) for m in range(8)]
        A(f"""
        s_lshl_b32 s40, s{sG}, 24
        s_lshl_b32 s41, s{sCH}, 15
        s_add_u32 s40, s40, s41
        s_lshl_b32 s47, s{sW}, 13
        s_add_u32 s40, s40, s47
        s_add_u32 s47, s47, {L_K}
        s_add_u32 s40, s40, {(65536-4096)*256:#x}
        v_xor_b32 v1, v{vI}, v{vJ}
        v_lshlrev_b32 v1, 4, v1
        v_lshl_add_u32 v1, v{vJ}, 8, v1
        v_add_u32 v{vA1}, s40, v1
        v_lshlrev_b32 v1, 1, v{vJ}
        v_xor_b32 v1, v{vI}, v1
        v_lshlrev_b32 v1, 4, v1
        v_lshl_add_u32 v1, v{vJ}, 8, v1
        v_add_u32 v{vA2}, s40, v1""")
        ops = qops + [("k", m) for m in range(8)] + [("v", m) for m in range(8)]
        WA = self.WA
        landed = stream(ops, lambda i: WA[0] if i < 14 else WA[1], False)
        A("s_mov_b32 s43, 0")
        if self.pause and 'noa' not in self.abl:
            go = self.lab("Lgo")
            A(f"""
            v_mov_b32 v1, {C_GA}
            ds_read_b32 v2, v1
            s_waitcnt lgkmcnt(0)
            v_readfirstlane_b32 s{sTMP}, v2
            s_cmp_eq_u32 s{sTMP}, 4
            s_cbranch_scc1 {go}
            s_waitcnt vmcnt(0)
            s_mov_b32 s43, 1""")
            assert landed >= 16
            kvflag(C_V)
            self.stamp(5)
            self.lds_spin(C_GA, 4, sleep=1)
            A(f"{go}:")
            self.stamp(6)
        ops = ops + [("o", m) for m in range(16)]
        landed = stream(ops, lambda i: WA[2], False, start=24, landed=landed)
        assert landed >= 24
        self.stamp(7)
        final_gemv(4, 24, 40, landed, WS_BS)
        self.write_stamps(10)
        A("s_endpgm")
        A(f"""
        L_s_notattn:
        s_cmp_ge_u32 s{sY}, {YL}
        s_cbranch_scc1 L_s_last
        s_lshl2_add_u32 s40, s{sRB}, s{sW}
        s_mul_i32 s40, s40, {64*7168}
        v_mul_u32_u24 v1, 7168, v{vJ}
        v_add3_u32 v1, v1, v13, s40
        s_lshl_b32 s41, s{sTL}, 8
        v_add_u32 v{vA1}, s41, v1
        s_xor_b32 s41, s41, {256*self.upx}
        v_add_u32 v{vA2}, s41, v1
        s_movk_i32 s46, {7168*4}""")
        ops = qops + [(k, m) for m in range(16) for k in "gu"] + [("d", m) for m in range(16)]
        WF = self.WF
        landed = stream(ops, lambda i: WF[0] if i < 14 else (WF[1] if i < 40 else WF[2]), True)
        assert landed >= 40
        self.stamp(7)
        final_gemv(1, 40, 56, landed, WS_BF)
        self.write_stamps(10)
        A("s_endpgm")
        A("L_s_last:")
        get_xn(False)
        drain(qops, 0, 8, False)
        A(f"s_add_u32 s{sW}, s{sW}, 4\ns_branch L_final")

    def red_publish(self, lbase, pitch, cnt, nl, addr_code, nrep, flagv=None, sleep=1):
        A = self.A
        t = 16
        A("v_lshlrev_b32 v10, 4, v0")
        A(addr_code)
        self.lds_spin(cnt, 4, sleep=sleep)
        if nl == 32:
            A("s_mov_b32 exec_hi, 0")
        for k in range(4):
            A(f"ds_read_b128 v[{t+4*k}:{t+4*k+3}], v10 offset:{lbase+pitch*k}")
        A("s_waitcnt lgkmcnt(0)")
        for h in (0, 2):
            A(f"v_pk_add_f32 v[{t+h}:{t+h+1}], v[{t+h}:{t+h+1}], v[{t+4+h}:{t+5+h}]")
            A(f"v_pk_add_f32 v[{t+8+h}:{t+9+h}], v[{t+8+h}:{t+9+h}], v[{t+12+h}:{t+13+h}]")
        for h in (0, 2):
            A(f"v_pk_add_f32 v[{t+h}:{t+h+1}], v[{t+h}:{t+h+1}], v[{t+8+h}:{t+9+h}]")
        for r in range(4):
            self.tag(t + r)
        A(f"global_store_dwordx4 v11, v[{t}:{t+3}], s[26:27] sc1")
        self.flag_store(nrep, flagv)

    def awave(self):
        A = self.A
        vKF, vVF, vGT, vU = 56, 184, 216, 232
        vQF, vS = 216, 16
        vI, vJ = 4, 5
        vA0, vA1 = 6, 7
        vT = 16
        x0, xr = 56, 72
        A(f"""
        s_setprio 3
        s_lshl2_add_u32 s40, s{sRB}, s{sW}
        s_lshl_b32 s40, s40, 6
        v_lshlrev_b32 v14, 5, v0
        v_add_lshl_u32 v1, v0, s40, 1
        s_lshl2_add_u32 s40, s{sRBQ}, s{sW}
        s_lshl_b32 s40, s40, 5
        v_and_b32 v15, 31, v0
        v_add_lshl_u32 v15, v15, s40, 1
        v_mov_b32 v10, 0
        v_and_b32 v2, 31, v0
        v_lshlrev_b32 v2, 2, v2
        ds_write_b32 v2, v10 offset:{L_CNT}
        s_waitcnt lgkmcnt(0)
        global_load_dwordx4 v[{xr}:{xr+3}], v14, s[4:5]
        global_load_dwordx4 v[{xr+4}:{xr+7}], v14, s[4:5] offset:16
        global_load_ushort v{xr+8}, v15, s[4:5]
        global_load_ushort v{xr+9}, v1, s[4:5]
        s_load_dword s{sT32}, s[26:27], {WS_E}""")
        if self.prefetch:
            A(f"""
            s_getpc_b64 s[40:41]
            L_pc:
            s_sub_u32 s40, s40, L_pc-{KN}
            s_subb_u32 s41, s41, 0
            s_lshl2_add_u32 s42, s{sY}, s{sW}
            s_lshl_b32 s42, s42, 7
            s_min_u32 s42, s42, L_codeend-{KN}-4
            v_mov_b32 v1, s42
            s_mov_b64 exec, 1
            global_load_dword v55, v1, s[40:41]
            s_mov_b64 exec, -1""")
        A("s_barrier")
        self.stamp(1)
        A(f"s_waitcnt vmcnt({1 if self.prefetch else 0}) lgkmcnt(0)")
        self.stamp(11)
        for i in range(8):
            A(f"v_lshlrev_b32 v{x0+2*i}, 16, v{xr+i}\nv_and_b32 v{x0+2*i+1}, 0xffff0000, v{xr+i}")
        A(f"v_pk_add_f32 v[{vT}:{vT+1}], v[{x0}:{x0+1}], v[{x0+2}:{x0+3}]")
        A(f"v_pk_add_f32 v[{vT+2}:{vT+3}], v[{x0+4}:{x0+5}], v[{x0+6}:{x0+7}]")
        for i in range(4, 8, 2):
            A(f"v_pk_add_f32 v[{vT}:{vT+1}], v[{vT}:{vT+1}], v[{x0+2*i}:{x0+2*i+1}]")
            A(f"v_pk_add_f32 v[{vT+2}:{vT+3}], v[{vT+2}:{vT+3}], v[{x0+2*i+2}:{x0+2*i+3}]")
        A(f"v_pk_add_f32 v[{vT}:{vT+1}], v[{vT}:{vT+1}], v[{vT+2}:{vT+3}]")
        A(f"v_add_f32 v{vT}, v{vT}, v{vT+1}")
        self.allreduce_in_row(vT)
        self.allreduce_rows(vT, vT+1, "v_add_f32")
        A(f"v_mul_f32 v{vT}, {f2u(1.0/1024):#x}, v{vT}")
        for i in range(8):
            A(f"v_pk_add_f32 v[{x0+2*i}:{x0+2*i+1}], v[{x0+2*i}:{x0+2*i+1}], v[{vT}:{vT+1}] op_sel_hi:[1,0] neg_lo:[0,1] neg_hi:[0,1]")
        A(f"v_pk_mul_f32 v[{vT+2}:{vT+3}], v[{x0}:{x0+1}], v[{x0}:{x0+1}]")
        A(f"v_pk_mul_f32 v[{vT+4}:{vT+5}], v[{x0+2}:{x0+3}], v[{x0+2}:{x0+3}]")
        for i in range(2, 8):
            d = vT + 2 + 2*(i & 1)
            A(f"v_pk_fma_f32 v[{d}:{d+1}], v[{x0+2*i}:{x0+2*i+1}], v[{x0+2*i}:{x0+2*i+1}], v[{d}:{d+1}]")
        A(f"v_pk_add_f32 v[{vT+2}:{vT+3}], v[{vT+2}:{vT+3}], v[{vT+4}:{vT+5}]")
        A(f"v_add_f32 v{vT+2}, v{vT+2}, v{vT+3}")
        r = xr + 8
        self.bf16_round(vT, vT)
        self.allreduce_in_row(vT+2)
        A(f"""
        v_lshlrev_b32 v{r}, 16, v{r}
        v_lshlrev_b32 v{r+1}, 16, v{r+1}
        v_pk_add_f32 v[{r}:{r+1}], v[{r}:{r+1}], v[{vT}:{vT+1}] op_sel_hi:[1,0] neg_lo:[0,1] neg_hi:[0,1]""")
        self.allreduce_rows(vT+2, vT+3, "v_add_f32")
        A(f"v_mul_f32 v{vT+2}, {f2u(1.0/1024):#x}, v{vT+2}")
        self.bf16_round(vT+2, vT+2)
        A(f"v_add_f32 v{vT+2}, {f2u(1e-5):#x}, v{vT+2}")
        self.bf16_round(vT+2, vT+2)
        A(f"""
        v_sqrt_f32 v{vT+2}, v{vT+2}
        v_cvt_pk_bf16_f32 v{r+1}, v{r}, v{r+1}
        v_lshlrev_b32 v{r}, 16, v{r+1}
        v_and_b32 v{r+1}, 0xffff0000, v{r+1}""")
        self.bf16_round(vT+2, vT+2)
        A(f"""
        v_rcp_f32 v{vT+2}, v{vT+2}
        v_and_b32 v1, 3, v0
        v_lshrrev_b32 v2, 2, v0
        v_lshlrev_b32 v2, 1, v2
        v_pk_mul_f32 v[{r}:{r+1}], v[{r}:{r+1}], v[{vT+2}:{vT+3}] op_sel_hi:[1,0]
        s_lshl_b32 s40, s{sW}, 6
        v_lshl_add_u32 v10, v1, 4, s40
        v_lshl_add_u32 v11, v10, 1, v2
        v_add_u32 v10, v10, v2
        v_cvt_pk_bf16_f32 v{r}, v{r}, v{r+1}
        s_lshl_b32 s40, s{sW}, 2
        v_mov_b32 v2, s40
        v_mov_b32 v1, 1
        ds_write_b16_d16_hi v11, v{r} offset:{L_XG}
        s_mov_b32 exec_hi, 0
        ds_write_b16 v10, v{r} offset:{L_XQ}
        s_mov_b64 exec, 1
        ds_write_b32 v2, v1 offset:{C_XN}
        s_mov_b64 exec, -1
        s_add_u32 s{sT32}, s{sT32}, 1
        s_and_b32 s{sT10}, s{sT32}, s44
        v_mov_b32 v3, s{sT10}""")
        self.stamp(12)
        if self.wtest:
            pre, mod, n = self.wtest
            A(f"s_cmp_eq_u32 s{sW}, 3\ns_cbranch_scc0 L_adone")
            A(f"s_mul_i32 s42, s2, {n*1024}\ns_add_u32 s42, s42, 0x800000\nv_lshl_add_u32 v10, v0, 4, s42")
            if pre == 's':
                A("s_add_u32 s40, s26, s42\ns_addc_u32 s41, s27, 0")
                for i in range(n*16):
                    A(f"s_load_dword s48, s[40:41], {64*i} glc")
                A("s_waitcnt lgkmcnt(0)")
            elif pre:
                for i in range(n):
                    A(f"global_load_dwordx4 v[20:23], v10, s[26:27] offset:{1024*i} {pre[1:]}")
                A("s_waitcnt vmcnt(0)")
            self.lds_spin(C_Q, 4, sleep=1)
            A("s_sleep 64")
            for i in range(n):
                A(f"global_store_dwordx4 v10, v[16:19], s[26:27] offset:{1024*i} {mod}")
        if 'noa' in self.abl:
            A("s_branch L_adone")
        nq = self.lab("Lnoq")
        A(f"s_cmp_eq_u32 s{sW}, 3\ns_cbranch_scc0 {nq}")
        self.red_publish(L_RQ, 512, C_Q, 32, f"""
            s_lshl3_add_u32 s41, s{sHQ}, s{sRBQ}
            s_lshl_b32 s40, s41, 9
            s_add_u32 s40, s40, {WS_BQ:#x}
            v_add_u32 v11, s40, v10
            s_lshr_b32 s40, s41, 4
            s_and_b32 s41, s41, 15
            s_lshl_b32 s40, s40, 5
            s_add_u32 s40, s40, s41
            s_lshl_b32 s40, s40, 2
            s_add_u32 s40, s40, {WS_FLA:#x}""", self.nrepA)
        self.stamp(13)
        A(f"""
        {nq}:
        s_cmp_ge_u32 s{sY}, {YL}
        s_cbranch_scc1 L_final
        s_cmp_ge_u32 s{sY}, {YF}
        s_cbranch_scc1 L_ffn""")
        if 'stop1' in self.abl:
            self.arrive(C_GA, want_old=False); A("s_branch L_adone")
        vKF, vVF, vGT, vQF, vO = 56, 88, 120, 152, 168
        vS, U, Z = 16, 24, 28
        A(f"""
        s_lshl2_add_u32 s41, s{sG}, s{sW}
        s_lshl_b32 s40, s41, 13
        s_add_u32 s40, s40, {WS_BQ + 2048:#x}
        v_and_b32 v12, 31, v0
        v_lshrrev_b32 v13, 5, v0
        v_lshlrev_b32 v1, 4, v12
        v_lshl_add_u32 v1, v13, 12, v1
        v_add_u32 v{vA0}, s40, v1
        s_and_b32 s40, s{sCH}, {self.nrepA-1}
        s_mul_i32 s40, s40, {REPP}
        s_lshl_b32 s41, s41, 7
        s_add_u32 s40, s40, s41
        s_add_u32 s95, s40, {WS_FLA:#x}
        s_lshl_b32 s40, s{sW}, 1
        v_add_u32 v13, s40, v13
        v_mul_u32_u24 v13, {QLP}, v13
        v_lshl_add_u32 v13, v12, 3, v13
        v_and_b32 v10, 7, v0
        s_lshl_b32 s40, s{sG}, 5
        s_add_u32 s41, s40, s{sCH}
        s_mul_i32 s41, s41, {BOP}
        s_lshl_b32 s42, s{sW}, 7
        s_add_u32 s41, s41, s42
        s_add_u32 s41, s41, {WS_BO:#x}
        v_lshlrev_b32 v8, 9, v10
        v_bfe_u32 v11, v0, 3, 1
        v_lshl_add_u32 v8, v11, 6, v8
        v_lshl_add_u32 v8, v{vJ}, 4, v8
        v_add_u32 v8, s41, v8
        s_add_u32 s40, s40, s{sCH}
        s_lshl_b32 s40, s40, 7
        s_add_u32 s40, s40, {WS_BML:#x}
        v_lshl_add_u32 v9, v10, 4, s40
        v_mul_u32_u24 v12, {QLP}, v10
        v_lshl_add_u32 v12, v{vJ}, 4, v12
        s_mov_b32 s46, {f2u(128 ** -0.5):#x}
        s_mov_b32 s47, {f2u(128 ** -0.5):#x}
        s_lshl_b32 s40, s{sW}, 13
        v_xor_b32 v14, v{vI}, v{vJ}
        v_lshlrev_b32 v14, 4, v14
        v_lshl_add_u32 v14, v{vI}, 8, v14
        v_add_u32 v14, s40, v14
        v_bfe_u32 v10, v0, 2, 2
        v_lshl_add_u32 v10, v{vJ}, 2, v10
        v_and_b32 v11, 7, v10
        v_lshlrev_b32 v11, 1, v11
        v_bfe_u32 v1, v0, 1, 1
        v_xor_b32 v11, v11, v1
        v_lshlrev_b32 v11, 4, v11
        v_lshl_add_u32 v11, v10, 8, v11
        v_and_b32 v1, 1, v0
        v_lshl_add_u32 v11, v1, 3, v11
        s_add_u32 s41, s40, {L_V}
        v_add_u32 v11, s41, v11
        v_lshl_add_u32 v15, v0, 4, s40
        s_lshl_b32 s41, s{sW}, 10
        v_lshl_add_u32 v10, v0, 4, s41
        s_lshl_b32 s41, s{sW}, 2
        s_add_u32 s41, s41, {C_K}""")
        self.mask(("s92", "s93"), 0xFF00FF00FF00FF00)
        self.lds_spin("s41", 1, sleep=1)
        for s in range(4):
            if s:
                A(f"v_xor_b32 v2, {64*s}, v14")
            for t in range(2):
                r = vKF + 16*t + 4*s
                A(f"ds_read_b128 v[{r}:{r+3}], v{2 if s else 14} offset:{L_K + 4096*t}")
        self.stamp(3)
        A("s_mov_b32 s40, s95")
        self.flag_poll(16)
        self.stamp(2)
        if 'stop2' in self.abl:
            self.arrive(C_GA, want_old=False); A("s_branch L_adone")
        rq = self.lab("Lgq")
        A(f"s_mov_b32 s45, 0\n{rq}:")
        for n in range(8):
            A(f"global_load_dwordx4 v[{vGT+4*n}:{vGT+4*n+3}], v{vA0}, s[26:27] offset:{512*n - 2048} sc1")
        skip = self.lab("Lkvdone")
        A(f"s_cmp_lg_u32 s45, 0\ns_cbranch_scc1 {skip}\ns_mov_b32 s45, 1")
        if self.pause != 'attn':
            self.arrive(C_GA, want_old=False)
        A(f"s_mov_b32 s{sSPIN}, 0\n{skip}:")
        A("s_waitcnt vmcnt(0)")
        self.tagcheck([vGT+4*n for n in range(8)], vT, vT+1)
        self.tagtest(vT, rq)
        self.stamp(4)
        if 'stop3' in self.abl:
            A("s_branch L_adone")
        for step in (4, 8, 16):
            for b in range(0, 32, 2*step):
                for h in (0, 2):
                    A(f"v_pk_add_f32 v[{vGT+b+h}:{vGT+b+h+1}], v[{vGT+b+h}:{vGT+b+h+1}], v[{vGT+b+step+h}:{vGT+b+step+h+1}]")
        A(f"""
        v_cvt_pk_bf16_f32 v{vGT}, v{vGT}, v{vGT+1}
        v_cvt_pk_bf16_f32 v{vGT+1}, v{vGT+2}, v{vGT+3}
        s_mov_b32 s45, {f2u(LOG2E):#x}
        ds_write_b64 v13, v[{vGT}:{vGT+1}] offset:{L_QL}""")
        self.arrive(C_QL, want_old=False)
        A(f"s_lshl_b32 s41, s{sW}, 2\ns_add_u32 s41, s41, {C_V}")
        self.lds_spin("s41", 1, sleep=0)
        for dt in range(8):
            if dt:
                A(f"v_xor_b32 v14, {32*dt}, v11")
            for t in range(2):
                r = vVF + 4*dt + 2*t
                A(f"ds_read_b64_tr_b16 v[{r}:{r+1}], v{14 if dt else 11} offset:{4096*t}")
        self.lds_spin(C_QL, 4, sleep=0)
        for s in range(4):
            A(f"ds_read_b128 v[{vQF+4*s}:{vQF+4*s+3}], v12 offset:{L_QL + 64*s}")
        for s in range(4):
            A(f"s_waitcnt lgkmcnt({3-s})" if not (self.stamps or self.probe) else "s_waitcnt lgkmcnt(0)")
            for t in range(2):
                c = "0" if s == 0 else f"v[{vS+4*t}:{vS+4*t+3}]"
                r = vKF + 16*t + 4*s
                A(f"v_mfma_f32_16x16x32_bf16 v[{vS+4*t}:{vS+4*t+3}], v[{r}:{r+3}], v[{vQF+4*s}:{vQF+4*s+3}], {c}")
        A("s_nop 7")
        for k in range(4):
            A(f"v_cndmask_b32 v{U+k}, v{vS+k}, v{vS+4+k}, s[92:93]")
        for rnd in range(2):
            for p in range(2):
                A(f"v_cvt_pk_bf16_f32 v{Z+p}, v{U+2*p}, v{U+2*p+1}")
            for p in range(2):
                A(f"v_lshlrev_b32 v{U+2*p}, 16, v{Z+p}\nv_and_b32 v{U+2*p+1}, 0xffff0000, v{Z+p}")
            if rnd == 0:
                for p in range(2):
                    A(f"v_pk_mul_f32 v[{U+2*p}:{U+2*p+1}], v[{U+2*p}:{U+2*p+1}], s[46:47]")
        vM, vL = 48, 49
        A(f"""
        v_max3_f32 v{vM}, v{U}, v{U+1}, v{U+2}
        v_max_f32 v{vM}, v{vM}, v{U+3}
        s_nop 1
        v_max_f32_dpp v{vM}, v{vM}, v{vM} row_ror:8 row_mask:0xf bank_mask:0xf""")
        self.allreduce_rows(vM, 50, "v_max_f32")
        A(f"v_mul_f32 v50, s45, v{vM}")
        for k in range(4):
            A(f"v_fma_f32 v{U+k}, v{U+k}, s45, -v50")
        for k in range(4):
            A(f"v_exp_f32 v{U+k}, v{U+k}")
        P = 32
        A(f"""
        s_nop 0
        v_cvt_pk_bf16_f32 v{P}, v{U}, v{U+1}
        v_cvt_pk_bf16_f32 v{P+1}, v{U+2}, v{U+3}
        v_pk_add_f32 v[52:53], v[{U}:{U+1}], v[{U+2}:{U+3}]
        v_mov_b32_dpp v{P+2}, v{P} row_ror:8 row_mask:0xf bank_mask:0xf
        v_mov_b32_dpp v{P+3}, v{P+1} row_ror:8 row_mask:0xf bank_mask:0xf
        v_mov_b32 v{P+4}, v{P}
        v_mov_b32 v{P+5}, v{P+1}
        v_add_f32 v{vL}, v52, v53""")
        for dt in range(8):
            b = P + 2*(dt & 1)
            A(f"v_mfma_f32_16x16x32_bf16 v[{vO+4*dt}:{vO+4*dt+3}], v[{vVF+4*dt}:{vVF+4*dt+3}], v[{b}:{b+3}], 0")
        A(f"v_add_f32_dpp v{vL}, v{vL}, v{vL} row_ror:8 row_mask:0xf bank_mask:0xf")
        self.allreduce_rows(vL, 50, "v_add_f32")
        A(f"v_lshrrev_b32 v14, 1, v15\ns_lshl_b32 s40, s{sW}, 12\nv_add_u32 v14, s40, v14")
        for k in range(4):
            for r in range(4):
                A(f"v_cndmask_b32 v{vO+8*k+r}, v{vO+8*k+r}, v{vO+8*k+4+r}, s[92:93]")
            A(f"ds_write_b128 v15, v[{vO+8*k}:{vO+8*k+3}] offset:{L_K + 1024*k}")
        A(f"ds_write_b64 v14, v[{vM}:{vL}] offset:{L_K + 4096}")
        self.arrive(C_X, want_old=False)
        A("v_lshlrev_b32 v14, 3, v0")
        self.lds_spin(C_X, 4, sleep=0)
        X, ML = 56, 72
        for w in range(4):
            A(f"ds_read_b64 v[{ML+2*w}:{ML+2*w+1}], v14 offset:{L_K + 8192*w + 4096}")
        for w in range(4):
            A(f"ds_read_b128 v[{X+4*w}:{X+4*w+3}], v10 offset:{L_K + 8192*w}")
        A("s_waitcnt lgkmcnt(4)" if not (self.stamps or self.probe) else "s_waitcnt lgkmcnt(0)")
        A(f"v_max3_f32 v{vM}, v{ML}, v{ML+2}, v{ML+4}\nv_max_f32 v{vM}, v{vM}, v{ML+6}")
        for w in range(4):
            A(f"v_sub_f32 v{ML+2*w}, v{ML+2*w}, v{vM}")
        for w in range(4):
            A(f"v_mul_f32 v{ML+2*w}, s45, v{ML+2*w}")
        for w in range(4):
            A(f"v_exp_f32 v{ML+2*w}, v{ML+2*w}")
        A(f"s_waitcnt lgkmcnt(0)\nv_mul_f32 v{vL}, v{ML}, v{ML+1}")
        for w in range(4):
            e = ML + 2*w
            for h in (0, 2):
                if w == 0:
                    A(f"v_pk_mul_f32 v[{vS+h}:{vS+h+1}], v[{X+h}:{X+h+1}], v[{e}:{e+1}] op_sel_hi:[1,0]")
                else:
                    A(f"v_pk_fma_f32 v[{vS+h}:{vS+h+1}], v[{X+4*w+h}:{X+4*w+h+1}], v[{e}:{e+1}], v[{vS+h}:{vS+h+1}] op_sel_hi:[1,0,1]")
            if w:
                A(f"v_fmac_f32 v{vL}, v{e}, v{e+1}")
        for r in range(4):
            self.tag(vS + r)
        A(f"global_store_dwordx4 v8, v[{vS}:{vS+3}], s[26:27] sc1")
        nml = self.lab("Lnoml")
        A(f"s_cmp_lg_u32 s{sW}, 0\ns_cbranch_scc1 {nml}")
        self.tag(vM); self.tag(vL)
        A(f"""
        v_mov_b32 v50, v3
        v_mov_b32 v51, v3
        s_mov_b64 exec, 0xff
        global_store_dwordx4 v9, v[48:51], s[26:27] sc1
        {nml}:""")
        self.arrive(C_P)
        nfl = self.lab("Lnofl")
        A(f"""
        s_cmp_eq_u32 s{sTMP}, 3
        s_cbranch_scc0 {nfl}
        s_lshr_b32 s40, s{sCH}, 4
        s_lshl1_add_u32 s40, s{sG}, s40
        s_lshl_b32 s40, s40, 5
        s_and_b32 s41, s{sCH}, 15
        s_add_u32 s40, s40, s41
        s_lshl_b32 s40, s40, 2
        s_add_u32 s40, s40, {WS_FLB:#x}""")
        self.flag_store(self.nrepB)
        A(f"{nfl}:")
        if self.pause == 'attn':
            self.arrive(C_GA, want_old=False)
        self.stamp(5)
        if 'stop4' in self.abl:
            A("s_branch L_adone")
        A(f"""
        s_and_b32 s40, s{sTL}, 7
        s_lshl2_add_u32 s41, s40, s{sW}
        s_lshl_b32 s41, s41, 7
        s_mul_i32 s42, s{sG}, {32*BOP}
        s_add_u32 s41, s41, s42
        s_add_u32 s41, s41, {WS_BO:#x}
        v_lshrrev_b32 v1, 3, v0
        v_mul_u32_u24 v1, {BOP}, v1
        v_and_b32 v2, 7, v0
        v_lshl_add_u32 v1, v2, 4, v1
        v_add_u32 v{vA0}, s41, v1
        v_add_u32 v13, {8*BOP}, v{vA0}
        v_add_u32 v14, {16*BOP}, v{vA0}
        v_add_u32 v15, {24*BOP}, v{vA0}
        s_lshl_b32 s41, s{sG}, 8
        s_add_u32 s40, s40, s41
        s_lshl_b32 s40, s40, 4
        s_add_u32 s40, s40, {WS_BML:#x}
        v_and_b32 v1, 31, v0
        v_lshl_add_u32 v{vA1}, v1, 7, s40
        s_lshl_b32 s40, s{sW}, 7
        v_and_b32 v2, 7, v0
        v_lshrrev_b32 v1, 3, v1
        v_lshl_add_u32 v1, v1, 2, s40
        v_lshl_add_u32 v10, v2, 4, v1
        v_lshrrev_b32 v1, 3, v0
        v_lshl_add_u32 v11, v1, 4, s40
        v_and_b32 v1, 1, v0
        v_lshl_add_u32 v1, v1, 2, v{vJ}
        v_and_b32 v2, 6, v0
        v_lshl_add_u32 v12, v1, 5, v2
        s_lshl_b32 s40, s{sW}, 3
        v_add_u32 v12, s40, v12""")
        nb = self.lab("Lnopollb")
        A(f"""
        s_cmp_ge_u32 s{sW}, 2
        s_cbranch_scc1 {nb}
        s_and_b32 s40, s{sCH}, {self.nrepB-1}
        s_mul_i32 s40, s40, {REPP}
        s_lshl1_add_u32 s41, s{sG}, s{sW}
        s_lshl_b32 s41, s41, 7
        s_add_u32 s40, s40, s41
        s_add_u32 s40, s40, {WS_FLB:#x}""")
        self.flag_poll(16)
        self.arrive(C_B1, want_old=False)
        A(f"{nb}:")
        self.lds_spin(C_B1, 2, sleep=1)
        self.stamp(6)
        rb_ = self.lab("Lgo")
        vO, vML = 56, 72
        A(f"{rb_}:")
        A(f"global_load_dwordx4 v[{vML}:{vML+3}], v{vA1}, s[26:27] sc1")
        for n in range(4):
            A(f"global_load_dwordx4 v[{vO+4*n}:{vO+4*n+3}], v{(vA0, 13, 14, 15)[n]}, s[26:27] sc1")
        A("s_waitcnt vmcnt(4)")
        A(f"v_and_b32 v{vT+4}, 0xffff0000, v{vML}\nv_mov_b32 v{vT}, v{vT+4}")
        self.allreduce_in_row(vT, "v_max_f32")
        A(f"""
        v_mov_b32 v{vT+2}, v{vT}
        s_nop 1
        v_permlane16_swap_b32 v{vT+2}, v{vT}
        v_max_f32 v{vT}, v{vT}, v{vT+2}
        v_sub_f32 v{vT+4}, v{vT+4}, v{vT}
        v_mul_f32 v{vT+4}, s45, v{vT+4}
        v_exp_f32 v{vT+4}, v{vT+4}
        s_mov_b32 exec_hi, 0
        ds_write_b32 v10, v{vT+4} offset:{L_WT}
        s_mov_b32 exec_hi, -1
        ds_read_b128 v[{vT+8}:{vT+11}], v11 offset:{L_WT}
        v_mul_f32 v{vT+1}, v{vT+4}, v{vML+1}""")
        self.allreduce_in_row(vT + 1)
        A(f"""
        v_mov_b32 v{vT+2}, v{vT+1}
        s_nop 1
        v_permlane16_swap_b32 v{vT+2}, v{vT+1}
        v_add_f32 v{vT+1}, v{vT+1}, v{vT+2}
        v_rcp_f32 v{vT+1}, v{vT+1}
        s_waitcnt vmcnt(0)""")
        self.tagcheck([vML] + [vO + 4*n for n in range(4)], vT + 16, vT + 17)
        self.tagtest(vT + 16, rb_)
        self.stamp(7)
        A("s_waitcnt lgkmcnt(0)")
        acc = vT + 4
        for n in range(4):
            w = vT + 8 + (n & ~1)
            os_ = f"op_sel:[0,{n&1}] op_sel_hi:[1,{n&1}]" if n == 0 else f"op_sel:[0,{n&1},0] op_sel_hi:[1,{n&1},1]"
            for h in (0, 2):
                if n == 0:
                    A(f"v_pk_mul_f32 v[{acc+h}:{acc+h+1}], v[{vO+h}:{vO+h+1}], v[{w}:{w+1}] {os_}")
                else:
                    A(f"v_pk_fma_f32 v[{acc+h}:{acc+h+1}], v[{vO+4*n+h}:{vO+4*n+h+1}], v[{w}:{w+1}], v[{acc+h}:{acc+h+1}] {os_}")
        self.reduce_scatter_rows(acc)
        A(f"""
        s_nop 1
        v_add_f32_dpp v{acc}, v{acc}, v{acc} row_ror:8 row_mask:0xf bank_mask:0xf
        v_mov_b32 v1, {C_FO}
        v_mul_f32 v{acc}, v{acc}, v{vT+1}
        v_mov_b32 v2, 1
        v_cvt_pk_bf16_f32 v{acc}, v{acc}, v{acc}""")
        self.exec_set(0x00FF00FF00FF00FF)
        A(f"""
        ds_write_b16 v12, v{acc} offset:{L_VEC}
        s_mov_b64 exec, 1
        ds_add_u32 v1, v2
        s_mov_b64 exec, -1""")
        self.stamp(8)
        A("L_adone:")
        self.write_stamps(14)
        A("s_endpgm")
        A(f"""
        L_ffn:
        s_cmp_eq_u32 s{sW}, 2
        s_cbranch_scc0 L_adone""")
        if 'noffn' in self.abl:
            A("s_branch L_adone")
        self.red_publish(L_RG, 1024, C_G, 64, f"""
            s_lshl2_add_u32 s40, s{sTL}, s{sRB}
            s_lshl_b32 s40, s40, 10
            v_add_u32 v11, s40, v10
            v_lshrrev_b32 v13, 5, v0
            v_mul_u32_u24 v12, {4096*self.upx}, v13
            v_xor_b32 v11, v11, v12
            v_add_u32 v11, {WS_BD:#x}, v11
            s_lshl_b32 s40, s{sTL}, 5
            s_add_u32 s40, s40, s{sRB}
            s_lshl_b32 s40, s40, 2
            v_mul_u32_u24 v12, {128*self.upx + 16}, v0
            v_xor_b32 v12, s40, v12
            s_movk_i32 s40, {WS_FLD:#x}""", 2, 12, sleep=2)
        self.stamp(5)
        A(f"""
        s_lshl_b32 s40, s{sTL}, 12
        s_add_u32 s40, s40, {WS_BD:#x}
        v_add_u32 v{vA0}, s40, v10
        v_and_b32 v1, 1, v0
        v_lshl_add_u32 v1, v1, 1, v13
        v_and_b32 v2, 30, v0
        v_lshl_add_u32 v12, v1, 6, v2
        s_lshl_b32 s40, s{sTL}, 7
        s_add_u32 s40, s40, {WS_FLD:#x}""")
        self.flag_poll(8)
        self.stamp(6)
        rd = self.lab("Lgd")
        G = 56
        A(f"{rd}:")
        for n in range(4):
            A(f"global_load_dwordx4 v[{G+4*n}:{G+4*n+3}], v{vA0}, s[26:27] offset:{1024*n} sc1")
        A("s_waitcnt vmcnt(0)")
        self.tagcheck([G + 4*n for n in range(4)], vT, vT + 1)
        self.tagtest(vT, rd)
        self.stamp(7)
        for h in (0, 2):
            A(f"v_pk_add_f32 v[{G+h}:{G+h+1}], v[{G+h}:{G+h+1}], v[{G+4+h}:{G+5+h}]")
            A(f"v_pk_add_f32 v[{G+8+h}:{G+9+h}], v[{G+8+h}:{G+9+h}], v[{G+12+h}:{G+13+h}]")
        for h in (0, 2):
            A(f"v_pk_add_f32 v[{G+h}:{G+h+1}], v[{G+h}:{G+h+1}], v[{G+8+h}:{G+9+h}]")
        c1 = -2.0 * 0.7978845608028654 * LOG2E
        c2 = c1 * 0.044715
        A(f"""
        v_cvt_pk_bf16_f32 v{G}, v{G}, v{G+1}
        v_cvt_pk_bf16_f32 v{G+1}, v{G+2}, v{G+3}
        s_mov_b32 s46, {f2u(c2):#x}
        v_mov_b32 v{vT+4}, {f2u(c1):#x}
        v_permlane32_swap_b32 v{G}, v{G+1}
        v_lshlrev_b32 v{G+2}, 16, v{G}
        v_and_b32 v{G+3}, 0xffff0000, v{G}
        v_pk_mul_f32 v[{vT}:{vT+1}], v[{G+2}:{G+3}], v[{G+2}:{G+3}]
        v_fma_f32 v{vT}, v{vT}, s46, v{vT+4}
        v_fma_f32 v{vT+1}, v{vT+1}, s46, v{vT+4}
        v_pk_mul_f32 v[{vT}:{vT+1}], v[{vT}:{vT+1}], v[{G+2}:{G+3}]
        v_exp_f32 v{vT}, v{vT}
        v_exp_f32 v{vT+1}, v{vT+1}
        v_lshlrev_b32 v{G+4}, 16, v{G+1}
        v_add_f32 v{vT}, 1.0, v{vT}
        v_add_f32 v{vT+1}, 1.0, v{vT+1}
        v_rcp_f32 v{vT}, v{vT}
        v_rcp_f32 v{vT+1}, v{vT+1}
        v_and_b32 v{G+5}, 0xffff0000, v{G+1}
        v_pk_mul_f32 v[{G+2}:{G+3}], v[{G+2}:{G+3}], v[{vT}:{vT+1}]
        v_cvt_pk_bf16_f32 v{G}, v{G+2}, v{G+3}
        v_lshlrev_b32 v{G+2}, 16, v{G}
        v_and_b32 v{G+3}, 0xffff0000, v{G}
        v_pk_mul_f32 v[{G+2}:{G+3}], v[{G+2}:{G+3}], v[{G+4}:{G+5}]
        v_mov_b32 v1, {C_FO}
        v_cvt_pk_bf16_f32 v{G}, v{G+2}, v{G+3}
        v_mov_b32 v2, 1
        ds_write_b16 v12, v{G} offset:{L_VEC}
        ds_write_b16_d16_hi v12, v{G} offset:{L_VEC+32}
        s_mov_b64 exec, 1
        ds_write_b32 v1, v2
        s_mov_b64 exec, -1""")
        self.stamp(8)
        A("s_branch L_adone")

    def final(self):
        A = self.A
        vI, vJ, vT = 4, 5, 16
        G0, G1 = 56, 60
        A(f"""
        L_final:
        s_lshl1_add_u32 s42, s{sX}, s{sY}
        s_sub_u32 s42, s42, {YL}
        s_lshl_b32 s43, s42, 7
        v_lshl_add_u32 v8, v0, 1, s43
        global_load_ushort v9, v8, s[4:5]""")
        if 'nofinal' in self.abl:
            A("s_branch L_adone")
        A(f"""
        s_and_b32 s41, s{sW}, 3
        s_cmp_lt_u32 s{sW}, 4
        s_cselect_b32 s40, 8, 7
        s_cselect_b32 s46, 0, {WS_BF - WS_BS:#x}
        s_cselect_b32 s47, {7*ROWP}, 0
        s_cselect_b32 s93, -1, 0xffff
        s_mov_b32 s92, -1
        s_mul_i32 s40, s40, s41
        s_mul_i32 s40, s40, {ROWP}
        s_add_u32 s40, s40, s46
        s_lshl_b32 s43, s42, 8
        s_add_u32 s40, s40, s43
        s_add_u32 s46, s40, {WS_BS:#x}
        s_add_u32 s47, s47, s46
        v_mul_u32_u24 v1, {ROWP}, v{vJ}
        v_lshl_add_u32 v1, v{vI}, 4, v1
        v_add_u32 v6, s46, v1
        v_add_u32 v7, {4*ROWP}, v6
        v_lshl_add_u32 v10, v{vI}, 2, v{vJ}
        v_lshlrev_b32 v10, 5, v10
        s_lshl_b32 s40, s{sW}, 2
        v_add_u32 v10, s40, v10
        v_lshlrev_b32 v11, 5, v0""")
        for r in range(4):
            A(f"v_mov_b32 v{G1+r}, v3")
        l = self.lab("Lfp"); r_ = self.lab("Lfr")
        A(f"""
        s_add_u32 s40, s26, s46
        s_addc_u32 s41, s27, 0
        s_mov_b32 s{sSPIN}, 0
        s_branch {l}
        {r_}:
        s_cmp_lg_u32 s43, 0
        s_cbranch_scc1 {l}
        s_sleep {self.fsleep}
        {l}:""")
        for k in range(7):
            A(f"s_load_dword s{48+k}, s[40:41], {k*ROWP} glc")
        A(f"""
        s_load_dword s55, s[26:27], s47 glc
        s_add_u32 s{sSPIN}, s{sSPIN}, 1
        s_cmp_gt_u32 s{sSPIN}, {SPIN_MAX}
        s_cbranch_scc1 L_end
        s_waitcnt lgkmcnt(0)""")
        A("s_mov_b32 s43, 0")
        for k in range(8):
            A(f"s_and_b32 s{48+k}, s{48+k}, s44\ns_cmp_eq_u32 s{48+k}, s{sT10}\ns_addc_u32 s43, s43, 0")
        A(f"s_cmp_ge_u32 s43, {self.fthr}\ns_cbranch_scc0 {r_}")
        self.stamp(9)
        rg = self.lab("Lfg")
        A(f"s_mov_b64 s[48:49], -1\n{rg}:")
        for k, va, sm in ((G0, 6, 48), (G1, 7, 92)):
            l = self.lab("Lsk")
            A(f"""
            s_mov_b64 exec, s[{sm}:{sm+1}]
            s_cbranch_execz {l}
            global_load_dwordx4 v[{k}:{k+3}], v{va}, s[26:27] sc1
            {l}:""")
        A("s_mov_b64 exec, -1\ns_waitcnt vmcnt(0)")
        for i, k in enumerate((G0, G1)):
            A(f"v_bitop3_b32 v{vT+2*i}, v{k}, v{k+1}, s{sT10} bitop3:0x7e")
            A(f"v_bitop3_b32 v{vT+2*i+1}, v{k+2}, v{k+3}, s{sT10} bitop3:0x7e")
        for i in range(2):
            A(f"v_bitop3_b32 v{vT+2*i}, v{vT+2*i}, v{vT+2*i+1}, s44 bitop3:0xa8")
        A(f"""
        v_cmp_ne_u32 s[48:49], 0, v{vT}
        v_cmp_ne_u32 s[92:93], 0, v{vT+2}
        s_add_u32 s{sSPIN}, s{sSPIN}, 1
        s_cmp_gt_u32 s{sSPIN}, {SPIN_MAX}
        s_cbranch_scc1 L_end
        s_or_b64 s[40:41], s[48:49], s[92:93]
        s_cbranch_scc1 {rg}""")
        self.stamp(10)
        for h in (0, 2):
            A(f"v_pk_add_f32 v[{G0+h}:{G0+h+1}], v[{G0+h}:{G0+h+1}], v[{G1+h}:{G1+h+1}]")
        self.reduce_scatter_rows(G0)
        A(f"ds_write_b32 v10, v{G0} offset:{L_RF}")
        self.arrive(C_F1)
        f = vT + 4
        A(f"""
        s_cmp_eq_u32 s{sTMP}, 7
        s_cbranch_scc0 L_adone
        ds_read_b128 v[{f}:{f+3}], v11 offset:{L_RF}
        ds_read_b128 v[{f+4}:{f+7}], v11 offset:{L_RF+16}
        v_lshlrev_b32 v9, 16, v9
        s_waitcnt lgkmcnt(0)
        v_pk_add_f32 v[{f+4}:{f+5}], v[{f+4}:{f+5}], v[{f+6}:{f+7}]
        v_pk_add_f32 v[{f}:{f+1}], v[{f}:{f+1}], v[{f+2}:{f+3}]
        v_add_f32 v{f+2}, v{f+4}, v{f+5}
        v_add_f32 v{f}, v{f}, v{f+1}
        v_cvt_pk_bf16_f32 v{f}, v{f}, v{f+2}
        v_and_b32 v{f+2}, 0xffff0000, v{f}
        v_mul_f32 v{f+3}, {f2u(-LOG2E):#x}, v{f+2}
        v_exp_f32 v{f+3}, v{f+3}
        v_lshlrev_b32 v{f}, 16, v{f}
        v_add_f32 v{f+3}, 1.0, v{f+3}
        v_rcp_f32 v{f+3}, v{f+3}
        s_nop 0
        v_mul_f32 v{f+2}, v{f+2}, v{f+3}""")
        self.bf16_round(f + 2, f + 2)
        A(f"v_mul_f32 v{f}, v{f}, v{f+2}")
        self.bf16_round(f, f)
        A(f"""
        v_add_f32 v{f}, v{f}, v9
        v_cvt_pk_bf16_f32 v{f}, v{f}, v{f}
        global_store_short v8, v{f}, s[22:23]""")
        A(f"""
        s_cmp_lg_u32 s2, {YL * 8}
        s_cbranch_scc1 L_adone
        s_mov_b64 exec, 1
        v_mov_b32 v1, {WS_E}
        v_mov_b32 v2, s{sT32}
        global_store_dword v1, v2, s[26:27]
        s_branch L_adone""")


if __name__ == "__main__":
    import argparse
    ap = argparse.ArgumentParser()
    ap.add_argument("-o", default="recurrent_scan__sliding_block_cached__geglu_ffn__decode.s")

    ap.add_argument("--stamps", action="store_true")
    ap.add_argument("--probe", default=None)
    ap.add_argument("--kw", default="")
    a = ap.parse_args()
    open(a.o, "w").write(Gen(stamps=a.stamps, probe=tuple(map(int, a.probe.split(','))) if a.probe else None, **eval(f'dict({a.kw})')).build())
```

```python
import sys, struct

KN = "recurrent_scan__sliding_block_cached__geglu_ffn__decode_kernel"

def f2u(x):
    return struct.unpack("<I", struct.pack("<f", x))[0]

WS_E   = 0x0
WS_FLD = 0x1000
WS_BML = 0x4000
WS_BQ  = 0x10000
WS_BD  = 0x30000
ROWP   = 4352
WS_BS  = 0x50000
WS_BF  = 0x78000
WS_BO  = 0xA0000
BOP    = 4096 + 128
REPP   = 17 * 128
WS_FLA = 0x130000
WS_FLB = 0x148000
WS_ST  = 0x400000

L_RQ   = 0
L_RG   = L_RQ + 2048
L_QL   = L_RG + 4096
QLP    = 272
L_WT   = L_QL + 2304
L_VEC  = L_WT + 512
L_XQ   = L_VEC + 256
L_XG   = L_XQ + 256
L_RF   = L_XG + 512
L_CNT  = L_RF + 2048
C_Q, C_G, C_X, C_QL, C_P, C_FO, C_GA, C_B1, C_F1 = [L_CNT + 4*i for i in range(9)]
C_XN, C_K, C_V = L_CNT + 48, L_CNT + 64, L_CNT + 80
L_K    = 12288
L_V    = L_K + 32768
assert L_CNT + 128 <= L_K
LDS_BYTES = L_V + 32768
YF, YL = 16, 30

TAGM = 0x3FF
LOG2E = 1.4426950408889634
SPIN_MAX = 1 << 20

sX, sY, sRB, sHQ, sRBQ, sTL, sG, sCH = 28, 29, 30, 31, 32, 33, 34, 35
sT32, sT10, sSPIN, sTMP = 36, 37, 38, 39
sW = 3
sGATE = 100
sTY, sUP, sR = 97, 98, 99
sP = 48
sSTAMP = 64


class Gen:
    def __init__(self, stamps=False, prefetch=True, probe=None, abl='', xnpos=11, nrepA=4, nrepB=4, psleep=1,
                 WA=(6, 6, 5), WF=(6, 8, 8), pause='gather', fthr=6, wtest=None, fsleep=16, upx=2, layout='mix', plain='', gmod='sc1', local=False, fdepth=2, outmod='', gateA=(1, 1), gateF=(0, 0), WAe=None, WFe=None):
        self.gateA, self.gateF = gateA, gateF
        self.WAe, self.WFe = WAe, WFe
        self.local = local
        self.fdepth = fdepth
        self.outmod = outmod
        assert not local or layout != 'mix'
        self.gmod = gmod
        self.layout = layout
        self.plain = plain
        self.fsleep = fsleep
        self.upx = upx
        self.wtest = wtest
        self.fthr = fthr
        self.L = []
        self.stamps = stamps
        self.prefetch = prefetch
        self.probe = probe
        self.abl = abl
        self.xnpos = xnpos
        self.nrepA, self.nrepB = nrepA, nrepB
        self.psleep = psleep
        self.relwait = False
        self.WA, self.WF = WA, WF
        self.pause = pause
        self.nlab = 0

    def A(self, s):
        for line in s.strip("\n").split("\n"):
            if line.strip():
                self.L.append("    " + line.strip() if not line.strip().endswith(":") else line.strip())

    def lab(self, p="L"):
        self.nlab += 1
        return f"{p}_{self.nlab}"

    def stamp(self, k):
        if self.stamps or (self.probe and k in (0, self.probe[2])):
            self.A(f"s_memrealtime s[{sSTAMP+2*k}:{sSTAMP+2*k+1}]")

    def mask(self, reg, val):
        lo, hi = val & 0xFFFFFFFF, val >> 32
        self.A(f"s_mov_b32 {reg[0]}, {lo:#x}\ns_mov_b32 {reg[1]}, {hi:#x}")

    def exec_set(self, val):
        if val == -1:
            self.A("s_mov_b64 exec, -1")
        elif val <= 64:
            self.A(f"s_mov_b64 exec, {val}")
        elif val < (1 << 31):
            self.A(f"s_mov_b64 exec, {val:#x}")
        else:
            self.mask(("exec_lo", "exec_hi"), val)

    def arrive(self, cnt, want_old=True, inc=1):
        self.A(f"""
        s_mov_b64 exec, 1
        v_mov_b32 v1, {cnt}
        v_mov_b32 v2, {inc}""")
        if want_old:
            self.A(f"""
            ds_add_rtn_u32 v2, v1, v2
            s_waitcnt lgkmcnt(0)
            v_readfirstlane_b32 s{sTMP}, v2""")
        else:
            self.A("ds_add_u32 v1, v2")
        self.A("s_mov_b64 exec, -1")

    def lds_spin(self, cnt, val, sleep=1, reads="", low8=False):
        l = self.lab("Lspin"); d = self.lab("Lgot")
        self.A(f"""
        v_mov_b32 v1, {cnt}
        s_mov_b32 s{sSPIN}, 0
        {l}:
        ds_read_b32 v2, v1
        {reads}
        s_add_u32 s{sSPIN}, s{sSPIN}, 1
        s_cmp_gt_u32 s{sSPIN}, {SPIN_MAX}
        s_cbranch_scc1 L_end
        s_waitcnt lgkmcnt(0)
        v_readfirstlane_b32 s{sTMP}, v2""")
        if low8:
            self.A(f"s_lshr_b32 s101, s{sTMP}, 8\ns_and_b32 s{sTMP}, s{sTMP}, 0xff")
        if sleep:
            self.A(f"s_cmp_eq_u32 s{sTMP}, {val}\ns_cbranch_scc1 {d}\ns_sleep {sleep}\ns_branch {l}\n{d}:")
        else:
            self.A(f"s_cmp_eq_u32 s{sTMP}, {val}\ns_cbranch_scc0 {l}")

    def flag_poll(self, n, two=False):
        if 'nopoll' in self.abl:
            return
        l = self.lab("Lpoll"); r = self.lab("Lretry"); d = self.lab("Lflag")
        self.A(f"""
        s_mov_b32 s{sSPIN}, 0
        s_mov_b32 s42, s{sT32}
        s_mov_b32 s43, s{sT32}
        s_branch {l}
        {r}:
        s_sleep {self.psleep}
        {l}:
        s_load_dwordx{n} s[{sP}:{sP+n-1}], s[26:27], s40 glc
        {'s_load_dwordx16 s[4:19], s[26:27], s41 glc' if two else ''}
        s_add_u32 s{sSPIN}, s{sSPIN}, 1
        s_cmp_gt_u32 s{sSPIN}, {SPIN_MAX}
        s_cbranch_scc1 L_end
        s_waitcnt lgkmcnt(0)""")
        for b in ((sP, 4) if two else (sP,)):
            for i in range(0, n, 2):
                self.A(f"s_cmp_eq_u64 s[{b+i}:{b+i+1}], s[42:43]\ns_cbranch_scc0 {r}")
        self.A(f"{d}:")

    def gate(self, k, used):
        if k not in used:
            return
        l = self.lab("Lgate")
        self.A(f"s_cmp_eq_u32 s{sGATE}, {k}\ns_cbranch_scc0 {l}")
        self.arrive(C_GA, want_old=False)
        self.A(f"{l}:")

    def flag_store(self, n, vaddr=None, val=sT32):
        self.exec_set((1 << n) - 1)
        self.A(f"""
        {f'v_mul_u32_u24 v1, {REPP}, v0' if vaddr is None else ''}
        v_add_u32 v1, s40, v{1 if vaddr is None else vaddr}
        v_mov_b32 v2, s{val}
        global_store_dword v1, v2, s[26:27] sc1
        s_mov_b64 exec, -1""")

    def tagcheck(self, regs, vacc, vt):
        first = True
        for r in regs:
            if first:
                self.A(f"v_bitop3_b32 v{vacc}, v{r}, v{r+1}, s{sT10} bitop3:0x7e")
                self.A(f"v_bitop3_b32 v{vt}, v{r+2}, v{r+3}, s{sT10} bitop3:0x7e")
                self.A(f"v_or_b32 v{vacc}, v{vacc}, v{vt}")
                first = False
            else:
                self.A(f"v_bitop3_b32 v{vt}, v{r}, v{r+1}, s{sT10} bitop3:0x7e")
                self.A(f"v_bitop3_b32 v{vt+1}, v{r+2}, v{r+3}, s{sT10} bitop3:0x7e")
                self.A(f"v_or3_b32 v{vacc}, v{vacc}, v{vt}, v{vt+1}")

    def tagcheck2(self, regs, vacc, vt):
        out = []
        for i, r in enumerate(regs):
            d = vacc if i == 0 else vt + (i - 1) % 2
            self.A(f"v_bitop3_b32 v{d}, v{r}, v{r+3}, s{sT10} bitop3:0x7e")
            if i and i % 2 == 0:
                self.A(f"v_or3_b32 v{vacc}, v{vacc}, v{vt}, v{vt+1}")
        if len(regs) % 2 == 0:
            self.A(f"v_or_b32 v{vacc}, v{vacc}, v{vt}")

    def tagtest(self, vacc, retry):
        if 'notag' in self.abl:
            return
        self.A(f"""
        v_and_b32 v{vacc}, {TAGM:#x}, v{vacc}
        v_cmp_ne_u32 vcc, 0, v{vacc}
        {'s_add_u32 s96, s96, 1' if self.stamps else ''}
        s_add_u32 s{sSPIN}, s{sSPIN}, 1
        s_cmp_gt_u32 s{sSPIN}, {SPIN_MAX}
        s_cbranch_scc1 L_end
        s_nop 1
        s_cbranch_vccnz {retry}""")

    def tag(self, r):
        self.A(f"v_bfi_b32 v{r}, s44, v3, v{r}")

    def reduce_scatter_rows(self, a):
        self.A(f"""
        s_nop 1
        v_permlane32_swap_b32 v{a}, v{a+2}
        v_permlane32_swap_b32 v{a+1}, v{a+3}
        v_add_f32 v{a}, v{a}, v{a+2}
        v_add_f32 v{a+1}, v{a+1}, v{a+3}
        s_nop 1
        v_permlane16_swap_b32 v{a}, v{a+1}
        v_add_f32 v{a}, v{a}, v{a+1}""")

    def allreduce_rows(self, a, t, op):
        self.A(f"""
        v_mov_b32 v{t}, v{a}
        s_nop 1
        v_permlane32_swap_b32 v{t}, v{a}
        {op} v{a}, v{a}, v{t}
        v_mov_b32 v{t}, v{a}
        s_nop 1
        v_permlane16_swap_b32 v{t}, v{a}
        {op} v{a}, v{a}, v{t}""")

    def allreduce_in_row(self, a, op="v_add_f32"):
        for m in ("quad_perm:[1,0,3,2]", "quad_perm:[2,3,0,1]", "row_half_mirror", "row_mirror"):
            self.A(f"s_nop 1\n{op}_dpp v{a}, v{a}, v{a} {m} row_mask:0xf bank_mask:0xf")

    def bf16_round(self, d, s):
        self.A(f"v_cvt_pk_bf16_f32 v{d}, v{s}, v{s}\nv_and_b32 v{d}, 0xffff0000, v{d}")

    def build(self):
        A = self.A
        self.L.append(f"; @launch grid=(256,1,1) block=(512,1,1) lds={LDS_BYTES}")
        self.L.append('.amdgcn_target "amdgcn-amd-amdhsa--gfx950"')
        self.L += [".text", f".globl {KN}", ".p2align 8", f".type {KN},@function", f"{KN}:"]
        self.stamp(0)
        A(f"""
        s_cmp_ge_u32 s2, 256
        s_cbranch_scc1 L_end
        s_load_dwordx16 s[4:19], s[0:1], 0
        s_load_dwordx8 s[20:27], s[0:1], 64
        v_lshrrev_b32 v1, 6, v0
        v_and_b32 v0, 63, v0
        v_readfirstlane_b32 s{sW}, v1
        s_and_b32 s{sX}, s2, 7
        s_lshr_b32 s{sY}, s2, 3
""")
        if self.layout == 'mix':
            A(f"""
            s_lshr_b32 s{sHQ}, s{sY}, 3
            s_lshl2_add_u32 s{sHQ}, s{sX}, s{sHQ}
            s_and_b32 s{sRBQ}, s{sY}, 7
            s_lshr_b32 s{sG}, s{sX}, 1
            s_and_b32 s{sCH}, s{sX}, 1
            s_lshl4_add_u32 s{sCH}, s{sCH}, s{sY}
            s_lshl4_add_u32 s40, s{sX}, s{sY}
            s_mul_i32 s41, s{sX}, 14
            s_add_u32 s41, s41, s{sY}
            s_sub_u32 s41, s41, {YF}
            s_cmp_lt_u32 s{sY}, {YF}
            s_cselect_b32 s40, s40, s41
            s_cselect_b32 s{sTY}, 0, 1
            s_cmp_ge_u32 s{sY}, {YL}
            s_addc_u32 s{sTY}, s{sTY}, 0
            s_lshr_b32 s{sTL}, s40, 2
            s_and_b32 s{sRB}, s40, 3
            s_xor_b32 s{sUP}, s{sTL}, {self.upx}
            s_lshl1_add_u32 s{sR}, s{sX}, s{sY}
            s_sub_u32 s{sR}, s{sR}, {YL}""")
        else:
            if self.layout == 'odd':
                A(f"s_lshr_b32 s{sG}, s{sX}, 1\ns_and_b32 s{sTY}, s{sX}, 1\ns_xor_b32 s{sTY}, s{sTY}, 1")
            else:
                A(f"s_and_b32 s{sG}, s{sX}, 3\ns_lshr_b32 s{sTY}, s{sX}, 2")
                if self.layout == 'hi':
                    A(f"s_xor_b32 s{sTY}, s{sTY}, 1")
            A(f"""
            s_mov_b32 s{sCH}, s{sY}
            s_and_b32 s{sRB}, s{sY}, 3
            s_lshr_b32 s40, s{sY}, 2
            s_lshl3_add_u32 s{sHQ}, s{sG}, s40
            s_lshl2_add_u32 s{sRBQ}, s{sTY}, s{sRB}
            s_mul_i32 s41, s{sG}, s{sTY}
            s_sub_u32 s{sTL}, s{sHQ}, s41
            s_add_u32 s{sUP}, s40, {self.upx}
            s_cmp_ge_u32 s{sUP}, 7
            s_cselect_b32 s41, 7, 0
            s_sub_u32 s{sUP}, s{sUP}, s41
            s_sub_u32 s{sUP}, s{sUP}, s40
            s_add_u32 s{sUP}, s{sUP}, s{sTL}
            s_lshl2_add_u32 s{sR}, s{sG}, s{sRB}
            s_cmp_eq_u32 s40, 7
            s_cselect_b32 s41, s{sTY}, 0
            s_add_u32 s{sTY}, s{sTY}, s41""")
        A(f"""
        s_cmp_lt_u32 s{sX}, 2
        s_cselect_b32 s40, {self.gateA[0]}, {self.gateA[1]}
        s_cselect_b32 s41, {self.gateF[0]}, {self.gateF[1]}
        s_cmp_eq_u32 s{sTY}, 0
        s_cselect_b32 s{sGATE}, s40, s41
        s_movk_i32 s44, {TAGM:#x}
        v_and_b32 v4, 15, v0
        v_lshrrev_b32 v5, 4, v0""")
        if self.stamps or self.probe:
            A(f"s_mov_b32 s96, 0\ns_mov_b32 s94, s{sW}")
        if self.probe:
            A(f"s_waitcnt lgkmcnt(0)\ns_mov_b32 s{sSTAMP+2*self.probe[2]}, s{sSTAMP}")
        A(f"""
        s_cmp_ge_u32 s{sW}, 4
        s_cbranch_scc1 L_swave""")
        self.awave()
        self.swave()
        self.final()
        A("L_end:")
        A("s_endpgm")
        self.L.append("L_codeend:")
        nv = 200
        self.L += ['.section .rodata,"a"', ".p2align 6", f".amdhsa_kernel {KN}",
                   f"  .amdhsa_next_free_vgpr {nv}", "  .amdhsa_next_free_sgpr 102", f"  .amdhsa_accum_offset {nv}",
                   "  .amdhsa_group_segment_fixed_size 0", "  .amdhsa_kernarg_size 96", "  .amdhsa_user_sgpr_count 2",
                   "  .amdhsa_user_sgpr_kernarg_segment_ptr 1", "  .amdhsa_system_sgpr_workgroup_id_x 1",
                   "  .amdhsa_float_denorm_mode_32 3", ".end_amdhsa_kernel"]
        return "\n".join(self.L) + "\n"

    def write_stamps(self, n):
        if self.probe:
            wg, wave, k = self.probe
            self.stamp(n)
            d = self.lab("Lprobe_done"); l = self.lab("Lprobe")
            self.A(f"""
            s_waitcnt lgkmcnt(0)
            s_cmp_eq_u32 s2, {wg if wg >= 0 else 's2'}
            s_cbranch_scc0 {d}
            s_cmp_eq_u32 s94, {wave}
            s_cbranch_scc0 {d}
            s_add_u32 s40, s{sSTAMP+2*k}, 4000
            {l}:
            s_memrealtime s[42:43]
            s_waitcnt lgkmcnt(0)
            s_sub_u32 s41, s42, s40
            s_cmp_lt_i32 s41, 0
            s_cbranch_scc1 {l}
            {d}:""")
            return
        if not self.stamps:
            return
        self.stamp(n)
        A = self.A
        A(f"""
        s_waitcnt lgkmcnt(0)
        s_mov_b64 exec, -1
        s_lshl3_add_u32 s40, s2, s94
        s_lshl_b32 s40, s40, 6
        s_add_u32 s40, s40, {WS_ST:#x}
        v_mov_b32 v1, 0""")
        for k in range(n + 1):
            A(f"v_writelane_b32 v1, s{sSTAMP+2*k}, {k}")
        A(f"""
        s_getreg_b32 s41, hwreg(HW_REG_XCC_ID)
        s_and_b32 s41, s41, 0xf
        s_lshl4_add_u32 s41, s96, s41
        v_writelane_b32 v1, s41, 15
        v_lshl_add_u32 v2, v0, 2, s40
        s_mov_b64 exec, 0xffff
        global_store_dword v2, v1, s[26:27]""")

    def swave(self):
        A = self.A
        vI, vJ = 4, 5
        vAq, vA1, vA2, vA3, vAw, vRed, vPub = 6, 7, 8, 9, 10, 11, 14
        vPS, vXQ, vXG, vSEL, aQ, aG, aU, vT = 16, 24, 28, 36, 40, 44, 48, 52
        RING, BIG = 56, 120
        A(f"""
        L_swave:
        s_sub_u32 s{sW}, s{sW}, 4
        s_lshl2_add_u32 s40, s{sRBQ}, s{sW}
        s_lshl_b32 s40, s40, 18
        s_lshl_b32 s41, s{sHQ}, 8
        s_add_u32 s40, s40, s41
        v_lshlrev_b32 v13, 4, v{vI}
        v_lshl_add_u32 v{vAq}, v{vJ}, 13, v13
        v_add_u32 v{vAq}, s40, v{vAq}
        s_mov_b32 s45, 0x8000
        s_waitcnt lgkmcnt(0)""")
        for m in range(8):
            A(f"global_load_dwordx4 v[{RING+4*m}:{RING+4*m+3}], v{vAq}, s[10:11] nt")
            if m < 7:
                A(f"v_add_u32 v{vAq}, s45, v{vAq}")
        A(f"s_load_dword s{sT32}, s[26:27], {WS_E}")
        self.stamp(1)
        A(f"""
        ; wo / down: rows tile*128 + 8*m + (l>>3), columns cb*256 + sw*64 + 8*(l&7)
        v_lshrrev_b32 v12, 3, v0
        v_and_b32 v1, 7, v0
        v_lshlrev_b32 v2, 4, v1
        v_lshl_add_u32 v{vAw}, v12, 11, v2
        s_lshl2_add_u32 s42, s{sRB}, s{sW}
        s_lshl_b32 s40, s42, 7
        s_lshl_b32 s41, s{sTL}, 18
        s_add_u32 s40, s40, s41
        v_add_u32 v{vAw}, s40, v{vAw}
        s_movk_i32 s45, 0x4000
        v_lshl_add_u32 v1, v1, 1, v{vJ}
        s_lshl_b32 s40, s42, 8
        v_lshl_add_u32 v{vPub}, v1, 4, s40
        ; LDS offset of this lane's partial granule: (2*(l&15) + J)*16
        v_lshl_add_u32 v{vRed}, v{vI}, 1, v{vJ}
        v_lshlrev_b32 v{vRed}, 4, v{vRed}
        s_mov_b32 s40, 0xaaaaaaaa
        s_mov_b32 s41, 0xaaaaaaaa
        v_mov_b32 v1, 0x0c0c0100
        v_mov_b32 v2, 0x01000c0c
        v_cndmask_b32 v1, v1, v2, s[40:41]
        v_mov_b32 v2, 0x0c0c0302
        v_mov_b32 v3, 0x03020c0c
        v_cndmask_b32 v2, v2, v3, s[40:41]
        v_mov_b32 v3, 0x0c0c0c0c""")
        for d in range(4):
            m = 0x03030303 << (2*d)
            A(f"""
            s_mov_b32 s40, {m:#x}
            s_mov_b32 s41, {m:#x}
            v_cndmask_b32 v{vPS+d}, v3, v1, s[40:41]
            v_cndmask_b32 v{vPS+4+d}, v3, v2, s[40:41]""")
        A(f"""
        s_barrier
        s_waitcnt lgkmcnt(0)
        s_add_u32 s{sT32}, s{sT32}, 1
        s_and_b32 s{sT10}, s{sT32}, s44
        v_mov_b32 v3, s{sT10}
        s_cmp_ge_u32 s{sTY}, 1
        s_cbranch_scc1 L_s_notattn""")

        def sel(m, dst, src):
            for d in range(4):
                A(f"v_perm_b32 v{dst+d}, v{src+(m>>1)}, v{src+(m>>1)}, v{vPS+4*(m&1)+d}")

        def mfma(acc, s, w, first):
            c = "0" if first else f"v[{acc}:{acc+3}]"
            A(f"v_mfma_f32_16x16x32_bf16 v[{acc}:{acc+3}], v[{s}:{s+3}], v[{w}:{w+3}], {c}")

        def get_xn(ffn):
            A(f"s_lshl_b32 s41, s{sW}, 2\ns_add_u32 s41, s41, {C_XN}")
            self.lds_spin("s41", 1, sleep=0)
            A(f"""
            s_lshl_b32 s40, s{sW}, 6
            v_lshl_add_u32 v2, v{vJ}, 4, s40
            ds_read_b128 v[{vXQ}:{vXQ+3}], v2 offset:{L_XQ}""")
            if ffn:
                A(f"""
                v_lshlrev_b32 v2, 1, v2
                ds_read_b128 v[{vXG}:{vXG+3}], v2 offset:{L_XG}
                ds_read_b128 v[{vXG+4}:{vXG+7}], v2 offset:{L_XG+16}""")
            A("s_waitcnt lgkmcnt(0)")
            self.stamp(3)
            sel(0, vSEL, vXQ)
            A("s_nop 1")

        def red_write(accs, lbase, shift, cnt):
            A(f"s_lshl_b32 s40, s{sW}, {shift}\nv_add_u32 v1, s40, v{vRed}\ns_mov_b32 exec_hi, 0")
            for i, a in enumerate(accs):
                A(f"ds_write_b128 v1, v[{a}:{a+3}] offset:{lbase + 512*i}")
            self.arrive(cnt, want_old=False)

        def kvflag(c):
            A(f"""
            s_lshl_b32 s40, s{sW}, 2
            s_mov_b64 exec, 1
            v_mov_b32 v1, s40
            v_mov_b32 v2, 1
            ds_write_b32 v1, v2 offset:{c}
            s_mov_b64 exec, -1""")

        def issue(op, i):
            kind, m = op
            slot = RING + 4*(i % 16)
            if kind in "kv":
                va, sb, x = (vA1, 6, 64*(m & 3)) if kind == "k" else (vA2, 8, 128*(m & 1))
                if m % 4 == 0:
                    if i > 8:
                        A(f"s_add_u32 s47, s47, {4096 if m == 4 else L_V - L_K - 4096}")
                    A("s_mov_b32 m0, s47")
                    if m == 4:
                        A(f"v_add_u32 v{va}, 4096, v{va}")
                A(f"v_xor_b32 v1, {x}, v{va}")
                A(f"global_load_lds_dwordx4 v1, s[{sb}:{sb+1}] offset:{1024*(m&3)} nt")
            elif kind in "gu":
                va, sb = (vA1, 16) if kind == "g" else (vA2, 18)
                A(f"global_load_dwordx4 v[{slot}:{slot+3}], v{va}, s[{sb}:{sb+1}] nt")
                if m < 15:
                    A(f"v_add_u32 v{va}, s46, v{va}")
            elif kind in "do":
                sb = 20 if kind == "d" else 12
                A(f"global_load_dwordx4 v[{BIG+4*m}:{BIG+4*m+3}], v{vAw}, s[{sb}:{sb+1}] nt")
                if m < 15:
                    A(f"v_add_u32 v{vAw}, s45, v{vAw}")

        def process(op, i, ffn):
            kind, m = op
            slot = RING + 4*(i % 16)
            if kind == "q":
                mfma(aQ, vSEL, slot, m == 0)
                if m < 7:
                    sel(m + 1, vSEL, vXQ)
                    A("s_nop 1")
                else:
                    if ffn:
                        sel(0, vSEL, vXG)
                        A("s_nop 0")
                    else:
                        A("s_nop 4")
                    red_write([aQ], L_RQ, 9, C_Q)
                    self.stamp(4)
            elif kind in "kv" and m == 7:
                l = self.lab("Lkvf")
                if kind == "v":
                    A(f"s_cmp_lg_u32 s43, 0\ns_cbranch_scc1 {l}")
                kvflag(C_K if kind == "k" else C_V)
                if kind == "v":
                    self.stamp(5)
                    A(f"{l}:")
            elif kind == "g":
                mfma(aG, vSEL, slot, m == 0)
            elif kind == "u":
                mfma(aU, vSEL, slot, m == 0)
                if m < 15:
                    sel(m + 1, vSEL, vXG)
                    A("s_nop 1")
                else:
                    A("s_nop 4")
                    red_write([aG, aU], L_RG, 10, C_G)
                    self.stamp(6)

        def stream(ops, wfun, ffn, start=8, landed=0):
            for i in range(start, len(ops)):
                w = wfun(i)
                A(f"s_waitcnt vmcnt({w-1})")
                issue(ops[i], i)
                if i < self.xnpos:
                    continue
                if i == self.xnpos:
                    get_xn(ffn)
                while landed <= i - w:
                    process(ops[landed], landed, ffn); landed += 1
            return landed

        def drain(ops, landed, upto, ffn):
            n = len(ops)
            while landed < upto:
                if ops[landed][0] in "qgu":
                    A(f"s_waitcnt vmcnt({n - 1 - landed})")
                    process(ops[landed], landed, ffn)
                landed += 1
            return landed

        def final_gemv(val, first, nops, landed, wsb):
            A(f"""
            v_lshlrev_b32 v15, 5, v12
            s_mul_i32 s40, s{sTL}, {ROWP}
            s_add_u32 s40, s40, {wsb:#x}
            v_add_u32 v{vPub}, s40, v{vPub}""")
            rd = f"ds_read_b128 v[{vXG}:{vXG+3}], v15 offset:{L_VEC}\nds_read_b128 v[{vXG+4}:{vXG+7}], v15 offset:{L_VEC+16}"
            if 'noa' not in self.abl and 'nofin' not in self.abl:
                self.lds_spin(C_FO, val, sleep=0, reads=rd)
            else:
                A(rd + "\ns_waitcnt lgkmcnt(0)")
            self.stamp(8)
            self.L.append(".p2align 3")
            late = [m for m in range(16) if first + m >= landed]
            early = [m for m in range(16) if first + m < landed]
            for k, m in enumerate(early):
                sel(m, RING + 4*m, vXG)
                if k:
                    mfma(aQ, RING + 4*early[k-1], BIG + 4*early[k-1], k == 1)
            for k, m in enumerate(late):
                sel(m, RING + 4*m, vXG)
                if k == 0 and early:
                    mfma(aQ, RING + 4*early[-1], BIG + 4*early[-1], len(early) == 1)
            self.stamp(9)
            for k, m in enumerate(late):
                A(f"s_waitcnt vmcnt({nops - 1 - (first + m)})")
                mfma(aQ, RING + 4*m, BIG + 4*m, k == 0 and not early)
            g = vT
            A(f"""
            s_nop 7
            v_permlane32_swap_b32 v{aQ}, v{aQ+2}
            v_permlane32_swap_b32 v{aQ+1}, v{aQ+3}
            s_nop 0
            v_add_f32_dpp v{g}, v{aQ+2}, v{aQ} row_shl:8 row_mask:0xf bank_mask:0xf bound_ctrl:1
            v_add_f32_dpp v{g+1}, v{aQ+3}, v{aQ+1} row_shl:8 row_mask:0xf bank_mask:0xf bound_ctrl:1""")
            self.tag(g); self.tag(g + 1)
            A(f"""
            s_nop 0
            v_permlane32_swap_b32 v{g}, v{g+2}
            v_permlane32_swap_b32 v{g+1}, v{g+3}
            s_mov_b64 exec, 0x00ff00ff
            global_store_dwordx4 v{vPub}, v[{g}:{g+3}], s[26:27] sc1
            s_mov_b64 exec, -1""")

        qops = [("q", m) for m in range(8)]
        A(f"""
        s_lshl_b32 s40, s{sG}, 24
        s_lshl_b32 s41, s{sCH}, 15
        s_add_u32 s40, s40, s41
        s_lshl_b32 s47, s{sW}, 13
        s_add_u32 s40, s40, s47
        s_add_u32 s47, s47, {L_K}
        s_add_u32 s40, s40, {(65536-4096)*256:#x}
        v_xor_b32 v1, v{vI}, v{vJ}
        v_lshlrev_b32 v1, 4, v1
        v_lshl_add_u32 v1, v{vJ}, 8, v1
        v_add_u32 v{vA1}, s40, v1
        v_lshlrev_b32 v1, 1, v{vJ}
        v_xor_b32 v1, v{vI}, v1
        v_lshlrev_b32 v1, 4, v1
        v_lshl_add_u32 v1, v{vJ}, 8, v1
        v_add_u32 v{vA2}, s40, v1""")
        ops = qops + [("k", m) for m in range(8)] + [("v", m) for m in range(8)]
        WA = self.WA
        landed = stream(ops, lambda i: WA[0] if i < 14 else WA[1], False)
        A("s_mov_b32 s43, 0")
        if self.pause and 'noa' not in self.abl:
            go = self.lab("Lgo")
            if 0 in self.gateA:
                A(f"s_cmp_eq_u32 s{sGATE}, 0\ns_cbranch_scc1 {go}")
            A(f"""
            v_mov_b32 v1, {C_GA}
            ds_read_b32 v2, v1
            s_waitcnt lgkmcnt(0)
            v_readfirstlane_b32 s{sTMP}, v2
            s_cmp_eq_u32 s{sTMP}, 4
            s_cbranch_scc1 {go}
            s_waitcnt vmcnt(0)
            s_mov_b32 s43, 1""")
            assert landed >= 16
            kvflag(C_V)
            self.stamp(5)
            self.lds_spin(C_GA, 4, sleep=1)
            A(f"{go}:")
            self.stamp(6)
        ops = ops + [("o", m) for m in range(16)]
        for w3 in ([self.WAe, WA[2]] if self.WAe else [WA[2]]):
            nxt = self.lab("Lsa")
            if self.WAe and w3 == self.WAe:
                A(f"s_cmp_lt_u32 s{sX}, 2\ns_cbranch_scc0 {nxt}")
            l2 = stream(ops, lambda i: w3, False, start=24, landed=landed)
            assert l2 >= 24
            self.stamp(7)
            final_gemv(4, 24, 40, l2, WS_BS)
            self.write_stamps(10)
            A(f"s_endpgm\n{nxt}:")
        A(f"""
        L_s_notattn:
        s_cmp_ge_u32 s{sTY}, 2
        s_cbranch_scc1 L_s_last
        s_lshl2_add_u32 s40, s{sRB}, s{sW}
        s_mul_i32 s40, s40, {64*7168}
        v_mul_u32_u24 v1, 7168, v{vJ}
        v_add3_u32 v1, v1, v13, s40
        s_lshl_b32 s41, s{sTL}, 8
        v_add_u32 v{vA1}, s41, v1
        s_lshl_b32 s41, s{sUP}, 8
        v_add_u32 v{vA2}, s41, v1
        s_movk_i32 s46, {7168*4}""")
        ops = qops + [(k, m) for m in range(16) for k in "gu"] + [("d", m) for m in range(16)]
        WF = self.WF
        landed = stream(ops[:40], lambda i: WF[0] if i < 14 else WF[1], True)
        gated = self.lab("Lsfg")
        if any(self.gateF) and 'noa' not in self.abl:
            A(f"s_cmp_lg_u32 s{sGATE}, 0\ns_cbranch_scc1 {gated}")
        if 0 in self.gateF or 'noa' in self.abl:
            l2 = stream(ops, lambda i: WF[2], True, start=40, landed=landed)
            assert l2 >= 40
            self.stamp(7)
            final_gemv(1, 40, 56, l2, WS_BF)
            self.write_stamps(10)
            A("s_endpgm")
        if any(self.gateF) and 'noa' not in self.abl:
            A(f"{gated}:")
            l2 = drain(ops[:40], landed, 40, True)
            self.lds_spin(C_GA, 1, sleep=1)
            l2 = stream(ops, lambda i: self.WFe or WF[2], True, start=40, landed=l2)
            self.stamp(7)
            final_gemv(1, 40, 56, l2, WS_BF)
            self.write_stamps(10)
            A("s_endpgm")
        A("L_s_last:")
        get_xn(False)
        drain(qops, 0, 8, False)
        A(f"s_add_u32 s{sW}, s{sW}, 4\ns_branch L_final")

    def red_publish(self, lbase, pitch, cnt, nl, addr_code, nrep, flagv=None, sleep=1, val=sT32):
        A = self.A
        t = 16
        A("v_lshlrev_b32 v10, 4, v0")
        A(addr_code)
        self.lds_spin(cnt, 4, sleep=sleep, reads="\n".join(f"ds_read_b128 v[{t+4*k}:{t+4*k+3}], v10 offset:{lbase+pitch*k}" for k in range(4)))
        if nl == 32:
            A("s_mov_b32 exec_hi, 0")
        for h in (0, 2):
            A(f"v_pk_add_f32 v[{t+h}:{t+h+1}], v[{t+h}:{t+h+1}], v[{t+4+h}:{t+5+h}]")
            A(f"v_pk_add_f32 v[{t+8+h}:{t+9+h}], v[{t+8+h}:{t+9+h}], v[{t+12+h}:{t+13+h}]")
        for h in (0, 2):
            A(f"v_pk_add_f32 v[{t+h}:{t+h+1}], v[{t+h}:{t+h+1}], v[{t+8+h}:{t+9+h}]")
        for r in range(4):
            self.tag(t + r)
        A(f"global_store_dwordx4 v11, v[{t}:{t+3}], s[26:27] {'' if ('d' in self.plain and nl == 64) else 'sc1'}")
        if 'w' in self.plain and 'd' in self.plain and nl == 64:
            A("s_waitcnt vmcnt(0)")
        self.flag_store(nrep, flagv, val)

    def awave(self):
        A = self.A
        vKF, vVF, vGT, vU = 56, 184, 216, 232
        vQF, vS = 216, 16
        vI, vJ = 4, 5
        vA0, vA1 = 6, 7
        vT = 16
        x0, xr = 56, 72
        A(f"""
        s_setprio 3
        s_lshl2_add_u32 s40, s{sRB}, s{sW}
        s_lshl_b32 s40, s40, 6
        v_lshlrev_b32 v14, 5, v0
        v_add_lshl_u32 v1, v0, s40, 1
        s_lshl2_add_u32 s40, s{sRBQ}, s{sW}
        s_lshl_b32 s40, s40, 5
        v_and_b32 v15, 31, v0
        v_add_lshl_u32 v15, v15, s40, 1
        v_mov_b32 v10, 0
        v_and_b32 v2, 31, v0
        v_lshlrev_b32 v2, 2, v2
        ds_write_b32 v2, v10 offset:{L_CNT}
        s_waitcnt lgkmcnt(0)
        global_load_dwordx4 v[{xr}:{xr+3}], v14, s[4:5]
        global_load_dwordx4 v[{xr+4}:{xr+7}], v14, s[4:5] offset:16
        global_load_ushort v{xr+8}, v15, s[4:5]
        global_load_ushort v{xr+9}, v1, s[4:5]
        s_load_dword s{sT32}, s[26:27], {WS_E}""")
        if self.prefetch:
            A(f"""
            s_getpc_b64 s[40:41]
            L_pc:
            s_sub_u32 s40, s40, L_pc-{KN}
            s_subb_u32 s41, s41, 0
            s_lshl2_add_u32 s42, s{sY}, s{sW}
            s_lshl_b32 s42, s42, 7
            s_min_u32 s42, s42, L_codeend-{KN}-4
            v_mov_b32 v1, s42
            s_mov_b64 exec, 1
            global_load_dword v55, v1, s[40:41]
            s_mov_b64 exec, -1""")
        A("s_barrier")
        self.stamp(1)
        A(f"s_waitcnt vmcnt({1 if self.prefetch else 0}) lgkmcnt(0)")
        self.stamp(11)
        for i in range(8):
            A(f"v_lshlrev_b32 v{x0+2*i}, 16, v{xr+i}\nv_and_b32 v{x0+2*i+1}, 0xffff0000, v{xr+i}")
        A(f"v_pk_add_f32 v[{vT}:{vT+1}], v[{x0}:{x0+1}], v[{x0+2}:{x0+3}]")
        A(f"v_pk_add_f32 v[{vT+2}:{vT+3}], v[{x0+4}:{x0+5}], v[{x0+6}:{x0+7}]")
        for i in range(4, 8, 2):
            A(f"v_pk_add_f32 v[{vT}:{vT+1}], v[{vT}:{vT+1}], v[{x0+2*i}:{x0+2*i+1}]")
            A(f"v_pk_add_f32 v[{vT+2}:{vT+3}], v[{vT+2}:{vT+3}], v[{x0+2*i+2}:{x0+2*i+3}]")
        A(f"v_pk_add_f32 v[{vT}:{vT+1}], v[{vT}:{vT+1}], v[{vT+2}:{vT+3}]")
        A(f"v_add_f32 v{vT}, v{vT}, v{vT+1}")
        self.allreduce_in_row(vT)
        self.allreduce_rows(vT, vT+1, "v_add_f32")
        A(f"v_mul_f32 v{vT}, {f2u(1.0/1024):#x}, v{vT}")
        for i in range(8):
            A(f"v_pk_add_f32 v[{x0+2*i}:{x0+2*i+1}], v[{x0+2*i}:{x0+2*i+1}], v[{vT}:{vT+1}] op_sel_hi:[1,0] neg_lo:[0,1] neg_hi:[0,1]")
        A(f"v_pk_mul_f32 v[{vT+2}:{vT+3}], v[{x0}:{x0+1}], v[{x0}:{x0+1}]")
        A(f"v_pk_mul_f32 v[{vT+4}:{vT+5}], v[{x0+2}:{x0+3}], v[{x0+2}:{x0+3}]")
        for i in range(2, 8):
            d = vT + 2 + 2*(i & 1)
            A(f"v_pk_fma_f32 v[{d}:{d+1}], v[{x0+2*i}:{x0+2*i+1}], v[{x0+2*i}:{x0+2*i+1}], v[{d}:{d+1}]")
        A(f"v_pk_add_f32 v[{vT+2}:{vT+3}], v[{vT+2}:{vT+3}], v[{vT+4}:{vT+5}]")
        A(f"v_add_f32 v{vT+2}, v{vT+2}, v{vT+3}")
        r = xr + 8
        self.bf16_round(vT, vT)
        self.allreduce_in_row(vT+2)
        A(f"""
        v_lshlrev_b32 v{r}, 16, v{r}
        v_lshlrev_b32 v{r+1}, 16, v{r+1}
        v_pk_add_f32 v[{r}:{r+1}], v[{r}:{r+1}], v[{vT}:{vT+1}] op_sel_hi:[1,0] neg_lo:[0,1] neg_hi:[0,1]""")
        self.allreduce_rows(vT+2, vT+3, "v_add_f32")
        A(f"v_mul_f32 v{vT+2}, {f2u(1.0/1024):#x}, v{vT+2}")
        self.bf16_round(vT+2, vT+2)
        A(f"v_add_f32 v{vT+2}, {f2u(1e-5):#x}, v{vT+2}")
        self.bf16_round(vT+2, vT+2)
        A(f"""
        v_sqrt_f32 v{vT+2}, v{vT+2}
        v_cvt_pk_bf16_f32 v{r+1}, v{r}, v{r+1}
        v_lshlrev_b32 v{r}, 16, v{r+1}
        v_and_b32 v{r+1}, 0xffff0000, v{r+1}""")
        self.bf16_round(vT+2, vT+2)
        A(f"""
        v_rcp_f32 v{vT+2}, v{vT+2}
        v_and_b32 v1, 3, v0
        v_lshrrev_b32 v2, 2, v0
        v_lshlrev_b32 v2, 1, v2
        v_pk_mul_f32 v[{r}:{r+1}], v[{r}:{r+1}], v[{vT+2}:{vT+3}] op_sel_hi:[1,0]
        s_lshl_b32 s40, s{sW}, 6
        v_lshl_add_u32 v10, v1, 4, s40
        v_lshl_add_u32 v11, v10, 1, v2
        v_add_u32 v10, v10, v2
        v_cvt_pk_bf16_f32 v{r}, v{r}, v{r+1}
        s_lshl_b32 s40, s{sW}, 2
        v_mov_b32 v2, s40
        v_mov_b32 v1, 1
        ds_write_b16_d16_hi v11, v{r} offset:{L_XG}
        s_mov_b32 exec_hi, 0
        ds_write_b16 v10, v{r} offset:{L_XQ}
        s_mov_b64 exec, 1
        ds_write_b32 v2, v1 offset:{C_XN}
        s_mov_b64 exec, -1
        s_add_u32 s{sT32}, s{sT32}, 1
        s_and_b32 s{sT10}, s{sT32}, s44
        v_mov_b32 v3, s{sT10}""")
        self.stamp(12)
        if self.wtest:
            pre, mod, n = self.wtest
            A(f"s_cmp_eq_u32 s{sW}, 3\ns_cbranch_scc0 L_adone")
            A(f"s_mul_i32 s42, s2, {n*1024}\ns_add_u32 s42, s42, 0x800000\nv_lshl_add_u32 v10, v0, 4, s42")
            if pre == 's':
                A("s_add_u32 s40, s26, s42\ns_addc_u32 s41, s27, 0")
                for i in range(n*16):
                    A(f"s_load_dword s48, s[40:41], {64*i} glc")
                A("s_waitcnt lgkmcnt(0)")
            elif pre:
                for i in range(n):
                    A(f"global_load_dwordx4 v[20:23], v10, s[26:27] offset:{1024*i} {pre[1:]}")
                A("s_waitcnt vmcnt(0)")
            self.lds_spin(C_Q, 4, sleep=1)
            A("s_sleep 64")
            for i in range(n):
                A(f"global_store_dwordx4 v10, v[16:19], s[26:27] offset:{1024*i} {mod}")
        if 'noa' in self.abl:
            A("s_branch L_adone")
        if self.local:
            A(f"""
            s_getreg_b32 s45, hwreg(HW_REG_XCC_ID, 0, 4)
            s_lshl_b32 s45, s45, 28
            s_cmp_eq_u32 s{sTY}, 0
            s_cselect_b32 s45, s45, 0
            s_xor_b32 s45, s45, s{sT32}""")
        nq = self.lab("Lnoq")
        A(f"s_cmp_eq_u32 s{sW}, 3\ns_cbranch_scc0 {nq}")
        self.red_publish(L_RQ, 512, C_Q, 32, f"""
            s_lshl3_add_u32 s41, s{sHQ}, s{sRBQ}
            s_lshl_b32 s40, s41, 9
            s_add_u32 s40, s40, {WS_BQ:#x}
            v_add_u32 v11, s40, v10
            s_lshr_b32 s40, s41, 4
            s_and_b32 s41, s41, 15
            s_lshl_b32 s40, s40, 5
            s_add_u32 s40, s40, s41
            s_lshl_b32 s40, s40, 2
            s_add_u32 s40, s40, {WS_FLA:#x}""", self.nrepA, val=(45 if self.local else sT32))
        self.stamp(13)
        A(f"""
        {nq}:
        s_cmp_ge_u32 s{sTY}, 2
        s_cbranch_scc1 L_final
        s_cmp_ge_u32 s{sTY}, 1
        s_cbranch_scc1 L_ffn""")
        if 'stop1' in self.abl:
            self.arrive(C_GA, want_old=False); A("s_branch L_adone")
        vKF, vVF, vGT, vQF, vO = 56, 88, 120, 152, 168
        vS, U, Z = 16, 24, 28
        A(f"""
        s_lshl2_add_u32 s41, s{sG}, s{sW}
        s_lshl_b32 s40, s41, 13
        s_add_u32 s40, s40, {WS_BQ + 2048:#x}
        v_and_b32 v12, 31, v0
        v_lshrrev_b32 v13, 5, v0
        v_lshlrev_b32 v1, 4, v12
        v_lshl_add_u32 v1, v13, 12, v1
        v_add_u32 v{vA0}, s40, v1
        s_and_b32 s40, s{sCH}, {self.nrepA-1}
        s_mul_i32 s40, s40, {REPP}
        s_lshl_b32 s41, s41, 7
        s_add_u32 s40, s40, s41
        s_add_u32 s95, s40, {WS_FLA:#x}
        s_lshl_b32 s40, s{sW}, 1
        v_add_u32 v13, s40, v13
        v_mul_u32_u24 v13, {QLP}, v13
        v_lshl_add_u32 v13, v12, 3, v13
        v_and_b32 v10, 7, v0
        s_lshl_b32 s40, s{sG}, 5
        s_add_u32 s41, s40, s{sCH}
        s_mul_i32 s41, s41, {BOP}
        s_lshl_b32 s42, s{sW}, 7
        s_add_u32 s41, s41, s42
        s_add_u32 s41, s41, {WS_BO:#x}
        v_lshlrev_b32 v8, 9, v10
        v_bfe_u32 v11, v0, 3, 1
        v_lshl_add_u32 v8, v11, 6, v8
        v_lshl_add_u32 v8, v{vJ}, 4, v8
        v_add_u32 v8, s41, v8
        s_add_u32 s40, s40, s{sCH}
        s_lshl_b32 s40, s40, 7
        s_add_u32 s40, s40, {WS_BML:#x}
        v_lshl_add_u32 v9, v10, 4, s40
        v_mul_u32_u24 v12, {QLP}, v10
        v_lshl_add_u32 v12, v{vJ}, 4, v12
        s_mov_b32 s46, {f2u(128 ** -0.5):#x}
        s_mov_b32 s47, {f2u(128 ** -0.5):#x}
        s_lshl_b32 s40, s{sW}, 13
        v_xor_b32 v14, v{vI}, v{vJ}
        v_lshlrev_b32 v14, 4, v14
        v_lshl_add_u32 v14, v{vI}, 8, v14
        v_add_u32 v14, s40, v14
        v_bfe_u32 v10, v0, 2, 2
        v_lshl_add_u32 v10, v{vJ}, 2, v10
        v_and_b32 v11, 7, v10
        v_lshlrev_b32 v11, 1, v11
        v_bfe_u32 v1, v0, 1, 1
        v_xor_b32 v11, v11, v1
        v_lshlrev_b32 v11, 4, v11
        v_lshl_add_u32 v11, v10, 8, v11
        v_and_b32 v1, 1, v0
        v_lshl_add_u32 v11, v1, 3, v11
        s_add_u32 s41, s40, {L_V}
        v_add_u32 v11, s41, v11
        ; exchange area (this wave's K rows, dead once the fragments are in registers)
        v_lshl_add_u32 v15, v0, 4, s40
        s_lshl_b32 s41, s{sW}, 10
        v_lshl_add_u32 v10, v0, 4, s41
        s_lshl_b32 s41, s{sW}, 2
        s_add_u32 s41, s41, {C_K}""")
        self.mask(("s92", "s93"), 0xFF00FF00FF00FF00)
        self.lds_spin("s41", 1, sleep=1)
        for s in range(4):
            if s:
                A(f"v_xor_b32 v2, {64*s}, v14")
            for t in range(2):
                r = vKF + 16*t + 4*s
                A(f"ds_read_b128 v[{r}:{r+3}], v{2 if s else 14} offset:{L_K + 4096*t}")
        self.stamp(3)
        A("s_mov_b32 s40, s95")
        if self.local:
            l = self.lab("Lpoll"); r = self.lab("Lretry")
            A(f"""
            s_mov_b32 s{sSPIN}, 0
            s_mov_b32 s42, s{sT32}
            s_mov_b32 s43, s{sT32}
            s_mov_b32 s4, s45
            s_mov_b32 s5, s45
            s_branch {l}
            {r}:
            s_sleep {self.psleep}
            {l}:
            s_load_dwordx16 s[{sP}:{sP+15}], s[26:27], s40 glc
            s_add_u32 s{sSPIN}, s{sSPIN}, 1
            s_cmp_gt_u32 s{sSPIN}, {SPIN_MAX}
            s_cbranch_scc1 L_end
            s_waitcnt lgkmcnt(0)""")
            for i in range(8):
                A(f"s_xor_b64 s[{sP+2*i}:{sP+2*i+1}], s[{sP+2*i}:{sP+2*i+1}], s[{'4:5' if (i & 2) == 0 else '42:43'}]")
            for step in (2, 4, 8):
                for i in range(0, 16, 2*step):
                    A(f"s_or_b64 s[{sP+i}:{sP+i+1}], s[{sP+i}:{sP+i+1}], s[{sP+i+step}:{sP+i+step+1}]")
            A(f"""
            s_or_b32 s{sP}, s{sP}, s{sP+1}
            s_and_b32 s{sP+1}, s{sP}, 0x0fffffff
            s_cbranch_scc1 {r}
            s_cmp_lg_u32 s{sP}, 0
            s_cselect_b32 s101, 0x101, 1""")
        else:
            self.flag_poll(16)
        self.stamp(2)
        if 'stop2' in self.abl:
            self.arrive(C_GA, want_old=False); A("s_branch L_adone")
        rq = self.lab("Lgq")
        A(f"s_mov_b32 s45, 0\n{rq}:")
        for n in range(8):
            A(f"global_load_dwordx4 v[{vGT+4*n}:{vGT+4*n+3}], v{vA0}, s[26:27] offset:{512*n - 2048} sc1")
        skip = self.lab("Lkvdone")
        A(f"s_cmp_lg_u32 s45, 0\ns_cbranch_scc1 {skip}\ns_mov_b32 s45, 1")
        self.gate(1, self.gateA)
        A(f"s_lshl_b32 s41, s{sW}, 2\ns_add_u32 s41, s41, {C_V}")
        self.lds_spin("s41", 1, sleep=0)
        for dt in range(8):
            if dt:
                A(f"v_xor_b32 v14, {32*dt}, v11")
            for t in range(2):
                r = vVF + 4*dt + 2*t
                A(f"ds_read_b64_tr_b16 v[{r}:{r+1}], v{14 if dt else 11} offset:{4096*t}")
        A(f"""
        s_lshr_b32 s40, s{sCH}, 4
        s_lshl1_add_u32 s40, s{sG}, s40
        s_lshl_b32 s40, s40, 5
        s_and_b32 s41, s{sCH}, 15
        s_add_u32 s40, s40, s41
        s_lshl_b32 s40, s40, 2
        s_add_u32 s95, s40, {WS_FLB:#x}""")
        A(f"s_mov_b32 s{sSPIN}, 0\n{skip}:")
        A("s_waitcnt vmcnt(0)")
        self.tagcheck2([vGT+4*n for n in range(8)], vT, vT+1)
        self.tagtest(vT, rq)
        self.stamp(4)
        if 'stop3' in self.abl:
            A("s_branch L_adone")
        for step in (4, 8, 16):
            for b in range(0, 32, 2*step):
                for h in (0, 2):
                    A(f"v_pk_add_f32 v[{vGT+b+h}:{vGT+b+h+1}], v[{vGT+b+h}:{vGT+b+h+1}], v[{vGT+b+step+h}:{vGT+b+step+h+1}]")
        A(f"""
        v_cvt_pk_bf16_f32 v{vGT}, v{vGT}, v{vGT+1}
        v_cvt_pk_bf16_f32 v{vGT+1}, v{vGT+2}, v{vGT+3}
        s_mov_b32 s45, {f2u(LOG2E):#x}
        ds_write_b64 v13, v[{vGT}:{vGT+1}] offset:{L_QL}""")
        self.arrive(C_QL, want_old=False, inc=("s101" if self.local else 1))
        self.stamp(1)
        self.lds_spin(C_QL, 4, sleep=0, low8=self.local,
                      reads="\n".join(f"ds_read_b128 v[{vQF+4*s}:{vQF+4*s+3}], v12 offset:{L_QL + 64*s}" for s in range(4)))
        self.stamp(9)
        for s in range(4):
            for t in range(2):
                c = "0" if s == 0 else f"v[{vS+4*t}:{vS+4*t+3}]"
                r = vKF + 16*t + 4*s
                A(f"v_mfma_f32_16x16x32_bf16 v[{vS+4*t}:{vS+4*t+3}], v[{r}:{r+3}], v[{vQF+4*s}:{vQF+4*s+3}], {c}")
        A("s_nop 7")
        for k in range(4):
            A(f"v_cndmask_b32 v{U+k}, v{vS+k}, v{vS+4+k}, s[92:93]")
        for rnd in range(2):
            for p in range(2):
                A(f"v_cvt_pk_bf16_f32 v{Z+p}, v{U+2*p}, v{U+2*p+1}")
            for p in range(2):
                A(f"v_lshlrev_b32 v{U+2*p}, 16, v{Z+p}\nv_and_b32 v{U+2*p+1}, 0xffff0000, v{Z+p}")
            if rnd == 0:
                for p in range(2):
                    A(f"v_pk_mul_f32 v[{U+2*p}:{U+2*p+1}], v[{U+2*p}:{U+2*p+1}], s[46:47]")
        vM, vL = 48, 49
        A(f"""
        v_max3_f32 v{vM}, v{U}, v{U+1}, v{U+2}
        v_max_f32 v{vM}, v{vM}, v{U+3}
        s_nop 1
        v_max_f32_dpp v{vM}, v{vM}, v{vM} row_ror:8 row_mask:0xf bank_mask:0xf""")
        self.allreduce_rows(vM, 50, "v_max_f32")
        A(f"v_mul_f32 v50, s45, v{vM}")
        for k in range(4):
            A(f"v_fma_f32 v{U+k}, v{U+k}, s45, -v50")
        for k in range(4):
            A(f"v_exp_f32 v{U+k}, v{U+k}")
        P = 32
        A(f"""
        s_nop 0
        v_cvt_pk_bf16_f32 v{P}, v{U}, v{U+1}
        v_cvt_pk_bf16_f32 v{P+1}, v{U+2}, v{U+3}
        v_pk_add_f32 v[52:53], v[{U}:{U+1}], v[{U+2}:{U+3}]
        v_mov_b32_dpp v{P+2}, v{P} row_ror:8 row_mask:0xf bank_mask:0xf
        v_mov_b32_dpp v{P+3}, v{P+1} row_ror:8 row_mask:0xf bank_mask:0xf
        v_mov_b32 v{P+4}, v{P}
        v_mov_b32 v{P+5}, v{P+1}
        v_add_f32 v{vL}, v52, v53""")
        fill = [f"v_lshrrev_b32 v14, 1, v15\nv_add_f32_dpp v{vL}, v{vL}, v{vL} row_ror:8 row_mask:0xf bank_mask:0xf",
                f"v_mov_b32 v50, v{vL}\ns_lshl_b32 s40, s{sW}, 12",
                f"v_add_u32 v14, s40, v14\nv_permlane32_swap_b32 v50, v{vL}",
                f"v_add_f32 v{vL}, v{vL}, v50\nv_mov_b32 v50, v{vL}",
                f"s_nop 0",
                f"v_permlane16_swap_b32 v50, v{vL}\nv_add_f32 v{vL}, v{vL}, v50",
                f"ds_write_b64 v14, v[{vM}:{vL}] offset:{L_K + 4096}", ""]
        for dt in range(8):
            b = P + 2*(dt & 1)
            A(f"v_mfma_f32_16x16x32_bf16 v[{vO+4*dt}:{vO+4*dt+3}], v[{vVF+4*dt}:{vVF+4*dt+3}], v[{b}:{b+3}], 0")
            A(fill[dt])
        for k in range(4):
            for r in range(4):
                A(f"v_cndmask_b32 v{vO+8*k+r}, v{vO+8*k+r}, v{vO+8*k+4+r}, s[92:93]")
            A(f"ds_write_b128 v15, v[{vO+8*k}:{vO+8*k+3}] offset:{L_K + 1024*k}")
        self.arrive(C_X, want_old=False)
        A("v_lshlrev_b32 v14, 3, v0")
        self.stamp(11)
        X, ML = 56, 72
        self.lds_spin(C_X, 4, sleep=0, reads="\n".join(
            [f"ds_read_b64 v[{ML+2*w}:{ML+2*w+1}], v14 offset:{L_K + 8192*w + 4096}" for w in range(4)] +
            [f"ds_read_b128 v[{X+4*w}:{X+4*w+3}], v10 offset:{L_K + 8192*w}" for w in range(4)]))
        self.stamp(10)
        A(f"v_max3_f32 v{vM}, v{ML}, v{ML+2}, v{ML+4}\nv_max_f32 v{vM}, v{vM}, v{ML+6}")
        for w in range(4):
            A(f"v_sub_f32 v{ML+2*w}, v{ML+2*w}, v{vM}")
        for w in range(4):
            A(f"v_mul_f32 v{ML+2*w}, s45, v{ML+2*w}")
        for w in range(4):
            A(f"v_exp_f32 v{ML+2*w}, v{ML+2*w}")
        A(f"s_nop 0\nv_mul_f32 v{vL}, v{ML}, v{ML+1}")
        for w in range(4):
            e = ML + 2*w
            for h in (0, 2):
                if w == 0:
                    A(f"v_pk_mul_f32 v[{vS+h}:{vS+h+1}], v[{X+h}:{X+h+1}], v[{e}:{e+1}] op_sel_hi:[1,0]")
                else:
                    A(f"v_pk_fma_f32 v[{vS+h}:{vS+h+1}], v[{X+4*w+h}:{X+4*w+h+1}], v[{e}:{e+1}], v[{vS+h}:{vS+h+1}] op_sel_hi:[1,0,1]")
            if w:
                A(f"v_fmac_f32 v{vL}, v{e}, v{e+1}")
        for r in range(4):
            self.tag(vS + r)
        nml = self.lab("Lnoml")

        def publish(mod):
            if 'noO' not in self.abl:
                A(f"global_store_dwordx4 v8, v[{vS}:{vS+3}], s[26:27] {mod}")
            A(f"s_cmp_lg_u32 s{sW}, 0\ns_cbranch_scc1 {nml}")
            self.tag(vM); self.tag(vL)
            A(f"""
            v_mov_b32 v50, v3
            v_mov_b32 v51, v3
            s_mov_b64 exec, 0xff
            global_store_dwordx4 v9, v[48:51], s[26:27] {mod}""")

        if self.local:
            rem = self.lab("Lremote"); fl = self.lab("Lflagb")
            A(f"s_cmp_lg_u32 s101, 0\ns_cbranch_scc1 {rem}")
            publish("")
            A(f"s_branch {fl}\n{rem}:")
            publish("sc1")
            A(f"{fl}:")
        else:
            publish("sc1")
        A("s_mov_b32 s40, s95")
        if 'noflagB' not in self.abl:
            self.flag_store(self.nrepB)
        A(f"{nml}:")
        self.gate(2, self.gateA)
        self.stamp(5)
        if 'stop4' in self.abl:
            A("s_branch L_adone")
        A(f"""
        s_and_b32 s40, s{sTL}, 7
        s_lshl2_add_u32 s41, s40, s{sW}
        s_lshl_b32 s41, s41, 7
        s_mul_i32 s42, s{sG}, {32*BOP}
        s_add_u32 s41, s41, s42
        s_add_u32 s41, s41, {WS_BO:#x}
        v_lshrrev_b32 v1, 3, v0
        v_mul_u32_u24 v1, {BOP}, v1
        v_and_b32 v2, 7, v0
        v_lshl_add_u32 v1, v2, 4, v1
        v_add_u32 v{vA0}, s41, v1
        v_add_u32 v13, {8*BOP}, v{vA0}
        v_add_u32 v14, {16*BOP}, v{vA0}
        v_add_u32 v15, {24*BOP}, v{vA0}
        s_lshl_b32 s41, s{sG}, 8
        s_add_u32 s40, s40, s41
        s_lshl_b32 s40, s40, 4
        s_add_u32 s40, s40, {WS_BML:#x}
        v_and_b32 v1, 31, v0
        v_lshl_add_u32 v{vA1}, v1, 7, s40
        s_lshl_b32 s40, s{sW}, 7
        v_and_b32 v2, 7, v0
        v_lshrrev_b32 v1, 3, v1
        v_lshl_add_u32 v1, v1, 2, s40
        v_lshl_add_u32 v10, v2, 4, v1
        v_lshrrev_b32 v1, 3, v0
        v_lshl_add_u32 v11, v1, 4, s40
        v_and_b32 v1, 1, v0
        v_lshl_add_u32 v1, v1, 2, v{vJ}
        v_and_b32 v2, 6, v0
        v_lshl_add_u32 v12, v1, 5, v2
        s_lshl_b32 s40, s{sW}, 3
        v_add_u32 v12, s40, v12""")
        nb = self.lab("Lnopollb")
        A(f"""
        s_cmp_ge_u32 s{sW}, 2
        s_cbranch_scc1 {nb}
        s_and_b32 s40, s{sCH}, {self.nrepB-1}
        s_mul_i32 s40, s40, {REPP}
        s_lshl1_add_u32 s41, s{sG}, s{sW}
        s_lshl_b32 s41, s41, 7
        s_add_u32 s40, s40, s41
        s_add_u32 s40, s40, {WS_FLB:#x}""")
        self.flag_poll(16)
        self.arrive(C_B1, want_old=False)
        A(f"{nb}:")
        self.lds_spin(C_B1, 2, sleep=1)
        self.stamp(6)
        rb_ = self.lab("Lgo")
        vO, vML = 56, 72
        A(f"{rb_}:")
        def bloads(mod):
            A(f"global_load_dwordx4 v[{vML}:{vML+3}], v{vA1}, s[26:27] {mod}")
            for n in range(4):
                A(f"global_load_dwordx4 v[{vO+4*n}:{vO+4*n+3}], v{(vA0, 13, 14, 15)[n]}, s[26:27] {mod}")
        if self.local and self.gmod != 'sc1':
            rem = self.lab("Lremote"); fl = self.lab("Lbld")
            A(f"s_cmp_lg_u32 s101, 0\ns_cbranch_scc1 {rem}")
            bloads(self.gmod)
            A(f"s_branch {fl}\n{rem}:")
            bloads("sc1")
            A(f"{fl}:")
        else:
            bloads("sc1")
        if 3 in self.gateA:
            self.gate(3, self.gateA)
            A(f"s_mov_b32 s{sGATE}, 0")
        A("s_waitcnt vmcnt(4)")
        A(f"v_and_b32 v{vT+4}, 0xffff0000, v{vML}\nv_mov_b32 v{vT}, v{vT+4}")
        self.allreduce_in_row(vT, "v_max_f32")
        A(f"""
        v_mov_b32 v{vT+2}, v{vT}
        s_nop 1
        v_permlane16_swap_b32 v{vT+2}, v{vT}
        v_max_f32 v{vT}, v{vT}, v{vT+2}
        v_sub_f32 v{vT+4}, v{vT+4}, v{vT}
        v_mul_f32 v{vT+4}, s45, v{vT+4}
        v_exp_f32 v{vT+4}, v{vT+4}
        s_mov_b32 exec_hi, 0
        ds_write_b32 v10, v{vT+4} offset:{L_WT}
        s_mov_b32 exec_hi, -1
        ds_read_b128 v[{vT+8}:{vT+11}], v11 offset:{L_WT}
        v_mul_f32 v{vT+1}, v{vT+4}, v{vML+1}""")
        self.allreduce_in_row(vT + 1)
        A(f"""
        v_mov_b32 v{vT+2}, v{vT+1}
        s_nop 1
        v_permlane16_swap_b32 v{vT+2}, v{vT+1}
        v_add_f32 v{vT+1}, v{vT+1}, v{vT+2}
        v_rcp_f32 v{vT+1}, v{vT+1}
        s_waitcnt vmcnt(0)""")
        self.tagcheck2([vML] + [vO + 4*n for n in range(4)], vT + 16, vT + 17)
        self.tagtest(vT + 16, rb_)
        self.stamp(7)
        A("s_waitcnt lgkmcnt(0)")
        acc = vT + 4
        for n in range(4):
            w = vT + 8 + (n & ~1)
            os_ = f"op_sel:[0,{n&1}] op_sel_hi:[1,{n&1}]" if n == 0 else f"op_sel:[0,{n&1},0] op_sel_hi:[1,{n&1},1]"
            for h in (0, 2):
                if n == 0:
                    A(f"v_pk_mul_f32 v[{acc+h}:{acc+h+1}], v[{vO+h}:{vO+h+1}], v[{w}:{w+1}] {os_}")
                else:
                    A(f"v_pk_fma_f32 v[{acc+h}:{acc+h+1}], v[{vO+4*n+h}:{vO+4*n+h+1}], v[{w}:{w+1}], v[{acc+h}:{acc+h+1}] {os_}")
        self.reduce_scatter_rows(acc)
        A(f"""
        s_nop 1
        v_add_f32_dpp v{acc}, v{acc}, v{acc} row_ror:8 row_mask:0xf bank_mask:0xf
        v_mov_b32 v1, {C_FO}
        v_mul_f32 v{acc}, v{acc}, v{vT+1}
        v_mov_b32 v2, 1
        v_cvt_pk_bf16_f32 v{acc}, v{acc}, v{acc}""")
        self.exec_set(0x00FF00FF00FF00FF)
        A(f"""
        ds_write_b16 v12, v{acc} offset:{L_VEC}
        s_mov_b64 exec, 1
        ds_add_u32 v1, v2
        s_mov_b64 exec, -1""")
        self.stamp(8)
        A("L_adone:")
        self.write_stamps(14)
        A("s_endpgm")
        A(f"""
        L_ffn:
        s_cmp_eq_u32 s{sW}, 2
        s_cbranch_scc0 L_adone""")
        if 'noffn' in self.abl:
            A("s_branch L_adone")
        self.red_publish(L_RG, 1024, C_G, 64, f"""
            s_sub_u32 s41, s{sUP}, s{sTL}
            s_lshl2_add_u32 s40, s{sTL}, s{sRB}
            s_lshl_b32 s40, s40, 10
            s_add_u32 s40, s40, {WS_BD:#x}
            v_add_u32 v11, s40, v10
            v_lshrrev_b32 v13, 5, v0
            s_lshl_b32 s42, s41, 12
            v_mul_lo_u32 v12, s42, v13
            v_add_u32 v11, v11, v12
            s_lshl_b32 s40, s{sTL}, 5
            s_add_u32 s40, s40, s{sRB}
            s_lshl_b32 s40, s40, 2
            s_lshl_b32 s42, s41, 7
            s_add_u32 s42, s42, 16
            v_mul_lo_u32 v12, s42, v0
            v_add_u32 v12, s40, v12
            s_movk_i32 s40, {WS_FLD:#x}""", 2, 12, sleep=1)
        self.gate(1, self.gateF)
        self.stamp(5)
        A(f"""
        s_lshl_b32 s40, s{sTL}, 12
        s_add_u32 s40, s40, {WS_BD:#x}
        v_add_u32 v{vA0}, s40, v10
        v_and_b32 v1, 1, v0
        v_lshl_add_u32 v1, v1, 1, v13
        v_and_b32 v2, 30, v0
        v_lshl_add_u32 v12, v1, 6, v2
        s_lshl_b32 s40, s{sTL}, 7
        s_add_u32 s40, s40, {WS_FLD:#x}""")
        self.flag_poll(8)
        self.stamp(6)
        rd = self.lab("Lgd")
        G = 56
        A(f"{rd}:")
        for n in range(4):
            A(f"global_load_dwordx4 v[{G+4*n}:{G+4*n+3}], v{vA0}, s[26:27] offset:{1024*n} {self.gmod if 'd' in self.plain else 'sc1'}")
        if 2 in self.gateF:
            self.gate(2, self.gateF)
            A(f"s_mov_b32 s{sGATE}, 0")
        A("s_waitcnt vmcnt(0)")
        self.tagcheck2([G + 4*n for n in range(4)], vT, vT + 1)
        self.tagtest(vT, rd)
        self.stamp(7)
        for h in (0, 2):
            A(f"v_pk_add_f32 v[{G+h}:{G+h+1}], v[{G+h}:{G+h+1}], v[{G+4+h}:{G+5+h}]")
            A(f"v_pk_add_f32 v[{G+8+h}:{G+9+h}], v[{G+8+h}:{G+9+h}], v[{G+12+h}:{G+13+h}]")
        for h in (0, 2):
            A(f"v_pk_add_f32 v[{G+h}:{G+h+1}], v[{G+h}:{G+h+1}], v[{G+8+h}:{G+9+h}]")
        c1 = -2.0 * 0.7978845608028654 * LOG2E
        c2 = c1 * 0.044715
        A(f"""
        v_cvt_pk_bf16_f32 v{G}, v{G}, v{G+1}
        v_cvt_pk_bf16_f32 v{G+1}, v{G+2}, v{G+3}
        s_mov_b32 s46, {f2u(c2):#x}
        v_mov_b32 v{vT+4}, {f2u(c1):#x}
        v_permlane32_swap_b32 v{G}, v{G+1}
        v_lshlrev_b32 v{G+2}, 16, v{G}
        v_and_b32 v{G+3}, 0xffff0000, v{G}
        v_pk_mul_f32 v[{vT}:{vT+1}], v[{G+2}:{G+3}], v[{G+2}:{G+3}]
        v_fma_f32 v{vT}, v{vT}, s46, v{vT+4}
        v_fma_f32 v{vT+1}, v{vT+1}, s46, v{vT+4}
        v_pk_mul_f32 v[{vT}:{vT+1}], v[{vT}:{vT+1}], v[{G+2}:{G+3}]
        v_exp_f32 v{vT}, v{vT}
        v_exp_f32 v{vT+1}, v{vT+1}
        v_lshlrev_b32 v{G+4}, 16, v{G+1}
        v_add_f32 v{vT}, 1.0, v{vT}
        v_add_f32 v{vT+1}, 1.0, v{vT+1}
        v_rcp_f32 v{vT}, v{vT}
        v_rcp_f32 v{vT+1}, v{vT+1}
        v_and_b32 v{G+5}, 0xffff0000, v{G+1}
        v_pk_mul_f32 v[{G+2}:{G+3}], v[{G+2}:{G+3}], v[{vT}:{vT+1}]
        v_cvt_pk_bf16_f32 v{G}, v{G+2}, v{G+3}
        v_lshlrev_b32 v{G+2}, 16, v{G}
        v_and_b32 v{G+3}, 0xffff0000, v{G}
        v_pk_mul_f32 v[{G+2}:{G+3}], v[{G+2}:{G+3}], v[{G+4}:{G+5}]
        v_mov_b32 v1, {C_FO}
        v_cvt_pk_bf16_f32 v{G}, v{G+2}, v{G+3}
        v_mov_b32 v2, 1
        ds_write_b16 v12, v{G} offset:{L_VEC}
        ds_write_b16_d16_hi v12, v{G} offset:{L_VEC+32}
        s_mov_b64 exec, 1
        ds_write_b32 v1, v2
        s_mov_b64 exec, -1""")
        self.stamp(8)
        A("s_branch L_adone")

    def final(self):
        A = self.A
        vI, vJ, vT = 4, 5, 16
        G0, G1 = 56, 60
        A(f"""
        L_final:
        s_mov_b32 s42, s{sR}
        s_lshl_b32 s43, s42, 7
        v_lshl_add_u32 v8, v0, 1, s43
        global_load_ushort v9, v8, s[4:5]""")
        if 'nofinal' in self.abl:
            A("s_branch L_adone")
        A(f"""
        s_and_b32 s41, s{sW}, 3
        s_cmp_lt_u32 s{sW}, 4
        s_cselect_b32 s46, 0, {WS_BF - WS_BS:#x}
        s_cselect_b32 s47, {28*ROWP}, 0
        s_cselect_b32 s93, -1, 0xffff
        s_mov_b32 s92, -1
        s_mul_i32 s40, s41, {ROWP}
        s_add_u32 s40, s40, s46
        s_lshl_b32 s43, s42, 8
        s_add_u32 s40, s40, s43
        s_add_u32 s46, s40, {WS_BS:#x}
        s_add_u32 s47, s47, s46
        v_mul_u32_u24 v1, {4*ROWP}, v{vJ}
        v_lshl_add_u32 v1, v{vI}, 4, v1
        v_add_u32 v6, s46, v1
        v_add_u32 v7, {16*ROWP}, v6
        v_lshl_add_u32 v10, v{vI}, 2, v{vJ}
        v_lshlrev_b32 v10, 5, v10
        s_lshl_b32 s40, s{sW}, 2
        v_add_u32 v10, s40, v10
        v_lshlrev_b32 v11, 5, v0
        v_mov_b32 v12, {C_F1}
        v_mov_b32 v13, 1
        s_waitcnt vmcnt(0)
        v_lshlrev_b32 v9, 16, v9""")
        for r in range(4):
            A(f"v_mov_b32 v{G1+r}, v3")
        l = self.lab("Lfp"); r_ = self.lab("Lfr")
        A(f"""
        s_add_u32 s40, s26, s46
        s_addc_u32 s41, s27, 0
        s_mov_b32 s{sSPIN}, 0
        s_branch {l}
        {r_}:
        s_cmp_lg_u32 s43, 0
        s_cbranch_scc1 {l}
        s_sleep {self.fsleep}
        {l}:""")
        for k in range(7):
            A(f"s_load_dword s{48+k}, s[40:41], {4*k*ROWP} glc")
        A(f"""
        s_load_dword s55, s[26:27], s47 glc
        s_add_u32 s{sSPIN}, s{sSPIN}, 1
        s_cmp_gt_u32 s{sSPIN}, {SPIN_MAX}
        s_cbranch_scc1 L_end
        s_waitcnt lgkmcnt(0)""")
        A("s_mov_b32 s43, 0")
        for k in range(8):
            A(f"s_and_b32 s{48+k}, s{48+k}, s44\ns_cmp_eq_u32 s{48+k}, s{sT10}\ns_addc_u32 s43, s43, 0")
        A(f"s_cmp_ge_u32 s43, {self.fthr}\ns_cbranch_scc0 {r_}")
        self.stamp(9)
        rg = self.lab("Lfg")
        loads = f"""
            s_or_b64 exec, s[48:49], 1
            global_load_dwordx4 v[{G0}:{G0+3}], v6, s[26:27] sc1
            s_or_b64 exec, s[92:93], 1
            global_load_dwordx4 v[{G1}:{G1+3}], v7, s[26:27] sc1
            s_mov_b64 exec, -1"""
        A("s_mov_b64 s[48:49], -1")
        for k in range(self.fdepth - 1):
            A(loads)
        A(f"{rg}:")
        A(loads)
        A(f"s_waitcnt vmcnt({2*(self.fdepth - 1)})")
        for i, k in enumerate((G0, G1)):
            A(f"v_bitop3_b32 v{vT+2*i}, v{k}, v{k+1}, s{sT10} bitop3:0x7e")
            A(f"v_bitop3_b32 v{vT+2*i+1}, v{k+2}, v{k+3}, s{sT10} bitop3:0x7e")
        for i in range(2):
            A(f"v_bitop3_b32 v{vT+2*i}, v{vT+2*i}, v{vT+2*i+1}, s44 bitop3:0xa8")
        R = vT + 12
        A(f"""
        v_cmp_ne_u32 s[48:49], 0, v{vT}
        v_cmp_ne_u32 s[92:93], 0, v{vT+2}
        v_pk_add_f32 v[{R}:{R+1}], v[{G0}:{G0+1}], v[{G1}:{G1+1}]
        v_pk_add_f32 v[{R+2}:{R+3}], v[{G0+2}:{G0+3}], v[{G1+2}:{G1+3}]
        s_add_u32 s{sSPIN}, s{sSPIN}, 1
        s_cmp_gt_u32 s{sSPIN}, {SPIN_MAX}
        s_cbranch_scc1 L_end
        s_or_b64 s[40:41], s[48:49], s[92:93]
        s_cbranch_scc1 {rg}""")
        self.stamp(10)
        self.reduce_scatter_rows(R)
        f = vT + 4
        A(f"""
        ds_write_b32 v10, v{R} offset:{L_RF}
        s_mov_b64 exec, 1
        ds_add_rtn_u32 v2, v12, v13
        s_mov_b64 exec, -1
        ds_read_b128 v[{f}:{f+3}], v11 offset:{L_RF}
        ds_read_b128 v[{f+4}:{f+7}], v11 offset:{L_RF+16}
        s_waitcnt lgkmcnt(0)
        v_readfirstlane_b32 s{sTMP}, v2
        s_cmp_eq_u32 s{sTMP}, 7
        s_cbranch_scc0 L_adone
        v_pk_add_f32 v[{f+4}:{f+5}], v[{f+4}:{f+5}], v[{f+6}:{f+7}]
        v_pk_add_f32 v[{f}:{f+1}], v[{f}:{f+1}], v[{f+2}:{f+3}]
        v_add_f32 v{f+2}, v{f+4}, v{f+5}
        v_add_f32 v{f}, v{f}, v{f+1}
        v_cvt_pk_bf16_f32 v{f}, v{f}, v{f+2}
        v_and_b32 v{f+2}, 0xffff0000, v{f}
        v_mul_f32 v{f+3}, {f2u(-LOG2E):#x}, v{f+2}
        v_exp_f32 v{f+3}, v{f+3}
        v_lshlrev_b32 v{f}, 16, v{f}
        v_add_f32 v{f+3}, 1.0, v{f+3}
        v_rcp_f32 v{f+3}, v{f+3}
        s_nop 0
        v_mul_f32 v{f+2}, v{f+2}, v{f+3}""")
        self.bf16_round(f + 2, f + 2)
        A(f"v_mul_f32 v{f}, v{f}, v{f+2}")
        self.bf16_round(f, f)
        A(f"""
        v_add_f32 v{f}, v{f}, v9
        v_cvt_pk_bf16_f32 v{f}, v{f}, v{f}
        global_store_short v8, v{f}, s[22:23] {self.outmod}""")
        A(f"""
        s_cmp_lg_u32 s{sR}, 0
        s_cbranch_scc1 L_adone
        s_mov_b64 exec, 1
        v_mov_b32 v1, {WS_E}
        v_mov_b32 v2, s{sT32}
        global_store_dword v1, v2, s[26:27]
        s_branch L_adone""")


if __name__ == "__main__":
    import argparse
    ap = argparse.ArgumentParser()
    ap.add_argument("-o", default="recurrent_scan__sliding_block_cached__geglu_ffn__decode.s")

    ap.add_argument("--stamps", action="store_true")
    ap.add_argument("--probe", default=None)
    ap.add_argument("--kw", default="")
    a = ap.parse_args()
    open(a.o, "w").write(Gen(stamps=a.stamps, probe=tuple(map(int, a.probe.split(','))) if a.probe else None, **eval(f'dict({a.kw})')).build())
```

```python
import sys, struct

KN = "recurrent_scan__sliding_block_cached__geglu_ffn__decode_kernel"

def f2u(x):
    return struct.unpack("<I", struct.pack("<f", x))[0]

WS_E   = 0x0
WS_FLD = 0x1000
WS_BML = 0x4000
WS_BQ  = 0x10000
WS_BD  = 0x30000
ROWP   = 4352
WS_BS  = 0x50000
WS_BF  = 0x78000
WS_BO  = 0xA0000
BOP    = 4096 + 128
REPP   = 17 * 128
WS_FLA = 0x130000
WS_FLB = 0x148000
WS_ST  = 0x400000

L_RQ   = 0
L_RG   = L_RQ + 2048
L_QL   = L_RG + 4096
QLP    = 272
L_WT   = L_QL + 2304
L_VEC  = L_WT + 512
L_XQ   = L_VEC + 256
L_XG   = L_XQ + 256
L_RF   = L_XG + 512
L_CNT  = L_RF + 2048
C_Q, C_G, C_X, C_QL, C_P, C_FO, C_GA, C_B1, C_F1 = [L_CNT + 4*i for i in range(9)]
C_XN, C_K, C_V = L_CNT + 48, L_CNT + 64, L_CNT + 80
L_K    = 12288
L_V    = L_K + 32768
assert L_CNT + 128 <= L_K
LDS_BYTES = L_V + 32768
YF, YL = 16, 30

TAGM = 0x3FF
LOG2E = 1.4426950408889634
SPIN_MAX = 1 << 20

sX, sY, sRB, sHQ, sRBQ, sTL, sG, sCH = 28, 29, 30, 31, 32, 33, 34, 35
sT32, sT10, sSPIN, sTMP = 36, 37, 38, 39
sW = 3
sGATE = 100
sTY, sUP, sR = 97, 98, 99
sP = 48
sSTAMP = 64


class Gen:
    def __init__(self, stamps=False, prefetch=True, probe=None, abl='', xnpos=11, nrepA=4, nrepB=4, psleep=1,
                 WA=(6, 6, 5), WF=(6, 8, 8), pause='gather', fthr=6, wtest=None, fsleep=16, upx=2, layout='mix', plain='', gmod='sc1', local=False, fdepth=2, outmod='', gateA=(1, 1), gateF=(0, 0), WAe=None, WFe=None):
        self.gateA, self.gateF = gateA, gateF
        self.WAe, self.WFe = WAe, WFe
        self.local = local
        self.fdepth = fdepth
        self.outmod = outmod
        assert not local or layout != 'mix'
        self.gmod = gmod
        self.layout = layout
        self.plain = plain
        self.fsleep = fsleep
        self.upx = upx
        self.wtest = wtest
        self.fthr = fthr
        self.L = []
        self.stamps = stamps
        self.prefetch = prefetch
        self.probe = probe
        self.abl = abl
        self.xnpos = xnpos
        self.nrepA, self.nrepB = nrepA, nrepB
        self.psleep = psleep
        self.relwait = False
        self.WA, self.WF = WA, WF
        self.pause = pause
        self.nlab = 0

    def A(self, s):
        for line in s.strip("\n").split("\n"):
            if line.strip():
                self.L.append("    " + line.strip() if not line.strip().endswith(":") else line.strip())

    def lab(self, p="L"):
        self.nlab += 1
        return f"{p}_{self.nlab}"

    def stamp(self, k):
        if self.stamps or (self.probe and k in (0, self.probe[2])):
            self.A(f"s_memrealtime s[{sSTAMP+2*k}:{sSTAMP+2*k+1}]")

    def mask(self, reg, val):
        lo, hi = val & 0xFFFFFFFF, val >> 32
        self.A(f"s_mov_b32 {reg[0]}, {lo:#x}\ns_mov_b32 {reg[1]}, {hi:#x}")

    def exec_set(self, val):
        if val == -1:
            self.A("s_mov_b64 exec, -1")
        elif val <= 64:
            self.A(f"s_mov_b64 exec, {val}")
        elif val < (1 << 31):
            self.A(f"s_mov_b64 exec, {val:#x}")
        else:
            self.mask(("exec_lo", "exec_hi"), val)

    def arrive(self, cnt, want_old=True, inc=1):
        self.A(f"""
        s_mov_b64 exec, 1
        v_mov_b32 v1, {cnt}
        v_mov_b32 v2, {inc}""")
        if want_old:
            self.A(f"""
            ds_add_rtn_u32 v2, v1, v2
            s_waitcnt lgkmcnt(0)
            v_readfirstlane_b32 s{sTMP}, v2""")
        else:
            self.A("ds_add_u32 v1, v2")
        self.A("s_mov_b64 exec, -1")

    def lds_spin(self, cnt, val, sleep=1, reads="", low8=False):
        l = self.lab("Lspin"); d = self.lab("Lgot")
        self.A(f"""
        v_mov_b32 v1, {cnt}
        s_mov_b32 s{sSPIN}, 0
        {l}:
        ds_read_b32 v2, v1
        {reads}
        s_add_u32 s{sSPIN}, s{sSPIN}, 1
        s_cmp_gt_u32 s{sSPIN}, {SPIN_MAX}
        s_cbranch_scc1 L_end
        s_waitcnt lgkmcnt(0)
        v_readfirstlane_b32 s{sTMP}, v2""")
        if low8:
            self.A(f"s_lshr_b32 s101, s{sTMP}, 8\ns_and_b32 s{sTMP}, s{sTMP}, 0xff")
        if sleep:
            self.A(f"s_cmp_eq_u32 s{sTMP}, {val}\ns_cbranch_scc1 {d}\ns_sleep {sleep}\ns_branch {l}\n{d}:")
        else:
            self.A(f"s_cmp_eq_u32 s{sTMP}, {val}\ns_cbranch_scc0 {l}")

    def flag_poll(self, n, two=False):
        if 'nopoll' in self.abl:
            return
        l = self.lab("Lpoll"); r = self.lab("Lretry"); d = self.lab("Lflag")
        self.A(f"""
        s_mov_b32 s{sSPIN}, 0
        s_mov_b32 s42, s{sT32}
        s_mov_b32 s43, s{sT32}
        s_branch {l}
        {r}:
        s_sleep {self.psleep}
        {l}:
        s_load_dwordx{n} s[{sP}:{sP+n-1}], s[26:27], s40 glc
        {'s_load_dwordx16 s[4:19], s[26:27], s41 glc' if two else ''}
        s_add_u32 s{sSPIN}, s{sSPIN}, 1
        s_cmp_gt_u32 s{sSPIN}, {SPIN_MAX}
        s_cbranch_scc1 L_end
        s_waitcnt lgkmcnt(0)""")
        for b in ((sP, 4) if two else (sP,)):
            for i in range(0, n, 2):
                self.A(f"s_cmp_eq_u64 s[{b+i}:{b+i+1}], s[42:43]\ns_cbranch_scc0 {r}")
        self.A(f"{d}:")

    def gate(self, k, used):
        if k not in used:
            return
        l = self.lab("Lgate")
        self.A(f"s_cmp_eq_u32 s{sGATE}, {k}\ns_cbranch_scc0 {l}")
        self.arrive(C_GA, want_old=False)
        self.A(f"{l}:")

    def flag_store(self, n, vaddr=None, val=sT32):
        self.exec_set((1 << n) - 1)
        self.A(f"""
        {f'v_mul_u32_u24 v1, {REPP}, v0' if vaddr is None else ''}
        v_add_u32 v1, s40, v{1 if vaddr is None else vaddr}
        v_mov_b32 v2, s{val}
        global_store_dword v1, v2, s[26:27] sc1
        s_mov_b64 exec, -1""")

    def tagcheck(self, regs, vacc, vt):
        first = True
        for r in regs:
            if first:
                self.A(f"v_bitop3_b32 v{vacc}, v{r}, v{r+1}, s{sT10} bitop3:0x7e")
                self.A(f"v_bitop3_b32 v{vt}, v{r+2}, v{r+3}, s{sT10} bitop3:0x7e")
                self.A(f"v_or_b32 v{vacc}, v{vacc}, v{vt}")
                first = False
            else:
                self.A(f"v_bitop3_b32 v{vt}, v{r}, v{r+1}, s{sT10} bitop3:0x7e")
                self.A(f"v_bitop3_b32 v{vt+1}, v{r+2}, v{r+3}, s{sT10} bitop3:0x7e")
                self.A(f"v_or3_b32 v{vacc}, v{vacc}, v{vt}, v{vt+1}")

    def tagcheck2(self, regs, vacc, vt):
        out = []
        for i, r in enumerate(regs):
            d = vacc if i == 0 else vt + (i - 1) % 2
            self.A(f"v_bitop3_b32 v{d}, v{r}, v{r+3}, s{sT10} bitop3:0x7e")
            if i and i % 2 == 0:
                self.A(f"v_or3_b32 v{vacc}, v{vacc}, v{vt}, v{vt+1}")
        if len(regs) % 2 == 0:
            self.A(f"v_or_b32 v{vacc}, v{vacc}, v{vt}")

    def tagtest(self, vacc, retry):
        if 'notag' in self.abl:
            return
        self.A(f"""
        v_and_b32 v{vacc}, {TAGM:#x}, v{vacc}
        v_cmp_ne_u32 vcc, 0, v{vacc}
        {'s_add_u32 s96, s96, 1' if self.stamps else ''}
        s_add_u32 s{sSPIN}, s{sSPIN}, 1
        s_cmp_gt_u32 s{sSPIN}, {SPIN_MAX}
        s_cbranch_scc1 L_end
        s_nop 1
        s_cbranch_vccnz {retry}""")

    def tag(self, r):
        self.A(f"v_bfi_b32 v{r}, s44, v3, v{r}")

    def reduce_scatter_rows(self, a):
        self.A(f"""
        s_nop 1
        v_permlane32_swap_b32 v{a}, v{a+2}
        v_permlane32_swap_b32 v{a+1}, v{a+3}
        v_add_f32 v{a}, v{a}, v{a+2}
        v_add_f32 v{a+1}, v{a+1}, v{a+3}
        s_nop 1
        v_permlane16_swap_b32 v{a}, v{a+1}
        v_add_f32 v{a}, v{a}, v{a+1}""")

    def allreduce_rows(self, a, t, op):
        self.A(f"""
        v_mov_b32 v{t}, v{a}
        s_nop 1
        v_permlane32_swap_b32 v{t}, v{a}
        {op} v{a}, v{a}, v{t}
        v_mov_b32 v{t}, v{a}
        s_nop 1
        v_permlane16_swap_b32 v{t}, v{a}
        {op} v{a}, v{a}, v{t}""")

    def allreduce_in_row(self, a, op="v_add_f32"):
        for m in ("quad_perm:[1,0,3,2]", "quad_perm:[2,3,0,1]", "row_half_mirror", "row_mirror"):
            self.A(f"s_nop 1\n{op}_dpp v{a}, v{a}, v{a} {m} row_mask:0xf bank_mask:0xf")

    def bf16_round(self, d, s):
        self.A(f"v_cvt_pk_bf16_f32 v{d}, v{s}, v{s}\nv_and_b32 v{d}, 0xffff0000, v{d}")

    def build(self):
        A = self.A
        self.L.append(f"; @launch grid=(256,1,1) block=(512,1,1) lds={LDS_BYTES}")
        self.L.append('.amdgcn_target "amdgcn-amd-amdhsa--gfx950"')
        self.L += [".text", f".globl {KN}", ".p2align 8", f".type {KN},@function", f"{KN}:"]
        self.stamp(0)
        A(f"""
        s_cmp_ge_u32 s2, 256
        s_cbranch_scc1 L_end
        s_load_dwordx16 s[4:19], s[0:1], 0
        s_load_dwordx8 s[20:27], s[0:1], 64
        v_lshrrev_b32 v1, 6, v0
        v_and_b32 v0, 63, v0
        v_readfirstlane_b32 s{sW}, v1
        s_and_b32 s{sX}, s2, 7
        s_lshr_b32 s{sY}, s2, 3
""")
        if self.layout == 'mix':
            A(f"""
            s_lshr_b32 s{sHQ}, s{sY}, 3
            s_lshl2_add_u32 s{sHQ}, s{sX}, s{sHQ}
            s_and_b32 s{sRBQ}, s{sY}, 7
            s_lshr_b32 s{sG}, s{sX}, 1
            s_and_b32 s{sCH}, s{sX}, 1
            s_lshl4_add_u32 s{sCH}, s{sCH}, s{sY}
            s_lshl4_add_u32 s40, s{sX}, s{sY}
            s_mul_i32 s41, s{sX}, 14
            s_add_u32 s41, s41, s{sY}
            s_sub_u32 s41, s41, {YF}
            s_cmp_lt_u32 s{sY}, {YF}
            s_cselect_b32 s40, s40, s41
            s_cselect_b32 s{sTY}, 0, 1
            s_cmp_ge_u32 s{sY}, {YL}
            s_addc_u32 s{sTY}, s{sTY}, 0
            s_lshr_b32 s{sTL}, s40, 2
            s_and_b32 s{sRB}, s40, 3
            s_xor_b32 s{sUP}, s{sTL}, {self.upx}
            s_lshl1_add_u32 s{sR}, s{sX}, s{sY}
            s_sub_u32 s{sR}, s{sR}, {YL}""")
        else:
            if self.layout == 'odd':
                A(f"s_lshr_b32 s{sG}, s{sX}, 1\ns_and_b32 s{sTY}, s{sX}, 1\ns_xor_b32 s{sTY}, s{sTY}, 1")
            else:
                A(f"s_and_b32 s{sG}, s{sX}, 3\ns_lshr_b32 s{sTY}, s{sX}, 2")
                if self.layout == 'hi':
                    A(f"s_xor_b32 s{sTY}, s{sTY}, 1")
            A(f"""
            s_mov_b32 s{sCH}, s{sY}
            s_and_b32 s{sRB}, s{sY}, 3
            s_lshr_b32 s40, s{sY}, 2
            s_lshl3_add_u32 s{sHQ}, s{sG}, s40
            s_lshl2_add_u32 s{sRBQ}, s{sTY}, s{sRB}
            s_mul_i32 s41, s{sG}, s{sTY}
            s_sub_u32 s{sTL}, s{sHQ}, s41
            s_add_u32 s{sUP}, s40, {self.upx}
            s_cmp_ge_u32 s{sUP}, 7
            s_cselect_b32 s41, 7, 0
            s_sub_u32 s{sUP}, s{sUP}, s41
            s_sub_u32 s{sUP}, s{sUP}, s40
            s_add_u32 s{sUP}, s{sUP}, s{sTL}
            s_lshl2_add_u32 s{sR}, s{sG}, s{sRB}
            s_cmp_eq_u32 s40, 7
            s_cselect_b32 s41, s{sTY}, 0
            s_add_u32 s{sTY}, s{sTY}, s41""")
        A(f"""
        s_cmp_lt_u32 s{sX}, 2
        s_cselect_b32 s40, {self.gateA[0]}, {self.gateA[1]}
        s_cselect_b32 s41, {self.gateF[0]}, {self.gateF[1]}
        s_cmp_eq_u32 s{sTY}, 0
        s_cselect_b32 s{sGATE}, s40, s41
        s_movk_i32 s44, {TAGM:#x}
        v_and_b32 v4, 15, v0
        v_lshrrev_b32 v5, 4, v0""")
        if self.stamps or self.probe:
            A(f"s_mov_b32 s96, 0\ns_mov_b32 s94, s{sW}")
        if self.probe:
            A(f"s_waitcnt lgkmcnt(0)\ns_mov_b32 s{sSTAMP+2*self.probe[2]}, s{sSTAMP}")
        A(f"""
        s_cmp_ge_u32 s{sW}, 4
        s_cbranch_scc1 L_swave""")
        self.awave()
        self.swave()
        self.final()
        A("L_end:")
        A("s_endpgm")
        self.L.append("L_codeend:")
        nv = 200
        self.L += ['.section .rodata,"a"', ".p2align 6", f".amdhsa_kernel {KN}",
                   f"  .amdhsa_next_free_vgpr {nv}", "  .amdhsa_next_free_sgpr 102", f"  .amdhsa_accum_offset {nv}",
                   "  .amdhsa_group_segment_fixed_size 0", "  .amdhsa_kernarg_size 96", "  .amdhsa_user_sgpr_count 2",
                   "  .amdhsa_user_sgpr_kernarg_segment_ptr 1", "  .amdhsa_system_sgpr_workgroup_id_x 1",
                   "  .amdhsa_float_denorm_mode_32 3", ".end_amdhsa_kernel"]
        return "\n".join(self.L) + "\n"

    def write_stamps(self, n):
        if self.probe:
            wg, wave, k = self.probe[:3]
            ty = self.probe[3] if len(self.probe) > 3 else None
            self.stamp(n)
            d = self.lab("Lprobe_done"); l = self.lab("Lprobe")
            self.A(f"""
            s_waitcnt lgkmcnt(0)
            s_cmp_eq_u32 s2, {wg if wg >= 0 else 's2'}
            s_cbranch_scc0 {d}
            s_cmp_eq_u32 s94, {wave}
            s_cbranch_scc0 {d}
            s_cmp_eq_u32 s{sTY}, {ty if ty is not None else f's{sTY}'}
            s_cbranch_scc0 {d}
            s_add_u32 s40, s{sSTAMP+2*k}, 4000
            {l}:
            s_memrealtime s[42:43]
            s_waitcnt lgkmcnt(0)
            s_sub_u32 s41, s42, s40
            s_cmp_lt_i32 s41, 0
            s_cbranch_scc1 {l}
            {d}:""")
            return
        if not self.stamps:
            return
        self.stamp(n)
        A = self.A
        A(f"""
        s_waitcnt lgkmcnt(0)
        s_mov_b64 exec, -1
        s_lshl3_add_u32 s40, s2, s94
        s_lshl_b32 s40, s40, 6
        s_add_u32 s40, s40, {WS_ST:#x}
        v_mov_b32 v1, 0""")
        for k in range(n + 1):
            A(f"v_writelane_b32 v1, s{sSTAMP+2*k}, {k}")
        A(f"""
        s_getreg_b32 s41, hwreg(HW_REG_XCC_ID)
        s_and_b32 s41, s41, 0xf
        s_lshl4_add_u32 s41, s96, s41
        v_writelane_b32 v1, s41, 15
        v_lshl_add_u32 v2, v0, 2, s40
        s_mov_b64 exec, 0xffff
        global_store_dword v2, v1, s[26:27]""")

    def swave(self):
        A = self.A
        vI, vJ = 4, 5
        vAq, vA1, vA2, vA3, vAw, vRed, vPub = 6, 7, 8, 9, 10, 11, 14
        vPS, vXQ, vXG, vSEL, aQ, aG, aU, vT = 16, 24, 28, 36, 40, 44, 48, 52
        RING, BIG = 56, 120
        A(f"""
        L_swave:
        s_sub_u32 s{sW}, s{sW}, 4
        s_lshl2_add_u32 s40, s{sRBQ}, s{sW}
        s_lshl_b32 s40, s40, 18
        s_lshl_b32 s41, s{sHQ}, 8
        s_add_u32 s40, s40, s41
        v_lshlrev_b32 v13, 4, v{vI}
        v_lshl_add_u32 v{vAq}, v{vJ}, 13, v13
        v_add_u32 v{vAq}, s40, v{vAq}
        s_mov_b32 s45, 0x8000
        s_waitcnt lgkmcnt(0)""")
        for m in range(8):
            A(f"global_load_dwordx4 v[{RING+4*m}:{RING+4*m+3}], v{vAq}, s[10:11] nt")
            if m < 7:
                A(f"v_add_u32 v{vAq}, s45, v{vAq}")
        A(f"s_load_dword s{sT32}, s[26:27], {WS_E}")
        self.stamp(1)
        A(f"""
        ; wo / down: rows tile*128 + 8*m + (l>>3), columns cb*256 + sw*64 + 8*(l&7)
        v_lshrrev_b32 v12, 3, v0
        v_and_b32 v1, 7, v0
        v_lshlrev_b32 v2, 4, v1
        v_lshl_add_u32 v{vAw}, v12, 11, v2
        s_lshl2_add_u32 s42, s{sRB}, s{sW}
        s_lshl_b32 s40, s42, 7
        s_lshl_b32 s41, s{sTL}, 18
        s_add_u32 s40, s40, s41
        v_add_u32 v{vAw}, s40, v{vAw}
        s_movk_i32 s45, 0x4000
        v_lshl_add_u32 v1, v1, 1, v{vJ}
        s_lshl_b32 s40, s42, 8
        v_lshl_add_u32 v{vPub}, v1, 4, s40
        ; LDS offset of this lane's partial granule: (2*(l&15) + J)*16
        v_lshl_add_u32 v{vRed}, v{vI}, 1, v{vJ}
        v_lshlrev_b32 v{vRed}, 4, v{vRed}
        s_mov_b32 s40, 0xaaaaaaaa
        s_mov_b32 s41, 0xaaaaaaaa
        v_mov_b32 v1, 0x0c0c0100
        v_mov_b32 v2, 0x01000c0c
        v_cndmask_b32 v1, v1, v2, s[40:41]
        v_mov_b32 v2, 0x0c0c0302
        v_mov_b32 v3, 0x03020c0c
        v_cndmask_b32 v2, v2, v3, s[40:41]
        v_mov_b32 v3, 0x0c0c0c0c""")
        for d in range(4):
            m = 0x03030303 << (2*d)
            A(f"""
            s_mov_b32 s40, {m:#x}
            s_mov_b32 s41, {m:#x}
            v_cndmask_b32 v{vPS+d}, v3, v1, s[40:41]
            v_cndmask_b32 v{vPS+4+d}, v3, v2, s[40:41]""")
        A(f"""
        s_barrier
        s_waitcnt lgkmcnt(0)
        s_add_u32 s{sT32}, s{sT32}, 1
        s_and_b32 s{sT10}, s{sT32}, s44
        v_mov_b32 v3, s{sT10}
        s_cmp_ge_u32 s{sTY}, 1
        s_cbranch_scc1 L_s_notattn""")

        def sel(m, dst, src):
            for d in range(4):
                A(f"v_perm_b32 v{dst+d}, v{src+(m>>1)}, v{src+(m>>1)}, v{vPS+4*(m&1)+d}")

        def mfma(acc, s, w, first):
            c = "0" if first else f"v[{acc}:{acc+3}]"
            A(f"v_mfma_f32_16x16x32_bf16 v[{acc}:{acc+3}], v[{s}:{s+3}], v[{w}:{w+3}], {c}")

        def get_xn(ffn):
            A(f"s_lshl_b32 s41, s{sW}, 2\ns_add_u32 s41, s41, {C_XN}")
            self.lds_spin("s41", 1, sleep=0)
            A(f"""
            s_lshl_b32 s40, s{sW}, 6
            v_lshl_add_u32 v2, v{vJ}, 4, s40
            ds_read_b128 v[{vXQ}:{vXQ+3}], v2 offset:{L_XQ}""")
            if ffn:
                A(f"""
                v_lshlrev_b32 v2, 1, v2
                ds_read_b128 v[{vXG}:{vXG+3}], v2 offset:{L_XG}
                ds_read_b128 v[{vXG+4}:{vXG+7}], v2 offset:{L_XG+16}""")
            A("s_waitcnt lgkmcnt(0)")
            self.stamp(3)
            sel(0, vSEL, vXQ)
            A("s_nop 1")

        def red_write(accs, lbase, shift, cnt):
            A(f"s_lshl_b32 s40, s{sW}, {shift}\nv_add_u32 v1, s40, v{vRed}\ns_mov_b32 exec_hi, 0")
            for i, a in enumerate(accs):
                A(f"ds_write_b128 v1, v[{a}:{a+3}] offset:{lbase + 512*i}")
            self.arrive(cnt, want_old=False)

        def kvflag(c):
            A(f"""
            s_lshl_b32 s40, s{sW}, 2
            s_mov_b64 exec, 1
            v_mov_b32 v1, s40
            v_mov_b32 v2, 1
            ds_write_b32 v1, v2 offset:{c}
            s_mov_b64 exec, -1""")

        def issue(op, i):
            kind, m = op
            slot = RING + 4*(i % 16)
            if kind in "kv":
                va, sb, x = (vA1, 6, 64*(m & 3)) if kind == "k" else (vA2, 8, 128*(m & 1))
                if m % 4 == 0:
                    if i > 8:
                        A(f"s_add_u32 s47, s47, {4096 if m == 4 else L_V - L_K - 4096}")
                    A("s_mov_b32 m0, s47")
                    if m == 4:
                        A(f"v_add_u32 v{va}, 4096, v{va}")
                A(f"v_xor_b32 v1, {x}, v{va}")
                A(f"global_load_lds_dwordx4 v1, s[{sb}:{sb+1}] offset:{1024*(m&3)} nt")
            elif kind in "gu":
                va, sb = (vA1, 16) if kind == "g" else (vA2, 18)
                A(f"global_load_dwordx4 v[{slot}:{slot+3}], v{va}, s[{sb}:{sb+1}] nt")
                if m < 15:
                    A(f"v_add_u32 v{va}, s46, v{va}")
            elif kind in "do":
                sb = 20 if kind == "d" else 12
                A(f"global_load_dwordx4 v[{BIG+4*m}:{BIG+4*m+3}], v{vAw}, s[{sb}:{sb+1}] nt")
                if m < 15:
                    A(f"v_add_u32 v{vAw}, s45, v{vAw}")

        def process(op, i, ffn):
            kind, m = op
            slot = RING + 4*(i % 16)
            if kind == "q":
                mfma(aQ, vSEL, slot, m == 0)
                if m < 7:
                    sel(m + 1, vSEL, vXQ)
                    A("s_nop 1")
                else:
                    if ffn:
                        sel(0, vSEL, vXG)
                        A("s_nop 0")
                    else:
                        A("s_nop 4")
                    red_write([aQ], L_RQ, 9, C_Q)
                    self.stamp(4)
            elif kind in "kv" and m == 7:
                l = self.lab("Lkvf")
                if kind == "v":
                    A(f"s_cmp_lg_u32 s43, 0\ns_cbranch_scc1 {l}")
                kvflag(C_K if kind == "k" else C_V)
                if kind == "v":
                    self.stamp(5)
                    A(f"{l}:")
            elif kind == "g":
                mfma(aG, vSEL, slot, m == 0)
            elif kind == "u":
                mfma(aU, vSEL, slot, m == 0)
                if m < 15:
                    sel(m + 1, vSEL, vXG)
                    A("s_nop 1")
                else:
                    A("s_nop 4")
                    red_write([aG, aU], L_RG, 10, C_G)
                    self.stamp(6)

        def stream(ops, wfun, ffn, start=8, landed=0):
            for i in range(start, len(ops)):
                w = wfun(i)
                A(f"s_waitcnt vmcnt({w-1})")
                issue(ops[i], i)
                if i < self.xnpos:
                    continue
                if i == self.xnpos:
                    get_xn(ffn)
                while landed <= i - w:
                    process(ops[landed], landed, ffn); landed += 1
            return landed

        def drain(ops, landed, upto, ffn):
            n = len(ops)
            while landed < upto:
                if ops[landed][0] in "qgu":
                    A(f"s_waitcnt vmcnt({n - 1 - landed})")
                    process(ops[landed], landed, ffn)
                landed += 1
            return landed

        def final_gemv(val, first, nops, landed, wsb):
            A(f"""
            v_lshlrev_b32 v15, 5, v12
            s_mul_i32 s40, s{sTL}, {ROWP}
            s_add_u32 s40, s40, {wsb:#x}
            v_add_u32 v{vPub}, s40, v{vPub}""")
            rd = f"ds_read_b128 v[{vXG}:{vXG+3}], v15 offset:{L_VEC}\nds_read_b128 v[{vXG+4}:{vXG+7}], v15 offset:{L_VEC+16}"
            if 'noa' not in self.abl and 'nofin' not in self.abl:
                self.lds_spin(C_FO, val, sleep=0, reads=rd)
            else:
                A(rd + "\ns_waitcnt lgkmcnt(0)")
            self.stamp(8)
            self.L.append(".p2align 3")
            late = [m for m in range(16) if first + m >= landed]
            early = [m for m in range(16) if first + m < landed]
            for k, m in enumerate(early):
                sel(m, RING + 4*m, vXG)
                if k:
                    mfma(aQ, RING + 4*early[k-1], BIG + 4*early[k-1], k == 1)
            for k, m in enumerate(late):
                sel(m, RING + 4*m, vXG)
                if k == 0 and early:
                    mfma(aQ, RING + 4*early[-1], BIG + 4*early[-1], len(early) == 1)
            self.stamp(9)
            for k, m in enumerate(late):
                A(f"s_waitcnt vmcnt({nops - 1 - (first + m)})")
                mfma(aQ, RING + 4*m, BIG + 4*m, k == 0 and not early)
            g = vT
            A(f"""
            s_nop 7
            v_permlane32_swap_b32 v{aQ}, v{aQ+2}
            v_permlane32_swap_b32 v{aQ+1}, v{aQ+3}
            s_nop 0
            v_add_f32_dpp v{g}, v{aQ+2}, v{aQ} row_shl:8 row_mask:0xf bank_mask:0xf bound_ctrl:1
            v_add_f32_dpp v{g+1}, v{aQ+3}, v{aQ+1} row_shl:8 row_mask:0xf bank_mask:0xf bound_ctrl:1""")
            self.tag(g); self.tag(g + 1)
            A(f"""
            s_nop 0
            v_permlane32_swap_b32 v{g}, v{g+2}
            v_permlane32_swap_b32 v{g+1}, v{g+3}
            s_mov_b64 exec, 0x00ff00ff
            global_store_dwordx4 v{vPub}, v[{g}:{g+3}], s[26:27] sc1
            s_mov_b64 exec, -1""")

        qops = [("q", m) for m in range(8)]
        A(f"""
        s_lshl_b32 s40, s{sG}, 24
        s_lshl_b32 s41, s{sCH}, 15
        s_add_u32 s40, s40, s41
        s_lshl_b32 s47, s{sW}, 13
        s_add_u32 s40, s40, s47
        s_add_u32 s47, s47, {L_K}
        s_add_u32 s40, s40, {(65536-4096)*256:#x}
        v_xor_b32 v1, v{vI}, v{vJ}
        v_lshlrev_b32 v1, 4, v1
        v_lshl_add_u32 v1, v{vJ}, 8, v1
        v_add_u32 v{vA1}, s40, v1
        v_lshlrev_b32 v1, 1, v{vJ}
        v_xor_b32 v1, v{vI}, v1
        v_lshlrev_b32 v1, 4, v1
        v_lshl_add_u32 v1, v{vJ}, 8, v1
        v_add_u32 v{vA2}, s40, v1""")
        ops = qops + [("k", m) for m in range(8)] + [("v", m) for m in range(8)]
        WA = self.WA
        landed = stream(ops, lambda i: WA[0] if i < 14 else WA[1], False)
        A("s_mov_b32 s43, 0")
        if self.pause and 'noa' not in self.abl:
            go = self.lab("Lgo")
            if 0 in self.gateA:
                A(f"s_cmp_eq_u32 s{sGATE}, 0\ns_cbranch_scc1 {go}")
            A(f"""
            v_mov_b32 v1, {C_GA}
            ds_read_b32 v2, v1
            s_waitcnt lgkmcnt(0)
            v_readfirstlane_b32 s{sTMP}, v2
            s_cmp_eq_u32 s{sTMP}, 4
            s_cbranch_scc1 {go}
            s_waitcnt vmcnt(0)
            s_mov_b32 s43, 1""")
            assert landed >= 16
            kvflag(C_V)
            self.stamp(5)
            self.lds_spin(C_GA, 4, sleep=1)
            A(f"{go}:")
            self.stamp(6)
        ops = ops + [("o", m) for m in range(16)]
        for w3 in ([self.WAe, WA[2]] if self.WAe else [WA[2]]):
            nxt = self.lab("Lsa")
            if self.WAe and w3 == self.WAe:
                A(f"s_cmp_lt_u32 s{sX}, 2\ns_cbranch_scc0 {nxt}")
            l2 = stream(ops, lambda i: w3, False, start=24, landed=landed)
            assert l2 >= 24
            self.stamp(7)
            final_gemv(4, 24, 40, l2, WS_BS)
            self.write_stamps(10)
            A(f"s_endpgm\n{nxt}:")
        A(f"""
        L_s_notattn:
        s_cmp_ge_u32 s{sTY}, 2
        s_cbranch_scc1 L_s_last
        s_lshl2_add_u32 s40, s{sRB}, s{sW}
        s_mul_i32 s40, s40, {64*7168}
        v_mul_u32_u24 v1, 7168, v{vJ}
        v_add3_u32 v1, v1, v13, s40
        s_lshl_b32 s41, s{sTL}, 8
        v_add_u32 v{vA1}, s41, v1
        s_lshl_b32 s41, s{sUP}, 8
        v_add_u32 v{vA2}, s41, v1
        s_movk_i32 s46, {7168*4}""")
        ops = qops + [(k, m) for m in range(16) for k in "gu"] + [("d", m) for m in range(16)]
        WF = self.WF
        landed = stream(ops[:40], lambda i: WF[0] if i < 14 else WF[1], True)
        gated = self.lab("Lsfg")
        if any(self.gateF) and 'noa' not in self.abl:
            A(f"s_cmp_lg_u32 s{sGATE}, 0\ns_cbranch_scc1 {gated}")
        if 0 in self.gateF or 'noa' in self.abl:
            l2 = stream(ops, lambda i: WF[2], True, start=40, landed=landed)
            assert l2 >= 40
            self.stamp(7)
            final_gemv(1, 40, 56, l2, WS_BF)
            self.write_stamps(10)
            A("s_endpgm")
        if any(self.gateF) and 'noa' not in self.abl:
            A(f"{gated}:")
            l2 = drain(ops[:40], landed, 40, True)
            self.lds_spin(C_GA, 1, sleep=1)
            l2 = stream(ops, lambda i: self.WFe or WF[2], True, start=40, landed=l2)
            self.stamp(7)
            final_gemv(1, 40, 56, l2, WS_BF)
            self.write_stamps(10)
            A("s_endpgm")
        A("L_s_last:")
        get_xn(False)
        drain(qops, 0, 8, False)
        A(f"s_add_u32 s{sW}, s{sW}, 4\ns_branch L_final")

    def red_publish(self, lbase, pitch, cnt, nl, addr_code, nrep, flagv=None, sleep=1, val=sT32):
        A = self.A
        t = 16
        A("v_lshlrev_b32 v10, 4, v0")
        A(addr_code)
        self.lds_spin(cnt, 4, sleep=sleep, reads="\n".join(f"ds_read_b128 v[{t+4*k}:{t+4*k+3}], v10 offset:{lbase+pitch*k}" for k in range(4)))
        if nl == 32:
            A("s_mov_b32 exec_hi, 0")
        for h in (0, 2):
            A(f"v_pk_add_f32 v[{t+h}:{t+h+1}], v[{t+h}:{t+h+1}], v[{t+4+h}:{t+5+h}]")
            A(f"v_pk_add_f32 v[{t+8+h}:{t+9+h}], v[{t+8+h}:{t+9+h}], v[{t+12+h}:{t+13+h}]")
        for h in (0, 2):
            A(f"v_pk_add_f32 v[{t+h}:{t+h+1}], v[{t+h}:{t+h+1}], v[{t+8+h}:{t+9+h}]")
        for r in range(4):
            self.tag(t + r)
        A(f"global_store_dwordx4 v11, v[{t}:{t+3}], s[26:27] {'' if ('d' in self.plain and nl == 64) else 'sc1'}")
        if 'w' in self.plain and 'd' in self.plain and nl == 64:
            A("s_waitcnt vmcnt(0)")
        self.flag_store(nrep, flagv, val)

    def awave(self):
        A = self.A
        vKF, vVF, vGT, vU = 56, 184, 216, 232
        vQF, vS = 216, 16
        vI, vJ = 4, 5
        vA0, vA1 = 6, 7
        vT = 16
        x0, xr = 56, 72
        A(f"""
        s_setprio 3
        s_lshl2_add_u32 s40, s{sRB}, s{sW}
        s_lshl_b32 s40, s40, 6
        v_lshlrev_b32 v14, 5, v0
        v_add_lshl_u32 v1, v0, s40, 1
        s_lshl2_add_u32 s40, s{sRBQ}, s{sW}
        s_lshl_b32 s40, s40, 5
        v_and_b32 v15, 31, v0
        v_add_lshl_u32 v15, v15, s40, 1
        v_mov_b32 v10, 0
        v_and_b32 v2, 31, v0
        v_lshlrev_b32 v2, 2, v2
        ds_write_b32 v2, v10 offset:{L_CNT}
        s_waitcnt lgkmcnt(0)
        global_load_dwordx4 v[{xr}:{xr+3}], v14, s[4:5]
        global_load_dwordx4 v[{xr+4}:{xr+7}], v14, s[4:5] offset:16
        global_load_ushort v{xr+8}, v15, s[4:5]
        global_load_ushort v{xr+9}, v1, s[4:5]
        s_load_dword s{sT32}, s[26:27], {WS_E}""")
        if self.prefetch:
            A(f"""
            s_getpc_b64 s[40:41]
            L_pc:
            s_sub_u32 s40, s40, L_pc-{KN}
            s_subb_u32 s41, s41, 0
            s_lshl2_add_u32 s42, s{sY}, s{sW}
            s_lshl_b32 s42, s42, 7
            s_min_u32 s42, s42, L_codeend-{KN}-4
            v_mov_b32 v1, s42
            s_mov_b64 exec, 1
            global_load_dword v55, v1, s[40:41]
            s_mov_b64 exec, -1""")
        A("s_barrier")
        self.stamp(1)
        A(f"s_waitcnt vmcnt({1 if self.prefetch else 0}) lgkmcnt(0)")
        self.stamp(11)
        for i in range(8):
            A(f"v_lshlrev_b32 v{x0+2*i}, 16, v{xr+i}\nv_and_b32 v{x0+2*i+1}, 0xffff0000, v{xr+i}")
        A(f"v_pk_add_f32 v[{vT}:{vT+1}], v[{x0}:{x0+1}], v[{x0+2}:{x0+3}]")
        A(f"v_pk_add_f32 v[{vT+2}:{vT+3}], v[{x0+4}:{x0+5}], v[{x0+6}:{x0+7}]")
        for i in range(4, 8, 2):
            A(f"v_pk_add_f32 v[{vT}:{vT+1}], v[{vT}:{vT+1}], v[{x0+2*i}:{x0+2*i+1}]")
            A(f"v_pk_add_f32 v[{vT+2}:{vT+3}], v[{vT+2}:{vT+3}], v[{x0+2*i+2}:{x0+2*i+3}]")
        A(f"v_pk_add_f32 v[{vT}:{vT+1}], v[{vT}:{vT+1}], v[{vT+2}:{vT+3}]")
        A(f"v_add_f32 v{vT}, v{vT}, v{vT+1}")
        self.allreduce_in_row(vT)
        self.allreduce_rows(vT, vT+1, "v_add_f32")
        A(f"v_mul_f32 v{vT}, {f2u(1.0/1024):#x}, v{vT}")
        for i in range(8):
            A(f"v_pk_add_f32 v[{x0+2*i}:{x0+2*i+1}], v[{x0+2*i}:{x0+2*i+1}], v[{vT}:{vT+1}] op_sel_hi:[1,0] neg_lo:[0,1] neg_hi:[0,1]")
        A(f"v_pk_mul_f32 v[{vT+2}:{vT+3}], v[{x0}:{x0+1}], v[{x0}:{x0+1}]")
        A(f"v_pk_mul_f32 v[{vT+4}:{vT+5}], v[{x0+2}:{x0+3}], v[{x0+2}:{x0+3}]")
        for i in range(2, 8):
            d = vT + 2 + 2*(i & 1)
            A(f"v_pk_fma_f32 v[{d}:{d+1}], v[{x0+2*i}:{x0+2*i+1}], v[{x0+2*i}:{x0+2*i+1}], v[{d}:{d+1}]")
        A(f"v_pk_add_f32 v[{vT+2}:{vT+3}], v[{vT+2}:{vT+3}], v[{vT+4}:{vT+5}]")
        A(f"v_add_f32 v{vT+2}, v{vT+2}, v{vT+3}")
        r = xr + 8
        self.bf16_round(vT, vT)
        self.allreduce_in_row(vT+2)
        A(f"""
        v_lshlrev_b32 v{r}, 16, v{r}
        v_lshlrev_b32 v{r+1}, 16, v{r+1}
        v_pk_add_f32 v[{r}:{r+1}], v[{r}:{r+1}], v[{vT}:{vT+1}] op_sel_hi:[1,0] neg_lo:[0,1] neg_hi:[0,1]""")
        self.allreduce_rows(vT+2, vT+3, "v_add_f32")
        A(f"v_mul_f32 v{vT+2}, {f2u(1.0/1024):#x}, v{vT+2}")
        self.bf16_round(vT+2, vT+2)
        A(f"v_add_f32 v{vT+2}, {f2u(1e-5):#x}, v{vT+2}")
        self.bf16_round(vT+2, vT+2)
        A(f"""
        v_sqrt_f32 v{vT+2}, v{vT+2}
        v_cvt_pk_bf16_f32 v{r+1}, v{r}, v{r+1}
        v_lshlrev_b32 v{r}, 16, v{r+1}
        v_and_b32 v{r+1}, 0xffff0000, v{r+1}""")
        self.bf16_round(vT+2, vT+2)
        A(f"""
        v_rcp_f32 v{vT+2}, v{vT+2}
        v_and_b32 v1, 3, v0
        v_lshrrev_b32 v2, 2, v0
        v_lshlrev_b32 v2, 1, v2
        v_pk_mul_f32 v[{r}:{r+1}], v[{r}:{r+1}], v[{vT+2}:{vT+3}] op_sel_hi:[1,0]
        s_lshl_b32 s40, s{sW}, 6
        v_lshl_add_u32 v10, v1, 4, s40
        v_lshl_add_u32 v11, v10, 1, v2
        v_add_u32 v10, v10, v2
        v_cvt_pk_bf16_f32 v{r}, v{r}, v{r+1}
        s_lshl_b32 s40, s{sW}, 2
        v_mov_b32 v2, s40
        v_mov_b32 v1, 1
        ds_write_b16_d16_hi v11, v{r} offset:{L_XG}
        s_mov_b32 exec_hi, 0
        ds_write_b16 v10, v{r} offset:{L_XQ}
        s_mov_b64 exec, 1
        ds_write_b32 v2, v1 offset:{C_XN}
        s_mov_b64 exec, -1
        s_add_u32 s{sT32}, s{sT32}, 1
        s_and_b32 s{sT10}, s{sT32}, s44
        v_mov_b32 v3, s{sT10}""")
        self.stamp(12)
        if self.wtest:
            pre, mod, n = self.wtest
            A(f"s_cmp_eq_u32 s{sW}, 3\ns_cbranch_scc0 L_adone")
            A(f"s_mul_i32 s42, s2, {n*1024}\ns_add_u32 s42, s42, 0x800000\nv_lshl_add_u32 v10, v0, 4, s42")
            if pre == 's':
                A("s_add_u32 s40, s26, s42\ns_addc_u32 s41, s27, 0")
                for i in range(n*16):
                    A(f"s_load_dword s48, s[40:41], {64*i} glc")
                A("s_waitcnt lgkmcnt(0)")
            elif pre:
                for i in range(n):
                    A(f"global_load_dwordx4 v[20:23], v10, s[26:27] offset:{1024*i} {pre[1:]}")
                A("s_waitcnt vmcnt(0)")
            self.lds_spin(C_Q, 4, sleep=1)
            A("s_sleep 64")
            for i in range(n):
                A(f"global_store_dwordx4 v10, v[16:19], s[26:27] offset:{1024*i} {mod}")
        if 'noa' in self.abl:
            A("s_branch L_adone")
        if self.local:
            A(f"""
            s_getreg_b32 s45, hwreg(HW_REG_XCC_ID, 0, 4)
            s_lshl_b32 s45, s45, 28
            s_cmp_eq_u32 s{sTY}, 0
            s_cselect_b32 s45, s45, 0
            s_xor_b32 s45, s45, s{sT32}""")
        nq = self.lab("Lnoq")
        A(f"s_cmp_eq_u32 s{sW}, 3\ns_cbranch_scc0 {nq}")
        self.red_publish(L_RQ, 512, C_Q, 32, f"""
            s_lshl3_add_u32 s41, s{sHQ}, s{sRBQ}
            s_lshl_b32 s40, s41, 9
            s_add_u32 s40, s40, {WS_BQ:#x}
            v_add_u32 v11, s40, v10
            s_lshr_b32 s40, s41, 4
            s_and_b32 s41, s41, 15
            s_lshl_b32 s40, s40, 5
            s_add_u32 s40, s40, s41
            s_lshl_b32 s40, s40, 2
            s_add_u32 s40, s40, {WS_FLA:#x}""", self.nrepA, val=(45 if self.local else sT32))
        self.stamp(13)
        A(f"""
        {nq}:
        s_cmp_ge_u32 s{sTY}, 2
        s_cbranch_scc1 L_final
        s_cmp_ge_u32 s{sTY}, 1
        s_cbranch_scc1 L_ffn""")
        if 'stop1' in self.abl:
            self.arrive(C_GA, want_old=False); A("s_branch L_adone")
        vKF, vVF, vGT, vQF, vO = 56, 88, 120, 152, 168
        vS, U, Z = 16, 24, 28
        A(f"""
        s_lshl2_add_u32 s41, s{sG}, s{sW}
        s_lshl_b32 s40, s41, 13
        s_add_u32 s40, s40, {WS_BQ + 2048:#x}
        v_and_b32 v12, 31, v0
        v_lshrrev_b32 v13, 5, v0
        v_lshlrev_b32 v1, 4, v12
        v_lshl_add_u32 v1, v13, 12, v1
        v_add_u32 v{vA0}, s40, v1
        s_and_b32 s40, s{sCH}, {self.nrepA-1}
        s_mul_i32 s40, s40, {REPP}
        s_lshl_b32 s41, s41, 7
        s_add_u32 s40, s40, s41
        s_add_u32 s95, s40, {WS_FLA:#x}
        s_lshl_b32 s40, s{sW}, 1
        v_add_u32 v13, s40, v13
        v_mul_u32_u24 v13, {QLP}, v13
        v_lshl_add_u32 v13, v12, 3, v13
        v_and_b32 v10, 7, v0
        s_lshl_b32 s40, s{sG}, 5
        s_add_u32 s41, s40, s{sCH}
        s_mul_i32 s41, s41, {BOP}
        s_lshl_b32 s42, s{sW}, 7
        s_add_u32 s41, s41, s42
        s_add_u32 s41, s41, {WS_BO:#x}
        v_lshlrev_b32 v8, 9, v10
        v_bfe_u32 v11, v0, 3, 1
        v_lshl_add_u32 v8, v11, 6, v8
        v_lshl_add_u32 v8, v{vJ}, 4, v8
        v_add_u32 v8, s41, v8
        s_add_u32 s40, s40, s{sCH}
        s_lshl_b32 s40, s40, 7
        s_add_u32 s40, s40, {WS_BML:#x}
        v_lshl_add_u32 v9, v10, 4, s40
        v_mul_u32_u24 v12, {QLP}, v10
        v_lshl_add_u32 v12, v{vJ}, 4, v12
        s_mov_b32 s46, {f2u(128 ** -0.5):#x}
        s_mov_b32 s47, {f2u(128 ** -0.5):#x}
        s_lshl_b32 s40, s{sW}, 13
        v_xor_b32 v14, v{vI}, v{vJ}
        v_lshlrev_b32 v14, 4, v14
        v_lshl_add_u32 v14, v{vI}, 8, v14
        v_add_u32 v14, s40, v14
        v_bfe_u32 v10, v0, 2, 2
        v_lshl_add_u32 v10, v{vJ}, 2, v10
        v_and_b32 v11, 7, v10
        v_lshlrev_b32 v11, 1, v11
        v_bfe_u32 v1, v0, 1, 1
        v_xor_b32 v11, v11, v1
        v_lshlrev_b32 v11, 4, v11
        v_lshl_add_u32 v11, v10, 8, v11
        v_and_b32 v1, 1, v0
        v_lshl_add_u32 v11, v1, 3, v11
        s_add_u32 s41, s40, {L_V}
        v_add_u32 v11, s41, v11
        ; exchange area (this wave's K rows, dead once the fragments are in registers)
        v_lshl_add_u32 v15, v0, 4, s40
        s_lshl_b32 s41, s{sW}, 10
        v_lshl_add_u32 v10, v0, 4, s41
        s_lshl_b32 s41, s{sW}, 2
        s_add_u32 s41, s41, {C_K}""")
        self.mask(("s92", "s93"), 0xFF00FF00FF00FF00)
        self.lds_spin("s41", 1, sleep=1)
        for s in range(4):
            if s:
                A(f"v_xor_b32 v2, {64*s}, v14")
            for t in range(2):
                r = vKF + 16*t + 4*s
                A(f"ds_read_b128 v[{r}:{r+3}], v{2 if s else 14} offset:{L_K + 4096*t}")
        self.stamp(3)
        A("s_mov_b32 s40, s95")
        if self.local:
            l = self.lab("Lpoll"); r = self.lab("Lretry")
            A(f"""
            s_mov_b32 s{sSPIN}, 0
            s_mov_b32 s42, s{sT32}
            s_mov_b32 s43, s{sT32}
            s_mov_b32 s4, s45
            s_mov_b32 s5, s45
            s_branch {l}
            {r}:
            s_sleep {self.psleep}
            {l}:
            s_load_dwordx16 s[{sP}:{sP+15}], s[26:27], s40 glc
            s_add_u32 s{sSPIN}, s{sSPIN}, 1
            s_cmp_gt_u32 s{sSPIN}, {SPIN_MAX}
            s_cbranch_scc1 L_end
            s_waitcnt lgkmcnt(0)""")
            for i in range(8):
                A(f"s_xor_b64 s[{sP+2*i}:{sP+2*i+1}], s[{sP+2*i}:{sP+2*i+1}], s[{'4:5' if (i & 2) == 0 else '42:43'}]")
            for step in (2, 4, 8):
                for i in range(0, 16, 2*step):
                    A(f"s_or_b64 s[{sP+i}:{sP+i+1}], s[{sP+i}:{sP+i+1}], s[{sP+i+step}:{sP+i+step+1}]")
            A(f"""
            s_or_b32 s{sP}, s{sP}, s{sP+1}
            s_and_b32 s{sP+1}, s{sP}, 0x0fffffff
            s_cbranch_scc1 {r}
            s_cmp_lg_u32 s{sP}, 0
            s_cselect_b32 s101, 0x101, 1""")
        else:
            self.flag_poll(16)
        self.stamp(2)
        if 'stop2' in self.abl:
            self.arrive(C_GA, want_old=False); A("s_branch L_adone")
        rq = self.lab("Lgq")
        A(f"s_mov_b32 s45, 0\n{rq}:")
        for n in range(8):
            A(f"global_load_dwordx4 v[{vGT+4*n}:{vGT+4*n+3}], v{vA0}, s[26:27] offset:{512*n - 2048} sc1")
        skip = self.lab("Lkvdone")
        A(f"s_cmp_lg_u32 s45, 0\ns_cbranch_scc1 {skip}\ns_mov_b32 s45, 1")
        self.gate(1, self.gateA)
        A(f"s_lshl_b32 s41, s{sW}, 2\ns_add_u32 s41, s41, {C_V}")
        self.lds_spin("s41", 1, sleep=0)
        for dt in range(8):
            if dt:
                A(f"v_xor_b32 v14, {32*dt}, v11")
            for t in range(2):
                r = vVF + 4*dt + 2*t
                A(f"ds_read_b64_tr_b16 v[{r}:{r+1}], v{14 if dt else 11} offset:{4096*t}")
        A(f"""
        s_lshr_b32 s40, s{sCH}, 4
        s_lshl1_add_u32 s40, s{sG}, s40
        s_lshl_b32 s40, s40, 5
        s_and_b32 s41, s{sCH}, 15
        s_add_u32 s40, s40, s41
        s_lshl_b32 s40, s40, 2
        s_add_u32 s95, s40, {WS_FLB:#x}""")
        A(f"s_mov_b32 s{sSPIN}, 0\n{skip}:")
        A("s_waitcnt vmcnt(0)")
        self.tagcheck2([vGT+4*n for n in range(8)], vT, vT+1)
        self.tagtest(vT, rq)
        self.stamp(4)
        if 'stop3' in self.abl:
            A("s_branch L_adone")
        for step in (4, 8, 16):
            for b in range(0, 32, 2*step):
                for h in (0, 2):
                    A(f"v_pk_add_f32 v[{vGT+b+h}:{vGT+b+h+1}], v[{vGT+b+h}:{vGT+b+h+1}], v[{vGT+b+step+h}:{vGT+b+step+h+1}]")
        A(f"""
        v_cvt_pk_bf16_f32 v{vGT}, v{vGT}, v{vGT+1}
        v_cvt_pk_bf16_f32 v{vGT+1}, v{vGT+2}, v{vGT+3}
        s_mov_b32 s45, {f2u(LOG2E):#x}
        ds_write_b64 v13, v[{vGT}:{vGT+1}] offset:{L_QL}""")
        self.arrive(C_QL, want_old=False, inc=("s101" if self.local else 1))
        self.stamp(1)
        self.lds_spin(C_QL, 4, sleep=0, low8=self.local,
                      reads="\n".join(f"ds_read_b128 v[{vQF+4*s}:{vQF+4*s+3}], v12 offset:{L_QL + 64*s}" for s in range(4)))
        self.stamp(9)
        for s in range(4):
            for t in range(2):
                c = "0" if s == 0 else f"v[{vS+4*t}:{vS+4*t+3}]"
                r = vKF + 16*t + 4*s
                A(f"v_mfma_f32_16x16x32_bf16 v[{vS+4*t}:{vS+4*t+3}], v[{r}:{r+3}], v[{vQF+4*s}:{vQF+4*s+3}], {c}")
        A("s_nop 7")
        for k in range(4):
            A(f"v_cndmask_b32 v{U+k}, v{vS+k}, v{vS+4+k}, s[92:93]")
        for rnd in range(2):
            for p in range(2):
                A(f"v_cvt_pk_bf16_f32 v{Z+p}, v{U+2*p}, v{U+2*p+1}")
            for p in range(2):
                A(f"v_lshlrev_b32 v{U+2*p}, 16, v{Z+p}\nv_and_b32 v{U+2*p+1}, 0xffff0000, v{Z+p}")
            if rnd == 0:
                for p in range(2):
                    A(f"v_pk_mul_f32 v[{U+2*p}:{U+2*p+1}], v[{U+2*p}:{U+2*p+1}], s[46:47]")
        vM, vL = 48, 49
        A(f"""
        v_max3_f32 v{vM}, v{U}, v{U+1}, v{U+2}
        v_max_f32 v{vM}, v{vM}, v{U+3}
        s_nop 1
        v_max_f32_dpp v{vM}, v{vM}, v{vM} row_ror:8 row_mask:0xf bank_mask:0xf""")
        self.allreduce_rows(vM, 50, "v_max_f32")
        A(f"v_mul_f32 v50, s45, v{vM}")
        for k in range(4):
            A(f"v_fma_f32 v{U+k}, v{U+k}, s45, -v50")
        for k in range(4):
            A(f"v_exp_f32 v{U+k}, v{U+k}")
        P = 32
        A(f"""
        s_nop 0
        v_cvt_pk_bf16_f32 v{P}, v{U}, v{U+1}
        v_cvt_pk_bf16_f32 v{P+1}, v{U+2}, v{U+3}
        v_pk_add_f32 v[52:53], v[{U}:{U+1}], v[{U+2}:{U+3}]
        v_mov_b32_dpp v{P+2}, v{P} row_ror:8 row_mask:0xf bank_mask:0xf
        v_mov_b32_dpp v{P+3}, v{P+1} row_ror:8 row_mask:0xf bank_mask:0xf
        v_mov_b32 v{P+4}, v{P}
        v_mov_b32 v{P+5}, v{P+1}
        v_add_f32 v{vL}, v52, v53""")
        fill = [f"v_lshrrev_b32 v14, 1, v15\nv_add_f32_dpp v{vL}, v{vL}, v{vL} row_ror:8 row_mask:0xf bank_mask:0xf",
                f"v_mov_b32 v50, v{vL}\ns_lshl_b32 s40, s{sW}, 12",
                f"v_add_u32 v14, s40, v14\nv_permlane32_swap_b32 v50, v{vL}",
                f"v_add_f32 v{vL}, v{vL}, v50\nv_mov_b32 v50, v{vL}",
                f"s_nop 0",
                f"v_permlane16_swap_b32 v50, v{vL}\nv_add_f32 v{vL}, v{vL}, v50",
                f"ds_write_b64 v14, v[{vM}:{vL}] offset:{L_K + 4096}", ""]
        for dt in range(8):
            b = P + 2*(dt & 1)
            A(f"v_mfma_f32_16x16x32_bf16 v[{vO+4*dt}:{vO+4*dt+3}], v[{vVF+4*dt}:{vVF+4*dt+3}], v[{b}:{b+3}], 0")
            A(fill[dt])
        for k in range(4):
            for r in range(4):
                A(f"v_cndmask_b32 v{vO+8*k+r}, v{vO+8*k+r}, v{vO+8*k+4+r}, s[92:93]")
            A(f"ds_write_b128 v15, v[{vO+8*k}:{vO+8*k+3}] offset:{L_K + 1024*k}")
        self.arrive(C_X, want_old=False)
        A("v_lshlrev_b32 v14, 3, v0")
        self.stamp(11)
        X, ML = 56, 72
        self.lds_spin(C_X, 4, sleep=0, reads="\n".join(
            [f"ds_read_b64 v[{ML+2*w}:{ML+2*w+1}], v14 offset:{L_K + 8192*w + 4096}" for w in range(4)] +
            [f"ds_read_b128 v[{X+4*w}:{X+4*w+3}], v10 offset:{L_K + 8192*w}" for w in range(4)]))
        self.stamp(10)
        A(f"v_max3_f32 v{vM}, v{ML}, v{ML+2}, v{ML+4}\nv_max_f32 v{vM}, v{vM}, v{ML+6}")
        for w in range(4):
            A(f"v_sub_f32 v{ML+2*w}, v{ML+2*w}, v{vM}")
        for w in range(4):
            A(f"v_mul_f32 v{ML+2*w}, s45, v{ML+2*w}")
        for w in range(4):
            A(f"v_exp_f32 v{ML+2*w}, v{ML+2*w}")
        A(f"s_nop 0\nv_mul_f32 v{vL}, v{ML}, v{ML+1}")
        for w in range(4):
            e = ML + 2*w
            for h in (0, 2):
                if w == 0:
                    A(f"v_pk_mul_f32 v[{vS+h}:{vS+h+1}], v[{X+h}:{X+h+1}], v[{e}:{e+1}] op_sel_hi:[1,0]")
                else:
                    A(f"v_pk_fma_f32 v[{vS+h}:{vS+h+1}], v[{X+4*w+h}:{X+4*w+h+1}], v[{e}:{e+1}], v[{vS+h}:{vS+h+1}] op_sel_hi:[1,0,1]")
            if w:
                A(f"v_fmac_f32 v{vL}, v{e}, v{e+1}")
        for r in range(4):
            self.tag(vS + r)
        nml = self.lab("Lnoml")

        def publish(mod):
            if 'noO' not in self.abl:
                A(f"global_store_dwordx4 v8, v[{vS}:{vS+3}], s[26:27] {mod}")
            A(f"s_cmp_lg_u32 s{sW}, 0\ns_cbranch_scc1 {nml}")
            self.tag(vM); self.tag(vL)
            A(f"""
            v_mov_b32 v50, v3
            v_mov_b32 v51, v3
            s_mov_b64 exec, 0xff
            global_store_dwordx4 v9, v[48:51], s[26:27] {mod}""")

        if self.local:
            rem = self.lab("Lremote"); fl = self.lab("Lflagb")
            A(f"s_cmp_lg_u32 s101, 0\ns_cbranch_scc1 {rem}")
            publish("")
            A(f"s_branch {fl}\n{rem}:")
            publish("sc1")
            A(f"{fl}:")
        else:
            publish("sc1")
        A("s_mov_b32 s40, s95")
        if 'noflagB' not in self.abl:
            self.flag_store(self.nrepB)
        A(f"{nml}:")
        self.gate(2, self.gateA)
        self.stamp(5)
        if 'stop4' in self.abl:
            A("s_branch L_adone")
        A(f"""
        s_and_b32 s40, s{sTL}, 7
        s_lshl2_add_u32 s41, s40, s{sW}
        s_lshl_b32 s41, s41, 7
        s_mul_i32 s42, s{sG}, {32*BOP}
        s_add_u32 s41, s41, s42
        s_add_u32 s41, s41, {WS_BO:#x}
        v_lshrrev_b32 v1, 3, v0
        v_mul_u32_u24 v1, {BOP}, v1
        v_and_b32 v2, 7, v0
        v_lshl_add_u32 v1, v2, 4, v1
        v_add_u32 v{vA0}, s41, v1
        v_add_u32 v13, {8*BOP}, v{vA0}
        v_add_u32 v14, {16*BOP}, v{vA0}
        v_add_u32 v15, {24*BOP}, v{vA0}
        s_lshl_b32 s41, s{sG}, 8
        s_add_u32 s40, s40, s41
        s_lshl_b32 s40, s40, 4
        s_add_u32 s40, s40, {WS_BML:#x}
        v_and_b32 v1, 31, v0
        v_lshl_add_u32 v{vA1}, v1, 7, s40
        s_lshl_b32 s40, s{sW}, 7
        v_and_b32 v2, 7, v0
        v_lshrrev_b32 v1, 3, v1
        v_lshl_add_u32 v1, v1, 2, s40
        v_lshl_add_u32 v10, v2, 4, v1
        v_lshrrev_b32 v1, 3, v0
        v_lshl_add_u32 v11, v1, 4, s40
        v_and_b32 v1, 1, v0
        v_lshl_add_u32 v1, v1, 2, v{vJ}
        v_and_b32 v2, 6, v0
        v_lshl_add_u32 v12, v1, 5, v2
        s_lshl_b32 s40, s{sW}, 3
        v_add_u32 v12, s40, v12""")
        nb = self.lab("Lnopollb")
        A(f"""
        s_cmp_ge_u32 s{sW}, 2
        s_cbranch_scc1 {nb}
        s_and_b32 s40, s{sCH}, {self.nrepB-1}
        s_mul_i32 s40, s40, {REPP}
        s_lshl1_add_u32 s41, s{sG}, s{sW}
        s_lshl_b32 s41, s41, 7
        s_add_u32 s40, s40, s41
        s_add_u32 s40, s40, {WS_FLB:#x}""")
        self.flag_poll(16)
        self.arrive(C_B1, want_old=False)
        A(f"{nb}:")
        self.lds_spin(C_B1, 2, sleep=1)
        self.stamp(6)
        rb_ = self.lab("Lgo")
        vO, vML = 56, 72
        A(f"{rb_}:")
        def bloads(mod):
            A(f"global_load_dwordx4 v[{vML}:{vML+3}], v{vA1}, s[26:27] {mod}")
            for n in range(4):
                A(f"global_load_dwordx4 v[{vO+4*n}:{vO+4*n+3}], v{(vA0, 13, 14, 15)[n]}, s[26:27] {mod}")
        if self.local and self.gmod != 'sc1':
            rem = self.lab("Lremote"); fl = self.lab("Lbld")
            A(f"s_cmp_lg_u32 s101, 0\ns_cbranch_scc1 {rem}")
            bloads(self.gmod)
            A(f"s_branch {fl}\n{rem}:")
            bloads("sc1")
            A(f"{fl}:")
        else:
            bloads("sc1")
        if 3 in self.gateA:
            self.gate(3, self.gateA)
            A(f"s_mov_b32 s{sGATE}, 0")
        A("s_waitcnt vmcnt(4)")
        A(f"v_and_b32 v{vT+4}, 0xffff0000, v{vML}\nv_mov_b32 v{vT}, v{vT+4}")
        self.allreduce_in_row(vT, "v_max_f32")
        A(f"""
        v_mov_b32 v{vT+2}, v{vT}
        s_nop 1
        v_permlane16_swap_b32 v{vT+2}, v{vT}
        v_max_f32 v{vT}, v{vT}, v{vT+2}
        v_sub_f32 v{vT+4}, v{vT+4}, v{vT}
        v_mul_f32 v{vT+4}, s45, v{vT+4}
        v_exp_f32 v{vT+4}, v{vT+4}
        s_mov_b32 exec_hi, 0
        ds_write_b32 v10, v{vT+4} offset:{L_WT}
        s_mov_b32 exec_hi, -1
        ds_read_b128 v[{vT+8}:{vT+11}], v11 offset:{L_WT}
        v_mul_f32 v{vT+1}, v{vT+4}, v{vML+1}""")
        self.allreduce_in_row(vT + 1)
        A(f"""
        v_mov_b32 v{vT+2}, v{vT+1}
        s_nop 1
        v_permlane16_swap_b32 v{vT+2}, v{vT+1}
        v_add_f32 v{vT+1}, v{vT+1}, v{vT+2}
        v_rcp_f32 v{vT+1}, v{vT+1}
        s_waitcnt vmcnt(0)""")
        self.tagcheck2([vML] + [vO + 4*n for n in range(4)], vT + 16, vT + 17)
        self.tagtest(vT + 16, rb_)
        self.stamp(7)
        A("s_waitcnt lgkmcnt(0)")
        acc = vT + 4
        for n in range(4):
            w = vT + 8 + (n & ~1)
            os_ = f"op_sel:[0,{n&1}] op_sel_hi:[1,{n&1}]" if n == 0 else f"op_sel:[0,{n&1},0] op_sel_hi:[1,{n&1},1]"
            for h in (0, 2):
                if n == 0:
                    A(f"v_pk_mul_f32 v[{acc+h}:{acc+h+1}], v[{vO+h}:{vO+h+1}], v[{w}:{w+1}] {os_}")
                else:
                    A(f"v_pk_fma_f32 v[{acc+h}:{acc+h+1}], v[{vO+4*n+h}:{vO+4*n+h+1}], v[{w}:{w+1}], v[{acc+h}:{acc+h+1}] {os_}")
        self.reduce_scatter_rows(acc)
        A(f"""
        s_nop 1
        v_add_f32_dpp v{acc}, v{acc}, v{acc} row_ror:8 row_mask:0xf bank_mask:0xf
        v_mov_b32 v1, {C_FO}
        v_mul_f32 v{acc}, v{acc}, v{vT+1}
        v_mov_b32 v2, 1
        v_cvt_pk_bf16_f32 v{acc}, v{acc}, v{acc}""")
        self.exec_set(0x00FF00FF00FF00FF)
        A(f"""
        ds_write_b16 v12, v{acc} offset:{L_VEC}
        s_mov_b64 exec, 1
        ds_add_u32 v1, v2
        s_mov_b64 exec, -1""")
        self.stamp(8)
        A("L_adone:")
        self.write_stamps(14)
        A("s_endpgm")
        A(f"""
        L_ffn:
        s_cmp_eq_u32 s{sW}, 2
        s_cbranch_scc0 L_adone""")
        if 'noffn' in self.abl:
            A("s_branch L_adone")
        self.red_publish(L_RG, 1024, C_G, 64, f"""
            s_sub_u32 s41, s{sUP}, s{sTL}
            s_lshl2_add_u32 s40, s{sTL}, s{sRB}
            s_lshl_b32 s40, s40, 10
            s_add_u32 s40, s40, {WS_BD:#x}
            v_add_u32 v11, s40, v10
            v_lshrrev_b32 v13, 5, v0
            s_lshl_b32 s42, s41, 12
            v_mul_lo_u32 v12, s42, v13
            v_add_u32 v11, v11, v12
            s_lshl_b32 s40, s{sTL}, 5
            s_add_u32 s40, s40, s{sRB}
            s_lshl_b32 s40, s40, 2
            s_lshl_b32 s42, s41, 7
            s_add_u32 s42, s42, 16
            v_mul_lo_u32 v12, s42, v0
            v_add_u32 v12, s40, v12
            s_movk_i32 s40, {WS_FLD:#x}""", 2, 12, sleep=1)
        self.gate(1, self.gateF)
        self.stamp(5)
        A(f"""
        s_lshl_b32 s40, s{sTL}, 12
        s_add_u32 s40, s40, {WS_BD:#x}
        v_add_u32 v{vA0}, s40, v10
        v_and_b32 v1, 1, v0
        v_lshl_add_u32 v1, v1, 1, v13
        v_and_b32 v2, 30, v0
        v_lshl_add_u32 v12, v1, 6, v2
        s_lshl_b32 s40, s{sTL}, 7
        s_add_u32 s40, s40, {WS_FLD:#x}""")
        self.flag_poll(8)
        self.stamp(6)
        rd = self.lab("Lgd")
        G = 56
        A(f"{rd}:")
        for n in range(4):
            A(f"global_load_dwordx4 v[{G+4*n}:{G+4*n+3}], v{vA0}, s[26:27] offset:{1024*n} {self.gmod if 'd' in self.plain else 'sc1'}")
        if 2 in self.gateF:
            self.gate(2, self.gateF)
            A(f"s_mov_b32 s{sGATE}, 0")
        A("s_waitcnt vmcnt(0)")
        self.tagcheck2([G + 4*n for n in range(4)], vT, vT + 1)
        self.tagtest(vT, rd)
        self.stamp(7)
        for h in (0, 2):
            A(f"v_pk_add_f32 v[{G+h}:{G+h+1}], v[{G+h}:{G+h+1}], v[{G+4+h}:{G+5+h}]")
            A(f"v_pk_add_f32 v[{G+8+h}:{G+9+h}], v[{G+8+h}:{G+9+h}], v[{G+12+h}:{G+13+h}]")
        for h in (0, 2):
            A(f"v_pk_add_f32 v[{G+h}:{G+h+1}], v[{G+h}:{G+h+1}], v[{G+8+h}:{G+9+h}]")
        c1 = -2.0 * 0.7978845608028654 * LOG2E
        c2 = c1 * 0.044715
        A(f"""
        v_cvt_pk_bf16_f32 v{G}, v{G}, v{G+1}
        v_cvt_pk_bf16_f32 v{G+1}, v{G+2}, v{G+3}
        s_mov_b32 s46, {f2u(c2):#x}
        v_mov_b32 v{vT+4}, {f2u(c1):#x}
        v_permlane32_swap_b32 v{G}, v{G+1}
        v_lshlrev_b32 v{G+2}, 16, v{G}
        v_and_b32 v{G+3}, 0xffff0000, v{G}
        v_pk_mul_f32 v[{vT}:{vT+1}], v[{G+2}:{G+3}], v[{G+2}:{G+3}]
        v_fma_f32 v{vT}, v{vT}, s46, v{vT+4}
        v_fma_f32 v{vT+1}, v{vT+1}, s46, v{vT+4}
        v_pk_mul_f32 v[{vT}:{vT+1}], v[{vT}:{vT+1}], v[{G+2}:{G+3}]
        v_exp_f32 v{vT}, v{vT}
        v_exp_f32 v{vT+1}, v{vT+1}
        v_lshlrev_b32 v{G+4}, 16, v{G+1}
        v_add_f32 v{vT}, 1.0, v{vT}
        v_add_f32 v{vT+1}, 1.0, v{vT+1}
        v_rcp_f32 v{vT}, v{vT}
        v_rcp_f32 v{vT+1}, v{vT+1}
        v_and_b32 v{G+5}, 0xffff0000, v{G+1}
        v_pk_mul_f32 v[{G+2}:{G+3}], v[{G+2}:{G+3}], v[{vT}:{vT+1}]
        v_cvt_pk_bf16_f32 v{G}, v{G+2}, v{G+3}
        v_lshlrev_b32 v{G+2}, 16, v{G}
        v_and_b32 v{G+3}, 0xffff0000, v{G}
        v_pk_mul_f32 v[{G+2}:{G+3}], v[{G+2}:{G+3}], v[{G+4}:{G+5}]
        v_mov_b32 v1, {C_FO}
        v_cvt_pk_bf16_f32 v{G}, v{G+2}, v{G+3}
        v_mov_b32 v2, 1
        ds_write_b16 v12, v{G} offset:{L_VEC}
        ds_write_b16_d16_hi v12, v{G} offset:{L_VEC+32}
        s_mov_b64 exec, 1
        ds_write_b32 v1, v2
        s_mov_b64 exec, -1""")
        self.stamp(8)
        A("s_branch L_adone")

    def final(self):
        A = self.A
        vI, vJ, vT = 4, 5, 16
        G0, G1 = 56, 60
        A(f"""
        L_final:
        s_mov_b32 s42, s{sR}
        s_lshl_b32 s43, s42, 7
        v_lshl_add_u32 v8, v0, 1, s43
        global_load_ushort v9, v8, s[4:5]""")
        if 'nofinal' in self.abl:
            A("s_branch L_adone")
        A(f"""
        s_and_b32 s41, s{sW}, 3
        s_cmp_lt_u32 s{sW}, 4
        s_cselect_b32 s46, 0, {WS_BF - WS_BS:#x}
        s_cselect_b32 s47, {28*ROWP}, 0
        s_cselect_b32 s93, -1, 0xffff
        s_mov_b32 s92, -1
        s_mul_i32 s40, s41, {ROWP}
        s_add_u32 s40, s40, s46
        s_lshl_b32 s43, s42, 8
        s_add_u32 s40, s40, s43
        s_add_u32 s46, s40, {WS_BS:#x}
        s_add_u32 s47, s47, s46
        v_mul_u32_u24 v1, {4*ROWP}, v{vJ}
        v_lshl_add_u32 v1, v{vI}, 4, v1
        v_add_u32 v6, s46, v1
        v_add_u32 v7, {16*ROWP}, v6
        v_lshl_add_u32 v10, v{vI}, 2, v{vJ}
        v_lshlrev_b32 v10, 5, v10
        s_lshl_b32 s40, s{sW}, 2
        v_add_u32 v10, s40, v10
        v_lshlrev_b32 v11, 5, v0
        v_mov_b32 v12, {C_F1}
        v_mov_b32 v13, 1
        s_waitcnt vmcnt(0)
        v_lshlrev_b32 v9, 16, v9""")
        for r in range(4):
            A(f"v_mov_b32 v{G1+r}, v3")
        l = self.lab("Lfp"); r_ = self.lab("Lfr")
        A(f"""
        s_add_u32 s40, s26, s46
        s_addc_u32 s41, s27, 0
        s_mov_b32 s{sSPIN}, 0
        s_branch {l}
        {r_}:
        s_cmp_lg_u32 s43, 0
        s_cbranch_scc1 {l}
        s_sleep {self.fsleep}
        {l}:""")
        for k in range(7):
            A(f"s_load_dword s{48+k}, s[40:41], {4*k*ROWP} glc")
        A(f"""
        s_load_dword s55, s[26:27], s47 glc
        s_add_u32 s{sSPIN}, s{sSPIN}, 1
        s_cmp_gt_u32 s{sSPIN}, {SPIN_MAX}
        s_cbranch_scc1 L_end
        s_waitcnt lgkmcnt(0)""")
        A("s_mov_b32 s43, 0")
        for k in range(8):
            A(f"s_and_b32 s{48+k}, s{48+k}, s44\ns_cmp_eq_u32 s{48+k}, s{sT10}\ns_addc_u32 s43, s43, 0")
        A(f"s_cmp_ge_u32 s43, {self.fthr}\ns_cbranch_scc0 {r_}")
        self.stamp(9)
        rg = self.lab("Lfg")
        loads = f"""
            s_or_b64 exec, s[48:49], 1
            global_load_dwordx4 v[{G0}:{G0+3}], v6, s[26:27] sc1
            s_or_b64 exec, s[92:93], 1
            global_load_dwordx4 v[{G1}:{G1+3}], v7, s[26:27] sc1
            s_mov_b64 exec, -1"""
        A("s_mov_b64 s[48:49], -1")
        for k in range(self.fdepth - 1):
            A(loads)
        A(f"{rg}:")
        A(loads)
        A(f"s_waitcnt vmcnt({2*(self.fdepth - 1)})")
        for i, k in enumerate((G0, G1)):
            A(f"v_bitop3_b32 v{vT+2*i}, v{k}, v{k+1}, s{sT10} bitop3:0x7e")
            A(f"v_bitop3_b32 v{vT+2*i+1}, v{k+2}, v{k+3}, s{sT10} bitop3:0x7e")
        for i in range(2):
            A(f"v_bitop3_b32 v{vT+2*i}, v{vT+2*i}, v{vT+2*i+1}, s44 bitop3:0xa8")
        R = vT + 12
        A(f"""
        v_cmp_ne_u32 s[48:49], 0, v{vT}
        v_cmp_ne_u32 s[92:93], 0, v{vT+2}
        v_pk_add_f32 v[{R}:{R+1}], v[{G0}:{G0+1}], v[{G1}:{G1+1}]
        v_pk_add_f32 v[{R+2}:{R+3}], v[{G0+2}:{G0+3}], v[{G1+2}:{G1+3}]
        s_add_u32 s{sSPIN}, s{sSPIN}, 1
        s_cmp_gt_u32 s{sSPIN}, {SPIN_MAX}
        s_cbranch_scc1 L_end
        s_or_b64 s[40:41], s[48:49], s[92:93]
        s_cbranch_scc1 {rg}""")
        self.stamp(10)
        self.reduce_scatter_rows(R)
        f = vT + 4
        A(f"""
        ds_write_b32 v10, v{R} offset:{L_RF}
        s_mov_b64 exec, 1
        ds_add_rtn_u32 v2, v12, v13
        s_mov_b64 exec, -1
        ds_read_b128 v[{f}:{f+3}], v11 offset:{L_RF}
        ds_read_b128 v[{f+4}:{f+7}], v11 offset:{L_RF+16}
        s_waitcnt lgkmcnt(0)
        v_readfirstlane_b32 s{sTMP}, v2
        s_cmp_eq_u32 s{sTMP}, 7
        s_cbranch_scc0 L_adone
        v_pk_add_f32 v[{f+4}:{f+5}], v[{f+4}:{f+5}], v[{f+6}:{f+7}]
        v_pk_add_f32 v[{f}:{f+1}], v[{f}:{f+1}], v[{f+2}:{f+3}]
        v_add_f32 v{f+2}, v{f+4}, v{f+5}
        v_add_f32 v{f}, v{f}, v{f+1}
        v_cvt_pk_bf16_f32 v{f}, v{f}, v{f+2}
        v_and_b32 v{f+2}, 0xffff0000, v{f}
        v_mul_f32 v{f+3}, {f2u(-LOG2E):#x}, v{f+2}
        v_exp_f32 v{f+3}, v{f+3}
        v_lshlrev_b32 v{f}, 16, v{f}
        v_add_f32 v{f+3}, 1.0, v{f+3}
        v_rcp_f32 v{f+3}, v{f+3}
        s_nop 0
        v_mul_f32 v{f+2}, v{f+2}, v{f+3}""")
        self.bf16_round(f + 2, f + 2)
        A(f"v_mul_f32 v{f}, v{f}, v{f+2}")
        self.bf16_round(f, f)
        A(f"""
        v_add_f32 v{f}, v{f}, v9
        v_cvt_pk_bf16_f32 v{f}, v{f}, v{f}
        global_store_short v8, v{f}, s[22:23] {self.outmod}""")
        A(f"""
        s_cmp_lg_u32 s{sR}, 0
        s_cbranch_scc1 L_adone
        s_mov_b64 exec, 1
        v_mov_b32 v1, {WS_E}
        v_mov_b32 v2, s{sT32}
        global_store_dword v1, v2, s[26:27]
        s_branch L_adone""")


if __name__ == "__main__":
    import argparse
    ap = argparse.ArgumentParser()
    ap.add_argument("-o", default="recurrent_scan__sliding_block_cached__geglu_ffn__decode.s")

    ap.add_argument("--stamps", action="store_true")
    ap.add_argument("--probe", default=None)
    ap.add_argument("--kw", default="")
    a = ap.parse_args()
    open(a.o, "w").write(Gen(stamps=a.stamps, probe=tuple(map(int, a.probe.split(','))) if a.probe else None, **eval(f'dict({a.kw})')).build())
```

```python
import sys, struct

KN = "recurrent_scan__sliding_block_cached__geglu_ffn__decode_kernel"

def f2u(x):
    return struct.unpack("<I", struct.pack("<f", x))[0]

WS_E   = 0x0
WS_FLD = 0x1000
WS_BML = 0x4000
WS_BQ  = 0x10000
WS_BD  = 0x30000
ROWP   = 4352
WS_BS  = 0x50000
WS_BF  = 0x78000
WS_BO  = 0xA0000
BOP    = 4096 + 128
REPP   = 17 * 128
WS_FLA = 0x130000
WS_FLB = 0x148000
WS_ST  = 0x400000

L_RQ   = 0
L_RG   = L_RQ + 2048
L_QL   = L_RG + 4096
QLP    = 272
L_WT   = L_QL + 2304
L_VEC  = L_WT + 512
L_XQ   = L_VEC + 256
L_XG   = L_XQ + 256
L_RF   = L_XG + 512
L_CNT  = L_RF + 2048
C_Q, C_G, C_X, C_QL, C_P, C_FO, C_GA, C_B1, C_F1 = [L_CNT + 4*i for i in range(9)]
C_XN, C_K, C_V = L_CNT + 48, L_CNT + 64, L_CNT + 80
L_K    = 12288
L_V    = L_K + 32768
assert L_CNT + 128 <= L_K
LDS_BYTES = L_V + 32768
YF, YL = 16, 30

TAGM = 0x3FF
LOG2E = 1.4426950408889634
SPIN_MAX = 1 << 20

sX, sY, sRB, sHQ, sRBQ, sTL, sG, sCH = 28, 29, 30, 31, 32, 33, 34, 35
sT32, sT10, sSPIN, sTMP = 36, 37, 38, 39
sW = 3
sGATE = 100
sTY, sUP, sR = 97, 98, 99
sP = 48
sSTAMP = 64


class Gen0:
    def __init__(self, stamps=False, prefetch=True, probe=None, abl='', xnpos=11, nrepA=4, nrepB=4, psleep=1,
                 WA=(6, 6, 5), WF=(6, 8, 8), pause='gather', fthr=6, wtest=None, fsleep=16, upx=2, layout='mix', plain='', gmod='sc1', local=False, touch=False, fdepth=2, outmod='', gateA=(1, 1), gateF=(0, 0), WAe=None, WFe=None):
        self.gateA, self.gateF = gateA, gateF
        self.WAe, self.WFe = WAe, WFe
        self.local = local
        self.fdepth = fdepth
        self.touch = touch
        self.outmod = outmod
        assert not local or layout != 'mix'
        self.gmod = gmod
        self.layout = layout
        self.plain = plain
        self.fsleep = fsleep
        self.upx = upx
        self.wtest = wtest
        self.fthr = fthr
        self.L = []
        self.stamps = stamps
        self.prefetch = prefetch
        self.probe = probe
        self.abl = abl
        self.xnpos = xnpos
        self.nrepA, self.nrepB = nrepA, nrepB
        self.psleep = psleep
        self.relwait = False
        self.WA, self.WF = WA, WF
        self.pause = pause
        self.nlab = 0

    def A(self, s):
        for line in s.strip("\n").split("\n"):
            if line.strip():
                self.L.append("    " + line.strip() if not line.strip().endswith(":") else line.strip())

    def lab(self, p="L"):
        self.nlab += 1
        return f"{p}_{self.nlab}"

    def stamp(self, k):
        if self.stamps == 'lite' and k not in (0, 10, 14):
            return
        if self.stamps or (self.probe and k in (0, self.probe[2])):
            self.A(f"s_memrealtime s[{sSTAMP+2*k}:{sSTAMP+2*k+1}]")

    def mask(self, reg, val):
        lo, hi = val & 0xFFFFFFFF, val >> 32
        self.A(f"s_mov_b32 {reg[0]}, {lo:#x}\ns_mov_b32 {reg[1]}, {hi:#x}")

    def exec_set(self, val):
        if val == -1:
            self.A("s_mov_b64 exec, -1")
        elif val <= 64:
            self.A(f"s_mov_b64 exec, {val}")
        elif val < (1 << 31):
            self.A(f"s_mov_b64 exec, {val:#x}")
        else:
            self.mask(("exec_lo", "exec_hi"), val)

    def arrive(self, cnt, want_old=True, inc=1):
        self.A(f"""
        s_mov_b64 exec, 1
        v_mov_b32 v1, {cnt}
        v_mov_b32 v2, {inc}""")
        if want_old:
            self.A(f"""
            ds_add_rtn_u32 v2, v1, v2
            s_waitcnt lgkmcnt(0)
            v_readfirstlane_b32 s{sTMP}, v2""")
        else:
            self.A("ds_add_u32 v1, v2")
        self.A("s_mov_b64 exec, -1")

    def lds_spin(self, cnt, val, sleep=1, reads="", low8=False):
        l = self.lab("Lspin"); d = self.lab("Lgot")
        self.A(f"""
        v_mov_b32 v1, {cnt}
        s_mov_b32 s{sSPIN}, 0
        {l}:
        ds_read_b32 v2, v1
        {reads}
        s_add_u32 s{sSPIN}, s{sSPIN}, 1
        s_cmp_gt_u32 s{sSPIN}, {SPIN_MAX}
        s_cbranch_scc1 L_end
        s_waitcnt lgkmcnt(0)
        v_readfirstlane_b32 s{sTMP}, v2""")
        if low8:
            self.A(f"s_lshr_b32 s101, s{sTMP}, 8\ns_and_b32 s{sTMP}, s{sTMP}, 0xff")
        if sleep:
            self.A(f"s_cmp_eq_u32 s{sTMP}, {val}\ns_cbranch_scc1 {d}\ns_sleep {sleep}\ns_branch {l}\n{d}:")
        else:
            self.A(f"s_cmp_eq_u32 s{sTMP}, {val}\ns_cbranch_scc0 {l}")

    def flag_poll(self, n, two=False):
        if 'nopoll' in self.abl:
            return
        l = self.lab("Lpoll"); r = self.lab("Lretry"); d = self.lab("Lflag")
        self.A(f"""
        s_mov_b32 s{sSPIN}, 0
        s_mov_b32 s42, s{sT32}
        s_mov_b32 s43, s{sT32}
        s_branch {l}
        {r}:
        s_sleep {self.psleep}
        {l}:
        s_load_dwordx{n} s[{sP}:{sP+n-1}], s[26:27], s40 glc
        {'s_load_dwordx16 s[4:19], s[26:27], s41 glc' if two else ''}
        s_add_u32 s{sSPIN}, s{sSPIN}, 1
        s_cmp_gt_u32 s{sSPIN}, {SPIN_MAX}
        s_cbranch_scc1 L_end
        s_waitcnt lgkmcnt(0)""")
        for b in ((sP, 4) if two else (sP,)):
            for i in range(0, n, 2):
                self.A(f"s_cmp_eq_u64 s[{b+i}:{b+i+1}], s[42:43]\ns_cbranch_scc0 {r}")
        self.A(f"{d}:")

    def gate(self, k, used):
        if k not in used:
            return
        l = self.lab("Lgate")
        self.A(f"s_cmp_eq_u32 s{sGATE}, {k}\ns_cbranch_scc0 {l}")
        self.arrive(C_GA, want_old=False)
        self.A(f"{l}:")

    def flag_store(self, n, vaddr=None, val=sT32):
        self.exec_set((1 << n) - 1)
        self.A(f"""
        {f'v_mul_u32_u24 v1, {REPP}, v0' if vaddr is None else ''}
        v_add_u32 v1, s40, v{1 if vaddr is None else vaddr}
        v_mov_b32 v2, s{val}
        global_store_dword v1, v2, s[26:27] sc1
        s_mov_b64 exec, -1""")

    def tagcheck(self, regs, vacc, vt):
        first = True
        for r in regs:
            if first:
                self.A(f"v_bitop3_b32 v{vacc}, v{r}, v{r+1}, s{sT10} bitop3:0x7e")
                self.A(f"v_bitop3_b32 v{vt}, v{r+2}, v{r+3}, s{sT10} bitop3:0x7e")
                self.A(f"v_or_b32 v{vacc}, v{vacc}, v{vt}")
                first = False
            else:
                self.A(f"v_bitop3_b32 v{vt}, v{r}, v{r+1}, s{sT10} bitop3:0x7e")
                self.A(f"v_bitop3_b32 v{vt+1}, v{r+2}, v{r+3}, s{sT10} bitop3:0x7e")
                self.A(f"v_or3_b32 v{vacc}, v{vacc}, v{vt}, v{vt+1}")

    def tagcheck2(self, regs, vacc, vt):
        out = []
        for i, r in enumerate(regs):
            d = vacc if i == 0 else vt + (i - 1) % 2
            self.A(f"v_bitop3_b32 v{d}, v{r}, v{r+3}, s{sT10} bitop3:0x7e")
            if i and i % 2 == 0:
                self.A(f"v_or3_b32 v{vacc}, v{vacc}, v{vt}, v{vt+1}")
        if len(regs) % 2 == 0:
            self.A(f"v_or_b32 v{vacc}, v{vacc}, v{vt}")

    def tagtest(self, vacc, retry):
        if 'notag' in self.abl:
            return
        self.A(f"""
        v_and_b32 v{vacc}, {TAGM:#x}, v{vacc}
        v_cmp_ne_u32 vcc, 0, v{vacc}
        {'s_add_u32 s96, s96, 1' if self.stamps else ''}
        s_add_u32 s{sSPIN}, s{sSPIN}, 1
        s_cmp_gt_u32 s{sSPIN}, {SPIN_MAX}
        s_cbranch_scc1 L_end
        s_nop 1
        s_cbranch_vccnz {retry}""")

    def tag(self, r):
        self.A(f"v_bfi_b32 v{r}, s44, v3, v{r}")

    def reduce_scatter_rows(self, a):
        self.A(f"""
        s_nop 1
        v_permlane32_swap_b32 v{a}, v{a+2}
        v_permlane32_swap_b32 v{a+1}, v{a+3}
        v_add_f32 v{a}, v{a}, v{a+2}
        v_add_f32 v{a+1}, v{a+1}, v{a+3}
        s_nop 1
        v_permlane16_swap_b32 v{a}, v{a+1}
        v_add_f32 v{a}, v{a}, v{a+1}""")

    def allreduce_rows(self, a, t, op):
        self.A(f"""
        v_mov_b32 v{t}, v{a}
        s_nop 1
        v_permlane32_swap_b32 v{t}, v{a}
        {op} v{a}, v{a}, v{t}
        v_mov_b32 v{t}, v{a}
        s_nop 1
        v_permlane16_swap_b32 v{t}, v{a}
        {op} v{a}, v{a}, v{t}""")

    def allreduce_in_row(self, a, op="v_add_f32"):
        for m in ("quad_perm:[1,0,3,2]", "quad_perm:[2,3,0,1]", "row_half_mirror", "row_mirror"):
            self.A(f"s_nop 1\n{op}_dpp v{a}, v{a}, v{a} {m} row_mask:0xf bank_mask:0xf")

    def bf16_round(self, d, s):
        self.A(f"v_cvt_pk_bf16_f32 v{d}, v{s}, v{s}\nv_and_b32 v{d}, 0xffff0000, v{d}")

    def build(self):
        A = self.A
        self.L.append(f"; @launch grid=(256,1,1) block=(512,1,1) lds={getattr(self, 'ldsb', None) or LDS_BYTES}")
        self.L.append('.amdgcn_target "amdgcn-amd-amdhsa--gfx950"')
        self.L += [".text", f".globl {KN}", ".p2align 12", ".p2align 8", f".type {KN},@function", f"{KN}:"]
        self.stamp(0)
        A(f"""
        s_cmp_ge_u32 s2, 256
        s_cbranch_scc1 L_end
        s_load_dwordx16 s[4:19], s[0:1], 0
        s_load_dwordx8 s[20:27], s[0:1], 64
        v_lshrrev_b32 v1, 6, v0
        s_and_b32 s{sX}, s2, 7
        s_lshr_b32 s{sY}, s2, 3
        v_readfirstlane_b32 s{sW}, v1""")
        if self.prefetch:
            A(f"""
            s_getpc_b64 s[46:47]
            L_pc:
            s_lshl_b32 s42, s{sY}, 9
            v_add_u32 v1, s42, v0
            v_min_u32 v1, L_codeend-L_pc-4, v1
            s_mov_b64 exec, 1
            global_load_ubyte v55, v1, s[46:47]
            s_mov_b64 exec, -1""")
        A(f"""
        v_and_b32 v0, 63, v0
""")
        if self.layout == 'mix':
            A(f"""
            s_lshr_b32 s{sHQ}, s{sY}, 3
            s_lshl2_add_u32 s{sHQ}, s{sX}, s{sHQ}
            s_and_b32 s{sRBQ}, s{sY}, 7
            s_lshr_b32 s{sG}, s{sX}, 1
            s_and_b32 s{sCH}, s{sX}, 1
            s_lshl4_add_u32 s{sCH}, s{sCH}, s{sY}
            s_lshl4_add_u32 s40, s{sX}, s{sY}
            s_mul_i32 s41, s{sX}, 14
            s_add_u32 s41, s41, s{sY}
            s_sub_u32 s41, s41, {YF}
            s_cmp_lt_u32 s{sY}, {YF}
            s_cselect_b32 s40, s40, s41
            s_cselect_b32 s{sTY}, 0, 1
            s_cmp_ge_u32 s{sY}, {YL}
            s_addc_u32 s{sTY}, s{sTY}, 0
            s_lshr_b32 s{sTL}, s40, 2
            s_and_b32 s{sRB}, s40, 3
            s_xor_b32 s{sUP}, s{sTL}, {self.upx}
            s_lshl1_add_u32 s{sR}, s{sX}, s{sY}
            s_sub_u32 s{sR}, s{sR}, {YL}""")
        else:
            if self.layout == 'odd':
                A(f"s_lshr_b32 s{sG}, s{sX}, 1\ns_and_b32 s{sTY}, s{sX}, 1\ns_xor_b32 s{sTY}, s{sTY}, 1")
            else:
                A(f"s_and_b32 s{sG}, s{sX}, 3\ns_lshr_b32 s{sTY}, s{sX}, 2")
                if self.layout == 'hi':
                    A(f"s_xor_b32 s{sTY}, s{sTY}, 1")
            A(f"""
            s_mov_b32 s{sCH}, s{sY}
            s_and_b32 s{sRB}, s{sY}, 3
            s_lshr_b32 s40, s{sY}, 2
            s_lshl3_add_u32 s{sHQ}, s{sG}, s40
            s_lshl2_add_u32 s{sRBQ}, s{sTY}, s{sRB}
            s_mul_i32 s41, s{sG}, s{sTY}
            s_sub_u32 s{sTL}, s{sHQ}, s41
            s_add_u32 s{sUP}, s40, {self.upx}
            s_cmp_ge_u32 s{sUP}, 7
            s_cselect_b32 s41, 7, 0
            s_sub_u32 s{sUP}, s{sUP}, s41
            s_sub_u32 s{sUP}, s{sUP}, s40
            s_add_u32 s{sUP}, s{sUP}, s{sTL}
            s_lshl2_add_u32 s{sR}, s{sG}, s{sRB}
            s_cmp_eq_u32 s40, 7
            s_cselect_b32 s41, s{sTY}, 0
            s_add_u32 s{sTY}, s{sTY}, s41""")
        A(f"""
        s_cmp_lt_u32 s{sX}, 2
        s_cselect_b32 s40, {self.gateA[0]}, {self.gateA[1]}
        s_cselect_b32 s41, {self.gateF[0]}, {self.gateF[1]}
        s_cmp_eq_u32 s{sTY}, 0
        s_cselect_b32 s{sGATE}, s40, s41
        s_movk_i32 s44, {TAGM:#x}
        v_and_b32 v4, 15, v0
        v_lshrrev_b32 v5, 4, v0""")
        if self.stamps or self.probe:
            A(f"s_mov_b32 s96, 0\ns_mov_b32 s94, s{sW}")
        if self.probe:
            A(f"s_waitcnt lgkmcnt(0)\ns_mov_b32 s{sSTAMP+2*self.probe[2]}, s{sSTAMP}")
        A(f"""
        s_cmp_lt_u32 s{sW}, 4
        s_cbranch_scc1 L_awave""")
        L0 = self.L
        self.L = []
        self.swave()
        cut = self.L.index("L_sdispatch:")
        shead, stail = self.L[:cut], self.L[cut:]
        self.L = L0 + shead
        A("s_branch L_sdispatch\nL_awave:")
        self.awave()
        self.L += stail
        self.final()
        A("L_end:")
        A("s_endpgm")
        self.L.append("L_codeend:")
        nv = getattr(self, 'nvo', None) or 200
        self.L += ['.section .rodata,"a"', ".p2align 6", f".amdhsa_kernel {KN}",
                   f"  .amdhsa_next_free_vgpr {nv}", "  .amdhsa_next_free_sgpr 102", f"  .amdhsa_accum_offset {nv}",
                   "  .amdhsa_group_segment_fixed_size 0", "  .amdhsa_kernarg_size 96", "  .amdhsa_user_sgpr_count 2",
                   "  .amdhsa_user_sgpr_kernarg_segment_ptr 1", "  .amdhsa_system_sgpr_workgroup_id_x 1",
                   "  .amdhsa_float_denorm_mode_32 3", ".end_amdhsa_kernel"]
        return "\n".join(self.L) + "\n"

    def write_stamps(self, n):
        if self.probe:
            wg, wave, k = self.probe[:3]
            ty = self.probe[3] if len(self.probe) > 3 else None
            self.stamp(n)
            d = self.lab("Lprobe_done"); l = self.lab("Lprobe")
            self.A(f"""
            s_waitcnt lgkmcnt(0)
            s_getreg_b32 s41, hwreg(HW_REG_XCC_ID, 0, 4)
            {f's_cmp_eq_u32 s41, {-wg-100}' if wg <= -100 else f"s_cmp_eq_u32 s2, {wg if wg >= 0 else 's2'}"}
            s_cbranch_scc0 {d}
            s_cmp_eq_u32 s94, {wave}
            s_cbranch_scc0 {d}
            s_cmp_eq_u32 s{sTY}, {ty if ty is not None else f's{sTY}'}
            s_cbranch_scc0 {d}
            s_add_u32 s40, s{sSTAMP+2*k}, 4000
            {l}:
            s_memrealtime s[42:43]
            s_waitcnt lgkmcnt(0)
            s_sub_u32 s41, s42, s40
            s_cmp_lt_i32 s41, 0
            s_cbranch_scc1 {l}
            {d}:""")
            return
        if not self.stamps:
            return
        self.stamp(n)
        A = self.A
        A(f"""
        s_waitcnt lgkmcnt(0)
        s_mov_b64 exec, -1
        s_lshl3_add_u32 s40, s2, s94
        s_lshl_b32 s40, s40, 6
        s_add_u32 s40, s40, {WS_ST:#x}
        v_mov_b32 v1, 0""")
        for k in range(n + 1):
            A(f"v_writelane_b32 v1, s{sSTAMP+2*k}, {k}")
        A(f"""
        s_getreg_b32 s41, hwreg(HW_REG_XCC_ID)
        s_and_b32 s41, s41, 0xf
        s_lshl4_add_u32 s41, s96, s41
        v_writelane_b32 v1, s41, 15
        v_lshl_add_u32 v2, v0, 2, s40
        s_mov_b64 exec, 0xffff
        global_store_dword v2, v1, s[26:27]""")

    def swave(self):
        A = self.A
        vI, vJ = 4, 5
        vAq, vA1, vA2, vA3, vAw, vRed, vPub = 6, 7, 8, 9, 10, 11, 14
        vPS, vXQ, vXG, vSEL, aQ, aG, aU, vT = 16, 24, 28, 36, 40, 44, 48, 52
        RING, BIG = 56, 120
        A(f"""
        L_swave:
        s_sub_u32 s{sW}, s{sW}, 4
        s_lshl2_add_u32 s40, s{sRBQ}, s{sW}
        s_lshl_b32 s40, s40, 18
        s_lshl_b32 s41, s{sHQ}, 8
        s_add_u32 s40, s40, s41
        v_lshlrev_b32 v13, 4, v{vI}
        v_lshl_add_u32 v{vAq}, v{vJ}, 13, v13
        v_add_u32 v{vAq}, s40, v{vAq}
        s_mov_b32 s45, 0x8000
        s_waitcnt lgkmcnt(0)""")
        for m in range(8):
            A(f"global_load_dwordx4 v[{RING+4*m}:{RING+4*m+3}], v{vAq}, s[10:11] nt")
            if m < 7:
                A(f"v_add_u32 v{vAq}, s45, v{vAq}")
        A(f"s_load_dword s{sT32}, s[26:27], {WS_E}")
        self.stamp(1)
        A(f"""
        ; wo / down: rows tile*128 + 8*m + (l>>3), columns cb*256 + sw*64 + 8*(l&7)
        v_lshrrev_b32 v12, 3, v0
        v_and_b32 v1, 7, v0
        v_lshlrev_b32 v2, 4, v1
        v_lshl_add_u32 v{vAw}, v12, 11, v2
        s_lshl2_add_u32 s42, s{sRB}, s{sW}
        s_lshl_b32 s40, s42, 7
        s_lshl_b32 s41, s{sTL}, 18
        s_add_u32 s40, s40, s41
        v_add_u32 v{vAw}, s40, v{vAw}
        s_movk_i32 s45, 0x4000
        v_lshl_add_u32 v1, v1, 1, v{vJ}
        s_lshl_b32 s40, s42, 8
        v_lshl_add_u32 v{vPub}, v1, 4, s40
        ; LDS offset of this lane's partial granule: (2*(l&15) + J)*16
        v_lshl_add_u32 v{vRed}, v{vI}, 1, v{vJ}
        v_lshlrev_b32 v{vRed}, 4, v{vRed}
        s_mov_b32 s40, 0xaaaaaaaa
        s_mov_b32 s41, 0xaaaaaaaa
        v_mov_b32 v1, 0x0c0c0100
        v_mov_b32 v2, 0x01000c0c
        v_cndmask_b32 v1, v1, v2, s[40:41]
        v_mov_b32 v2, 0x0c0c0302
        v_mov_b32 v3, 0x03020c0c
        v_cndmask_b32 v2, v2, v3, s[40:41]
        v_mov_b32 v3, 0x0c0c0c0c""")
        for d in range(4):
            m = 0x03030303 << (2*d)
            A(f"""
            s_mov_b32 s40, {m:#x}
            s_mov_b32 s41, {m:#x}
            v_cndmask_b32 v{vPS+d}, v3, v1, s[40:41]
            v_cndmask_b32 v{vPS+4+d}, v3, v2, s[40:41]""")
        A(f"""
        s_barrier
        s_waitcnt lgkmcnt(0)
        s_add_u32 s{sT32}, s{sT32}, 1
        s_and_b32 s{sT10}, s{sT32}, s44
        v_mov_b32 v3, s{sT10}
        s_cmp_ge_u32 s{sTY}, 1
        s_cbranch_scc1 L_s_notattn
        L_sdispatch:""")

        def sel(m, dst, src):
            for d in range(4):
                A(f"v_perm_b32 v{dst+d}, v{src+(m>>1)}, v{src+(m>>1)}, v{vPS+4*(m&1)+d}")

        def mfma(acc, s, w, first):
            c = "0" if first else f"v[{acc}:{acc+3}]"
            A(f"v_mfma_f32_16x16x32_bf16 v[{acc}:{acc+3}], v[{s}:{s+3}], v[{w}:{w+3}], {c}")

        def get_xn(ffn):
            A(f"s_lshl_b32 s41, s{sW}, 2\ns_add_u32 s41, s41, {C_XN}")
            self.lds_spin("s41", 1, sleep=0)
            A(f"""
            s_lshl_b32 s40, s{sW}, 6
            v_lshl_add_u32 v2, v{vJ}, 4, s40
            ds_read_b128 v[{vXQ}:{vXQ+3}], v2 offset:{L_XQ}""")
            if ffn:
                A(f"""
                v_lshlrev_b32 v2, 1, v2
                ds_read_b128 v[{vXG}:{vXG+3}], v2 offset:{L_XG}
                ds_read_b128 v[{vXG+4}:{vXG+7}], v2 offset:{L_XG+16}""")
            A("s_waitcnt lgkmcnt(0)")
            self.stamp(3)
            sel(0, vSEL, vXQ)
            A("s_nop 1")

        def red_write(accs, lbase, shift, cnt):
            A(f"s_lshl_b32 s40, s{sW}, {shift}\nv_add_u32 v1, s40, v{vRed}\ns_mov_b32 exec_hi, 0")
            for i, a in enumerate(accs):
                A(f"ds_write_b128 v1, v[{a}:{a+3}] offset:{lbase + 512*i}")
            self.arrive(cnt, want_old=False)

        def kvflag(c):
            A(f"""
            s_lshl_b32 s40, s{sW}, 2
            s_mov_b64 exec, 1
            v_mov_b32 v1, s40
            v_mov_b32 v2, 1
            ds_write_b32 v1, v2 offset:{c}
            s_mov_b64 exec, -1""")

        def issue(op, i):
            kind, m = op
            slot = RING + 4*(i % 16)
            if kind in "kv":
                va, sb, x = (vA1, 6, 64*(m & 3)) if kind == "k" else (vA2, 8, 128*(m & 1))
                if m % 4 == 0:
                    if i > 8:
                        A(f"s_add_u32 s47, s47, {4096 if m == 4 else L_V - L_K - 4096}")
                    A("s_mov_b32 m0, s47")
                    if m == 4:
                        A(f"v_add_u32 v{va}, 4096, v{va}")
                A(f"v_xor_b32 v1, {x}, v{va}")
                A(f"global_load_lds_dwordx4 v1, s[{sb}:{sb+1}] offset:{1024*(m&3)} nt")
            elif kind in "gu":
                va, sb = (vA1, 16) if kind == "g" else (vA2, 18)
                A(f"global_load_dwordx4 v[{slot}:{slot+3}], v{va}, s[{sb}:{sb+1}] nt")
                if m < 15:
                    A(f"v_add_u32 v{va}, s46, v{va}")
            elif kind in "do":
                sb = 20 if kind == "d" else 12
                A(f"global_load_dwordx4 v[{BIG+4*m}:{BIG+4*m+3}], v{vAw}, s[{sb}:{sb+1}] nt")
                if m < 15:
                    A(f"v_add_u32 v{vAw}, s45, v{vAw}")

        def process(op, i, ffn):
            kind, m = op
            slot = RING + 4*(i % 16)
            if kind == "q":
                mfma(aQ, vSEL, slot, m == 0)
                if m < 7:
                    sel(m + 1, vSEL, vXQ)
                    A("s_nop 1")
                else:
                    if ffn:
                        sel(0, vSEL, vXG)
                        A("s_nop 0")
                    else:
                        A("s_nop 4")
                    red_write([aQ], L_RQ, 9, C_Q)
                    self.stamp(4)
            elif kind in "kv" and m == 7:
                l = self.lab("Lkvf")
                if kind == "v":
                    A(f"s_cmp_lg_u32 s43, 0\ns_cbranch_scc1 {l}")
                kvflag(C_K if kind == "k" else C_V)
                if kind == "v":
                    self.stamp(5)
                    A(f"{l}:")
            elif kind == "g":
                mfma(aG, vSEL, slot, m == 0)
            elif kind == "u":
                mfma(aU, vSEL, slot, m == 0)
                if m < 15:
                    sel(m + 1, vSEL, vXG)
                    A("s_nop 1")
                else:
                    A("s_nop 4")
                    red_write([aG, aU], L_RG, 10, C_G)
                    self.stamp(6)

        def stream(ops, wfun, ffn, start=8, landed=0):
            for i in range(start, len(ops)):
                w = wfun(i)
                A(f"s_waitcnt vmcnt({w-1})")
                issue(ops[i], i)
                if i < self.xnpos:
                    continue
                if i == self.xnpos:
                    get_xn(ffn)
                while landed <= i - w:
                    process(ops[landed], landed, ffn); landed += 1
            return landed

        def drain(ops, landed, upto, ffn):
            n = len(ops)
            while landed < upto:
                if ops[landed][0] in "qgu":
                    A(f"s_waitcnt vmcnt({n - 1 - landed})")
                    process(ops[landed], landed, ffn)
                landed += 1
            return landed

        def final_gemv(val, first, nops, landed, wsb):
            A(f"""
            v_lshlrev_b32 v15, 5, v12
            s_mul_i32 s40, s{sTL}, {ROWP}
            s_add_u32 s40, s40, {wsb:#x}
            v_add_u32 v{vPub}, s40, v{vPub}""")
            rd = f"ds_read_b128 v[{vXG}:{vXG+3}], v15 offset:{L_VEC}\nds_read_b128 v[{vXG+4}:{vXG+7}], v15 offset:{L_VEC+16}"
            if 'noa' not in self.abl and 'nofin' not in self.abl:
                self.lds_spin(C_FO, val, sleep=0, reads=rd)
            else:
                A(rd + "\ns_waitcnt lgkmcnt(0)")
            self.stamp(8)
            self.L.append(".p2align 3")
            late = [m for m in range(16) if first + m >= landed]
            early = [m for m in range(16) if first + m < landed]
            for k, m in enumerate(early):
                sel(m, RING + 4*m, vXG)
                if k:
                    mfma(aQ, RING + 4*early[k-1], BIG + 4*early[k-1], k == 1)
            for k, m in enumerate(late):
                sel(m, RING + 4*m, vXG)
                if k == 0 and early:
                    mfma(aQ, RING + 4*early[-1], BIG + 4*early[-1], len(early) == 1)
            self.stamp(9)
            for k, m in enumerate(late):
                A(f"s_waitcnt vmcnt({nops - 1 - (first + m)})")
                mfma(aQ, RING + 4*m, BIG + 4*m, k == 0 and not early)
            g = vT
            A(f"""
            s_nop 7
            v_permlane32_swap_b32 v{aQ}, v{aQ+2}
            v_permlane32_swap_b32 v{aQ+1}, v{aQ+3}
            s_nop 0
            v_add_f32_dpp v{g}, v{aQ+2}, v{aQ} row_shl:8 row_mask:0xf bank_mask:0xf bound_ctrl:1
            v_add_f32_dpp v{g+1}, v{aQ+3}, v{aQ+1} row_shl:8 row_mask:0xf bank_mask:0xf bound_ctrl:1""")
            self.tag(g); self.tag(g + 1)
            A(f"""
            s_nop 0
            v_permlane32_swap_b32 v{g}, v{g+2}
            v_permlane32_swap_b32 v{g+1}, v{g+3}
            s_mov_b64 exec, 0x00ff00ff
            global_store_dwordx4 v{vPub}, v[{g}:{g+3}], s[26:27] sc1
            s_mov_b64 exec, -1""")

        qops = [("q", m) for m in range(8)]
        A(f"""
        s_lshl_b32 s40, s{sG}, 24
        s_lshl_b32 s41, s{sCH}, 15
        s_add_u32 s40, s40, s41
        s_lshl_b32 s47, s{sW}, 13
        s_add_u32 s40, s40, s47
        s_add_u32 s47, s47, {L_K}
        s_add_u32 s40, s40, {(65536-4096)*256:#x}
        v_xor_b32 v1, v{vI}, v{vJ}
        v_lshlrev_b32 v1, 4, v1
        v_lshl_add_u32 v1, v{vJ}, 8, v1
        v_add_u32 v{vA1}, s40, v1
        v_lshlrev_b32 v1, 1, v{vJ}
        v_xor_b32 v1, v{vI}, v1
        v_lshlrev_b32 v1, 4, v1
        v_lshl_add_u32 v1, v{vJ}, 8, v1
        v_add_u32 v{vA2}, s40, v1""")
        ops = qops + [("k", m) for m in range(8)] + [("v", m) for m in range(8)]
        WA = self.WA
        landed = stream(ops, lambda i: WA[0] if i < 14 else WA[1], False)
        A("s_mov_b32 s43, 0")
        if self.pause and 'noa' not in self.abl:
            go = self.lab("Lgo")
            if 0 in self.gateA:
                A(f"s_cmp_eq_u32 s{sGATE}, 0\ns_cbranch_scc1 {go}")
            A(f"""
            v_mov_b32 v1, {C_GA}
            ds_read_b32 v2, v1
            s_waitcnt lgkmcnt(0)
            v_readfirstlane_b32 s{sTMP}, v2
            s_cmp_eq_u32 s{sTMP}, 4
            s_cbranch_scc1 {go}
            s_waitcnt vmcnt(0)
            s_mov_b32 s43, 1""")
            assert landed >= 16
            kvflag(C_V)
            self.stamp(5)
            self.lds_spin(C_GA, 4, sleep=1)
            A(f"{go}:")
            self.stamp(6)
        ops = ops + [("o", m) for m in range(16)]
        for w3 in ([self.WAe, WA[2]] if self.WAe else [WA[2]]):
            nxt = self.lab("Lsa")
            if self.WAe and w3 == self.WAe:
                A(f"s_cmp_lt_u32 s{sX}, 2\ns_cbranch_scc0 {nxt}")
            l2 = stream(ops, lambda i: w3, False, start=24, landed=landed)
            assert l2 >= 24
            self.stamp(7)
            final_gemv(4, 24, 40, l2, WS_BS)
            self.write_stamps(10)
            A(f"s_endpgm\n{nxt}:")
        A(f"""
        L_s_notattn:
        s_cmp_ge_u32 s{sTY}, 2
        s_cbranch_scc1 L_s_last
        s_lshl2_add_u32 s40, s{sRB}, s{sW}
        s_mul_i32 s40, s40, {64*7168}
        v_mul_u32_u24 v1, 7168, v{vJ}
        v_add3_u32 v1, v1, v13, s40
        s_lshl_b32 s41, s{sTL}, 8
        v_add_u32 v{vA1}, s41, v1
        s_lshl_b32 s41, s{sUP}, 8
        v_add_u32 v{vA2}, s41, v1
        s_movk_i32 s46, {7168*4}""")
        ops = qops + [(k, m) for m in range(16) for k in "gu"] + [("d", m) for m in range(16)]
        WF = self.WF
        landed = stream(ops[:40], lambda i: WF[0] if i < 14 else WF[1], True)
        gated = self.lab("Lsfg")
        if any(self.gateF) and 'noa' not in self.abl:
            A(f"s_cmp_lg_u32 s{sGATE}, 0\ns_cbranch_scc1 {gated}")
        if 0 in self.gateF or 'noa' in self.abl:
            l2 = stream(ops, lambda i: WF[2], True, start=40, landed=landed)
            assert l2 >= 40
            self.stamp(7)
            final_gemv(1, 40, 56, l2, WS_BF)
            self.write_stamps(10)
            A("s_endpgm")
        if any(self.gateF) and 'noa' not in self.abl:
            A(f"{gated}:")
            l2 = drain(ops[:40], landed, 40, True)
            self.lds_spin(C_GA, 1, sleep=1)
            l2 = stream(ops, lambda i: self.WFe or WF[2], True, start=40, landed=l2)
            self.stamp(7)
            final_gemv(1, 40, 56, l2, WS_BF)
            self.write_stamps(10)
            A("s_endpgm")
        A("L_s_last:")
        get_xn(False)
        drain(qops, 0, 8, False)
        A(f"s_add_u32 s{sW}, s{sW}, 4\ns_branch L_final")

    def red_publish(self, lbase, pitch, cnt, nl, addr_code, nrep, flagv=None, sleep=1, val=sT32):
        A = self.A
        t = 16
        A("v_lshlrev_b32 v10, 4, v0")
        A(addr_code)
        self.lds_spin(cnt, 4, sleep=sleep, reads="\n".join(f"ds_read_b128 v[{t+4*k}:{t+4*k+3}], v10 offset:{lbase+pitch*k}" for k in range(4)))
        if nl == 32:
            A("s_mov_b32 exec_hi, 0")
        for h in (0, 2):
            A(f"v_pk_add_f32 v[{t+h}:{t+h+1}], v[{t+h}:{t+h+1}], v[{t+4+h}:{t+5+h}]")
            A(f"v_pk_add_f32 v[{t+8+h}:{t+9+h}], v[{t+8+h}:{t+9+h}], v[{t+12+h}:{t+13+h}]")
        for h in (0, 2):
            A(f"v_pk_add_f32 v[{t+h}:{t+h+1}], v[{t+h}:{t+h+1}], v[{t+8+h}:{t+9+h}]")
        for r in range(4):
            self.tag(t + r)
        A(f"global_store_dwordx4 v11, v[{t}:{t+3}], s[26:27] {'' if ('d' in self.plain and nl == 64) else 'sc1'}")
        if 'w' in self.plain and 'd' in self.plain and nl == 64:
            A("s_waitcnt vmcnt(0)")
        self.flag_store(nrep, flagv, val)

    def awave(self):
        A = self.A
        vKF, vVF, vGT, vU = 56, 184, 216, 232
        vQF, vS = 216, 16
        vI, vJ = 4, 5
        vA0, vA1 = 6, 7
        vT = 16
        x0, xr = 56, 72
        A(f"""
        s_setprio 3
        s_lshl2_add_u32 s40, s{sRB}, s{sW}
        s_lshl_b32 s40, s40, 6
        v_lshlrev_b32 v14, 5, v0
        v_add_lshl_u32 v1, v0, s40, 1
        s_lshl2_add_u32 s40, s{sRBQ}, s{sW}
        s_lshl_b32 s40, s40, 5
        v_and_b32 v15, 31, v0
        v_add_lshl_u32 v15, v15, s40, 1
        v_mov_b32 v10, 0
        v_and_b32 v2, 31, v0
        v_lshlrev_b32 v2, 2, v2
        ds_write_b32 v2, v10 offset:{L_CNT}
        s_waitcnt lgkmcnt(0)
        global_load_dwordx4 v[{xr}:{xr+3}], v14, s[4:5]
        global_load_dwordx4 v[{xr+4}:{xr+7}], v14, s[4:5] offset:16
        global_load_ushort v{xr+8}, v15, s[4:5]
        global_load_ushort v{xr+9}, v1, s[4:5]
        s_load_dword s{sT32}, s[26:27], {WS_E}""")
        if self.touch:
            tf = self.lab("Ltf"); td = self.lab("Ltd")
            A(f"""
            s_cmp_eq_u32 s{sW}, 0
            s_cbranch_scc0 {td}
            s_lshl_b32 s41, s{sTL}, 18
            s_cmp_eq_u32 s{sTY}, 0
            s_cbranch_scc0 {tf}
            s_lshl_b32 s40, s{sG}, 24
            s_add_u32 s40, s40, {(65536-4096)*256:#x}
            s_load_dword s48, s[6:7], s40
            s_load_dword s49, s[8:9], s40
            s_load_dword s50, s[12:13], s41
            s_branch {td}
            {tf}:
            s_load_dword s48, s[22:23], 0
            s_cmp_eq_u32 s{sTY}, 1
            s_cbranch_scc0 {td}
            s_mul_i32 s40, s{sRB}, {256*7168}
            s_add_u32 s42, s40, {255*7168}
            s_load_dword s49, s[16:17], s40
            s_load_dword s50, s[18:19], s40
            s_load_dword s51, s[16:17], s42
            s_load_dword s52, s[18:19], s42
            s_load_dword s53, s[20:21], s41
            {td}:""")
        A("s_barrier")
        self.stamp(1)
        A(f"s_waitcnt vmcnt(0) lgkmcnt(0)")
        self.stamp(11)
        for i in range(8):
            A(f"v_lshlrev_b32 v{x0+2*i}, 16, v{xr+i}\nv_and_b32 v{x0+2*i+1}, 0xffff0000, v{xr+i}")
        A(f"v_pk_add_f32 v[{vT}:{vT+1}], v[{x0}:{x0+1}], v[{x0+2}:{x0+3}]")
        A(f"v_pk_add_f32 v[{vT+2}:{vT+3}], v[{x0+4}:{x0+5}], v[{x0+6}:{x0+7}]")
        for i in range(4, 8, 2):
            A(f"v_pk_add_f32 v[{vT}:{vT+1}], v[{vT}:{vT+1}], v[{x0+2*i}:{x0+2*i+1}]")
            A(f"v_pk_add_f32 v[{vT+2}:{vT+3}], v[{vT+2}:{vT+3}], v[{x0+2*i+2}:{x0+2*i+3}]")
        A(f"v_pk_add_f32 v[{vT}:{vT+1}], v[{vT}:{vT+1}], v[{vT+2}:{vT+3}]")
        A(f"v_add_f32 v{vT}, v{vT}, v{vT+1}")
        self.allreduce_in_row(vT)
        self.allreduce_rows(vT, vT+1, "v_add_f32")
        A(f"v_mul_f32 v{vT}, {f2u(1.0/1024):#x}, v{vT}")
        for i in range(8):
            A(f"v_pk_add_f32 v[{x0+2*i}:{x0+2*i+1}], v[{x0+2*i}:{x0+2*i+1}], v[{vT}:{vT+1}] op_sel_hi:[1,0] neg_lo:[0,1] neg_hi:[0,1]")
        A(f"v_pk_mul_f32 v[{vT+2}:{vT+3}], v[{x0}:{x0+1}], v[{x0}:{x0+1}]")
        A(f"v_pk_mul_f32 v[{vT+4}:{vT+5}], v[{x0+2}:{x0+3}], v[{x0+2}:{x0+3}]")
        for i in range(2, 8):
            d = vT + 2 + 2*(i & 1)
            A(f"v_pk_fma_f32 v[{d}:{d+1}], v[{x0+2*i}:{x0+2*i+1}], v[{x0+2*i}:{x0+2*i+1}], v[{d}:{d+1}]")
        A(f"v_pk_add_f32 v[{vT+2}:{vT+3}], v[{vT+2}:{vT+3}], v[{vT+4}:{vT+5}]")
        A(f"v_add_f32 v{vT+2}, v{vT+2}, v{vT+3}")
        r = xr + 8
        self.bf16_round(vT, vT)
        self.allreduce_in_row(vT+2)
        A(f"""
        v_lshlrev_b32 v{r}, 16, v{r}
        v_lshlrev_b32 v{r+1}, 16, v{r+1}
        v_pk_add_f32 v[{r}:{r+1}], v[{r}:{r+1}], v[{vT}:{vT+1}] op_sel_hi:[1,0] neg_lo:[0,1] neg_hi:[0,1]""")
        self.allreduce_rows(vT+2, vT+3, "v_add_f32")
        A(f"v_mul_f32 v{vT+2}, {f2u(1.0/1024):#x}, v{vT+2}")
        self.bf16_round(vT+2, vT+2)
        A(f"v_add_f32 v{vT+2}, {f2u(1e-5):#x}, v{vT+2}")
        self.bf16_round(vT+2, vT+2)
        A(f"""
        v_sqrt_f32 v{vT+2}, v{vT+2}
        v_cvt_pk_bf16_f32 v{r+1}, v{r}, v{r+1}
        v_lshlrev_b32 v{r}, 16, v{r+1}
        v_and_b32 v{r+1}, 0xffff0000, v{r+1}""")
        self.bf16_round(vT+2, vT+2)
        A(f"""
        v_rcp_f32 v{vT+2}, v{vT+2}
        v_and_b32 v1, 3, v0
        v_lshrrev_b32 v2, 2, v0
        v_lshlrev_b32 v2, 1, v2
        v_pk_mul_f32 v[{r}:{r+1}], v[{r}:{r+1}], v[{vT+2}:{vT+3}] op_sel_hi:[1,0]
        s_lshl_b32 s40, s{sW}, 6
        v_lshl_add_u32 v10, v1, 4, s40
        v_lshl_add_u32 v11, v10, 1, v2
        v_add_u32 v10, v10, v2
        v_cvt_pk_bf16_f32 v{r}, v{r}, v{r+1}
        s_lshl_b32 s40, s{sW}, 2
        v_mov_b32 v2, s40
        v_mov_b32 v1, 1
        ds_write_b16_d16_hi v11, v{r} offset:{L_XG}
        s_mov_b32 exec_hi, 0
        ds_write_b16 v10, v{r} offset:{L_XQ}
        s_mov_b64 exec, 1
        ds_write_b32 v2, v1 offset:{C_XN}
        s_mov_b64 exec, -1
        s_add_u32 s{sT32}, s{sT32}, 1
        s_and_b32 s{sT10}, s{sT32}, s44
        v_mov_b32 v3, s{sT10}""")
        self.stamp(12)
        if self.wtest:
            pre, mod, n = self.wtest
            A(f"s_cmp_eq_u32 s{sW}, 3\ns_cbranch_scc0 L_adone")
            A(f"s_mul_i32 s42, s2, {n*1024}\ns_add_u32 s42, s42, 0x800000\nv_lshl_add_u32 v10, v0, 4, s42")
            if pre == 's':
                A("s_add_u32 s40, s26, s42\ns_addc_u32 s41, s27, 0")
                for i in range(n*16):
                    A(f"s_load_dword s48, s[40:41], {64*i} glc")
                A("s_waitcnt lgkmcnt(0)")
            elif pre:
                for i in range(n):
                    A(f"global_load_dwordx4 v[20:23], v10, s[26:27] offset:{1024*i} {pre[1:]}")
                A("s_waitcnt vmcnt(0)")
            self.lds_spin(C_Q, 4, sleep=1)
            A("s_sleep 64")
            for i in range(n):
                A(f"global_store_dwordx4 v10, v[16:19], s[26:27] offset:{1024*i} {mod}")
        if 'noa' in self.abl:
            A("s_branch L_adone")
        if self.local:
            A(f"""
            s_getreg_b32 s45, hwreg(HW_REG_XCC_ID, 0, 4)
            s_lshl_b32 s45, s45, 28
            s_cmp_eq_u32 s{sTY}, 0
            s_cselect_b32 s45, s45, 0
            s_xor_b32 s45, s45, s{sT32}""")
        nq = self.lab("Lnoq")
        A(f"s_cmp_eq_u32 s{sW}, 3\ns_cbranch_scc0 {nq}")
        self.red_publish(L_RQ, 512, C_Q, 32, f"""
            s_lshl3_add_u32 s41, s{sHQ}, s{sRBQ}
            s_lshl_b32 s40, s41, 9
            s_add_u32 s40, s40, {WS_BQ:#x}
            v_add_u32 v11, s40, v10
            s_lshr_b32 s40, s41, 4
            s_and_b32 s41, s41, 15
            s_lshl_b32 s40, s40, 5
            s_add_u32 s40, s40, s41
            s_lshl_b32 s40, s40, 2
            s_add_u32 s40, s40, {WS_FLA:#x}""", self.nrepA, val=(45 if self.local else sT32))
        self.stamp(13)
        A(f"""
        {nq}:
        s_cmp_ge_u32 s{sTY}, 2
        s_cbranch_scc1 L_final
        s_cmp_ge_u32 s{sTY}, 1
        s_cbranch_scc1 L_ffn""")
        if 'stop1' in self.abl:
            self.arrive(C_GA, want_old=False); A("s_branch L_adone")
        vKF, vVF, vGT, vQF, vO = 56, 88, 120, 152, 168
        vS, U, Z = 16, 24, 28
        A(f"""
        s_lshl2_add_u32 s41, s{sG}, s{sW}
        s_lshl_b32 s40, s41, 13
        s_add_u32 s40, s40, {WS_BQ + 2048:#x}
        v_and_b32 v12, 31, v0
        v_lshrrev_b32 v13, 5, v0
        v_lshlrev_b32 v1, 4, v12
        v_lshl_add_u32 v1, v13, 12, v1
        v_add_u32 v{vA0}, s40, v1
        s_and_b32 s40, s{sCH}, {self.nrepA-1}
        s_mul_i32 s40, s40, {REPP}
        s_lshl_b32 s41, s41, 7
        s_add_u32 s40, s40, s41
        s_add_u32 s95, s40, {WS_FLA:#x}
        s_lshl_b32 s40, s{sW}, 1
        v_add_u32 v13, s40, v13
        v_mul_u32_u24 v13, {QLP}, v13
        v_lshl_add_u32 v13, v12, 3, v13
        v_and_b32 v10, 7, v0
        s_lshl_b32 s40, s{sG}, 5
        s_add_u32 s41, s40, s{sCH}
        s_mul_i32 s41, s41, {BOP}
        s_lshl_b32 s42, s{sW}, 7
        s_add_u32 s41, s41, s42
        s_add_u32 s41, s41, {WS_BO:#x}
        v_lshlrev_b32 v8, 9, v10
        v_bfe_u32 v11, v0, 3, 1
        v_lshl_add_u32 v8, v11, 6, v8
        v_lshl_add_u32 v8, v{vJ}, 4, v8
        v_add_u32 v8, s41, v8
        s_add_u32 s40, s40, s{sCH}
        s_lshl_b32 s40, s40, 7
        s_add_u32 s40, s40, {WS_BML:#x}
        v_lshl_add_u32 v9, v10, 4, s40
        v_mul_u32_u24 v12, {QLP}, v10
        v_lshl_add_u32 v12, v{vJ}, 4, v12
        s_mov_b32 s46, {f2u(128 ** -0.5):#x}
        s_mov_b32 s47, {f2u(128 ** -0.5):#x}
        s_lshl_b32 s40, s{sW}, 13
        v_xor_b32 v14, v{vI}, v{vJ}
        v_lshlrev_b32 v14, 4, v14
        v_lshl_add_u32 v14, v{vI}, 8, v14
        v_add_u32 v14, s40, v14
        v_bfe_u32 v10, v0, 2, 2
        v_lshl_add_u32 v10, v{vJ}, 2, v10
        v_and_b32 v11, 7, v10
        v_lshlrev_b32 v11, 1, v11
        v_bfe_u32 v1, v0, 1, 1
        v_xor_b32 v11, v11, v1
        v_lshlrev_b32 v11, 4, v11
        v_lshl_add_u32 v11, v10, 8, v11
        v_and_b32 v1, 1, v0
        v_lshl_add_u32 v11, v1, 3, v11
        s_add_u32 s41, s40, {L_V}
        v_add_u32 v11, s41, v11
        ; exchange area (this wave's K rows, dead once the fragments are in registers)
        v_lshl_add_u32 v15, v0, 4, s40
        s_lshl_b32 s41, s{sW}, 10
        v_lshl_add_u32 v10, v0, 4, s41
        s_lshl_b32 s41, s{sW}, 2
        s_add_u32 s41, s41, {C_K}""")
        self.mask(("s92", "s93"), 0xFF00FF00FF00FF00)
        self.lds_spin("s41", 1, sleep=1)
        for s in range(4):
            if s:
                A(f"v_xor_b32 v2, {64*s}, v14")
            for t in range(2):
                r = vKF + 16*t + 4*s
                A(f"ds_read_b128 v[{r}:{r+3}], v{2 if s else 14} offset:{L_K + 4096*t}")
        self.stamp(3)
        A("s_mov_b32 s40, s95")
        if self.local:
            l = self.lab("Lpoll"); r = self.lab("Lretry")
            A(f"""
            s_mov_b32 s{sSPIN}, 0
            s_mov_b32 s42, s{sT32}
            s_mov_b32 s43, s{sT32}
            s_mov_b32 s4, s45
            s_mov_b32 s5, s45
            s_branch {l}
            {r}:
            s_sleep {self.psleep}
            {l}:
            s_load_dwordx16 s[{sP}:{sP+15}], s[26:27], s40 glc
            s_add_u32 s{sSPIN}, s{sSPIN}, 1
            s_cmp_gt_u32 s{sSPIN}, {SPIN_MAX}
            s_cbranch_scc1 L_end
            s_waitcnt lgkmcnt(0)""")
            for i in range(8):
                A(f"s_xor_b64 s[{sP+2*i}:{sP+2*i+1}], s[{sP+2*i}:{sP+2*i+1}], s[{'4:5' if (i & 2) == 0 else '42:43'}]")
            for step in (2, 4, 8):
                for i in range(0, 16, 2*step):
                    A(f"s_or_b64 s[{sP+i}:{sP+i+1}], s[{sP+i}:{sP+i+1}], s[{sP+i+step}:{sP+i+step+1}]")
            A(f"""
            s_or_b32 s{sP}, s{sP}, s{sP+1}
            s_and_b32 s{sP+1}, s{sP}, 0x0fffffff
            s_cbranch_scc1 {r}
            s_cmp_lg_u32 s{sP}, 0
            s_cselect_b32 s101, 0x101, 1""")
        else:
            self.flag_poll(16)
        self.stamp(2)
        if 'stop2' in self.abl:
            self.arrive(C_GA, want_old=False); A("s_branch L_adone")
        rq = self.lab("Lgq")
        A(f"s_mov_b32 s45, 0\n{rq}:")
        for n in range(8):
            A(f"global_load_dwordx4 v[{vGT+4*n}:{vGT+4*n+3}], v{vA0}, s[26:27] offset:{512*n - 2048} sc1")
        skip = self.lab("Lkvdone")
        A(f"s_cmp_lg_u32 s45, 0\ns_cbranch_scc1 {skip}\ns_mov_b32 s45, 1")
        self.gate(1, self.gateA)
        A(f"s_lshl_b32 s41, s{sW}, 2\ns_add_u32 s41, s41, {C_V}")
        self.lds_spin("s41", 1, sleep=0)
        for dt in range(8):
            if dt:
                A(f"v_xor_b32 v14, {32*dt}, v11")
            for t in range(2):
                r = vVF + 4*dt + 2*t
                A(f"ds_read_b64_tr_b16 v[{r}:{r+1}], v{14 if dt else 11} offset:{4096*t}")
        A(f"""
        s_lshr_b32 s40, s{sCH}, 4
        s_lshl1_add_u32 s40, s{sG}, s40
        s_lshl_b32 s40, s40, 5
        s_and_b32 s41, s{sCH}, 15
        s_add_u32 s40, s40, s41
        s_lshl_b32 s40, s40, 2
        s_add_u32 s95, s40, {WS_FLB:#x}""")
        A(f"s_mov_b32 s{sSPIN}, 0\n{skip}:")
        A("s_waitcnt vmcnt(0)")
        self.tagcheck2([vGT+4*n for n in range(8)], vT, vT+1)
        self.tagtest(vT, rq)
        self.stamp(4)
        if 'stop3' in self.abl:
            A("s_branch L_adone")
        for step in (4, 8, 16):
            for b in range(0, 32, 2*step):
                for h in (0, 2):
                    A(f"v_pk_add_f32 v[{vGT+b+h}:{vGT+b+h+1}], v[{vGT+b+h}:{vGT+b+h+1}], v[{vGT+b+step+h}:{vGT+b+step+h+1}]")
        A(f"""
        v_cvt_pk_bf16_f32 v{vGT}, v{vGT}, v{vGT+1}
        v_cvt_pk_bf16_f32 v{vGT+1}, v{vGT+2}, v{vGT+3}
        s_mov_b32 s45, {f2u(LOG2E):#x}
        ds_write_b64 v13, v[{vGT}:{vGT+1}] offset:{L_QL}""")
        self.arrive(C_QL, want_old=False, inc=("s101" if self.local else 1))
        self.stamp(1)
        self.lds_spin(C_QL, 4, sleep=0, low8=self.local,
                      reads="\n".join(f"ds_read_b128 v[{vQF+4*s}:{vQF+4*s+3}], v12 offset:{L_QL + 64*s}" for s in range(4)))
        self.stamp(9)
        for s in range(4):
            for t in range(2):
                c = "0" if s == 0 else f"v[{vS+4*t}:{vS+4*t+3}]"
                r = vKF + 16*t + 4*s
                A(f"v_mfma_f32_16x16x32_bf16 v[{vS+4*t}:{vS+4*t+3}], v[{r}:{r+3}], v[{vQF+4*s}:{vQF+4*s+3}], {c}")
        A("s_nop 7")
        for k in range(4):
            A(f"v_cndmask_b32 v{U+k}, v{vS+k}, v{vS+4+k}, s[92:93]")
        for rnd in range(2):
            for p in range(2):
                A(f"v_cvt_pk_bf16_f32 v{Z+p}, v{U+2*p}, v{U+2*p+1}")
            for p in range(2):
                A(f"v_lshlrev_b32 v{U+2*p}, 16, v{Z+p}\nv_and_b32 v{U+2*p+1}, 0xffff0000, v{Z+p}")
            if rnd == 0:
                for p in range(2):
                    A(f"v_pk_mul_f32 v[{U+2*p}:{U+2*p+1}], v[{U+2*p}:{U+2*p+1}], s[46:47]")
        vM, vL = 48, 49
        A(f"""
        v_max3_f32 v{vM}, v{U}, v{U+1}, v{U+2}
        v_max_f32 v{vM}, v{vM}, v{U+3}
        s_nop 1
        v_max_f32_dpp v{vM}, v{vM}, v{vM} row_ror:8 row_mask:0xf bank_mask:0xf""")
        self.allreduce_rows(vM, 50, "v_max_f32")
        A(f"v_mul_f32 v50, s45, v{vM}")
        for k in range(4):
            A(f"v_fma_f32 v{U+k}, v{U+k}, s45, -v50")
        for k in range(4):
            A(f"v_exp_f32 v{U+k}, v{U+k}")
        P = 32
        A(f"""
        s_nop 0
        v_cvt_pk_bf16_f32 v{P}, v{U}, v{U+1}
        v_cvt_pk_bf16_f32 v{P+1}, v{U+2}, v{U+3}
        v_pk_add_f32 v[52:53], v[{U}:{U+1}], v[{U+2}:{U+3}]
        v_mov_b32_dpp v{P+2}, v{P} row_ror:8 row_mask:0xf bank_mask:0xf
        v_mov_b32_dpp v{P+3}, v{P+1} row_ror:8 row_mask:0xf bank_mask:0xf
        v_mov_b32 v{P+4}, v{P}
        v_mov_b32 v{P+5}, v{P+1}
        v_add_f32 v{vL}, v52, v53""")
        fill = [f"v_lshrrev_b32 v14, 1, v15\nv_add_f32_dpp v{vL}, v{vL}, v{vL} row_ror:8 row_mask:0xf bank_mask:0xf",
                f"v_mov_b32 v50, v{vL}\ns_lshl_b32 s40, s{sW}, 12",
                f"v_add_u32 v14, s40, v14\nv_permlane32_swap_b32 v50, v{vL}",
                f"v_add_f32 v{vL}, v{vL}, v50\nv_mov_b32 v50, v{vL}",
                f"s_nop 0",
                f"v_permlane16_swap_b32 v50, v{vL}\nv_add_f32 v{vL}, v{vL}, v50",
                f"ds_write_b64 v14, v[{vM}:{vL}] offset:{L_K + 4096}", ""]
        for dt in range(8):
            b = P + 2*(dt & 1)
            A(f"v_mfma_f32_16x16x32_bf16 v[{vO+4*dt}:{vO+4*dt+3}], v[{vVF+4*dt}:{vVF+4*dt+3}], v[{b}:{b+3}], 0")
            A(fill[dt])
        for k in range(4):
            for r in range(4):
                A(f"v_cndmask_b32 v{vO+8*k+r}, v{vO+8*k+r}, v{vO+8*k+4+r}, s[92:93]")
            A(f"ds_write_b128 v15, v[{vO+8*k}:{vO+8*k+3}] offset:{L_K + 1024*k}")
        self.arrive(C_X, want_old=False)
        A("v_lshlrev_b32 v14, 3, v0")
        self.stamp(11)
        X, ML = 56, 72
        self.lds_spin(C_X, 4, sleep=0, reads="\n".join(
            [f"ds_read_b64 v[{ML+2*w}:{ML+2*w+1}], v14 offset:{L_K + 8192*w + 4096}" for w in range(4)] +
            [f"ds_read_b128 v[{X+4*w}:{X+4*w+3}], v10 offset:{L_K + 8192*w}" for w in range(4)]))
        self.stamp(10)
        A(f"v_max3_f32 v{vM}, v{ML}, v{ML+2}, v{ML+4}\nv_max_f32 v{vM}, v{vM}, v{ML+6}")
        for w in range(4):
            A(f"v_sub_f32 v{ML+2*w}, v{ML+2*w}, v{vM}")
        for w in range(4):
            A(f"v_mul_f32 v{ML+2*w}, s45, v{ML+2*w}")
        for w in range(4):
            A(f"v_exp_f32 v{ML+2*w}, v{ML+2*w}")
        A(f"s_nop 0\nv_mul_f32 v{vL}, v{ML}, v{ML+1}")
        for w in range(4):
            e = ML + 2*w
            for h in (0, 2):
                if w == 0:
                    A(f"v_pk_mul_f32 v[{vS+h}:{vS+h+1}], v[{X+h}:{X+h+1}], v[{e}:{e+1}] op_sel_hi:[1,0]")
                else:
                    A(f"v_pk_fma_f32 v[{vS+h}:{vS+h+1}], v[{X+4*w+h}:{X+4*w+h+1}], v[{e}:{e+1}], v[{vS+h}:{vS+h+1}] op_sel_hi:[1,0,1]")
            if w:
                A(f"v_fmac_f32 v{vL}, v{e}, v{e+1}")
        for r in range(4):
            self.tag(vS + r)
        nml = self.lab("Lnoml")

        def publish(mod):
            if 'noO' not in self.abl:
                A(f"global_store_dwordx4 v8, v[{vS}:{vS+3}], s[26:27] {mod}")
            A(f"s_cmp_lg_u32 s{sW}, 0\ns_cbranch_scc1 {nml}")
            self.tag(vM); self.tag(vL)
            A(f"""
            v_mov_b32 v50, v3
            v_mov_b32 v51, v3
            s_mov_b64 exec, 0xff
            global_store_dwordx4 v9, v[48:51], s[26:27] {mod}""")

        if self.local:
            rem = self.lab("Lremote"); fl = self.lab("Lflagb")
            A(f"s_cmp_lg_u32 s101, 0\ns_cbranch_scc1 {rem}")
            publish("")
            A(f"s_branch {fl}\n{rem}:")
            publish("sc1")
            A(f"{fl}:")
        else:
            publish("sc1")
        A("s_mov_b32 s40, s95")
        if 'noflagB' not in self.abl:
            self.flag_store(self.nrepB)
        A(f"{nml}:")
        self.gate(2, self.gateA)
        self.stamp(5)
        if 'stop4' in self.abl:
            A("s_branch L_adone")
        A(f"""
        s_and_b32 s40, s{sTL}, 7
        s_lshl2_add_u32 s41, s40, s{sW}
        s_lshl_b32 s41, s41, 7
        s_mul_i32 s42, s{sG}, {32*BOP}
        s_add_u32 s41, s41, s42
        s_add_u32 s41, s41, {WS_BO:#x}
        v_lshrrev_b32 v1, 3, v0
        v_mul_u32_u24 v1, {BOP}, v1
        v_and_b32 v2, 7, v0
        v_lshl_add_u32 v1, v2, 4, v1
        v_add_u32 v{vA0}, s41, v1
        v_add_u32 v13, {8*BOP}, v{vA0}
        v_add_u32 v14, {16*BOP}, v{vA0}
        v_add_u32 v15, {24*BOP}, v{vA0}
        s_lshl_b32 s41, s{sG}, 8
        s_add_u32 s40, s40, s41
        s_lshl_b32 s40, s40, 4
        s_add_u32 s40, s40, {WS_BML:#x}
        v_and_b32 v1, 31, v0
        v_lshl_add_u32 v{vA1}, v1, 7, s40
        s_lshl_b32 s40, s{sW}, 7
        v_and_b32 v2, 7, v0
        v_lshrrev_b32 v1, 3, v1
        v_lshl_add_u32 v1, v1, 2, s40
        v_lshl_add_u32 v10, v2, 4, v1
        v_lshrrev_b32 v1, 3, v0
        v_lshl_add_u32 v11, v1, 4, s40
        v_and_b32 v1, 1, v0
        v_lshl_add_u32 v1, v1, 2, v{vJ}
        v_and_b32 v2, 6, v0
        v_lshl_add_u32 v12, v1, 5, v2
        s_lshl_b32 s40, s{sW}, 3
        v_add_u32 v12, s40, v12""")
        nb = self.lab("Lnopollb")
        A(f"""
        s_cmp_ge_u32 s{sW}, 2
        s_cbranch_scc1 {nb}
        s_and_b32 s40, s{sCH}, {self.nrepB-1}
        s_mul_i32 s40, s40, {REPP}
        s_lshl1_add_u32 s41, s{sG}, s{sW}
        s_lshl_b32 s41, s41, 7
        s_add_u32 s40, s40, s41
        s_add_u32 s40, s40, {WS_FLB:#x}""")
        self.flag_poll(16)
        self.arrive(C_B1, want_old=False)
        A(f"{nb}:")
        self.lds_spin(C_B1, 2, sleep=1)
        self.stamp(6)
        rb_ = self.lab("Lgo")
        vO, vML = 56, 72
        A(f"{rb_}:")
        def bloads(mod):
            A(f"global_load_dwordx4 v[{vML}:{vML+3}], v{vA1}, s[26:27] {mod}")
            for n in range(4):
                A(f"global_load_dwordx4 v[{vO+4*n}:{vO+4*n+3}], v{(vA0, 13, 14, 15)[n]}, s[26:27] {mod}")
        if self.local and self.gmod != 'sc1':
            rem = self.lab("Lremote"); fl = self.lab("Lbld")
            A(f"s_cmp_lg_u32 s101, 0\ns_cbranch_scc1 {rem}")
            bloads(self.gmod)
            A(f"s_branch {fl}\n{rem}:")
            bloads("sc1")
            A(f"{fl}:")
        else:
            bloads("sc1")
        if 3 in self.gateA:
            self.gate(3, self.gateA)
            A(f"s_mov_b32 s{sGATE}, 0")
        A("s_waitcnt vmcnt(4)")
        A(f"v_and_b32 v{vT+4}, 0xffff0000, v{vML}\nv_mov_b32 v{vT}, v{vT+4}")
        self.allreduce_in_row(vT, "v_max_f32")
        A(f"""
        v_mov_b32 v{vT+2}, v{vT}
        s_nop 1
        v_permlane16_swap_b32 v{vT+2}, v{vT}
        v_max_f32 v{vT}, v{vT}, v{vT+2}
        v_sub_f32 v{vT+4}, v{vT+4}, v{vT}
        v_mul_f32 v{vT+4}, s45, v{vT+4}
        v_exp_f32 v{vT+4}, v{vT+4}
        s_mov_b32 exec_hi, 0
        ds_write_b32 v10, v{vT+4} offset:{L_WT}
        s_mov_b32 exec_hi, -1
        ds_read_b128 v[{vT+8}:{vT+11}], v11 offset:{L_WT}
        v_mul_f32 v{vT+1}, v{vT+4}, v{vML+1}""")
        self.allreduce_in_row(vT + 1)
        A(f"""
        v_mov_b32 v{vT+2}, v{vT+1}
        s_nop 1
        v_permlane16_swap_b32 v{vT+2}, v{vT+1}
        v_add_f32 v{vT+1}, v{vT+1}, v{vT+2}
        v_rcp_f32 v{vT+1}, v{vT+1}
        s_waitcnt vmcnt(0)""")
        self.tagcheck2([vML] + [vO + 4*n for n in range(4)], vT + 16, vT + 17)
        self.tagtest(vT + 16, rb_)
        self.stamp(7)
        A("s_waitcnt lgkmcnt(0)")
        acc = vT + 4
        for n in range(4):
            w = vT + 8 + (n & ~1)
            os_ = f"op_sel:[0,{n&1}] op_sel_hi:[1,{n&1}]" if n == 0 else f"op_sel:[0,{n&1},0] op_sel_hi:[1,{n&1},1]"
            for h in (0, 2):
                if n == 0:
                    A(f"v_pk_mul_f32 v[{acc+h}:{acc+h+1}], v[{vO+h}:{vO+h+1}], v[{w}:{w+1}] {os_}")
                else:
                    A(f"v_pk_fma_f32 v[{acc+h}:{acc+h+1}], v[{vO+4*n+h}:{vO+4*n+h+1}], v[{w}:{w+1}], v[{acc+h}:{acc+h+1}] {os_}")
        self.reduce_scatter_rows(acc)
        A(f"""
        s_nop 1
        v_add_f32_dpp v{acc}, v{acc}, v{acc} row_ror:8 row_mask:0xf bank_mask:0xf
        v_mov_b32 v1, {C_FO}
        v_mul_f32 v{acc}, v{acc}, v{vT+1}
        v_mov_b32 v2, 1
        v_cvt_pk_bf16_f32 v{acc}, v{acc}, v{acc}""")
        self.exec_set(0x00FF00FF00FF00FF)
        A(f"""
        ds_write_b16 v12, v{acc} offset:{L_VEC}
        s_mov_b64 exec, 1
        ds_add_u32 v1, v2
        s_mov_b64 exec, -1""")
        self.stamp(8)
        A("L_adone:")
        self.write_stamps(14)
        A("s_endpgm")
        A(f"""
        L_ffn:
        s_cmp_eq_u32 s{sW}, 2
        s_cbranch_scc0 L_adone""")
        if 'noffn' in self.abl:
            A("s_branch L_adone")
        self.red_publish(L_RG, 1024, C_G, 64, f"""
            s_sub_u32 s41, s{sUP}, s{sTL}
            s_lshl2_add_u32 s40, s{sTL}, s{sRB}
            s_lshl_b32 s40, s40, 10
            s_add_u32 s40, s40, {WS_BD:#x}
            v_add_u32 v11, s40, v10
            v_lshrrev_b32 v13, 5, v0
            s_lshl_b32 s42, s41, 12
            v_mul_lo_u32 v12, s42, v13
            v_add_u32 v11, v11, v12
            s_lshl_b32 s40, s{sTL}, 5
            s_add_u32 s40, s40, s{sRB}
            s_lshl_b32 s40, s40, 2
            s_lshl_b32 s42, s41, 7
            s_add_u32 s42, s42, 16
            v_mul_lo_u32 v12, s42, v0
            v_add_u32 v12, s40, v12
            s_movk_i32 s40, {WS_FLD:#x}""", 2, 12, sleep=1)
        self.gate(1, self.gateF)
        self.stamp(5)
        A(f"""
        s_lshl_b32 s40, s{sTL}, 12
        s_add_u32 s40, s40, {WS_BD:#x}
        v_add_u32 v{vA0}, s40, v10
        v_and_b32 v1, 1, v0
        v_lshl_add_u32 v1, v1, 1, v13
        v_and_b32 v2, 30, v0
        v_lshl_add_u32 v12, v1, 6, v2
        s_lshl_b32 s40, s{sTL}, 7
        s_add_u32 s40, s40, {WS_FLD:#x}""")
        self.flag_poll(8)
        self.stamp(6)
        rd = self.lab("Lgd")
        G = 56
        A(f"{rd}:")
        for n in range(4):
            A(f"global_load_dwordx4 v[{G+4*n}:{G+4*n+3}], v{vA0}, s[26:27] offset:{1024*n} {self.gmod if 'd' in self.plain else 'sc1'}")
        if 2 in self.gateF:
            self.gate(2, self.gateF)
            A(f"s_mov_b32 s{sGATE}, 0")
        A("s_waitcnt vmcnt(0)")
        self.tagcheck2([G + 4*n for n in range(4)], vT, vT + 1)
        self.tagtest(vT, rd)
        self.stamp(7)
        for h in (0, 2):
            A(f"v_pk_add_f32 v[{G+h}:{G+h+1}], v[{G+h}:{G+h+1}], v[{G+4+h}:{G+5+h}]")
            A(f"v_pk_add_f32 v[{G+8+h}:{G+9+h}], v[{G+8+h}:{G+9+h}], v[{G+12+h}:{G+13+h}]")
        for h in (0, 2):
            A(f"v_pk_add_f32 v[{G+h}:{G+h+1}], v[{G+h}:{G+h+1}], v[{G+8+h}:{G+9+h}]")
        c1 = -2.0 * 0.7978845608028654 * LOG2E
        c2 = c1 * 0.044715
        A(f"""
        v_cvt_pk_bf16_f32 v{G}, v{G}, v{G+1}
        v_cvt_pk_bf16_f32 v{G+1}, v{G+2}, v{G+3}
        s_mov_b32 s46, {f2u(c2):#x}
        v_mov_b32 v{vT+4}, {f2u(c1):#x}
        v_permlane32_swap_b32 v{G}, v{G+1}
        v_lshlrev_b32 v{G+2}, 16, v{G}
        v_and_b32 v{G+3}, 0xffff0000, v{G}
        v_pk_mul_f32 v[{vT}:{vT+1}], v[{G+2}:{G+3}], v[{G+2}:{G+3}]
        v_fma_f32 v{vT}, v{vT}, s46, v{vT+4}
        v_fma_f32 v{vT+1}, v{vT+1}, s46, v{vT+4}
        v_pk_mul_f32 v[{vT}:{vT+1}], v[{vT}:{vT+1}], v[{G+2}:{G+3}]
        v_exp_f32 v{vT}, v{vT}
        v_exp_f32 v{vT+1}, v{vT+1}
        v_lshlrev_b32 v{G+4}, 16, v{G+1}
        v_add_f32 v{vT}, 1.0, v{vT}
        v_add_f32 v{vT+1}, 1.0, v{vT+1}
        v_rcp_f32 v{vT}, v{vT}
        v_rcp_f32 v{vT+1}, v{vT+1}
        v_and_b32 v{G+5}, 0xffff0000, v{G+1}
        v_pk_mul_f32 v[{G+2}:{G+3}], v[{G+2}:{G+3}], v[{vT}:{vT+1}]
        v_cvt_pk_bf16_f32 v{G}, v{G+2}, v{G+3}
        v_lshlrev_b32 v{G+2}, 16, v{G}
        v_and_b32 v{G+3}, 0xffff0000, v{G}
        v_pk_mul_f32 v[{G+2}:{G+3}], v[{G+2}:{G+3}], v[{G+4}:{G+5}]
        v_mov_b32 v1, {C_FO}
        v_cvt_pk_bf16_f32 v{G}, v{G+2}, v{G+3}
        v_mov_b32 v2, 1
        ds_write_b16 v12, v{G} offset:{L_VEC}
        ds_write_b16_d16_hi v12, v{G} offset:{L_VEC+32}
        s_mov_b64 exec, 1
        ds_write_b32 v1, v2
        s_mov_b64 exec, -1""")
        self.stamp(8)
        A("s_branch L_adone")

    def final(self):
        A = self.A
        vI, vJ, vT = 4, 5, 16
        G0, G1 = 56, 60
        A(f"""
        L_final:
        s_mov_b32 s42, s{sR}
        s_lshl_b32 s43, s42, 7
        v_lshl_add_u32 v8, v0, 1, s43
        global_load_ushort v9, v8, s[4:5]""")
        if 'nofinal' in self.abl:
            A("s_branch L_adone")
        A(f"""
        s_and_b32 s41, s{sW}, 3
        s_cmp_lt_u32 s{sW}, 4
        s_cselect_b32 s46, 0, {WS_BF - WS_BS:#x}
        s_cselect_b32 s47, {28*ROWP}, 0
        s_cselect_b32 s93, -1, 0xffff
        s_mov_b32 s92, -1
        s_mul_i32 s40, s41, {ROWP}
        s_add_u32 s40, s40, s46
        s_lshl_b32 s43, s42, 8
        s_add_u32 s40, s40, s43
        s_add_u32 s46, s40, {WS_BS:#x}
        s_add_u32 s47, s47, s46
        v_mul_u32_u24 v1, {4*ROWP}, v{vJ}
        v_lshl_add_u32 v1, v{vI}, 4, v1
        v_add_u32 v6, s46, v1
        v_add_u32 v7, {16*ROWP}, v6
        v_lshl_add_u32 v10, v{vI}, 2, v{vJ}
        v_lshlrev_b32 v10, 5, v10
        s_lshl_b32 s40, s{sW}, 2
        v_add_u32 v10, s40, v10
        v_lshlrev_b32 v11, 5, v0
        v_mov_b32 v12, {C_F1}
        v_mov_b32 v13, 1
        s_waitcnt vmcnt(0)
        v_lshlrev_b32 v9, 16, v9""")
        for r in range(4):
            A(f"v_mov_b32 v{G1+r}, v3")
        l = self.lab("Lfp"); r_ = self.lab("Lfr")
        A(f"""
        s_add_u32 s40, s26, s46
        s_addc_u32 s41, s27, 0
        s_mov_b32 s{sSPIN}, 0
        s_branch {l}
        {r_}:
        s_cmp_lg_u32 s43, 0
        s_cbranch_scc1 {l}
        s_sleep {self.fsleep}
        {l}:""")
        for k in range(7):
            A(f"s_load_dword s{48+k}, s[40:41], {4*k*ROWP} glc")
        A(f"""
        s_load_dword s55, s[26:27], s47 glc
        s_add_u32 s{sSPIN}, s{sSPIN}, 1
        s_cmp_gt_u32 s{sSPIN}, {SPIN_MAX}
        s_cbranch_scc1 L_end
        s_waitcnt lgkmcnt(0)""")
        A("s_mov_b32 s43, 0")
        for k in range(8):
            A(f"s_and_b32 s{48+k}, s{48+k}, s44\ns_cmp_eq_u32 s{48+k}, s{sT10}\ns_addc_u32 s43, s43, 0")
        A(f"s_cmp_ge_u32 s43, {self.fthr}\ns_cbranch_scc0 {r_}")
        self.stamp(9)
        rg = self.lab("Lfg")
        loads = f"""
            s_or_b64 exec, s[48:49], 1
            global_load_dwordx4 v[{G0}:{G0+3}], v6, s[26:27] sc1
            s_or_b64 exec, s[92:93], 1
            global_load_dwordx4 v[{G1}:{G1+3}], v7, s[26:27] sc1
            s_mov_b64 exec, -1"""
        A("s_mov_b64 s[48:49], -1")
        for k in range(self.fdepth - 1):
            A(loads)
        A(f"{rg}:")
        A(loads)
        A(f"s_waitcnt vmcnt({2*(self.fdepth - 1)})")
        for i, k in enumerate((G0, G1)):
            A(f"v_bitop3_b32 v{vT+2*i}, v{k}, v{k+1}, s{sT10} bitop3:0x7e")
            A(f"v_bitop3_b32 v{vT+2*i+1}, v{k+2}, v{k+3}, s{sT10} bitop3:0x7e")
        for i in range(2):
            A(f"v_bitop3_b32 v{vT+2*i}, v{vT+2*i}, v{vT+2*i+1}, s44 bitop3:0xa8")
        R = vT + 12
        A(f"""
        v_cmp_ne_u32 s[48:49], 0, v{vT}
        v_cmp_ne_u32 s[92:93], 0, v{vT+2}
        v_pk_add_f32 v[{R}:{R+1}], v[{G0}:{G0+1}], v[{G1}:{G1+1}]
        v_pk_add_f32 v[{R+2}:{R+3}], v[{G0+2}:{G0+3}], v[{G1+2}:{G1+3}]
        s_add_u32 s{sSPIN}, s{sSPIN}, 1
        s_cmp_gt_u32 s{sSPIN}, {SPIN_MAX}
        s_cbranch_scc1 L_end
        s_or_b64 s[40:41], s[48:49], s[92:93]
        s_cbranch_scc1 {rg}""")
        self.stamp(10)
        self.reduce_scatter_rows(R)
        f = vT + 4
        A(f"""
        ds_write_b32 v10, v{R} offset:{L_RF}
        s_mov_b64 exec, 1
        ds_add_rtn_u32 v2, v12, v13
        s_mov_b64 exec, -1
        ds_read_b128 v[{f}:{f+3}], v11 offset:{L_RF}
        ds_read_b128 v[{f+4}:{f+7}], v11 offset:{L_RF+16}
        s_waitcnt lgkmcnt(0)
        v_readfirstlane_b32 s{sTMP}, v2
        s_cmp_eq_u32 s{sTMP}, 7
        s_cbranch_scc0 L_adone
        v_pk_add_f32 v[{f+4}:{f+5}], v[{f+4}:{f+5}], v[{f+6}:{f+7}]
        v_pk_add_f32 v[{f}:{f+1}], v[{f}:{f+1}], v[{f+2}:{f+3}]
        v_add_f32 v{f+2}, v{f+4}, v{f+5}
        v_add_f32 v{f}, v{f}, v{f+1}
        v_cvt_pk_bf16_f32 v{f}, v{f}, v{f+2}
        v_and_b32 v{f+2}, 0xffff0000, v{f}
        v_mul_f32 v{f+3}, {f2u(-LOG2E):#x}, v{f+2}
        v_exp_f32 v{f+3}, v{f+3}
        v_lshlrev_b32 v{f}, 16, v{f}
        v_add_f32 v{f+3}, 1.0, v{f+3}
        v_rcp_f32 v{f+3}, v{f+3}
        s_nop 0
        v_mul_f32 v{f+2}, v{f+2}, v{f+3}""")
        self.bf16_round(f + 2, f + 2)
        A(f"v_mul_f32 v{f}, v{f}, v{f+2}")
        self.bf16_round(f, f)
        A(f"""
        v_add_f32 v{f}, v{f}, v9
        v_cvt_pk_bf16_f32 v{f}, v{f}, v{f}
        global_store_short v8, v{f}, s[22:23] {self.outmod}""")
        A(f"""
        s_cmp_lg_u32 s{sR}, 0
        s_cbranch_scc1 L_adone
        s_mov_b64 exec, 1
        v_mov_b32 v1, {WS_E}
        v_mov_b32 v2, s{sT32}
        global_store_dword v1, v2, s[26:27]
        s_branch L_adone""")


class Gen(Gen0):
    def __init__(self, ldsb=None, nvo=None, **kw):
        self.ldsb, self.nvo = ldsb, nvo
        super().__init__(**kw)


if __name__ == "__main__":
    import argparse
    ap = argparse.ArgumentParser()
    ap.add_argument("-o", default="recurrent_scan__sliding_block_cached__geglu_ffn__decode.s")

    ap.add_argument("--stamps", action="store_true")
    ap.add_argument("--probe", default=None)
    ap.add_argument("--kw", default="")
    a = ap.parse_args()
    open(a.o, "w").write(Gen(stamps=a.stamps, probe=tuple(map(int, a.probe.split(','))) if a.probe else None, **eval(f'dict({a.kw})')).build())
```

```python
import sys, struct

KN = "recurrent_scan__sliding_block_cached__geglu_ffn__decode_kernel"

def f2u(x):
    return struct.unpack("<I", struct.pack("<f", x))[0]

WS_E   = 0x0
WS_FLD = 0x1000
WS_BML = 0x4000
WS_BQ  = 0x10000
WS_BD  = 0x30000
ROWP   = 4352
WS_BS  = 0x50000
WS_BF  = 0x78000
WS_BO  = 0xA0000
BOP    = 4096 + 128
REPP   = 17 * 128
WS_FLA = 0x130000
WS_FLB = 0x148000
WS_ST  = 0x400000

L_RQ   = 0
L_RG   = L_RQ + 2048
L_QL   = L_RG + 4096
QLP    = 272
L_WT   = L_QL + 2304
L_VEC  = L_WT + 512
L_XQ   = L_VEC + 256
L_XG   = L_XQ + 256
L_RF   = L_XG + 512
L_CNT  = L_RF + 2048
C_Q, C_G, C_X, C_QL, C_P, C_FO, C_GA, C_B1, C_F1 = [L_CNT + 4*i for i in range(9)]
C_XN, C_K, C_V = L_CNT + 48, L_CNT + 64, L_CNT + 80
L_K    = 12288
L_V    = L_K + 32768
assert L_CNT + 128 <= L_K
LDS_BYTES = L_V + 32768
YF, YL = 16, 30

TAGM = 0x3FF
LOG2E = 1.4426950408889634
SPIN_MAX = 1 << 20

sX, sY, sRB, sHQ, sRBQ, sTL, sG, sCH = 28, 29, 30, 31, 32, 33, 34, 35
sT32, sT10, sSPIN, sTMP = 36, 37, 38, 39
sW = 3
sGATE = 100
sTY, sUP, sR = 97, 98, 99
sP = 48
sSTAMP = 64


class Gen0:
    def __init__(self, stamps=False, prefetch=True, probe=None, abl='', xnpos=11, nrepA=4, nrepB=4, psleep=1,
                 WA=(6, 6, 5), WF=(6, 8, 8), pause='gather', fthr=6, wtest=None, fsleep=16, upx=2, layout='mix', plain='', gmod='sc1', local=False, touch=False, fdepth=2, outmod='', gateA=(1, 1), gateF=(0, 0), WAe=None, WFe=None):
        self.gateA, self.gateF = gateA, gateF
        self.WAe, self.WFe = WAe, WFe
        self.local = local
        self.fdepth = fdepth
        self.touch = touch
        self.outmod = outmod
        assert not local or layout != 'mix'
        self.gmod = gmod
        self.layout = layout
        self.plain = plain
        self.fsleep = fsleep
        self.upx = upx
        self.wtest = wtest
        self.fthr = fthr
        self.L = []
        self.stamps = stamps
        self.prefetch = prefetch
        self.probe = probe
        self.abl = abl
        self.xnpos = xnpos
        self.nrepA, self.nrepB = nrepA, nrepB
        self.psleep = psleep
        self.relwait = False
        self.WA, self.WF = WA, WF
        self.pause = pause
        self.nlab = 0

    def A(self, s):
        for line in s.strip("\n").split("\n"):
            if line.strip():
                self.L.append("    " + line.strip() if not line.strip().endswith(":") else line.strip())

    def lab(self, p="L"):
        self.nlab += 1
        return f"{p}_{self.nlab}"

    def stamp(self, k):
        if self.stamps == 'lite' and k not in (0, 10, 14):
            return
        if self.stamps or (self.probe and k in (0, self.probe[2])):
            self.A(f"s_memrealtime s[{sSTAMP+2*k}:{sSTAMP+2*k+1}]")

    def mask(self, reg, val):
        lo, hi = val & 0xFFFFFFFF, val >> 32
        self.A(f"s_mov_b32 {reg[0]}, {lo:#x}\ns_mov_b32 {reg[1]}, {hi:#x}")

    def exec_set(self, val):
        if val == -1:
            self.A("s_mov_b64 exec, -1")
        elif val <= 64:
            self.A(f"s_mov_b64 exec, {val}")
        elif val < (1 << 31):
            self.A(f"s_mov_b64 exec, {val:#x}")
        else:
            self.mask(("exec_lo", "exec_hi"), val)

    def arrive(self, cnt, want_old=True, inc=1):
        self.A(f"""
        s_mov_b64 exec, 1
        v_mov_b32 v1, {cnt}
        v_mov_b32 v2, {inc}""")
        if want_old:
            self.A(f"""
            ds_add_rtn_u32 v2, v1, v2
            s_waitcnt lgkmcnt(0)
            v_readfirstlane_b32 s{sTMP}, v2""")
        else:
            self.A("ds_add_u32 v1, v2")
        self.A("s_mov_b64 exec, -1")

    def lds_spin(self, cnt, val, sleep=1, reads="", low8=False):
        l = self.lab("Lspin"); d = self.lab("Lgot")
        self.A(f"""
        v_mov_b32 v1, {cnt}
        s_mov_b32 s{sSPIN}, 0
        {l}:
        ds_read_b32 v2, v1
        {reads}
        s_add_u32 s{sSPIN}, s{sSPIN}, 1
        s_cmp_gt_u32 s{sSPIN}, {SPIN_MAX}
        s_cbranch_scc1 L_end
        s_waitcnt lgkmcnt(0)
        v_readfirstlane_b32 s{sTMP}, v2""")
        if low8:
            self.A(f"s_lshr_b32 s101, s{sTMP}, 8\ns_and_b32 s{sTMP}, s{sTMP}, 0xff")
        if sleep:
            self.A(f"s_cmp_eq_u32 s{sTMP}, {val}\ns_cbranch_scc1 {d}\ns_sleep {sleep}\ns_branch {l}\n{d}:")
        else:
            self.A(f"s_cmp_eq_u32 s{sTMP}, {val}\ns_cbranch_scc0 {l}")

    def flag_poll(self, n, two=False):
        if 'nopoll' in self.abl:
            return
        l = self.lab("Lpoll"); r = self.lab("Lretry"); d = self.lab("Lflag")
        self.A(f"""
        s_mov_b32 s{sSPIN}, 0
        s_mov_b32 s42, s{sT32}
        s_mov_b32 s43, s{sT32}
        s_branch {l}
        {r}:
        s_sleep {self.psleep}
        {l}:
        s_load_dwordx{n} s[{sP}:{sP+n-1}], s[26:27], s40 glc
        {'s_load_dwordx16 s[4:19], s[26:27], s41 glc' if two else ''}
        s_add_u32 s{sSPIN}, s{sSPIN}, 1
        s_cmp_gt_u32 s{sSPIN}, {SPIN_MAX}
        s_cbranch_scc1 L_end
        s_waitcnt lgkmcnt(0)""")
        for b in ((sP, 4) if two else (sP,)):
            for i in range(0, n, 2):
                self.A(f"s_cmp_eq_u64 s[{b+i}:{b+i+1}], s[42:43]\ns_cbranch_scc0 {r}")
        self.A(f"{d}:")

    def gate(self, k, used):
        if k not in used:
            return
        l = self.lab("Lgate")
        self.A(f"s_cmp_eq_u32 s{sGATE}, {k}\ns_cbranch_scc0 {l}")
        self.arrive(C_GA, want_old=False)
        self.A(f"{l}:")

    def flag_store(self, n, vaddr=None, val=sT32):
        self.exec_set((1 << n) - 1)
        self.A(f"""
        {f'v_mul_u32_u24 v1, {REPP}, v0' if vaddr is None else ''}
        v_add_u32 v1, s40, v{1 if vaddr is None else vaddr}
        v_mov_b32 v2, s{val}
        global_store_dword v1, v2, s[26:27] sc1
        s_mov_b64 exec, -1""")

    def tagcheck(self, regs, vacc, vt):
        first = True
        for r in regs:
            if first:
                self.A(f"v_bitop3_b32 v{vacc}, v{r}, v{r+1}, s{sT10} bitop3:0x7e")
                self.A(f"v_bitop3_b32 v{vt}, v{r+2}, v{r+3}, s{sT10} bitop3:0x7e")
                self.A(f"v_or_b32 v{vacc}, v{vacc}, v{vt}")
                first = False
            else:
                self.A(f"v_bitop3_b32 v{vt}, v{r}, v{r+1}, s{sT10} bitop3:0x7e")
                self.A(f"v_bitop3_b32 v{vt+1}, v{r+2}, v{r+3}, s{sT10} bitop3:0x7e")
                self.A(f"v_or3_b32 v{vacc}, v{vacc}, v{vt}, v{vt+1}")

    def tagcheck2(self, regs, vacc, vt):
        out = []
        for i, r in enumerate(regs):
            d = vacc if i == 0 else vt + (i - 1) % 2
            self.A(f"v_bitop3_b32 v{d}, v{r}, v{r+3}, s{sT10} bitop3:0x7e")
            if i and i % 2 == 0:
                self.A(f"v_or3_b32 v{vacc}, v{vacc}, v{vt}, v{vt+1}")
        if len(regs) % 2 == 0:
            self.A(f"v_or_b32 v{vacc}, v{vacc}, v{vt}")

    def tagtest(self, vacc, retry):
        if 'notag' in self.abl:
            return
        self.A(f"""
        v_and_b32 v{vacc}, {TAGM:#x}, v{vacc}
        v_cmp_ne_u32 vcc, 0, v{vacc}
        {'s_add_u32 s96, s96, 1' if self.stamps else ''}
        s_add_u32 s{sSPIN}, s{sSPIN}, 1
        s_cmp_gt_u32 s{sSPIN}, {SPIN_MAX}
        s_cbranch_scc1 L_end
        s_nop 1
        s_cbranch_vccnz {retry}""")

    def tag(self, r):
        self.A(f"v_bfi_b32 v{r}, s44, v3, v{r}")

    def reduce_scatter_rows(self, a):
        self.A(f"""
        s_nop 1
        v_permlane32_swap_b32 v{a}, v{a+2}
        v_permlane32_swap_b32 v{a+1}, v{a+3}
        v_add_f32 v{a}, v{a}, v{a+2}
        v_add_f32 v{a+1}, v{a+1}, v{a+3}
        s_nop 1
        v_permlane16_swap_b32 v{a}, v{a+1}
        v_add_f32 v{a}, v{a}, v{a+1}""")

    def allreduce_rows(self, a, t, op):
        self.A(f"""
        v_mov_b32 v{t}, v{a}
        s_nop 1
        v_permlane32_swap_b32 v{t}, v{a}
        {op} v{a}, v{a}, v{t}
        v_mov_b32 v{t}, v{a}
        s_nop 1
        v_permlane16_swap_b32 v{t}, v{a}
        {op} v{a}, v{a}, v{t}""")

    def allreduce_in_row(self, a, op="v_add_f32"):
        for m in ("quad_perm:[1,0,3,2]", "quad_perm:[2,3,0,1]", "row_half_mirror", "row_mirror"):
            self.A(f"s_nop 1\n{op}_dpp v{a}, v{a}, v{a} {m} row_mask:0xf bank_mask:0xf")

    def bf16_round(self, d, s):
        self.A(f"v_cvt_pk_bf16_f32 v{d}, v{s}, v{s}\nv_and_b32 v{d}, 0xffff0000, v{d}")

    def build(self):
        A = self.A
        self.L.append(f"; @launch grid=(256,1,1) block=(512,1,1) lds={getattr(self, 'ldsb', None) or LDS_BYTES}")
        self.L.append('.amdgcn_target "amdgcn-amd-amdhsa--gfx950"')
        self.L += [".text", f".globl {KN}", ".p2align 12", ".p2align 8", f".type {KN},@function", f"{KN}:"]
        self.stamp(0)
        A(f"""
        s_cmp_ge_u32 s2, 256
        s_cbranch_scc1 L_end
        s_load_dwordx16 s[4:19], s[0:1], 0
        s_load_dwordx8 s[20:27], s[0:1], 64
        v_lshrrev_b32 v1, 6, v0
        s_and_b32 s{sX}, s2, 7
        s_lshr_b32 s{sY}, s2, 3
        v_readfirstlane_b32 s{sW}, v1""")
        if self.prefetch:
            A(f"""
            s_getpc_b64 s[46:47]
            L_pc:
            s_lshl_b32 s42, s{sY}, 9
            v_add_u32 v1, s42, v0
            v_min_u32 v1, L_codeend-L_pc-4, v1
            s_mov_b64 exec, 1
            global_load_ubyte v55, v1, s[46:47]
            s_mov_b64 exec, -1""")
        A(f"""
        v_and_b32 v0, 63, v0
""")
        if self.layout == 'mix':
            A(f"""
            s_lshr_b32 s{sHQ}, s{sY}, 3
            s_lshl2_add_u32 s{sHQ}, s{sX}, s{sHQ}
            s_and_b32 s{sRBQ}, s{sY}, 7
            s_lshr_b32 s{sG}, s{sX}, 1
            s_and_b32 s{sCH}, s{sX}, 1
            s_lshl4_add_u32 s{sCH}, s{sCH}, s{sY}
            s_lshl4_add_u32 s40, s{sX}, s{sY}
            s_mul_i32 s41, s{sX}, 14
            s_add_u32 s41, s41, s{sY}
            s_sub_u32 s41, s41, {YF}
            s_cmp_lt_u32 s{sY}, {YF}
            s_cselect_b32 s40, s40, s41
            s_cselect_b32 s{sTY}, 0, 1
            s_cmp_ge_u32 s{sY}, {YL}
            s_addc_u32 s{sTY}, s{sTY}, 0
            s_lshr_b32 s{sTL}, s40, 2
            s_and_b32 s{sRB}, s40, 3
            s_xor_b32 s{sUP}, s{sTL}, {self.upx}
            s_lshl1_add_u32 s{sR}, s{sX}, s{sY}
            s_sub_u32 s{sR}, s{sR}, {YL}""")
        else:
            if self.layout == 'odd':
                A(f"s_lshr_b32 s{sG}, s{sX}, 1\ns_and_b32 s{sTY}, s{sX}, 1\ns_xor_b32 s{sTY}, s{sTY}, 1")
            else:
                A(f"s_and_b32 s{sG}, s{sX}, 3\ns_lshr_b32 s{sTY}, s{sX}, 2")
                if self.layout == 'hi':
                    A(f"s_xor_b32 s{sTY}, s{sTY}, 1")
            A(f"""
            s_mov_b32 s{sCH}, s{sY}
            s_and_b32 s{sRB}, s{sY}, 3
            s_lshr_b32 s40, s{sY}, 2
            s_lshl3_add_u32 s{sHQ}, s{sG}, s40
            s_lshl2_add_u32 s{sRBQ}, s{sTY}, s{sRB}
            s_mul_i32 s41, s{sG}, s{sTY}
            s_sub_u32 s{sTL}, s{sHQ}, s41
            s_add_u32 s{sUP}, s40, {self.upx}
            s_cmp_ge_u32 s{sUP}, 7
            s_cselect_b32 s41, 7, 0
            s_sub_u32 s{sUP}, s{sUP}, s41
            s_sub_u32 s{sUP}, s{sUP}, s40
            s_add_u32 s{sUP}, s{sUP}, s{sTL}
            s_lshl2_add_u32 s{sR}, s{sG}, s{sRB}
            s_cmp_eq_u32 s40, 7
            s_cselect_b32 s41, s{sTY}, 0
            s_add_u32 s{sTY}, s{sTY}, s41""")
        A(f"""
        s_cmp_lt_u32 s{sX}, 2
        s_cselect_b32 s40, {self.gateA[0]}, {self.gateA[1]}
        s_cselect_b32 s41, {self.gateF[0]}, {self.gateF[1]}
        s_cmp_eq_u32 s{sTY}, 0
        s_cselect_b32 s{sGATE}, s40, s41
        s_movk_i32 s44, {TAGM:#x}
        v_and_b32 v4, 15, v0
        v_lshrrev_b32 v5, 4, v0""")
        if self.stamps or self.probe:
            A(f"s_mov_b32 s96, 0\ns_mov_b32 s94, s{sW}")
        if self.probe:
            A(f"s_waitcnt lgkmcnt(0)\ns_mov_b32 s{sSTAMP+2*self.probe[2]}, s{sSTAMP}")
        A(f"""
        s_cmp_lt_u32 s{sW}, 4
        s_cbranch_scc1 L_awave""")
        L0 = self.L
        self.L = []
        self.swave()
        cut = self.L.index("L_sdispatch:")
        shead, stail = self.L[:cut], self.L[cut:]
        self.L = L0 + shead
        A("s_branch L_sdispatch\nL_awave:")
        self.awave()
        self.L += stail
        self.final()
        A("L_end:")
        A("s_endpgm")
        self.L.append("L_codeend:")
        nv = getattr(self, 'nvo', None) or 200
        self.L += ['.section .rodata,"a"', ".p2align 6", f".amdhsa_kernel {KN}",
                   f"  .amdhsa_next_free_vgpr {nv}", "  .amdhsa_next_free_sgpr 102", f"  .amdhsa_accum_offset {nv}",
                   "  .amdhsa_group_segment_fixed_size 0", "  .amdhsa_kernarg_size 96", "  .amdhsa_user_sgpr_count 2",
                   "  .amdhsa_user_sgpr_kernarg_segment_ptr 1", "  .amdhsa_system_sgpr_workgroup_id_x 1",
                   "  .amdhsa_float_denorm_mode_32 3", ".end_amdhsa_kernel"]
        return "\n".join(self.L) + "\n"

    def write_stamps(self, n):
        if self.probe:
            wg, wave, k = self.probe[:3]
            ty = self.probe[3] if len(self.probe) > 3 else None
            self.stamp(n)
            d = self.lab("Lprobe_done"); l = self.lab("Lprobe")
            self.A(f"""
            s_waitcnt lgkmcnt(0)
            s_getreg_b32 s41, hwreg(HW_REG_XCC_ID, 0, 4)
            {f's_cmp_eq_u32 s41, {-wg-100}' if wg <= -100 else f"s_cmp_eq_u32 s2, {wg if wg >= 0 else 's2'}"}
            s_cbranch_scc0 {d}
            s_cmp_eq_u32 s94, {wave}
            s_cbranch_scc0 {d}
            s_cmp_eq_u32 s{sTY}, {ty if ty is not None else f's{sTY}'}
            s_cbranch_scc0 {d}
            s_add_u32 s40, s{sSTAMP+2*k}, 4000
            {l}:
            s_memrealtime s[42:43]
            s_waitcnt lgkmcnt(0)
            s_sub_u32 s41, s42, s40
            s_cmp_lt_i32 s41, 0
            s_cbranch_scc1 {l}
            {d}:""")
            return
        if not self.stamps:
            return
        self.stamp(n)
        A = self.A
        A(f"""
        s_waitcnt lgkmcnt(0)
        s_mov_b64 exec, -1
        s_lshl3_add_u32 s40, s2, s94
        s_lshl_b32 s40, s40, 6
        s_add_u32 s40, s40, {WS_ST:#x}
        v_mov_b32 v1, 0""")
        for k in range(n + 1):
            A(f"v_writelane_b32 v1, s{sSTAMP+2*k}, {k}")
        A(f"""
        s_getreg_b32 s41, hwreg(HW_REG_XCC_ID)
        s_and_b32 s41, s41, 0xf
        s_lshl4_add_u32 s41, s96, s41
        v_writelane_b32 v1, s41, 15
        v_lshl_add_u32 v2, v0, 2, s40
        s_mov_b64 exec, 0xffff
        global_store_dword v2, v1, s[26:27]""")

    def swave(self):
        A = self.A
        vI, vJ = 4, 5
        vAq, vA1, vA2, vA3, vAw, vRed, vPub = 6, 7, 8, 9, 10, 11, 14
        vPS, vXQ, vXG, vSEL, aQ, aG, aU, vT = 16, 24, 28, 36, 40, 44, 48, 52
        RING, BIG = 56, 120
        A(f"""
        L_swave:
        s_sub_u32 s{sW}, s{sW}, 4
        s_lshl2_add_u32 s40, s{sRBQ}, s{sW}
        s_lshl_b32 s40, s40, 18
        s_lshl_b32 s41, s{sHQ}, 8
        s_add_u32 s40, s40, s41
        v_lshlrev_b32 v13, 4, v{vI}
        v_lshl_add_u32 v{vAq}, v{vJ}, 13, v13
        v_add_u32 v{vAq}, s40, v{vAq}
        s_mov_b32 s45, 0x8000
        s_waitcnt lgkmcnt(0)""")
        for m in range(8):
            A(f"global_load_dwordx4 v[{RING+4*m}:{RING+4*m+3}], v{vAq}, s[10:11] nt")
            if m < 7:
                A(f"v_add_u32 v{vAq}, s45, v{vAq}")
        A(f"s_load_dword s{sT32}, s[26:27], {WS_E}")
        self.stamp(1)
        A(f"""
        ; wo / down: rows tile*128 + 8*m + (l>>3), columns cb*256 + sw*64 + 8*(l&7)
        v_lshrrev_b32 v12, 3, v0
        v_and_b32 v1, 7, v0
        v_lshlrev_b32 v2, 4, v1
        v_lshl_add_u32 v{vAw}, v12, 11, v2
        s_lshl2_add_u32 s42, s{sRB}, s{sW}
        s_lshl_b32 s40, s42, 7
        s_lshl_b32 s41, s{sTL}, 18
        s_add_u32 s40, s40, s41
        v_add_u32 v{vAw}, s40, v{vAw}
        s_movk_i32 s45, 0x4000
        v_lshl_add_u32 v1, v1, 1, v{vJ}
        s_lshl_b32 s40, s42, 8
        v_lshl_add_u32 v{vPub}, v1, 4, s40
        ; LDS offset of this lane's partial granule: (2*(l&15) + J)*16
        v_lshl_add_u32 v{vRed}, v{vI}, 1, v{vJ}
        v_lshlrev_b32 v{vRed}, 4, v{vRed}
        s_mov_b32 s40, 0xaaaaaaaa
        s_mov_b32 s41, 0xaaaaaaaa
        v_mov_b32 v1, 0x0c0c0100
        v_mov_b32 v2, 0x01000c0c
        v_cndmask_b32 v1, v1, v2, s[40:41]
        v_mov_b32 v2, 0x0c0c0302
        v_mov_b32 v3, 0x03020c0c
        v_cndmask_b32 v2, v2, v3, s[40:41]
        v_mov_b32 v3, 0x0c0c0c0c""")
        for d in range(4):
            m = 0x03030303 << (2*d)
            A(f"""
            s_mov_b32 s40, {m:#x}
            s_mov_b32 s41, {m:#x}
            v_cndmask_b32 v{vPS+d}, v3, v1, s[40:41]
            v_cndmask_b32 v{vPS+4+d}, v3, v2, s[40:41]""")
        A(f"""
        s_barrier
        s_waitcnt lgkmcnt(0)
        s_add_u32 s{sT32}, s{sT32}, 1
        s_and_b32 s{sT10}, s{sT32}, s44
        v_mov_b32 v3, s{sT10}
        s_cmp_ge_u32 s{sTY}, 1
        s_cbranch_scc1 L_s_notattn
        L_sdispatch:""")

        def sel(m, dst, src):
            for d in range(4):
                A(f"v_perm_b32 v{dst+d}, v{src+(m>>1)}, v{src+(m>>1)}, v{vPS+4*(m&1)+d}")

        def mfma(acc, s, w, first):
            c = "0" if first else f"v[{acc}:{acc+3}]"
            A(f"v_mfma_f32_16x16x32_bf16 v[{acc}:{acc+3}], v[{s}:{s+3}], v[{w}:{w+3}], {c}")

        def get_xn(ffn):
            A(f"s_lshl_b32 s41, s{sW}, 2\ns_add_u32 s41, s41, {C_XN}")
            self.lds_spin("s41", 1, sleep=0)
            A(f"""
            s_lshl_b32 s40, s{sW}, 6
            v_lshl_add_u32 v2, v{vJ}, 4, s40
            ds_read_b128 v[{vXQ}:{vXQ+3}], v2 offset:{L_XQ}""")
            if ffn:
                A(f"""
                v_lshlrev_b32 v2, 1, v2
                ds_read_b128 v[{vXG}:{vXG+3}], v2 offset:{L_XG}
                ds_read_b128 v[{vXG+4}:{vXG+7}], v2 offset:{L_XG+16}""")
            A("s_waitcnt lgkmcnt(0)")
            self.stamp(3)
            sel(0, vSEL, vXQ)
            A("s_nop 1")

        def red_write(accs, lbase, shift, cnt):
            A(f"s_lshl_b32 s40, s{sW}, {shift}\nv_add_u32 v1, s40, v{vRed}\ns_mov_b32 exec_hi, 0")
            for i, a in enumerate(accs):
                A(f"ds_write_b128 v1, v[{a}:{a+3}] offset:{lbase + 512*i}")
            self.arrive(cnt, want_old=False)

        def kvflag(c):
            A(f"""
            s_lshl_b32 s40, s{sW}, 2
            s_mov_b64 exec, 1
            v_mov_b32 v1, s40
            v_mov_b32 v2, 1
            ds_write_b32 v1, v2 offset:{c}
            s_mov_b64 exec, -1""")

        def issue(op, i):
            kind, m = op
            slot = RING + 4*(i % 16)
            if kind in "kv":
                va, sb, x = (vA1, 6, 64*(m & 3)) if kind == "k" else (vA2, 8, 128*(m & 1))
                if m % 4 == 0:
                    if i > 8:
                        A(f"s_add_u32 s47, s47, {4096 if m == 4 else L_V - L_K - 4096}")
                    A("s_mov_b32 m0, s47")
                    if m == 4:
                        A(f"v_add_u32 v{va}, 4096, v{va}")
                A(f"v_xor_b32 v1, {x}, v{va}")
                A(f"global_load_lds_dwordx4 v1, s[{sb}:{sb+1}] offset:{1024*(m&3)} nt")
            elif kind in "gu":
                va, sb = (vA1, 16) if kind == "g" else (vA2, 18)
                A(f"global_load_dwordx4 v[{slot}:{slot+3}], v{va}, s[{sb}:{sb+1}] nt")
                if m < 15:
                    A(f"v_add_u32 v{va}, s46, v{va}")
            elif kind in "do":
                sb = 20 if kind == "d" else 12
                A(f"global_load_dwordx4 v[{BIG+4*m}:{BIG+4*m+3}], v{vAw}, s[{sb}:{sb+1}] nt")
                if m < 15:
                    A(f"v_add_u32 v{vAw}, s45, v{vAw}")

        def process(op, i, ffn):
            kind, m = op
            slot = RING + 4*(i % 16)
            if kind == "q":
                mfma(aQ, vSEL, slot, m == 0)
                if m < 7:
                    sel(m + 1, vSEL, vXQ)
                    A("s_nop 1")
                else:
                    if ffn:
                        sel(0, vSEL, vXG)
                        A("s_nop 0")
                    else:
                        A("s_nop 4")
                    red_write([aQ], L_RQ, 9, C_Q)
                    self.stamp(4)
            elif kind in "kv" and m == 7:
                l = self.lab("Lkvf")
                if kind == "v":
                    A(f"s_cmp_lg_u32 s43, 0\ns_cbranch_scc1 {l}")
                kvflag(C_K if kind == "k" else C_V)
                if kind == "v":
                    self.stamp(5)
                    A(f"{l}:")
            elif kind == "g":
                mfma(aG, vSEL, slot, m == 0)
            elif kind == "u":
                mfma(aU, vSEL, slot, m == 0)
                if m < 15:
                    sel(m + 1, vSEL, vXG)
                    A("s_nop 1")
                else:
                    A("s_nop 4")
                    red_write([aG, aU], L_RG, 10, C_G)
                    self.stamp(6)

        def stream(ops, wfun, ffn, start=8, landed=0):
            for i in range(start, len(ops)):
                w = wfun(i)
                A(f"s_waitcnt vmcnt({w-1})")
                issue(ops[i], i)
                if i < self.xnpos:
                    continue
                if i == self.xnpos:
                    get_xn(ffn)
                while landed <= i - w:
                    process(ops[landed], landed, ffn); landed += 1
            return landed

        def drain(ops, landed, upto, ffn):
            n = len(ops)
            while landed < upto:
                if ops[landed][0] in "qgu":
                    A(f"s_waitcnt vmcnt({n - 1 - landed})")
                    process(ops[landed], landed, ffn)
                landed += 1
            return landed

        def final_gemv(val, first, nops, landed, wsb):
            A(f"""
            v_lshlrev_b32 v15, 5, v12
            s_mul_i32 s40, s{sTL}, {ROWP}
            s_add_u32 s40, s40, {wsb:#x}
            v_add_u32 v{vPub}, s40, v{vPub}""")
            rd = f"ds_read_b128 v[{vXG}:{vXG+3}], v15 offset:{L_VEC}\nds_read_b128 v[{vXG+4}:{vXG+7}], v15 offset:{L_VEC+16}"
            if 'noa' not in self.abl and 'nofin' not in self.abl:
                self.lds_spin(C_FO, val, sleep=0, reads=rd)
            else:
                A(rd + "\ns_waitcnt lgkmcnt(0)")
            self.stamp(8)
            self.L.append(".p2align 3")
            late = [m for m in range(16) if first + m >= landed]
            early = [m for m in range(16) if first + m < landed]
            for k, m in enumerate(early):
                sel(m, RING + 4*m, vXG)
                if k:
                    mfma(aQ, RING + 4*early[k-1], BIG + 4*early[k-1], k == 1)
            for k, m in enumerate(late):
                sel(m, RING + 4*m, vXG)
                if k == 0 and early:
                    mfma(aQ, RING + 4*early[-1], BIG + 4*early[-1], len(early) == 1)
            self.stamp(9)
            for k, m in enumerate(late):
                A(f"s_waitcnt vmcnt({nops - 1 - (first + m)})")
                mfma(aQ, RING + 4*m, BIG + 4*m, k == 0 and not early)
            g = vT
            A(f"""
            s_nop 7
            v_permlane32_swap_b32 v{aQ}, v{aQ+2}
            v_permlane32_swap_b32 v{aQ+1}, v{aQ+3}
            s_nop 0
            v_add_f32_dpp v{g}, v{aQ+2}, v{aQ} row_shl:8 row_mask:0xf bank_mask:0xf bound_ctrl:1
            v_add_f32_dpp v{g+1}, v{aQ+3}, v{aQ+1} row_shl:8 row_mask:0xf bank_mask:0xf bound_ctrl:1""")
            self.tag(g); self.tag(g + 1)
            A(f"""
            s_nop 0
            v_permlane32_swap_b32 v{g}, v{g+2}
            v_permlane32_swap_b32 v{g+1}, v{g+3}
            s_mov_b64 exec, 0x00ff00ff
            global_store_dwordx4 v{vPub}, v[{g}:{g+3}], s[26:27] sc1
            s_mov_b64 exec, -1""")

        qops = [("q", m) for m in range(8)]
        A(f"""
        s_lshl_b32 s40, s{sG}, 24
        s_lshl_b32 s41, s{sCH}, 15
        s_add_u32 s40, s40, s41
        s_lshl_b32 s47, s{sW}, 13
        s_add_u32 s40, s40, s47
        s_add_u32 s47, s47, {L_K}
        s_add_u32 s40, s40, {(65536-4096)*256:#x}
        v_xor_b32 v1, v{vI}, v{vJ}
        v_lshlrev_b32 v1, 4, v1
        v_lshl_add_u32 v1, v{vJ}, 8, v1
        v_add_u32 v{vA1}, s40, v1
        v_lshlrev_b32 v1, 1, v{vJ}
        v_xor_b32 v1, v{vI}, v1
        v_lshlrev_b32 v1, 4, v1
        v_lshl_add_u32 v1, v{vJ}, 8, v1
        v_add_u32 v{vA2}, s40, v1""")
        ops = qops + [("k", m) for m in range(8)] + [("v", m) for m in range(8)]
        WA = self.WA
        landed = stream(ops, lambda i: WA[0] if i < 14 else WA[1], False)
        A("s_mov_b32 s43, 0")
        if self.pause and 'noa' not in self.abl:
            go = self.lab("Lgo")
            if 0 in self.gateA:
                A(f"s_cmp_eq_u32 s{sGATE}, 0\ns_cbranch_scc1 {go}")
            A(f"""
            v_mov_b32 v1, {C_GA}
            ds_read_b32 v2, v1
            s_waitcnt lgkmcnt(0)
            v_readfirstlane_b32 s{sTMP}, v2
            s_cmp_eq_u32 s{sTMP}, 4
            s_cbranch_scc1 {go}
            s_waitcnt vmcnt(0)
            s_mov_b32 s43, 1""")
            assert landed >= 16
            kvflag(C_V)
            self.stamp(5)
            self.lds_spin(C_GA, 4, sleep=1)
            A(f"{go}:")
            self.stamp(6)
        ops = ops + [("o", m) for m in range(16)]
        for w3 in ([self.WAe, WA[2]] if self.WAe else [WA[2]]):
            nxt = self.lab("Lsa")
            if self.WAe and w3 == self.WAe:
                A(f"s_cmp_lt_u32 s{sX}, 2\ns_cbranch_scc0 {nxt}")
            l2 = stream(ops, lambda i: w3, False, start=24, landed=landed)
            assert l2 >= 24
            self.stamp(7)
            final_gemv(4, 24, 40, l2, WS_BS)
            self.write_stamps(10)
            A(f"s_endpgm\n{nxt}:")
        A(f"""
        L_s_notattn:
        s_cmp_ge_u32 s{sTY}, 2
        s_cbranch_scc1 L_s_last
        s_lshl2_add_u32 s40, s{sRB}, s{sW}
        s_mul_i32 s40, s40, {64*7168}
        v_mul_u32_u24 v1, 7168, v{vJ}
        v_add3_u32 v1, v1, v13, s40
        s_lshl_b32 s41, s{sTL}, 8
        v_add_u32 v{vA1}, s41, v1
        s_lshl_b32 s41, s{sUP}, 8
        v_add_u32 v{vA2}, s41, v1
        s_movk_i32 s46, {7168*4}""")
        ops = qops + [(k, m) for m in range(16) for k in "gu"] + [("d", m) for m in range(16)]
        WF = self.WF
        landed = stream(ops[:40], lambda i: WF[0] if i < 14 else WF[1], True)
        gated = self.lab("Lsfg")
        if any(self.gateF) and 'noa' not in self.abl:
            A(f"s_cmp_lg_u32 s{sGATE}, 0\ns_cbranch_scc1 {gated}")
        if 0 in self.gateF or 'noa' in self.abl:
            l2 = stream(ops, lambda i: WF[2], True, start=40, landed=landed)
            assert l2 >= 40
            self.stamp(7)
            final_gemv(1, 40, 56, l2, WS_BF)
            self.write_stamps(10)
            A("s_endpgm")
        if any(self.gateF) and 'noa' not in self.abl:
            A(f"{gated}:")
            l2 = drain(ops[:40], landed, 40, True)
            self.lds_spin(C_GA, 1, sleep=1)
            l2 = stream(ops, lambda i: self.WFe or WF[2], True, start=40, landed=l2)
            self.stamp(7)
            final_gemv(1, 40, 56, l2, WS_BF)
            self.write_stamps(10)
            A("s_endpgm")
        A("L_s_last:")
        get_xn(False)
        drain(qops, 0, 8, False)
        A(f"s_add_u32 s{sW}, s{sW}, 4\ns_branch L_final")

    def red_publish(self, lbase, pitch, cnt, nl, addr_code, nrep, flagv=None, sleep=1, val=sT32):
        A = self.A
        t = 16
        A("v_lshlrev_b32 v10, 4, v0")
        A(addr_code)
        self.lds_spin(cnt, 4, sleep=sleep, reads="\n".join(f"ds_read_b128 v[{t+4*k}:{t+4*k+3}], v10 offset:{lbase+pitch*k}" for k in range(4)))
        if nl == 32:
            A("s_mov_b32 exec_hi, 0")
        for h in (0, 2):
            A(f"v_pk_add_f32 v[{t+h}:{t+h+1}], v[{t+h}:{t+h+1}], v[{t+4+h}:{t+5+h}]")
            A(f"v_pk_add_f32 v[{t+8+h}:{t+9+h}], v[{t+8+h}:{t+9+h}], v[{t+12+h}:{t+13+h}]")
        for h in (0, 2):
            A(f"v_pk_add_f32 v[{t+h}:{t+h+1}], v[{t+h}:{t+h+1}], v[{t+8+h}:{t+9+h}]")
        for r in range(4):
            self.tag(t + r)
        A(f"global_store_dwordx4 v11, v[{t}:{t+3}], s[26:27] {'' if ('d' in self.plain and nl == 64) else 'sc1'}")
        if 'w' in self.plain and 'd' in self.plain and nl == 64:
            A("s_waitcnt vmcnt(0)")
        self.flag_store(nrep, flagv, val)

    def awave(self):
        A = self.A
        vKF, vVF, vGT, vU = 56, 184, 216, 232
        vQF, vS = 216, 16
        vI, vJ = 4, 5
        vA0, vA1 = 6, 7
        vT = 16
        x0, xr = 56, 72
        A(f"""
        s_setprio 3
        s_lshl2_add_u32 s40, s{sRB}, s{sW}
        s_lshl_b32 s40, s40, 6
        v_lshlrev_b32 v14, 5, v0
        v_add_lshl_u32 v1, v0, s40, 1
        s_lshl2_add_u32 s40, s{sRBQ}, s{sW}
        s_lshl_b32 s40, s40, 5
        v_and_b32 v15, 31, v0
        v_add_lshl_u32 v15, v15, s40, 1
        v_mov_b32 v10, 0
        v_and_b32 v2, 31, v0
        v_lshlrev_b32 v2, 2, v2
        ds_write_b32 v2, v10 offset:{L_CNT}
        s_waitcnt lgkmcnt(0)
        global_load_dwordx4 v[{xr}:{xr+3}], v14, s[4:5]
        global_load_dwordx4 v[{xr+4}:{xr+7}], v14, s[4:5] offset:16
        global_load_ushort v{xr+8}, v15, s[4:5]
        global_load_ushort v{xr+9}, v1, s[4:5]
        s_load_dword s{sT32}, s[26:27], {WS_E}""")
        if self.touch:
            tf = self.lab("Ltf"); td = self.lab("Ltd")
            A(f"""
            s_cmp_eq_u32 s{sW}, 0
            s_cbranch_scc0 {td}
            s_lshl_b32 s41, s{sTL}, 18
            s_cmp_eq_u32 s{sTY}, 0
            s_cbranch_scc0 {tf}
            s_lshl_b32 s40, s{sG}, 24
            s_add_u32 s40, s40, {(65536-4096)*256:#x}
            s_load_dword s48, s[6:7], s40
            s_load_dword s49, s[8:9], s40
            s_load_dword s50, s[12:13], s41
            s_branch {td}
            {tf}:
            s_load_dword s48, s[22:23], 0
            s_cmp_eq_u32 s{sTY}, 1
            s_cbranch_scc0 {td}
            s_mul_i32 s40, s{sRB}, {256*7168}
            s_add_u32 s42, s40, {255*7168}
            s_load_dword s49, s[16:17], s40
            s_load_dword s50, s[18:19], s40
            s_load_dword s51, s[16:17], s42
            s_load_dword s52, s[18:19], s42
            s_load_dword s53, s[20:21], s41
            {td}:""")
        A("s_barrier")
        self.stamp(1)
        A(f"s_waitcnt vmcnt(0) lgkmcnt(0)")
        self.stamp(11)
        for i in range(8):
            A(f"v_lshlrev_b32 v{x0+2*i}, 16, v{xr+i}\nv_and_b32 v{x0+2*i+1}, 0xffff0000, v{xr+i}")
        A(f"v_pk_add_f32 v[{vT}:{vT+1}], v[{x0}:{x0+1}], v[{x0+2}:{x0+3}]")
        A(f"v_pk_add_f32 v[{vT+2}:{vT+3}], v[{x0+4}:{x0+5}], v[{x0+6}:{x0+7}]")
        for i in range(4, 8, 2):
            A(f"v_pk_add_f32 v[{vT}:{vT+1}], v[{vT}:{vT+1}], v[{x0+2*i}:{x0+2*i+1}]")
            A(f"v_pk_add_f32 v[{vT+2}:{vT+3}], v[{vT+2}:{vT+3}], v[{x0+2*i+2}:{x0+2*i+3}]")
        A(f"v_pk_add_f32 v[{vT}:{vT+1}], v[{vT}:{vT+1}], v[{vT+2}:{vT+3}]")
        A(f"v_add_f32 v{vT}, v{vT}, v{vT+1}")
        self.allreduce_in_row(vT)
        self.allreduce_rows(vT, vT+1, "v_add_f32")
        A(f"v_mul_f32 v{vT}, {f2u(1.0/1024):#x}, v{vT}")
        for i in range(8):
            A(f"v_pk_add_f32 v[{x0+2*i}:{x0+2*i+1}], v[{x0+2*i}:{x0+2*i+1}], v[{vT}:{vT+1}] op_sel_hi:[1,0] neg_lo:[0,1] neg_hi:[0,1]")
        A(f"v_pk_mul_f32 v[{vT+2}:{vT+3}], v[{x0}:{x0+1}], v[{x0}:{x0+1}]")
        A(f"v_pk_mul_f32 v[{vT+4}:{vT+5}], v[{x0+2}:{x0+3}], v[{x0+2}:{x0+3}]")
        for i in range(2, 8):
            d = vT + 2 + 2*(i & 1)
            A(f"v_pk_fma_f32 v[{d}:{d+1}], v[{x0+2*i}:{x0+2*i+1}], v[{x0+2*i}:{x0+2*i+1}], v[{d}:{d+1}]")
        A(f"v_pk_add_f32 v[{vT+2}:{vT+3}], v[{vT+2}:{vT+3}], v[{vT+4}:{vT+5}]")
        A(f"v_add_f32 v{vT+2}, v{vT+2}, v{vT+3}")
        r = xr + 8
        self.bf16_round(vT, vT)
        self.allreduce_in_row(vT+2)
        A(f"""
        v_lshlrev_b32 v{r}, 16, v{r}
        v_lshlrev_b32 v{r+1}, 16, v{r+1}
        v_pk_add_f32 v[{r}:{r+1}], v[{r}:{r+1}], v[{vT}:{vT+1}] op_sel_hi:[1,0] neg_lo:[0,1] neg_hi:[0,1]""")
        self.allreduce_rows(vT+2, vT+3, "v_add_f32")
        A(f"v_mul_f32 v{vT+2}, {f2u(1.0/1024):#x}, v{vT+2}")
        self.bf16_round(vT+2, vT+2)
        A(f"v_add_f32 v{vT+2}, {f2u(1e-5):#x}, v{vT+2}")
        self.bf16_round(vT+2, vT+2)
        A(f"""
        v_sqrt_f32 v{vT+2}, v{vT+2}
        v_cvt_pk_bf16_f32 v{r+1}, v{r}, v{r+1}
        v_lshlrev_b32 v{r}, 16, v{r+1}
        v_and_b32 v{r+1}, 0xffff0000, v{r+1}""")
        self.bf16_round(vT+2, vT+2)
        A(f"""
        v_rcp_f32 v{vT+2}, v{vT+2}
        v_and_b32 v1, 3, v0
        v_lshrrev_b32 v2, 2, v0
        v_lshlrev_b32 v2, 1, v2
        v_pk_mul_f32 v[{r}:{r+1}], v[{r}:{r+1}], v[{vT+2}:{vT+3}] op_sel_hi:[1,0]
        s_lshl_b32 s40, s{sW}, 6
        v_lshl_add_u32 v10, v1, 4, s40
        v_lshl_add_u32 v11, v10, 1, v2
        v_add_u32 v10, v10, v2
        v_cvt_pk_bf16_f32 v{r}, v{r}, v{r+1}
        s_lshl_b32 s40, s{sW}, 2
        v_mov_b32 v2, s40
        v_mov_b32 v1, 1
        ds_write_b16_d16_hi v11, v{r} offset:{L_XG}
        s_mov_b32 exec_hi, 0
        ds_write_b16 v10, v{r} offset:{L_XQ}
        s_mov_b64 exec, 1
        ds_write_b32 v2, v1 offset:{C_XN}
        s_mov_b64 exec, -1
        s_add_u32 s{sT32}, s{sT32}, 1
        s_and_b32 s{sT10}, s{sT32}, s44
        v_mov_b32 v3, s{sT10}""")
        self.stamp(12)
        if self.wtest:
            pre, mod, n = self.wtest
            A(f"s_cmp_eq_u32 s{sW}, 3\ns_cbranch_scc0 L_adone")
            A(f"s_mul_i32 s42, s2, {n*1024}\ns_add_u32 s42, s42, 0x800000\nv_lshl_add_u32 v10, v0, 4, s42")
            if pre == 's':
                A("s_add_u32 s40, s26, s42\ns_addc_u32 s41, s27, 0")
                for i in range(n*16):
                    A(f"s_load_dword s48, s[40:41], {64*i} glc")
                A("s_waitcnt lgkmcnt(0)")
            elif pre:
                for i in range(n):
                    A(f"global_load_dwordx4 v[20:23], v10, s[26:27] offset:{1024*i} {pre[1:]}")
                A("s_waitcnt vmcnt(0)")
            self.lds_spin(C_Q, 4, sleep=1)
            A("s_sleep 64")
            for i in range(n):
                A(f"global_store_dwordx4 v10, v[16:19], s[26:27] offset:{1024*i} {mod}")
        if 'noa' in self.abl:
            A("s_branch L_adone")
        if self.local:
            A(f"""
            s_getreg_b32 s45, hwreg(HW_REG_XCC_ID, 0, 4)
            s_lshl_b32 s45, s45, 28
            s_cmp_eq_u32 s{sTY}, 0
            s_cselect_b32 s45, s45, 0
            s_xor_b32 s45, s45, s{sT32}""")
        nq = self.lab("Lnoq")
        A(f"s_cmp_eq_u32 s{sW}, 3\ns_cbranch_scc0 {nq}")
        self.red_publish(L_RQ, 512, C_Q, 32, f"""
            s_lshl3_add_u32 s41, s{sHQ}, s{sRBQ}
            s_lshl_b32 s40, s41, 9
            s_add_u32 s40, s40, {WS_BQ:#x}
            v_add_u32 v11, s40, v10
            s_lshr_b32 s40, s41, 4
            s_and_b32 s41, s41, 15
            s_lshl_b32 s40, s40, 5
            s_add_u32 s40, s40, s41
            s_lshl_b32 s40, s40, 2
            s_add_u32 s40, s40, {WS_FLA:#x}""", self.nrepA, val=(45 if self.local else sT32))
        self.stamp(13)
        A(f"""
        {nq}:
        s_cmp_ge_u32 s{sTY}, 2
        s_cbranch_scc1 L_final
        s_cmp_ge_u32 s{sTY}, 1
        s_cbranch_scc1 L_ffn""")
        if 'stop1' in self.abl:
            self.arrive(C_GA, want_old=False); A("s_branch L_adone")
        vKF, vVF, vGT, vQF, vO = 56, 88, 120, 152, 168
        vS, U, Z = 16, 24, 28
        A(f"""
        s_lshl2_add_u32 s41, s{sG}, s{sW}
        s_lshl_b32 s40, s41, 13
        s_add_u32 s40, s40, {WS_BQ + 2048:#x}
        v_and_b32 v12, 31, v0
        v_lshrrev_b32 v13, 5, v0
        v_lshlrev_b32 v1, 4, v12
        v_lshl_add_u32 v1, v13, 12, v1
        v_add_u32 v{vA0}, s40, v1
        s_and_b32 s40, s{sCH}, {self.nrepA-1}
        s_mul_i32 s40, s40, {REPP}
        s_lshl_b32 s41, s41, 7
        s_add_u32 s40, s40, s41
        s_add_u32 s95, s40, {WS_FLA:#x}
        s_lshl_b32 s40, s{sW}, 1
        v_add_u32 v13, s40, v13
        v_mul_u32_u24 v13, {QLP}, v13
        v_lshl_add_u32 v13, v12, 3, v13
        v_and_b32 v10, 7, v0
        s_lshl_b32 s40, s{sG}, 5
        s_add_u32 s41, s40, s{sCH}
        s_mul_i32 s41, s41, {BOP}
        s_lshl_b32 s42, s{sW}, 7
        s_add_u32 s41, s41, s42
        s_add_u32 s41, s41, {WS_BO:#x}
        v_lshlrev_b32 v8, 9, v10
        v_bfe_u32 v11, v0, 3, 1
        v_lshl_add_u32 v8, v11, 6, v8
        v_lshl_add_u32 v8, v{vJ}, 4, v8
        v_add_u32 v8, s41, v8
        s_add_u32 s40, s40, s{sCH}
        s_lshl_b32 s40, s40, 7
        s_add_u32 s40, s40, {WS_BML:#x}
        v_lshl_add_u32 v9, v10, 4, s40
        v_mul_u32_u24 v12, {QLP}, v10
        v_lshl_add_u32 v12, v{vJ}, 4, v12
        s_mov_b32 s46, {f2u(128 ** -0.5):#x}
        s_mov_b32 s47, {f2u(128 ** -0.5):#x}
        s_lshl_b32 s40, s{sW}, 13
        v_xor_b32 v14, v{vI}, v{vJ}
        v_lshlrev_b32 v14, 4, v14
        v_lshl_add_u32 v14, v{vI}, 8, v14
        v_add_u32 v14, s40, v14
        v_bfe_u32 v10, v0, 2, 2
        v_lshl_add_u32 v10, v{vJ}, 2, v10
        v_and_b32 v11, 7, v10
        v_lshlrev_b32 v11, 1, v11
        v_bfe_u32 v1, v0, 1, 1
        v_xor_b32 v11, v11, v1
        v_lshlrev_b32 v11, 4, v11
        v_lshl_add_u32 v11, v10, 8, v11
        v_and_b32 v1, 1, v0
        v_lshl_add_u32 v11, v1, 3, v11
        s_add_u32 s41, s40, {L_V}
        v_add_u32 v11, s41, v11
        ; exchange area (this wave's K rows, dead once the fragments are in registers)
        v_lshl_add_u32 v15, v0, 4, s40
        s_lshl_b32 s41, s{sW}, 10
        v_lshl_add_u32 v10, v0, 4, s41
        s_lshl_b32 s41, s{sW}, 2
        s_add_u32 s41, s41, {C_K}""")
        self.mask(("s92", "s93"), 0xFF00FF00FF00FF00)
        self.lds_spin("s41", 1, sleep=1)
        for s in range(4):
            if s:
                A(f"v_xor_b32 v2, {64*s}, v14")
            for t in range(2):
                r = vKF + 16*t + 4*s
                A(f"ds_read_b128 v[{r}:{r+3}], v{2 if s else 14} offset:{L_K + 4096*t}")
        self.stamp(3)
        A("s_mov_b32 s40, s95")
        if self.local:
            l = self.lab("Lpoll"); r = self.lab("Lretry")
            A(f"""
            s_mov_b32 s{sSPIN}, 0
            s_mov_b32 s42, s{sT32}
            s_mov_b32 s43, s{sT32}
            s_mov_b32 s4, s45
            s_mov_b32 s5, s45
            s_branch {l}
            {r}:
            s_sleep {self.psleep}
            {l}:
            s_load_dwordx16 s[{sP}:{sP+15}], s[26:27], s40 glc
            s_add_u32 s{sSPIN}, s{sSPIN}, 1
            s_cmp_gt_u32 s{sSPIN}, {SPIN_MAX}
            s_cbranch_scc1 L_end
            s_waitcnt lgkmcnt(0)""")
            for i in range(8):
                A(f"s_xor_b64 s[{sP+2*i}:{sP+2*i+1}], s[{sP+2*i}:{sP+2*i+1}], s[{'4:5' if (i & 2) == 0 else '42:43'}]")
            for step in (2, 4, 8):
                for i in range(0, 16, 2*step):
                    A(f"s_or_b64 s[{sP+i}:{sP+i+1}], s[{sP+i}:{sP+i+1}], s[{sP+i+step}:{sP+i+step+1}]")
            A(f"""
            s_or_b32 s{sP}, s{sP}, s{sP+1}
            s_and_b32 s{sP+1}, s{sP}, 0x0fffffff
            s_cbranch_scc1 {r}
            s_cmp_lg_u32 s{sP}, 0
            s_cselect_b32 s101, 0x101, 1""")
        else:
            self.flag_poll(16)
        self.stamp(2)
        if 'stop2' in self.abl:
            self.arrive(C_GA, want_old=False); A("s_branch L_adone")
        rq = self.lab("Lgq")
        A(f"s_mov_b32 s45, 0\n{rq}:")
        for n in range(8):
            A(f"global_load_dwordx4 v[{vGT+4*n}:{vGT+4*n+3}], v{vA0}, s[26:27] offset:{512*n - 2048} sc1")
        skip = self.lab("Lkvdone")
        A(f"s_cmp_lg_u32 s45, 0\ns_cbranch_scc1 {skip}\ns_mov_b32 s45, 1")
        self.gate(1, self.gateA)
        A(f"s_lshl_b32 s41, s{sW}, 2\ns_add_u32 s41, s41, {C_V}")
        self.lds_spin("s41", 1, sleep=0)
        for dt in range(8):
            if dt:
                A(f"v_xor_b32 v14, {32*dt}, v11")
            for t in range(2):
                r = vVF + 4*dt + 2*t
                A(f"ds_read_b64_tr_b16 v[{r}:{r+1}], v{14 if dt else 11} offset:{4096*t}")
        A(f"""
        s_lshr_b32 s40, s{sCH}, 4
        s_lshl1_add_u32 s40, s{sG}, s40
        s_lshl_b32 s40, s40, 5
        s_and_b32 s41, s{sCH}, 15
        s_add_u32 s40, s40, s41
        s_lshl_b32 s40, s40, 2
        s_add_u32 s95, s40, {WS_FLB:#x}""")
        A(f"s_mov_b32 s{sSPIN}, 0\n{skip}:")
        A("s_waitcnt vmcnt(0)")
        self.tagcheck2([vGT+4*n for n in range(8)], vT, vT+1)
        self.tagtest(vT, rq)
        self.stamp(4)
        if 'stop3' in self.abl:
            A("s_branch L_adone")
        for step in (4, 8, 16):
            for b in range(0, 32, 2*step):
                for h in (0, 2):
                    A(f"v_pk_add_f32 v[{vGT+b+h}:{vGT+b+h+1}], v[{vGT+b+h}:{vGT+b+h+1}], v[{vGT+b+step+h}:{vGT+b+step+h+1}]")
        A(f"""
        v_cvt_pk_bf16_f32 v{vGT}, v{vGT}, v{vGT+1}
        v_cvt_pk_bf16_f32 v{vGT+1}, v{vGT+2}, v{vGT+3}
        s_mov_b32 s45, {f2u(LOG2E):#x}
        ds_write_b64 v13, v[{vGT}:{vGT+1}] offset:{L_QL}""")
        self.arrive(C_QL, want_old=False, inc=("s101" if self.local else 1))
        self.stamp(1)
        self.lds_spin(C_QL, 4, sleep=0, low8=self.local,
                      reads="\n".join(f"ds_read_b128 v[{vQF+4*s}:{vQF+4*s+3}], v12 offset:{L_QL + 64*s}" for s in range(4)))
        self.stamp(9)
        for s in range(4):
            for t in range(2):
                c = "0" if s == 0 else f"v[{vS+4*t}:{vS+4*t+3}]"
                r = vKF + 16*t + 4*s
                A(f"v_mfma_f32_16x16x32_bf16 v[{vS+4*t}:{vS+4*t+3}], v[{r}:{r+3}], v[{vQF+4*s}:{vQF+4*s+3}], {c}")
        A("s_nop 7")
        for k in range(4):
            A(f"v_cndmask_b32 v{U+k}, v{vS+k}, v{vS+4+k}, s[92:93]")
        for rnd in range(2):
            for p in range(2):
                A(f"v_cvt_pk_bf16_f32 v{Z+p}, v{U+2*p}, v{U+2*p+1}")
            for p in range(2):
                A(f"v_lshlrev_b32 v{U+2*p}, 16, v{Z+p}\nv_and_b32 v{U+2*p+1}, 0xffff0000, v{Z+p}")
            if rnd == 0:
                for p in range(2):
                    A(f"v_pk_mul_f32 v[{U+2*p}:{U+2*p+1}], v[{U+2*p}:{U+2*p+1}], s[46:47]")
        vM, vL = 48, 49
        A(f"""
        v_max3_f32 v{vM}, v{U}, v{U+1}, v{U+2}
        v_max_f32 v{vM}, v{vM}, v{U+3}
        s_nop 1
        v_max_f32_dpp v{vM}, v{vM}, v{vM} row_ror:8 row_mask:0xf bank_mask:0xf""")
        self.allreduce_rows(vM, 50, "v_max_f32")
        A(f"v_mul_f32 v50, s45, v{vM}")
        for k in range(4):
            A(f"v_fma_f32 v{U+k}, v{U+k}, s45, -v50")
        for k in range(4):
            A(f"v_exp_f32 v{U+k}, v{U+k}")
        P = 32
        A(f"""
        s_nop 0
        v_cvt_pk_bf16_f32 v{P}, v{U}, v{U+1}
        v_cvt_pk_bf16_f32 v{P+1}, v{U+2}, v{U+3}
        v_pk_add_f32 v[52:53], v[{U}:{U+1}], v[{U+2}:{U+3}]
        v_mov_b32_dpp v{P+2}, v{P} row_ror:8 row_mask:0xf bank_mask:0xf
        v_mov_b32_dpp v{P+3}, v{P+1} row_ror:8 row_mask:0xf bank_mask:0xf
        v_mov_b32 v{P+4}, v{P}
        v_mov_b32 v{P+5}, v{P+1}
        v_add_f32 v{vL}, v52, v53""")
        fill = [f"v_lshrrev_b32 v14, 1, v15\nv_add_f32_dpp v{vL}, v{vL}, v{vL} row_ror:8 row_mask:0xf bank_mask:0xf",
                f"v_mov_b32 v50, v{vL}\ns_lshl_b32 s40, s{sW}, 12",
                f"v_add_u32 v14, s40, v14\nv_permlane32_swap_b32 v50, v{vL}",
                f"v_add_f32 v{vL}, v{vL}, v50\nv_mov_b32 v50, v{vL}",
                f"s_nop 0",
                f"v_permlane16_swap_b32 v50, v{vL}\nv_add_f32 v{vL}, v{vL}, v50",
                f"ds_write_b64 v14, v[{vM}:{vL}] offset:{L_K + 4096}", ""]
        for dt in range(8):
            b = P + 2*(dt & 1)
            A(f"v_mfma_f32_16x16x32_bf16 v[{vO+4*dt}:{vO+4*dt+3}], v[{vVF+4*dt}:{vVF+4*dt+3}], v[{b}:{b+3}], 0")
            A(fill[dt])
        for k in range(4):
            for r in range(4):
                A(f"v_cndmask_b32 v{vO+8*k+r}, v{vO+8*k+r}, v{vO+8*k+4+r}, s[92:93]")
            A(f"ds_write_b128 v15, v[{vO+8*k}:{vO+8*k+3}] offset:{L_K + 1024*k}")
        self.arrive(C_X, want_old=False)
        A("v_lshlrev_b32 v14, 3, v0")
        self.stamp(11)
        X, ML = 56, 72
        self.lds_spin(C_X, 4, sleep=0, reads="\n".join(
            [f"ds_read_b64 v[{ML+2*w}:{ML+2*w+1}], v14 offset:{L_K + 8192*w + 4096}" for w in range(4)] +
            [f"ds_read_b128 v[{X+4*w}:{X+4*w+3}], v10 offset:{L_K + 8192*w}" for w in range(4)]))
        self.stamp(10)
        A(f"v_max3_f32 v{vM}, v{ML}, v{ML+2}, v{ML+4}\nv_max_f32 v{vM}, v{vM}, v{ML+6}")
        for w in range(4):
            A(f"v_sub_f32 v{ML+2*w}, v{ML+2*w}, v{vM}")
        for w in range(4):
            A(f"v_mul_f32 v{ML+2*w}, s45, v{ML+2*w}")
        for w in range(4):
            A(f"v_exp_f32 v{ML+2*w}, v{ML+2*w}")
        A(f"s_nop 0\nv_mul_f32 v{vL}, v{ML}, v{ML+1}")
        for w in range(4):
            e = ML + 2*w
            for h in (0, 2):
                if w == 0:
                    A(f"v_pk_mul_f32 v[{vS+h}:{vS+h+1}], v[{X+h}:{X+h+1}], v[{e}:{e+1}] op_sel_hi:[1,0]")
                else:
                    A(f"v_pk_fma_f32 v[{vS+h}:{vS+h+1}], v[{X+4*w+h}:{X+4*w+h+1}], v[{e}:{e+1}], v[{vS+h}:{vS+h+1}] op_sel_hi:[1,0,1]")
            if w:
                A(f"v_fmac_f32 v{vL}, v{e}, v{e+1}")
        for r in range(4):
            self.tag(vS + r)
        nml = self.lab("Lnoml")

        def publish(mod):
            if 'noO' not in self.abl:
                A(f"global_store_dwordx4 v8, v[{vS}:{vS+3}], s[26:27] {mod}")
            A(f"s_cmp_lg_u32 s{sW}, 0\ns_cbranch_scc1 {nml}")
            self.tag(vM); self.tag(vL)
            A(f"""
            v_mov_b32 v50, v3
            v_mov_b32 v51, v3
            s_mov_b64 exec, 0xff
            global_store_dwordx4 v9, v[48:51], s[26:27] {mod}""")

        if self.local:
            rem = self.lab("Lremote"); fl = self.lab("Lflagb")
            A(f"s_cmp_lg_u32 s101, 0\ns_cbranch_scc1 {rem}")
            publish("")
            A(f"s_branch {fl}\n{rem}:")
            publish("sc1")
            A(f"{fl}:")
        else:
            publish("sc1")
        A("s_mov_b32 s40, s95")
        if 'noflagB' not in self.abl:
            self.flag_store(self.nrepB)
        A(f"{nml}:")
        self.gate(2, self.gateA)
        self.stamp(5)
        if 'stop4' in self.abl:
            A("s_branch L_adone")
        A(f"""
        s_and_b32 s40, s{sTL}, 7
        s_lshl2_add_u32 s41, s40, s{sW}
        s_lshl_b32 s41, s41, 7
        s_mul_i32 s42, s{sG}, {32*BOP}
        s_add_u32 s41, s41, s42
        s_add_u32 s41, s41, {WS_BO:#x}
        v_lshrrev_b32 v1, 3, v0
        v_mul_u32_u24 v1, {BOP}, v1
        v_and_b32 v2, 7, v0
        v_lshl_add_u32 v1, v2, 4, v1
        v_add_u32 v{vA0}, s41, v1
        v_add_u32 v13, {8*BOP}, v{vA0}
        v_add_u32 v14, {16*BOP}, v{vA0}
        v_add_u32 v15, {24*BOP}, v{vA0}
        s_lshl_b32 s41, s{sG}, 8
        s_add_u32 s40, s40, s41
        s_lshl_b32 s40, s40, 4
        s_add_u32 s40, s40, {WS_BML:#x}
        v_and_b32 v1, 31, v0
        v_lshl_add_u32 v{vA1}, v1, 7, s40
        s_lshl_b32 s40, s{sW}, 7
        v_and_b32 v2, 7, v0
        v_lshrrev_b32 v1, 3, v1
        v_lshl_add_u32 v1, v1, 2, s40
        v_lshl_add_u32 v10, v2, 4, v1
        v_lshrrev_b32 v1, 3, v0
        v_lshl_add_u32 v11, v1, 4, s40
        v_and_b32 v1, 1, v0
        v_lshl_add_u32 v1, v1, 2, v{vJ}
        v_and_b32 v2, 6, v0
        v_lshl_add_u32 v12, v1, 5, v2
        s_lshl_b32 s40, s{sW}, 3
        v_add_u32 v12, s40, v12""")
        nb = self.lab("Lnopollb")
        A(f"""
        s_cmp_ge_u32 s{sW}, 2
        s_cbranch_scc1 {nb}
        s_and_b32 s40, s{sCH}, {self.nrepB-1}
        s_mul_i32 s40, s40, {REPP}
        s_lshl1_add_u32 s41, s{sG}, s{sW}
        s_lshl_b32 s41, s41, 7
        s_add_u32 s40, s40, s41
        s_add_u32 s40, s40, {WS_FLB:#x}""")
        self.flag_poll(16)
        self.arrive(C_B1, want_old=False)
        A(f"{nb}:")
        self.lds_spin(C_B1, 2, sleep=1)
        self.stamp(6)
        rb_ = self.lab("Lgo")
        vO, vML = 56, 72
        A(f"{rb_}:")
        def bloads(mod):
            A(f"global_load_dwordx4 v[{vML}:{vML+3}], v{vA1}, s[26:27] {mod}")
            for n in range(4):
                A(f"global_load_dwordx4 v[{vO+4*n}:{vO+4*n+3}], v{(vA0, 13, 14, 15)[n]}, s[26:27] {mod}")
        if self.local and self.gmod != 'sc1':
            rem = self.lab("Lremote"); fl = self.lab("Lbld")
            A(f"s_cmp_lg_u32 s101, 0\ns_cbranch_scc1 {rem}")
            bloads(self.gmod)
            A(f"s_branch {fl}\n{rem}:")
            bloads("sc1")
            A(f"{fl}:")
        else:
            bloads("sc1")
        if 3 in self.gateA:
            self.gate(3, self.gateA)
            A(f"s_mov_b32 s{sGATE}, 0")
        A("s_waitcnt vmcnt(4)")
        A(f"v_and_b32 v{vT+4}, 0xffff0000, v{vML}\nv_mov_b32 v{vT}, v{vT+4}")
        self.allreduce_in_row(vT, "v_max_f32")
        A(f"""
        v_mov_b32 v{vT+2}, v{vT}
        s_nop 1
        v_permlane16_swap_b32 v{vT+2}, v{vT}
        v_max_f32 v{vT}, v{vT}, v{vT+2}
        v_sub_f32 v{vT+4}, v{vT+4}, v{vT}
        v_mul_f32 v{vT+4}, s45, v{vT+4}
        v_exp_f32 v{vT+4}, v{vT+4}
        s_mov_b32 exec_hi, 0
        ds_write_b32 v10, v{vT+4} offset:{L_WT}
        s_mov_b32 exec_hi, -1
        ds_read_b128 v[{vT+8}:{vT+11}], v11 offset:{L_WT}
        v_mul_f32 v{vT+1}, v{vT+4}, v{vML+1}""")
        self.allreduce_in_row(vT + 1)
        A(f"""
        v_mov_b32 v{vT+2}, v{vT+1}
        s_nop 1
        v_permlane16_swap_b32 v{vT+2}, v{vT+1}
        v_add_f32 v{vT+1}, v{vT+1}, v{vT+2}
        v_rcp_f32 v{vT+1}, v{vT+1}
        s_waitcnt vmcnt(0)""")
        self.tagcheck2([vML] + [vO + 4*n for n in range(4)], vT + 16, vT + 17)
        self.tagtest(vT + 16, rb_)
        self.stamp(7)
        A("s_waitcnt lgkmcnt(0)")
        acc = vT + 4
        for n in range(4):
            w = vT + 8 + (n & ~1)
            os_ = f"op_sel:[0,{n&1}] op_sel_hi:[1,{n&1}]" if n == 0 else f"op_sel:[0,{n&1},0] op_sel_hi:[1,{n&1},1]"
            for h in (0, 2):
                if n == 0:
                    A(f"v_pk_mul_f32 v[{acc+h}:{acc+h+1}], v[{vO+h}:{vO+h+1}], v[{w}:{w+1}] {os_}")
                else:
                    A(f"v_pk_fma_f32 v[{acc+h}:{acc+h+1}], v[{vO+4*n+h}:{vO+4*n+h+1}], v[{w}:{w+1}], v[{acc+h}:{acc+h+1}] {os_}")
        self.reduce_scatter_rows(acc)
        A(f"""
        s_nop 1
        v_add_f32_dpp v{acc}, v{acc}, v{acc} row_ror:8 row_mask:0xf bank_mask:0xf
        v_mov_b32 v1, {C_FO}
        v_mul_f32 v{acc}, v{acc}, v{vT+1}
        v_mov_b32 v2, 1
        v_cvt_pk_bf16_f32 v{acc}, v{acc}, v{acc}""")
        self.exec_set(0x00FF00FF00FF00FF)
        A(f"""
        ds_write_b16 v12, v{acc} offset:{L_VEC}
        s_mov_b64 exec, 1
        ds_add_u32 v1, v2
        s_mov_b64 exec, -1""")
        self.stamp(8)
        if 'diag' in self.abl:
            l = self.lab("Ldg")
            if 'diagx' in self.abl:
                A(f"s_getreg_b32 s41, hwreg(HW_REG_XCC_ID, 0, 4)\ns_cmp_eq_u32 s41, s{sX}")
            else:
                A("s_cmp_eq_u32 s101, 0")
            A(f"""
            s_cbranch_scc1 L_adone
            s_memrealtime s[42:43]
            s_waitcnt lgkmcnt(0)
            s_add_u32 s40, s42, 2000
            {l}:
            s_memrealtime s[42:43]
            s_waitcnt lgkmcnt(0)
            s_sub_u32 s41, s42, s40
            s_cmp_lt_i32 s41, 0
            s_cbranch_scc1 {l}""")
        A("L_adone:")
        self.write_stamps(14)
        A("s_endpgm")
        A(f"""
        L_ffn:
        s_cmp_eq_u32 s{sW}, 2
        s_cbranch_scc0 L_adone""")
        if 'noffn' in self.abl:
            A("s_branch L_adone")
        self.red_publish(L_RG, 1024, C_G, 64, f"""
            s_sub_u32 s41, s{sUP}, s{sTL}
            s_lshl2_add_u32 s40, s{sTL}, s{sRB}
            s_lshl_b32 s40, s40, 10
            s_add_u32 s40, s40, {WS_BD:#x}
            v_add_u32 v11, s40, v10
            v_lshrrev_b32 v13, 5, v0
            s_lshl_b32 s42, s41, 12
            v_mul_lo_u32 v12, s42, v13
            v_add_u32 v11, v11, v12
            s_lshl_b32 s40, s{sTL}, 5
            s_add_u32 s40, s40, s{sRB}
            s_lshl_b32 s40, s40, 2
            s_lshl_b32 s42, s41, 7
            s_add_u32 s42, s42, 16
            v_mul_lo_u32 v12, s42, v0
            v_add_u32 v12, s40, v12
            s_movk_i32 s40, {WS_FLD:#x}""", 2, 12, sleep=1)
        self.gate(1, self.gateF)
        self.stamp(5)
        A(f"""
        s_lshl_b32 s40, s{sTL}, 12
        s_add_u32 s40, s40, {WS_BD:#x}
        v_add_u32 v{vA0}, s40, v10
        v_and_b32 v1, 1, v0
        v_lshl_add_u32 v1, v1, 1, v13
        v_and_b32 v2, 30, v0
        v_lshl_add_u32 v12, v1, 6, v2
        s_lshl_b32 s40, s{sTL}, 7
        s_add_u32 s40, s40, {WS_FLD:#x}""")
        self.flag_poll(8)
        self.stamp(6)
        rd = self.lab("Lgd")
        G = 56
        A(f"{rd}:")
        for n in range(4):
            A(f"global_load_dwordx4 v[{G+4*n}:{G+4*n+3}], v{vA0}, s[26:27] offset:{1024*n} {self.gmod if 'd' in self.plain else 'sc1'}")
        if 2 in self.gateF:
            self.gate(2, self.gateF)
            A(f"s_mov_b32 s{sGATE}, 0")
        A("s_waitcnt vmcnt(0)")
        self.tagcheck2([G + 4*n for n in range(4)], vT, vT + 1)
        self.tagtest(vT, rd)
        self.stamp(7)
        for h in (0, 2):
            A(f"v_pk_add_f32 v[{G+h}:{G+h+1}], v[{G+h}:{G+h+1}], v[{G+4+h}:{G+5+h}]")
            A(f"v_pk_add_f32 v[{G+8+h}:{G+9+h}], v[{G+8+h}:{G+9+h}], v[{G+12+h}:{G+13+h}]")
        for h in (0, 2):
            A(f"v_pk_add_f32 v[{G+h}:{G+h+1}], v[{G+h}:{G+h+1}], v[{G+8+h}:{G+9+h}]")
        c1 = -2.0 * 0.7978845608028654 * LOG2E
        c2 = c1 * 0.044715
        A(f"""
        v_cvt_pk_bf16_f32 v{G}, v{G}, v{G+1}
        v_cvt_pk_bf16_f32 v{G+1}, v{G+2}, v{G+3}
        s_mov_b32 s46, {f2u(c2):#x}
        v_mov_b32 v{vT+4}, {f2u(c1):#x}
        v_permlane32_swap_b32 v{G}, v{G+1}
        v_lshlrev_b32 v{G+2}, 16, v{G}
        v_and_b32 v{G+3}, 0xffff0000, v{G}
        v_pk_mul_f32 v[{vT}:{vT+1}], v[{G+2}:{G+3}], v[{G+2}:{G+3}]
        v_fma_f32 v{vT}, v{vT}, s46, v{vT+4}
        v_fma_f32 v{vT+1}, v{vT+1}, s46, v{vT+4}
        v_pk_mul_f32 v[{vT}:{vT+1}], v[{vT}:{vT+1}], v[{G+2}:{G+3}]
        v_exp_f32 v{vT}, v{vT}
        v_exp_f32 v{vT+1}, v{vT+1}
        v_lshlrev_b32 v{G+4}, 16, v{G+1}
        v_add_f32 v{vT}, 1.0, v{vT}
        v_add_f32 v{vT+1}, 1.0, v{vT+1}
        v_rcp_f32 v{vT}, v{vT}
        v_rcp_f32 v{vT+1}, v{vT+1}
        v_and_b32 v{G+5}, 0xffff0000, v{G+1}
        v_pk_mul_f32 v[{G+2}:{G+3}], v[{G+2}:{G+3}], v[{vT}:{vT+1}]
        v_cvt_pk_bf16_f32 v{G}, v{G+2}, v{G+3}
        v_lshlrev_b32 v{G+2}, 16, v{G}
        v_and_b32 v{G+3}, 0xffff0000, v{G}
        v_pk_mul_f32 v[{G+2}:{G+3}], v[{G+2}:{G+3}], v[{G+4}:{G+5}]
        v_mov_b32 v1, {C_FO}
        v_cvt_pk_bf16_f32 v{G}, v{G+2}, v{G+3}
        v_mov_b32 v2, 1
        ds_write_b16 v12, v{G} offset:{L_VEC}
        ds_write_b16_d16_hi v12, v{G} offset:{L_VEC+32}
        s_mov_b64 exec, 1
        ds_write_b32 v1, v2
        s_mov_b64 exec, -1""")
        self.stamp(8)
        A("s_branch L_adone")

    def final(self):
        A = self.A
        vI, vJ, vT = 4, 5, 16
        G0, G1 = 56, 60
        A(f"""
        L_final:
        s_mov_b32 s42, s{sR}
        s_lshl_b32 s43, s42, 7
        v_lshl_add_u32 v8, v0, 1, s43
        global_load_ushort v9, v8, s[4:5]""")
        if 'nofinal' in self.abl:
            A("s_branch L_adone")
        A(f"""
        s_and_b32 s41, s{sW}, 3
        s_cmp_lt_u32 s{sW}, 4
        s_cselect_b32 s46, 0, {WS_BF - WS_BS:#x}
        s_cselect_b32 s47, {28*ROWP}, 0
        s_cselect_b32 s93, -1, 0xffff
        s_mov_b32 s92, -1
        s_mul_i32 s40, s41, {ROWP}
        s_add_u32 s40, s40, s46
        s_lshl_b32 s43, s42, 8
        s_add_u32 s40, s40, s43
        s_add_u32 s46, s40, {WS_BS:#x}
        s_add_u32 s47, s47, s46
        v_mul_u32_u24 v1, {4*ROWP}, v{vJ}
        v_lshl_add_u32 v1, v{vI}, 4, v1
        v_add_u32 v6, s46, v1
        v_add_u32 v7, {16*ROWP}, v6
        v_lshl_add_u32 v10, v{vI}, 2, v{vJ}
        v_lshlrev_b32 v10, 5, v10
        s_lshl_b32 s40, s{sW}, 2
        v_add_u32 v10, s40, v10
        v_lshlrev_b32 v11, 5, v0
        v_mov_b32 v12, {C_F1}
        v_mov_b32 v13, 1
        s_waitcnt vmcnt(0)
        v_lshlrev_b32 v9, 16, v9""")
        for r in range(4):
            A(f"v_mov_b32 v{G1+r}, v3")
        l = self.lab("Lfp"); r_ = self.lab("Lfr")
        A(f"""
        s_add_u32 s40, s26, s46
        s_addc_u32 s41, s27, 0
        s_mov_b32 s{sSPIN}, 0
        s_branch {l}
        {r_}:
        s_cmp_lg_u32 s43, 0
        s_cbranch_scc1 {l}
        s_sleep {self.fsleep}
        {l}:""")
        for k in range(7):
            A(f"s_load_dword s{48+k}, s[40:41], {4*k*ROWP} glc")
        A(f"""
        s_load_dword s55, s[26:27], s47 glc
        s_add_u32 s{sSPIN}, s{sSPIN}, 1
        s_cmp_gt_u32 s{sSPIN}, {SPIN_MAX}
        s_cbranch_scc1 L_end
        s_waitcnt lgkmcnt(0)""")
        A("s_mov_b32 s43, 0")
        for k in range(8):
            A(f"s_and_b32 s{48+k}, s{48+k}, s44\ns_cmp_eq_u32 s{48+k}, s{sT10}\ns_addc_u32 s43, s43, 0")
        A(f"s_cmp_ge_u32 s43, {self.fthr}\ns_cbranch_scc0 {r_}")
        self.stamp(9)
        rg = self.lab("Lfg")
        loads = f"""
            s_or_b64 exec, s[48:49], 1
            global_load_dwordx4 v[{G0}:{G0+3}], v6, s[26:27] sc1
            s_or_b64 exec, s[92:93], 1
            global_load_dwordx4 v[{G1}:{G1+3}], v7, s[26:27] sc1
            s_mov_b64 exec, -1"""
        A("s_mov_b64 s[48:49], -1")
        for k in range(self.fdepth - 1):
            A(loads)
        A(f"{rg}:")
        A(loads)
        A(f"s_waitcnt vmcnt({2*(self.fdepth - 1)})")
        for i, k in enumerate((G0, G1)):
            A(f"v_bitop3_b32 v{vT+2*i}, v{k}, v{k+1}, s{sT10} bitop3:0x7e")
            A(f"v_bitop3_b32 v{vT+2*i+1}, v{k+2}, v{k+3}, s{sT10} bitop3:0x7e")
        for i in range(2):
            A(f"v_bitop3_b32 v{vT+2*i}, v{vT+2*i}, v{vT+2*i+1}, s44 bitop3:0xa8")
        R = vT + 12
        A(f"""
        v_cmp_ne_u32 s[48:49], 0, v{vT}
        v_cmp_ne_u32 s[92:93], 0, v{vT+2}
        v_pk_add_f32 v[{R}:{R+1}], v[{G0}:{G0+1}], v[{G1}:{G1+1}]
        v_pk_add_f32 v[{R+2}:{R+3}], v[{G0+2}:{G0+3}], v[{G1+2}:{G1+3}]
        s_add_u32 s{sSPIN}, s{sSPIN}, 1
        s_cmp_gt_u32 s{sSPIN}, {SPIN_MAX}
        s_cbranch_scc1 L_end
        s_or_b64 s[40:41], s[48:49], s[92:93]
        s_cbranch_scc1 {rg}""")
        self.stamp(10)
        self.reduce_scatter_rows(R)
        f = vT + 4
        A(f"""
        ds_write_b32 v10, v{R} offset:{L_RF}
        s_mov_b64 exec, 1
        ds_add_rtn_u32 v2, v12, v13
        s_mov_b64 exec, -1
        ds_read_b128 v[{f}:{f+3}], v11 offset:{L_RF}
        ds_read_b128 v[{f+4}:{f+7}], v11 offset:{L_RF+16}
        s_waitcnt lgkmcnt(0)
        v_readfirstlane_b32 s{sTMP}, v2
        s_cmp_eq_u32 s{sTMP}, 7
        s_cbranch_scc0 L_adone
        v_pk_add_f32 v[{f+4}:{f+5}], v[{f+4}:{f+5}], v[{f+6}:{f+7}]
        v_pk_add_f32 v[{f}:{f+1}], v[{f}:{f+1}], v[{f+2}:{f+3}]
        v_add_f32 v{f+2}, v{f+4}, v{f+5}
        v_add_f32 v{f}, v{f}, v{f+1}
        v_cvt_pk_bf16_f32 v{f}, v{f}, v{f+2}
        v_and_b32 v{f+2}, 0xffff0000, v{f}
        v_mul_f32 v{f+3}, {f2u(-LOG2E):#x}, v{f+2}
        v_exp_f32 v{f+3}, v{f+3}
        v_lshlrev_b32 v{f}, 16, v{f}
        v_add_f32 v{f+3}, 1.0, v{f+3}
        v_rcp_f32 v{f+3}, v{f+3}
        s_nop 0
        v_mul_f32 v{f+2}, v{f+2}, v{f+3}""")
        self.bf16_round(f + 2, f + 2)
        A(f"v_mul_f32 v{f}, v{f}, v{f+2}")
        self.bf16_round(f, f)
        A(f"""
        v_add_f32 v{f}, v{f}, v9
        v_cvt_pk_bf16_f32 v{f}, v{f}, v{f}
        global_store_short v8, v{f}, s[22:23] {self.outmod}""")
        A(f"""
        s_cmp_lg_u32 s{sR}, 0
        s_cbranch_scc1 L_adone
        s_mov_b64 exec, 1
        v_mov_b32 v1, {WS_E}
        v_mov_b32 v2, s{sT32}
        global_store_dword v1, v2, s[26:27]
        s_branch L_adone""")


class Gen(Gen0):
    def __init__(self, ldsb=None, nvo=None, **kw):
        self.ldsb, self.nvo = ldsb, nvo
        super().__init__(**kw)


if __name__ == "__main__":
    import argparse
    ap = argparse.ArgumentParser()
    ap.add_argument("-o", default="recurrent_scan__sliding_block_cached__geglu_ffn__decode.s")

    ap.add_argument("--stamps", action="store_true")
    ap.add_argument("--probe", default=None)
    ap.add_argument("--kw", default="")
    a = ap.parse_args()
    open(a.o, "w").write(Gen(stamps=a.stamps, probe=tuple(map(int, a.probe.split(','))) if a.probe else None, **eval(f'dict({a.kw})')).build())
```

```python
import sys, struct

KN = "recurrent_scan__sliding_block_cached__geglu_ffn__decode_kernel"

def f2u(x):
    return struct.unpack("<I", struct.pack("<f", x))[0]

WS_E   = 0x0
WS_FLD = 0x1000
WS_XT  = 0x3000
WS_BML = 0x4000
WS_BQ  = 0x10000
WS_BD  = 0x30000
ROWP   = 4352
WS_BS  = 0x50000
WS_BF  = 0x78000
WS_BO  = 0xA0000
BOP    = 4096 + 128
REPP   = 17 * 128
WS_FLA = 0x130000
WS_FLB = 0x148000
WS_ST  = 0x400000

L_RQ   = 0
L_RG   = L_RQ + 2048
L_QL   = L_RG + 4096
QLP    = 272
L_WT   = L_QL + 2304
L_VEC  = L_WT + 512
L_XQ   = L_VEC + 256
L_XG   = L_XQ + 256
L_RF   = L_XG + 512
L_CNT  = L_RF + 2048
C_Q, C_G, C_X, C_QL, C_HB, C_FO, C_GA, C_B1, C_F1 = [L_CNT + 4*i for i in range(9)]
C_XN, C_K, C_V = L_CNT + 48, L_CNT + 64, L_CNT + 80
L_K    = 12288
L_V    = L_K + 32768
assert L_CNT + 128 <= L_K
LDS_BYTES = L_V + 32768
YF, YL = 16, 30

TAGM = 0x3FF
LOG2E = 1.4426950408889634
SPIN_MAX = 1 << 20

sX, sY, sRB, sHQ, sRBQ, sTL, sG, sCH = 28, 29, 30, 31, 32, 33, 34, 35
sT32, sT10, sSPIN, sTMP = 36, 37, 38, 39
sW = 3
sGATE = 100
sTY, sUP, sR = 97, 98, 99
sP = 48
sSTAMP = 64


class Gen0:
    def __init__(self, stamps=False, prefetch=True, probe=None, abl='', xnpos=11, nrepA=4, nrepB=4, psleep=1,
                 WA=(6, 6, 5), WF=(6, 8, 8), pause='gather', fthr=6, wtest=None, fsleep=16, upx=2, layout='mix', plain='', gmod='sc1', local=False, touch=False, flagpos='end', HA=0, HF=0, vlate=False, kfirst=True, localD=False, earlyD=False, warm=None, warmO=False, fdepth=2, outmod='', gateA=(1, 1), gateF=(0, 0), WAe=None, WFe=None):
        self.gateA, self.gateF = gateA, gateF
        self.WAe, self.WFe = WAe, WFe
        self.local = local
        self.fdepth = fdepth
        self.touch = touch
        self.warm = warm
        self.warmO = warmO
        self.localD, self.earlyD = localD, earlyD
        self.kfirst = kfirst
        self.flagpos, self.HA, self.HF, self.vlate = flagpos, HA, HF, vlate
        self.outmod = outmod
        assert not local or layout != 'mix'
        self.gmod = gmod
        self.layout = layout
        self.plain = plain
        self.fsleep = fsleep
        self.upx = upx
        self.wtest = wtest
        self.fthr = fthr
        self.L = []
        self.stamps = stamps
        self.prefetch = prefetch
        self.probe = probe
        self.abl = abl
        self.xnpos = xnpos
        self.nrepA, self.nrepB = nrepA, nrepB
        self.psleep = psleep
        self.relwait = False
        self.WA, self.WF = WA, WF
        self.pause = pause
        self.nlab = 0

    def A(self, s):
        for line in s.strip("\n").split("\n"):
            if line.strip():
                self.L.append("    " + line.strip() if not line.strip().endswith(":") else line.strip())

    def lab(self, p="L"):
        self.nlab += 1
        return f"{p}_{self.nlab}"

    def stamp(self, k):
        if self.stamps == 'lite' and k not in (0, 10, 14):
            return
        if self.stamps or (self.probe and k in (0, self.probe[2])):
            self.A(f"s_memrealtime s[{sSTAMP+2*k}:{sSTAMP+2*k+1}]")

    def mask(self, reg, val):
        lo, hi = val & 0xFFFFFFFF, val >> 32
        self.A(f"s_mov_b32 {reg[0]}, {lo:#x}\ns_mov_b32 {reg[1]}, {hi:#x}")

    def exec_set(self, val):
        if val == -1:
            self.A("s_mov_b64 exec, -1")
        elif val <= 64:
            self.A(f"s_mov_b64 exec, {val}")
        elif val < (1 << 31):
            self.A(f"s_mov_b64 exec, {val:#x}")
        else:
            self.mask(("exec_lo", "exec_hi"), val)

    def arrive(self, cnt, want_old=True, inc=1):
        self.A(f"""
        s_mov_b64 exec, 1
        v_mov_b32 v1, {cnt}
        v_mov_b32 v2, {inc}""")
        if want_old:
            self.A(f"""
            ds_add_rtn_u32 v2, v1, v2
            s_waitcnt lgkmcnt(0)
            v_readfirstlane_b32 s{sTMP}, v2""")
        else:
            self.A("ds_add_u32 v1, v2")
        self.A("s_mov_b64 exec, -1")

    def lds_spin(self, cnt, val, sleep=1, reads="", low8=False):
        l = self.lab("Lspin"); d = self.lab("Lgot")
        self.A(f"""
        v_mov_b32 v1, {cnt}
        s_mov_b32 s{sSPIN}, 0
        {l}:
        ds_read_b32 v2, v1
        {reads}
        s_add_u32 s{sSPIN}, s{sSPIN}, 1
        s_cmp_gt_u32 s{sSPIN}, {SPIN_MAX}
        s_cbranch_scc1 L_end
        s_waitcnt lgkmcnt(0)
        v_readfirstlane_b32 s{sTMP}, v2""")
        if low8:
            self.A(f"s_lshr_b32 s101, s{sTMP}, 8\ns_and_b32 s{sTMP}, s{sTMP}, 0xff")
        if sleep:
            self.A(f"s_cmp_eq_u32 s{sTMP}, {val}\ns_cbranch_scc1 {d}\ns_sleep {sleep}\ns_branch {l}\n{d}:")
        else:
            self.A(f"s_cmp_eq_u32 s{sTMP}, {val}\ns_cbranch_scc0 {l}")

    def flag_poll(self, n, two=False):
        if 'nopoll' in self.abl:
            return
        l = self.lab("Lpoll"); r = self.lab("Lretry"); d = self.lab("Lflag")
        self.A(f"""
        s_mov_b32 s{sSPIN}, 0
        s_mov_b32 s42, s{sT32}
        s_mov_b32 s43, s{sT32}
        s_branch {l}
        {r}:
        s_sleep {self.psleep}
        {l}:
        s_load_dwordx{n} s[{sP}:{sP+n-1}], s[26:27], s40 glc
        {'s_load_dwordx16 s[4:19], s[26:27], s41 glc' if two else ''}
        s_add_u32 s{sSPIN}, s{sSPIN}, 1
        s_cmp_gt_u32 s{sSPIN}, {SPIN_MAX}
        s_cbranch_scc1 L_end
        s_waitcnt lgkmcnt(0)""")
        for b in ((sP, 4) if two else (sP,)):
            for i in range(0, n, 2):
                self.A(f"s_cmp_eq_u64 s[{b+i}:{b+i+1}], s[42:43]\ns_cbranch_scc0 {r}")
        self.A(f"{d}:")

    def gate(self, k, used):
        if k not in used:
            return
        l = self.lab("Lgate")
        self.A(f"s_cmp_eq_u32 s{sGATE}, {k}\ns_cbranch_scc0 {l}")
        self.arrive(C_GA, want_old=False)
        self.A(f"{l}:")

    def early_flag(self, pos):
        if self.flagpos != pos:
            return
        l = self.lab("Lef")
        self.A(f"s_or_b32 s40, s101, s{sW}\ns_cbranch_scc1 {l}\ns_mov_b32 s40, s95")
        self.flag_store(self.nrepB)
        self.A(f"{l}:")

    def flag_store(self, n, vaddr=None, val=sT32):
        self.exec_set((1 << n) - 1)
        self.A(f"""
        {f'v_mul_u32_u24 v1, {REPP}, v0' if vaddr is None else ''}
        v_add_u32 v1, s40, v{1 if vaddr is None else vaddr}
        v_mov_b32 v2, s{val}
        global_store_dword v1, v2, s[26:27] sc1
        s_mov_b64 exec, -1""")

    def tagcheck(self, regs, vacc, vt):
        first = True
        for r in regs:
            if first:
                self.A(f"v_bitop3_b32 v{vacc}, v{r}, v{r+1}, s{sT10} bitop3:0x7e")
                self.A(f"v_bitop3_b32 v{vt}, v{r+2}, v{r+3}, s{sT10} bitop3:0x7e")
                self.A(f"v_or_b32 v{vacc}, v{vacc}, v{vt}")
                first = False
            else:
                self.A(f"v_bitop3_b32 v{vt}, v{r}, v{r+1}, s{sT10} bitop3:0x7e")
                self.A(f"v_bitop3_b32 v{vt+1}, v{r+2}, v{r+3}, s{sT10} bitop3:0x7e")
                self.A(f"v_or3_b32 v{vacc}, v{vacc}, v{vt}, v{vt+1}")

    def tagcheck2(self, regs, vacc, vt):
        out = []
        for i, r in enumerate(regs):
            d = vacc if i == 0 else vt + (i - 1) % 2
            self.A(f"v_bitop3_b32 v{d}, v{r}, v{r+3}, s{sT10} bitop3:0x7e")
            if i and i % 2 == 0:
                self.A(f"v_or3_b32 v{vacc}, v{vacc}, v{vt}, v{vt+1}")
        if len(regs) % 2 == 0:
            self.A(f"v_or_b32 v{vacc}, v{vacc}, v{vt}")

    def tagtest(self, vacc, retry):
        if 'notag' in self.abl:
            return
        self.A(f"""
        v_and_b32 v{vacc}, {TAGM:#x}, v{vacc}
        v_cmp_ne_u32 vcc, 0, v{vacc}
        {'s_add_u32 s96, s96, 1' if self.stamps else ''}
        s_add_u32 s{sSPIN}, s{sSPIN}, 1
        s_cmp_gt_u32 s{sSPIN}, {SPIN_MAX}
        s_cbranch_scc1 L_end
        s_nop 1
        s_cbranch_vccnz {retry}""")

    def tag(self, r):
        self.A(f"v_bfi_b32 v{r}, s44, v3, v{r}")

    def reduce_scatter_rows(self, a):
        self.A(f"""
        s_nop 1
        v_permlane32_swap_b32 v{a}, v{a+2}
        v_permlane32_swap_b32 v{a+1}, v{a+3}
        v_add_f32 v{a}, v{a}, v{a+2}
        v_add_f32 v{a+1}, v{a+1}, v{a+3}
        s_nop 1
        v_permlane16_swap_b32 v{a}, v{a+1}
        v_add_f32 v{a}, v{a}, v{a+1}""")

    def allreduce_rows(self, a, t, op):
        self.A(f"""
        v_mov_b32 v{t}, v{a}
        s_nop 1
        v_permlane32_swap_b32 v{t}, v{a}
        {op} v{a}, v{a}, v{t}
        v_mov_b32 v{t}, v{a}
        s_nop 1
        v_permlane16_swap_b32 v{t}, v{a}
        {op} v{a}, v{a}, v{t}""")

    def allreduce_in_row(self, a, op="v_add_f32"):
        for m in ("quad_perm:[1,0,3,2]", "quad_perm:[2,3,0,1]", "row_half_mirror", "row_mirror"):
            self.A(f"s_nop 1\n{op}_dpp v{a}, v{a}, v{a} {m} row_mask:0xf bank_mask:0xf")

    def bf16_round(self, d, s):
        self.A(f"v_cvt_pk_bf16_f32 v{d}, v{s}, v{s}\nv_and_b32 v{d}, 0xffff0000, v{d}")

    def build(self):
        A = self.A
        self.L.append(f"; @launch grid=(256,1,1) block=(512,1,1) lds={getattr(self, 'ldsb', None) or LDS_BYTES}")
        self.L.append('.amdgcn_target "amdgcn-amd-amdhsa--gfx950"')
        self.L += [".text", f".globl {KN}", ".p2align 12", ".p2align 8", f".type {KN},@function", f"{KN}:"]
        self.stamp(0)
        A(f"""
        s_cmp_ge_u32 s2, 256
        s_cbranch_scc1 L_end
        s_load_dwordx16 s[4:19], s[0:1], 0
        s_load_dwordx8 s[20:27], s[0:1], 64
        v_lshrrev_b32 v1, 6, v0
        s_and_b32 s{sX}, s2, 7
        s_lshr_b32 s{sY}, s2, 3
        v_readfirstlane_b32 s{sW}, v1""")
        if self.prefetch:
            A(f"""
            s_getpc_b64 s[46:47]
            L_pc:
            s_lshl_b32 s42, s{sY}, 9
            v_add_u32 v1, s42, v0
            v_min_u32 v1, L_codeend-L_pc-4, v1
            s_mov_b64 exec, 1
            global_load_ubyte v55, v1, s[46:47]
            s_mov_b64 exec, -1""")
        A(f"""
        v_and_b32 v0, 63, v0
""")
        if self.layout == 'mix':
            A(f"""
            s_lshr_b32 s{sHQ}, s{sY}, 3
            s_lshl2_add_u32 s{sHQ}, s{sX}, s{sHQ}
            s_and_b32 s{sRBQ}, s{sY}, 7
            s_lshr_b32 s{sG}, s{sX}, 1
            s_and_b32 s{sCH}, s{sX}, 1
            s_lshl4_add_u32 s{sCH}, s{sCH}, s{sY}
            s_lshl4_add_u32 s40, s{sX}, s{sY}
            s_mul_i32 s41, s{sX}, 14
            s_add_u32 s41, s41, s{sY}
            s_sub_u32 s41, s41, {YF}
            s_cmp_lt_u32 s{sY}, {YF}
            s_cselect_b32 s40, s40, s41
            s_cselect_b32 s{sTY}, 0, 1
            s_cmp_ge_u32 s{sY}, {YL}
            s_addc_u32 s{sTY}, s{sTY}, 0
            s_lshr_b32 s{sTL}, s40, 2
            s_and_b32 s{sRB}, s40, 3
            s_xor_b32 s{sUP}, s{sTL}, {self.upx}
            s_lshl1_add_u32 s{sR}, s{sX}, s{sY}
            s_sub_u32 s{sR}, s{sR}, {YL}""")
        else:
            if self.layout == 'odd':
                A(f"s_lshr_b32 s{sG}, s{sX}, 1\ns_and_b32 s{sTY}, s{sX}, 1\ns_xor_b32 s{sTY}, s{sTY}, 1")
            else:
                A(f"s_and_b32 s{sG}, s{sX}, 3\ns_lshr_b32 s{sTY}, s{sX}, 2")
                if self.layout == 'hi':
                    A(f"s_xor_b32 s{sTY}, s{sTY}, 1")
            A(f"""
            s_mov_b32 s{sCH}, s{sY}
            s_and_b32 s{sRB}, s{sY}, 3
            s_lshr_b32 s40, s{sY}, 2
            s_lshl3_add_u32 s{sHQ}, s{sG}, s40
            s_lshl2_add_u32 s{sRBQ}, s{sTY}, s{sRB}
            s_mul_i32 s41, s{sG}, s{sTY}
            s_sub_u32 s{sTL}, s{sHQ}, s41
            s_add_u32 s{sUP}, s40, {self.upx}
            s_cmp_ge_u32 s{sUP}, 7
            s_cselect_b32 s41, 7, 0
            s_sub_u32 s{sUP}, s{sUP}, s41
            s_sub_u32 s{sUP}, s{sUP}, s40
            s_add_u32 s{sUP}, s{sUP}, s{sTL}
            s_lshl2_add_u32 s{sR}, s{sG}, s{sRB}
            s_cmp_eq_u32 s40, 7
            s_cselect_b32 s41, s{sTY}, 0
            s_add_u32 s{sTY}, s{sTY}, s41""")
        A(f"""
        s_cmp_lt_u32 s{sX}, 2
        s_cselect_b32 s40, {self.gateA[0]}, {self.gateA[1]}
        s_cselect_b32 s41, {self.gateF[0]}, {self.gateF[1]}
        s_cmp_eq_u32 s{sTY}, 0
        s_cselect_b32 s{sGATE}, s40, s41
        s_movk_i32 s44, {TAGM:#x}
        v_and_b32 v4, 15, v0
        v_lshrrev_b32 v5, 4, v0""")
        if self.stamps or self.probe:
            A(f"s_mov_b32 s96, 0\ns_mov_b32 s94, s{sW}")
        if self.probe:
            A(f"s_waitcnt lgkmcnt(0)\ns_mov_b32 s{sSTAMP+2*self.probe[2]}, s{sSTAMP}")
        A(f"""
        s_cmp_lt_u32 s{sW}, 4
        s_cbranch_scc1 L_awave""")
        L0 = self.L
        self.L = []
        self.swave()
        cut = self.L.index("L_sdispatch:")
        shead, stail = self.L[:cut], self.L[cut:]
        self.L = L0 + shead
        A("s_branch L_sdispatch\nL_awave:")
        self.awave()
        self.L += stail
        self.final()
        A("L_end:")
        A("s_endpgm")
        self.L.append("L_codeend:")
        nv = getattr(self, 'nvo', None) or 200
        self.L += ['.section .rodata,"a"', ".p2align 6", f".amdhsa_kernel {KN}",
                   f"  .amdhsa_next_free_vgpr {nv}", "  .amdhsa_next_free_sgpr 102", f"  .amdhsa_accum_offset {nv}",
                   "  .amdhsa_group_segment_fixed_size 0", "  .amdhsa_kernarg_size 96", "  .amdhsa_user_sgpr_count 2",
                   "  .amdhsa_user_sgpr_kernarg_segment_ptr 1", "  .amdhsa_system_sgpr_workgroup_id_x 1",
                   "  .amdhsa_float_denorm_mode_32 3", ".end_amdhsa_kernel"]
        return "\n".join(self.L) + "\n"

    def write_stamps(self, n):
        if self.probe:
            wg, wave, k = self.probe[:3]
            ty = self.probe[3] if len(self.probe) > 3 else None
            self.stamp(n)
            d = self.lab("Lprobe_done"); l = self.lab("Lprobe")
            self.A(f"""
            s_waitcnt lgkmcnt(0)
            s_getreg_b32 s41, hwreg(HW_REG_XCC_ID, 0, 4)
            {f's_cmp_eq_u32 s41, {-wg-100}' if wg <= -100 else f"s_cmp_eq_u32 s2, {wg if wg >= 0 else 's2'}"}
            s_cbranch_scc0 {d}
            s_cmp_eq_u32 s94, {wave}
            s_cbranch_scc0 {d}
            s_cmp_eq_u32 s{sTY}, {ty if ty is not None else f's{sTY}'}
            s_cbranch_scc0 {d}
            s_add_u32 s40, s{sSTAMP+2*k}, 4000
            {l}:
            s_memrealtime s[42:43]
            s_waitcnt lgkmcnt(0)
            s_sub_u32 s41, s42, s40
            s_cmp_lt_i32 s41, 0
            s_cbranch_scc1 {l}
            {d}:""")
            return
        if not self.stamps:
            return
        self.stamp(n)
        A = self.A
        A(f"""
        s_waitcnt lgkmcnt(0)
        s_mov_b64 exec, -1
        s_lshl3_add_u32 s40, s2, s94
        s_lshl_b32 s40, s40, 6
        s_add_u32 s40, s40, {WS_ST:#x}
        v_mov_b32 v1, 0""")
        for k in range(n + 1):
            A(f"v_writelane_b32 v1, s{sSTAMP+2*k}, {k}")
        A(f"""
        s_getreg_b32 s41, hwreg(HW_REG_XCC_ID)
        s_and_b32 s41, s41, 0xf
        s_lshl4_add_u32 s41, s96, s41
        v_writelane_b32 v1, s41, 15
        v_lshl_add_u32 v2, v0, 2, s40
        s_mov_b64 exec, 0xffff
        global_store_dword v2, v1, s[26:27]""")

    def swave(self):
        A = self.A
        vI, vJ = 4, 5
        vAq, vA1, vA2, vA3, vAw, vRed, vPub = 6, 7, 8, 9, 10, 11, 14
        vPS, vXQ, vXG, vSEL, aQ, aG, aU, vT = 16, 24, 28, 36, 40, 44, 48, 52
        RING, BIG = 56, 120
        A(f"""
        L_swave:
        s_sub_u32 s{sW}, s{sW}, 4
        s_lshl2_add_u32 s40, s{sRBQ}, s{sW}
        s_lshl_b32 s40, s40, 18
        s_lshl_b32 s41, s{sHQ}, 8
        s_add_u32 s40, s40, s41
        v_lshlrev_b32 v13, 4, v{vI}
        v_lshl_add_u32 v{vAq}, v{vJ}, 13, v13
        v_add_u32 v{vAq}, s40, v{vAq}
        s_mov_b32 s45, 0x8000
        s_waitcnt lgkmcnt(0)""")
        for m in range(8):
            A(f"global_load_dwordx4 v[{RING+4*m}:{RING+4*m+3}], v{vAq}, s[10:11] nt")
            if m < 7:
                A(f"v_add_u32 v{vAq}, s45, v{vAq}")
        A(f"s_load_dword s{sT32}, s[26:27], {WS_E}")
        self.stamp(1)
        A(f"""
        ; wo / down: rows tile*128 + 8*m + (l>>3), columns cb*256 + sw*64 + 8*(l&7)
        v_lshrrev_b32 v12, 3, v0
        v_and_b32 v1, 7, v0
        v_lshlrev_b32 v2, 4, v1
        v_lshl_add_u32 v{vAw}, v12, 11, v2
        s_lshl2_add_u32 s42, s{sRB}, s{sW}
        s_lshl_b32 s40, s42, 7
        s_lshl_b32 s41, s{sTL}, 18
        s_add_u32 s40, s40, s41
        v_add_u32 v{vAw}, s40, v{vAw}
        s_movk_i32 s45, 0x4000
        v_lshl_add_u32 v1, v1, 1, v{vJ}
        s_lshl_b32 s40, s42, 8
        v_lshl_add_u32 v{vPub}, v1, 4, s40
        ; LDS offset of this lane's partial granule: (2*(l&15) + J)*16
        v_lshl_add_u32 v{vRed}, v{vI}, 1, v{vJ}
        v_lshlrev_b32 v{vRed}, 4, v{vRed}
        s_mov_b32 s40, 0xaaaaaaaa
        s_mov_b32 s41, 0xaaaaaaaa
        v_mov_b32 v1, 0x0c0c0100
        v_mov_b32 v2, 0x01000c0c
        v_cndmask_b32 v1, v1, v2, s[40:41]
        v_mov_b32 v2, 0x0c0c0302
        v_mov_b32 v3, 0x03020c0c
        v_cndmask_b32 v2, v2, v3, s[40:41]
        v_mov_b32 v3, 0x0c0c0c0c""")
        for d in range(4):
            m = 0x03030303 << (2*d)
            A(f"""
            s_mov_b32 s40, {m:#x}
            s_mov_b32 s41, {m:#x}
            v_cndmask_b32 v{vPS+d}, v3, v1, s[40:41]
            v_cndmask_b32 v{vPS+4+d}, v3, v2, s[40:41]""")
        A(f"""
        s_barrier
        s_waitcnt lgkmcnt(0)
        s_add_u32 s{sT32}, s{sT32}, 1
        s_and_b32 s{sT10}, s{sT32}, s44
        v_mov_b32 v3, s{sT10}
        s_cmp_ge_u32 s{sTY}, 1
        s_cbranch_scc1 L_s_notattn
        L_sdispatch:""")

        def sel(m, dst, src):
            for d in range(4):
                A(f"v_perm_b32 v{dst+d}, v{src+(m>>1)}, v{src+(m>>1)}, v{vPS+4*(m&1)+d}")

        def mfma(acc, s, w, first):
            c = "0" if first else f"v[{acc}:{acc+3}]"
            A(f"v_mfma_f32_16x16x32_bf16 v[{acc}:{acc+3}], v[{s}:{s+3}], v[{w}:{w+3}], {c}")

        def get_xn(ffn):
            A(f"s_lshl_b32 s41, s{sW}, 2\ns_add_u32 s41, s41, {C_XN}")
            self.lds_spin("s41", 1, sleep=0)
            A(f"""
            s_lshl_b32 s40, s{sW}, 6
            v_lshl_add_u32 v2, v{vJ}, 4, s40
            ds_read_b128 v[{vXQ}:{vXQ+3}], v2 offset:{L_XQ}""")
            if ffn:
                A(f"""
                v_lshlrev_b32 v2, 1, v2
                ds_read_b128 v[{vXG}:{vXG+3}], v2 offset:{L_XG}
                ds_read_b128 v[{vXG+4}:{vXG+7}], v2 offset:{L_XG+16}""")
            A("s_waitcnt lgkmcnt(0)")
            self.stamp(3)
            sel(0, vSEL, vXQ)
            A("s_nop 1")

        def red_write(accs, lbase, shift, cnt):
            A(f"s_lshl_b32 s40, s{sW}, {shift}\nv_add_u32 v1, s40, v{vRed}\ns_mov_b32 exec_hi, 0")
            for i, a in enumerate(accs):
                A(f"ds_write_b128 v1, v[{a}:{a+3}] offset:{lbase + 512*i}")
            self.arrive(cnt, want_old=False)

        def kvflag(c):
            A(f"""
            s_lshl_b32 s40, s{sW}, 2
            s_mov_b64 exec, 1
            v_mov_b32 v1, s40
            v_mov_b32 v2, 1
            ds_write_b32 v1, v2 offset:{c}
            s_mov_b64 exec, -1""")

        def issue(op, i):
            kind, m = op
            slot = RING + 4*(i % 16)
            if kind in "kv":
                va, sb, x = (vA1, 6, 64*(m & 3)) if kind == "k" else (vA2, 8, 128*(m & 1))
                if m % 4 == 0:
                    if i > 8:
                        A(f"s_add_u32 s47, s47, {4096 if m == 4 else L_V - L_K - 4096}")
                    A("s_mov_b32 m0, s47")
                    if m == 4:
                        A(f"v_add_u32 v{va}, 4096, v{va}")
                A(f"v_xor_b32 v1, {x}, v{va}")
                A(f"global_load_lds_dwordx4 v1, s[{sb}:{sb+1}] offset:{1024*(m&3)} nt")
            elif kind in "gu":
                va, sb = (vA1, 16) if kind == "g" else (vA2, 18)
                A(f"global_load_dwordx4 v[{slot}:{slot+3}], v{va}, s[{sb}:{sb+1}] nt")
                if m < 15:
                    A(f"v_add_u32 v{va}, s46, v{va}")
            elif kind in "do":
                sb = 20 if kind == "d" else 12
                A(f"global_load_dwordx4 v[{BIG+4*m}:{BIG+4*m+3}], v{vAw}, s[{sb}:{sb+1}] nt")
                if m < 15:
                    A(f"v_add_u32 v{vAw}, s45, v{vAw}")

        def process(op, i, ffn):
            kind, m = op
            slot = RING + 4*(i % 16)
            if kind == "q":
                mfma(aQ, vSEL, slot, m == 0)
                if m < 7:
                    sel(m + 1, vSEL, vXQ)
                    A("s_nop 1")
                else:
                    if ffn:
                        sel(0, vSEL, vXG)
                        A("s_nop 0")
                    else:
                        A("s_nop 4")
                    red_write([aQ], L_RQ, 9, C_Q)
                    self.stamp(4)
            elif kind in "kv" and m == 7:
                l = self.lab("Lkvf")
                if self.after_pause:
                    A(f"s_cmp_lg_u32 s43, 0\ns_cbranch_scc1 {l}")
                kvflag(C_K if kind == "k" else C_V)
                if kind == "v":
                    self.stamp(5)
                A(f"{l}:")
            elif kind == "g":
                mfma(aG, vSEL, slot, m == 0)
            elif kind == "u":
                mfma(aU, vSEL, slot, m == 0)
                if m < 15:
                    sel(m + 1, vSEL, vXG)
                    A("s_nop 1")
                else:
                    A("s_nop 4")
                    red_write([aG, aU], L_RG, 10, C_G)
                    self.stamp(6)

        def stream(ops, wfun, ffn, start=8, landed=0, hold=0, holdcnt=0):
            if 'noa' in self.abl or 'nofin' in self.abl:
                hold = 0
            for i in range(start, len(ops)):
                w = wfun(i)
                if hold and i == len(ops) - hold:
                    assert landed >= start
                    self.lds_spin(C_HB, holdcnt, sleep=1)
                if hold and i >= len(ops) - hold:
                    w = max(w, hold)
                A(f"s_waitcnt vmcnt({w-1})")
                issue(ops[i], i)
                if i < self.xnpos:
                    continue
                if i == self.xnpos:
                    get_xn(ffn)
                while landed <= i - w:
                    process(ops[landed], landed, ffn); landed += 1
            return landed

        def drain(ops, landed, upto, ffn):
            n = len(ops)
            while landed < upto:
                if ops[landed][0] in "qgu":
                    A(f"s_waitcnt vmcnt({n - 1 - landed})")
                    process(ops[landed], landed, ffn)
                landed += 1
            return landed

        def final_gemv(val, first, nops, landed, wsb):
            A(f"""
            v_lshlrev_b32 v15, 5, v12
            s_mul_i32 s40, s{sTL}, {ROWP}
            s_add_u32 s40, s40, {wsb:#x}
            v_add_u32 v{vPub}, s40, v{vPub}""")
            rd = f"ds_read_b128 v[{vXG}:{vXG+3}], v15 offset:{L_VEC}\nds_read_b128 v[{vXG+4}:{vXG+7}], v15 offset:{L_VEC+16}"
            if 'noa' not in self.abl and 'nofin' not in self.abl:
                self.lds_spin(C_FO, val, sleep=0, reads=rd)
            else:
                A(rd + "\ns_waitcnt lgkmcnt(0)")
            self.stamp(8)
            self.L.append(".p2align 3")
            late = [m for m in range(16) if first + m >= landed]
            early = [m for m in range(16) if first + m < landed]
            for k, m in enumerate(early):
                sel(m, RING + 4*m, vXG)
                if k:
                    mfma(aQ, RING + 4*early[k-1], BIG + 4*early[k-1], k == 1)
            for k, m in enumerate(late):
                sel(m, RING + 4*m, vXG)
                if k == 0 and early:
                    mfma(aQ, RING + 4*early[-1], BIG + 4*early[-1], len(early) == 1)
            self.stamp(9)
            for k, m in enumerate(late):
                A(f"s_waitcnt vmcnt({nops - 1 - (first + m)})")
                mfma(aQ, RING + 4*m, BIG + 4*m, k == 0 and not early)
            g = vT
            A(f"""
            s_nop 7
            v_permlane32_swap_b32 v{aQ}, v{aQ+2}
            v_permlane32_swap_b32 v{aQ+1}, v{aQ+3}
            s_nop 0
            v_add_f32_dpp v{g}, v{aQ+2}, v{aQ} row_shl:8 row_mask:0xf bank_mask:0xf bound_ctrl:1
            v_add_f32_dpp v{g+1}, v{aQ+3}, v{aQ+1} row_shl:8 row_mask:0xf bank_mask:0xf bound_ctrl:1""")
            self.tag(g); self.tag(g + 1)
            A(f"""
            s_nop 0
            v_permlane32_swap_b32 v{g}, v{g+2}
            v_permlane32_swap_b32 v{g+1}, v{g+3}
            s_mov_b64 exec, 0x00ff00ff
            global_store_dwordx4 v{vPub}, v[{g}:{g+3}], s[26:27] sc1
            s_mov_b64 exec, -1""")

        qops = [("q", m) for m in range(8)]
        A(f"""
        s_lshl_b32 s40, s{sG}, 24
        s_lshl_b32 s41, s{sCH}, 15
        s_add_u32 s40, s40, s41
        s_lshl_b32 s47, s{sW}, 13
        s_add_u32 s40, s40, s47
        s_add_u32 s47, s47, {L_K}
        s_add_u32 s40, s40, {(65536-4096)*256:#x}
        v_xor_b32 v1, v{vI}, v{vJ}
        v_lshlrev_b32 v1, 4, v1
        v_lshl_add_u32 v1, v{vJ}, 8, v1
        v_add_u32 v{vA1}, s40, v1
        v_lshlrev_b32 v1, 1, v{vJ}
        v_xor_b32 v1, v{vI}, v1
        v_lshlrev_b32 v1, 4, v1
        v_lshl_add_u32 v1, v{vJ}, 8, v1
        v_add_u32 v{vA2}, s40, v1""")
        ops = qops + [("k", m) for m in range(8)] + [("v", m) for m in range(8)]
        WA = self.WA
        self.after_pause = False
        landed = stream(ops, lambda i: WA[0] if i < 14 else WA[1], False)
        self.after_pause = True
        A("s_mov_b32 s43, 0")
        if self.pause and 'noa' not in self.abl:
            go = self.lab("Lgo")
            if 0 in self.gateA:
                A(f"s_cmp_eq_u32 s{sGATE}, 0\ns_cbranch_scc1 {go}")
            A(f"""
            v_mov_b32 v1, {C_GA}
            ds_read_b32 v2, v1
            s_waitcnt lgkmcnt(0)
            v_readfirstlane_b32 s{sTMP}, v2
            s_cmp_eq_u32 s{sTMP}, 4
            s_cbranch_scc1 {go}
            s_waitcnt vmcnt(0)
            s_mov_b32 s43, 1""")
            assert landed >= 8
            if landed < 16:
                kvflag(C_K)
            kvflag(C_V)
            self.stamp(5)
            self.lds_spin(C_GA, 4, sleep=1)
            A(f"{go}:")
            self.stamp(6)
        ops = ops + [("o", m) for m in range(16)]
        for w3 in ([self.WAe, WA[2]] if self.WAe else [WA[2]]):
            nxt = self.lab("Lsa")
            if self.WAe and w3 == self.WAe:
                A(f"s_cmp_lt_u32 s{sX}, 2\ns_cbranch_scc0 {nxt}")
            l2 = stream(ops, lambda i: w3 if (i < 32 or len(WA) < 4) else WA[3], False, start=24, landed=landed, hold=self.HA, holdcnt=4)
            assert l2 >= 24
            self.stamp(7)
            final_gemv(4, 24, 40, l2, WS_BS)
            self.write_stamps(10)
            A(f"s_endpgm\n{nxt}:")
        A(f"""
        L_s_notattn:
        s_cmp_ge_u32 s{sTY}, 2
        s_cbranch_scc1 L_s_last
        s_lshl2_add_u32 s40, s{sRB}, s{sW}
        s_mul_i32 s40, s40, {64*7168}
        v_mul_u32_u24 v1, 7168, v{vJ}
        v_add3_u32 v1, v1, v13, s40
        s_lshl_b32 s41, s{sTL}, 8
        v_add_u32 v{vA1}, s41, v1
        s_lshl_b32 s41, s{sUP}, 8
        v_add_u32 v{vA2}, s41, v1
        s_movk_i32 s46, {7168*4}""")
        ops = qops + [(k, m) for m in range(16) for k in "gu"] + [("d", m) for m in range(16)]
        WF = self.WF
        landed = stream(ops[:40], lambda i: WF[0] if i < 14 else WF[1], True)
        gated = self.lab("Lsfg")
        if any(self.gateF) and 'noa' not in self.abl:
            A(f"s_cmp_lg_u32 s{sGATE}, 0\ns_cbranch_scc1 {gated}")
        if 0 in self.gateF or 'noa' in self.abl:
            l2 = stream(ops, lambda i: WF[2] if (i < 48 or len(WF) < 4) else WF[3], True, start=40, landed=landed, hold=self.HF, holdcnt=1)
            assert l2 >= 40
            self.stamp(7)
            final_gemv(1, 40, 56, l2, WS_BF)
            self.write_stamps(10)
            A("s_endpgm")
        if any(self.gateF) and 'noa' not in self.abl:
            A(f"{gated}:")
            l2 = drain(ops[:40], landed, 40, True)
            self.lds_spin(C_GA, 1, sleep=1)
            l2 = stream(ops, lambda i: self.WFe or WF[2], True, start=40, landed=l2)
            self.stamp(7)
            final_gemv(1, 40, 56, l2, WS_BF)
            self.write_stamps(10)
            A("s_endpgm")
        A("L_s_last:")
        get_xn(False)
        drain(qops, 0, 8, False)
        A(f"s_add_u32 s{sW}, s{sW}, 4\ns_branch L_final")

    def red_publish(self, lbase, pitch, cnt, nl, addr_code, nrep, flagv=None, sleep=1, val=sT32, local=False):
        A = self.A
        t = 16
        A("v_lshlrev_b32 v10, 4, v0")
        A(addr_code)
        if local and self.warm is not None:
            self.exec_set(0x0101010101010101)
            A(f"global_load_dword v54, v11, s[26:27] {self.warm}\ns_mov_b64 exec, -1")
        self.lds_spin(cnt, 4, sleep=sleep, reads="\n".join(f"ds_read_b128 v[{t+4*k}:{t+4*k+3}], v10 offset:{lbase+pitch*k}" for k in range(4)))
        if local and self.earlyD:
            l = self.lab("Lef")
            A(f"s_cmp_lg_u32 s101, 0\ns_cbranch_scc1 {l}")
            self.flag_store(nrep, flagv, val)
            A(f"{l}:")
        if nl == 32:
            A("s_mov_b32 exec_hi, 0")
        for h in (0, 2):
            A(f"v_pk_add_f32 v[{t+h}:{t+h+1}], v[{t+h}:{t+h+1}], v[{t+4+h}:{t+5+h}]")
            A(f"v_pk_add_f32 v[{t+8+h}:{t+9+h}], v[{t+8+h}:{t+9+h}], v[{t+12+h}:{t+13+h}]")
        for h in (0, 2):
            A(f"v_pk_add_f32 v[{t+h}:{t+h+1}], v[{t+h}:{t+h+1}], v[{t+8+h}:{t+9+h}]")
        for r in range(4):
            self.tag(t + r)
        if local:
            rem = self.lab("Lremote"); fl = self.lab("Lpub")
            A(f"""
            s_cmp_lg_u32 s101, 0
            s_cbranch_scc1 {rem}
            global_store_dwordx4 v11, v[{t}:{t+3}], s[26:27]
            s_branch {fl if not self.earlyD else fl + '_done'}
            {rem}:
            global_store_dwordx4 v11, v[{t}:{t+3}], s[26:27] sc1
            {fl}:""")
            self.flag_store(nrep, flagv, val)
            A(f"{fl}_done:")
        else:
            A(f"global_store_dwordx4 v11, v[{t}:{t+3}], s[26:27] sc1")
            self.flag_store(nrep, flagv, val)

    def awave(self):
        A = self.A
        vKF, vVF, vGT, vU = 56, 184, 216, 232
        vQF, vS = 216, 16
        vI, vJ = 4, 5
        vA0, vA1 = 6, 7
        vT = 16
        x0, xr = 56, 72
        A(f"""
        s_setprio 3
        s_lshl2_add_u32 s40, s{sRB}, s{sW}
        s_lshl_b32 s40, s40, 6
        v_lshlrev_b32 v14, 5, v0
        v_add_lshl_u32 v1, v0, s40, 1
        s_lshl2_add_u32 s40, s{sRBQ}, s{sW}
        s_lshl_b32 s40, s40, 5
        v_and_b32 v15, 31, v0
        v_add_lshl_u32 v15, v15, s40, 1
        v_mov_b32 v10, 0
        v_and_b32 v2, 31, v0
        v_lshlrev_b32 v2, 2, v2
        ds_write_b32 v2, v10 offset:{L_CNT}
        s_waitcnt lgkmcnt(0)
        global_load_dwordx4 v[{xr}:{xr+3}], v14, s[4:5]
        global_load_dwordx4 v[{xr+4}:{xr+7}], v14, s[4:5] offset:16
        global_load_ushort v{xr+8}, v15, s[4:5]
        global_load_ushort v{xr+9}, v1, s[4:5]
        s_load_dword s{sT32}, s[26:27], {WS_E}""")
        if self.touch:
            tf = self.lab("Ltf"); td = self.lab("Ltd")
            A(f"""
            s_cmp_eq_u32 s{sW}, 0
            s_cbranch_scc0 {td}
            s_lshl_b32 s41, s{sTL}, 18
            s_cmp_eq_u32 s{sTY}, 0
            s_cbranch_scc0 {tf}
            s_lshl_b32 s40, s{sG}, 24
            s_add_u32 s40, s40, {(65536-4096)*256:#x}
            s_load_dword s48, s[6:7], s40
            s_load_dword s49, s[8:9], s40
            s_load_dword s50, s[12:13], s41
            s_branch {td}
            {tf}:
            s_load_dword s48, s[22:23], 0
            s_cmp_eq_u32 s{sTY}, 1
            s_cbranch_scc0 {td}
            s_mul_i32 s40, s{sRB}, {256*7168}
            s_add_u32 s42, s40, {255*7168}
            s_load_dword s49, s[16:17], s40
            s_load_dword s50, s[18:19], s40
            s_load_dword s51, s[16:17], s42
            s_load_dword s52, s[18:19], s42
            s_load_dword s53, s[20:21], s41
            {td}:""")
        A("s_barrier")
        self.stamp(1)
        A(f"s_waitcnt vmcnt(0) lgkmcnt(0)")
        self.stamp(11)
        for i in range(8):
            A(f"v_lshlrev_b32 v{x0+2*i}, 16, v{xr+i}\nv_and_b32 v{x0+2*i+1}, 0xffff0000, v{xr+i}")
        A(f"v_pk_add_f32 v[{vT}:{vT+1}], v[{x0}:{x0+1}], v[{x0+2}:{x0+3}]")
        A(f"v_pk_add_f32 v[{vT+2}:{vT+3}], v[{x0+4}:{x0+5}], v[{x0+6}:{x0+7}]")
        for i in range(4, 8, 2):
            A(f"v_pk_add_f32 v[{vT}:{vT+1}], v[{vT}:{vT+1}], v[{x0+2*i}:{x0+2*i+1}]")
            A(f"v_pk_add_f32 v[{vT+2}:{vT+3}], v[{vT+2}:{vT+3}], v[{x0+2*i+2}:{x0+2*i+3}]")
        A(f"v_pk_add_f32 v[{vT}:{vT+1}], v[{vT}:{vT+1}], v[{vT+2}:{vT+3}]")
        A(f"v_add_f32 v{vT}, v{vT}, v{vT+1}")
        self.allreduce_in_row(vT)
        self.allreduce_rows(vT, vT+1, "v_add_f32")
        A(f"v_mul_f32 v{vT}, {f2u(1.0/1024):#x}, v{vT}")
        for i in range(8):
            A(f"v_pk_add_f32 v[{x0+2*i}:{x0+2*i+1}], v[{x0+2*i}:{x0+2*i+1}], v[{vT}:{vT+1}] op_sel_hi:[1,0] neg_lo:[0,1] neg_hi:[0,1]")
        A(f"v_pk_mul_f32 v[{vT+2}:{vT+3}], v[{x0}:{x0+1}], v[{x0}:{x0+1}]")
        A(f"v_pk_mul_f32 v[{vT+4}:{vT+5}], v[{x0+2}:{x0+3}], v[{x0+2}:{x0+3}]")
        for i in range(2, 8):
            d = vT + 2 + 2*(i & 1)
            A(f"v_pk_fma_f32 v[{d}:{d+1}], v[{x0+2*i}:{x0+2*i+1}], v[{x0+2*i}:{x0+2*i+1}], v[{d}:{d+1}]")
        A(f"v_pk_add_f32 v[{vT+2}:{vT+3}], v[{vT+2}:{vT+3}], v[{vT+4}:{vT+5}]")
        A(f"v_add_f32 v{vT+2}, v{vT+2}, v{vT+3}")
        r = xr + 8
        self.bf16_round(vT, vT)
        self.allreduce_in_row(vT+2)
        A(f"""
        v_lshlrev_b32 v{r}, 16, v{r}
        v_lshlrev_b32 v{r+1}, 16, v{r+1}
        v_pk_add_f32 v[{r}:{r+1}], v[{r}:{r+1}], v[{vT}:{vT+1}] op_sel_hi:[1,0] neg_lo:[0,1] neg_hi:[0,1]""")
        self.allreduce_rows(vT+2, vT+3, "v_add_f32")
        A(f"v_mul_f32 v{vT+2}, {f2u(1.0/1024):#x}, v{vT+2}")
        self.bf16_round(vT+2, vT+2)
        A(f"v_add_f32 v{vT+2}, {f2u(1e-5):#x}, v{vT+2}")
        self.bf16_round(vT+2, vT+2)
        A(f"""
        v_sqrt_f32 v{vT+2}, v{vT+2}
        v_cvt_pk_bf16_f32 v{r+1}, v{r}, v{r+1}
        v_lshlrev_b32 v{r}, 16, v{r+1}
        v_and_b32 v{r+1}, 0xffff0000, v{r+1}""")
        self.bf16_round(vT+2, vT+2)
        A(f"""
        v_rcp_f32 v{vT+2}, v{vT+2}
        v_and_b32 v1, 3, v0
        v_lshrrev_b32 v2, 2, v0
        v_lshlrev_b32 v2, 1, v2
        v_pk_mul_f32 v[{r}:{r+1}], v[{r}:{r+1}], v[{vT+2}:{vT+3}] op_sel_hi:[1,0]
        s_lshl_b32 s40, s{sW}, 6
        v_lshl_add_u32 v10, v1, 4, s40
        v_lshl_add_u32 v11, v10, 1, v2
        v_add_u32 v10, v10, v2
        v_cvt_pk_bf16_f32 v{r}, v{r}, v{r+1}
        s_lshl_b32 s40, s{sW}, 2
        v_mov_b32 v2, s40
        v_mov_b32 v1, 1
        ds_write_b16_d16_hi v11, v{r} offset:{L_XG}
        s_mov_b32 exec_hi, 0
        ds_write_b16 v10, v{r} offset:{L_XQ}
        s_mov_b64 exec, 1
        ds_write_b32 v2, v1 offset:{C_XN}
        s_mov_b64 exec, -1
        s_add_u32 s{sT32}, s{sT32}, 1
        s_and_b32 s{sT10}, s{sT32}, s44
        v_mov_b32 v3, s{sT10}""")
        self.stamp(12)
        if self.wtest:
            pre, mod, n = self.wtest
            A(f"s_cmp_eq_u32 s{sW}, 3\ns_cbranch_scc0 L_adone")
            A(f"s_mul_i32 s42, s2, {n*1024}\ns_add_u32 s42, s42, 0x800000\nv_lshl_add_u32 v10, v0, 4, s42")
            if pre == 's':
                A("s_add_u32 s40, s26, s42\ns_addc_u32 s41, s27, 0")
                for i in range(n*16):
                    A(f"s_load_dword s48, s[40:41], {64*i} glc")
                A("s_waitcnt lgkmcnt(0)")
            elif pre:
                for i in range(n):
                    A(f"global_load_dwordx4 v[20:23], v10, s[26:27] offset:{1024*i} {pre[1:]}")
                A("s_waitcnt vmcnt(0)")
            self.lds_spin(C_Q, 4, sleep=1)
            A("s_sleep 64")
            for i in range(n):
                A(f"global_store_dwordx4 v10, v[16:19], s[26:27] offset:{1024*i} {mod}")
        if 'noa' in self.abl:
            A("s_branch L_adone")
        if self.local:
            A(f"""
            s_getreg_b32 s45, hwreg(HW_REG_XCC_ID, 0, 4)
            s_lshl_b32 s45, s45, 28
            s_cmp_eq_u32 s{sTY}, 0
            s_cselect_b32 s45, s45, 0
            s_xor_b32 s45, s45, s{sT32}""")
        nq = self.lab("Lnoq")
        A(f"s_cmp_eq_u32 s{sW}, 3\ns_cbranch_scc0 {nq}")
        self.red_publish(L_RQ, 512, C_Q, 32, f"""
            s_lshl3_add_u32 s41, s{sHQ}, s{sRBQ}
            s_lshl_b32 s40, s41, 9
            s_add_u32 s40, s40, {WS_BQ:#x}
            v_add_u32 v11, s40, v10
            s_lshr_b32 s40, s41, 4
            s_and_b32 s41, s41, 15
            s_lshl_b32 s40, s40, 5
            s_add_u32 s40, s40, s41
            s_lshl_b32 s40, s40, 2
            s_add_u32 s40, s40, {WS_FLA:#x}""", self.nrepA, val=(45 if self.local else sT32))
        self.stamp(13)
        A(f"""
        {nq}:
        s_cmp_ge_u32 s{sTY}, 2
        s_cbranch_scc1 L_final
        s_cmp_ge_u32 s{sTY}, 1
        s_cbranch_scc1 L_ffn""")
        if 'stop1' in self.abl:
            self.arrive(C_GA, want_old=False); A("s_branch L_adone")
        vKF, vVF, vGT, vQF, vO = 56, 88, 120, 152, 168
        vS, U, Z = 16, 24, 28
        A(f"""
        s_lshl2_add_u32 s41, s{sG}, s{sW}
        s_lshl_b32 s40, s41, 13
        s_add_u32 s40, s40, {WS_BQ + 2048:#x}
        v_and_b32 v12, 31, v0
        v_lshrrev_b32 v13, 5, v0
        v_lshlrev_b32 v1, 4, v12
        v_lshl_add_u32 v1, v13, 12, v1
        v_add_u32 v{vA0}, s40, v1
        s_and_b32 s40, s{sCH}, {self.nrepA-1}
        s_mul_i32 s40, s40, {REPP}
        s_lshl_b32 s41, s41, 7
        s_add_u32 s40, s40, s41
        s_add_u32 s95, s40, {WS_FLA:#x}
        s_lshl_b32 s40, s{sW}, 1
        v_add_u32 v13, s40, v13
        v_mul_u32_u24 v13, {QLP}, v13
        v_lshl_add_u32 v13, v12, 3, v13
        v_and_b32 v10, 7, v0
        s_lshl_b32 s40, s{sG}, 5
        s_add_u32 s41, s40, s{sCH}
        s_mul_i32 s41, s41, {BOP}
        s_lshl_b32 s42, s{sW}, 7
        s_add_u32 s41, s41, s42
        s_add_u32 s41, s41, {WS_BO:#x}
        v_lshlrev_b32 v8, 9, v10
        v_bfe_u32 v11, v0, 3, 1
        v_lshl_add_u32 v8, v11, 6, v8
        v_lshl_add_u32 v8, v{vJ}, 4, v8
        v_add_u32 v8, s41, v8
        s_add_u32 s40, s40, s{sCH}
        s_lshl_b32 s40, s40, 7
        s_add_u32 s40, s40, {WS_BML:#x}
        v_lshl_add_u32 v9, v10, 4, s40
        v_mul_u32_u24 v12, {QLP}, v10
        v_lshl_add_u32 v12, v{vJ}, 4, v12
        s_mov_b32 s46, {f2u(128 ** -0.5):#x}
        s_mov_b32 s47, {f2u(128 ** -0.5):#x}
        s_lshl_b32 s40, s{sW}, 13
        v_xor_b32 v14, v{vI}, v{vJ}
        v_lshlrev_b32 v14, 4, v14
        v_lshl_add_u32 v14, v{vI}, 8, v14
        v_add_u32 v14, s40, v14
        v_bfe_u32 v10, v0, 2, 2
        v_lshl_add_u32 v10, v{vJ}, 2, v10
        v_and_b32 v11, 7, v10
        v_lshlrev_b32 v11, 1, v11
        v_bfe_u32 v1, v0, 1, 1
        v_xor_b32 v11, v11, v1
        v_lshlrev_b32 v11, 4, v11
        v_lshl_add_u32 v11, v10, 8, v11
        v_and_b32 v1, 1, v0
        v_lshl_add_u32 v11, v1, 3, v11
        s_add_u32 s41, s40, {L_V}
        v_add_u32 v11, s41, v11
        ; exchange area (this wave's K rows, dead once the fragments are in registers)
        v_lshl_add_u32 v15, v0, 4, s40
        s_lshl_b32 s41, s{sW}, 10
        v_lshl_add_u32 v10, v0, 4, s41""")
        self.mask(("s92", "s93"), 0xFF00FF00FF00FF00)
        if self.warm is not None and self.warmO:
            A(f"""
            s_mov_b64 exec, 0xff
            global_load_dword v54, v8, s[26:27] {self.warm}
            s_mov_b64 exec, 1
            global_load_dword v53, v9, s[26:27] {self.warm}
            s_mov_b64 exec, -1""")

        def kreads():
            A(f"s_lshl_b32 s41, s{sW}, 2\ns_add_u32 s41, s41, {C_K}")
            self.lds_spin("s41", 1, sleep=1)
            for s in range(4):
                if s:
                    A(f"v_xor_b32 v2, {64*s}, v14")
                for t in range(2):
                    r = vKF + 16*t + 4*s
                    A(f"ds_read_b128 v[{r}:{r+3}], v{2 if s else 14} offset:{L_K + 4096*t}")
            self.stamp(3)

        if self.kfirst:
            kreads()
        A("s_mov_b32 s40, s95")
        if self.local:
            l = self.lab("Lpoll"); r = self.lab("Lretry")
            A(f"""
            s_mov_b32 s{sSPIN}, 0
            s_mov_b32 s42, s{sT32}
            s_mov_b32 s43, s{sT32}
            s_mov_b32 s4, s45
            s_mov_b32 s5, s45
            s_branch {l}
            {r}:
            s_sleep {self.psleep}
            {l}:
            s_load_dwordx16 s[{sP}:{sP+15}], s[26:27], s40 glc
            s_add_u32 s{sSPIN}, s{sSPIN}, 1
            s_cmp_gt_u32 s{sSPIN}, {SPIN_MAX}
            s_cbranch_scc1 L_end
            s_waitcnt lgkmcnt(0)""")
            for i in range(8):
                A(f"s_xor_b64 s[{sP+2*i}:{sP+2*i+1}], s[{sP+2*i}:{sP+2*i+1}], s[{'4:5' if (i & 2) == 0 else '42:43'}]")
            for step in (2, 4, 8):
                for i in range(0, 16, 2*step):
                    A(f"s_or_b64 s[{sP+i}:{sP+i+1}], s[{sP+i}:{sP+i+1}], s[{sP+i+step}:{sP+i+step+1}]")
            A(f"""
            s_or_b32 s{sP}, s{sP}, s{sP+1}
            s_and_b32 s{sP+1}, s{sP}, 0x0fffffff
            s_cbranch_scc1 {r}
            s_cmp_lg_u32 s{sP}, 0
            s_cselect_b32 s101, 0x101, 1""")
        else:
            self.flag_poll(16)
        self.stamp(2)
        if 'stop2' in self.abl:
            self.arrive(C_GA, want_old=False); A("s_branch L_adone")
        rq = self.lab("Lgq")
        A(f"s_mov_b32 s45, 0\n{rq}:")
        for n in range(8):
            A(f"global_load_dwordx4 v[{vGT+4*n}:{vGT+4*n+3}], v{vA0}, s[26:27] offset:{512*n - 2048} sc1")
        skip = self.lab("Lkvdone")
        A(f"s_cmp_lg_u32 s45, 0\ns_cbranch_scc1 {skip}\ns_mov_b32 s45, 1")
        self.gate(1, self.gateA)
        def vreads():
            A(f"s_lshl_b32 s41, s{sW}, 2\ns_add_u32 s41, s41, {C_V}")
            self.lds_spin("s41", 1, sleep=0)
            for dt in range(8):
                if dt:
                    A(f"v_xor_b32 v14, {32*dt}, v11")
                for t in range(2):
                    r = vVF + 4*dt + 2*t
                    A(f"ds_read_b64_tr_b16 v[{r}:{r+1}], v{14 if dt else 11} offset:{4096*t}")

        if not self.kfirst:
            kreads()
        if not self.vlate:
            vreads()
        A(f"""
        s_lshr_b32 s40, s{sCH}, 4
        s_lshl1_add_u32 s40, s{sG}, s40
        s_lshl_b32 s40, s40, 5
        s_and_b32 s41, s{sCH}, 15
        s_add_u32 s40, s40, s41
        s_lshl_b32 s40, s40, 2
        s_add_u32 s95, s40, {WS_FLB:#x}""")
        A(f"s_mov_b32 s{sSPIN}, 0\n{skip}:")
        A("s_waitcnt vmcnt(0)")
        self.tagcheck2([vGT+4*n for n in range(8)], vT, vT+1)
        self.tagtest(vT, rq)
        self.stamp(4)
        if 'stop3' in self.abl:
            A("s_branch L_adone")
        for step in (4, 8, 16):
            for b in range(0, 32, 2*step):
                for h in (0, 2):
                    A(f"v_pk_add_f32 v[{vGT+b+h}:{vGT+b+h+1}], v[{vGT+b+h}:{vGT+b+h+1}], v[{vGT+b+step+h}:{vGT+b+step+h+1}]")
        A(f"""
        v_cvt_pk_bf16_f32 v{vGT}, v{vGT}, v{vGT+1}
        v_cvt_pk_bf16_f32 v{vGT+1}, v{vGT+2}, v{vGT+3}
        s_mov_b32 s45, {f2u(LOG2E):#x}
        ds_write_b64 v13, v[{vGT}:{vGT+1}] offset:{L_QL}""")
        self.arrive(C_QL, want_old=False, inc=("s101" if self.local else 1))
        self.stamp(1)
        self.lds_spin(C_QL, 4, sleep=0, low8=self.local,
                      reads="\n".join(f"ds_read_b128 v[{vQF+4*s}:{vQF+4*s+3}], v12 offset:{L_QL + 64*s}" for s in range(4)))
        self.stamp(9)
        for s in range(4):
            for t in range(2):
                c = "0" if s == 0 else f"v[{vS+4*t}:{vS+4*t+3}]"
                r = vKF + 16*t + 4*s
                A(f"v_mfma_f32_16x16x32_bf16 v[{vS+4*t}:{vS+4*t+3}], v[{r}:{r+3}], v[{vQF+4*s}:{vQF+4*s+3}], {c}")
        self.early_flag('qk')
        if self.vlate:
            vreads()
        else:
            A("s_nop 7")
        for k in range(4):
            A(f"v_cndmask_b32 v{U+k}, v{vS+k}, v{vS+4+k}, s[92:93]")
        for rnd in range(2):
            for p in range(2):
                A(f"v_cvt_pk_bf16_f32 v{Z+p}, v{U+2*p}, v{U+2*p+1}")
            for p in range(2):
                A(f"v_lshlrev_b32 v{U+2*p}, 16, v{Z+p}\nv_and_b32 v{U+2*p+1}, 0xffff0000, v{Z+p}")
            if rnd == 0:
                for p in range(2):
                    A(f"v_pk_mul_f32 v[{U+2*p}:{U+2*p+1}], v[{U+2*p}:{U+2*p+1}], s[46:47]")
        vM, vL = 48, 49
        A(f"""
        v_max3_f32 v{vM}, v{U}, v{U+1}, v{U+2}
        v_max_f32 v{vM}, v{vM}, v{U+3}
        s_nop 1
        v_max_f32_dpp v{vM}, v{vM}, v{vM} row_ror:8 row_mask:0xf bank_mask:0xf""")
        self.allreduce_rows(vM, 50, "v_max_f32")
        A(f"v_mul_f32 v50, s45, v{vM}")
        for k in range(4):
            A(f"v_fma_f32 v{U+k}, v{U+k}, s45, -v50")
        for k in range(4):
            A(f"v_exp_f32 v{U+k}, v{U+k}")
        P = 32
        A(f"""
        s_nop 0
        v_cvt_pk_bf16_f32 v{P}, v{U}, v{U+1}
        v_cvt_pk_bf16_f32 v{P+1}, v{U+2}, v{U+3}
        v_pk_add_f32 v[52:53], v[{U}:{U+1}], v[{U+2}:{U+3}]
        v_mov_b32_dpp v{P+2}, v{P} row_ror:8 row_mask:0xf bank_mask:0xf
        v_mov_b32_dpp v{P+3}, v{P+1} row_ror:8 row_mask:0xf bank_mask:0xf
        v_mov_b32 v{P+4}, v{P}
        v_mov_b32 v{P+5}, v{P+1}
        v_add_f32 v{vL}, v52, v53""")
        if self.vlate:
            A("s_waitcnt lgkmcnt(0)")
        fill = [f"v_lshrrev_b32 v14, 1, v15\nv_add_f32_dpp v{vL}, v{vL}, v{vL} row_ror:8 row_mask:0xf bank_mask:0xf",
                f"v_mov_b32 v50, v{vL}\ns_lshl_b32 s40, s{sW}, 12",
                f"v_add_u32 v14, s40, v14\nv_permlane32_swap_b32 v50, v{vL}",
                f"v_add_f32 v{vL}, v{vL}, v50\nv_mov_b32 v50, v{vL}",
                f"s_nop 0",
                f"v_permlane16_swap_b32 v50, v{vL}\nv_add_f32 v{vL}, v{vL}, v50",
                f"ds_write_b64 v14, v[{vM}:{vL}] offset:{L_K + 4096}", ""]
        for dt in range(8):
            b = P + 2*(dt & 1)
            A(f"v_mfma_f32_16x16x32_bf16 v[{vO+4*dt}:{vO+4*dt+3}], v[{vVF+4*dt}:{vVF+4*dt+3}], v[{b}:{b+3}], 0")
            A(fill[dt])
        for k in range(4):
            for r in range(4):
                A(f"v_cndmask_b32 v{vO+8*k+r}, v{vO+8*k+r}, v{vO+8*k+4+r}, s[92:93]")
            A(f"ds_write_b128 v15, v[{vO+8*k}:{vO+8*k+3}] offset:{L_K + 1024*k}")
        self.arrive(C_X, want_old=False)
        A("v_lshlrev_b32 v14, 3, v0")
        self.early_flag('pv')
        self.stamp(11)
        X, ML = 56, 72
        self.lds_spin(C_X, 4, sleep=0, reads="\n".join(
            [f"ds_read_b64 v[{ML+2*w}:{ML+2*w+1}], v14 offset:{L_K + 8192*w + 4096}" for w in range(4)] +
            [f"ds_read_b128 v[{X+4*w}:{X+4*w+3}], v10 offset:{L_K + 8192*w}" for w in range(4)]))
        self.stamp(10)
        self.early_flag('xsync')
        A(f"v_max3_f32 v{vM}, v{ML}, v{ML+2}, v{ML+4}\nv_max_f32 v{vM}, v{vM}, v{ML+6}")
        for w in range(4):
            A(f"v_sub_f32 v{ML+2*w}, v{ML+2*w}, v{vM}")
        for w in range(4):
            A(f"v_mul_f32 v{ML+2*w}, s45, v{ML+2*w}")
        for w in range(4):
            A(f"v_exp_f32 v{ML+2*w}, v{ML+2*w}")
        A(f"s_nop 0\nv_mul_f32 v{vL}, v{ML}, v{ML+1}")
        for w in range(4):
            e = ML + 2*w
            for h in (0, 2):
                if w == 0:
                    A(f"v_pk_mul_f32 v[{vS+h}:{vS+h+1}], v[{X+h}:{X+h+1}], v[{e}:{e+1}] op_sel_hi:[1,0]")
                else:
                    A(f"v_pk_fma_f32 v[{vS+h}:{vS+h+1}], v[{X+4*w+h}:{X+4*w+h+1}], v[{e}:{e+1}], v[{vS+h}:{vS+h+1}] op_sel_hi:[1,0,1]")
            if w:
                A(f"v_fmac_f32 v{vL}, v{e}, v{e+1}")
        for r in range(4):
            self.tag(vS + r)
        nml = self.lab("Lnoml")

        def publish(mod):
            if 'noO' not in self.abl:
                A(f"global_store_dwordx4 v8, v[{vS}:{vS+3}], s[26:27] {mod}")
            A(f"s_cmp_lg_u32 s{sW}, 0\ns_cbranch_scc1 {nml}")
            self.tag(vM); self.tag(vL)
            A(f"""
            v_mov_b32 v50, v3
            v_mov_b32 v51, v3
            s_mov_b64 exec, 0xff
            global_store_dwordx4 v9, v[48:51], s[26:27] {mod}""")

        if self.local:
            rem = self.lab("Lremote"); fl = self.lab("Lflagb")
            A(f"s_cmp_lg_u32 s101, 0\ns_cbranch_scc1 {rem}")
            publish("")
            A(f"s_branch {fl}\n{rem}:")
            publish("sc1")
            A(f"{fl}:")
        else:
            publish("sc1")
        if self.flagpos != 'end':
            A(f"s_mov_b64 exec, -1\ns_cmp_eq_u32 s101, 0\ns_cbranch_scc1 {nml}")
        A("s_mov_b32 s40, s95")
        if 'noflagB' not in self.abl:
            self.flag_store(self.nrepB)
        A(f"{nml}:")
        self.gate(2, self.gateA)
        self.stamp(5)
        if 'stop4' in self.abl:
            A("s_branch L_adone")
        A(f"""
        s_and_b32 s40, s{sTL}, 7
        s_lshl2_add_u32 s41, s40, s{sW}
        s_lshl_b32 s41, s41, 7
        s_mul_i32 s42, s{sG}, {32*BOP}
        s_add_u32 s41, s41, s42
        s_add_u32 s41, s41, {WS_BO:#x}
        v_lshrrev_b32 v1, 3, v0
        v_mul_u32_u24 v1, {BOP}, v1
        v_and_b32 v2, 7, v0
        v_lshl_add_u32 v1, v2, 4, v1
        v_add_u32 v{vA0}, s41, v1
        v_add_u32 v13, {8*BOP}, v{vA0}
        v_add_u32 v14, {16*BOP}, v{vA0}
        v_add_u32 v15, {24*BOP}, v{vA0}
        s_lshl_b32 s41, s{sG}, 8
        s_add_u32 s40, s40, s41
        s_lshl_b32 s40, s40, 4
        s_add_u32 s40, s40, {WS_BML:#x}
        v_and_b32 v1, 31, v0
        v_lshl_add_u32 v{vA1}, v1, 7, s40
        s_lshl_b32 s40, s{sW}, 7
        v_and_b32 v2, 7, v0
        v_lshrrev_b32 v1, 3, v1
        v_lshl_add_u32 v1, v1, 2, s40
        v_lshl_add_u32 v10, v2, 4, v1
        v_lshrrev_b32 v1, 3, v0
        v_lshl_add_u32 v11, v1, 4, s40
        v_and_b32 v1, 1, v0
        v_lshl_add_u32 v1, v1, 2, v{vJ}
        v_and_b32 v2, 6, v0
        v_lshl_add_u32 v12, v1, 5, v2
        s_lshl_b32 s40, s{sW}, 3
        v_add_u32 v12, s40, v12""")
        nb = self.lab("Lnopollb")
        A(f"""
        s_cmp_ge_u32 s{sW}, 2
        s_cbranch_scc1 {nb}
        s_and_b32 s40, s{sCH}, {self.nrepB-1}
        s_mul_i32 s40, s40, {REPP}
        s_lshl1_add_u32 s41, s{sG}, s{sW}
        s_lshl_b32 s41, s41, 7
        s_add_u32 s40, s40, s41
        s_add_u32 s40, s40, {WS_FLB:#x}""")
        self.flag_poll(16)
        self.arrive(C_B1, want_old=False)
        A(f"{nb}:")
        self.lds_spin(C_B1, 2, sleep=1)
        self.stamp(6)
        rb_ = self.lab("Lgo")
        vO, vML = 56, 72
        A(f"s_mov_b32 s47, 0\n{rb_}:")
        def bloads(mod):
            A(f"global_load_dwordx4 v[{vML}:{vML+3}], v{vA1}, s[26:27] {mod}")
            for n in range(4):
                A(f"global_load_dwordx4 v[{vO+4*n}:{vO+4*n+3}], v{(vA0, 13, 14, 15)[n]}, s[26:27] {mod}")
        if self.local and self.gmod != 'sc1':
            rem = self.lab("Lremote"); fl = self.lab("Lbld")
            A(f"s_cmp_lg_u32 s101, 0\ns_cbranch_scc1 {rem}")
            bloads(self.gmod)
            A(f"s_branch {fl}\n{rem}:")
            bloads("sc1")
            A(f"{fl}:")
        else:
            bloads("sc1")
        if self.HA:
            l = self.lab("Lhb")
            A(f"s_cmp_lg_u32 s47, 0\ns_cbranch_scc1 {l}\ns_mov_b32 s47, 1")
            self.arrive(C_HB, want_old=False)
            A(f"{l}:")
        if 3 in self.gateA:
            self.gate(3, self.gateA)
            A(f"s_mov_b32 s{sGATE}, 0")
        A("s_waitcnt vmcnt(4)")
        A(f"v_and_b32 v{vT+4}, 0xffff0000, v{vML}\nv_mov_b32 v{vT}, v{vT+4}")
        self.allreduce_in_row(vT, "v_max_f32")
        A(f"""
        v_mov_b32 v{vT+2}, v{vT}
        s_nop 1
        v_permlane16_swap_b32 v{vT+2}, v{vT}
        v_max_f32 v{vT}, v{vT}, v{vT+2}
        v_sub_f32 v{vT+4}, v{vT+4}, v{vT}
        v_mul_f32 v{vT+4}, s45, v{vT+4}
        v_exp_f32 v{vT+4}, v{vT+4}
        s_mov_b32 exec_hi, 0
        ds_write_b32 v10, v{vT+4} offset:{L_WT}
        s_mov_b32 exec_hi, -1
        ds_read_b128 v[{vT+8}:{vT+11}], v11 offset:{L_WT}
        v_mul_f32 v{vT+1}, v{vT+4}, v{vML+1}""")
        self.allreduce_in_row(vT + 1)
        A(f"""
        v_mov_b32 v{vT+2}, v{vT+1}
        s_nop 1
        v_permlane16_swap_b32 v{vT+2}, v{vT+1}
        v_add_f32 v{vT+1}, v{vT+1}, v{vT+2}
        v_rcp_f32 v{vT+1}, v{vT+1}
        s_waitcnt vmcnt(0)""")
        self.tagcheck2([vML] + [vO + 4*n for n in range(4)], vT + 16, vT + 17)
        self.tagtest(vT + 16, rb_)
        self.stamp(7)
        A("s_waitcnt lgkmcnt(0)")
        acc = vT + 4
        for n in range(4):
            w = vT + 8 + (n & ~1)
            os_ = f"op_sel:[0,{n&1}] op_sel_hi:[1,{n&1}]" if n == 0 else f"op_sel:[0,{n&1},0] op_sel_hi:[1,{n&1},1]"
            for h in (0, 2):
                if n == 0:
                    A(f"v_pk_mul_f32 v[{acc+h}:{acc+h+1}], v[{vO+h}:{vO+h+1}], v[{w}:{w+1}] {os_}")
                else:
                    A(f"v_pk_fma_f32 v[{acc+h}:{acc+h+1}], v[{vO+4*n+h}:{vO+4*n+h+1}], v[{w}:{w+1}], v[{acc+h}:{acc+h+1}] {os_}")
        self.reduce_scatter_rows(acc)
        A(f"""
        s_nop 1
        v_add_f32_dpp v{acc}, v{acc}, v{acc} row_ror:8 row_mask:0xf bank_mask:0xf
        v_mov_b32 v1, {C_FO}
        v_mul_f32 v{acc}, v{acc}, v{vT+1}
        v_mov_b32 v2, 1
        v_cvt_pk_bf16_f32 v{acc}, v{acc}, v{acc}""")
        self.exec_set(0x00FF00FF00FF00FF)
        A(f"""
        ds_write_b16 v12, v{acc} offset:{L_VEC}
        s_mov_b64 exec, 1
        ds_add_u32 v1, v2
        s_mov_b64 exec, -1""")
        self.stamp(8)
        if 'diag' in self.abl:
            l = self.lab("Ldg")
            if 'diagx' in self.abl:
                A(f"s_getreg_b32 s41, hwreg(HW_REG_XCC_ID, 0, 4)\ns_cmp_eq_u32 s41, s{sX}")
            else:
                A("s_cmp_eq_u32 s101, 0")
            A(f"""
            s_cbranch_scc1 L_adone
            s_memrealtime s[42:43]
            s_waitcnt lgkmcnt(0)
            s_add_u32 s40, s42, 2000
            {l}:
            s_memrealtime s[42:43]
            s_waitcnt lgkmcnt(0)
            s_sub_u32 s41, s42, s40
            s_cmp_lt_i32 s41, 0
            s_cbranch_scc1 {l}""")
        A("L_adone:")
        self.write_stamps(14)
        A("s_endpgm")
        A(f"""
        L_ffn:
        s_cmp_eq_u32 s{sW}, 2
        s_cbranch_scc0 L_adone""")
        if self.localD:
            l = self.lab("Lxt")
            A(f"""
            s_getreg_b32 s45, hwreg(HW_REG_XCC_ID, 0, 4)
            s_lshl_b32 s45, s45, 28
            s_xor_b32 s42, s45, s{sT32}
            s_mov_b32 s43, s42
            s_lshl_b32 s40, s{sG}, 7
            s_add_u32 s40, s40, {WS_XT:#x}
            s_lshl2_add_u32 s41, s{sY}, s40
            s_mov_b64 exec, 1
            v_mov_b32 v1, s41
            v_mov_b32 v2, s42
            global_store_dword v1, v2, s[26:27] sc1
            s_mov_b64 exec, -1
            s_add_u32 s41, s40, 64
            s_mov_b32 s{sSPIN}, 0
            {l}:
            s_sleep 24
            s_load_dwordx16 s[{sP}:{sP+15}], s[26:27], s40 glc
            s_load_dwordx16 s[4:19], s[26:27], s41 glc
            s_add_u32 s{sSPIN}, s{sSPIN}, 1
            s_cmp_gt_u32 s{sSPIN}, {SPIN_MAX}
            s_cbranch_scc1 L_end
            s_waitcnt lgkmcnt(0)""")
            pairs = [sP + 2*i for i in range(8)] + [4 + 2*i for i in range(6)]
            for p in pairs:
                A(f"s_xor_b64 s[{p}:{p+1}], s[{p}:{p+1}], s[42:43]")
            for p in pairs[1:]:
                A(f"s_or_b64 s[{sP}:{sP+1}], s[{sP}:{sP+1}], s[{p}:{p+1}]")
            A(f"""
            s_or_b32 s101, s{sP}, s{sP+1}
            s_and_b32 s{sP}, s101, 0x0fffffff
            s_cbranch_scc1 {l}""")
        if 'noffn' in self.abl:
            A("s_branch L_adone")
        self.red_publish(L_RG, 1024, C_G, 64, f"""
            s_sub_u32 s41, s{sUP}, s{sTL}
            s_lshl2_add_u32 s40, s{sTL}, s{sRB}
            s_lshl_b32 s40, s40, 10
            s_add_u32 s40, s40, {WS_BD:#x}
            v_add_u32 v11, s40, v10
            v_lshrrev_b32 v13, 5, v0
            s_lshl_b32 s42, s41, 12
            v_mul_lo_u32 v12, s42, v13
            v_add_u32 v11, v11, v12
            s_lshl_b32 s40, s{sTL}, 5
            s_add_u32 s40, s40, s{sRB}
            s_lshl_b32 s40, s40, 2
            s_lshl_b32 s42, s41, 7
            s_add_u32 s42, s42, 16
            v_mul_lo_u32 v12, s42, v0
            v_add_u32 v12, s40, v12
            s_movk_i32 s40, {WS_FLD:#x}""", 2, 12, sleep=1, local=self.localD)
        self.gate(1, self.gateF)
        self.stamp(5)
        A(f"""
        s_lshl_b32 s40, s{sTL}, 12
        s_add_u32 s40, s40, {WS_BD:#x}
        v_add_u32 v{vA0}, s40, v10
        v_and_b32 v1, 1, v0
        v_lshl_add_u32 v1, v1, 1, v13
        v_and_b32 v2, 30, v0
        v_lshl_add_u32 v12, v1, 6, v2
        s_lshl_b32 s40, s{sTL}, 7
        s_add_u32 s40, s40, {WS_FLD:#x}""")
        self.flag_poll(8)
        self.stamp(6)
        rd = self.lab("Lgd")
        G = 56
        A(f"s_mov_b32 s47, 0\n{rd}:")
        def dloads(mod):
            for n in range(4):
                A(f"global_load_dwordx4 v[{G+4*n}:{G+4*n+3}], v{vA0}, s[26:27] offset:{1024*n} {mod}")
        if self.localD:
            rem = self.lab("Lremote"); fl = self.lab("Ldld")
            A(f"s_cmp_lg_u32 s101, 0\ns_cbranch_scc1 {rem}")
            dloads(self.gmod)
            A(f"s_branch {fl}\n{rem}:")
            dloads("sc1")
            A(f"{fl}:")
        else:
            dloads("sc1")
        if self.HF:
            l = self.lab("Lhb")
            A(f"s_cmp_lg_u32 s47, 0\ns_cbranch_scc1 {l}\ns_mov_b32 s47, 1")
            self.arrive(C_HB, want_old=False)
            A(f"{l}:")
        if 2 in self.gateF:
            self.gate(2, self.gateF)
            A(f"s_mov_b32 s{sGATE}, 0")
        A("s_waitcnt vmcnt(0)")
        self.tagcheck2([G + 4*n for n in range(4)], vT, vT + 1)
        self.tagtest(vT, rd)
        self.stamp(7)
        for h in (0, 2):
            A(f"v_pk_add_f32 v[{G+h}:{G+h+1}], v[{G+h}:{G+h+1}], v[{G+4+h}:{G+5+h}]")
            A(f"v_pk_add_f32 v[{G+8+h}:{G+9+h}], v[{G+8+h}:{G+9+h}], v[{G+12+h}:{G+13+h}]")
        for h in (0, 2):
            A(f"v_pk_add_f32 v[{G+h}:{G+h+1}], v[{G+h}:{G+h+1}], v[{G+8+h}:{G+9+h}]")
        c1 = -2.0 * 0.7978845608028654 * LOG2E
        c2 = c1 * 0.044715
        A(f"""
        v_cvt_pk_bf16_f32 v{G}, v{G}, v{G+1}
        v_cvt_pk_bf16_f32 v{G+1}, v{G+2}, v{G+3}
        s_mov_b32 s46, {f2u(c2):#x}
        v_mov_b32 v{vT+4}, {f2u(c1):#x}
        v_permlane32_swap_b32 v{G}, v{G+1}
        v_lshlrev_b32 v{G+2}, 16, v{G}
        v_and_b32 v{G+3}, 0xffff0000, v{G}
        v_pk_mul_f32 v[{vT}:{vT+1}], v[{G+2}:{G+3}], v[{G+2}:{G+3}]
        v_fma_f32 v{vT}, v{vT}, s46, v{vT+4}
        v_fma_f32 v{vT+1}, v{vT+1}, s46, v{vT+4}
        v_pk_mul_f32 v[{vT}:{vT+1}], v[{vT}:{vT+1}], v[{G+2}:{G+3}]
        v_exp_f32 v{vT}, v{vT}
        v_exp_f32 v{vT+1}, v{vT+1}
        v_lshlrev_b32 v{G+4}, 16, v{G+1}
        v_add_f32 v{vT}, 1.0, v{vT}
        v_add_f32 v{vT+1}, 1.0, v{vT+1}
        v_rcp_f32 v{vT}, v{vT}
        v_rcp_f32 v{vT+1}, v{vT+1}
        v_and_b32 v{G+5}, 0xffff0000, v{G+1}
        v_pk_mul_f32 v[{G+2}:{G+3}], v[{G+2}:{G+3}], v[{vT}:{vT+1}]
        v_cvt_pk_bf16_f32 v{G}, v{G+2}, v{G+3}
        v_lshlrev_b32 v{G+2}, 16, v{G}
        v_and_b32 v{G+3}, 0xffff0000, v{G}
        v_pk_mul_f32 v[{G+2}:{G+3}], v[{G+2}:{G+3}], v[{G+4}:{G+5}]
        v_mov_b32 v1, {C_FO}
        v_cvt_pk_bf16_f32 v{G}, v{G+2}, v{G+3}
        v_mov_b32 v2, 1
        ds_write_b16 v12, v{G} offset:{L_VEC}
        ds_write_b16_d16_hi v12, v{G} offset:{L_VEC+32}
        s_mov_b64 exec, 1
        ds_write_b32 v1, v2
        s_mov_b64 exec, -1""")
        self.stamp(8)
        A("s_branch L_adone")

    def final(self):
        A = self.A
        vI, vJ, vT = 4, 5, 16
        G0, G1 = 56, 60
        A(f"""
        L_final:
        s_mov_b32 s42, s{sR}
        s_lshl_b32 s43, s42, 7
        v_lshl_add_u32 v8, v0, 1, s43
        global_load_ushort v9, v8, s[4:5]""")
        if 'nofinal' in self.abl:
            A("s_branch L_adone")
        A(f"""
        s_and_b32 s41, s{sW}, 3
        s_cmp_lt_u32 s{sW}, 4
        s_cselect_b32 s46, 0, {WS_BF - WS_BS:#x}
        s_cselect_b32 s47, {28*ROWP}, 0
        s_cselect_b32 s93, -1, 0xffff
        s_mov_b32 s92, -1
        s_mul_i32 s40, s41, {ROWP}
        s_add_u32 s40, s40, s46
        s_lshl_b32 s43, s42, 8
        s_add_u32 s40, s40, s43
        s_add_u32 s46, s40, {WS_BS:#x}
        s_add_u32 s47, s47, s46
        v_mul_u32_u24 v1, {4*ROWP}, v{vJ}
        v_lshl_add_u32 v1, v{vI}, 4, v1
        v_add_u32 v6, s46, v1
        v_add_u32 v7, {16*ROWP}, v6
        v_lshl_add_u32 v10, v{vI}, 2, v{vJ}
        v_lshlrev_b32 v10, 5, v10
        s_lshl_b32 s40, s{sW}, 2
        v_add_u32 v10, s40, v10
        v_lshlrev_b32 v11, 5, v0
        v_mov_b32 v12, {C_F1}
        v_mov_b32 v13, 1
        s_waitcnt vmcnt(0)
        v_lshlrev_b32 v9, 16, v9""")
        for r in range(4):
            A(f"v_mov_b32 v{G1+r}, v3")
        l = self.lab("Lfp"); r_ = self.lab("Lfr")
        A(f"""
        s_add_u32 s40, s26, s46
        s_addc_u32 s41, s27, 0
        s_mov_b32 s{sSPIN}, 0
        s_branch {l}
        {r_}:
        s_cmp_lg_u32 s43, 0
        s_cbranch_scc1 {l}
        s_sleep {self.fsleep}
        {l}:""")
        for k in range(7):
            A(f"s_load_dword s{48+k}, s[40:41], {4*k*ROWP} glc")
        A(f"""
        s_load_dword s55, s[26:27], s47 glc
        s_add_u32 s{sSPIN}, s{sSPIN}, 1
        s_cmp_gt_u32 s{sSPIN}, {SPIN_MAX}
        s_cbranch_scc1 L_end
        s_waitcnt lgkmcnt(0)""")
        A("s_mov_b32 s43, 0")
        for k in range(8):
            A(f"s_and_b32 s{48+k}, s{48+k}, s44\ns_cmp_eq_u32 s{48+k}, s{sT10}\ns_addc_u32 s43, s43, 0")
        A(f"s_cmp_ge_u32 s43, {self.fthr}\ns_cbranch_scc0 {r_}")
        self.stamp(9)
        rg = self.lab("Lfg")
        loads = f"""
            s_or_b64 exec, s[48:49], 1
            global_load_dwordx4 v[{G0}:{G0+3}], v6, s[26:27] sc1
            s_or_b64 exec, s[92:93], 1
            global_load_dwordx4 v[{G1}:{G1+3}], v7, s[26:27] sc1
            s_mov_b64 exec, -1"""
        A("s_mov_b64 s[48:49], -1")
        for k in range(self.fdepth - 1):
            A(loads)
        A(f"{rg}:")
        A(loads)
        A(f"s_waitcnt vmcnt({2*(self.fdepth - 1)})")
        for i, k in enumerate((G0, G1)):
            A(f"v_bitop3_b32 v{vT+2*i}, v{k}, v{k+1}, s{sT10} bitop3:0x7e")
            A(f"v_bitop3_b32 v{vT+2*i+1}, v{k+2}, v{k+3}, s{sT10} bitop3:0x7e")
        for i in range(2):
            A(f"v_bitop3_b32 v{vT+2*i}, v{vT+2*i}, v{vT+2*i+1}, s44 bitop3:0xa8")
        R = vT + 12
        A(f"""
        v_cmp_ne_u32 s[48:49], 0, v{vT}
        v_cmp_ne_u32 s[92:93], 0, v{vT+2}
        v_pk_add_f32 v[{R}:{R+1}], v[{G0}:{G0+1}], v[{G1}:{G1+1}]
        v_pk_add_f32 v[{R+2}:{R+3}], v[{G0+2}:{G0+3}], v[{G1+2}:{G1+3}]
        s_add_u32 s{sSPIN}, s{sSPIN}, 1
        s_cmp_gt_u32 s{sSPIN}, {SPIN_MAX}
        s_cbranch_scc1 L_end
        s_or_b64 s[40:41], s[48:49], s[92:93]
        s_cbranch_scc1 {rg}""")
        self.stamp(10)
        self.reduce_scatter_rows(R)
        f = vT + 4
        A(f"""
        ds_write_b32 v10, v{R} offset:{L_RF}
        s_mov_b64 exec, 1
        ds_add_rtn_u32 v2, v12, v13
        s_mov_b64 exec, -1
        ds_read_b128 v[{f}:{f+3}], v11 offset:{L_RF}
        ds_read_b128 v[{f+4}:{f+7}], v11 offset:{L_RF+16}
        s_waitcnt lgkmcnt(0)
        v_readfirstlane_b32 s{sTMP}, v2
        s_cmp_eq_u32 s{sTMP}, 7
        s_cbranch_scc0 L_adone
        v_pk_add_f32 v[{f+4}:{f+5}], v[{f+4}:{f+5}], v[{f+6}:{f+7}]
        v_pk_add_f32 v[{f}:{f+1}], v[{f}:{f+1}], v[{f+2}:{f+3}]
        v_add_f32 v{f+2}, v{f+4}, v{f+5}
        v_add_f32 v{f}, v{f}, v{f+1}
        v_cvt_pk_bf16_f32 v{f}, v{f}, v{f+2}
        v_and_b32 v{f+2}, 0xffff0000, v{f}
        v_mul_f32 v{f+3}, {f2u(-LOG2E):#x}, v{f+2}
        v_exp_f32 v{f+3}, v{f+3}
        v_lshlrev_b32 v{f}, 16, v{f}
        v_add_f32 v{f+3}, 1.0, v{f+3}
        v_rcp_f32 v{f+3}, v{f+3}
        s_nop 0
        v_mul_f32 v{f+2}, v{f+2}, v{f+3}""")
        self.bf16_round(f + 2, f + 2)
        A(f"v_mul_f32 v{f}, v{f}, v{f+2}")
        self.bf16_round(f, f)
        A(f"""
        v_add_f32 v{f}, v{f}, v9
        v_cvt_pk_bf16_f32 v{f}, v{f}, v{f}
        global_store_short v8, v{f}, s[22:23] {self.outmod}""")
        A(f"""
        s_cmp_lg_u32 s{sR}, 0
        s_cbranch_scc1 L_adone
        s_mov_b64 exec, 1
        v_mov_b32 v1, {WS_E}
        v_mov_b32 v2, s{sT32}
        global_store_dword v1, v2, s[26:27]
        s_branch L_adone""")


class Gen(Gen0):
    def __init__(self, ldsb=None, nvo=None, **kw):
        self.ldsb, self.nvo = ldsb, nvo
        super().__init__(**kw)


if __name__ == "__main__":
    import argparse
    ap = argparse.ArgumentParser()
    ap.add_argument("-o", default="recurrent_scan__sliding_block_cached__geglu_ffn__decode.s")

    ap.add_argument("--stamps", action="store_true")
    ap.add_argument("--probe", default=None)
    ap.add_argument("--kw", default="")
    a = ap.parse_args()
    open(a.o, "w").write(Gen(stamps=a.stamps, probe=tuple(map(int, a.probe.split(','))) if a.probe else None, **eval(f'dict({a.kw})')).build())
```

```python
import sys, struct

KN = "recurrent_scan__sliding_block_cached__geglu_ffn__decode_kernel"

def f2u(x):
    return struct.unpack("<I", struct.pack("<f", x))[0]

WS_E   = 0x0
WS_FLD = 0x1000
WS_XT  = 0x3000
WS_XA  = 0x3400
WS_BML = 0x4000
WS_BQ  = 0x10000
WS_BD  = 0x30000
ROWP   = 4352
WS_BS  = 0x50000
WS_BF  = 0x78000
WS_BO  = 0xA0000
BOP    = 4096 + 128
REPP   = 17 * 128
WS_FLA = 0x130000
WS_FLB = 0x148000
WS_ST  = 0x400000

L_RQ   = 0
L_RG   = L_RQ + 2048
L_QL   = L_RG + 4096
QLP    = 272
L_WT   = L_QL + 2304
L_VEC  = L_WT + 512
L_XQ   = L_VEC + 256
L_XG   = L_XQ + 256
L_RF   = L_XG + 512
L_CNT  = L_RF + 2048
C_Q, C_G, C_X, C_QL, C_HB, C_FO, C_GA, C_B1, C_F1 = [L_CNT + 4*i for i in range(9)]
C_LOC = L_CNT + 36
C_XN, C_K, C_V = L_CNT + 48, L_CNT + 64, L_CNT + 80
L_K    = 12288
L_V    = L_K + 32768
assert L_CNT + 128 <= L_K
LDS_BYTES = L_V + 32768
YF, YL = 16, 30

TAGM = 0x3FF
LOG2E = 1.4426950408889634
SPIN_MAX = 1 << 20

sX, sY, sRB, sHQ, sRBQ, sTL, sG, sCH = 28, 29, 30, 31, 32, 33, 34, 35
sT32, sT10, sSPIN, sTMP = 36, 37, 38, 39
sW = 3
sGATE = 100
sTY, sUP, sR = 97, 98, 99
sP = 48
sSTAMP = 64


class Gen0:
    def __init__(self, stamps=False, prefetch=True, probe=None, abl='', xnpos=11, nrepA=4, nrepB=4, psleep=1,
                 WA=(6, 6, 5), WF=(6, 8, 8), pause='gather', fthr=6, wtest=None, fsleep=16, upx=2, layout='mix', plain='', gmod='sc1', local=False, touch=False, flagpos='end', HA=0, HF=0, vlate=False, kfirst=True, localD=False, earlyD=False, warm=None, warmO=False, qmap='grp', forceloc=False, xt=False, stag=False, wideg=0, widew=False, wideq=0, xsleep=16, fdepth=2, outmod='', gateA=(1, 1), gateF=(0, 0), WAe=None, WFe=None):
        self.gateA, self.gateF = gateA, gateF
        self.WAe, self.WFe = WAe, WFe
        self.local = local
        self.fdepth = fdepth
        self.touch = touch
        self.warm = warm
        self.wideg, self.widew, self.wideq = wideg, widew, wideq
        self.xt, self.stag, self.xsleep = xt, stag, xsleep
        if xt:
            forceloc = True
        self.qmap, self.forceloc = qmap, forceloc
        self.warmO = warmO
        self.localD, self.earlyD = localD, earlyD
        self.kfirst = kfirst
        self.flagpos, self.HA, self.HF, self.vlate = flagpos, HA, HF, vlate
        self.outmod = outmod
        assert not local or layout != 'mix'
        self.gmod = gmod
        self.layout = layout
        self.plain = plain
        self.fsleep = fsleep
        self.upx = upx
        self.wtest = wtest
        self.fthr = fthr
        self.L = []
        self.stamps = stamps
        self.prefetch = prefetch
        self.probe = probe
        self.abl = abl
        self.xnpos = xnpos
        self.nrepA, self.nrepB = nrepA, nrepB
        self.psleep = psleep
        self.relwait = False
        self.WA, self.WF = WA, WF
        self.pause = pause
        self.nlab = 0

    def A(self, s):
        for line in s.strip("\n").split("\n"):
            if line.strip():
                self.L.append("    " + line.strip() if not line.strip().endswith(":") else line.strip())

    def lab(self, p="L"):
        self.nlab += 1
        return f"{p}_{self.nlab}"

    def stamp(self, k):
        if self.stamps == 'lite' and k not in (0, 10, 14):
            return
        if self.stamps or (self.probe and k in (0, self.probe[2])):
            self.A(f"s_memrealtime s[{sSTAMP+2*k}:{sSTAMP+2*k+1}]")

    def mask(self, reg, val):
        lo, hi = val & 0xFFFFFFFF, val >> 32
        self.A(f"s_mov_b32 {reg[0]}, {lo:#x}\ns_mov_b32 {reg[1]}, {hi:#x}")

    def exec_set(self, val):
        if val == -1:
            self.A("s_mov_b64 exec, -1")
        elif val <= 64:
            self.A(f"s_mov_b64 exec, {val}")
        elif val < (1 << 31):
            self.A(f"s_mov_b64 exec, {val:#x}")
        else:
            self.mask(("exec_lo", "exec_hi"), val)

    def arrive(self, cnt, want_old=True, inc=1):
        self.A(f"""
        s_mov_b64 exec, 1
        v_mov_b32 v1, {cnt}
        v_mov_b32 v2, {inc}""")
        if want_old:
            self.A(f"""
            ds_add_rtn_u32 v2, v1, v2
            s_waitcnt lgkmcnt(0)
            v_readfirstlane_b32 s{sTMP}, v2""")
        else:
            self.A("ds_add_u32 v1, v2")
        self.A("s_mov_b64 exec, -1")

    def lds_spin(self, cnt, val, sleep=1, reads="", low8=False):
        l = self.lab("Lspin"); d = self.lab("Lgot")
        self.A(f"""
        v_mov_b32 v1, {cnt}
        s_mov_b32 s{sSPIN}, 0
        {l}:
        ds_read_b32 v2, v1
        {reads}
        s_add_u32 s{sSPIN}, s{sSPIN}, 1
        s_cmp_gt_u32 s{sSPIN}, {SPIN_MAX}
        s_cbranch_scc1 L_end
        s_waitcnt lgkmcnt(0)
        v_readfirstlane_b32 s{sTMP}, v2""")
        if low8:
            self.A(f"s_lshr_b32 s101, s{sTMP}, 8\ns_and_b32 s{sTMP}, s{sTMP}, 0xff")
        if sleep:
            self.A(f"s_cmp_eq_u32 s{sTMP}, {val}\ns_cbranch_scc1 {d}\ns_sleep {sleep}\ns_branch {l}\n{d}:")
        else:
            self.A(f"s_cmp_eq_u32 s{sTMP}, {val}\ns_cbranch_scc0 {l}")

    def flag_poll(self, n, two=False):
        if 'nopoll' in self.abl:
            return
        l = self.lab("Lpoll"); r = self.lab("Lretry"); d = self.lab("Lflag")
        self.A(f"""
        s_mov_b32 s{sSPIN}, 0
        s_mov_b32 s42, s{sT32}
        s_mov_b32 s43, s{sT32}
        s_branch {l}
        {r}:
        s_sleep {self.psleep}
        {l}:
        s_load_dwordx{n} s[{sP}:{sP+n-1}], s[26:27], s40 glc
        {'s_load_dwordx16 s[4:19], s[26:27], s41 glc' if two else ''}
        s_add_u32 s{sSPIN}, s{sSPIN}, 1
        s_cmp_gt_u32 s{sSPIN}, {SPIN_MAX}
        s_cbranch_scc1 L_end
        s_waitcnt lgkmcnt(0)""")
        for b in ((sP, 4) if two else (sP,)):
            for i in range(0, n, 2):
                self.A(f"s_cmp_eq_u64 s[{b+i}:{b+i+1}], s[42:43]\ns_cbranch_scc0 {r}")
        self.A(f"{d}:")

    def gate(self, k, used):
        if k not in used:
            return
        l = self.lab("Lgate")
        self.A(f"s_cmp_eq_u32 s{sGATE}, {k}\ns_cbranch_scc0 {l}")
        self.arrive(C_GA, want_old=False)
        self.A(f"{l}:")

    def early_flag(self, pos):
        if self.flagpos != pos:
            return
        l = self.lab("Lef")
        self.A(f"s_or_b32 s40, s101, s{sW}\ns_cbranch_scc1 {l}\ns_mov_b32 s40, s95")
        self.flag_store(self.nrepB)
        self.A(f"{l}:")

    def flag_store(self, n, vaddr=None, val=sT32):
        self.exec_set((1 << n) - 1)
        self.A(f"""
        {f'v_mul_u32_u24 v1, {REPP}, v0' if vaddr is None else ''}
        v_add_u32 v1, s40, v{1 if vaddr is None else vaddr}
        v_mov_b32 v2, s{val}
        global_store_dword v1, v2, s[26:27] sc1
        s_mov_b64 exec, -1""")

    def tagcheck(self, regs, vacc, vt):
        first = True
        for r in regs:
            if first:
                self.A(f"v_bitop3_b32 v{vacc}, v{r}, v{r+1}, s{sT10} bitop3:0x7e")
                self.A(f"v_bitop3_b32 v{vt}, v{r+2}, v{r+3}, s{sT10} bitop3:0x7e")
                self.A(f"v_or_b32 v{vacc}, v{vacc}, v{vt}")
                first = False
            else:
                self.A(f"v_bitop3_b32 v{vt}, v{r}, v{r+1}, s{sT10} bitop3:0x7e")
                self.A(f"v_bitop3_b32 v{vt+1}, v{r+2}, v{r+3}, s{sT10} bitop3:0x7e")
                self.A(f"v_or3_b32 v{vacc}, v{vacc}, v{vt}, v{vt+1}")

    def tagcheck2(self, regs, vacc, vt):
        out = []
        for i, r in enumerate(regs):
            d = vacc if i == 0 else vt + (i - 1) % 2
            self.A(f"v_bitop3_b32 v{d}, v{r}, v{r+3}, s{sT10} bitop3:0x7e")
            if i and i % 2 == 0:
                self.A(f"v_or3_b32 v{vacc}, v{vacc}, v{vt}, v{vt+1}")
        if len(regs) % 2 == 0:
            self.A(f"v_or_b32 v{vacc}, v{vacc}, v{vt}")

    def tagtest(self, vacc, retry):
        if 'notag' in self.abl:
            return
        self.A(f"""
        v_and_b32 v{vacc}, {TAGM:#x}, v{vacc}
        v_cmp_ne_u32 vcc, 0, v{vacc}
        {'s_add_u32 s96, s96, 1' if self.stamps else ''}
        s_add_u32 s{sSPIN}, s{sSPIN}, 1
        s_cmp_gt_u32 s{sSPIN}, {SPIN_MAX}
        s_cbranch_scc1 L_end
        s_nop 1
        s_cbranch_vccnz {retry}""")

    def tag(self, r):
        self.A(f"v_bfi_b32 v{r}, s44, v3, v{r}")

    def reduce_scatter_rows(self, a):
        self.A(f"""
        s_nop 1
        v_permlane32_swap_b32 v{a}, v{a+2}
        v_permlane32_swap_b32 v{a+1}, v{a+3}
        v_add_f32 v{a}, v{a}, v{a+2}
        v_add_f32 v{a+1}, v{a+1}, v{a+3}
        s_nop 1
        v_permlane16_swap_b32 v{a}, v{a+1}
        v_add_f32 v{a}, v{a}, v{a+1}""")

    def allreduce_rows(self, a, t, op):
        self.A(f"""
        v_mov_b32 v{t}, v{a}
        s_nop 1
        v_permlane32_swap_b32 v{t}, v{a}
        {op} v{a}, v{a}, v{t}
        v_mov_b32 v{t}, v{a}
        s_nop 1
        v_permlane16_swap_b32 v{t}, v{a}
        {op} v{a}, v{a}, v{t}""")

    def allreduce_in_row(self, a, op="v_add_f32"):
        for m in ("quad_perm:[1,0,3,2]", "quad_perm:[2,3,0,1]", "row_half_mirror", "row_mirror"):
            self.A(f"s_nop 1\n{op}_dpp v{a}, v{a}, v{a} {m} row_mask:0xf bank_mask:0xf")

    def bf16_round(self, d, s):
        self.A(f"v_cvt_pk_bf16_f32 v{d}, v{s}, v{s}\nv_and_b32 v{d}, 0xffff0000, v{d}")

    def build(self):
        A = self.A
        self.L.append(f"; @launch grid=(256,1,1) block=(512,1,1) lds={getattr(self, 'ldsb', None) or LDS_BYTES}")
        self.L.append('.amdgcn_target "amdgcn-amd-amdhsa--gfx950"')
        self.L += [".text", f".globl {KN}", ".p2align 12", ".p2align 8", f".type {KN},@function", f"{KN}:"]
        self.stamp(0)
        A(f"""
        s_cmp_ge_u32 s2, 256
        s_cbranch_scc1 L_end
        s_load_dwordx16 s[4:19], s[0:1], 0
        s_load_dwordx8 s[20:27], s[0:1], 64
        v_lshrrev_b32 v1, 6, v0
        s_and_b32 s{sX}, s2, 7
        s_lshr_b32 s{sY}, s2, 3
        v_readfirstlane_b32 s{sW}, v1""")
        if self.prefetch:
            A(f"""
            s_getpc_b64 s[46:47]
            L_pc:
            s_lshl_b32 s42, s{sY}, 9
            v_add_u32 v1, s42, v0
            v_min_u32 v1, L_codeend-L_pc-4, v1
            s_mov_b64 exec, 1
            global_load_ubyte v55, v1, s[46:47]
            s_mov_b64 exec, -1""")
        A(f"""
        v_and_b32 v0, 63, v0
""")
        if self.layout == 'mix':
            A(f"""
            s_lshr_b32 s{sHQ}, s{sY}, 3
            s_lshl2_add_u32 s{sHQ}, s{sX}, s{sHQ}
            s_and_b32 s{sRBQ}, s{sY}, 7
            s_lshr_b32 s{sG}, s{sX}, 1
            s_and_b32 s{sCH}, s{sX}, 1
            s_lshl4_add_u32 s{sCH}, s{sCH}, s{sY}
            s_lshl4_add_u32 s40, s{sX}, s{sY}
            s_mul_i32 s41, s{sX}, 14
            s_add_u32 s41, s41, s{sY}
            s_sub_u32 s41, s41, {YF}
            s_cmp_lt_u32 s{sY}, {YF}
            s_cselect_b32 s40, s40, s41
            s_cselect_b32 s{sTY}, 0, 1
            s_cmp_ge_u32 s{sY}, {YL}
            s_addc_u32 s{sTY}, s{sTY}, 0
            s_lshr_b32 s{sTL}, s40, 2
            s_and_b32 s{sRB}, s40, 3
            s_xor_b32 s{sUP}, s{sTL}, {self.upx}
            s_lshl1_add_u32 s{sR}, s{sX}, s{sY}
            s_sub_u32 s{sR}, s{sR}, {YL}""")
        else:
            if self.layout == 'odd':
                A(f"s_lshr_b32 s{sG}, s{sX}, 1\ns_and_b32 s{sTY}, s{sX}, 1\ns_xor_b32 s{sTY}, s{sTY}, 1")
            else:
                A(f"s_and_b32 s{sG}, s{sX}, 3\ns_lshr_b32 s{sTY}, s{sX}, 2")
                if self.layout == 'hi':
                    A(f"s_xor_b32 s{sTY}, s{sTY}, 1")
            A(f"""
            s_mov_b32 s{sCH}, s{sY}
            s_and_b32 s{sRB}, s{sY}, 3
            s_lshr_b32 s40, s{sY}, 2
            s_lshl3_add_u32 s{sHQ}, s{sG}, s40
            s_lshl2_add_u32 s{sRBQ}, s{sTY}, s{sRB}
            s_mul_i32 s41, s{sG}, s{sTY}
            s_sub_u32 s{sTL}, s{sHQ}, s41
            s_add_u32 s{sUP}, s40, {self.upx}
            s_cmp_ge_u32 s{sUP}, 7
            s_cselect_b32 s41, 7, 0
            s_sub_u32 s{sUP}, s{sUP}, s41
            s_sub_u32 s{sUP}, s{sUP}, s40
            s_add_u32 s{sUP}, s{sUP}, s{sTL}
            s_lshl2_add_u32 s{sR}, s{sG}, s{sRB}
            s_cmp_eq_u32 s40, 7
            s_cselect_b32 s41, s{sTY}, 0
            s_add_u32 s{sTY}, s{sTY}, s41""")
        A(f"""
        {f's_mov_b32 s{sHQ}, s{sY}' if self.qmap == 'rows' else ''}
        {f's_mov_b32 s{sRBQ}, s{sX}' if self.qmap == 'rows' else ''}
        s_cmp_lt_u32 s{sX}, 2
        s_cselect_b32 s40, {self.gateA[0]}, {self.gateA[1]}
        s_cselect_b32 s41, {self.gateF[0]}, {self.gateF[1]}
        s_cmp_eq_u32 s{sTY}, 0
        s_cselect_b32 s{sGATE}, s40, s41
        s_movk_i32 s44, {TAGM:#x}
        v_and_b32 v4, 15, v0
        v_lshrrev_b32 v5, 4, v0""")
        if self.stamps or self.probe:
            A(f"s_mov_b32 s96, 0\ns_mov_b32 s94, s{sW}")
        if self.probe:
            A(f"s_waitcnt lgkmcnt(0)\ns_mov_b32 s{sSTAMP+2*self.probe[2]}, s{sSTAMP}")
        A(f"""
        s_cmp_lt_u32 s{sW}, 4
        s_cbranch_scc1 L_awave""")
        L0 = self.L
        self.L = []
        self.swave()
        cut = self.L.index("L_sdispatch:")
        shead, stail = self.L[:cut], self.L[cut:]
        self.L = L0 + shead
        A("s_branch L_sdispatch\nL_awave:")
        self.awave()
        self.L += stail
        self.final()
        A("L_end:")
        A("s_endpgm")
        self.L.append("L_codeend:")
        nv = getattr(self, 'nvo', None) or 200
        self.L += ['.section .rodata,"a"', ".p2align 6", f".amdhsa_kernel {KN}",
                   f"  .amdhsa_next_free_vgpr {nv}", "  .amdhsa_next_free_sgpr 102", f"  .amdhsa_accum_offset {nv}",
                   "  .amdhsa_group_segment_fixed_size 0", "  .amdhsa_kernarg_size 96", "  .amdhsa_user_sgpr_count 2",
                   "  .amdhsa_user_sgpr_kernarg_segment_ptr 1", "  .amdhsa_system_sgpr_workgroup_id_x 1",
                   "  .amdhsa_float_denorm_mode_32 3", ".end_amdhsa_kernel"]
        return "\n".join(self.L) + "\n"

    def write_stamps(self, n):
        if self.probe:
            wg, wave, k = self.probe[:3]
            ty = self.probe[3] if len(self.probe) > 3 else None
            self.stamp(n)
            d = self.lab("Lprobe_done"); l = self.lab("Lprobe")
            self.A(f"""
            s_waitcnt lgkmcnt(0)
            s_getreg_b32 s41, hwreg(HW_REG_XCC_ID, 0, 4)
            {f's_cmp_eq_u32 s41, {-wg-100}' if wg <= -100 else f"s_cmp_eq_u32 s2, {wg if wg >= 0 else 's2'}"}
            s_cbranch_scc0 {d}
            s_cmp_eq_u32 s94, {wave}
            s_cbranch_scc0 {d}
            s_cmp_eq_u32 s{sTY}, {ty if ty is not None else f's{sTY}'}
            s_cbranch_scc0 {d}
            s_add_u32 s40, s{sSTAMP+2*k}, 4000
            {l}:
            s_memrealtime s[42:43]
            s_waitcnt lgkmcnt(0)
            s_sub_u32 s41, s42, s40
            s_cmp_lt_i32 s41, 0
            s_cbranch_scc1 {l}
            {d}:""")
            return
        if not self.stamps:
            return
        self.stamp(n)
        A = self.A
        A(f"""
        s_waitcnt lgkmcnt(0)
        s_mov_b64 exec, -1
        s_lshl3_add_u32 s40, s2, s94
        s_lshl_b32 s40, s40, 6
        s_add_u32 s40, s40, {WS_ST:#x}
        v_mov_b32 v1, 0""")
        for k in range(n + 1):
            A(f"v_writelane_b32 v1, s{sSTAMP+2*k}, {k}")
        A(f"""
        s_getreg_b32 s41, hwreg(HW_REG_XCC_ID)
        s_and_b32 s41, s41, 0xf
        s_lshl4_add_u32 s41, s96, s41
        v_writelane_b32 v1, s41, 15
        v_lshl_add_u32 v2, v0, 2, s40
        s_mov_b64 exec, 0xffff
        global_store_dword v2, v1, s[26:27]""")

    def swave(self):
        A = self.A
        vI, vJ = 4, 5
        vAq, vA1, vA2, vA3, vAw, vRed, vPub = 6, 7, 8, 9, 10, 11, 14
        vPS, vXQ, vXG, vSEL, aQ, aG, aU, vT = 16, 24, 28, 36, 40, 44, 48, 52
        RING, BIG = 56, 120
        A(f"""
        L_swave:
        s_sub_u32 s{sW}, s{sW}, 4
        s_lshl2_add_u32 s40, s{sRBQ}, s{sW}
        s_lshl_b32 s40, s40, 18
        s_lshl_b32 s41, s{sHQ}, 8
        s_add_u32 s40, s40, s41
        v_lshlrev_b32 v13, 4, v{vI}
        v_lshl_add_u32 v{vAq}, v{vJ}, 13, v13
        v_add_u32 v{vAq}, s40, v{vAq}
        s_mov_b32 s45, 0x8000""")
        if self.wideq:
            A(f"""
            s_lshl2_add_u32 s40, s2, s{sW}
            s_lshl_b32 s40, s40, 13
            v_lshl_add_u32 v{vAq}, v0, 4, s40
            s_movk_i32 s45, 0x400""")
        A("s_waitcnt lgkmcnt(0)")
        for m in range(8):
            A(f"global_load_dwordx4 v[{RING+4*m}:{RING+4*m+3}], v{vAq}, s[10:11] nt")
            if m < 7:
                A(f"v_add_u32 v{vAq}, s45, v{vAq}")
        A(f"s_load_dword s{sT32}, s[26:27], {WS_E}")
        self.stamp(1)
        A(f"""
        ; wo / down: rows tile*128 + 8*m + (l>>3), columns cb*256 + sw*64 + 8*(l&7)
        v_lshrrev_b32 v12, 3, v0
        v_and_b32 v1, 7, v0
        v_lshlrev_b32 v2, 4, v1
        v_lshl_add_u32 v{vAw}, v12, 11, v2
        s_lshl2_add_u32 s42, s{sRB}, s{sW}
        s_lshl_b32 s40, s42, 7
        s_lshl_b32 s41, s{sTL}, 18
        s_add_u32 s40, s40, s41
        v_add_u32 v{vAw}, s40, v{vAw}
        s_movk_i32 s45, 0x4000""")
        if self.widew:
            A(f"""
            s_lshl_b32 s40, s{sW}, 16
            s_add_u32 s41, s41, s40
            s_lshl_b32 s40, s{sRB}, 9
            s_add_u32 s41, s41, s40
            v_lshrrev_b32 v2, 5, v0
            v_lshlrev_b32 v2, 11, v2
            v_and_b32 v{vAw}, 31, v0
            v_lshl_add_u32 v{vAw}, v{vAw}, 4, v2
            v_add_u32 v{vAw}, s41, v{vAw}
            s_movk_i32 s45, 0x1000""")
        A(f"""
        v_lshl_add_u32 v1, v1, 1, v{vJ}
        s_lshl_b32 s40, s42, 8
        v_lshl_add_u32 v{vPub}, v1, 4, s40
        ; LDS offset of this lane's partial granule: (2*(l&15) + J)*16
        v_lshl_add_u32 v{vRed}, v{vI}, 1, v{vJ}
        v_lshlrev_b32 v{vRed}, 4, v{vRed}
        s_mov_b32 s40, 0xaaaaaaaa
        s_mov_b32 s41, 0xaaaaaaaa
        v_mov_b32 v1, 0x0c0c0100
        v_mov_b32 v2, 0x01000c0c
        v_cndmask_b32 v1, v1, v2, s[40:41]
        v_mov_b32 v2, 0x0c0c0302
        v_mov_b32 v3, 0x03020c0c
        v_cndmask_b32 v2, v2, v3, s[40:41]
        v_mov_b32 v3, 0x0c0c0c0c""")
        for d in range(4):
            m = 0x03030303 << (2*d)
            A(f"""
            s_mov_b32 s40, {m:#x}
            s_mov_b32 s41, {m:#x}
            v_cndmask_b32 v{vPS+d}, v3, v1, s[40:41]
            v_cndmask_b32 v{vPS+4+d}, v3, v2, s[40:41]""")
        A(f"""
        s_barrier
        s_waitcnt lgkmcnt(0)
        s_add_u32 s{sT32}, s{sT32}, 1
        s_and_b32 s{sT10}, s{sT32}, s44
        v_mov_b32 v3, s{sT10}
        s_cmp_ge_u32 s{sTY}, 1
        s_cbranch_scc1 L_s_notattn
        L_sdispatch:""")

        def sel(m, dst, src):
            for d in range(4):
                A(f"v_perm_b32 v{dst+d}, v{src+(m>>1)}, v{src+(m>>1)}, v{vPS+4*(m&1)+d}")

        def mfma(acc, s, w, first):
            c = "0" if first else f"v[{acc}:{acc+3}]"
            A(f"v_mfma_f32_16x16x32_bf16 v[{acc}:{acc+3}], v[{s}:{s+3}], v[{w}:{w+3}], {c}")

        def get_xn(ffn):
            A(f"s_lshl_b32 s41, s{sW}, 2\ns_add_u32 s41, s41, {C_XN}")
            self.lds_spin("s41", 1, sleep=0)
            A(f"""
            s_lshl_b32 s40, s{sW}, 6
            v_lshl_add_u32 v2, v{vJ}, 4, s40
            ds_read_b128 v[{vXQ}:{vXQ+3}], v2 offset:{L_XQ}""")
            if ffn:
                A(f"""
                v_lshlrev_b32 v2, 1, v2
                ds_read_b128 v[{vXG}:{vXG+3}], v2 offset:{L_XG}
                ds_read_b128 v[{vXG+4}:{vXG+7}], v2 offset:{L_XG+16}""")
            A("s_waitcnt lgkmcnt(0)")
            self.stamp(3)
            sel(0, vSEL, vXQ)
            A("s_nop 1")

        def red_write(accs, lbase, shift, cnt):
            A(f"s_lshl_b32 s40, s{sW}, {shift}\nv_add_u32 v1, s40, v{vRed}\ns_mov_b32 exec_hi, 0")
            for i, a in enumerate(accs):
                A(f"ds_write_b128 v1, v[{a}:{a+3}] offset:{lbase + 512*i}")
            self.arrive(cnt, want_old=False)

        def kvflag(c):
            A(f"""
            s_lshl_b32 s40, s{sW}, 2
            s_mov_b64 exec, 1
            v_mov_b32 v1, s40
            v_mov_b32 v2, 1
            ds_write_b32 v1, v2 offset:{c}
            s_mov_b64 exec, -1""")

        def issue(op, i):
            kind, m = op
            slot = RING + 4*(i % 16)
            if kind in "kv":
                va, sb, x = (vA1, 6, 64*(m & 3)) if kind == "k" else (vA2, 8, 128*(m & 1))
                if m % 4 == 0:
                    if i > 8:
                        A(f"s_add_u32 s47, s47, {4096 if m == 4 else L_V - L_K - 4096}")
                    A("s_mov_b32 m0, s47")
                    if m == 4:
                        A(f"v_add_u32 v{va}, 4096, v{va}")
                A(f"v_xor_b32 v1, {x}, v{va}")
                A(f"global_load_lds_dwordx4 v1, s[{sb}:{sb+1}] offset:{1024*(m&3)} nt")
            elif kind in "gu":
                va, sb = (vA1, 16) if kind == "g" else (vA2, 18)
                A(f"global_load_dwordx4 v[{slot}:{slot+3}], v{va}, s[{sb}:{sb+1}] nt")
                if m < 15:
                    A(f"v_add_u32 v{va}, s{47 if (self.stag and m % 2) else 46}, v{va}")
            elif kind in "do":
                sb = 20 if kind == "d" else 12
                A(f"global_load_dwordx4 v[{BIG+4*m}:{BIG+4*m+3}], v{vAw}, s[{sb}:{sb+1}] nt")
                if m < 15:
                    A(f"v_add_u32 v{vAw}, s45, v{vAw}")

        def process(op, i, ffn):
            kind, m = op
            slot = RING + 4*(i % 16)
            if kind == "q":
                mfma(aQ, vSEL, slot, m == 0)
                if m < 7:
                    sel(m + 1, vSEL, vXQ)
                    A("s_nop 1")
                else:
                    if ffn:
                        sel(0, vSEL, vXG)
                        A("s_nop 0")
                    else:
                        A("s_nop 4")
                    red_write([aQ], L_RQ, 9, C_Q)
                    self.stamp(4)
            elif kind in "kv" and m == 7:
                l = self.lab("Lkvf")
                if self.after_pause:
                    A(f"s_cmp_lg_u32 s43, 0\ns_cbranch_scc1 {l}")
                kvflag(C_K if kind == "k" else C_V)
                if kind == "v":
                    self.stamp(5)
                A(f"{l}:")
            elif kind == "g":
                mfma(aG, vSEL, slot, m == 0)
            elif kind == "u":
                mfma(aU, vSEL, slot, m == 0)
                if m < 15:
                    sel(m + 1, vSEL, vXG)
                    A("s_nop 1")
                else:
                    A("s_nop 4")
                    red_write([aG, aU], L_RG, 10, C_G)
                    self.stamp(6)

        def stream(ops, wfun, ffn, start=8, landed=0, hold=0, holdcnt=0):
            if 'noa' in self.abl or 'nofin' in self.abl:
                hold = 0
            for i in range(start, len(ops)):
                w = wfun(i)
                if hold and i == len(ops) - hold:
                    assert landed >= start
                    self.lds_spin(C_HB, holdcnt, sleep=1)
                if hold and i >= len(ops) - hold:
                    w = max(w, hold)
                A(f"s_waitcnt vmcnt({w-1})")
                issue(ops[i], i)
                if i < self.xnpos:
                    continue
                if i == self.xnpos:
                    get_xn(ffn)
                while landed <= i - w:
                    process(ops[landed], landed, ffn); landed += 1
            return landed

        def drain(ops, landed, upto, ffn):
            n = len(ops)
            while landed < upto:
                if ops[landed][0] in "qgu":
                    A(f"s_waitcnt vmcnt({n - 1 - landed})")
                    process(ops[landed], landed, ffn)
                landed += 1
            return landed

        def final_gemv(val, first, nops, landed, wsb):
            A(f"""
            v_lshlrev_b32 v15, 5, v12
            s_mul_i32 s40, s{sTL}, {ROWP}
            s_add_u32 s40, s40, {wsb:#x}
            v_add_u32 v{vPub}, s40, v{vPub}""")
            rd = f"ds_read_b128 v[{vXG}:{vXG+3}], v15 offset:{L_VEC}\nds_read_b128 v[{vXG+4}:{vXG+7}], v15 offset:{L_VEC+16}"
            if 'noa' not in self.abl and 'nofin' not in self.abl:
                self.lds_spin(C_FO, val, sleep=0, reads=rd)
            else:
                A(rd + "\ns_waitcnt lgkmcnt(0)")
            self.stamp(8)
            self.L.append(".p2align 3")
            late = [m for m in range(16) if first + m >= landed]
            early = [m for m in range(16) if first + m < landed]
            for k, m in enumerate(early):
                sel(m, RING + 4*m, vXG)
                if k:
                    mfma(aQ, RING + 4*early[k-1], BIG + 4*early[k-1], k == 1)
            for k, m in enumerate(late):
                sel(m, RING + 4*m, vXG)
                if k == 0 and early:
                    mfma(aQ, RING + 4*early[-1], BIG + 4*early[-1], len(early) == 1)
            self.stamp(9)
            for k, m in enumerate(late):
                A(f"s_waitcnt vmcnt({nops - 1 - (first + m)})")
                mfma(aQ, RING + 4*m, BIG + 4*m, k == 0 and not early)
            g = vT
            A(f"""
            s_nop 7
            v_permlane32_swap_b32 v{aQ}, v{aQ+2}
            v_permlane32_swap_b32 v{aQ+1}, v{aQ+3}
            s_nop 0
            v_add_f32_dpp v{g}, v{aQ+2}, v{aQ} row_shl:8 row_mask:0xf bank_mask:0xf bound_ctrl:1
            v_add_f32_dpp v{g+1}, v{aQ+3}, v{aQ+1} row_shl:8 row_mask:0xf bank_mask:0xf bound_ctrl:1""")
            self.tag(g); self.tag(g + 1)
            A(f"""
            s_nop 0
            v_permlane32_swap_b32 v{g}, v{g+2}
            v_permlane32_swap_b32 v{g+1}, v{g+3}
            s_mov_b64 exec, 0x00ff00ff
            global_store_dwordx4 v{vPub}, v[{g}:{g+3}], s[26:27] sc1
            s_mov_b64 exec, -1""")

        qops = [("q", m) for m in range(8)]
        A(f"""
        s_lshl_b32 s40, s{sG}, 24
        s_lshl_b32 s41, s{sCH}, 15
        s_add_u32 s40, s40, s41
        s_lshl_b32 s47, s{sW}, 13
        s_add_u32 s40, s40, s47
        s_add_u32 s47, s47, {L_K}
        s_add_u32 s40, s40, {(65536-4096)*256:#x}
        v_xor_b32 v1, v{vI}, v{vJ}
        v_lshlrev_b32 v1, 4, v1
        v_lshl_add_u32 v1, v{vJ}, 8, v1
        v_add_u32 v{vA1}, s40, v1
        v_lshlrev_b32 v1, 1, v{vJ}
        v_xor_b32 v1, v{vI}, v1
        v_lshlrev_b32 v1, 4, v1
        v_lshl_add_u32 v1, v{vJ}, 8, v1
        v_add_u32 v{vA2}, s40, v1""")
        ops = qops + [("k", m) for m in range(8)] + [("v", m) for m in range(8)]
        WA = self.WA
        self.after_pause = False
        landed = stream(ops, lambda i: WA[0] if i < 14 else WA[1], False)
        self.after_pause = True
        A("s_mov_b32 s43, 0")
        if self.pause and 'noa' not in self.abl:
            go = self.lab("Lgo")
            if 0 in self.gateA:
                A(f"s_cmp_eq_u32 s{sGATE}, 0\ns_cbranch_scc1 {go}")
            A(f"""
            v_mov_b32 v1, {C_GA}
            ds_read_b32 v2, v1
            s_waitcnt lgkmcnt(0)
            v_readfirstlane_b32 s{sTMP}, v2
            s_cmp_eq_u32 s{sTMP}, 4
            s_cbranch_scc1 {go}
            s_waitcnt vmcnt(0)
            s_mov_b32 s43, 1""")
            assert landed >= 8
            if landed < 16:
                kvflag(C_K)
            kvflag(C_V)
            self.stamp(5)
            self.lds_spin(C_GA, 4, sleep=1)
            A(f"{go}:")
            self.stamp(6)
        ops = ops + [("o", m) for m in range(16)]
        for w3 in ([self.WAe, WA[2]] if self.WAe else [WA[2]]):
            nxt = self.lab("Lsa")
            if self.WAe and w3 == self.WAe:
                A(f"s_cmp_lt_u32 s{sX}, 2\ns_cbranch_scc0 {nxt}")
            l2 = stream(ops, lambda i: w3 if (i < 32 or len(WA) < 4) else WA[3], False, start=24, landed=landed, hold=self.HA, holdcnt=4)
            assert l2 >= 24
            self.stamp(7)
            final_gemv(4, 24, 40, l2, WS_BS)
            self.write_stamps(10)
            A(f"s_endpgm\n{nxt}:")
        A(f"""
        L_s_notattn:
        s_cmp_ge_u32 s{sTY}, 2
        s_cbranch_scc1 L_s_last
        s_lshl2_add_u32 s40, s{sRB}, s{sW}
        s_mul_i32 s40, s40, {64*7168}""")
        if self.stag:
            A(f"""
            s_and_b32 s41, s{sW}, 1
            s_mul_i32 s42, s41, {4*7168}
            s_add_u32 s40, s40, s42""")
        A(f"""
        v_mul_u32_u24 v1, 7168, v{vJ}
        v_add3_u32 v1, v1, v13, s40
        s_lshl_b32 s41, s{sTL}, 8
        v_add_u32 v{vA1}, s41, v1
        s_lshl_b32 s41, s{sUP}, 8
        v_add_u32 v{vA2}, s41, v1
        s_movk_i32 s46, {7168*4}""")
        if self.stag:
            A("s_lshl_b32 s42, s42, 1\ns_add_u32 s47, s46, s42\ns_sub_u32 s46, s46, s42")
        if self.wideg:
            wd = self.wideg; nt = 7168 // wd; rpi = 1024 // wd; lpr = wd // 16
            import math
            A(f"""
            s_lshl2_add_u32 s40, s{sTL}, s{sRB}
            s_mul_hi_u32 s41, s40, {-(-(1 << 32) // nt)}
            s_mul_i32 s42, s41, {nt}
            s_sub_u32 s42, s40, s42
            s_lshl2_add_u32 s41, s41, s{sW}
            s_mul_i32 s41, s41, {16*rpi*7168}
            s_mul_i32 s42, s42, {wd}
            s_add_u32 s41, s41, s42
            v_lshrrev_b32 v1, {int(math.log2(lpr))}, v0
            v_mul_u32_u24 v1, 7168, v1
            v_and_b32 v2, {lpr-1}, v0
            v_lshl_add_u32 v1, v2, 4, v1
            v_add_u32 v{vA1}, s41, v1
            v_mov_b32 v{vA2}, v{vA1}
            s_movk_i32 s46, {7168*rpi}""")
        ops = qops + [(k, m) for m in range(16) for k in "gu"] + [("d", m) for m in range(16)]
        WF = self.WF
        landed = stream(ops[:40], lambda i: WF[0] if i < 14 else WF[1], True)
        gated = self.lab("Lsfg")
        if any(self.gateF) and 'noa' not in self.abl:
            A(f"s_cmp_lg_u32 s{sGATE}, 0\ns_cbranch_scc1 {gated}")
        if 0 in self.gateF or 'noa' in self.abl:
            l2 = stream(ops, lambda i: WF[2] if (i < 48 or len(WF) < 4) else WF[3], True, start=40, landed=landed, hold=self.HF, holdcnt=1)
            assert l2 >= 40
            self.stamp(7)
            final_gemv(1, 40, 56, l2, WS_BF)
            self.write_stamps(10)
            A("s_endpgm")
        if any(self.gateF) and 'noa' not in self.abl:
            A(f"{gated}:")
            l2 = drain(ops[:40], landed, 40, True)
            self.lds_spin(C_GA, 1, sleep=1)
            l2 = stream(ops, lambda i: self.WFe or WF[2], True, start=40, landed=l2)
            self.stamp(7)
            final_gemv(1, 40, 56, l2, WS_BF)
            self.write_stamps(10)
            A("s_endpgm")
        A("L_s_last:")
        get_xn(False)
        drain(qops, 0, 8, False)
        A(f"s_add_u32 s{sW}, s{sW}, 4\ns_branch L_final")

    def red_publish(self, lbase, pitch, cnt, nl, addr_code, nrep, flagv=None, sleep=1, val=sT32, local=False):
        A = self.A
        t = 16
        A("v_lshlrev_b32 v10, 4, v0")
        A(addr_code)
        if local and self.warm is not None:
            self.exec_set(0x0101010101010101)
            A(f"global_load_dword v54, v11, s[26:27] {self.warm}\ns_mov_b64 exec, -1")
        self.lds_spin(cnt, 4, sleep=sleep, reads="\n".join(f"ds_read_b128 v[{t+4*k}:{t+4*k+3}], v10 offset:{lbase+pitch*k}" for k in range(4)))
        if local and self.earlyD:
            l = self.lab("Lef")
            A(f"s_cmp_lg_u32 s101, 0\ns_cbranch_scc1 {l}")
            self.flag_store(nrep, flagv, val)
            A(f"{l}:")
        if nl == 32:
            A("s_mov_b32 exec_hi, 0")
        for h in (0, 2):
            A(f"v_pk_add_f32 v[{t+h}:{t+h+1}], v[{t+h}:{t+h+1}], v[{t+4+h}:{t+5+h}]")
            A(f"v_pk_add_f32 v[{t+8+h}:{t+9+h}], v[{t+8+h}:{t+9+h}], v[{t+12+h}:{t+13+h}]")
        for h in (0, 2):
            A(f"v_pk_add_f32 v[{t+h}:{t+h+1}], v[{t+h}:{t+h+1}], v[{t+8+h}:{t+9+h}]")
        for r in range(4):
            self.tag(t + r)
        if local:
            rem = self.lab("Lremote"); fl = self.lab("Lpub")
            A(f"""
            s_cmp_lg_u32 s101, 0
            s_cbranch_scc1 {rem}
            global_store_dwordx4 v11, v[{t}:{t+3}], s[26:27]
            s_branch {fl if not self.earlyD else fl + '_done'}
            {rem}:
            global_store_dwordx4 v11, v[{t}:{t+3}], s[26:27] sc1
            {fl}:""")
            self.flag_store(nrep, flagv, val)
            A(f"{fl}_done:")
        else:
            A(f"global_store_dwordx4 v11, v[{t}:{t+3}], s[26:27] sc1")
            self.flag_store(nrep, flagv, val)

    def awave(self):
        A = self.A
        vKF, vVF, vGT, vU = 56, 184, 216, 232
        vQF, vS = 216, 16
        vI, vJ = 4, 5
        vA0, vA1 = 6, 7
        vT = 16
        x0, xr = 56, 72
        A(f"""
        s_setprio 3
        s_lshl2_add_u32 s40, s{sRB}, s{sW}
        s_lshl_b32 s40, s40, 6
        v_lshlrev_b32 v14, 5, v0
        v_add_lshl_u32 v1, v0, s40, 1
        s_lshl2_add_u32 s40, s{sRBQ}, s{sW}
        s_lshl_b32 s40, s40, 5
        v_and_b32 v15, 31, v0
        v_add_lshl_u32 v15, v15, s40, 1
        v_mov_b32 v10, 0
        v_and_b32 v2, 31, v0
        v_lshlrev_b32 v2, 2, v2
        ds_write_b32 v2, v10 offset:{L_CNT}
        s_waitcnt lgkmcnt(0)
        global_load_dwordx4 v[{xr}:{xr+3}], v14, s[4:5]
        global_load_dwordx4 v[{xr+4}:{xr+7}], v14, s[4:5] offset:16
        global_load_ushort v{xr+8}, v15, s[4:5]
        global_load_ushort v{xr+9}, v1, s[4:5]
        s_load_dword s{sT32}, s[26:27], {WS_E}""")
        if self.touch:
            tf = self.lab("Ltf"); td = self.lab("Ltd")
            A(f"""
            s_cmp_eq_u32 s{sW}, 0
            s_cbranch_scc0 {td}
            s_lshl_b32 s41, s{sTL}, 18
            s_cmp_eq_u32 s{sTY}, 0
            s_cbranch_scc0 {tf}
            s_lshl_b32 s40, s{sG}, 24
            s_add_u32 s40, s40, {(65536-4096)*256:#x}
            s_load_dword s48, s[6:7], s40
            s_load_dword s49, s[8:9], s40
            s_load_dword s50, s[12:13], s41
            s_branch {td}
            {tf}:
            s_load_dword s48, s[22:23], 0
            s_cmp_eq_u32 s{sTY}, 1
            s_cbranch_scc0 {td}
            s_mul_i32 s40, s{sRB}, {256*7168}
            s_add_u32 s42, s40, {255*7168}
            s_load_dword s49, s[16:17], s40
            s_load_dword s50, s[18:19], s40
            s_load_dword s51, s[16:17], s42
            s_load_dword s52, s[18:19], s42
            s_load_dword s53, s[20:21], s41
            {td}:""")
        A("s_barrier")
        self.stamp(1)
        if self.xt:
            nx = self.lab("Lnoxt")
            A(f"""
            s_waitcnt lgkmcnt(0)
            s_or_b32 s40, s{sW}, s{sTY}
            s_cbranch_scc1 {nx}
            s_getreg_b32 s45, hwreg(HW_REG_XCC_ID, 0, 4)
            s_lshl_b32 s45, s45, 28
            s_add_u32 s41, s{sT32}, 1
            s_xor_b32 s45, s45, s41
            s_lshl_b32 s95, s{sG}, 7
            s_add_u32 s95, s95, {WS_XA:#x}
            s_lshl2_add_u32 s41, s{sY}, s95
            s_mov_b64 exec, 1
            v_mov_b32 v1, s41
            v_mov_b32 v2, s45
            global_store_dword v1, v2, s[26:27] sc1
            s_mov_b64 exec, -1
            s_waitcnt vmcnt(1)
            s_branch {nx}_ln
            {nx}:
            s_waitcnt vmcnt(0)
            {nx}_ln:""")
        else:
            A(f"s_waitcnt vmcnt(0) lgkmcnt(0)")
        self.stamp(11)
        for i in range(8):
            A(f"v_lshlrev_b32 v{x0+2*i}, 16, v{xr+i}\nv_and_b32 v{x0+2*i+1}, 0xffff0000, v{xr+i}")
        A(f"v_pk_add_f32 v[{vT}:{vT+1}], v[{x0}:{x0+1}], v[{x0+2}:{x0+3}]")
        A(f"v_pk_add_f32 v[{vT+2}:{vT+3}], v[{x0+4}:{x0+5}], v[{x0+6}:{x0+7}]")
        for i in range(4, 8, 2):
            A(f"v_pk_add_f32 v[{vT}:{vT+1}], v[{vT}:{vT+1}], v[{x0+2*i}:{x0+2*i+1}]")
            A(f"v_pk_add_f32 v[{vT+2}:{vT+3}], v[{vT+2}:{vT+3}], v[{x0+2*i+2}:{x0+2*i+3}]")
        A(f"v_pk_add_f32 v[{vT}:{vT+1}], v[{vT}:{vT+1}], v[{vT+2}:{vT+3}]")
        A(f"v_add_f32 v{vT}, v{vT}, v{vT+1}")
        self.allreduce_in_row(vT)
        self.allreduce_rows(vT, vT+1, "v_add_f32")
        A(f"v_mul_f32 v{vT}, {f2u(1.0/1024):#x}, v{vT}")
        for i in range(8):
            A(f"v_pk_add_f32 v[{x0+2*i}:{x0+2*i+1}], v[{x0+2*i}:{x0+2*i+1}], v[{vT}:{vT+1}] op_sel_hi:[1,0] neg_lo:[0,1] neg_hi:[0,1]")
        A(f"v_pk_mul_f32 v[{vT+2}:{vT+3}], v[{x0}:{x0+1}], v[{x0}:{x0+1}]")
        A(f"v_pk_mul_f32 v[{vT+4}:{vT+5}], v[{x0+2}:{x0+3}], v[{x0+2}:{x0+3}]")
        for i in range(2, 8):
            d = vT + 2 + 2*(i & 1)
            A(f"v_pk_fma_f32 v[{d}:{d+1}], v[{x0+2*i}:{x0+2*i+1}], v[{x0+2*i}:{x0+2*i+1}], v[{d}:{d+1}]")
        A(f"v_pk_add_f32 v[{vT+2}:{vT+3}], v[{vT+2}:{vT+3}], v[{vT+4}:{vT+5}]")
        A(f"v_add_f32 v{vT+2}, v{vT+2}, v{vT+3}")
        r = xr + 8
        self.bf16_round(vT, vT)
        self.allreduce_in_row(vT+2)
        A(f"""
        v_lshlrev_b32 v{r}, 16, v{r}
        v_lshlrev_b32 v{r+1}, 16, v{r+1}
        v_pk_add_f32 v[{r}:{r+1}], v[{r}:{r+1}], v[{vT}:{vT+1}] op_sel_hi:[1,0] neg_lo:[0,1] neg_hi:[0,1]""")
        self.allreduce_rows(vT+2, vT+3, "v_add_f32")
        A(f"v_mul_f32 v{vT+2}, {f2u(1.0/1024):#x}, v{vT+2}")
        self.bf16_round(vT+2, vT+2)
        A(f"v_add_f32 v{vT+2}, {f2u(1e-5):#x}, v{vT+2}")
        self.bf16_round(vT+2, vT+2)
        A(f"""
        v_sqrt_f32 v{vT+2}, v{vT+2}
        v_cvt_pk_bf16_f32 v{r+1}, v{r}, v{r+1}
        v_lshlrev_b32 v{r}, 16, v{r+1}
        v_and_b32 v{r+1}, 0xffff0000, v{r+1}""")
        self.bf16_round(vT+2, vT+2)
        A(f"""
        v_rcp_f32 v{vT+2}, v{vT+2}
        v_and_b32 v1, 3, v0
        v_lshrrev_b32 v2, 2, v0
        v_lshlrev_b32 v2, 1, v2
        v_pk_mul_f32 v[{r}:{r+1}], v[{r}:{r+1}], v[{vT+2}:{vT+3}] op_sel_hi:[1,0]
        s_lshl_b32 s40, s{sW}, 6
        v_lshl_add_u32 v10, v1, 4, s40
        v_lshl_add_u32 v11, v10, 1, v2
        v_add_u32 v10, v10, v2""")
        if self.stag:
            A(f"s_and_b32 s41, s{sW}, 1\ns_lshl_b32 s41, s41, 1\nv_xor_b32 v11, s41, v11")
        A(f"""
        v_cvt_pk_bf16_f32 v{r}, v{r}, v{r+1}
        s_lshl_b32 s40, s{sW}, 2
        v_mov_b32 v2, s40
        v_mov_b32 v1, 1
        ds_write_b16_d16_hi v11, v{r} offset:{L_XG}
        s_mov_b32 exec_hi, 0
        ds_write_b16 v10, v{r} offset:{L_XQ}
        s_mov_b64 exec, 1
        ds_write_b32 v2, v1 offset:{C_XN}
        s_mov_b64 exec, -1
        s_add_u32 s{sT32}, s{sT32}, 1
        s_and_b32 s{sT10}, s{sT32}, s44
        v_mov_b32 v3, s{sT10}""")
        self.stamp(12)
        if self.wtest:
            pre, mod, n = self.wtest
            A(f"s_cmp_eq_u32 s{sW}, 3\ns_cbranch_scc0 L_adone")
            A(f"s_mul_i32 s42, s2, {n*1024}\ns_add_u32 s42, s42, 0x800000\nv_lshl_add_u32 v10, v0, 4, s42")
            if pre == 's':
                A("s_add_u32 s40, s26, s42\ns_addc_u32 s41, s27, 0")
                for i in range(n*16):
                    A(f"s_load_dword s48, s[40:41], {64*i} glc")
                A("s_waitcnt lgkmcnt(0)")
            elif pre:
                for i in range(n):
                    A(f"global_load_dwordx4 v[20:23], v10, s[26:27] offset:{1024*i} {pre[1:]}")
                A("s_waitcnt vmcnt(0)")
            self.lds_spin(C_Q, 4, sleep=1)
            A("s_sleep 64")
            for i in range(n):
                A(f"global_store_dwordx4 v10, v[16:19], s[26:27] offset:{1024*i} {mod}")
        if 'noa' in self.abl:
            A("s_branch L_adone")
        if self.xt:
            pass
        elif self.local:
            A(f"""
            s_getreg_b32 s45, hwreg(HW_REG_XCC_ID, 0, 4)
            s_lshl_b32 s45, s45, 28
            s_cmp_eq_u32 s{sTY}, 0
            s_cselect_b32 s45, s45, 0
            s_xor_b32 s45, s45, s{sT32}""")
        nq = self.lab("Lnoq")
        A(f"s_cmp_eq_u32 s{sW}, 3\ns_cbranch_scc0 {nq}")
        self.red_publish(L_RQ, 512, C_Q, 32, f"""
            s_lshl3_add_u32 s41, s{sHQ}, s{sRBQ}
            s_lshl_b32 s40, s41, 9
            s_add_u32 s40, s40, {WS_BQ:#x}
            v_add_u32 v11, s40, v10
            s_lshr_b32 s40, s41, 4
            s_and_b32 s41, s41, 15
            s_lshl_b32 s40, s40, 5
            s_add_u32 s40, s40, s41
            s_lshl_b32 s40, s40, 2
            s_add_u32 s40, s40, {WS_FLA:#x}""", self.nrepA, val=(45 if (self.local and not self.forceloc) else sT32))
        self.stamp(13)
        A(f"""
        {nq}:
        s_cmp_ge_u32 s{sTY}, 2
        s_cbranch_scc1 L_final
        s_cmp_ge_u32 s{sTY}, 1
        s_cbranch_scc1 L_ffn""")
        if 'stop1' in self.abl:
            self.arrive(C_GA, want_old=False); A("s_branch L_adone")
        if self.xt:
            nc = self.lab("Lnocol"); l = self.lab("Lxt")
            A(f"""
            s_cmp_lg_u32 s{sW}, 0
            s_cbranch_scc1 {nc}
            s_mov_b32 s42, s45
            s_mov_b32 s43, s45
            s_add_u32 s41, s95, 64
            s_mov_b32 s{sSPIN}, 0
            {l}:
            s_sleep {self.xsleep}
            s_load_dwordx16 s[{sP}:{sP+15}], s[26:27], s95 glc
            s_load_dwordx16 s[4:19], s[26:27], s41 glc
            s_add_u32 s{sSPIN}, s{sSPIN}, 1
            s_cmp_gt_u32 s{sSPIN}, {SPIN_MAX}
            s_cbranch_scc1 L_end
            s_waitcnt lgkmcnt(0)""")
            pairs = [sP + 2*i for i in range(8)] + [4 + 2*i for i in range(8)]
            for p in pairs:
                A(f"s_xor_b64 s[{p}:{p+1}], s[{p}:{p+1}], s[42:43]")
            for p in pairs[1:]:
                A(f"s_or_b64 s[{sP}:{sP+1}], s[{sP}:{sP+1}], s[{p}:{p+1}]")
            A(f"""
            s_or_b32 s101, s{sP}, s{sP+1}
            s_and_b32 s{sP}, s101, 0x0fffffff
            s_cbranch_scc1 {l}
            s_cmp_lg_u32 s101, 0
            s_cselect_b32 s40, 3, 1
            s_mov_b64 exec, 1
            v_mov_b32 v1, {C_LOC}
            v_mov_b32 v2, s40
            ds_write_b32 v1, v2
            s_mov_b64 exec, -1
            {nc}:""")
        vKF, vVF, vGT, vQF, vO = 56, 88, 120, 152, 168
        vS, U, Z = 16, 24, 28
        A(f"""
        s_lshl2_add_u32 s41, s{sG}, s{sW}
        s_lshl_b32 s40, s41, 13
        s_add_u32 s40, s40, {WS_BQ + 2048:#x}
        v_and_b32 v12, 31, v0
        v_lshrrev_b32 v13, 5, v0
        v_lshlrev_b32 v1, 4, v12
        v_lshl_add_u32 v1, v13, 12, v1
        v_add_u32 v{vA0}, s40, v1
        s_and_b32 s40, s{sCH}, {self.nrepA-1}
        s_mul_i32 s40, s40, {REPP}
        s_lshl_b32 s41, s41, 7
        s_add_u32 s40, s40, s41
        s_add_u32 s95, s40, {WS_FLA:#x}
        s_lshl_b32 s40, s{sW}, 1
        v_add_u32 v13, s40, v13
        v_mul_u32_u24 v13, {QLP}, v13
        v_lshl_add_u32 v13, v12, 3, v13
        v_and_b32 v10, 7, v0
        s_lshl_b32 s40, s{sG}, 5
        s_add_u32 s41, s40, s{sCH}
        s_mul_i32 s41, s41, {BOP}
        s_lshl_b32 s42, s{sW}, 7
        s_add_u32 s41, s41, s42
        s_add_u32 s41, s41, {WS_BO:#x}
        v_lshlrev_b32 v8, 9, v10
        v_bfe_u32 v11, v0, 3, 1
        v_lshl_add_u32 v8, v11, 6, v8
        v_lshl_add_u32 v8, v{vJ}, 4, v8
        v_add_u32 v8, s41, v8
        s_add_u32 s40, s40, s{sCH}
        s_lshl_b32 s40, s40, 7
        s_add_u32 s40, s40, {WS_BML:#x}
        v_lshl_add_u32 v9, v10, 4, s40
        v_mul_u32_u24 v12, {QLP}, v10
        v_lshl_add_u32 v12, v{vJ}, 4, v12
        s_mov_b32 s46, {f2u(128 ** -0.5):#x}
        s_mov_b32 s47, {f2u(128 ** -0.5):#x}
        s_lshl_b32 s40, s{sW}, 13
        v_xor_b32 v14, v{vI}, v{vJ}
        v_lshlrev_b32 v14, 4, v14
        v_lshl_add_u32 v14, v{vI}, 8, v14
        v_add_u32 v14, s40, v14
        v_bfe_u32 v10, v0, 2, 2
        v_lshl_add_u32 v10, v{vJ}, 2, v10
        v_and_b32 v11, 7, v10
        v_lshlrev_b32 v11, 1, v11
        v_bfe_u32 v1, v0, 1, 1
        v_xor_b32 v11, v11, v1
        v_lshlrev_b32 v11, 4, v11
        v_lshl_add_u32 v11, v10, 8, v11
        v_and_b32 v1, 1, v0
        v_lshl_add_u32 v11, v1, 3, v11
        s_add_u32 s41, s40, {L_V}
        v_add_u32 v11, s41, v11
        ; exchange area (this wave's K rows, dead once the fragments are in registers)
        v_lshl_add_u32 v15, v0, 4, s40
        s_lshl_b32 s41, s{sW}, 10
        v_lshl_add_u32 v10, v0, 4, s41""")
        self.mask(("s92", "s93"), 0xFF00FF00FF00FF00)
        if self.warm is not None and self.warmO:
            A(f"""
            s_mov_b64 exec, 0xff
            global_load_dword v54, v8, s[26:27] {self.warm}
            s_mov_b64 exec, 1
            global_load_dword v53, v9, s[26:27] {self.warm}
            s_mov_b64 exec, -1""")

        def kreads():
            A(f"s_lshl_b32 s41, s{sW}, 2\ns_add_u32 s41, s41, {C_K}")
            self.lds_spin("s41", 1, sleep=1)
            for s in range(4):
                if s:
                    A(f"v_xor_b32 v2, {64*s}, v14")
                for t in range(2):
                    r = vKF + 16*t + 4*s
                    A(f"ds_read_b128 v[{r}:{r+3}], v{2 if s else 14} offset:{L_K + 4096*t}")
            self.stamp(3)

        if self.kfirst:
            kreads()
        A("s_mov_b32 s40, s95")
        if self.xt:
            l = self.lab("Lloc")
            A(f"""
            v_mov_b32 v1, {C_LOC}
            s_mov_b32 s{sSPIN}, 0
            {l}:
            ds_read_b32 v2, v1
            s_add_u32 s{sSPIN}, s{sSPIN}, 1
            s_cmp_gt_u32 s{sSPIN}, {SPIN_MAX}
            s_cbranch_scc1 L_end
            s_waitcnt lgkmcnt(0)
            v_readfirstlane_b32 s101, v2
            s_cmp_eq_u32 s101, 0
            s_cbranch_scc1 {l}
            s_lshr_b32 s101, s101, 1""")
            self.flag_poll(16)
        elif self.forceloc:
            self.flag_poll(16)
            A("s_mov_b32 s101, 1")
        elif self.local:
            l = self.lab("Lpoll"); r = self.lab("Lretry")
            A(f"""
            s_mov_b32 s{sSPIN}, 0
            s_mov_b32 s42, s{sT32}
            s_mov_b32 s43, s{sT32}
            s_mov_b32 s4, s45
            s_mov_b32 s5, s45
            s_branch {l}
            {r}:
            s_sleep {self.psleep}
            {l}:
            s_load_dwordx16 s[{sP}:{sP+15}], s[26:27], s40 glc
            s_add_u32 s{sSPIN}, s{sSPIN}, 1
            s_cmp_gt_u32 s{sSPIN}, {SPIN_MAX}
            s_cbranch_scc1 L_end
            s_waitcnt lgkmcnt(0)""")
            for i in range(8):
                A(f"s_xor_b64 s[{sP+2*i}:{sP+2*i+1}], s[{sP+2*i}:{sP+2*i+1}], s[{'4:5' if (i & 2) == 0 else '42:43'}]")
            for step in (2, 4, 8):
                for i in range(0, 16, 2*step):
                    A(f"s_or_b64 s[{sP+i}:{sP+i+1}], s[{sP+i}:{sP+i+1}], s[{sP+i+step}:{sP+i+step+1}]")
            A(f"""
            s_or_b32 s{sP}, s{sP}, s{sP+1}
            s_and_b32 s{sP+1}, s{sP}, 0x0fffffff
            s_cbranch_scc1 {r}
            s_cmp_lg_u32 s{sP}, 0
            s_cselect_b32 s101, 0x101, 1""")
        else:
            self.flag_poll(16)
        self.stamp(2)
        if 'stop2' in self.abl:
            self.arrive(C_GA, want_old=False); A("s_branch L_adone")
        rq = self.lab("Lgq")
        A(f"s_mov_b32 s45, 0\n{rq}:")
        for n in range(8):
            A(f"global_load_dwordx4 v[{vGT+4*n}:{vGT+4*n+3}], v{vA0}, s[26:27] offset:{512*n - 2048} sc1")
        skip = self.lab("Lkvdone")
        A(f"s_cmp_lg_u32 s45, 0\ns_cbranch_scc1 {skip}\ns_mov_b32 s45, 1")
        self.gate(1, self.gateA)
        def vreads():
            A(f"s_lshl_b32 s41, s{sW}, 2\ns_add_u32 s41, s41, {C_V}")
            self.lds_spin("s41", 1, sleep=0)
            for dt in range(8):
                if dt:
                    A(f"v_xor_b32 v14, {32*dt}, v11")
                for t in range(2):
                    r = vVF + 4*dt + 2*t
                    A(f"ds_read_b64_tr_b16 v[{r}:{r+1}], v{14 if dt else 11} offset:{4096*t}")

        if not self.kfirst:
            kreads()
        if not self.vlate:
            vreads()
        A(f"""
        s_lshr_b32 s40, s{sCH}, 4
        s_lshl1_add_u32 s40, s{sG}, s40
        s_lshl_b32 s40, s40, 5
        s_and_b32 s41, s{sCH}, 15
        s_add_u32 s40, s40, s41
        s_lshl_b32 s40, s40, 2
        s_add_u32 s95, s40, {WS_FLB:#x}""")
        A(f"s_mov_b32 s{sSPIN}, 0\n{skip}:")
        A("s_waitcnt vmcnt(0)")
        self.tagcheck2([vGT+4*n for n in range(8)], vT, vT+1)
        self.tagtest(vT, rq)
        self.stamp(4)
        if 'stop3' in self.abl:
            A("s_branch L_adone")
        for step in (4, 8, 16):
            for b in range(0, 32, 2*step):
                for h in (0, 2):
                    A(f"v_pk_add_f32 v[{vGT+b+h}:{vGT+b+h+1}], v[{vGT+b+h}:{vGT+b+h+1}], v[{vGT+b+step+h}:{vGT+b+step+h+1}]")
        A(f"""
        v_cvt_pk_bf16_f32 v{vGT}, v{vGT}, v{vGT+1}
        v_cvt_pk_bf16_f32 v{vGT+1}, v{vGT+2}, v{vGT+3}
        s_mov_b32 s45, {f2u(LOG2E):#x}
        ds_write_b64 v13, v[{vGT}:{vGT+1}] offset:{L_QL}""")
        self.arrive(C_QL, want_old=False, inc=("s101" if (self.local and not self.xt) else 1))
        self.stamp(1)
        self.lds_spin(C_QL, 4, sleep=0, low8=(self.local and not self.xt),
                      reads="\n".join(f"ds_read_b128 v[{vQF+4*s}:{vQF+4*s+3}], v12 offset:{L_QL + 64*s}" for s in range(4)))
        self.stamp(9)
        for s in range(4):
            for t in range(2):
                c = "0" if s == 0 else f"v[{vS+4*t}:{vS+4*t+3}]"
                r = vKF + 16*t + 4*s
                A(f"v_mfma_f32_16x16x32_bf16 v[{vS+4*t}:{vS+4*t+3}], v[{r}:{r+3}], v[{vQF+4*s}:{vQF+4*s+3}], {c}")
        self.early_flag('qk')
        if self.vlate:
            vreads()
        else:
            A("s_nop 7")
        for k in range(4):
            A(f"v_cndmask_b32 v{U+k}, v{vS+k}, v{vS+4+k}, s[92:93]")
        for rnd in range(2):
            for p in range(2):
                A(f"v_cvt_pk_bf16_f32 v{Z+p}, v{U+2*p}, v{U+2*p+1}")
            for p in range(2):
                A(f"v_lshlrev_b32 v{U+2*p}, 16, v{Z+p}\nv_and_b32 v{U+2*p+1}, 0xffff0000, v{Z+p}")
            if rnd == 0:
                for p in range(2):
                    A(f"v_pk_mul_f32 v[{U+2*p}:{U+2*p+1}], v[{U+2*p}:{U+2*p+1}], s[46:47]")
        vM, vL = 48, 49
        A(f"""
        v_max3_f32 v{vM}, v{U}, v{U+1}, v{U+2}
        v_max_f32 v{vM}, v{vM}, v{U+3}
        s_nop 1
        v_max_f32_dpp v{vM}, v{vM}, v{vM} row_ror:8 row_mask:0xf bank_mask:0xf""")
        self.allreduce_rows(vM, 50, "v_max_f32")
        A(f"v_mul_f32 v50, s45, v{vM}")
        for k in range(4):
            A(f"v_fma_f32 v{U+k}, v{U+k}, s45, -v50")
        for k in range(4):
            A(f"v_exp_f32 v{U+k}, v{U+k}")
        P = 32
        A(f"""
        s_nop 0
        v_cvt_pk_bf16_f32 v{P}, v{U}, v{U+1}
        v_cvt_pk_bf16_f32 v{P+1}, v{U+2}, v{U+3}
        v_pk_add_f32 v[52:53], v[{U}:{U+1}], v[{U+2}:{U+3}]
        v_mov_b32_dpp v{P+2}, v{P} row_ror:8 row_mask:0xf bank_mask:0xf
        v_mov_b32_dpp v{P+3}, v{P+1} row_ror:8 row_mask:0xf bank_mask:0xf
        v_mov_b32 v{P+4}, v{P}
        v_mov_b32 v{P+5}, v{P+1}
        v_add_f32 v{vL}, v52, v53""")
        if self.vlate:
            A("s_waitcnt lgkmcnt(0)")
        fill = [f"v_lshrrev_b32 v14, 1, v15\nv_add_f32_dpp v{vL}, v{vL}, v{vL} row_ror:8 row_mask:0xf bank_mask:0xf",
                f"v_mov_b32 v50, v{vL}\ns_lshl_b32 s40, s{sW}, 12",
                f"v_add_u32 v14, s40, v14\nv_permlane32_swap_b32 v50, v{vL}",
                f"v_add_f32 v{vL}, v{vL}, v50\nv_mov_b32 v50, v{vL}",
                f"s_nop 0",
                f"v_permlane16_swap_b32 v50, v{vL}\nv_add_f32 v{vL}, v{vL}, v50",
                f"ds_write_b64 v14, v[{vM}:{vL}] offset:{L_K + 4096}", ""]
        for dt in range(8):
            b = P + 2*(dt & 1)
            A(f"v_mfma_f32_16x16x32_bf16 v[{vO+4*dt}:{vO+4*dt+3}], v[{vVF+4*dt}:{vVF+4*dt+3}], v[{b}:{b+3}], 0")
            A(fill[dt])
        for k in range(4):
            for r in range(4):
                A(f"v_cndmask_b32 v{vO+8*k+r}, v{vO+8*k+r}, v{vO+8*k+4+r}, s[92:93]")
            A(f"ds_write_b128 v15, v[{vO+8*k}:{vO+8*k+3}] offset:{L_K + 1024*k}")
        self.arrive(C_X, want_old=False)
        A("v_lshlrev_b32 v14, 3, v0")
        self.early_flag('pv')
        self.stamp(11)
        X, ML = 56, 72
        self.lds_spin(C_X, 4, sleep=0, reads="\n".join(
            [f"ds_read_b64 v[{ML+2*w}:{ML+2*w+1}], v14 offset:{L_K + 8192*w + 4096}" for w in range(4)] +
            [f"ds_read_b128 v[{X+4*w}:{X+4*w+3}], v10 offset:{L_K + 8192*w}" for w in range(4)]))
        self.stamp(10)
        self.early_flag('xsync')
        A(f"v_max3_f32 v{vM}, v{ML}, v{ML+2}, v{ML+4}\nv_max_f32 v{vM}, v{vM}, v{ML+6}")
        for w in range(4):
            A(f"v_sub_f32 v{ML+2*w}, v{ML+2*w}, v{vM}")
        for w in range(4):
            A(f"v_mul_f32 v{ML+2*w}, s45, v{ML+2*w}")
        for w in range(4):
            A(f"v_exp_f32 v{ML+2*w}, v{ML+2*w}")
        A(f"s_nop 0\nv_mul_f32 v{vL}, v{ML}, v{ML+1}")
        for w in range(4):
            e = ML + 2*w
            for h in (0, 2):
                if w == 0:
                    A(f"v_pk_mul_f32 v[{vS+h}:{vS+h+1}], v[{X+h}:{X+h+1}], v[{e}:{e+1}] op_sel_hi:[1,0]")
                else:
                    A(f"v_pk_fma_f32 v[{vS+h}:{vS+h+1}], v[{X+4*w+h}:{X+4*w+h+1}], v[{e}:{e+1}], v[{vS+h}:{vS+h+1}] op_sel_hi:[1,0,1]")
            if w:
                A(f"v_fmac_f32 v{vL}, v{e}, v{e+1}")
        for r in range(4):
            self.tag(vS + r)
        nml = self.lab("Lnoml")

        def publish(mod):
            if 'noO' not in self.abl:
                A(f"global_store_dwordx4 v8, v[{vS}:{vS+3}], s[26:27] {mod}")
            A(f"s_cmp_lg_u32 s{sW}, 0\ns_cbranch_scc1 {nml}")
            self.tag(vM); self.tag(vL)
            A(f"""
            v_mov_b32 v50, v3
            v_mov_b32 v51, v3
            s_mov_b64 exec, 0xff
            global_store_dwordx4 v9, v[48:51], s[26:27] {mod}""")

        if self.local:
            rem = self.lab("Lremote"); fl = self.lab("Lflagb")
            A(f"s_cmp_lg_u32 s101, 0\ns_cbranch_scc1 {rem}")
            publish("")
            A(f"s_branch {fl}\n{rem}:")
            publish("sc1")
            A(f"{fl}:")
        else:
            publish("sc1")
        if self.flagpos != 'end':
            A(f"s_mov_b64 exec, -1\ns_cmp_eq_u32 s101, 0\ns_cbranch_scc1 {nml}")
        A("s_mov_b32 s40, s95")
        if 'noflagB' not in self.abl:
            self.flag_store(self.nrepB)
        A(f"{nml}:")
        self.gate(2, self.gateA)
        self.stamp(5)
        if 'stop4' in self.abl:
            A("s_branch L_adone")
        A(f"""
        s_and_b32 s40, s{sTL}, 7
        s_lshl2_add_u32 s41, s40, s{sW}
        s_lshl_b32 s41, s41, 7
        s_mul_i32 s42, s{sG}, {32*BOP}
        s_add_u32 s41, s41, s42
        s_add_u32 s41, s41, {WS_BO:#x}
        v_lshrrev_b32 v1, 3, v0
        v_mul_u32_u24 v1, {BOP}, v1
        v_and_b32 v2, 7, v0
        v_lshl_add_u32 v1, v2, 4, v1
        v_add_u32 v{vA0}, s41, v1
        v_add_u32 v13, {8*BOP}, v{vA0}
        v_add_u32 v14, {16*BOP}, v{vA0}
        v_add_u32 v15, {24*BOP}, v{vA0}
        s_lshl_b32 s41, s{sG}, 8
        s_add_u32 s40, s40, s41
        s_lshl_b32 s40, s40, 4
        s_add_u32 s40, s40, {WS_BML:#x}
        v_and_b32 v1, 31, v0
        v_lshl_add_u32 v{vA1}, v1, 7, s40
        s_lshl_b32 s40, s{sW}, 7
        v_and_b32 v2, 7, v0
        v_lshrrev_b32 v1, 3, v1
        v_lshl_add_u32 v1, v1, 2, s40
        v_lshl_add_u32 v10, v2, 4, v1
        v_lshrrev_b32 v1, 3, v0
        v_lshl_add_u32 v11, v1, 4, s40
        v_and_b32 v1, 1, v0
        v_lshl_add_u32 v1, v1, 2, v{vJ}
        v_and_b32 v2, 6, v0
        v_lshl_add_u32 v12, v1, 5, v2
        s_lshl_b32 s40, s{sW}, 3
        v_add_u32 v12, s40, v12""")
        nb = self.lab("Lnopollb")
        A(f"""
        s_cmp_ge_u32 s{sW}, 2
        s_cbranch_scc1 {nb}
        s_and_b32 s40, s{sCH}, {self.nrepB-1}
        s_mul_i32 s40, s40, {REPP}
        s_lshl1_add_u32 s41, s{sG}, s{sW}
        s_lshl_b32 s41, s41, 7
        s_add_u32 s40, s40, s41
        s_add_u32 s40, s40, {WS_FLB:#x}""")
        self.flag_poll(16)
        self.arrive(C_B1, want_old=False)
        A(f"{nb}:")
        self.lds_spin(C_B1, 2, sleep=1)
        self.stamp(6)
        rb_ = self.lab("Lgo")
        vO, vML = 56, 72
        A(f"s_mov_b32 s47, 0\n{rb_}:")
        def bloads(mod):
            A(f"global_load_dwordx4 v[{vML}:{vML+3}], v{vA1}, s[26:27] {mod}")
            for n in range(4):
                A(f"global_load_dwordx4 v[{vO+4*n}:{vO+4*n+3}], v{(vA0, 13, 14, 15)[n]}, s[26:27] {mod}")
        if self.local and self.gmod != 'sc1':
            rem = self.lab("Lremote"); fl = self.lab("Lbld")
            A(f"s_cmp_lg_u32 s101, 0\ns_cbranch_scc1 {rem}")
            bloads(self.gmod)
            A(f"s_branch {fl}\n{rem}:")
            bloads("sc1")
            A(f"{fl}:")
        else:
            bloads("sc1")
        if self.HA:
            l = self.lab("Lhb")
            A(f"s_cmp_lg_u32 s47, 0\ns_cbranch_scc1 {l}\ns_mov_b32 s47, 1")
            self.arrive(C_HB, want_old=False)
            A(f"{l}:")
        if 3 in self.gateA:
            self.gate(3, self.gateA)
            A(f"s_mov_b32 s{sGATE}, 0")
        A("s_waitcnt vmcnt(4)")
        A(f"v_and_b32 v{vT+4}, 0xffff0000, v{vML}\nv_mov_b32 v{vT}, v{vT+4}")
        self.allreduce_in_row(vT, "v_max_f32")
        A(f"""
        v_mov_b32 v{vT+2}, v{vT}
        s_nop 1
        v_permlane16_swap_b32 v{vT+2}, v{vT}
        v_max_f32 v{vT}, v{vT}, v{vT+2}
        v_sub_f32 v{vT+4}, v{vT+4}, v{vT}
        v_mul_f32 v{vT+4}, s45, v{vT+4}
        v_exp_f32 v{vT+4}, v{vT+4}
        s_mov_b32 exec_hi, 0
        ds_write_b32 v10, v{vT+4} offset:{L_WT}
        s_mov_b32 exec_hi, -1
        ds_read_b128 v[{vT+8}:{vT+11}], v11 offset:{L_WT}
        v_mul_f32 v{vT+1}, v{vT+4}, v{vML+1}""")
        self.allreduce_in_row(vT + 1)
        A(f"""
        v_mov_b32 v{vT+2}, v{vT+1}
        s_nop 1
        v_permlane16_swap_b32 v{vT+2}, v{vT+1}
        v_add_f32 v{vT+1}, v{vT+1}, v{vT+2}
        v_rcp_f32 v{vT+1}, v{vT+1}
        s_waitcnt vmcnt(0)""")
        self.tagcheck2([vML] + [vO + 4*n for n in range(4)], vT + 16, vT + 17)
        self.tagtest(vT + 16, rb_)
        self.stamp(7)
        A("s_waitcnt lgkmcnt(0)")
        acc = vT + 4
        for n in range(4):
            w = vT + 8 + (n & ~1)
            os_ = f"op_sel:[0,{n&1}] op_sel_hi:[1,{n&1}]" if n == 0 else f"op_sel:[0,{n&1},0] op_sel_hi:[1,{n&1},1]"
            for h in (0, 2):
                if n == 0:
                    A(f"v_pk_mul_f32 v[{acc+h}:{acc+h+1}], v[{vO+h}:{vO+h+1}], v[{w}:{w+1}] {os_}")
                else:
                    A(f"v_pk_fma_f32 v[{acc+h}:{acc+h+1}], v[{vO+4*n+h}:{vO+4*n+h+1}], v[{w}:{w+1}], v[{acc+h}:{acc+h+1}] {os_}")
        self.reduce_scatter_rows(acc)
        A(f"""
        s_nop 1
        v_add_f32_dpp v{acc}, v{acc}, v{acc} row_ror:8 row_mask:0xf bank_mask:0xf
        v_mov_b32 v1, {C_FO}
        v_mul_f32 v{acc}, v{acc}, v{vT+1}
        v_mov_b32 v2, 1
        v_cvt_pk_bf16_f32 v{acc}, v{acc}, v{acc}""")
        self.exec_set(0x00FF00FF00FF00FF)
        A(f"""
        ds_write_b16 v12, v{acc} offset:{L_VEC}
        s_mov_b64 exec, 1
        ds_add_u32 v1, v2
        s_mov_b64 exec, -1""")
        self.stamp(8)
        if 'diag' in self.abl:
            l = self.lab("Ldg")
            if 'diagx' in self.abl:
                A(f"s_getreg_b32 s41, hwreg(HW_REG_XCC_ID, 0, 4)\ns_cmp_eq_u32 s41, s{sX}")
            else:
                A("s_cmp_eq_u32 s101, 0")
            A(f"""
            s_cbranch_scc1 L_adone
            s_memrealtime s[42:43]
            s_waitcnt lgkmcnt(0)
            s_add_u32 s40, s42, 2000
            {l}:
            s_memrealtime s[42:43]
            s_waitcnt lgkmcnt(0)
            s_sub_u32 s41, s42, s40
            s_cmp_lt_i32 s41, 0
            s_cbranch_scc1 {l}""")
        A("L_adone:")
        self.write_stamps(14)
        A("s_endpgm")
        A(f"""
        L_ffn:
        s_cmp_eq_u32 s{sW}, 2
        s_cbranch_scc0 L_adone""")
        if self.localD:
            l = self.lab("Lxt")
            A(f"""
            s_getreg_b32 s45, hwreg(HW_REG_XCC_ID, 0, 4)
            s_lshl_b32 s45, s45, 28
            s_xor_b32 s42, s45, s{sT32}
            s_mov_b32 s43, s42
            s_lshl_b32 s40, s{sG}, 7
            s_add_u32 s40, s40, {WS_XT:#x}
            s_lshl2_add_u32 s41, s{sY}, s40
            s_mov_b64 exec, 1
            v_mov_b32 v1, s41
            v_mov_b32 v2, s42
            global_store_dword v1, v2, s[26:27] sc1
            s_mov_b64 exec, -1
            s_add_u32 s41, s40, 64
            s_mov_b32 s{sSPIN}, 0
            {l}:
            s_sleep 24
            s_load_dwordx16 s[{sP}:{sP+15}], s[26:27], s40 glc
            s_load_dwordx16 s[4:19], s[26:27], s41 glc
            s_add_u32 s{sSPIN}, s{sSPIN}, 1
            s_cmp_gt_u32 s{sSPIN}, {SPIN_MAX}
            s_cbranch_scc1 L_end
            s_waitcnt lgkmcnt(0)""")
            pairs = [sP + 2*i for i in range(8)] + [4 + 2*i for i in range(6)]
            for p in pairs:
                A(f"s_xor_b64 s[{p}:{p+1}], s[{p}:{p+1}], s[42:43]")
            for p in pairs[1:]:
                A(f"s_or_b64 s[{sP}:{sP+1}], s[{sP}:{sP+1}], s[{p}:{p+1}]")
            A(f"""
            s_or_b32 s101, s{sP}, s{sP+1}
            s_and_b32 s{sP}, s101, 0x0fffffff
            s_cbranch_scc1 {l}""")
        if 'noffn' in self.abl:
            A("s_branch L_adone")
        self.red_publish(L_RG, 1024, C_G, 64, f"""
            s_sub_u32 s41, s{sUP}, s{sTL}
            s_lshl2_add_u32 s40, s{sTL}, s{sRB}
            s_lshl_b32 s40, s40, 10
            s_add_u32 s40, s40, {WS_BD:#x}
            v_add_u32 v11, s40, v10
            v_lshrrev_b32 v13, 5, v0
            s_lshl_b32 s42, s41, 12
            v_mul_lo_u32 v12, s42, v13
            v_add_u32 v11, v11, v12
            s_lshl_b32 s40, s{sTL}, 5
            s_add_u32 s40, s40, s{sRB}
            s_lshl_b32 s40, s40, 2
            s_lshl_b32 s42, s41, 7
            s_add_u32 s42, s42, 16
            v_mul_lo_u32 v12, s42, v0
            v_add_u32 v12, s40, v12
            s_movk_i32 s40, {WS_FLD:#x}""", 2, 12, sleep=1, local=self.localD)
        self.gate(1, self.gateF)
        self.stamp(5)
        A(f"""
        s_lshl_b32 s40, s{sTL}, 12
        s_add_u32 s40, s40, {WS_BD:#x}
        v_add_u32 v{vA0}, s40, v10
        v_and_b32 v1, 1, v0
        v_lshl_add_u32 v1, v1, 1, v13
        v_and_b32 v2, 30, v0
        v_lshl_add_u32 v12, v1, 6, v2
        s_lshl_b32 s40, s{sTL}, 7
        s_add_u32 s40, s40, {WS_FLD:#x}""")
        self.flag_poll(8)
        self.stamp(6)
        rd = self.lab("Lgd")
        G = 56
        A(f"s_mov_b32 s47, 0\n{rd}:")
        def dloads(mod):
            for n in range(4):
                A(f"global_load_dwordx4 v[{G+4*n}:{G+4*n+3}], v{vA0}, s[26:27] offset:{1024*n} {mod}")
        if self.localD:
            rem = self.lab("Lremote"); fl = self.lab("Ldld")
            A(f"s_cmp_lg_u32 s101, 0\ns_cbranch_scc1 {rem}")
            dloads(self.gmod)
            A(f"s_branch {fl}\n{rem}:")
            dloads("sc1")
            A(f"{fl}:")
        else:
            dloads("sc1")
        if self.HF:
            l = self.lab("Lhb")
            A(f"s_cmp_lg_u32 s47, 0\ns_cbranch_scc1 {l}\ns_mov_b32 s47, 1")
            self.arrive(C_HB, want_old=False)
            A(f"{l}:")
        if 2 in self.gateF:
            self.gate(2, self.gateF)
            A(f"s_mov_b32 s{sGATE}, 0")
        A("s_waitcnt vmcnt(0)")
        self.tagcheck2([G + 4*n for n in range(4)], vT, vT + 1)
        self.tagtest(vT, rd)
        self.stamp(7)
        for h in (0, 2):
            A(f"v_pk_add_f32 v[{G+h}:{G+h+1}], v[{G+h}:{G+h+1}], v[{G+4+h}:{G+5+h}]")
            A(f"v_pk_add_f32 v[{G+8+h}:{G+9+h}], v[{G+8+h}:{G+9+h}], v[{G+12+h}:{G+13+h}]")
        for h in (0, 2):
            A(f"v_pk_add_f32 v[{G+h}:{G+h+1}], v[{G+h}:{G+h+1}], v[{G+8+h}:{G+9+h}]")
        c1 = -2.0 * 0.7978845608028654 * LOG2E
        c2 = c1 * 0.044715
        A(f"""
        v_cvt_pk_bf16_f32 v{G}, v{G}, v{G+1}
        v_cvt_pk_bf16_f32 v{G+1}, v{G+2}, v{G+3}
        s_mov_b32 s46, {f2u(c2):#x}
        v_mov_b32 v{vT+4}, {f2u(c1):#x}
        v_permlane32_swap_b32 v{G}, v{G+1}
        v_lshlrev_b32 v{G+2}, 16, v{G}
        v_and_b32 v{G+3}, 0xffff0000, v{G}
        v_pk_mul_f32 v[{vT}:{vT+1}], v[{G+2}:{G+3}], v[{G+2}:{G+3}]
        v_fma_f32 v{vT}, v{vT}, s46, v{vT+4}
        v_fma_f32 v{vT+1}, v{vT+1}, s46, v{vT+4}
        v_pk_mul_f32 v[{vT}:{vT+1}], v[{vT}:{vT+1}], v[{G+2}:{G+3}]
        v_exp_f32 v{vT}, v{vT}
        v_exp_f32 v{vT+1}, v{vT+1}
        v_lshlrev_b32 v{G+4}, 16, v{G+1}
        v_add_f32 v{vT}, 1.0, v{vT}
        v_add_f32 v{vT+1}, 1.0, v{vT+1}
        v_rcp_f32 v{vT}, v{vT}
        v_rcp_f32 v{vT+1}, v{vT+1}
        v_and_b32 v{G+5}, 0xffff0000, v{G+1}
        v_pk_mul_f32 v[{G+2}:{G+3}], v[{G+2}:{G+3}], v[{vT}:{vT+1}]
        v_cvt_pk_bf16_f32 v{G}, v{G+2}, v{G+3}
        v_lshlrev_b32 v{G+2}, 16, v{G}
        v_and_b32 v{G+3}, 0xffff0000, v{G}
        v_pk_mul_f32 v[{G+2}:{G+3}], v[{G+2}:{G+3}], v[{G+4}:{G+5}]
        v_mov_b32 v1, {C_FO}
        v_cvt_pk_bf16_f32 v{G}, v{G+2}, v{G+3}
        v_mov_b32 v2, 1
        ds_write_b16 v12, v{G} offset:{L_VEC}
        ds_write_b16_d16_hi v12, v{G} offset:{L_VEC+32}
        s_mov_b64 exec, 1
        ds_write_b32 v1, v2
        s_mov_b64 exec, -1""")
        self.stamp(8)
        A("s_branch L_adone")

    def final(self):
        A = self.A
        vI, vJ, vT = 4, 5, 16
        G0, G1 = 56, 60
        A(f"""
        L_final:
        s_mov_b32 s42, s{sR}
        s_lshl_b32 s43, s42, 7
        v_lshl_add_u32 v8, v0, 1, s43
        global_load_ushort v9, v8, s[4:5]""")
        if 'nofinal' in self.abl:
            A("s_branch L_adone")
        A(f"""
        s_and_b32 s41, s{sW}, 3
        s_cmp_lt_u32 s{sW}, 4
        s_cselect_b32 s46, 0, {WS_BF - WS_BS:#x}
        s_cselect_b32 s47, {28*ROWP}, 0
        s_cselect_b32 s93, -1, 0xffff
        s_mov_b32 s92, -1
        s_mul_i32 s40, s41, {ROWP}
        s_add_u32 s40, s40, s46
        s_lshl_b32 s43, s42, 8
        s_add_u32 s40, s40, s43
        s_add_u32 s46, s40, {WS_BS:#x}
        s_add_u32 s47, s47, s46
        v_mul_u32_u24 v1, {4*ROWP}, v{vJ}
        v_lshl_add_u32 v1, v{vI}, 4, v1
        v_add_u32 v6, s46, v1
        v_add_u32 v7, {16*ROWP}, v6
        v_lshl_add_u32 v10, v{vI}, 2, v{vJ}
        v_lshlrev_b32 v10, 5, v10
        s_lshl_b32 s40, s{sW}, 2
        v_add_u32 v10, s40, v10
        v_lshlrev_b32 v11, 5, v0
        v_mov_b32 v12, {C_F1}
        v_mov_b32 v13, 1
        s_waitcnt vmcnt(0)
        v_lshlrev_b32 v9, 16, v9""")
        for r in range(4):
            A(f"v_mov_b32 v{G1+r}, v3")
        l = self.lab("Lfp"); r_ = self.lab("Lfr")
        A(f"""
        s_add_u32 s40, s26, s46
        s_addc_u32 s41, s27, 0
        s_mov_b32 s{sSPIN}, 0
        s_branch {l}
        {r_}:
        s_cmp_lg_u32 s43, 0
        s_cbranch_scc1 {l}
        s_sleep {self.fsleep}
        {l}:""")
        for k in range(7):
            A(f"s_load_dword s{48+k}, s[40:41], {4*k*ROWP} glc")
        A(f"""
        s_load_dword s55, s[26:27], s47 glc
        s_add_u32 s{sSPIN}, s{sSPIN}, 1
        s_cmp_gt_u32 s{sSPIN}, {SPIN_MAX}
        s_cbranch_scc1 L_end
        s_waitcnt lgkmcnt(0)""")
        A("s_mov_b32 s43, 0")
        for k in range(8):
            A(f"s_and_b32 s{48+k}, s{48+k}, s44\ns_cmp_eq_u32 s{48+k}, s{sT10}\ns_addc_u32 s43, s43, 0")
        A(f"s_cmp_ge_u32 s43, {self.fthr}\ns_cbranch_scc0 {r_}")
        self.stamp(9)
        rg = self.lab("Lfg")
        loads = f"""
            s_or_b64 exec, s[48:49], 1
            global_load_dwordx4 v[{G0}:{G0+3}], v6, s[26:27] sc1
            s_or_b64 exec, s[92:93], 1
            global_load_dwordx4 v[{G1}:{G1+3}], v7, s[26:27] sc1
            s_mov_b64 exec, -1"""
        A("s_mov_b64 s[48:49], -1")
        for k in range(self.fdepth - 1):
            A(loads)
        A(f"{rg}:")
        A(loads)
        A(f"s_waitcnt vmcnt({2*(self.fdepth - 1)})")
        for i, k in enumerate((G0, G1)):
            A(f"v_bitop3_b32 v{vT+2*i}, v{k}, v{k+1}, s{sT10} bitop3:0x7e")
            A(f"v_bitop3_b32 v{vT+2*i+1}, v{k+2}, v{k+3}, s{sT10} bitop3:0x7e")
        for i in range(2):
            A(f"v_bitop3_b32 v{vT+2*i}, v{vT+2*i}, v{vT+2*i+1}, s44 bitop3:0xa8")
        R = vT + 12
        A(f"""
        v_cmp_ne_u32 s[48:49], 0, v{vT}
        v_cmp_ne_u32 s[92:93], 0, v{vT+2}
        v_pk_add_f32 v[{R}:{R+1}], v[{G0}:{G0+1}], v[{G1}:{G1+1}]
        v_pk_add_f32 v[{R+2}:{R+3}], v[{G0+2}:{G0+3}], v[{G1+2}:{G1+3}]
        s_add_u32 s{sSPIN}, s{sSPIN}, 1
        s_cmp_gt_u32 s{sSPIN}, {SPIN_MAX}
        s_cbranch_scc1 L_end
        s_or_b64 s[40:41], s[48:49], s[92:93]
        s_cbranch_scc1 {rg}""")
        self.stamp(10)
        self.reduce_scatter_rows(R)
        f = vT + 4
        A(f"""
        ds_write_b32 v10, v{R} offset:{L_RF}
        s_mov_b64 exec, 1
        ds_add_rtn_u32 v2, v12, v13
        s_mov_b64 exec, -1
        ds_read_b128 v[{f}:{f+3}], v11 offset:{L_RF}
        ds_read_b128 v[{f+4}:{f+7}], v11 offset:{L_RF+16}
        s_waitcnt lgkmcnt(0)
        v_readfirstlane_b32 s{sTMP}, v2
        s_cmp_eq_u32 s{sTMP}, 7
        s_cbranch_scc0 L_adone
        v_pk_add_f32 v[{f+4}:{f+5}], v[{f+4}:{f+5}], v[{f+6}:{f+7}]
        v_pk_add_f32 v[{f}:{f+1}], v[{f}:{f+1}], v[{f+2}:{f+3}]
        v_add_f32 v{f+2}, v{f+4}, v{f+5}
        v_add_f32 v{f}, v{f}, v{f+1}
        v_cvt_pk_bf16_f32 v{f}, v{f}, v{f+2}
        v_and_b32 v{f+2}, 0xffff0000, v{f}
        v_mul_f32 v{f+3}, {f2u(-LOG2E):#x}, v{f+2}
        v_exp_f32 v{f+3}, v{f+3}
        v_lshlrev_b32 v{f}, 16, v{f}
        v_add_f32 v{f+3}, 1.0, v{f+3}
        v_rcp_f32 v{f+3}, v{f+3}
        s_nop 0
        v_mul_f32 v{f+2}, v{f+2}, v{f+3}""")
        self.bf16_round(f + 2, f + 2)
        A(f"v_mul_f32 v{f}, v{f}, v{f+2}")
        self.bf16_round(f, f)
        A(f"""
        v_add_f32 v{f}, v{f}, v9
        v_cvt_pk_bf16_f32 v{f}, v{f}, v{f}
        global_store_short v8, v{f}, s[22:23] {self.outmod}""")
        A(f"""
        s_cmp_lg_u32 s{sR}, 0
        s_cbranch_scc1 L_adone
        s_mov_b64 exec, 1
        v_mov_b32 v1, {WS_E}
        v_mov_b32 v2, s{sT32}
        global_store_dword v1, v2, s[26:27]
        s_branch L_adone""")


class Gen(Gen0):
    def __init__(self, ldsb=None, nvo=None, **kw):
        self.ldsb, self.nvo = ldsb, nvo
        super().__init__(**kw)


if __name__ == "__main__":
    import argparse
    ap = argparse.ArgumentParser()
    ap.add_argument("-o", default="recurrent_scan__sliding_block_cached__geglu_ffn__decode.s")

    ap.add_argument("--stamps", action="store_true")
    ap.add_argument("--probe", default=None)
    ap.add_argument("--kw", default="")
    a = ap.parse_args()
    open(a.o, "w").write(Gen(stamps=a.stamps, probe=tuple(map(int, a.probe.split(','))) if a.probe else None, **eval(f'dict({a.kw})')).build())
```

```python
import sys, struct

KN = "recurrent_scan__sliding_block_cached__geglu_ffn__decode_kernel"

def f2u(x):
    return struct.unpack("<I", struct.pack("<f", x))[0]

WS_E   = 0x0
WS_FLD = 0x1000
WS_XT  = 0x3000
WS_XA  = 0x3400
WS_XV  = 0x8000
WS_BML = 0x4000
WS_BQ  = 0x10000
WS_BD  = 0x30000
ROWP   = 4352
WS_BS  = 0x50000
WS_BF  = 0x78000
WS_BO  = 0xA0000
BOP    = 4096 + 128
REPP   = 17 * 128
WS_FLA = 0x130000
WS_FLB = 0x148000
WS_ST  = 0x400000

L_RQ   = 0
L_RG   = L_RQ + 2048
L_QL   = L_RG + 4096
QLP    = 272
L_WT   = L_QL + 2304
L_VEC  = L_WT + 512
L_XQ   = L_VEC + 256
L_XG   = L_XQ + 256
L_RF   = L_XG + 512
L_CNT  = L_RF + 2048
C_Q, C_G, C_X, C_QL, C_HB, C_FO, C_GA, C_B1, C_F1 = [L_CNT + 4*i for i in range(9)]
C_LOC = L_CNT + 36
C_XN, C_K, C_V = L_CNT + 48, L_CNT + 64, L_CNT + 80
L_K    = 12288
L_V    = L_K + 32768
assert L_CNT + 128 <= L_K
LDS_BYTES = L_V + 32768
YF, YL = 16, 30

TAGM = 0x3FF
LOG2E = 1.4426950408889634
SPIN_MAX = 1 << 20

sX, sY, sRB, sHQ, sRBQ, sTL, sG, sCH = 28, 29, 30, 31, 32, 33, 34, 35
sT32, sT10, sSPIN, sTMP = 36, 37, 38, 39
sW = 3
sGATE = 100
sTY, sUP, sR = 97, 98, 99
sP = 48
sSTAMP = 64


class Gen0:
    def __init__(self, stamps=False, prefetch=True, probe=None, abl='', xnpos=11, nrepA=4, nrepB=4, psleep=1,
                 WA=(6, 6, 5), WF=(6, 8, 8), pause='gather', fthr=6, wtest=None, fsleep=16, upx=2, layout='mix', plain='', gmod='sc1', local=False, touch=False, flagpos='end', HA=0, HF=0, vlate=False, kfirst=True, localD=False, earlyD=False, warm=None, warmO=False, qmap='grp', forceloc=False, xt=False, stag=False, wideg=0, widew=False, wideq=0, xsleep=10, fdepth=2, outmod='', gateA=(1, 1), gateF=(0, 0), WAe=None, WFe=None):
        self.gateA, self.gateF = gateA, gateF
        self.WAe, self.WFe = WAe, WFe
        self.local = local
        self.fdepth = fdepth
        self.touch = touch
        self.warm = warm
        self.wideg, self.widew, self.wideq = wideg, widew, wideq
        self.xt, self.stag, self.xsleep = xt, stag, xsleep
        if xt:
            forceloc = True
        self.qmap, self.forceloc = qmap, forceloc
        self.warmO = warmO
        self.localD, self.earlyD = localD, earlyD
        self.kfirst = kfirst
        self.flagpos, self.HA, self.HF, self.vlate = flagpos, HA, HF, vlate
        self.outmod = outmod
        assert not local or layout != 'mix'
        self.gmod = gmod
        self.layout = layout
        self.plain = plain
        self.fsleep = fsleep
        self.upx = upx
        self.wtest = wtest
        self.fthr = fthr
        self.L = []
        self.stamps = stamps
        self.prefetch = prefetch
        self.probe = probe
        self.abl = abl
        self.xnpos = xnpos
        self.nrepA, self.nrepB = nrepA, nrepB
        self.psleep = psleep
        self.relwait = False
        self.WA, self.WF = WA, WF
        self.pause = pause
        self.nlab = 0

    def A(self, s):
        for line in s.strip("\n").split("\n"):
            if line.strip():
                self.L.append("    " + line.strip() if not line.strip().endswith(":") else line.strip())

    def lab(self, p="L"):
        self.nlab += 1
        return f"{p}_{self.nlab}"

    def stamp(self, k):
        if self.stamps == 'lite' and k not in (0, 10, 14):
            return
        if self.stamps or (self.probe and k in (0, self.probe[2])):
            self.A(f"s_memrealtime s[{sSTAMP+2*k}:{sSTAMP+2*k+1}]")

    def mask(self, reg, val):
        lo, hi = val & 0xFFFFFFFF, val >> 32
        self.A(f"s_mov_b32 {reg[0]}, {lo:#x}\ns_mov_b32 {reg[1]}, {hi:#x}")

    def exec_set(self, val):
        if val == -1:
            self.A("s_mov_b64 exec, -1")
        elif val <= 64:
            self.A(f"s_mov_b64 exec, {val}")
        elif val < (1 << 31):
            self.A(f"s_mov_b64 exec, {val:#x}")
        else:
            self.mask(("exec_lo", "exec_hi"), val)

    def arrive(self, cnt, want_old=True, inc=1):
        self.A(f"""
        s_mov_b64 exec, 1
        v_mov_b32 v1, {cnt}
        v_mov_b32 v2, {inc}""")
        if want_old:
            self.A(f"""
            ds_add_rtn_u32 v2, v1, v2
            s_waitcnt lgkmcnt(0)
            v_readfirstlane_b32 s{sTMP}, v2""")
        else:
            self.A("ds_add_u32 v1, v2")
        self.A("s_mov_b64 exec, -1")

    def lds_spin(self, cnt, val, sleep=1, reads="", low8=False):
        l = self.lab("Lspin"); d = self.lab("Lgot")
        self.A(f"""
        v_mov_b32 v1, {cnt}
        s_mov_b32 s{sSPIN}, 0
        {l}:
        ds_read_b32 v2, v1
        {reads}
        s_add_u32 s{sSPIN}, s{sSPIN}, 1
        s_cmp_gt_u32 s{sSPIN}, {SPIN_MAX}
        s_cbranch_scc1 L_end
        s_waitcnt lgkmcnt(0)
        v_readfirstlane_b32 s{sTMP}, v2""")
        if low8:
            self.A(f"s_lshr_b32 s101, s{sTMP}, 8\ns_and_b32 s{sTMP}, s{sTMP}, 0xff")
        if sleep:
            self.A(f"s_cmp_eq_u32 s{sTMP}, {val}\ns_cbranch_scc1 {d}\ns_sleep {sleep}\ns_branch {l}\n{d}:")
        else:
            self.A(f"s_cmp_eq_u32 s{sTMP}, {val}\ns_cbranch_scc0 {l}")

    def flag_poll(self, n, two=False):
        if 'nopoll' in self.abl:
            return
        l = self.lab("Lpoll"); r = self.lab("Lretry"); d = self.lab("Lflag")
        self.A(f"""
        s_mov_b32 s{sSPIN}, 0
        s_mov_b32 s42, s{sT32}
        s_mov_b32 s43, s{sT32}
        s_branch {l}
        {r}:
        s_sleep {self.psleep}
        {l}:
        s_load_dwordx{n} s[{sP}:{sP+n-1}], s[26:27], s40 glc
        {'s_load_dwordx16 s[4:19], s[26:27], s41 glc' if two else ''}
        s_add_u32 s{sSPIN}, s{sSPIN}, 1
        s_cmp_gt_u32 s{sSPIN}, {SPIN_MAX}
        s_cbranch_scc1 L_end
        s_waitcnt lgkmcnt(0)""")
        for b in ((sP, 4) if two else (sP,)):
            for i in range(0, n, 2):
                self.A(f"s_cmp_eq_u64 s[{b+i}:{b+i+1}], s[42:43]\ns_cbranch_scc0 {r}")
        self.A(f"{d}:")

    def gate(self, k, used):
        if k not in used:
            return
        l = self.lab("Lgate")
        self.A(f"s_cmp_eq_u32 s{sGATE}, {k}\ns_cbranch_scc0 {l}")
        self.arrive(C_GA, want_old=False)
        self.A(f"{l}:")

    def early_flag(self, pos):
        if self.flagpos != pos:
            return
        l = self.lab("Lef")
        self.A(f"s_or_b32 s40, s101, s{sW}\ns_cbranch_scc1 {l}\ns_mov_b32 s40, s95")
        self.flag_store(self.nrepB)
        self.A(f"{l}:")

    def flag_store(self, n, vaddr=None, val=sT32):
        self.exec_set((1 << n) - 1)
        self.A(f"""
        {f'v_mul_u32_u24 v1, {REPP}, v0' if vaddr is None else ''}
        v_add_u32 v1, s40, v{1 if vaddr is None else vaddr}
        v_mov_b32 v2, s{val}
        global_store_dword v1, v2, s[26:27] sc1
        s_mov_b64 exec, -1""")

    def tagcheck(self, regs, vacc, vt):
        first = True
        for r in regs:
            if first:
                self.A(f"v_bitop3_b32 v{vacc}, v{r}, v{r+1}, s{sT10} bitop3:0x7e")
                self.A(f"v_bitop3_b32 v{vt}, v{r+2}, v{r+3}, s{sT10} bitop3:0x7e")
                self.A(f"v_or_b32 v{vacc}, v{vacc}, v{vt}")
                first = False
            else:
                self.A(f"v_bitop3_b32 v{vt}, v{r}, v{r+1}, s{sT10} bitop3:0x7e")
                self.A(f"v_bitop3_b32 v{vt+1}, v{r+2}, v{r+3}, s{sT10} bitop3:0x7e")
                self.A(f"v_or3_b32 v{vacc}, v{vacc}, v{vt}, v{vt+1}")

    def tagcheck2(self, regs, vacc, vt):
        out = []
        for i, r in enumerate(regs):
            d = vacc if i == 0 else vt + (i - 1) % 2
            self.A(f"v_bitop3_b32 v{d}, v{r}, v{r+3}, s{sT10} bitop3:0x7e")
            if i and i % 2 == 0:
                self.A(f"v_or3_b32 v{vacc}, v{vacc}, v{vt}, v{vt+1}")
        if len(regs) % 2 == 0:
            self.A(f"v_or_b32 v{vacc}, v{vacc}, v{vt}")

    def untag(self, regs, vacc):
        for i, r in enumerate(regs):
            for k in range(4):
                self.A(f"v_xor_b32 v{r+k}, s{sT10}, v{r+k}")
            if i == 0:
                self.A(f"v_or3_b32 v{vacc}, v{r}, v{r+1}, v{r+2}\nv_or_b32 v{vacc}, v{vacc}, v{r+3}")
            else:
                self.A(f"v_or3_b32 v{vacc}, v{vacc}, v{r}, v{r+1}\nv_or3_b32 v{vacc}, v{vacc}, v{r+2}, v{r+3}")

    def tagtest(self, vacc, retry):
        if 'notag' in self.abl:
            return
        self.A(f"""
        v_and_b32 v{vacc}, {TAGM:#x}, v{vacc}
        v_cmp_ne_u32 vcc, 0, v{vacc}
        {'s_add_u32 s96, s96, 1' if self.stamps else ''}
        s_add_u32 s{sSPIN}, s{sSPIN}, 1
        s_cmp_gt_u32 s{sSPIN}, {SPIN_MAX}
        s_cbranch_scc1 L_end
        s_nop 1
        s_cbranch_vccnz {retry}""")

    def tag(self, r):
        self.A(f"v_bfi_b32 v{r}, s44, v3, v{r}")

    def reduce_scatter_rows(self, a):
        self.A(f"""
        s_nop 1
        v_permlane32_swap_b32 v{a}, v{a+2}
        v_permlane32_swap_b32 v{a+1}, v{a+3}
        v_add_f32 v{a}, v{a}, v{a+2}
        v_add_f32 v{a+1}, v{a+1}, v{a+3}
        s_nop 1
        v_permlane16_swap_b32 v{a}, v{a+1}
        v_add_f32 v{a}, v{a}, v{a+1}""")

    def allreduce_rows(self, a, t, op):
        self.A(f"""
        v_mov_b32 v{t}, v{a}
        s_nop 1
        v_permlane32_swap_b32 v{t}, v{a}
        {op} v{a}, v{a}, v{t}
        v_mov_b32 v{t}, v{a}
        s_nop 1
        v_permlane16_swap_b32 v{t}, v{a}
        {op} v{a}, v{a}, v{t}""")

    def allreduce_in_row(self, a, op="v_add_f32"):
        for m in ("quad_perm:[1,0,3,2]", "quad_perm:[2,3,0,1]", "row_half_mirror", "row_mirror"):
            self.A(f"s_nop 1\n{op}_dpp v{a}, v{a}, v{a} {m} row_mask:0xf bank_mask:0xf")

    def bf16_round(self, d, s):
        self.A(f"v_cvt_pk_bf16_f32 v{d}, v{s}, v{s}\nv_and_b32 v{d}, 0xffff0000, v{d}")

    def build(self):
        A = self.A
        self.L.append(f"; @launch grid=(256,1,1) block=(512,1,1) lds={getattr(self, 'ldsb', None) or LDS_BYTES}")
        self.L.append('.amdgcn_target "amdgcn-amd-amdhsa--gfx950"')
        self.L += [".text", f".globl {KN}", ".p2align 12", ".p2align 8", f".type {KN},@function", f"{KN}:"]
        self.stamp(0)
        A(f"""
        s_cmp_ge_u32 s2, 256
        s_cbranch_scc1 L_end
        s_load_dwordx16 s[4:19], s[0:1], 0
        s_load_dwordx8 s[20:27], s[0:1], 64
        v_lshrrev_b32 v1, 6, v0
        s_and_b32 s{sX}, s2, 7
        s_lshr_b32 s{sY}, s2, 3
        v_readfirstlane_b32 s{sW}, v1""")
        if self.prefetch:
            A(f"""
            s_getpc_b64 s[46:47]
            L_pc:
            s_lshl_b32 s42, s{sY}, 9
            v_add_u32 v1, s42, v0
            v_min_u32 v1, L_codeend-L_pc-4, v1
            s_mov_b64 exec, 1
            global_load_ubyte v55, v1, s[46:47]
            s_mov_b64 exec, -1""")
        A(f"""
        v_and_b32 v0, 63, v0
""")
        if self.layout == 'mix':
            A(f"""
            s_lshr_b32 s{sHQ}, s{sY}, 3
            s_lshl2_add_u32 s{sHQ}, s{sX}, s{sHQ}
            s_and_b32 s{sRBQ}, s{sY}, 7
            s_lshr_b32 s{sG}, s{sX}, 1
            s_and_b32 s{sCH}, s{sX}, 1
            s_lshl4_add_u32 s{sCH}, s{sCH}, s{sY}
            s_lshl4_add_u32 s40, s{sX}, s{sY}
            s_mul_i32 s41, s{sX}, 14
            s_add_u32 s41, s41, s{sY}
            s_sub_u32 s41, s41, {YF}
            s_cmp_lt_u32 s{sY}, {YF}
            s_cselect_b32 s40, s40, s41
            s_cselect_b32 s{sTY}, 0, 1
            s_cmp_ge_u32 s{sY}, {YL}
            s_addc_u32 s{sTY}, s{sTY}, 0
            s_lshr_b32 s{sTL}, s40, 2
            s_and_b32 s{sRB}, s40, 3
            s_xor_b32 s{sUP}, s{sTL}, {self.upx}
            s_lshl1_add_u32 s{sR}, s{sX}, s{sY}
            s_sub_u32 s{sR}, s{sR}, {YL}""")
        else:
            if self.layout == 'odd':
                A(f"s_lshr_b32 s{sG}, s{sX}, 1\ns_and_b32 s{sTY}, s{sX}, 1\ns_xor_b32 s{sTY}, s{sTY}, 1")
            else:
                A(f"s_and_b32 s{sG}, s{sX}, 3\ns_lshr_b32 s{sTY}, s{sX}, 2")
                if self.layout == 'hi':
                    A(f"s_xor_b32 s{sTY}, s{sTY}, 1")
            A(f"""
            s_mov_b32 s{sCH}, s{sY}
            s_and_b32 s{sRB}, s{sY}, 3
            s_lshr_b32 s40, s{sY}, 2
            s_lshl3_add_u32 s{sHQ}, s{sG}, s40
            s_lshl2_add_u32 s{sRBQ}, s{sTY}, s{sRB}
            s_mul_i32 s41, s{sG}, s{sTY}
            s_sub_u32 s{sTL}, s{sHQ}, s41
            s_add_u32 s{sUP}, s40, {self.upx}
            s_cmp_ge_u32 s{sUP}, 7
            s_cselect_b32 s41, 7, 0
            s_sub_u32 s{sUP}, s{sUP}, s41
            s_sub_u32 s{sUP}, s{sUP}, s40
            s_add_u32 s{sUP}, s{sUP}, s{sTL}
            s_lshl2_add_u32 s{sR}, s{sG}, s{sRB}
            s_cmp_eq_u32 s40, 7
            s_cselect_b32 s41, s{sTY}, 0
            s_add_u32 s{sTY}, s{sTY}, s41""")
        A(f"""
        {f's_mov_b32 s{sHQ}, s{sY}' if self.qmap == 'rows' else ''}
        {f's_mov_b32 s{sRBQ}, s{sX}' if self.qmap == 'rows' else ''}
        s_cmp_lt_u32 s{sX}, 2
        s_cselect_b32 s40, {self.gateA[0]}, {self.gateA[1]}
        s_cselect_b32 s41, {self.gateF[0]}, {self.gateF[1]}
        s_cmp_eq_u32 s{sTY}, 0
        s_cselect_b32 s{sGATE}, s40, s41
        s_movk_i32 s44, {TAGM:#x}
        v_and_b32 v4, 15, v0
        v_lshrrev_b32 v5, 4, v0""")
        if self.stamps or self.probe:
            A(f"s_mov_b32 s96, 0\ns_mov_b32 s94, s{sW}")
        if self.probe:
            A(f"s_waitcnt lgkmcnt(0)\ns_mov_b32 s{sSTAMP+2*self.probe[2]}, s{sSTAMP}")
        A(f"""
        s_cmp_lt_u32 s{sW}, 4
        s_cbranch_scc1 L_awave""")
        L0 = self.L
        self.L = []
        self.swave()
        cut = self.L.index("L_sdispatch:")
        shead, stail = self.L[:cut], self.L[cut:]
        self.L = L0 + shead
        A("s_branch L_sdispatch\nL_awave:")
        self.awave()
        self.L += stail
        self.final()
        A("L_end:")
        A("s_endpgm")
        self.L.append("L_codeend:")
        nv = getattr(self, 'nvo', None) or 200
        self.L += ['.section .rodata,"a"', ".p2align 6", f".amdhsa_kernel {KN}",
                   f"  .amdhsa_next_free_vgpr {nv}", "  .amdhsa_next_free_sgpr 102", f"  .amdhsa_accum_offset {nv}",
                   "  .amdhsa_group_segment_fixed_size 0", "  .amdhsa_kernarg_size 96", "  .amdhsa_user_sgpr_count 2",
                   "  .amdhsa_user_sgpr_kernarg_segment_ptr 1", "  .amdhsa_system_sgpr_workgroup_id_x 1",
                   "  .amdhsa_float_denorm_mode_32 3", ".end_amdhsa_kernel"]
        return "\n".join(self.L) + "\n"

    def write_stamps(self, n):
        if self.probe:
            wg, wave, k = self.probe[:3]
            ty = self.probe[3] if len(self.probe) > 3 else None
            self.stamp(n)
            d = self.lab("Lprobe_done"); l = self.lab("Lprobe")
            self.A(f"""
            s_waitcnt lgkmcnt(0)
            s_getreg_b32 s41, hwreg(HW_REG_XCC_ID, 0, 4)
            {f's_cmp_eq_u32 s41, {-wg-100}' if wg <= -100 else f"s_cmp_eq_u32 s2, {wg if wg >= 0 else 's2'}"}
            s_cbranch_scc0 {d}
            s_cmp_eq_u32 s94, {wave}
            s_cbranch_scc0 {d}
            s_cmp_eq_u32 s{sTY}, {ty if ty is not None else f's{sTY}'}
            s_cbranch_scc0 {d}
            s_add_u32 s40, s{sSTAMP+2*k}, 4000
            {l}:
            s_memrealtime s[42:43]
            s_waitcnt lgkmcnt(0)
            s_sub_u32 s41, s42, s40
            s_cmp_lt_i32 s41, 0
            s_cbranch_scc1 {l}
            {d}:""")
            return
        if not self.stamps:
            return
        self.stamp(n)
        A = self.A
        A(f"""
        s_waitcnt lgkmcnt(0)
        s_mov_b64 exec, -1
        s_lshl3_add_u32 s40, s2, s94
        s_lshl_b32 s40, s40, 6
        s_add_u32 s40, s40, {WS_ST:#x}
        v_mov_b32 v1, 0""")
        for k in range(n + 1):
            A(f"v_writelane_b32 v1, s{sSTAMP+2*k}, {k}")
        A(f"""
        s_getreg_b32 s41, hwreg(HW_REG_XCC_ID)
        s_and_b32 s41, s41, 0xf
        s_lshl4_add_u32 s41, s96, s41
        v_writelane_b32 v1, s41, 15
        v_lshl_add_u32 v2, v0, 2, s40
        s_mov_b64 exec, 0xffff
        global_store_dword v2, v1, s[26:27]""")

    def swave(self):
        A = self.A
        vI, vJ = 4, 5
        vAq, vA1, vA2, vA3, vAw, vRed, vPub = 6, 7, 8, 9, 10, 11, 14
        vPS, vXQ, vXG, vSEL, aQ, aG, aU, vT = 16, 24, 28, 36, 40, 44, 48, 52
        RING, BIG = 56, 120
        A(f"""
        L_swave:
        s_sub_u32 s{sW}, s{sW}, 4
        s_lshl2_add_u32 s40, s{sRBQ}, s{sW}
        s_lshl_b32 s40, s40, 18
        s_lshl_b32 s41, s{sHQ}, 8
        s_add_u32 s40, s40, s41
        v_lshlrev_b32 v13, 4, v{vI}
        v_lshl_add_u32 v{vAq}, v{vJ}, 13, v13
        v_add_u32 v{vAq}, s40, v{vAq}
        s_mov_b32 s45, 0x8000""")
        if self.wideq:
            A(f"""
            s_lshl2_add_u32 s40, s2, s{sW}
            s_lshl_b32 s40, s40, 13
            v_lshl_add_u32 v{vAq}, v0, 4, s40
            s_movk_i32 s45, 0x400""")
        A("s_waitcnt lgkmcnt(0)")
        for m in range(8):
            A(f"global_load_dwordx4 v[{RING+4*m}:{RING+4*m+3}], v{vAq}, s[10:11] nt")
            if m < 7:
                A(f"v_add_u32 v{vAq}, s45, v{vAq}")
        A(f"s_load_dword s{sT32}, s[26:27], {WS_E}")
        self.stamp(1)
        A(f"""
        ; wo / down: rows tile*128 + 8*m + (l>>3), columns cb*256 + sw*64 + 8*(l&7)
        v_lshrrev_b32 v12, 3, v0
        v_and_b32 v1, 7, v0
        v_lshlrev_b32 v2, 4, v1
        v_lshl_add_u32 v{vAw}, v12, 11, v2
        s_lshl2_add_u32 s42, s{sRB}, s{sW}
        s_lshl_b32 s40, s42, 7
        s_lshl_b32 s41, s{sTL}, 18
        s_add_u32 s40, s40, s41
        v_add_u32 v{vAw}, s40, v{vAw}
        s_movk_i32 s45, 0x4000""")
        if self.widew:
            A(f"""
            s_lshl_b32 s40, s{sW}, 16
            s_add_u32 s41, s41, s40
            s_lshl_b32 s40, s{sRB}, 9
            s_add_u32 s41, s41, s40
            v_lshrrev_b32 v2, 5, v0
            v_lshlrev_b32 v2, 11, v2
            v_and_b32 v{vAw}, 31, v0
            v_lshl_add_u32 v{vAw}, v{vAw}, 4, v2
            v_add_u32 v{vAw}, s41, v{vAw}
            s_movk_i32 s45, 0x1000""")
        A(f"""
        v_lshl_add_u32 v1, v1, 1, v{vJ}
        s_lshl_b32 s40, s42, 8
        v_lshl_add_u32 v{vPub}, v1, 4, s40
        ; LDS offset of this lane's partial granule: (2*(l&15) + J)*16
        v_lshl_add_u32 v{vRed}, v{vI}, 1, v{vJ}
        v_lshlrev_b32 v{vRed}, 4, v{vRed}
        s_mov_b32 s40, 0xaaaaaaaa
        s_mov_b32 s41, 0xaaaaaaaa
        v_mov_b32 v1, 0x0c0c0100
        v_mov_b32 v2, 0x01000c0c
        v_cndmask_b32 v1, v1, v2, s[40:41]
        v_mov_b32 v2, 0x0c0c0302
        v_mov_b32 v3, 0x03020c0c
        v_cndmask_b32 v2, v2, v3, s[40:41]
        v_mov_b32 v3, 0x0c0c0c0c""")
        for d in range(4):
            m = 0x03030303 << (2*d)
            A(f"""
            s_mov_b32 s40, {m:#x}
            s_mov_b32 s41, {m:#x}
            v_cndmask_b32 v{vPS+d}, v3, v1, s[40:41]
            v_cndmask_b32 v{vPS+4+d}, v3, v2, s[40:41]""")
        A(f"""
        s_barrier
        s_waitcnt lgkmcnt(0)
        s_add_u32 s{sT32}, s{sT32}, 1
        s_and_b32 s{sT10}, s{sT32}, s44
        v_mov_b32 v3, s{sT10}
        s_cmp_ge_u32 s{sTY}, 1
        s_cbranch_scc1 L_s_notattn
        L_sdispatch:""")

        def sel(m, dst, src):
            for d in range(4):
                A(f"v_perm_b32 v{dst+d}, v{src+(m>>1)}, v{src+(m>>1)}, v{vPS+4*(m&1)+d}")

        def mfma(acc, s, w, first):
            c = "0" if first else f"v[{acc}:{acc+3}]"
            A(f"v_mfma_f32_16x16x32_bf16 v[{acc}:{acc+3}], v[{s}:{s+3}], v[{w}:{w+3}], {c}")

        def get_xn(ffn):
            A(f"s_lshl_b32 s41, s{sW}, 2\ns_add_u32 s41, s41, {C_XN}")
            self.lds_spin("s41", 1, sleep=0)
            A(f"""
            s_lshl_b32 s40, s{sW}, 6
            v_lshl_add_u32 v2, v{vJ}, 4, s40
            ds_read_b128 v[{vXQ}:{vXQ+3}], v2 offset:{L_XQ}""")
            if ffn:
                A(f"""
                v_lshlrev_b32 v2, 1, v2
                ds_read_b128 v[{vXG}:{vXG+3}], v2 offset:{L_XG}
                ds_read_b128 v[{vXG+4}:{vXG+7}], v2 offset:{L_XG+16}""")
            A("s_waitcnt lgkmcnt(0)")
            self.stamp(3)
            sel(0, vSEL, vXQ)
            A("s_nop 1")

        def red_write(accs, lbase, shift, cnt):
            A(f"s_lshl_b32 s40, s{sW}, {shift}\nv_add_u32 v1, s40, v{vRed}\ns_mov_b32 exec_hi, 0")
            for i, a in enumerate(accs):
                A(f"ds_write_b128 v1, v[{a}:{a+3}] offset:{lbase + 512*i}")
            self.arrive(cnt, want_old=False)

        def kvflag(c):
            A(f"""
            s_lshl_b32 s40, s{sW}, 2
            s_mov_b64 exec, 1
            v_mov_b32 v1, s40
            v_mov_b32 v2, 1
            ds_write_b32 v1, v2 offset:{c}
            s_mov_b64 exec, -1""")

        def issue(op, i):
            kind, m = op
            slot = RING + 4*(i % 16)
            if kind in "kv":
                va, sb, x = (vA1, 6, 64*(m & 3)) if kind == "k" else (vA2, 8, 128*(m & 1))
                if m % 4 == 0:
                    if i > 8:
                        A(f"s_add_u32 s47, s47, {4096 if m == 4 else L_V - L_K - 4096}")
                    A("s_mov_b32 m0, s47")
                    if m == 4:
                        A(f"v_add_u32 v{va}, 4096, v{va}")
                A(f"v_xor_b32 v1, {x}, v{va}")
                A(f"global_load_lds_dwordx4 v1, s[{sb}:{sb+1}] offset:{1024*(m&3)} nt")
            elif kind in "gu":
                va, sb = (vA1, 16) if kind == "g" else (vA2, 18)
                A(f"global_load_dwordx4 v[{slot}:{slot+3}], v{va}, s[{sb}:{sb+1}] nt")
                if m < 15:
                    A(f"v_add_u32 v{va}, s{47 if (self.stag and m % 2) else 46}, v{va}")
            elif kind in "do":
                sb = 20 if kind == "d" else 12
                A(f"global_load_dwordx4 v[{BIG+4*m}:{BIG+4*m+3}], v{vAw}, s[{sb}:{sb+1}] nt")
                if m < 15:
                    A(f"v_add_u32 v{vAw}, s45, v{vAw}")

        def process(op, i, ffn):
            kind, m = op
            slot = RING + 4*(i % 16)
            if kind == "q":
                mfma(aQ, vSEL, slot, m == 0)
                if m < 7:
                    sel(m + 1, vSEL, vXQ)
                    A("s_nop 1")
                else:
                    if ffn:
                        sel(0, vSEL, vXG)
                        A("s_nop 0")
                    else:
                        A("s_nop 4")
                    red_write([aQ], L_RQ, 9, C_Q)
                    self.stamp(4)
            elif kind in "kv" and m == 7:
                l = self.lab("Lkvf")
                if self.after_pause:
                    A(f"s_cmp_lg_u32 s43, 0\ns_cbranch_scc1 {l}")
                kvflag(C_K if kind == "k" else C_V)
                if kind == "v":
                    self.stamp(5)
                A(f"{l}:")
            elif kind == "g":
                mfma(aG, vSEL, slot, m == 0)
            elif kind == "u":
                mfma(aU, vSEL, slot, m == 0)
                if m < 15:
                    sel(m + 1, vSEL, vXG)
                    A("s_nop 1")
                else:
                    A("s_nop 4")
                    red_write([aG, aU], L_RG, 10, C_G)
                    self.stamp(6)

        def stream(ops, wfun, ffn, start=8, landed=0, hold=0, holdcnt=0):
            if 'noa' in self.abl or 'nofin' in self.abl:
                hold = 0
            for i in range(start, len(ops)):
                w = wfun(i)
                if hold and i == len(ops) - hold:
                    assert landed >= start
                    self.lds_spin(C_HB, holdcnt, sleep=1)
                if hold and i >= len(ops) - hold:
                    w = max(w, hold)
                A(f"s_waitcnt vmcnt({w-1})")
                issue(ops[i], i)
                if i < self.xnpos:
                    continue
                if i == self.xnpos:
                    get_xn(ffn)
                while landed <= i - w:
                    process(ops[landed], landed, ffn); landed += 1
            return landed

        def drain(ops, landed, upto, ffn):
            n = len(ops)
            while landed < upto:
                if ops[landed][0] in "qgu":
                    A(f"s_waitcnt vmcnt({n - 1 - landed})")
                    process(ops[landed], landed, ffn)
                landed += 1
            return landed

        def final_gemv(val, first, nops, landed, wsb):
            A(f"""
            v_lshlrev_b32 v15, 5, v12
            s_mul_i32 s40, s{sTL}, {ROWP}
            s_add_u32 s40, s40, {wsb:#x}
            v_add_u32 v{vPub}, s40, v{vPub}""")
            rd = f"ds_read_b128 v[{vXG}:{vXG+3}], v15 offset:{L_VEC}\nds_read_b128 v[{vXG+4}:{vXG+7}], v15 offset:{L_VEC+16}"
            if 'noa' not in self.abl and 'nofin' not in self.abl:
                self.lds_spin(C_FO, val, sleep=0, reads=rd)
            else:
                A(rd + "\ns_waitcnt lgkmcnt(0)")
            self.stamp(8)
            self.L.append(".p2align 3")
            late = [m for m in range(16) if first + m >= landed]
            early = [m for m in range(16) if first + m < landed]
            for k, m in enumerate(early):
                sel(m, RING + 4*m, vXG)
                if k:
                    mfma(aQ, RING + 4*early[k-1], BIG + 4*early[k-1], k == 1)
            for k, m in enumerate(late):
                sel(m, RING + 4*m, vXG)
                if k == 0 and early:
                    mfma(aQ, RING + 4*early[-1], BIG + 4*early[-1], len(early) == 1)
            self.stamp(9)
            for k, m in enumerate(late):
                A(f"s_waitcnt vmcnt({nops - 1 - (first + m)})")
                mfma(aQ, RING + 4*m, BIG + 4*m, k == 0 and not early)
            g = vT
            A(f"""
            s_nop 7
            v_permlane32_swap_b32 v{aQ}, v{aQ+2}
            v_permlane32_swap_b32 v{aQ+1}, v{aQ+3}
            s_nop 0
            v_add_f32_dpp v{g}, v{aQ+2}, v{aQ} row_shl:8 row_mask:0xf bank_mask:0xf bound_ctrl:1
            v_add_f32_dpp v{g+1}, v{aQ+3}, v{aQ+1} row_shl:8 row_mask:0xf bank_mask:0xf bound_ctrl:1""")
            self.tag(g); self.tag(g + 1)
            A(f"""
            s_nop 0
            v_permlane32_swap_b32 v{g}, v{g+2}
            v_permlane32_swap_b32 v{g+1}, v{g+3}
            s_mov_b64 exec, 0x00ff00ff
            global_store_dwordx4 v{vPub}, v[{g}:{g+3}], s[26:27] sc1
            s_mov_b64 exec, -1""")

        qops = [("q", m) for m in range(8)]
        A(f"""
        s_lshl_b32 s40, s{sG}, 24
        s_lshl_b32 s41, s{sCH}, 15
        s_add_u32 s40, s40, s41
        s_lshl_b32 s47, s{sW}, 13
        s_add_u32 s40, s40, s47
        s_add_u32 s47, s47, {L_K}
        s_add_u32 s40, s40, {(65536-4096)*256:#x}
        v_xor_b32 v1, v{vI}, v{vJ}
        v_lshlrev_b32 v1, 4, v1
        v_lshl_add_u32 v1, v{vJ}, 8, v1
        v_add_u32 v{vA1}, s40, v1
        v_lshlrev_b32 v1, 1, v{vJ}
        v_xor_b32 v1, v{vI}, v1
        v_lshlrev_b32 v1, 4, v1
        v_lshl_add_u32 v1, v{vJ}, 8, v1
        v_add_u32 v{vA2}, s40, v1""")
        ops = qops + [("k", m) for m in range(8)] + [("v", m) for m in range(8)]
        WA = self.WA
        self.after_pause = False
        landed = stream(ops, lambda i: WA[0] if i < 14 else WA[1], False)
        self.after_pause = True
        A("s_mov_b32 s43, 0")
        if self.pause and 'noa' not in self.abl:
            go = self.lab("Lgo")
            if 0 in self.gateA:
                A(f"s_cmp_eq_u32 s{sGATE}, 0\ns_cbranch_scc1 {go}")
            A(f"""
            v_mov_b32 v1, {C_GA}
            ds_read_b32 v2, v1
            s_waitcnt lgkmcnt(0)
            v_readfirstlane_b32 s{sTMP}, v2
            s_cmp_eq_u32 s{sTMP}, 4
            s_cbranch_scc1 {go}
            s_waitcnt vmcnt(0)
            s_mov_b32 s43, 1""")
            assert landed >= 8
            if landed < 16:
                kvflag(C_K)
            kvflag(C_V)
            self.stamp(5)
            self.lds_spin(C_GA, 4, sleep=1)
            A(f"{go}:")
            self.stamp(6)
        ops = ops + [("o", m) for m in range(16)]
        for w3 in ([self.WAe, WA[2]] if self.WAe else [WA[2]]):
            nxt = self.lab("Lsa")
            if self.WAe and w3 == self.WAe:
                A(f"s_cmp_lt_u32 s{sX}, 2\ns_cbranch_scc0 {nxt}")
            l2 = stream(ops, lambda i: w3 if (i < 32 or len(WA) < 4) else WA[3], False, start=24, landed=landed, hold=self.HA, holdcnt=4)
            assert l2 >= 24
            self.stamp(7)
            final_gemv(4, 24, 40, l2, WS_BS)
            self.write_stamps(10)
            A(f"s_endpgm\n{nxt}:")
        A(f"""
        L_s_notattn:
        s_cmp_ge_u32 s{sTY}, 2
        s_cbranch_scc1 L_s_last
        s_lshl2_add_u32 s40, s{sRB}, s{sW}
        s_mul_i32 s40, s40, {64*7168}""")
        if self.stag:
            A(f"""
            s_and_b32 s41, s{sW}, 1
            s_mul_i32 s42, s41, {4*7168}
            s_add_u32 s40, s40, s42""")
        A(f"""
        v_mul_u32_u24 v1, 7168, v{vJ}
        v_add3_u32 v1, v1, v13, s40
        s_lshl_b32 s41, s{sTL}, 8
        v_add_u32 v{vA1}, s41, v1
        s_lshl_b32 s41, s{sUP}, 8
        v_add_u32 v{vA2}, s41, v1
        s_movk_i32 s46, {7168*4}""")
        if self.stag:
            A("s_lshl_b32 s42, s42, 1\ns_add_u32 s47, s46, s42\ns_sub_u32 s46, s46, s42")
        if self.wideg:
            wd = self.wideg; nt = 7168 // wd; rpi = 1024 // wd; lpr = wd // 16
            import math
            A(f"""
            s_lshl2_add_u32 s40, s{sTL}, s{sRB}
            s_mul_hi_u32 s41, s40, {-(-(1 << 32) // nt)}
            s_mul_i32 s42, s41, {nt}
            s_sub_u32 s42, s40, s42
            s_lshl2_add_u32 s41, s41, s{sW}
            s_mul_i32 s41, s41, {16*rpi*7168}
            s_mul_i32 s42, s42, {wd}
            s_add_u32 s41, s41, s42
            v_lshrrev_b32 v1, {int(math.log2(lpr))}, v0
            v_mul_u32_u24 v1, 7168, v1
            v_and_b32 v2, {lpr-1}, v0
            v_lshl_add_u32 v1, v2, 4, v1
            v_add_u32 v{vA1}, s41, v1
            v_mov_b32 v{vA2}, v{vA1}
            s_movk_i32 s46, {7168*rpi}""")
        ops = qops + [(k, m) for m in range(16) for k in "gu"] + [("d", m) for m in range(16)]
        WF = self.WF
        landed = stream(ops[:40], lambda i: WF[0] if i < 14 else WF[1], True)
        gated = self.lab("Lsfg")
        if any(self.gateF) and 'noa' not in self.abl:
            A(f"s_cmp_lg_u32 s{sGATE}, 0\ns_cbranch_scc1 {gated}")
        if 0 in self.gateF or 'noa' in self.abl:
            l2 = stream(ops, lambda i: WF[2] if (i < 48 or len(WF) < 4) else WF[3], True, start=40, landed=landed, hold=self.HF, holdcnt=1)
            assert l2 >= 40
            self.stamp(7)
            final_gemv(1, 40, 56, l2, WS_BF)
            self.write_stamps(10)
            A("s_endpgm")
        if any(self.gateF) and 'noa' not in self.abl:
            A(f"{gated}:")
            l2 = drain(ops[:40], landed, 40, True)
            self.lds_spin(C_GA, 1, sleep=1)
            l2 = stream(ops, lambda i: self.WFe or WF[2], True, start=40, landed=l2)
            self.stamp(7)
            final_gemv(1, 40, 56, l2, WS_BF)
            self.write_stamps(10)
            A("s_endpgm")
        A("L_s_last:")
        get_xn(False)
        drain(qops, 0, 8, False)
        A(f"s_add_u32 s{sW}, s{sW}, 4\ns_branch L_final")

    def red_publish(self, lbase, pitch, cnt, nl, addr_code, nrep, flagv=None, sleep=1, val=sT32, local=False):
        A = self.A
        t = 16
        A("v_lshlrev_b32 v10, 4, v0")
        A(addr_code)
        if local and self.warm is not None:
            self.exec_set(0x0101010101010101)
            A(f"global_load_dword v54, v11, s[26:27] {self.warm}\ns_mov_b64 exec, -1")
        self.lds_spin(cnt, 4, sleep=sleep, reads="\n".join(f"ds_read_b128 v[{t+4*k}:{t+4*k+3}], v10 offset:{lbase+pitch*k}" for k in range(4)))
        if local and self.earlyD:
            l = self.lab("Lef")
            A(f"s_cmp_lg_u32 s101, 0\ns_cbranch_scc1 {l}")
            self.flag_store(nrep, flagv, val)
            A(f"{l}:")
        if nl == 32:
            A("s_mov_b32 exec_hi, 0")
        for h in (0, 2):
            A(f"v_pk_add_f32 v[{t+h}:{t+h+1}], v[{t+h}:{t+h+1}], v[{t+4+h}:{t+5+h}]")
            A(f"v_pk_add_f32 v[{t+8+h}:{t+9+h}], v[{t+8+h}:{t+9+h}], v[{t+12+h}:{t+13+h}]")
        for h in (0, 2):
            A(f"v_pk_add_f32 v[{t+h}:{t+h+1}], v[{t+h}:{t+h+1}], v[{t+8+h}:{t+9+h}]")
        for r in range(4):
            A(f"v_add_u32 v{t+r}, {(TAGM + 1) // 2:#x}, v{t+r}")
        for r in range(4):
            self.tag(t + r)
        if local:
            rem = self.lab("Lremote"); fl = self.lab("Lpub")
            A(f"""
            s_cmp_lg_u32 s101, 0
            s_cbranch_scc1 {rem}
            global_store_dwordx4 v11, v[{t}:{t+3}], s[26:27]
            s_branch {fl if not self.earlyD else fl + '_done'}
            {rem}:
            global_store_dwordx4 v11, v[{t}:{t+3}], s[26:27] sc1
            {fl}:""")
            self.flag_store(nrep, flagv, val)
            A(f"{fl}_done:")
        else:
            A(f"global_store_dwordx4 v11, v[{t}:{t+3}], s[26:27] sc1")
            self.flag_store(nrep, flagv, val)

    def awave(self):
        A = self.A
        vKF, vVF, vGT, vU = 56, 184, 216, 232
        vQF, vS = 216, 16
        vI, vJ = 4, 5
        vA0, vA1 = 6, 7
        vT = 16
        x0, xr = 56, 72
        A(f"""
        s_setprio 3
        s_lshl2_add_u32 s40, s{sRB}, s{sW}
        s_lshl_b32 s40, s40, 6
        v_lshlrev_b32 v14, 5, v0
        v_add_lshl_u32 v1, v0, s40, 1
        s_lshl2_add_u32 s40, s{sRBQ}, s{sW}
        s_lshl_b32 s40, s40, 5
        v_and_b32 v15, 31, v0
        v_add_lshl_u32 v15, v15, s40, 1
        v_mov_b32 v10, 0
        v_and_b32 v2, 31, v0
        v_lshlrev_b32 v2, 2, v2
        ds_write_b32 v2, v10 offset:{L_CNT}
        s_waitcnt lgkmcnt(0)
        global_load_dwordx4 v[{xr}:{xr+3}], v14, s[4:5]
        global_load_dwordx4 v[{xr+4}:{xr+7}], v14, s[4:5] offset:16
        global_load_ushort v{xr+8}, v15, s[4:5]
        global_load_ushort v{xr+9}, v1, s[4:5]
        s_load_dword s{sT32}, s[26:27], {WS_E}""")
        if self.touch:
            tf = self.lab("Ltf"); td = self.lab("Ltd")
            A(f"""
            s_cmp_eq_u32 s{sW}, 0
            s_cbranch_scc0 {td}
            s_lshl_b32 s41, s{sTL}, 18
            s_cmp_eq_u32 s{sTY}, 0
            s_cbranch_scc0 {tf}
            s_lshl_b32 s40, s{sG}, 24
            s_add_u32 s40, s40, {(65536-4096)*256:#x}
            s_load_dword s48, s[6:7], s40
            s_load_dword s49, s[8:9], s40
            s_load_dword s50, s[12:13], s41
            s_branch {td}
            {tf}:
            s_load_dword s48, s[22:23], 0
            s_cmp_eq_u32 s{sTY}, 1
            s_cbranch_scc0 {td}
            s_mul_i32 s40, s{sRB}, {256*7168}
            s_add_u32 s42, s40, {255*7168}
            s_load_dword s49, s[16:17], s40
            s_load_dword s50, s[18:19], s40
            s_load_dword s51, s[16:17], s42
            s_load_dword s52, s[18:19], s42
            s_load_dword s53, s[20:21], s41
            {td}:""")
        A("s_barrier")
        self.stamp(1)
        if self.xt:
            nx = self.lab("Lnoxt")
            A(f"""
            s_waitcnt lgkmcnt(0)
            s_or_b32 s40, s{sW}, s{sTY}
            s_cbranch_scc1 {nx}
            s_getreg_b32 s45, hwreg(HW_REG_XCC_ID, 0, 4)
            s_lshl_b32 s45, s45, 28
            s_add_u32 s41, s{sT32}, 1
            s_xor_b32 s45, s45, s41
            s_lshl_b32 s95, s{sG}, 7
            s_add_u32 s95, s95, {WS_XA:#x}
            s_lshl2_add_u32 s41, s{sY}, s95
            s_mov_b64 exec, 1
            v_mov_b32 v1, s41
            v_mov_b32 v2, s45
            global_store_dword v1, v2, s[26:27] sc1
            s_mov_b64 exec, -1
            s_waitcnt vmcnt(1)
            s_branch {nx}_ln
            {nx}:
            s_waitcnt vmcnt(0)
            {nx}_ln:""")
        else:
            A(f"s_waitcnt vmcnt(0) lgkmcnt(0)")
        self.stamp(11)
        for i in range(8):
            A(f"v_lshlrev_b32 v{x0+2*i}, 16, v{xr+i}\nv_and_b32 v{x0+2*i+1}, 0xffff0000, v{xr+i}")
        A(f"v_pk_add_f32 v[{vT}:{vT+1}], v[{x0}:{x0+1}], v[{x0+2}:{x0+3}]")
        A(f"v_pk_add_f32 v[{vT+2}:{vT+3}], v[{x0+4}:{x0+5}], v[{x0+6}:{x0+7}]")
        for i in range(4, 8, 2):
            A(f"v_pk_add_f32 v[{vT}:{vT+1}], v[{vT}:{vT+1}], v[{x0+2*i}:{x0+2*i+1}]")
            A(f"v_pk_add_f32 v[{vT+2}:{vT+3}], v[{vT+2}:{vT+3}], v[{x0+2*i+2}:{x0+2*i+3}]")
        A(f"v_pk_add_f32 v[{vT}:{vT+1}], v[{vT}:{vT+1}], v[{vT+2}:{vT+3}]")
        A(f"v_add_f32 v{vT}, v{vT}, v{vT+1}")
        self.allreduce_in_row(vT)
        self.allreduce_rows(vT, vT+1, "v_add_f32")
        A(f"v_mul_f32 v{vT}, {f2u(1.0/1024):#x}, v{vT}")
        for i in range(8):
            A(f"v_pk_add_f32 v[{x0+2*i}:{x0+2*i+1}], v[{x0+2*i}:{x0+2*i+1}], v[{vT}:{vT+1}] op_sel_hi:[1,0] neg_lo:[0,1] neg_hi:[0,1]")
        A(f"v_pk_mul_f32 v[{vT+2}:{vT+3}], v[{x0}:{x0+1}], v[{x0}:{x0+1}]")
        A(f"v_pk_mul_f32 v[{vT+4}:{vT+5}], v[{x0+2}:{x0+3}], v[{x0+2}:{x0+3}]")
        for i in range(2, 8):
            d = vT + 2 + 2*(i & 1)
            A(f"v_pk_fma_f32 v[{d}:{d+1}], v[{x0+2*i}:{x0+2*i+1}], v[{x0+2*i}:{x0+2*i+1}], v[{d}:{d+1}]")
        A(f"v_pk_add_f32 v[{vT+2}:{vT+3}], v[{vT+2}:{vT+3}], v[{vT+4}:{vT+5}]")
        A(f"v_add_f32 v{vT+2}, v{vT+2}, v{vT+3}")
        r = xr + 8
        self.bf16_round(vT, vT)
        self.allreduce_in_row(vT+2)
        A(f"""
        v_lshlrev_b32 v{r}, 16, v{r}
        v_lshlrev_b32 v{r+1}, 16, v{r+1}
        v_pk_add_f32 v[{r}:{r+1}], v[{r}:{r+1}], v[{vT}:{vT+1}] op_sel_hi:[1,0] neg_lo:[0,1] neg_hi:[0,1]""")
        self.allreduce_rows(vT+2, vT+3, "v_add_f32")
        A(f"v_mul_f32 v{vT+2}, {f2u(1.0/1024):#x}, v{vT+2}")
        self.bf16_round(vT+2, vT+2)
        A(f"v_add_f32 v{vT+2}, {f2u(1e-5):#x}, v{vT+2}")
        self.bf16_round(vT+2, vT+2)
        A(f"""
        v_sqrt_f32 v{vT+2}, v{vT+2}
        v_cvt_pk_bf16_f32 v{r+1}, v{r}, v{r+1}
        v_lshlrev_b32 v{r}, 16, v{r+1}
        v_and_b32 v{r+1}, 0xffff0000, v{r+1}""")
        self.bf16_round(vT+2, vT+2)
        A(f"""
        v_rcp_f32 v{vT+2}, v{vT+2}
        v_and_b32 v1, 3, v0
        v_lshrrev_b32 v2, 2, v0
        v_lshlrev_b32 v2, 1, v2
        v_pk_mul_f32 v[{r}:{r+1}], v[{r}:{r+1}], v[{vT+2}:{vT+3}] op_sel_hi:[1,0]
        s_lshl_b32 s40, s{sW}, 6
        v_lshl_add_u32 v10, v1, 4, s40
        v_lshl_add_u32 v11, v10, 1, v2
        v_add_u32 v10, v10, v2""")
        if self.stag:
            A(f"s_and_b32 s41, s{sW}, 1\ns_lshl_b32 s41, s41, 1\nv_xor_b32 v11, s41, v11")
        A(f"""
        v_cvt_pk_bf16_f32 v{r}, v{r}, v{r+1}
        s_lshl_b32 s40, s{sW}, 2
        v_mov_b32 v2, s40
        v_mov_b32 v1, 1
        ds_write_b16_d16_hi v11, v{r} offset:{L_XG}
        s_mov_b32 exec_hi, 0
        ds_write_b16 v10, v{r} offset:{L_XQ}
        s_mov_b64 exec, 1
        ds_write_b32 v2, v1 offset:{C_XN}
        s_mov_b64 exec, -1
        s_add_u32 s{sT32}, s{sT32}, 1
        s_and_b32 s{sT10}, s{sT32}, s44
        v_mov_b32 v3, s{sT10}""")
        self.stamp(12)
        if self.wtest:
            pre, mod, n = self.wtest
            A(f"s_cmp_eq_u32 s{sW}, 3\ns_cbranch_scc0 L_adone")
            A(f"s_mul_i32 s42, s2, {n*1024}\ns_add_u32 s42, s42, 0x800000\nv_lshl_add_u32 v10, v0, 4, s42")
            if pre == 's':
                A("s_add_u32 s40, s26, s42\ns_addc_u32 s41, s27, 0")
                for i in range(n*16):
                    A(f"s_load_dword s48, s[40:41], {64*i} glc")
                A("s_waitcnt lgkmcnt(0)")
            elif pre:
                for i in range(n):
                    A(f"global_load_dwordx4 v[20:23], v10, s[26:27] offset:{1024*i} {pre[1:]}")
                A("s_waitcnt vmcnt(0)")
            self.lds_spin(C_Q, 4, sleep=1)
            A("s_sleep 64")
            for i in range(n):
                A(f"global_store_dwordx4 v10, v[16:19], s[26:27] offset:{1024*i} {mod}")
        if 'noa' in self.abl:
            A("s_branch L_adone")
        if self.xt:
            pass
        elif self.local:
            A(f"""
            s_getreg_b32 s45, hwreg(HW_REG_XCC_ID, 0, 4)
            s_lshl_b32 s45, s45, 28
            s_cmp_eq_u32 s{sTY}, 0
            s_cselect_b32 s45, s45, 0
            s_xor_b32 s45, s45, s{sT32}""")
        nq = self.lab("Lnoq")
        A(f"s_cmp_eq_u32 s{sW}, 3\ns_cbranch_scc0 {nq}")
        self.red_publish(L_RQ, 512, C_Q, 32, f"""
            s_lshl3_add_u32 s41, s{sHQ}, s{sRBQ}
            s_lshl_b32 s40, s41, 9
            s_add_u32 s40, s40, {WS_BQ:#x}
            v_add_u32 v11, s40, v10
            s_lshr_b32 s40, s41, 4
            s_and_b32 s41, s41, 15
            s_lshl_b32 s40, s40, 5
            s_add_u32 s40, s40, s41
            s_lshl_b32 s40, s40, 2
            s_add_u32 s40, s40, {WS_FLA:#x}""", self.nrepA, val=(45 if (self.local and not self.forceloc) else sT32))
        self.stamp(13)
        A(f"""
        {nq}:
        s_cmp_ge_u32 s{sTY}, 2
        s_cbranch_scc1 L_final
        s_cmp_ge_u32 s{sTY}, 1
        s_cbranch_scc1 L_ffn""")
        if 'stop1' in self.abl:
            self.arrive(C_GA, want_old=False); A("s_branch L_adone")
        if self.xt:
            nc = self.lab("Lnocol"); l = self.lab("Lxt"); mem = self.lab("Lxm"); lv = self.lab("Lxv")
            A(f"""
            s_cmp_lg_u32 s{sW}, 0
            s_cbranch_scc1 {nc}
            s_lshl_b32 s46, s{sG}, 10
            s_add_u32 s46, s46, {WS_XV:#x}
            s_mov_b32 s{sSPIN}, 0
            s_cmp_lg_u32 s{sY}, 0
            s_cbranch_scc1 {mem}
            s_mov_b32 s42, s45
            s_mov_b32 s43, s45
            s_add_u32 s41, s95, 64
            {l}:
            s_load_dwordx16 s[{sP}:{sP+15}], s[26:27], s95 glc
            s_load_dwordx16 s[4:19], s[26:27], s41 glc
            s_add_u32 s{sSPIN}, s{sSPIN}, 1
            s_cmp_gt_u32 s{sSPIN}, {SPIN_MAX}
            s_cbranch_scc1 L_end
            s_waitcnt lgkmcnt(0)""")
            pairs = [sP + 2*i for i in range(8)] + [4 + 2*i for i in range(8)]
            for p in pairs:
                A(f"s_xor_b64 s[{p}:{p+1}], s[{p}:{p+1}], s[42:43]")
            for p in pairs[1:]:
                A(f"s_or_b64 s[{sP}:{sP+1}], s[{sP}:{sP+1}], s[{p}:{p+1}]")
            A(f"""
            s_or_b32 s101, s{sP}, s{sP+1}
            s_and_b32 s{sP}, s101, 0x0fffffff
            s_cbranch_scc1 {l}
            s_xor_b32 s40, s101, s{sT32}
            s_mov_b64 exec, 0xff
            v_lshl_add_u32 v1, v0, 7, s46
            v_mov_b32 v2, s40
            global_store_dword v1, v2, s[26:27] sc1
            s_branch {lv}
            {mem}:
            s_and_b32 s40, s{sY}, 7
            s_lshl_b32 s40, s40, 7
            s_add_u32 s46, s46, s40
            {mem}_l:
            s_sleep {self.xsleep}
            s_load_dword s101, s[26:27], s46 glc
            s_add_u32 s{sSPIN}, s{sSPIN}, 1
            s_cmp_gt_u32 s{sSPIN}, {SPIN_MAX}
            s_cbranch_scc1 L_end
            s_waitcnt lgkmcnt(0)
            s_xor_b32 s101, s101, s{sT32}
            s_and_b32 s40, s101, 0x0fffffff
            s_cbranch_scc1 {mem}_l
            {lv}:
            s_cmp_lg_u32 s101, 0
            s_cselect_b32 s40, 3, 1
            s_mov_b64 exec, 1
            v_mov_b32 v1, {C_LOC}
            v_mov_b32 v2, s40
            ds_write_b32 v1, v2
            s_mov_b64 exec, -1
            {nc}:""")
        vKF, vVF, vGT, vQF, vO = 56, 88, 120, 152, 168
        vS, U, Z = 16, 24, 28
        A(f"""
        s_lshl2_add_u32 s41, s{sG}, s{sW}
        s_lshl_b32 s40, s41, 13
        s_add_u32 s40, s40, {WS_BQ + 2048:#x}
        v_and_b32 v12, 31, v0
        v_lshrrev_b32 v13, 5, v0
        v_lshlrev_b32 v1, 4, v12
        v_lshl_add_u32 v1, v13, 12, v1
        v_add_u32 v{vA0}, s40, v1
        s_and_b32 s40, s{sCH}, {self.nrepA-1}
        s_mul_i32 s40, s40, {REPP}
        s_lshl_b32 s41, s41, 7
        s_add_u32 s40, s40, s41
        s_add_u32 s95, s40, {WS_FLA:#x}
        s_lshl_b32 s40, s{sW}, 1
        v_add_u32 v13, s40, v13
        v_mul_u32_u24 v13, {QLP}, v13
        v_lshl_add_u32 v13, v12, 3, v13
        v_and_b32 v10, 7, v0
        s_lshl_b32 s40, s{sG}, 5
        s_add_u32 s41, s40, s{sCH}
        s_mul_i32 s41, s41, {BOP}
        s_lshl_b32 s42, s{sW}, 7
        s_add_u32 s41, s41, s42
        s_add_u32 s41, s41, {WS_BO:#x}
        v_lshlrev_b32 v8, 9, v10
        v_bfe_u32 v11, v0, 3, 1
        v_lshl_add_u32 v8, v11, 6, v8
        v_lshl_add_u32 v8, v{vJ}, 4, v8
        v_add_u32 v8, s41, v8
        s_add_u32 s40, s40, s{sCH}
        s_lshl_b32 s40, s40, 7
        s_add_u32 s40, s40, {WS_BML:#x}
        v_lshl_add_u32 v9, v10, 4, s40
        v_mul_u32_u24 v12, {QLP}, v10
        v_lshl_add_u32 v12, v{vJ}, 4, v12
        s_mov_b32 s46, {f2u(128 ** -0.5):#x}
        s_mov_b32 s47, {f2u(128 ** -0.5):#x}
        s_lshl_b32 s40, s{sW}, 13
        v_xor_b32 v14, v{vI}, v{vJ}
        v_lshlrev_b32 v14, 4, v14
        v_lshl_add_u32 v14, v{vI}, 8, v14
        v_add_u32 v14, s40, v14
        v_bfe_u32 v10, v0, 2, 2
        v_lshl_add_u32 v10, v{vJ}, 2, v10
        v_and_b32 v11, 7, v10
        v_lshlrev_b32 v11, 1, v11
        v_bfe_u32 v1, v0, 1, 1
        v_xor_b32 v11, v11, v1
        v_lshlrev_b32 v11, 4, v11
        v_lshl_add_u32 v11, v10, 8, v11
        v_and_b32 v1, 1, v0
        v_lshl_add_u32 v11, v1, 3, v11
        s_add_u32 s41, s40, {L_V}
        v_add_u32 v11, s41, v11
        ; exchange area (this wave's K rows, dead once the fragments are in registers)
        v_lshl_add_u32 v15, v0, 4, s40
        s_lshl_b32 s41, s{sW}, 10
        v_lshl_add_u32 v10, v0, 4, s41""")
        self.mask(("s92", "s93"), 0xFF00FF00FF00FF00)
        if self.warm is not None and self.warmO:
            A(f"""
            s_mov_b64 exec, 0xff
            global_load_dword v54, v8, s[26:27] {self.warm}
            s_mov_b64 exec, 1
            global_load_dword v53, v9, s[26:27] {self.warm}
            s_mov_b64 exec, -1""")

        def kreads():
            A(f"s_lshl_b32 s41, s{sW}, 2\ns_add_u32 s41, s41, {C_K}")
            self.lds_spin("s41", 1, sleep=1)
            for s in range(4):
                if s:
                    A(f"v_xor_b32 v2, {64*s}, v14")
                for t in range(2):
                    r = vKF + 16*t + 4*s
                    A(f"ds_read_b128 v[{r}:{r+3}], v{2 if s else 14} offset:{L_K + 4096*t}")
            self.stamp(3)

        if self.kfirst:
            kreads()
        A("s_mov_b32 s40, s95")
        if self.xt:
            self.flag_poll(16)
        elif self.forceloc:
            self.flag_poll(16)
            A("s_mov_b32 s101, 1")
        elif self.local:
            l = self.lab("Lpoll"); r = self.lab("Lretry")
            A(f"""
            s_mov_b32 s{sSPIN}, 0
            s_mov_b32 s42, s{sT32}
            s_mov_b32 s43, s{sT32}
            s_mov_b32 s4, s45
            s_mov_b32 s5, s45
            s_branch {l}
            {r}:
            s_sleep {self.psleep}
            {l}:
            s_load_dwordx16 s[{sP}:{sP+15}], s[26:27], s40 glc
            s_add_u32 s{sSPIN}, s{sSPIN}, 1
            s_cmp_gt_u32 s{sSPIN}, {SPIN_MAX}
            s_cbranch_scc1 L_end
            s_waitcnt lgkmcnt(0)""")
            for i in range(8):
                A(f"s_xor_b64 s[{sP+2*i}:{sP+2*i+1}], s[{sP+2*i}:{sP+2*i+1}], s[{'4:5' if (i & 2) == 0 else '42:43'}]")
            for step in (2, 4, 8):
                for i in range(0, 16, 2*step):
                    A(f"s_or_b64 s[{sP+i}:{sP+i+1}], s[{sP+i}:{sP+i+1}], s[{sP+i+step}:{sP+i+step+1}]")
            A(f"""
            s_or_b32 s{sP}, s{sP}, s{sP+1}
            s_and_b32 s{sP+1}, s{sP}, 0x0fffffff
            s_cbranch_scc1 {r}
            s_cmp_lg_u32 s{sP}, 0
            s_cselect_b32 s101, 0x101, 1""")
        else:
            self.flag_poll(16)
        self.stamp(2)
        if 'stop2' in self.abl:
            self.arrive(C_GA, want_old=False); A("s_branch L_adone")
        rq = self.lab("Lgq")
        A(f"s_mov_b32 s45, 0\n{rq}:")
        for n in range(8):
            A(f"global_load_dwordx4 v[{vGT+4*n}:{vGT+4*n+3}], v{vA0}, s[26:27] offset:{512*n - 2048} sc1")
        skip = self.lab("Lkvdone")
        A(f"s_cmp_lg_u32 s45, 0\ns_cbranch_scc1 {skip}\ns_mov_b32 s45, 1")
        self.gate(1, self.gateA)
        def vreads():
            A(f"s_lshl_b32 s41, s{sW}, 2\ns_add_u32 s41, s41, {C_V}")
            self.lds_spin("s41", 1, sleep=0)
            for dt in range(8):
                if dt:
                    A(f"v_xor_b32 v14, {32*dt}, v11")
                for t in range(2):
                    r = vVF + 4*dt + 2*t
                    A(f"ds_read_b64_tr_b16 v[{r}:{r+1}], v{14 if dt else 11} offset:{4096*t}")

        if not self.kfirst:
            kreads()
        if not self.vlate:
            vreads()
        A(f"""
        s_lshr_b32 s40, s{sCH}, 4
        s_lshl1_add_u32 s40, s{sG}, s40
        s_lshl_b32 s40, s40, 5
        s_and_b32 s41, s{sCH}, 15
        s_add_u32 s40, s40, s41
        s_lshl_b32 s40, s40, 2
        s_add_u32 s95, s40, {WS_FLB:#x}""")
        A(f"s_mov_b32 s{sSPIN}, 0\n{skip}:")
        A("s_waitcnt vmcnt(0)")
        self.untag([vGT+4*n for n in range(8)], vT)
        self.tagtest(vT, rq)
        self.stamp(4)
        if 'stop3' in self.abl:
            A("s_branch L_adone")
        for step in (4, 8, 16):
            for b in range(0, 32, 2*step):
                for h in (0, 2):
                    A(f"v_pk_add_f32 v[{vGT+b+h}:{vGT+b+h+1}], v[{vGT+b+h}:{vGT+b+h+1}], v[{vGT+b+step+h}:{vGT+b+step+h+1}]")
        A(f"""
        v_cvt_pk_bf16_f32 v{vGT}, v{vGT}, v{vGT+1}
        v_cvt_pk_bf16_f32 v{vGT+1}, v{vGT+2}, v{vGT+3}
        s_mov_b32 s45, {f2u(LOG2E):#x}
        ds_write_b64 v13, v[{vGT}:{vGT+1}] offset:{L_QL}""")
        self.arrive(C_QL, want_old=False, inc=("s101" if (self.local and not self.xt) else 1))
        self.stamp(1)
        self.lds_spin(C_QL, 4, sleep=0, low8=(self.local and not self.xt),
                      reads="\n".join(f"ds_read_b128 v[{vQF+4*s}:{vQF+4*s+3}], v12 offset:{L_QL + 64*s}" for s in range(4))
                      + (f"\nds_read_b32 v54, v1 offset:{C_LOC - C_QL}" if self.xt else ""))
        if self.xt:
            l = self.lab("Lloc")
            A(f"""
            v_readfirstlane_b32 s101, v54
            s_cmp_lg_u32 s101, 0
            s_cbranch_scc1 {l}_d
            {l}:
            ds_read_b32 v54, v1 offset:{C_LOC - C_QL}
            s_add_u32 s{sSPIN}, s{sSPIN}, 1
            s_cmp_gt_u32 s{sSPIN}, {SPIN_MAX}
            s_cbranch_scc1 L_end
            s_waitcnt lgkmcnt(0)
            v_readfirstlane_b32 s101, v54
            s_cmp_eq_u32 s101, 0
            s_cbranch_scc1 {l}
            {l}_d:
            s_lshr_b32 s101, s101, 1""")
        self.stamp(9)
        for s in range(4):
            for t in range(2):
                c = "0" if s == 0 else f"v[{vS+4*t}:{vS+4*t+3}]"
                r = vKF + 16*t + 4*s
                A(f"v_mfma_f32_16x16x32_bf16 v[{vS+4*t}:{vS+4*t+3}], v[{r}:{r+3}], v[{vQF+4*s}:{vQF+4*s+3}], {c}")
        self.early_flag('qk')
        if self.vlate:
            vreads()
        else:
            A("s_nop 7")
        for k in range(4):
            A(f"v_cndmask_b32 v{U+k}, v{vS+k}, v{vS+4+k}, s[92:93]")
        for rnd in range(2):
            for p in range(2):
                A(f"v_cvt_pk_bf16_f32 v{Z+p}, v{U+2*p}, v{U+2*p+1}")
            for p in range(2):
                A(f"v_lshlrev_b32 v{U+2*p}, 16, v{Z+p}\nv_and_b32 v{U+2*p+1}, 0xffff0000, v{Z+p}")
            if rnd == 0:
                for p in range(2):
                    A(f"v_pk_mul_f32 v[{U+2*p}:{U+2*p+1}], v[{U+2*p}:{U+2*p+1}], s[46:47]")
        vM, vL = 48, 49
        A(f"""
        v_max3_f32 v{vM}, v{U}, v{U+1}, v{U+2}
        v_max_f32 v{vM}, v{vM}, v{U+3}
        s_nop 1
        v_max_f32_dpp v{vM}, v{vM}, v{vM} row_ror:8 row_mask:0xf bank_mask:0xf""")
        self.allreduce_rows(vM, 50, "v_max_f32")
        A(f"v_mul_f32 v50, s45, v{vM}")
        for k in range(4):
            A(f"v_fma_f32 v{U+k}, v{U+k}, s45, -v50")
        for k in range(4):
            A(f"v_exp_f32 v{U+k}, v{U+k}")
        P = 32
        A(f"""
        s_nop 0
        v_cvt_pk_bf16_f32 v{P}, v{U}, v{U+1}
        v_cvt_pk_bf16_f32 v{P+1}, v{U+2}, v{U+3}
        v_pk_add_f32 v[52:53], v[{U}:{U+1}], v[{U+2}:{U+3}]
        v_mov_b32_dpp v{P+2}, v{P} row_ror:8 row_mask:0xf bank_mask:0xf
        v_mov_b32_dpp v{P+3}, v{P+1} row_ror:8 row_mask:0xf bank_mask:0xf
        v_mov_b32 v{P+4}, v{P}
        v_mov_b32 v{P+5}, v{P+1}
        v_add_f32 v{vL}, v52, v53""")
        if self.vlate:
            A("s_waitcnt lgkmcnt(0)")
        fill = [f"v_lshrrev_b32 v14, 1, v15\nv_add_f32_dpp v{vL}, v{vL}, v{vL} row_ror:8 row_mask:0xf bank_mask:0xf",
                f"v_mov_b32 v50, v{vL}\ns_lshl_b32 s40, s{sW}, 12",
                f"v_add_u32 v14, s40, v14\nv_permlane32_swap_b32 v50, v{vL}",
                f"v_add_f32 v{vL}, v{vL}, v50\nv_mov_b32 v50, v{vL}",
                f"s_nop 0",
                f"v_permlane16_swap_b32 v50, v{vL}\nv_add_f32 v{vL}, v{vL}, v50",
                f"ds_write_b64 v14, v[{vM}:{vL}] offset:{L_K + 4096}", ""]
        for dt in range(8):
            b = P + 2*(dt & 1)
            A(f"v_mfma_f32_16x16x32_bf16 v[{vO+4*dt}:{vO+4*dt+3}], v[{vVF+4*dt}:{vVF+4*dt+3}], v[{b}:{b+3}], 0")
            A(fill[dt])
        for k in range(4):
            for r in range(4):
                A(f"v_cndmask_b32 v{vO+8*k+r}, v{vO+8*k+r}, v{vO+8*k+4+r}, s[92:93]")
            A(f"ds_write_b128 v15, v[{vO+8*k}:{vO+8*k+3}] offset:{L_K + 1024*k}")
        self.arrive(C_X, want_old=False)
        A("v_lshlrev_b32 v14, 3, v0")
        self.early_flag('pv')
        self.stamp(11)
        X, ML = 56, 72
        self.lds_spin(C_X, 4, sleep=0, reads="\n".join(
            [f"ds_read_b64 v[{ML+2*w}:{ML+2*w+1}], v14 offset:{L_K + 8192*w + 4096}" for w in range(4)] +
            [f"ds_read_b128 v[{X+4*w}:{X+4*w+3}], v10 offset:{L_K + 8192*w}" for w in range(4)]))
        self.stamp(10)
        self.early_flag('xsync')
        A(f"v_max3_f32 v{vM}, v{ML}, v{ML+2}, v{ML+4}\nv_max_f32 v{vM}, v{vM}, v{ML+6}")
        for w in range(4):
            A(f"v_sub_f32 v{ML+2*w}, v{ML+2*w}, v{vM}")
        for w in range(4):
            A(f"v_mul_f32 v{ML+2*w}, s45, v{ML+2*w}")
        for w in range(4):
            A(f"v_exp_f32 v{ML+2*w}, v{ML+2*w}")
        A(f"s_nop 0\nv_mul_f32 v{vL}, v{ML}, v{ML+1}")
        for w in range(4):
            e = ML + 2*w
            for h in (0, 2):
                if w == 0:
                    A(f"v_pk_mul_f32 v[{vS+h}:{vS+h+1}], v[{X+h}:{X+h+1}], v[{e}:{e+1}] op_sel_hi:[1,0]")
                else:
                    A(f"v_pk_fma_f32 v[{vS+h}:{vS+h+1}], v[{X+4*w+h}:{X+4*w+h+1}], v[{e}:{e+1}], v[{vS+h}:{vS+h+1}] op_sel_hi:[1,0,1]")
            if w:
                A(f"v_fmac_f32 v{vL}, v{e}, v{e+1}")
        for r in range(4):
            self.tag(vS + r)
        nml = self.lab("Lnoml")

        def publish(mod):
            if 'noO' not in self.abl:
                A(f"global_store_dwordx4 v8, v[{vS}:{vS+3}], s[26:27] {mod}")
            A(f"s_cmp_lg_u32 s{sW}, 0\ns_cbranch_scc1 {nml}")
            self.tag(vM); self.tag(vL)
            A(f"""
            v_mov_b32 v50, v3
            v_mov_b32 v51, v3
            s_mov_b64 exec, 0xff
            global_store_dwordx4 v9, v[48:51], s[26:27] {mod}""")

        if self.local:
            rem = self.lab("Lremote"); fl = self.lab("Lflagb")
            A(f"s_cmp_lg_u32 s101, 0\ns_cbranch_scc1 {rem}")
            publish("")
            A(f"s_branch {fl}\n{rem}:")
            publish("sc1")
            A(f"{fl}:")
        else:
            publish("sc1")
        if self.flagpos != 'end':
            A(f"s_mov_b64 exec, -1\ns_cmp_eq_u32 s101, 0\ns_cbranch_scc1 {nml}")
        A("s_mov_b32 s40, s95")
        if 'noflagB' not in self.abl:
            self.flag_store(self.nrepB)
        A(f"{nml}:")
        self.gate(2, self.gateA)
        self.stamp(5)
        if 'stop4' in self.abl:
            A("s_branch L_adone")
        A(f"""
        s_and_b32 s40, s{sTL}, 7
        s_lshl2_add_u32 s41, s40, s{sW}
        s_lshl_b32 s41, s41, 7
        s_mul_i32 s42, s{sG}, {32*BOP}
        s_add_u32 s41, s41, s42
        s_add_u32 s41, s41, {WS_BO:#x}
        v_lshrrev_b32 v1, 3, v0
        v_mul_u32_u24 v1, {BOP}, v1
        v_and_b32 v2, 7, v0
        v_lshl_add_u32 v1, v2, 4, v1
        v_add_u32 v{vA0}, s41, v1
        v_add_u32 v13, {8*BOP}, v{vA0}
        v_add_u32 v14, {16*BOP}, v{vA0}
        v_add_u32 v15, {24*BOP}, v{vA0}
        s_lshl_b32 s41, s{sG}, 8
        s_add_u32 s40, s40, s41
        s_lshl_b32 s40, s40, 4
        s_add_u32 s40, s40, {WS_BML:#x}
        v_and_b32 v1, 31, v0
        v_lshl_add_u32 v{vA1}, v1, 7, s40
        s_lshl_b32 s40, s{sW}, 7
        v_and_b32 v2, 7, v0
        v_lshrrev_b32 v1, 3, v1
        v_lshl_add_u32 v1, v1, 2, s40
        v_lshl_add_u32 v10, v2, 4, v1
        v_lshrrev_b32 v1, 3, v0
        v_lshl_add_u32 v11, v1, 4, s40
        v_and_b32 v1, 1, v0
        v_lshl_add_u32 v1, v1, 2, v{vJ}
        v_and_b32 v2, 6, v0
        v_lshl_add_u32 v12, v1, 5, v2
        s_lshl_b32 s40, s{sW}, 3
        v_add_u32 v12, s40, v12""")
        nb = self.lab("Lnopollb")
        A(f"""
        s_cmp_ge_u32 s{sW}, 2
        s_cbranch_scc1 {nb}
        s_and_b32 s40, s{sCH}, {self.nrepB-1}
        s_mul_i32 s40, s40, {REPP}
        s_lshl1_add_u32 s41, s{sG}, s{sW}
        s_lshl_b32 s41, s41, 7
        s_add_u32 s40, s40, s41
        s_add_u32 s40, s40, {WS_FLB:#x}""")
        self.flag_poll(16)
        self.arrive(C_B1, want_old=False)
        A(f"{nb}:")
        self.lds_spin(C_B1, 2, sleep=1)
        self.stamp(6)
        rb_ = self.lab("Lgo")
        vO, vML = 56, 72
        A(f"s_mov_b32 s47, 0\n{rb_}:")
        def bloads(mod):
            A(f"global_load_dwordx4 v[{vML}:{vML+3}], v{vA1}, s[26:27] {mod}")
            for n in range(4):
                A(f"global_load_dwordx4 v[{vO+4*n}:{vO+4*n+3}], v{(vA0, 13, 14, 15)[n]}, s[26:27] {mod}")
        if self.local and self.gmod != 'sc1':
            rem = self.lab("Lremote"); fl = self.lab("Lbld")
            A(f"s_cmp_lg_u32 s101, 0\ns_cbranch_scc1 {rem}")
            bloads(self.gmod)
            A(f"s_branch {fl}\n{rem}:")
            bloads("sc1")
            A(f"{fl}:")
        else:
            bloads("sc1")
        if self.HA:
            l = self.lab("Lhb")
            A(f"s_cmp_lg_u32 s47, 0\ns_cbranch_scc1 {l}\ns_mov_b32 s47, 1")
            self.arrive(C_HB, want_old=False)
            A(f"{l}:")
        if 3 in self.gateA:
            self.gate(3, self.gateA)
            A(f"s_mov_b32 s{sGATE}, 0")
        A("s_waitcnt vmcnt(4)")
        self.untag([vML], vT + 16)
        A(f"v_mov_b32 v{vT+4}, v{vML}\nv_mov_b32 v{vT}, v{vML}")
        self.allreduce_in_row(vT, "v_max_f32")
        A(f"""
        v_mov_b32 v{vT+2}, v{vT}
        s_nop 1
        v_permlane16_swap_b32 v{vT+2}, v{vT}
        v_max_f32 v{vT}, v{vT}, v{vT+2}
        v_sub_f32 v{vT+4}, v{vT+4}, v{vT}
        v_mul_f32 v{vT+4}, s45, v{vT+4}
        v_exp_f32 v{vT+4}, v{vT+4}
        s_mov_b32 exec_hi, 0
        ds_write_b32 v10, v{vT+4} offset:{L_WT}
        s_mov_b32 exec_hi, -1
        ds_read_b128 v[{vT+8}:{vT+11}], v11 offset:{L_WT}
        v_mul_f32 v{vT+1}, v{vT+4}, v{vML+1}""")
        self.allreduce_in_row(vT + 1)
        A(f"""
        v_mov_b32 v{vT+2}, v{vT+1}
        s_nop 1
        v_permlane16_swap_b32 v{vT+2}, v{vT+1}
        v_add_f32 v{vT+1}, v{vT+1}, v{vT+2}
        v_rcp_f32 v{vT+1}, v{vT+1}
        s_waitcnt vmcnt(0)""")
        self.untag([vO + 4*n for n in range(4)], vT + 17)
        A(f"v_or_b32 v{vT+16}, v{vT+16}, v{vT+17}")
        self.tagtest(vT + 16, rb_)
        self.stamp(7)
        A("s_waitcnt lgkmcnt(0)")
        acc = vT + 4
        for n in range(4):
            w = vT + 8 + (n & ~1)
            os_ = f"op_sel:[0,{n&1}] op_sel_hi:[1,{n&1}]" if n == 0 else f"op_sel:[0,{n&1},0] op_sel_hi:[1,{n&1},1]"
            for h in (0, 2):
                if n == 0:
                    A(f"v_pk_mul_f32 v[{acc+h}:{acc+h+1}], v[{vO+h}:{vO+h+1}], v[{w}:{w+1}] {os_}")
                else:
                    A(f"v_pk_fma_f32 v[{acc+h}:{acc+h+1}], v[{vO+4*n+h}:{vO+4*n+h+1}], v[{w}:{w+1}], v[{acc+h}:{acc+h+1}] {os_}")
        self.reduce_scatter_rows(acc)
        A(f"""
        s_nop 1
        v_add_f32_dpp v{acc}, v{acc}, v{acc} row_ror:8 row_mask:0xf bank_mask:0xf
        v_mov_b32 v1, {C_FO}
        v_mul_f32 v{acc}, v{acc}, v{vT+1}
        v_mov_b32 v2, 1
        v_cvt_pk_bf16_f32 v{acc}, v{acc}, v{acc}""")
        self.exec_set(0x00FF00FF00FF00FF)
        A(f"""
        ds_write_b16 v12, v{acc} offset:{L_VEC}
        s_mov_b64 exec, 1
        ds_add_u32 v1, v2
        s_mov_b64 exec, -1""")
        self.stamp(8)
        if 'diag' in self.abl:
            l = self.lab("Ldg")
            if 'diagx' in self.abl:
                A(f"s_getreg_b32 s41, hwreg(HW_REG_XCC_ID, 0, 4)\ns_cmp_eq_u32 s41, s{sX}")
            else:
                A("s_cmp_eq_u32 s101, 0")
            A(f"""
            s_cbranch_scc1 L_adone
            s_memrealtime s[42:43]
            s_waitcnt lgkmcnt(0)
            s_add_u32 s40, s42, 2000
            {l}:
            s_memrealtime s[42:43]
            s_waitcnt lgkmcnt(0)
            s_sub_u32 s41, s42, s40
            s_cmp_lt_i32 s41, 0
            s_cbranch_scc1 {l}""")
        A("L_adone:")
        self.write_stamps(14)
        A("s_endpgm")
        A(f"""
        L_ffn:
        s_cmp_eq_u32 s{sW}, 2
        s_cbranch_scc0 L_adone""")
        if self.localD:
            l = self.lab("Lxt")
            A(f"""
            s_getreg_b32 s45, hwreg(HW_REG_XCC_ID, 0, 4)
            s_lshl_b32 s45, s45, 28
            s_xor_b32 s42, s45, s{sT32}
            s_mov_b32 s43, s42
            s_lshl_b32 s40, s{sG}, 7
            s_add_u32 s40, s40, {WS_XT:#x}
            s_lshl2_add_u32 s41, s{sY}, s40
            s_mov_b64 exec, 1
            v_mov_b32 v1, s41
            v_mov_b32 v2, s42
            global_store_dword v1, v2, s[26:27] sc1
            s_mov_b64 exec, -1
            s_add_u32 s41, s40, 64
            s_mov_b32 s{sSPIN}, 0
            {l}:
            s_sleep 24
            s_load_dwordx16 s[{sP}:{sP+15}], s[26:27], s40 glc
            s_load_dwordx16 s[4:19], s[26:27], s41 glc
            s_add_u32 s{sSPIN}, s{sSPIN}, 1
            s_cmp_gt_u32 s{sSPIN}, {SPIN_MAX}
            s_cbranch_scc1 L_end
            s_waitcnt lgkmcnt(0)""")
            pairs = [sP + 2*i for i in range(8)] + [4 + 2*i for i in range(6)]
            for p in pairs:
                A(f"s_xor_b64 s[{p}:{p+1}], s[{p}:{p+1}], s[42:43]")
            for p in pairs[1:]:
                A(f"s_or_b64 s[{sP}:{sP+1}], s[{sP}:{sP+1}], s[{p}:{p+1}]")
            A(f"""
            s_or_b32 s101, s{sP}, s{sP+1}
            s_and_b32 s{sP}, s101, 0x0fffffff
            s_cbranch_scc1 {l}""")
        if 'noffn' in self.abl:
            A("s_branch L_adone")
        self.red_publish(L_RG, 1024, C_G, 64, f"""
            s_sub_u32 s41, s{sUP}, s{sTL}
            s_lshl2_add_u32 s40, s{sTL}, s{sRB}
            s_lshl_b32 s40, s40, 10
            s_add_u32 s40, s40, {WS_BD:#x}
            v_add_u32 v11, s40, v10
            v_lshrrev_b32 v13, 5, v0
            s_lshl_b32 s42, s41, 12
            v_mul_lo_u32 v12, s42, v13
            v_add_u32 v11, v11, v12
            s_lshl_b32 s40, s{sTL}, 5
            s_add_u32 s40, s40, s{sRB}
            s_lshl_b32 s40, s40, 2
            s_lshl_b32 s42, s41, 7
            s_add_u32 s42, s42, 16
            v_mul_lo_u32 v12, s42, v0
            v_add_u32 v12, s40, v12
            s_movk_i32 s40, {WS_FLD:#x}""", 2, 12, sleep=1, local=self.localD)
        self.gate(1, self.gateF)
        self.stamp(5)
        A(f"""
        s_lshl_b32 s40, s{sTL}, 12
        s_add_u32 s40, s40, {WS_BD:#x}
        v_add_u32 v{vA0}, s40, v10
        v_and_b32 v1, 1, v0
        v_lshl_add_u32 v1, v1, 1, v13
        v_and_b32 v2, 30, v0
        v_lshl_add_u32 v12, v1, 6, v2
        s_lshl_b32 s40, s{sTL}, 7
        s_add_u32 s40, s40, {WS_FLD:#x}""")
        self.flag_poll(8)
        self.stamp(6)
        rd = self.lab("Lgd")
        G = 56
        A(f"s_mov_b32 s47, 0\n{rd}:")
        def dloads(mod):
            for n in range(4):
                A(f"global_load_dwordx4 v[{G+4*n}:{G+4*n+3}], v{vA0}, s[26:27] offset:{1024*n} {mod}")
        if self.localD:
            rem = self.lab("Lremote"); fl = self.lab("Ldld")
            A(f"s_cmp_lg_u32 s101, 0\ns_cbranch_scc1 {rem}")
            dloads(self.gmod)
            A(f"s_branch {fl}\n{rem}:")
            dloads("sc1")
            A(f"{fl}:")
        else:
            dloads("sc1")
        if self.HF:
            l = self.lab("Lhb")
            A(f"s_cmp_lg_u32 s47, 0\ns_cbranch_scc1 {l}\ns_mov_b32 s47, 1")
            self.arrive(C_HB, want_old=False)
            A(f"{l}:")
        if 2 in self.gateF:
            self.gate(2, self.gateF)
            A(f"s_mov_b32 s{sGATE}, 0")
        A("s_waitcnt vmcnt(0)")
        self.untag([G + 4*n for n in range(4)], vT)
        self.tagtest(vT, rd)
        self.stamp(7)
        for h in (0, 2):
            A(f"v_pk_add_f32 v[{G+h}:{G+h+1}], v[{G+h}:{G+h+1}], v[{G+4+h}:{G+5+h}]")
            A(f"v_pk_add_f32 v[{G+8+h}:{G+9+h}], v[{G+8+h}:{G+9+h}], v[{G+12+h}:{G+13+h}]")
        for h in (0, 2):
            A(f"v_pk_add_f32 v[{G+h}:{G+h+1}], v[{G+h}:{G+h+1}], v[{G+8+h}:{G+9+h}]")
        c1 = -2.0 * 0.7978845608028654 * LOG2E
        c2 = c1 * 0.044715
        A(f"""
        v_cvt_pk_bf16_f32 v{G}, v{G}, v{G+1}
        v_cvt_pk_bf16_f32 v{G+1}, v{G+2}, v{G+3}
        s_mov_b32 s46, {f2u(c2):#x}
        v_mov_b32 v{vT+4}, {f2u(c1):#x}
        v_permlane32_swap_b32 v{G}, v{G+1}
        v_lshlrev_b32 v{G+2}, 16, v{G}
        v_and_b32 v{G+3}, 0xffff0000, v{G}
        v_pk_mul_f32 v[{vT}:{vT+1}], v[{G+2}:{G+3}], v[{G+2}:{G+3}]
        v_fma_f32 v{vT}, v{vT}, s46, v{vT+4}
        v_fma_f32 v{vT+1}, v{vT+1}, s46, v{vT+4}
        v_pk_mul_f32 v[{vT}:{vT+1}], v[{vT}:{vT+1}], v[{G+2}:{G+3}]
        v_exp_f32 v{vT}, v{vT}
        v_exp_f32 v{vT+1}, v{vT+1}
        v_lshlrev_b32 v{G+4}, 16, v{G+1}
        v_add_f32 v{vT}, 1.0, v{vT}
        v_add_f32 v{vT+1}, 1.0, v{vT+1}
        v_rcp_f32 v{vT}, v{vT}
        v_rcp_f32 v{vT+1}, v{vT+1}
        v_and_b32 v{G+5}, 0xffff0000, v{G+1}
        v_pk_mul_f32 v[{G+2}:{G+3}], v[{G+2}:{G+3}], v[{vT}:{vT+1}]
        v_cvt_pk_bf16_f32 v{G}, v{G+2}, v{G+3}
        v_lshlrev_b32 v{G+2}, 16, v{G}
        v_and_b32 v{G+3}, 0xffff0000, v{G}
        v_pk_mul_f32 v[{G+2}:{G+3}], v[{G+2}:{G+3}], v[{G+4}:{G+5}]
        v_mov_b32 v1, {C_FO}
        v_cvt_pk_bf16_f32 v{G}, v{G+2}, v{G+3}
        v_mov_b32 v2, 1
        ds_write_b16 v12, v{G} offset:{L_VEC}
        ds_write_b16_d16_hi v12, v{G} offset:{L_VEC+32}
        s_mov_b64 exec, 1
        ds_write_b32 v1, v2
        s_mov_b64 exec, -1""")
        self.stamp(8)
        A("s_branch L_adone")

    def final(self):
        A = self.A
        vI, vJ, vT = 4, 5, 16
        G0, G1 = 56, 60
        A(f"""
        L_final:
        s_mov_b32 s42, s{sR}
        s_lshl_b32 s43, s42, 7
        v_lshl_add_u32 v8, v0, 1, s43
        global_load_ushort v9, v8, s[4:5]""")
        if 'nofinal' in self.abl:
            A("s_branch L_adone")
        A(f"""
        s_and_b32 s41, s{sW}, 3
        s_cmp_lt_u32 s{sW}, 4
        s_cselect_b32 s46, 0, {WS_BF - WS_BS:#x}
        s_cselect_b32 s47, {28*ROWP}, 0
        s_cselect_b32 s93, -1, 0xffff
        s_mov_b32 s92, -1
        s_mul_i32 s40, s41, {ROWP}
        s_add_u32 s40, s40, s46
        s_lshl_b32 s43, s42, 8
        s_add_u32 s40, s40, s43
        s_add_u32 s46, s40, {WS_BS:#x}
        s_add_u32 s47, s47, s46
        v_mul_u32_u24 v1, {4*ROWP}, v{vJ}
        v_lshl_add_u32 v1, v{vI}, 4, v1
        v_add_u32 v6, s46, v1
        v_add_u32 v7, {16*ROWP}, v6
        v_lshl_add_u32 v10, v{vI}, 2, v{vJ}
        v_lshlrev_b32 v10, 5, v10
        s_lshl_b32 s40, s{sW}, 2
        v_add_u32 v10, s40, v10
        v_lshlrev_b32 v11, 5, v0
        v_mov_b32 v12, {C_F1}
        v_mov_b32 v13, 1
        s_waitcnt vmcnt(0)
        v_lshlrev_b32 v9, 16, v9""")
        for r in range(4):
            A(f"v_mov_b32 v{G1+r}, v3")
        l = self.lab("Lfp"); r_ = self.lab("Lfr")
        A(f"""
        s_add_u32 s40, s26, s46
        s_addc_u32 s41, s27, 0
        s_mov_b32 s{sSPIN}, 0
        s_branch {l}
        {r_}:
        s_cmp_lg_u32 s43, 0
        s_cbranch_scc1 {l}
        s_sleep {self.fsleep}
        {l}:""")
        for k in range(7):
            A(f"s_load_dword s{48+k}, s[40:41], {4*k*ROWP} glc")
        A(f"""
        s_load_dword s55, s[26:27], s47 glc
        s_add_u32 s{sSPIN}, s{sSPIN}, 1
        s_cmp_gt_u32 s{sSPIN}, {SPIN_MAX}
        s_cbranch_scc1 L_end
        s_waitcnt lgkmcnt(0)""")
        A("s_mov_b32 s43, 0")
        for k in range(8):
            A(f"s_and_b32 s{48+k}, s{48+k}, s44\ns_cmp_eq_u32 s{48+k}, s{sT10}\ns_addc_u32 s43, s43, 0")
        A(f"s_cmp_ge_u32 s43, {self.fthr}\ns_cbranch_scc0 {r_}")
        self.stamp(9)
        rg = self.lab("Lfg")
        loads = f"""
            s_or_b64 exec, s[48:49], 1
            global_load_dwordx4 v[{G0}:{G0+3}], v6, s[26:27] sc1
            s_or_b64 exec, s[92:93], 1
            global_load_dwordx4 v[{G1}:{G1+3}], v7, s[26:27] sc1
            s_mov_b64 exec, -1"""
        A("s_mov_b64 s[48:49], -1")
        for k in range(self.fdepth - 1):
            A(loads)
        A(f"{rg}:")
        A(loads)
        A(f"s_waitcnt vmcnt({2*(self.fdepth - 1)})")
        for i, k in enumerate((G0, G1)):
            A(f"v_bitop3_b32 v{vT+2*i}, v{k}, v{k+1}, s{sT10} bitop3:0x7e")
            A(f"v_bitop3_b32 v{vT+2*i+1}, v{k+2}, v{k+3}, s{sT10} bitop3:0x7e")
        for i in range(2):
            A(f"v_bitop3_b32 v{vT+2*i}, v{vT+2*i}, v{vT+2*i+1}, s44 bitop3:0xa8")
        R = vT + 12
        A(f"""
        v_cmp_ne_u32 s[48:49], 0, v{vT}
        v_cmp_ne_u32 s[92:93], 0, v{vT+2}
        s_add_u32 s{sSPIN}, s{sSPIN}, 1
        s_cmp_gt_u32 s{sSPIN}, {SPIN_MAX}
        s_cbranch_scc1 L_end
        s_or_b64 s[40:41], s[48:49], s[92:93]
        s_cbranch_scc1 {rg}""")
        self.stamp(10)
        for k in range(4):
            A(f"v_xor_b32 v{R+k}, s{sT10}, v{G0+k}\nv_xor_b32 v{R+4+k}, s{sT10}, v{G1+k}")
        for h in (0, 2):
            A(f"v_pk_add_f32 v[{R+h}:{R+h+1}], v[{R+h}:{R+h+1}], v[{R+4+h}:{R+5+h}]")
        self.reduce_scatter_rows(R)
        f = vT + 4
        A(f"""
        ds_write_b32 v10, v{R} offset:{L_RF}
        s_mov_b64 exec, 1
        ds_add_rtn_u32 v2, v12, v13
        s_mov_b64 exec, -1
        ds_read_b128 v[{f}:{f+3}], v11 offset:{L_RF}
        ds_read_b128 v[{f+4}:{f+7}], v11 offset:{L_RF+16}
        s_waitcnt lgkmcnt(0)
        v_readfirstlane_b32 s{sTMP}, v2
        s_cmp_eq_u32 s{sTMP}, 7
        s_cbranch_scc0 L_adone
        v_pk_add_f32 v[{f+4}:{f+5}], v[{f+4}:{f+5}], v[{f+6}:{f+7}]
        v_pk_add_f32 v[{f}:{f+1}], v[{f}:{f+1}], v[{f+2}:{f+3}]
        v_add_f32 v{f+2}, v{f+4}, v{f+5}
        v_add_f32 v{f}, v{f}, v{f+1}
        v_cvt_pk_bf16_f32 v{f}, v{f}, v{f+2}
        v_and_b32 v{f+2}, 0xffff0000, v{f}
        v_mul_f32 v{f+3}, {f2u(-LOG2E):#x}, v{f+2}
        v_exp_f32 v{f+3}, v{f+3}
        v_lshlrev_b32 v{f}, 16, v{f}
        v_add_f32 v{f+3}, 1.0, v{f+3}
        v_rcp_f32 v{f+3}, v{f+3}
        s_nop 0
        v_mul_f32 v{f+2}, v{f+2}, v{f+3}""")
        self.bf16_round(f + 2, f + 2)
        A(f"v_mul_f32 v{f}, v{f}, v{f+2}")
        self.bf16_round(f, f)
        A(f"""
        v_add_f32 v{f}, v{f}, v9
        v_cvt_pk_bf16_f32 v{f}, v{f}, v{f}
        global_store_short v8, v{f}, s[22:23] {self.outmod}""")
        A(f"""
        s_cmp_lg_u32 s{sR}, 0
        s_cbranch_scc1 L_adone
        s_mov_b64 exec, 1
        v_mov_b32 v1, {WS_E}
        v_mov_b32 v2, s{sT32}
        global_store_dword v1, v2, s[26:27]
        s_branch L_adone""")


class Gen(Gen0):
    def __init__(self, ldsb=None, nvo=None, **kw):
        self.ldsb, self.nvo = ldsb, nvo
        super().__init__(**kw)


if __name__ == "__main__":
    import argparse
    ap = argparse.ArgumentParser()
    ap.add_argument("-o", default="recurrent_scan__sliding_block_cached__geglu_ffn__decode.s")

    ap.add_argument("--stamps", action="store_true")
    ap.add_argument("--probe", default=None)
    ap.add_argument("--kw", default="")
    a = ap.parse_args()
    open(a.o, "w").write(Gen(stamps=a.stamps, probe=tuple(map(int, a.probe.split(','))) if a.probe else None, **eval(f'dict({a.kw})')).build())
```

```python
import sys, struct

KN = "recurrent_scan__sliding_block_cached__geglu_ffn__decode_kernel"

def f2u(x):
    return struct.unpack("<I", struct.pack("<f", x))[0]

WS_E   = 0x0
WS_FLD = 0x1000
WS_XT  = 0x3000
WS_XA  = 0x3400
WS_XV  = 0x8000
WS_BML = 0x4000
WS_BQ  = 0x10000
WS_BD  = 0x30000
ROWP   = 4352
WS_BS  = 0x50000
WS_BF  = 0x78000
WS_BO  = 0xA0000
BOP    = 4096 + 128
REPP   = 17 * 128
WS_FLA = 0x130000
WS_FLB = 0x148000
WS_ST  = 0x400000

L_RQ   = 0
L_RG   = L_RQ + 2048
L_QL   = L_RG + 4096
QLP    = 272
L_WT   = L_QL + 2304
L_VEC  = L_WT + 512
L_XQ   = L_VEC + 256
L_XG   = L_XQ + 256
L_RF   = L_XG + 512
L_CNT  = L_RF + 2048
C_Q, C_G, C_X, C_QL, C_HB, C_FO, C_GA, C_B1, C_F1 = [L_CNT + 4*i for i in range(9)]
C_LOC = L_CNT + 36
C_XN, C_K, C_V = L_CNT + 48, L_CNT + 64, L_CNT + 80
L_K    = 12288
L_V    = L_K + 32768
assert L_CNT + 128 <= L_K
LDS_BYTES = L_V + 32768
YF, YL = 16, 30

TAGM = 0x3FF
LOG2E = 1.4426950408889634
SPIN_MAX = 1 << 20

sX, sY, sRB, sHQ, sRBQ, sTL, sG, sCH = 28, 29, 30, 31, 32, 33, 34, 35
sT32, sT10, sSPIN, sTMP = 36, 37, 38, 39
sW = 3
sGATE = 100
sTY, sUP, sR = 97, 98, 99
sP = 48
sSTAMP = 64


class Gen0:
    def __init__(self, stamps=False, prefetch=True, probe=None, abl='', xnpos=11, nrepA=4, nrepB=4, psleep=1,
                 WA=(6, 6, 5), WF=(6, 8, 8), pause='gather', fthr=6, wtest=None, fsleep=16, upx=2, layout='mix', plain='', gmod='sc1', local=False, touch=False, flagpos='end', HA=0, HF=0, vlate=False, kfirst=True, localD=False, earlyD=False, warm=None, warmO=False, qmap='grp', forceloc=False, xt=False, stag=False, ftrans=False, flocal=None, fmod='sc1', fls=4, wideg=0, widew=False, wideq=0, xsleep=10, fdepth=2, outmod='', gateA=(1, 1), gateF=(0, 0), WAe=None, WFe=None):
        self.gateA, self.gateF = gateA, gateF
        self.WAe, self.WFe = WAe, WFe
        self.local = local
        self.fdepth = fdepth
        self.touch = touch
        self.warm = warm
        self.ftrans, self.flocal, self.fmod, self.fls = ftrans, flocal, fmod, fls
        self.wideg, self.widew, self.wideq = wideg, widew, wideq
        self.xt, self.stag, self.xsleep = xt, stag, xsleep
        if xt:
            forceloc = True
        self.qmap, self.forceloc = qmap, forceloc
        self.warmO = warmO
        self.localD, self.earlyD = localD, earlyD
        self.kfirst = kfirst
        self.flagpos, self.HA, self.HF, self.vlate = flagpos, HA, HF, vlate
        self.outmod = outmod
        assert not local or layout != 'mix'
        self.gmod = gmod
        self.layout = layout
        self.plain = plain
        self.fsleep = fsleep
        self.upx = upx
        self.wtest = wtest
        self.fthr = fthr
        self.L = []
        self.stamps = stamps
        self.prefetch = prefetch
        self.probe = probe
        self.abl = abl
        self.xnpos = xnpos
        self.nrepA, self.nrepB = nrepA, nrepB
        self.psleep = psleep
        self.relwait = False
        self.WA, self.WF = WA, WF
        self.pause = pause
        self.nlab = 0

    def A(self, s):
        for line in s.strip("\n").split("\n"):
            if line.strip():
                self.L.append("    " + line.strip() if not line.strip().endswith(":") else line.strip())

    def lab(self, p="L"):
        self.nlab += 1
        return f"{p}_{self.nlab}"

    def stamp(self, k):
        if self.stamps == 'lite' and k not in (0, 10, 14):
            return
        if self.stamps or (self.probe and k in (0, self.probe[2])):
            self.A(f"s_memrealtime s[{sSTAMP+2*k}:{sSTAMP+2*k+1}]")

    def mask(self, reg, val):
        lo, hi = val & 0xFFFFFFFF, val >> 32
        self.A(f"s_mov_b32 {reg[0]}, {lo:#x}\ns_mov_b32 {reg[1]}, {hi:#x}")

    def exec_set(self, val):
        if val == -1:
            self.A("s_mov_b64 exec, -1")
        elif val <= 64:
            self.A(f"s_mov_b64 exec, {val}")
        elif val < (1 << 31):
            self.A(f"s_mov_b64 exec, {val:#x}")
        else:
            self.mask(("exec_lo", "exec_hi"), val)

    def arrive(self, cnt, want_old=True, inc=1):
        self.A(f"""
        s_mov_b64 exec, 1
        v_mov_b32 v1, {cnt}
        v_mov_b32 v2, {inc}""")
        if want_old:
            self.A(f"""
            ds_add_rtn_u32 v2, v1, v2
            s_waitcnt lgkmcnt(0)
            v_readfirstlane_b32 s{sTMP}, v2""")
        else:
            self.A("ds_add_u32 v1, v2")
        self.A("s_mov_b64 exec, -1")

    def lds_spin(self, cnt, val, sleep=1, reads="", low8=False):
        l = self.lab("Lspin"); d = self.lab("Lgot")
        self.A(f"""
        v_mov_b32 v1, {cnt}
        s_mov_b32 s{sSPIN}, 0
        {l}:
        ds_read_b32 v2, v1
        {reads}
        s_add_u32 s{sSPIN}, s{sSPIN}, 1
        s_cmp_gt_u32 s{sSPIN}, {SPIN_MAX}
        s_cbranch_scc1 L_end
        s_waitcnt lgkmcnt(0)
        v_readfirstlane_b32 s{sTMP}, v2""")
        if low8:
            self.A(f"s_lshr_b32 s101, s{sTMP}, 8\ns_and_b32 s{sTMP}, s{sTMP}, 0xff")
        if sleep:
            self.A(f"s_cmp_eq_u32 s{sTMP}, {val}\ns_cbranch_scc1 {d}\ns_sleep {sleep}\ns_branch {l}\n{d}:")
        else:
            self.A(f"s_cmp_eq_u32 s{sTMP}, {val}\ns_cbranch_scc0 {l}")

    def flag_poll(self, n, two=False):
        if 'nopoll' in self.abl:
            return
        l = self.lab("Lpoll"); r = self.lab("Lretry"); d = self.lab("Lflag")
        self.A(f"""
        s_mov_b32 s{sSPIN}, 0
        s_mov_b32 s42, s{sT32}
        s_mov_b32 s43, s{sT32}
        s_branch {l}
        {r}:
        s_sleep {self.psleep}
        {l}:
        s_load_dwordx{n} s[{sP}:{sP+n-1}], s[26:27], s40 glc
        {'s_load_dwordx16 s[4:19], s[26:27], s41 glc' if two else ''}
        s_add_u32 s{sSPIN}, s{sSPIN}, 1
        s_cmp_gt_u32 s{sSPIN}, {SPIN_MAX}
        s_cbranch_scc1 L_end
        s_waitcnt lgkmcnt(0)""")
        for b in ((sP, 4) if two else (sP,)):
            for i in range(0, n, 2):
                self.A(f"s_cmp_eq_u64 s[{b+i}:{b+i+1}], s[42:43]\ns_cbranch_scc0 {r}")
        self.A(f"{d}:")

    def gate(self, k, used):
        if k not in used:
            return
        l = self.lab("Lgate")
        self.A(f"s_cmp_eq_u32 s{sGATE}, {k}\ns_cbranch_scc0 {l}")
        self.arrive(C_GA, want_old=False)
        self.A(f"{l}:")

    def get_loc(self, vreg=None, sleep=0):
        l = self.lab("Lloc")
        if vreg is not None:
            self.A(f"v_readfirstlane_b32 s101, v{vreg}\ns_cmp_lg_u32 s101, 0\ns_cbranch_scc1 {l}_d")
        self.A(f"""
        v_mov_b32 v1, {C_LOC}
        s_mov_b32 s{sSPIN}, 0
        {l}:
        {f's_sleep {sleep}' if sleep else ''}
        ds_read_b32 v2, v1
        s_add_u32 s{sSPIN}, s{sSPIN}, 1
        s_cmp_gt_u32 s{sSPIN}, {SPIN_MAX}
        s_cbranch_scc1 L_end
        s_waitcnt lgkmcnt(0)
        v_readfirstlane_b32 s101, v2
        s_cmp_eq_u32 s101, 0
        s_cbranch_scc1 {l}
        {l}_d:
        s_lshr_b32 s101, s101, 1""")

    def early_flag(self, pos):
        if self.flagpos != pos:
            return
        l = self.lab("Lef")
        self.A(f"s_or_b32 s40, s101, s{sW}\ns_cbranch_scc1 {l}\ns_mov_b32 s40, s95")
        self.flag_store(self.nrepB)
        self.A(f"{l}:")

    def flag_store(self, n, vaddr=None, val=sT32):
        self.exec_set((1 << n) - 1)
        self.A(f"""
        {f'v_mul_u32_u24 v1, {REPP}, v0' if vaddr is None else ''}
        v_add_u32 v1, s40, v{1 if vaddr is None else vaddr}
        v_mov_b32 v2, s{val}
        global_store_dword v1, v2, s[26:27] sc1
        s_mov_b64 exec, -1""")

    def tagcheck(self, regs, vacc, vt):
        first = True
        for r in regs:
            if first:
                self.A(f"v_bitop3_b32 v{vacc}, v{r}, v{r+1}, s{sT10} bitop3:0x7e")
                self.A(f"v_bitop3_b32 v{vt}, v{r+2}, v{r+3}, s{sT10} bitop3:0x7e")
                self.A(f"v_or_b32 v{vacc}, v{vacc}, v{vt}")
                first = False
            else:
                self.A(f"v_bitop3_b32 v{vt}, v{r}, v{r+1}, s{sT10} bitop3:0x7e")
                self.A(f"v_bitop3_b32 v{vt+1}, v{r+2}, v{r+3}, s{sT10} bitop3:0x7e")
                self.A(f"v_or3_b32 v{vacc}, v{vacc}, v{vt}, v{vt+1}")

    def tagcheck2(self, regs, vacc, vt):
        out = []
        for i, r in enumerate(regs):
            d = vacc if i == 0 else vt + (i - 1) % 2
            self.A(f"v_bitop3_b32 v{d}, v{r}, v{r+3}, s{sT10} bitop3:0x7e")
            if i and i % 2 == 0:
                self.A(f"v_or3_b32 v{vacc}, v{vacc}, v{vt}, v{vt+1}")
        if len(regs) % 2 == 0:
            self.A(f"v_or_b32 v{vacc}, v{vacc}, v{vt}")

    def untag_list(self, regs, vacc, first=True):
        out = []
        for i, r in enumerate(regs):
            out += [f"v_xor_b32 v{r+k}, s{sT10}, v{r+k}" for k in range(4)]
            if i == 0 and first:
                out += [f"v_or3_b32 v{vacc}, v{r}, v{r+1}, v{r+2}", f"v_or_b32 v{vacc}, v{vacc}, v{r+3}"]
            else:
                out += [f"v_or3_b32 v{vacc}, v{vacc}, v{r}, v{r+1}", f"v_or3_b32 v{vacc}, v{vacc}, v{r+2}, v{r+3}"]
        return out

    def untag(self, regs, vacc, counted=False):
        ins = self.untag_list(regs, vacc)
        for i in range(len(regs)):
            if counted and i % 2 == 0:
                self.A(f"s_waitcnt vmcnt({max(0, len(regs) - 2 - i)})")
            self.A("\n".join(ins[6*i:6*i+6]))

    def pad2(self, fill):
        if len(fill) >= 2:
            self.A(fill.pop(0) + "\n" + fill.pop(0))
        else:
            self.A("s_nop 1")

    def tagtest(self, vacc, retry):
        if 'notag' in self.abl:
            return
        self.A(f"""
        v_and_b32 v{vacc}, {TAGM:#x}, v{vacc}
        v_cmp_ne_u32 vcc, 0, v{vacc}
        {'s_add_u32 s96, s96, 1' if self.stamps else ''}
        s_add_u32 s{sSPIN}, s{sSPIN}, 1
        s_cmp_gt_u32 s{sSPIN}, {SPIN_MAX}
        s_cbranch_scc1 L_end
        s_nop 1
        s_cbranch_vccnz {retry}""")

    def tag(self, r):
        self.A(f"v_bfi_b32 v{r}, s44, v3, v{r}")

    def reduce_scatter_rows(self, a):
        self.A(f"""
        s_nop 1
        v_permlane32_swap_b32 v{a}, v{a+2}
        v_permlane32_swap_b32 v{a+1}, v{a+3}
        v_add_f32 v{a}, v{a}, v{a+2}
        v_add_f32 v{a+1}, v{a+1}, v{a+3}
        s_nop 1
        v_permlane16_swap_b32 v{a}, v{a+1}
        v_add_f32 v{a}, v{a}, v{a+1}""")

    def allreduce_rows(self, a, t, op):
        self.A(f"""
        v_mov_b32 v{t}, v{a}
        s_nop 1
        v_permlane32_swap_b32 v{t}, v{a}
        {op} v{a}, v{a}, v{t}
        v_mov_b32 v{t}, v{a}
        s_nop 1
        v_permlane16_swap_b32 v{t}, v{a}
        {op} v{a}, v{a}, v{t}""")

    def allreduce_in_row(self, a, op="v_add_f32", fill=None):
        for m in ("quad_perm:[1,0,3,2]", "quad_perm:[2,3,0,1]", "row_half_mirror", "row_mirror"):
            self.pad2(fill if fill is not None else [])
            self.A(f"{op}_dpp v{a}, v{a}, v{a} {m} row_mask:0xf bank_mask:0xf")

    def bf16_round(self, d, s):
        self.A(f"v_cvt_pk_bf16_f32 v{d}, v{s}, v{s}\nv_and_b32 v{d}, 0xffff0000, v{d}")

    def build(self):
        A = self.A
        self.L.append(f"; @launch grid=(256,1,1) block=(512,1,1) lds={getattr(self, 'ldsb', None) or LDS_BYTES}")
        self.L.append('.amdgcn_target "amdgcn-amd-amdhsa--gfx950"')
        self.L += [".text", f".globl {KN}", ".p2align 12", ".p2align 8", f".type {KN},@function", f"{KN}:"]
        self.stamp(0)
        A(f"""
        s_cmp_ge_u32 s2, 256
        s_cbranch_scc1 L_end
        s_load_dwordx16 s[4:19], s[0:1], 0
        s_load_dwordx8 s[20:27], s[0:1], 64
        v_lshrrev_b32 v1, 6, v0
        s_and_b32 s{sX}, s2, 7
        s_lshr_b32 s{sY}, s2, 3
        v_readfirstlane_b32 s{sW}, v1""")
        if self.prefetch:
            A(f"""
            s_getpc_b64 s[46:47]
            L_pc:
            s_lshl_b32 s42, s{sY}, 9
            v_add_u32 v1, s42, v0
            v_min_u32 v1, L_codeend-L_pc-4, v1
            s_mov_b64 exec, 1
            global_load_ubyte v55, v1, s[46:47]
            s_mov_b64 exec, -1""")
        A(f"""
        v_and_b32 v0, 63, v0
""")
        if self.layout == 'mix':
            A(f"""
            s_lshr_b32 s{sHQ}, s{sY}, 3
            s_lshl2_add_u32 s{sHQ}, s{sX}, s{sHQ}
            s_and_b32 s{sRBQ}, s{sY}, 7
            s_lshr_b32 s{sG}, s{sX}, 1
            s_and_b32 s{sCH}, s{sX}, 1
            s_lshl4_add_u32 s{sCH}, s{sCH}, s{sY}
            s_lshl4_add_u32 s40, s{sX}, s{sY}
            s_mul_i32 s41, s{sX}, 14
            s_add_u32 s41, s41, s{sY}
            s_sub_u32 s41, s41, {YF}
            s_cmp_lt_u32 s{sY}, {YF}
            s_cselect_b32 s40, s40, s41
            s_cselect_b32 s{sTY}, 0, 1
            s_cmp_ge_u32 s{sY}, {YL}
            s_addc_u32 s{sTY}, s{sTY}, 0
            s_lshr_b32 s{sTL}, s40, 2
            s_and_b32 s{sRB}, s40, 3
            s_xor_b32 s{sUP}, s{sTL}, {self.upx}
            s_lshl1_add_u32 s{sR}, s{sX}, s{sY}
            s_sub_u32 s{sR}, s{sR}, {YL}""")
        else:
            if self.layout == 'odd':
                A(f"s_lshr_b32 s{sG}, s{sX}, 1\ns_and_b32 s{sTY}, s{sX}, 1\ns_xor_b32 s{sTY}, s{sTY}, 1")
            else:
                A(f"s_and_b32 s{sG}, s{sX}, 3\ns_lshr_b32 s{sTY}, s{sX}, 2")
                if self.layout == 'hi':
                    A(f"s_xor_b32 s{sTY}, s{sTY}, 1")
            A(f"""
            s_mov_b32 s{sCH}, s{sY}
            s_and_b32 s{sRB}, s{sY}, 3
            s_lshr_b32 s40, s{sY}, 2
            s_lshl3_add_u32 s{sHQ}, s{sG}, s40
            s_lshl2_add_u32 s{sRBQ}, s{sTY}, s{sRB}
            s_mul_i32 s41, s{sG}, s{sTY}
            s_sub_u32 s{sTL}, s{sHQ}, s41
            s_add_u32 s{sUP}, s40, {self.upx}
            s_cmp_ge_u32 s{sUP}, 7
            s_cselect_b32 s41, 7, 0
            s_sub_u32 s{sUP}, s{sUP}, s41
            s_sub_u32 s{sUP}, s{sUP}, s40
            s_add_u32 s{sUP}, s{sUP}, s{sTL}
            s_lshl2_add_u32 s{sR}, s{sG}, s{sRB}
            s_cmp_eq_u32 s40, 7
            s_cselect_b32 s41, s{sTY}, 0
            s_add_u32 s{sTY}, s{sTY}, s41""")
        A(f"""
""")
        if self.ftrans:
            A(f"""
            s_cmp_eq_u32 s{sTY}, 1
            s_cselect_b32 s{sTL}, s{sY}, s{sTL}
            s_cselect_b32 s{sRB}, s{sG}, s{sRB}
            s_xor_b32 s{sUP}, s{sTL}, {self.upx}""")
        A(f"""
        {f's_mov_b32 s{sHQ}, s{sY}' if self.qmap == 'rows' else ''}
        {f's_mov_b32 s{sRBQ}, s{sX}' if self.qmap == 'rows' else ''}
        s_cmp_lt_u32 s{sX}, 2
        s_cselect_b32 s40, {self.gateA[0]}, {self.gateA[1]}
        s_cselect_b32 s41, {self.gateF[0]}, {self.gateF[1]}
        s_cmp_eq_u32 s{sTY}, 0
        s_cselect_b32 s{sGATE}, s40, s41
        s_movk_i32 s44, {TAGM:#x}
        v_and_b32 v4, 15, v0
        v_lshrrev_b32 v5, 4, v0""")
        if self.stamps or self.probe:
            A(f"s_mov_b32 s96, 0\ns_mov_b32 s94, s{sW}")
        if self.probe:
            A(f"s_waitcnt lgkmcnt(0)\ns_mov_b32 s{sSTAMP+2*self.probe[2]}, s{sSTAMP}")
        A(f"""
        s_cmp_lt_u32 s{sW}, 4
        s_cbranch_scc1 L_awave""")
        L0 = self.L
        self.L = []
        self.swave()
        cut = self.L.index("L_sdispatch:")
        shead, stail = self.L[:cut], self.L[cut:]
        self.L = L0 + shead
        A("s_branch L_sdispatch\nL_awave:")
        self.awave()
        self.L += stail
        self.final()
        A("L_end:")
        A("s_endpgm")
        self.L.append("L_codeend:")
        nv = getattr(self, 'nvo', None) or 200
        self.L += ['.section .rodata,"a"', ".p2align 6", f".amdhsa_kernel {KN}",
                   f"  .amdhsa_next_free_vgpr {nv}", "  .amdhsa_next_free_sgpr 102", f"  .amdhsa_accum_offset {nv}",
                   "  .amdhsa_group_segment_fixed_size 0", "  .amdhsa_kernarg_size 96", "  .amdhsa_user_sgpr_count 2",
                   "  .amdhsa_user_sgpr_kernarg_segment_ptr 1", "  .amdhsa_system_sgpr_workgroup_id_x 1",
                   "  .amdhsa_float_denorm_mode_32 3", ".end_amdhsa_kernel"]
        return "\n".join(self.L) + "\n"

    def write_stamps(self, n):
        if self.probe:
            wg, wave, k = self.probe[:3]
            ty = self.probe[3] if len(self.probe) > 3 else None
            self.stamp(n)
            d = self.lab("Lprobe_done"); l = self.lab("Lprobe")
            self.A(f"""
            s_waitcnt lgkmcnt(0)
            s_getreg_b32 s41, hwreg(HW_REG_XCC_ID, 0, 4)
            {f's_cmp_eq_u32 s41, {-wg-100}' if wg <= -100 else f"s_cmp_eq_u32 s2, {wg if wg >= 0 else 's2'}"}
            s_cbranch_scc0 {d}
            s_cmp_eq_u32 s94, {wave}
            s_cbranch_scc0 {d}
            s_cmp_eq_u32 s{sTY}, {ty if ty is not None else f's{sTY}'}
            s_cbranch_scc0 {d}
            s_add_u32 s40, s{sSTAMP+2*k}, 4000
            {l}:
            s_memrealtime s[42:43]
            s_waitcnt lgkmcnt(0)
            s_sub_u32 s41, s42, s40
            s_cmp_lt_i32 s41, 0
            s_cbranch_scc1 {l}
            {d}:""")
            return
        if not self.stamps:
            return
        self.stamp(n)
        A = self.A
        A(f"""
        s_waitcnt lgkmcnt(0)
        s_mov_b64 exec, -1
        s_lshl3_add_u32 s40, s2, s94
        s_lshl_b32 s40, s40, 6
        s_add_u32 s40, s40, {WS_ST:#x}
        v_mov_b32 v1, 0""")
        for k in range(n + 1):
            A(f"v_writelane_b32 v1, s{sSTAMP+2*k}, {k}")
        A(f"""
        s_getreg_b32 s41, hwreg(HW_REG_XCC_ID)
        s_and_b32 s41, s41, 0xf
        s_lshl4_add_u32 s41, s96, s41
        v_writelane_b32 v1, s41, 15
        v_lshl_add_u32 v2, v0, 2, s40
        s_mov_b64 exec, 0xffff
        global_store_dword v2, v1, s[26:27]""")

    def swave(self):
        A = self.A
        vI, vJ = 4, 5
        vAq, vA1, vA2, vA3, vAw, vRed, vPub = 6, 7, 8, 9, 10, 11, 14
        vPS, vXQ, vXG, vSEL, aQ, aG, aU, vT = 16, 24, 28, 36, 40, 44, 48, 52
        RING, BIG = 56, 120
        A(f"""
        L_swave:
        s_sub_u32 s{sW}, s{sW}, 4
        s_lshl2_add_u32 s40, s{sRBQ}, s{sW}
        s_lshl_b32 s40, s40, 18
        s_lshl_b32 s41, s{sHQ}, 8
        s_add_u32 s40, s40, s41
        v_lshlrev_b32 v13, 4, v{vI}
        v_lshl_add_u32 v{vAq}, v{vJ}, 13, v13
        v_add_u32 v{vAq}, s40, v{vAq}
        s_mov_b32 s45, 0x8000""")
        if self.wideq:
            A(f"""
            s_lshl2_add_u32 s40, s2, s{sW}
            s_lshl_b32 s40, s40, 13
            v_lshl_add_u32 v{vAq}, v0, 4, s40
            s_movk_i32 s45, 0x400""")
        A("s_waitcnt lgkmcnt(0)")
        for m in range(8):
            A(f"global_load_dwordx4 v[{RING+4*m}:{RING+4*m+3}], v{vAq}, s[10:11] nt")
            if m < 7:
                A(f"v_add_u32 v{vAq}, s45, v{vAq}")
        A(f"s_load_dword s{sT32}, s[26:27], {WS_E}")
        self.stamp(1)
        A(f"""
        ; wo / down: rows tile*128 + 8*m + (l>>3), columns cb*256 + sw*64 + 8*(l&7)
        v_lshrrev_b32 v12, 3, v0
        v_and_b32 v1, 7, v0
        v_lshlrev_b32 v2, 4, v1
        v_lshl_add_u32 v{vAw}, v12, 11, v2
        s_lshl2_add_u32 s42, s{sRB}, s{sW}
        s_lshl_b32 s40, s42, 7
        s_lshl_b32 s41, s{sTL}, 18
        s_add_u32 s40, s40, s41
        v_add_u32 v{vAw}, s40, v{vAw}
        s_movk_i32 s45, 0x4000""")
        if self.widew:
            A(f"""
            s_lshl_b32 s40, s{sW}, 16
            s_add_u32 s41, s41, s40
            s_lshl_b32 s40, s{sRB}, 9
            s_add_u32 s41, s41, s40
            v_lshrrev_b32 v2, 5, v0
            v_lshlrev_b32 v2, 11, v2
            v_and_b32 v{vAw}, 31, v0
            v_lshl_add_u32 v{vAw}, v{vAw}, 4, v2
            v_add_u32 v{vAw}, s41, v{vAw}
            s_movk_i32 s45, 0x1000""")
        A(f"""
        v_lshl_add_u32 v1, v1, 1, v{vJ}
        s_lshl_b32 s40, s42, 8
        v_lshl_add_u32 v{vPub}, v1, 4, s40
        ; LDS offset of this lane's partial granule: (2*(l&15) + J)*16
        v_lshl_add_u32 v{vRed}, v{vI}, 1, v{vJ}
        v_lshlrev_b32 v{vRed}, 4, v{vRed}
        s_mov_b32 s40, 0xaaaaaaaa
        s_mov_b32 s41, 0xaaaaaaaa
        v_mov_b32 v1, 0x0c0c0100
        v_mov_b32 v2, 0x01000c0c
        v_cndmask_b32 v1, v1, v2, s[40:41]
        v_mov_b32 v2, 0x0c0c0302
        v_mov_b32 v3, 0x03020c0c
        v_cndmask_b32 v2, v2, v3, s[40:41]
        v_mov_b32 v3, 0x0c0c0c0c""")
        for d in range(4):
            m = 0x03030303 << (2*d)
            A(f"""
            s_mov_b32 s40, {m:#x}
            s_mov_b32 s41, {m:#x}
            v_cndmask_b32 v{vPS+d}, v3, v1, s[40:41]
            v_cndmask_b32 v{vPS+4+d}, v3, v2, s[40:41]""")
        A(f"""
        s_barrier
        s_waitcnt lgkmcnt(0)
        s_add_u32 s{sT32}, s{sT32}, 1
        s_and_b32 s{sT10}, s{sT32}, s44
        v_mov_b32 v3, s{sT10}
        s_cmp_ge_u32 s{sTY}, 1
        s_cbranch_scc1 L_s_notattn
        L_sdispatch:""")

        def sel(m, dst, src):
            for d in range(4):
                A(f"v_perm_b32 v{dst+d}, v{src+(m>>1)}, v{src+(m>>1)}, v{vPS+4*(m&1)+d}")

        def mfma(acc, s, w, first):
            c = "0" if first else f"v[{acc}:{acc+3}]"
            A(f"v_mfma_f32_16x16x32_bf16 v[{acc}:{acc+3}], v[{s}:{s+3}], v[{w}:{w+3}], {c}")

        def get_xn(ffn):
            A(f"s_lshl_b32 s41, s{sW}, 2\ns_add_u32 s41, s41, {C_XN}")
            self.lds_spin("s41", 1, sleep=0)
            A(f"""
            s_lshl_b32 s40, s{sW}, 6
            v_lshl_add_u32 v2, v{vJ}, 4, s40
            ds_read_b128 v[{vXQ}:{vXQ+3}], v2 offset:{L_XQ}""")
            if ffn:
                A(f"""
                v_lshlrev_b32 v2, 1, v2
                ds_read_b128 v[{vXG}:{vXG+3}], v2 offset:{L_XG}
                ds_read_b128 v[{vXG+4}:{vXG+7}], v2 offset:{L_XG+16}""")
            A("s_waitcnt lgkmcnt(0)")
            self.stamp(3)
            sel(0, vSEL, vXQ)
            A("s_nop 1")

        def red_write(accs, lbase, shift, cnt):
            A(f"s_lshl_b32 s40, s{sW}, {shift}\nv_add_u32 v1, s40, v{vRed}\ns_mov_b32 exec_hi, 0")
            for i, a in enumerate(accs):
                A(f"ds_write_b128 v1, v[{a}:{a+3}] offset:{lbase + 512*i}")
            self.arrive(cnt, want_old=False)

        def kvflag(c):
            A(f"""
            s_lshl_b32 s40, s{sW}, 2
            s_mov_b64 exec, 1
            v_mov_b32 v1, s40
            v_mov_b32 v2, 1
            ds_write_b32 v1, v2 offset:{c}
            s_mov_b64 exec, -1""")

        def issue(op, i):
            kind, m = op
            slot = RING + 4*(i % 16)
            if kind in "kv":
                va, sb, x = (vA1, 6, 64*(m & 3)) if kind == "k" else (vA2, 8, 128*(m & 1))
                if m % 4 == 0:
                    if i > 8:
                        A(f"s_add_u32 s47, s47, {4096 if m == 4 else L_V - L_K - 4096}")
                    A("s_mov_b32 m0, s47")
                    if m == 4:
                        A(f"v_add_u32 v{va}, 4096, v{va}")
                A(f"v_xor_b32 v1, {x}, v{va}")
                A(f"global_load_lds_dwordx4 v1, s[{sb}:{sb+1}] offset:{1024*(m&3)} nt")
            elif kind in "gu":
                va, sb = (vA1, 16) if kind == "g" else (vA2, 18)
                A(f"global_load_dwordx4 v[{slot}:{slot+3}], v{va}, s[{sb}:{sb+1}] nt")
                if m < 15:
                    A(f"v_add_u32 v{va}, s{47 if (self.stag and m % 2) else 46}, v{va}")
            elif kind in "do":
                sb = 20 if kind == "d" else 12
                A(f"global_load_dwordx4 v[{BIG+4*m}:{BIG+4*m+3}], v{vAw}, s[{sb}:{sb+1}] nt")
                if m < 15:
                    A(f"v_add_u32 v{vAw}, s45, v{vAw}")

        def process(op, i, ffn):
            kind, m = op
            slot = RING + 4*(i % 16)
            if kind == "q":
                mfma(aQ, vSEL, slot, m == 0)
                if m < 7:
                    sel(m + 1, vSEL, vXQ)
                    A("s_nop 1")
                else:
                    if ffn:
                        sel(0, vSEL, vXG)
                        A("s_nop 0")
                    else:
                        A("s_nop 4")
                    red_write([aQ], L_RQ, 9, C_Q)
                    self.stamp(4)
            elif kind in "kv" and m == 7:
                l = self.lab("Lkvf")
                if self.after_pause:
                    A(f"s_cmp_lg_u32 s43, 0\ns_cbranch_scc1 {l}")
                kvflag(C_K if kind == "k" else C_V)
                if kind == "v":
                    self.stamp(5)
                A(f"{l}:")
            elif kind == "g":
                mfma(aG, vSEL, slot, m == 0)
            elif kind == "u":
                mfma(aU, vSEL, slot, m == 0)
                if m < 15:
                    sel(m + 1, vSEL, vXG)
                    A("s_nop 1")
                else:
                    A("s_nop 4")
                    red_write([aG, aU], L_RG, 10, C_G)
                    self.stamp(6)

        def stream(ops, wfun, ffn, start=8, landed=0, hold=0, holdcnt=0):
            if 'noa' in self.abl or 'nofin' in self.abl:
                hold = 0
            for i in range(start, len(ops)):
                w = wfun(i)
                if hold and i == len(ops) - hold:
                    assert landed >= start
                    self.lds_spin(C_HB, holdcnt, sleep=1)
                if hold and i >= len(ops) - hold:
                    w = max(w, hold)
                A(f"s_waitcnt vmcnt({w-1})")
                issue(ops[i], i)
                if i < self.xnpos:
                    continue
                if i == self.xnpos:
                    get_xn(ffn)
                while landed <= i - w:
                    process(ops[landed], landed, ffn); landed += 1
            return landed

        def drain(ops, landed, upto, ffn):
            n = len(ops)
            while landed < upto:
                if ops[landed][0] in "qgu":
                    A(f"s_waitcnt vmcnt({n - 1 - landed})")
                    process(ops[landed], landed, ffn)
                landed += 1
            return landed

        def final_gemv(val, first, nops, landed, wsb):
            A(f"""
            v_lshlrev_b32 v15, 5, v12
            s_mul_i32 s40, s{sTL}, {ROWP}
            s_add_u32 s40, s40, {wsb:#x}
            v_add_u32 v{vPub}, s40, v{vPub}""")
            floc = self.flocal == 'xt' and wsb == WS_BF
            if floc:
                self.get_loc()
            rd = f"ds_read_b128 v[{vXG}:{vXG+3}], v15 offset:{L_VEC}\nds_read_b128 v[{vXG+4}:{vXG+7}], v15 offset:{L_VEC+16}"
            if 'noa' not in self.abl and 'nofin' not in self.abl:
                self.lds_spin(C_FO, val, sleep=0, reads=rd)
            else:
                A(rd + "\ns_waitcnt lgkmcnt(0)")
            self.stamp(8)
            self.L.append(".p2align 3")
            late = [m for m in range(16) if first + m >= landed]
            early = [m for m in range(16) if first + m < landed]
            for k, m in enumerate(early):
                sel(m, RING + 4*m, vXG)
                if k:
                    mfma(aQ, RING + 4*early[k-1], BIG + 4*early[k-1], k == 1)
            for k, m in enumerate(late):
                sel(m, RING + 4*m, vXG)
                if k == 0 and early:
                    mfma(aQ, RING + 4*early[-1], BIG + 4*early[-1], len(early) == 1)
            self.stamp(9)
            for k, m in enumerate(late):
                A(f"s_waitcnt vmcnt({nops - 1 - (first + m)})")
                mfma(aQ, RING + 4*m, BIG + 4*m, k == 0 and not early)
            g = vT
            A(f"""
            s_nop 7
            v_permlane32_swap_b32 v{aQ}, v{aQ+2}
            v_permlane32_swap_b32 v{aQ+1}, v{aQ+3}
            s_nop 0
            v_add_f32_dpp v{g}, v{aQ+2}, v{aQ} row_shl:8 row_mask:0xf bank_mask:0xf bound_ctrl:1
            v_add_f32_dpp v{g+1}, v{aQ+3}, v{aQ+1} row_shl:8 row_mask:0xf bank_mask:0xf bound_ctrl:1""")
            self.tag(g); self.tag(g + 1)
            A(f"""
            s_nop 0
            v_permlane32_swap_b32 v{g}, v{g+2}
            v_permlane32_swap_b32 v{g+1}, v{g+3}
            s_mov_b64 exec, 0x00ff00ff""")
            if floc:
                l = self.lab("Lfrem")
                A(f"""
                s_cmp_lg_u32 s101, 0
                s_cbranch_scc1 {l}
                global_store_dwordx4 v{vPub}, v[{g}:{g+3}], s[26:27]
                s_branch {l}_d
                {l}:
                global_store_dwordx4 v{vPub}, v[{g}:{g+3}], s[26:27] sc1
                {l}_d:""")
            else:
                A(f"global_store_dwordx4 v{vPub}, v[{g}:{g+3}], s[26:27] {'' if (self.flocal == 'force' and wsb == WS_BF) else 'sc1'}")
            A("s_mov_b64 exec, -1")

        qops = [("q", m) for m in range(8)]
        A(f"""
        s_lshl_b32 s40, s{sG}, 24
        s_lshl_b32 s41, s{sCH}, 15
        s_add_u32 s40, s40, s41
        s_lshl_b32 s47, s{sW}, 13
        s_add_u32 s40, s40, s47
        s_add_u32 s47, s47, {L_K}
        s_add_u32 s40, s40, {(65536-4096)*256:#x}
        v_xor_b32 v1, v{vI}, v{vJ}
        v_lshlrev_b32 v1, 4, v1
        v_lshl_add_u32 v1, v{vJ}, 8, v1
        v_add_u32 v{vA1}, s40, v1
        v_lshlrev_b32 v1, 1, v{vJ}
        v_xor_b32 v1, v{vI}, v1
        v_lshlrev_b32 v1, 4, v1
        v_lshl_add_u32 v1, v{vJ}, 8, v1
        v_add_u32 v{vA2}, s40, v1""")
        ops = qops + [("k", m) for m in range(8)] + [("v", m) for m in range(8)]
        WA = self.WA
        self.after_pause = False
        landed = stream(ops, lambda i: WA[0] if i < 14 else WA[1], False)
        self.after_pause = True
        A("s_mov_b32 s43, 0")
        if self.pause and 'noa' not in self.abl:
            go = self.lab("Lgo")
            if 0 in self.gateA:
                A(f"s_cmp_eq_u32 s{sGATE}, 0\ns_cbranch_scc1 {go}")
            A(f"""
            v_mov_b32 v1, {C_GA}
            ds_read_b32 v2, v1
            s_waitcnt lgkmcnt(0)
            v_readfirstlane_b32 s{sTMP}, v2
            s_cmp_eq_u32 s{sTMP}, 4
            s_cbranch_scc1 {go}
            s_waitcnt vmcnt(0)
            s_mov_b32 s43, 1""")
            assert landed >= 8
            if landed < 16:
                kvflag(C_K)
            kvflag(C_V)
            self.stamp(5)
            self.lds_spin(C_GA, 4, sleep=1)
            A(f"{go}:")
            self.stamp(6)
        ops = ops + [("o", m) for m in range(16)]
        for w3 in ([self.WAe, WA[2]] if self.WAe else [WA[2]]):
            nxt = self.lab("Lsa")
            if self.WAe and w3 == self.WAe:
                A(f"s_cmp_lt_u32 s{sX}, 2\ns_cbranch_scc0 {nxt}")
            l2 = stream(ops, lambda i: w3 if (i < 32 or len(WA) < 4) else WA[3], False, start=24, landed=landed, hold=self.HA, holdcnt=4)
            assert l2 >= 24
            self.stamp(7)
            final_gemv(4, 24, 40, l2, WS_BS)
            self.write_stamps(10)
            A(f"s_endpgm\n{nxt}:")
        A(f"""
        L_s_notattn:
        s_cmp_ge_u32 s{sTY}, 2
        s_cbranch_scc1 L_s_last
        s_lshl2_add_u32 s40, s{sRB}, s{sW}
        s_mul_i32 s40, s40, {64*7168}""")
        if self.stag:
            A(f"""
            s_and_b32 s41, s{sW}, 1
            s_mul_i32 s42, s41, {4*7168}
            s_add_u32 s40, s40, s42""")
        A(f"""
        v_mul_u32_u24 v1, 7168, v{vJ}
        v_add3_u32 v1, v1, v13, s40
        s_lshl_b32 s41, s{sTL}, 8
        v_add_u32 v{vA1}, s41, v1
        s_lshl_b32 s41, s{sUP}, 8
        v_add_u32 v{vA2}, s41, v1
        s_movk_i32 s46, {7168*4}""")
        if self.stag:
            A("s_lshl_b32 s42, s42, 1\ns_add_u32 s47, s46, s42\ns_sub_u32 s46, s46, s42")
        if self.wideg:
            wd = self.wideg; nt = 7168 // wd; rpi = 1024 // wd; lpr = wd // 16
            import math
            A(f"""
            s_lshl2_add_u32 s40, s{sTL}, s{sRB}
            s_mul_hi_u32 s41, s40, {-(-(1 << 32) // nt)}
            s_mul_i32 s42, s41, {nt}
            s_sub_u32 s42, s40, s42
            s_lshl2_add_u32 s41, s41, s{sW}
            s_mul_i32 s41, s41, {16*rpi*7168}
            s_mul_i32 s42, s42, {wd}
            s_add_u32 s41, s41, s42
            v_lshrrev_b32 v1, {int(math.log2(lpr))}, v0
            v_mul_u32_u24 v1, 7168, v1
            v_and_b32 v2, {lpr-1}, v0
            v_lshl_add_u32 v1, v2, 4, v1
            v_add_u32 v{vA1}, s41, v1
            v_mov_b32 v{vA2}, v{vA1}
            s_movk_i32 s46, {7168*rpi}""")
        ops = qops + [(k, m) for m in range(16) for k in "gu"] + [("d", m) for m in range(16)]
        WF = self.WF
        landed = stream(ops[:40], lambda i: WF[0] if i < 14 else WF[1], True)
        gated = self.lab("Lsfg")
        if any(self.gateF) and 'noa' not in self.abl:
            A(f"s_cmp_lg_u32 s{sGATE}, 0\ns_cbranch_scc1 {gated}")
        if 0 in self.gateF or 'noa' in self.abl:
            l2 = stream(ops, lambda i: WF[2] if (i < 48 or len(WF) < 4) else WF[3], True, start=40, landed=landed, hold=self.HF, holdcnt=1)
            assert l2 >= 40
            self.stamp(7)
            final_gemv(1, 40, 56, l2, WS_BF)
            self.write_stamps(10)
            A("s_endpgm")
        if any(self.gateF) and 'noa' not in self.abl:
            A(f"{gated}:")
            l2 = drain(ops[:40], landed, 40, True)
            self.lds_spin(C_GA, 1, sleep=1)
            l2 = stream(ops, lambda i: self.WFe or WF[2], True, start=40, landed=l2)
            self.stamp(7)
            final_gemv(1, 40, 56, l2, WS_BF)
            self.write_stamps(10)
            A("s_endpgm")
        A("L_s_last:")
        get_xn(False)
        drain(qops, 0, 8, False)
        A(f"s_add_u32 s{sW}, s{sW}, 4\ns_branch L_final")

    def red_publish(self, lbase, pitch, cnt, nl, addr_code, nrep, flagv=None, sleep=1, val=sT32, local=False):
        A = self.A
        t = 16
        A("v_lshlrev_b32 v10, 4, v0")
        A(addr_code)
        if local and self.warm is not None:
            self.exec_set(0x0101010101010101)
            A(f"global_load_dword v54, v11, s[26:27] {self.warm}\ns_mov_b64 exec, -1")
        self.lds_spin(cnt, 4, sleep=sleep, reads="\n".join(f"ds_read_b128 v[{t+4*k}:{t+4*k+3}], v10 offset:{lbase+pitch*k}" for k in range(4)))
        if local and self.earlyD:
            l = self.lab("Lef")
            A(f"s_cmp_lg_u32 s101, 0\ns_cbranch_scc1 {l}")
            self.flag_store(nrep, flagv, val)
            A(f"{l}:")
        if nl == 32:
            A("s_mov_b32 exec_hi, 0")
        for h in (0, 2):
            A(f"v_pk_add_f32 v[{t+h}:{t+h+1}], v[{t+h}:{t+h+1}], v[{t+4+h}:{t+5+h}]")
            A(f"v_pk_add_f32 v[{t+8+h}:{t+9+h}], v[{t+8+h}:{t+9+h}], v[{t+12+h}:{t+13+h}]")
        for h in (0, 2):
            A(f"v_pk_add_f32 v[{t+h}:{t+h+1}], v[{t+h}:{t+h+1}], v[{t+8+h}:{t+9+h}]")
        for r in range(4):
            A(f"v_add_u32 v{t+r}, {(TAGM + 1) // 2:#x}, v{t+r}")
        for r in range(4):
            self.tag(t + r)
        if local:
            rem = self.lab("Lremote"); fl = self.lab("Lpub")
            A(f"""
            s_cmp_lg_u32 s101, 0
            s_cbranch_scc1 {rem}
            global_store_dwordx4 v11, v[{t}:{t+3}], s[26:27]
            s_branch {fl if not self.earlyD else fl + '_done'}
            {rem}:
            global_store_dwordx4 v11, v[{t}:{t+3}], s[26:27] sc1
            {fl}:""")
            self.flag_store(nrep, flagv, val)
            A(f"{fl}_done:")
        else:
            A(f"global_store_dwordx4 v11, v[{t}:{t+3}], s[26:27] sc1")
            self.flag_store(nrep, flagv, val)

    def awave(self):
        A = self.A
        vKF, vVF, vGT, vU = 56, 184, 216, 232
        vQF, vS = 216, 16
        vI, vJ = 4, 5
        vA0, vA1 = 6, 7
        vT = 16
        x0, xr = 56, 72
        A(f"""
        s_setprio 3
        s_lshl2_add_u32 s40, s{sRB}, s{sW}
        s_lshl_b32 s40, s40, 6
        v_lshlrev_b32 v14, 5, v0
        v_add_lshl_u32 v1, v0, s40, 1
        s_lshl2_add_u32 s40, s{sRBQ}, s{sW}
        s_lshl_b32 s40, s40, 5
        v_and_b32 v15, 31, v0
        v_add_lshl_u32 v15, v15, s40, 1
        v_mov_b32 v10, 0
        v_and_b32 v2, 31, v0
        v_lshlrev_b32 v2, 2, v2
        ds_write_b32 v2, v10 offset:{L_CNT}
        s_waitcnt lgkmcnt(0)
        global_load_dwordx4 v[{xr}:{xr+3}], v14, s[4:5]
        global_load_dwordx4 v[{xr+4}:{xr+7}], v14, s[4:5] offset:16
        global_load_ushort v{xr+8}, v15, s[4:5]
        global_load_ushort v{xr+9}, v1, s[4:5]
        s_load_dword s{sT32}, s[26:27], {WS_E}""")
        if self.touch:
            tf = self.lab("Ltf"); td = self.lab("Ltd")
            A(f"""
            s_cmp_eq_u32 s{sW}, 0
            s_cbranch_scc0 {td}
            s_lshl_b32 s41, s{sTL}, 18
            s_cmp_eq_u32 s{sTY}, 0
            s_cbranch_scc0 {tf}
            s_lshl_b32 s40, s{sG}, 24
            s_add_u32 s40, s40, {(65536-4096)*256:#x}
            s_load_dword s48, s[6:7], s40
            s_load_dword s49, s[8:9], s40
            s_load_dword s50, s[12:13], s41
            s_branch {td}
            {tf}:
            s_load_dword s48, s[22:23], 0
            s_cmp_eq_u32 s{sTY}, 1
            s_cbranch_scc0 {td}
            s_mul_i32 s40, s{sRB}, {256*7168}
            s_add_u32 s42, s40, {255*7168}
            s_load_dword s49, s[16:17], s40
            s_load_dword s50, s[18:19], s40
            s_load_dword s51, s[16:17], s42
            s_load_dword s52, s[18:19], s42
            s_load_dword s53, s[20:21], s41
            {td}:""")
        A("s_barrier")
        self.stamp(1)
        if self.xt:
            nx = self.lab("Lnoxt")
            A(f"""
            s_waitcnt lgkmcnt(0)
            s_cmp_lg_u32 s{sW}, 0
            s_cbranch_scc1 {nx}
            ; wave 0 announces the die this workgroup runs on
            s_getreg_b32 s45, hwreg(HW_REG_XCC_ID, 0, 4)
            s_lshl_b32 s45, s45, 28
            s_add_u32 s41, s{sT32}, 1
            s_xor_b32 s45, s45, s41
            s_lshl_b32 s95, s{sX}, 7
            s_add_u32 s95, s95, {WS_XA:#x}
            s_lshl2_add_u32 s41, s{sY}, s95
            s_mov_b64 exec, 1
            v_mov_b32 v1, s41
            v_mov_b32 v2, s45
            global_store_dword v1, v2, s[26:27] sc1
            s_mov_b64 exec, -1
            s_waitcnt vmcnt(1)
            s_branch {nx}_ln
            {nx}:
            s_waitcnt vmcnt(0)
            {nx}_ln:""")
        else:
            A(f"s_waitcnt vmcnt(0) lgkmcnt(0)")
        self.stamp(11)
        for i in range(8):
            A(f"v_lshlrev_b32 v{x0+2*i}, 16, v{xr+i}\nv_and_b32 v{x0+2*i+1}, 0xffff0000, v{xr+i}")
        A(f"v_pk_add_f32 v[{vT}:{vT+1}], v[{x0}:{x0+1}], v[{x0+2}:{x0+3}]")
        A(f"v_pk_add_f32 v[{vT+2}:{vT+3}], v[{x0+4}:{x0+5}], v[{x0+6}:{x0+7}]")
        for i in range(4, 8, 2):
            A(f"v_pk_add_f32 v[{vT}:{vT+1}], v[{vT}:{vT+1}], v[{x0+2*i}:{x0+2*i+1}]")
            A(f"v_pk_add_f32 v[{vT+2}:{vT+3}], v[{vT+2}:{vT+3}], v[{x0+2*i+2}:{x0+2*i+3}]")
        A(f"v_pk_add_f32 v[{vT}:{vT+1}], v[{vT}:{vT+1}], v[{vT+2}:{vT+3}]")
        A(f"v_add_f32 v{vT}, v{vT}, v{vT+1}")
        self.allreduce_in_row(vT)
        self.allreduce_rows(vT, vT+1, "v_add_f32")
        A(f"v_mul_f32 v{vT}, {f2u(1.0/1024):#x}, v{vT}")
        for i in range(8):
            A(f"v_pk_add_f32 v[{x0+2*i}:{x0+2*i+1}], v[{x0+2*i}:{x0+2*i+1}], v[{vT}:{vT+1}] op_sel_hi:[1,0] neg_lo:[0,1] neg_hi:[0,1]")
        A(f"v_pk_mul_f32 v[{vT+2}:{vT+3}], v[{x0}:{x0+1}], v[{x0}:{x0+1}]")
        A(f"v_pk_mul_f32 v[{vT+4}:{vT+5}], v[{x0+2}:{x0+3}], v[{x0+2}:{x0+3}]")
        for i in range(2, 8):
            d = vT + 2 + 2*(i & 1)
            A(f"v_pk_fma_f32 v[{d}:{d+1}], v[{x0+2*i}:{x0+2*i+1}], v[{x0+2*i}:{x0+2*i+1}], v[{d}:{d+1}]")
        A(f"v_pk_add_f32 v[{vT+2}:{vT+3}], v[{vT+2}:{vT+3}], v[{vT+4}:{vT+5}]")
        A(f"v_add_f32 v{vT+2}, v{vT+2}, v{vT+3}")
        r = xr + 8
        self.bf16_round(vT, vT)
        self.allreduce_in_row(vT+2)
        A(f"""
        v_lshlrev_b32 v{r}, 16, v{r}
        v_lshlrev_b32 v{r+1}, 16, v{r+1}
        v_pk_add_f32 v[{r}:{r+1}], v[{r}:{r+1}], v[{vT}:{vT+1}] op_sel_hi:[1,0] neg_lo:[0,1] neg_hi:[0,1]""")
        self.allreduce_rows(vT+2, vT+3, "v_add_f32")
        A(f"v_mul_f32 v{vT+2}, {f2u(1.0/1024):#x}, v{vT+2}")
        self.bf16_round(vT+2, vT+2)
        A(f"v_add_f32 v{vT+2}, {f2u(1e-5):#x}, v{vT+2}")
        self.bf16_round(vT+2, vT+2)
        A(f"""
        v_sqrt_f32 v{vT+2}, v{vT+2}
        v_cvt_pk_bf16_f32 v{r+1}, v{r}, v{r+1}
        v_lshlrev_b32 v{r}, 16, v{r+1}
        v_and_b32 v{r+1}, 0xffff0000, v{r+1}""")
        self.bf16_round(vT+2, vT+2)
        A(f"""
        v_rcp_f32 v{vT+2}, v{vT+2}
        v_and_b32 v1, 3, v0
        v_lshrrev_b32 v2, 2, v0
        v_lshlrev_b32 v2, 1, v2
        v_pk_mul_f32 v[{r}:{r+1}], v[{r}:{r+1}], v[{vT+2}:{vT+3}] op_sel_hi:[1,0]
        s_lshl_b32 s40, s{sW}, 6
        v_lshl_add_u32 v10, v1, 4, s40
        v_lshl_add_u32 v11, v10, 1, v2
        v_add_u32 v10, v10, v2""")
        if self.stag:
            A(f"s_and_b32 s41, s{sW}, 1\ns_lshl_b32 s41, s41, 1\nv_xor_b32 v11, s41, v11")
        A(f"""
        v_cvt_pk_bf16_f32 v{r}, v{r}, v{r+1}
        s_lshl_b32 s40, s{sW}, 2
        v_mov_b32 v2, s40
        v_mov_b32 v1, 1
        ds_write_b16_d16_hi v11, v{r} offset:{L_XG}
        s_mov_b32 exec_hi, 0
        ds_write_b16 v10, v{r} offset:{L_XQ}
        s_mov_b64 exec, 1
        ds_write_b32 v2, v1 offset:{C_XN}
        s_mov_b64 exec, -1
        s_add_u32 s{sT32}, s{sT32}, 1
        s_and_b32 s{sT10}, s{sT32}, s44
        v_mov_b32 v3, s{sT10}""")
        self.stamp(12)
        if self.wtest:
            pre, mod, n = self.wtest
            A(f"s_cmp_eq_u32 s{sW}, 3\ns_cbranch_scc0 L_adone")
            A(f"s_mul_i32 s42, s2, {n*1024}\ns_add_u32 s42, s42, 0x800000\nv_lshl_add_u32 v10, v0, 4, s42")
            if pre == 's':
                A("s_add_u32 s40, s26, s42\ns_addc_u32 s41, s27, 0")
                for i in range(n*16):
                    A(f"s_load_dword s48, s[40:41], {64*i} glc")
                A("s_waitcnt lgkmcnt(0)")
            elif pre:
                for i in range(n):
                    A(f"global_load_dwordx4 v[20:23], v10, s[26:27] offset:{1024*i} {pre[1:]}")
                A("s_waitcnt vmcnt(0)")
            self.lds_spin(C_Q, 4, sleep=1)
            A("s_sleep 64")
            for i in range(n):
                A(f"global_store_dwordx4 v10, v[16:19], s[26:27] offset:{1024*i} {mod}")
        if 'noa' in self.abl:
            A("s_branch L_adone")
        if self.xt:
            pass
        elif self.local:
            A(f"""
            s_getreg_b32 s45, hwreg(HW_REG_XCC_ID, 0, 4)
            s_lshl_b32 s45, s45, 28
            s_cmp_eq_u32 s{sTY}, 0
            s_cselect_b32 s45, s45, 0
            s_xor_b32 s45, s45, s{sT32}""")
        nq = self.lab("Lnoq")
        A(f"s_cmp_eq_u32 s{sW}, 3\ns_cbranch_scc0 {nq}")
        self.red_publish(L_RQ, 512, C_Q, 32, f"""
            s_lshl3_add_u32 s41, s{sHQ}, s{sRBQ}
            s_lshl_b32 s40, s41, 9
            s_add_u32 s40, s40, {WS_BQ:#x}
            v_add_u32 v11, s40, v10
            s_lshr_b32 s40, s41, 4
            s_and_b32 s41, s41, 15
            s_lshl_b32 s40, s40, 5
            s_add_u32 s40, s40, s41
            s_lshl_b32 s40, s40, 2
            s_add_u32 s40, s40, {WS_FLA:#x}""", self.nrepA, val=(45 if (self.local and not self.forceloc) else sT32))
        self.stamp(13)
        A(f"{nq}:")
        if self.xt:
            nc = self.lab("Lnocol"); l = self.lab("Lxt"); mem = self.lab("Lxm"); lv = self.lab("Lxv")
            A(f"""
            s_cmp_lg_u32 s{sW}, 0
            s_cbranch_scc1 {nc}
            s_lshl_b32 s46, s{sX}, 10
            s_add_u32 s46, s46, {WS_XV:#x}
            s_mov_b32 s{sSPIN}, 0
            s_cmp_lg_u32 s{sY}, 0
            s_cbranch_scc1 {mem}
            s_mov_b32 s42, s45
            s_mov_b32 s43, s45
            s_mov_b32 s101, 0
            s_add_u32 s41, s95, 128
            {l}:
            s_load_dwordx16 s[{sP}:{sP+15}], s[26:27], s95 glc
            s_add_u32 s{sSPIN}, s{sSPIN}, 1
            s_cmp_gt_u32 s{sSPIN}, {SPIN_MAX}
            s_cbranch_scc1 L_end
            s_waitcnt lgkmcnt(0)""")
            pairs = [sP + 2*i for i in range(8)]
            for p in pairs:
                A(f"s_xor_b64 s[{p}:{p+1}], s[{p}:{p+1}], s[42:43]")
            for p in pairs[1:]:
                A(f"s_or_b64 s[{sP}:{sP+1}], s[{sP}:{sP+1}], s[{p}:{p+1}]")
            A(f"""
            s_or_b32 s{sP}, s{sP}, s{sP+1}
            s_and_b32 s{sP+1}, s{sP}, 0x0fffffff
            s_cbranch_scc1 {l}
            s_or_b32 s101, s101, s{sP}
            s_add_u32 s95, s95, 64
            s_cmp_lt_u32 s95, s41
            s_cbranch_scc1 {l}
            s_xor_b32 s40, s101, s{sT32}
            s_mov_b64 exec, 0xff
            v_lshl_add_u32 v1, v0, 7, s46
            v_mov_b32 v2, s40
            global_store_dword v1, v2, s[26:27] sc1
            s_branch {lv}
            {mem}:
            s_and_b32 s40, s{sY}, 7
            s_lshl_b32 s40, s40, 7
            s_add_u32 s46, s46, s40
            {mem}_l:
            s_sleep {self.xsleep}
            s_load_dword s101, s[26:27], s46 glc
            s_add_u32 s{sSPIN}, s{sSPIN}, 1
            s_cmp_gt_u32 s{sSPIN}, {SPIN_MAX}
            s_cbranch_scc1 L_end
            s_waitcnt lgkmcnt(0)
            s_xor_b32 s101, s101, s{sT32}
            s_and_b32 s40, s101, 0x0fffffff
            s_cbranch_scc1 {mem}_l
            {lv}:
            s_cmp_lg_u32 s101, 0
            s_cselect_b32 s40, 3, 1
            s_mov_b64 exec, 1
            v_mov_b32 v1, {C_LOC}
            v_mov_b32 v2, s40
            ds_write_b32 v1, v2
            s_mov_b64 exec, -1
            {nc}:""")
        A(f"""
        s_cmp_ge_u32 s{sTY}, 2
        s_cbranch_scc1 L_final
        s_cmp_ge_u32 s{sTY}, 1
        s_cbranch_scc1 L_ffn""")
        if 'stop1' in self.abl:
            self.arrive(C_GA, want_old=False); A("s_branch L_adone")
        vKF, vVF, vGT, vQF, vO = 56, 88, 120, 152, 168
        vS, U, Z = 16, 24, 28
        A(f"""
        s_lshl2_add_u32 s41, s{sG}, s{sW}
        s_lshl_b32 s40, s41, 13
        s_add_u32 s40, s40, {WS_BQ + 2048:#x}
        v_and_b32 v12, 31, v0
        v_lshrrev_b32 v13, 5, v0
        v_lshlrev_b32 v1, 4, v12
        v_lshl_add_u32 v1, v13, 12, v1
        v_add_u32 v{vA0}, s40, v1
        s_and_b32 s40, s{sCH}, {self.nrepA-1}
        s_mul_i32 s40, s40, {REPP}
        s_lshl_b32 s41, s41, 7
        s_add_u32 s40, s40, s41
        s_add_u32 s95, s40, {WS_FLA:#x}
        s_lshl_b32 s40, s{sW}, 1
        v_add_u32 v13, s40, v13
        v_mul_u32_u24 v13, {QLP}, v13
        v_lshl_add_u32 v13, v12, 3, v13
        v_and_b32 v10, 7, v0
        s_lshl_b32 s40, s{sG}, 5
        s_add_u32 s41, s40, s{sCH}
        s_mul_i32 s41, s41, {BOP}
        s_lshl_b32 s42, s{sW}, 7
        s_add_u32 s41, s41, s42
        s_add_u32 s41, s41, {WS_BO:#x}
        v_lshlrev_b32 v8, 9, v10
        v_bfe_u32 v11, v0, 3, 1
        v_lshl_add_u32 v8, v11, 6, v8
        v_lshl_add_u32 v8, v{vJ}, 4, v8
        v_add_u32 v8, s41, v8
        s_add_u32 s40, s40, s{sCH}
        s_lshl_b32 s40, s40, 7
        s_add_u32 s40, s40, {WS_BML:#x}
        v_lshl_add_u32 v9, v10, 4, s40
        v_mul_u32_u24 v12, {QLP}, v10
        v_lshl_add_u32 v12, v{vJ}, 4, v12
        s_mov_b32 s46, {f2u(128 ** -0.5):#x}
        s_mov_b32 s47, {f2u(128 ** -0.5):#x}
        s_lshl_b32 s40, s{sW}, 13
        v_xor_b32 v14, v{vI}, v{vJ}
        v_lshlrev_b32 v14, 4, v14
        v_lshl_add_u32 v14, v{vI}, 8, v14
        v_add_u32 v14, s40, v14
        v_bfe_u32 v10, v0, 2, 2
        v_lshl_add_u32 v10, v{vJ}, 2, v10
        v_and_b32 v11, 7, v10
        v_lshlrev_b32 v11, 1, v11
        v_bfe_u32 v1, v0, 1, 1
        v_xor_b32 v11, v11, v1
        v_lshlrev_b32 v11, 4, v11
        v_lshl_add_u32 v11, v10, 8, v11
        v_and_b32 v1, 1, v0
        v_lshl_add_u32 v11, v1, 3, v11
        s_add_u32 s41, s40, {L_V}
        v_add_u32 v11, s41, v11
        ; exchange area (this wave's K rows, dead once the fragments are in registers)
        v_lshl_add_u32 v15, v0, 4, s40
        s_lshl_b32 s41, s{sW}, 10
        v_lshl_add_u32 v10, v0, 4, s41""")
        self.mask(("s92", "s93"), 0xFF00FF00FF00FF00)

        def kreads():
            A(f"s_lshl_b32 s41, s{sW}, 2\ns_add_u32 s41, s41, {C_K}")
            self.lds_spin("s41", 1, sleep=1)
            for s in range(4):
                if s:
                    A(f"v_xor_b32 v2, {64*s}, v14")
                for t in range(2):
                    r = vKF + 16*t + 4*s
                    A(f"ds_read_b128 v[{r}:{r+3}], v{2 if s else 14} offset:{L_K + 4096*t}")
            self.stamp(3)

        if self.kfirst:
            kreads()
        A("s_mov_b32 s40, s95")
        if self.xt:
            self.flag_poll(16)
        elif self.forceloc:
            self.flag_poll(16)
            A("s_mov_b32 s101, 1")
        elif self.local:
            l = self.lab("Lpoll"); r = self.lab("Lretry")
            A(f"""
            s_mov_b32 s{sSPIN}, 0
            s_mov_b32 s42, s{sT32}
            s_mov_b32 s43, s{sT32}
            s_mov_b32 s4, s45
            s_mov_b32 s5, s45
            s_branch {l}
            {r}:
            s_sleep {self.psleep}
            {l}:
            s_load_dwordx16 s[{sP}:{sP+15}], s[26:27], s40 glc
            s_add_u32 s{sSPIN}, s{sSPIN}, 1
            s_cmp_gt_u32 s{sSPIN}, {SPIN_MAX}
            s_cbranch_scc1 L_end
            s_waitcnt lgkmcnt(0)""")
            for i in range(8):
                A(f"s_xor_b64 s[{sP+2*i}:{sP+2*i+1}], s[{sP+2*i}:{sP+2*i+1}], s[{'4:5' if (i & 2) == 0 else '42:43'}]")
            for step in (2, 4, 8):
                for i in range(0, 16, 2*step):
                    A(f"s_or_b64 s[{sP+i}:{sP+i+1}], s[{sP+i}:{sP+i+1}], s[{sP+i+step}:{sP+i+step+1}]")
            A(f"""
            s_or_b32 s{sP}, s{sP}, s{sP+1}
            s_and_b32 s{sP+1}, s{sP}, 0x0fffffff
            s_cbranch_scc1 {r}
            s_cmp_lg_u32 s{sP}, 0
            s_cselect_b32 s101, 0x101, 1""")
        else:
            self.flag_poll(16)
        self.stamp(2)
        if 'stop2' in self.abl:
            self.arrive(C_GA, want_old=False); A("s_branch L_adone")
        if self.warm is not None and self.warmO == 1:
            A(f"""
            s_mov_b64 exec, 0xff
            global_load_dword v46, v8, s[26:27] {self.warm}
            s_mov_b64 exec, 1
            global_load_dword v47, v9, s[26:27] {self.warm}
            s_mov_b64 exec, -1""")

        rq = self.lab("Lgq")
        A(f"s_mov_b32 s45, 0\n{rq}:")
        for n in range(8):
            A(f"global_load_dwordx4 v[{vGT+4*n}:{vGT+4*n+3}], v{vA0}, s[26:27] offset:{512*n - 2048} sc1")
        skip = self.lab("Lkvdone")
        A(f"s_cmp_lg_u32 s45, 0\ns_cbranch_scc1 {skip}\ns_mov_b32 s45, 1")
        self.gate(1, self.gateA)
        def vreads():
            A(f"s_lshl_b32 s41, s{sW}, 2\ns_add_u32 s41, s41, {C_V}")
            self.lds_spin("s41", 1, sleep=0)
            for dt in range(8):
                if dt:
                    A(f"v_xor_b32 v14, {32*dt}, v11")
                for t in range(2):
                    r = vVF + 4*dt + 2*t
                    A(f"ds_read_b64_tr_b16 v[{r}:{r+1}], v{14 if dt else 11} offset:{4096*t}")

        if not self.kfirst:
            kreads()
        if not self.vlate:
            vreads()
        A(f"""
        s_lshr_b32 s40, s{sCH}, 4
        s_lshl1_add_u32 s40, s{sG}, s40
        s_lshl_b32 s40, s40, 5
        s_and_b32 s41, s{sCH}, 15
        s_add_u32 s40, s40, s41
        s_lshl_b32 s40, s40, 2
        s_add_u32 s95, s40, {WS_FLB:#x}""")
        A(f"s_mov_b32 s{sSPIN}, 0\n{skip}:")
        self.untag([vGT+4*n for n in range(8)], vT, counted=True)
        self.tagtest(vT, rq)
        self.stamp(4)
        if 'stop3' in self.abl:
            A("s_branch L_adone")
        for step in (4, 8, 16):
            for b in range(0, 32, 2*step):
                for h in (0, 2):
                    A(f"v_pk_add_f32 v[{vGT+b+h}:{vGT+b+h+1}], v[{vGT+b+h}:{vGT+b+h+1}], v[{vGT+b+step+h}:{vGT+b+step+h+1}]")
        A(f"""
        v_cvt_pk_bf16_f32 v{vGT}, v{vGT}, v{vGT+1}
        v_cvt_pk_bf16_f32 v{vGT+1}, v{vGT+2}, v{vGT+3}
        s_mov_b32 s45, {f2u(LOG2E):#x}
        ds_write_b64 v13, v[{vGT}:{vGT+1}] offset:{L_QL}""")
        self.arrive(C_QL, want_old=False, inc=("s101" if (self.local and not self.xt) else 1))
        if self.warm is not None and self.warmO == 2:
            A(f"""
            s_mov_b64 exec, 0xff
            global_load_dword v46, v8, s[26:27] {self.warm}
            s_mov_b64 exec, 1
            global_load_dword v47, v9, s[26:27] {self.warm}
            s_mov_b64 exec, -1""")

        self.stamp(1)
        self.lds_spin(C_QL, 4, sleep=0, low8=(self.local and not self.xt),
                      reads="\n".join(f"ds_read_b128 v[{vQF+4*s}:{vQF+4*s+3}], v12 offset:{L_QL + 64*s}" for s in range(4))
                      + (f"\nds_read_b32 v54, v1 offset:{C_LOC - C_QL}" if self.xt else ""))
        if self.xt:
            self.get_loc(54)
        self.stamp(9)
        for s in range(4):
            for t in range(2):
                c = "0" if s == 0 else f"v[{vS+4*t}:{vS+4*t+3}]"
                r = vKF + 16*t + 4*s
                A(f"v_mfma_f32_16x16x32_bf16 v[{vS+4*t}:{vS+4*t+3}], v[{r}:{r+3}], v[{vQF+4*s}:{vQF+4*s+3}], {c}")
        self.early_flag('qk')
        if self.vlate:
            vreads()
        else:
            A("s_nop 7")
        for k in range(4):
            A(f"v_cndmask_b32 v{U+k}, v{vS+k}, v{vS+4+k}, s[92:93]")
        for rnd in range(2):
            for p in range(2):
                A(f"v_cvt_pk_bf16_f32 v{Z+p}, v{U+2*p}, v{U+2*p+1}")
            for p in range(2):
                A(f"v_lshlrev_b32 v{U+2*p}, 16, v{Z+p}\nv_and_b32 v{U+2*p+1}, 0xffff0000, v{Z+p}")
            if rnd == 0:
                for p in range(2):
                    A(f"v_pk_mul_f32 v[{U+2*p}:{U+2*p+1}], v[{U+2*p}:{U+2*p+1}], s[46:47]")
        vM, vL = 48, 49
        A(f"""
        v_max3_f32 v{vM}, v{U}, v{U+1}, v{U+2}
        v_max_f32 v{vM}, v{vM}, v{U+3}
        s_nop 1
        v_max_f32_dpp v{vM}, v{vM}, v{vM} row_ror:8 row_mask:0xf bank_mask:0xf""")
        self.allreduce_rows(vM, 50, "v_max_f32")
        A(f"v_mul_f32 v50, s45, v{vM}")
        for k in range(4):
            A(f"v_fma_f32 v{U+k}, v{U+k}, s45, -v50")
        for k in range(4):
            A(f"v_exp_f32 v{U+k}, v{U+k}")
        P = 32
        A(f"""
        s_nop 0
        v_cvt_pk_bf16_f32 v{P}, v{U}, v{U+1}
        v_cvt_pk_bf16_f32 v{P+1}, v{U+2}, v{U+3}
        v_pk_add_f32 v[52:53], v[{U}:{U+1}], v[{U+2}:{U+3}]
        v_mov_b32_dpp v{P+2}, v{P} row_ror:8 row_mask:0xf bank_mask:0xf
        v_mov_b32_dpp v{P+3}, v{P+1} row_ror:8 row_mask:0xf bank_mask:0xf
        v_mov_b32 v{P+4}, v{P}
        v_mov_b32 v{P+5}, v{P+1}
        v_add_f32 v{vL}, v52, v53""")
        if self.vlate:
            A("s_waitcnt lgkmcnt(0)")
        fill = [f"v_lshrrev_b32 v14, 1, v15\nv_add_f32_dpp v{vL}, v{vL}, v{vL} row_ror:8 row_mask:0xf bank_mask:0xf",
                f"v_mov_b32 v50, v{vL}\ns_lshl_b32 s40, s{sW}, 12",
                f"v_add_u32 v14, s40, v14\nv_permlane32_swap_b32 v50, v{vL}",
                f"v_add_f32 v{vL}, v{vL}, v50\nv_mov_b32 v50, v{vL}",
                f"s_nop 0",
                f"v_permlane16_swap_b32 v50, v{vL}\nv_add_f32 v{vL}, v{vL}, v50",
                f"ds_write_b64 v14, v[{vM}:{vL}] offset:{L_K + 4096}", ""]
        for dt in range(8):
            b = P + 2*(dt & 1)
            A(f"v_mfma_f32_16x16x32_bf16 v[{vO+4*dt}:{vO+4*dt+3}], v[{vVF+4*dt}:{vVF+4*dt+3}], v[{b}:{b+3}], 0")
            A(fill[dt])
        for k in range(4):
            for r in range(4):
                A(f"v_cndmask_b32 v{vO+8*k+r}, v{vO+8*k+r}, v{vO+8*k+4+r}, s[92:93]")
            A(f"ds_write_b128 v15, v[{vO+8*k}:{vO+8*k+3}] offset:{L_K + 1024*k}")
        self.arrive(C_X, want_old=False)
        A("v_lshlrev_b32 v14, 3, v0")
        self.early_flag('pv')
        self.stamp(11)
        X, ML = 56, 72
        self.lds_spin(C_X, 4, sleep=0, reads="\n".join(
            [f"ds_read_b64 v[{ML+2*w}:{ML+2*w+1}], v14 offset:{L_K + 8192*w + 4096}" for w in range(4)] +
            [f"ds_read_b128 v[{X+4*w}:{X+4*w+3}], v10 offset:{L_K + 8192*w}" for w in range(4)]))
        self.stamp(10)
        self.early_flag('xsync')
        A(f"v_max3_f32 v{vM}, v{ML}, v{ML+2}, v{ML+4}\nv_max_f32 v{vM}, v{vM}, v{ML+6}")
        for w in range(4):
            A(f"v_sub_f32 v{ML+2*w}, v{ML+2*w}, v{vM}")
        for w in range(4):
            A(f"v_mul_f32 v{ML+2*w}, s45, v{ML+2*w}")
        for w in range(4):
            A(f"v_exp_f32 v{ML+2*w}, v{ML+2*w}")
        A(f"s_nop 0\nv_mul_f32 v{vL}, v{ML}, v{ML+1}")
        for w in range(4):
            e = ML + 2*w
            for h in (0, 2):
                if w == 0:
                    A(f"v_pk_mul_f32 v[{vS+h}:{vS+h+1}], v[{X+h}:{X+h+1}], v[{e}:{e+1}] op_sel_hi:[1,0]")
                else:
                    A(f"v_pk_fma_f32 v[{vS+h}:{vS+h+1}], v[{X+4*w+h}:{X+4*w+h+1}], v[{e}:{e+1}], v[{vS+h}:{vS+h+1}] op_sel_hi:[1,0,1]")
            if w:
                A(f"v_fmac_f32 v{vL}, v{e}, v{e+1}")
        for r in range(4):
            self.tag(vS + r)
        nml = self.lab("Lnoml")

        def publish(mod):
            if 'noO' not in self.abl:
                A(f"global_store_dwordx4 v8, v[{vS}:{vS+3}], s[26:27] {mod}")
            A(f"s_cmp_lg_u32 s{sW}, 0\ns_cbranch_scc1 {nml}")
            self.tag(vM); self.tag(vL)
            A(f"""
            v_mov_b32 v50, v3
            v_mov_b32 v51, v3
            s_mov_b64 exec, 0xff
            global_store_dwordx4 v9, v[48:51], s[26:27] {mod}""")

        if self.local:
            rem = self.lab("Lremote"); fl = self.lab("Lflagb")
            A(f"s_cmp_lg_u32 s101, 0\ns_cbranch_scc1 {rem}")
            publish("")
            A(f"s_branch {fl}\n{rem}:")
            publish("sc1")
            A(f"{fl}:")
        else:
            publish("sc1")
        if self.flagpos != 'end':
            A(f"s_mov_b64 exec, -1\ns_cmp_eq_u32 s101, 0\ns_cbranch_scc1 {nml}")
        A("s_mov_b32 s40, s95")
        if 'noflagB' not in self.abl:
            self.flag_store(self.nrepB)
        A(f"{nml}:")
        self.gate(2, self.gateA)
        self.stamp(5)
        if 'stop4' in self.abl:
            A("s_branch L_adone")
        A(f"""
        s_and_b32 s40, s{sTL}, 7
        s_lshl2_add_u32 s41, s40, s{sW}
        s_lshl_b32 s41, s41, 7
        s_mul_i32 s42, s{sG}, {32*BOP}
        s_add_u32 s41, s41, s42
        s_add_u32 s41, s41, {WS_BO:#x}
        v_lshrrev_b32 v1, 3, v0
        v_mul_u32_u24 v1, {BOP}, v1
        v_and_b32 v2, 7, v0
        v_lshl_add_u32 v1, v2, 4, v1
        v_add_u32 v{vA0}, s41, v1
        v_add_u32 v13, {8*BOP}, v{vA0}
        v_add_u32 v14, {16*BOP}, v{vA0}
        v_add_u32 v15, {24*BOP}, v{vA0}
        s_lshl_b32 s41, s{sG}, 8
        s_add_u32 s40, s40, s41
        s_lshl_b32 s40, s40, 4
        s_add_u32 s40, s40, {WS_BML:#x}
        v_and_b32 v1, 31, v0
        v_lshl_add_u32 v{vA1}, v1, 7, s40
        s_lshl_b32 s40, s{sW}, 7
        v_and_b32 v2, 7, v0
        v_lshrrev_b32 v1, 3, v1
        v_lshl_add_u32 v1, v1, 2, s40
        v_lshl_add_u32 v10, v2, 4, v1
        v_lshrrev_b32 v1, 3, v0
        v_lshl_add_u32 v11, v1, 4, s40
        v_and_b32 v1, 1, v0
        v_lshl_add_u32 v1, v1, 2, v{vJ}
        v_and_b32 v2, 6, v0
        v_lshl_add_u32 v12, v1, 5, v2
        s_lshl_b32 s40, s{sW}, 3
        v_add_u32 v12, s40, v12""")
        nb = self.lab("Lnopollb")
        A(f"""
        s_cmp_ge_u32 s{sW}, 2
        s_cbranch_scc1 {nb}
        s_and_b32 s40, s{sCH}, {self.nrepB-1}
        s_mul_i32 s40, s40, {REPP}
        s_lshl1_add_u32 s41, s{sG}, s{sW}
        s_lshl_b32 s41, s41, 7
        s_add_u32 s40, s40, s41
        s_add_u32 s40, s40, {WS_FLB:#x}""")
        self.flag_poll(16)
        self.arrive(C_B1, want_old=False)
        A(f"{nb}:")
        self.lds_spin(C_B1, 2, sleep=0)
        self.stamp(6)
        rb_ = self.lab("Lgo")
        vO, vML = 56, 72
        A(f"s_mov_b32 s47, 0\n{rb_}:")
        def bloads(mod):
            A(f"global_load_dwordx4 v[{vML}:{vML+3}], v{vA1}, s[26:27] {mod}")
            for n in range(4):
                A(f"global_load_dwordx4 v[{vO+4*n}:{vO+4*n+3}], v{(vA0, 13, 14, 15)[n]}, s[26:27] {mod}")
        if self.local and self.gmod != 'sc1':
            rem = self.lab("Lremote"); fl = self.lab("Lbld")
            A(f"s_cmp_lg_u32 s101, 0\ns_cbranch_scc1 {rem}")
            bloads(self.gmod)
            A(f"s_branch {fl}\n{rem}:")
            bloads("sc1")
            A(f"{fl}:")
        else:
            bloads("sc1")
        if self.HA:
            l = self.lab("Lhb")
            A(f"s_cmp_lg_u32 s47, 0\ns_cbranch_scc1 {l}\ns_mov_b32 s47, 1")
            self.arrive(C_HB, want_old=False)
            A(f"{l}:")
        if 3 in self.gateA:
            self.gate(3, self.gateA)
            A(f"s_mov_b32 s{sGATE}, 0")
        A("s_waitcnt vmcnt(4)")
        self.untag([vML], vT + 16)
        fill = self.untag_list([vO + 4*n for n in range(4)], vT + 16, first=False)
        A(f"v_mov_b32 v{vT}, v{vML}\ns_waitcnt vmcnt(0)")
        self.allreduce_in_row(vT, "v_max_f32", fill)
        A(f"v_mov_b32 v{vT+2}, v{vT}")
        self.pad2(fill)
        A(f"""
        v_permlane16_swap_b32 v{vT+2}, v{vT}
        v_max_f32 v{vT}, v{vT}, v{vT+2}
        v_sub_f32 v{vT+4}, v{vML}, v{vT}
        v_mul_f32 v{vT+4}, s45, v{vT+4}
        v_exp_f32 v{vT+4}, v{vT+4}
        s_mov_b32 exec_hi, 0
        ds_write_b32 v10, v{vT+4} offset:{L_WT}
        s_mov_b32 exec_hi, -1
        ds_read_b128 v[{vT+8}:{vT+11}], v11 offset:{L_WT}
        v_mul_f32 v{vT+1}, v{vT+4}, v{vML+1}""")
        self.allreduce_in_row(vT + 1, "v_add_f32", fill)
        A(f"v_mov_b32 v{vT+2}, v{vT+1}")
        self.pad2(fill)
        A(f"""
        v_permlane16_swap_b32 v{vT+2}, v{vT+1}
        v_add_f32 v{vT+1}, v{vT+1}, v{vT+2}
        v_rcp_f32 v{vT+1}, v{vT+1}""")
        A("\n".join(fill))
        self.tagtest(vT + 16, rb_)
        self.stamp(7)
        A("s_waitcnt lgkmcnt(0)")
        acc = vT + 4
        for n in range(4):
            w = vT + 8 + (n & ~1)
            os_ = f"op_sel:[0,{n&1}] op_sel_hi:[1,{n&1}]" if n == 0 else f"op_sel:[0,{n&1},0] op_sel_hi:[1,{n&1},1]"
            for h in (0, 2):
                if n == 0:
                    A(f"v_pk_mul_f32 v[{acc+h}:{acc+h+1}], v[{vO+h}:{vO+h+1}], v[{w}:{w+1}] {os_}")
                else:
                    A(f"v_pk_fma_f32 v[{acc+h}:{acc+h+1}], v[{vO+4*n+h}:{vO+4*n+h+1}], v[{w}:{w+1}], v[{acc+h}:{acc+h+1}] {os_}")
        self.reduce_scatter_rows(acc)
        A(f"""
        s_nop 1
        v_add_f32_dpp v{acc}, v{acc}, v{acc} row_ror:8 row_mask:0xf bank_mask:0xf
        v_mov_b32 v1, {C_FO}
        v_mul_f32 v{acc}, v{acc}, v{vT+1}
        v_mov_b32 v2, 1
        v_cvt_pk_bf16_f32 v{acc}, v{acc}, v{acc}""")
        self.exec_set(0x00FF00FF00FF00FF)
        A(f"""
        ds_write_b16 v12, v{acc} offset:{L_VEC}
        s_mov_b64 exec, 1
        ds_add_u32 v1, v2
        s_mov_b64 exec, -1""")
        self.stamp(8)
        if 'diag' in self.abl:
            l = self.lab("Ldg")
            if 'diagx' in self.abl:
                A(f"s_getreg_b32 s41, hwreg(HW_REG_XCC_ID, 0, 4)\ns_cmp_eq_u32 s41, s{sX}")
            else:
                A("s_cmp_eq_u32 s101, 0")
            A(f"""
            s_cbranch_scc1 L_adone
            s_memrealtime s[42:43]
            s_waitcnt lgkmcnt(0)
            s_add_u32 s40, s42, 2000
            {l}:
            s_memrealtime s[42:43]
            s_waitcnt lgkmcnt(0)
            s_sub_u32 s41, s42, s40
            s_cmp_lt_i32 s41, 0
            s_cbranch_scc1 {l}""")
        A("L_adone:")
        self.write_stamps(14)
        A("s_endpgm")
        A(f"""
        L_ffn:
        s_cmp_eq_u32 s{sW}, 2
        s_cbranch_scc0 L_adone""")
        if self.localD:
            l = self.lab("Lxt")
            A(f"""
            s_getreg_b32 s45, hwreg(HW_REG_XCC_ID, 0, 4)
            s_lshl_b32 s45, s45, 28
            s_xor_b32 s42, s45, s{sT32}
            s_mov_b32 s43, s42
            s_lshl_b32 s40, s{sG}, 7
            s_add_u32 s40, s40, {WS_XT:#x}
            s_lshl2_add_u32 s41, s{sY}, s40
            s_mov_b64 exec, 1
            v_mov_b32 v1, s41
            v_mov_b32 v2, s42
            global_store_dword v1, v2, s[26:27] sc1
            s_mov_b64 exec, -1
            s_add_u32 s41, s40, 64
            s_mov_b32 s{sSPIN}, 0
            {l}:
            s_sleep 24
            s_load_dwordx16 s[{sP}:{sP+15}], s[26:27], s40 glc
            s_load_dwordx16 s[4:19], s[26:27], s41 glc
            s_add_u32 s{sSPIN}, s{sSPIN}, 1
            s_cmp_gt_u32 s{sSPIN}, {SPIN_MAX}
            s_cbranch_scc1 L_end
            s_waitcnt lgkmcnt(0)""")
            pairs = [sP + 2*i for i in range(8)] + [4 + 2*i for i in range(6)]
            for p in pairs:
                A(f"s_xor_b64 s[{p}:{p+1}], s[{p}:{p+1}], s[42:43]")
            for p in pairs[1:]:
                A(f"s_or_b64 s[{sP}:{sP+1}], s[{sP}:{sP+1}], s[{p}:{p+1}]")
            A(f"""
            s_or_b32 s101, s{sP}, s{sP+1}
            s_and_b32 s{sP}, s101, 0x0fffffff
            s_cbranch_scc1 {l}""")
        if 'noffn' in self.abl:
            A("s_branch L_adone")
        self.red_publish(L_RG, 1024, C_G, 64, f"""
            s_sub_u32 s41, s{sUP}, s{sTL}
            s_lshl2_add_u32 s40, s{sTL}, s{sRB}
            s_lshl_b32 s40, s40, 10
            s_add_u32 s40, s40, {WS_BD:#x}
            v_add_u32 v11, s40, v10
            v_lshrrev_b32 v13, 5, v0
            s_lshl_b32 s42, s41, 12
            v_mul_lo_u32 v12, s42, v13
            v_add_u32 v11, v11, v12
            s_lshl_b32 s40, s{sTL}, 5
            s_add_u32 s40, s40, s{sRB}
            s_lshl_b32 s40, s40, 2
            s_lshl_b32 s42, s41, 7
            s_add_u32 s42, s42, 16
            v_mul_lo_u32 v12, s42, v0
            v_add_u32 v12, s40, v12
            s_movk_i32 s40, {WS_FLD:#x}""", 2, 12, sleep=1, local=self.localD)
        self.gate(1, self.gateF)
        self.stamp(5)
        A(f"""
        s_lshl_b32 s40, s{sTL}, 12
        s_add_u32 s40, s40, {WS_BD:#x}
        v_add_u32 v{vA0}, s40, v10
        v_and_b32 v1, 1, v0
        v_lshl_add_u32 v1, v1, 1, v13
        v_and_b32 v2, 30, v0
        v_lshl_add_u32 v12, v1, 6, v2
        s_lshl_b32 s40, s{sTL}, 7
        s_add_u32 s40, s40, {WS_FLD:#x}""")
        self.flag_poll(8)
        self.stamp(6)
        rd = self.lab("Lgd")
        G = 56
        A(f"s_mov_b32 s47, 0\n{rd}:")
        def dloads(mod):
            for n in range(4):
                A(f"global_load_dwordx4 v[{G+4*n}:{G+4*n+3}], v{vA0}, s[26:27] offset:{1024*n} {mod}")
        if self.localD:
            rem = self.lab("Lremote"); fl = self.lab("Ldld")
            A(f"s_cmp_lg_u32 s101, 0\ns_cbranch_scc1 {rem}")
            dloads(self.gmod)
            A(f"s_branch {fl}\n{rem}:")
            dloads("sc1")
            A(f"{fl}:")
        else:
            dloads("sc1")
        if self.HF:
            l = self.lab("Lhb")
            A(f"s_cmp_lg_u32 s47, 0\ns_cbranch_scc1 {l}\ns_mov_b32 s47, 1")
            self.arrive(C_HB, want_old=False)
            A(f"{l}:")
        if 2 in self.gateF:
            self.gate(2, self.gateF)
            A(f"s_mov_b32 s{sGATE}, 0")
        self.untag([G + 4*n for n in range(4)], vT, counted=True)
        self.tagtest(vT, rd)
        self.stamp(7)
        for h in (0, 2):
            A(f"v_pk_add_f32 v[{G+h}:{G+h+1}], v[{G+h}:{G+h+1}], v[{G+4+h}:{G+5+h}]")
            A(f"v_pk_add_f32 v[{G+8+h}:{G+9+h}], v[{G+8+h}:{G+9+h}], v[{G+12+h}:{G+13+h}]")
        for h in (0, 2):
            A(f"v_pk_add_f32 v[{G+h}:{G+h+1}], v[{G+h}:{G+h+1}], v[{G+8+h}:{G+9+h}]")
        c1 = -2.0 * 0.7978845608028654 * LOG2E
        c2 = c1 * 0.044715
        A(f"""
        v_cvt_pk_bf16_f32 v{G}, v{G}, v{G+1}
        v_cvt_pk_bf16_f32 v{G+1}, v{G+2}, v{G+3}
        s_mov_b32 s46, {f2u(c2):#x}
        v_mov_b32 v{vT+4}, {f2u(c1):#x}
        v_permlane32_swap_b32 v{G}, v{G+1}
        v_lshlrev_b32 v{G+2}, 16, v{G}
        v_and_b32 v{G+3}, 0xffff0000, v{G}
        v_pk_mul_f32 v[{vT}:{vT+1}], v[{G+2}:{G+3}], v[{G+2}:{G+3}]
        v_fma_f32 v{vT}, v{vT}, s46, v{vT+4}
        v_fma_f32 v{vT+1}, v{vT+1}, s46, v{vT+4}
        v_pk_mul_f32 v[{vT}:{vT+1}], v[{vT}:{vT+1}], v[{G+2}:{G+3}]
        v_exp_f32 v{vT}, v{vT}
        v_exp_f32 v{vT+1}, v{vT+1}
        v_lshlrev_b32 v{G+4}, 16, v{G+1}
        v_add_f32 v{vT}, 1.0, v{vT}
        v_add_f32 v{vT+1}, 1.0, v{vT+1}
        v_rcp_f32 v{vT}, v{vT}
        v_rcp_f32 v{vT+1}, v{vT+1}
        v_and_b32 v{G+5}, 0xffff0000, v{G+1}
        v_pk_mul_f32 v[{G+2}:{G+3}], v[{G+2}:{G+3}], v[{vT}:{vT+1}]
        v_cvt_pk_bf16_f32 v{G}, v{G+2}, v{G+3}
        v_lshlrev_b32 v{G+2}, 16, v{G}
        v_and_b32 v{G+3}, 0xffff0000, v{G}
        v_pk_mul_f32 v[{G+2}:{G+3}], v[{G+2}:{G+3}], v[{G+4}:{G+5}]
        v_mov_b32 v1, {C_FO}
        v_cvt_pk_bf16_f32 v{G}, v{G+2}, v{G+3}
        v_mov_b32 v2, 1
        ds_write_b16 v12, v{G} offset:{L_VEC}
        ds_write_b16_d16_hi v12, v{G} offset:{L_VEC+32}
        s_mov_b64 exec, 1
        ds_write_b32 v1, v2
        s_mov_b64 exec, -1""")
        self.stamp(8)
        A("s_branch L_adone")

    def final(self):
        A = self.A
        vI, vJ, vT = 4, 5, 16
        G0, G1 = 56, 60
        A(f"""
        L_final:
        s_mov_b32 s42, s{sR}
        s_lshl_b32 s43, s42, 7
        v_lshl_add_u32 v8, v0, 1, s43
        global_load_ushort v9, v8, s[4:5]""")
        if 'nofinal' in self.abl:
            A("s_branch L_adone")
        A(f"""
        s_and_b32 s41, s{sW}, 3
        s_cmp_lt_u32 s{sW}, 4
        s_cselect_b32 s46, 0, {WS_BF - WS_BS:#x}
        s_cselect_b32 s47, {28*ROWP}, 0
        s_cselect_b32 s93, -1, 0xffff
        s_mov_b32 s92, -1
        s_mul_i32 s40, s41, {ROWP}
        s_add_u32 s40, s40, s46
        s_lshl_b32 s43, s42, 8
        s_add_u32 s40, s40, s43
        s_add_u32 s46, s40, {WS_BS:#x}
        s_add_u32 s47, s47, s46
        v_mul_u32_u24 v1, {4*ROWP}, v{vJ}
        v_lshl_add_u32 v1, v{vI}, 4, v1
        v_add_u32 v6, s46, v1
        v_add_u32 v7, {16*ROWP}, v6
        v_lshl_add_u32 v10, v{vI}, 2, v{vJ}
        v_lshlrev_b32 v10, 5, v10
        s_lshl_b32 s40, s{sW}, 2
        v_add_u32 v10, s40, v10
        v_lshlrev_b32 v11, 5, v0
        v_mov_b32 v12, {C_F1}
        v_mov_b32 v13, 1
        s_waitcnt vmcnt(0)
        v_lshlrev_b32 v9, 16, v9""")
        for r in range(4):
            A(f"v_mov_b32 v{G1+r}, v3")
        if self.flocal:
            lf = self.lab("Lfl"); ns = self.lab("Lnfl")
            A(f"""
            s_cmp_lt_u32 s{sW}, 4
            s_cbranch_scc1 {ns}""")
            if self.flocal == 'xt':
                self.get_loc(sleep=4)
                A(f"s_cmp_lg_u32 s101, 0\ns_cbranch_scc1 {ns}")
            A(f"""
            s_mov_b32 s{sSPIN}, 0
            {lf}:
            s_sleep {self.fls}
            global_load_dwordx4 v[{G0}:{G0+3}], v6, s[26:27] {self.fmod}
            s_mov_b64 exec, s[92:93]
            global_load_dwordx4 v[{G1}:{G1+3}], v7, s[26:27] {self.fmod}
            s_mov_b64 exec, -1
            s_add_u32 s{sSPIN}, s{sSPIN}, 1
            s_cmp_gt_u32 s{sSPIN}, {SPIN_MAX}
            s_cbranch_scc1 L_end
            s_waitcnt vmcnt(0)
            v_bitop3_b32 v{vT}, v{G0}, v{G0+3}, s{sT10} bitop3:0x7e
            v_and_b32 v{vT}, s44, v{vT}
            v_cmp_eq_u32 vcc, 0, v{vT}
            s_nop 4
            s_cbranch_vccz {lf}
            s_branch L_fvec
            {ns}:""")
        l = self.lab("Lfp"); r_ = self.lab("Lfr")
        A(f"""
        s_add_u32 s40, s26, s46
        s_addc_u32 s41, s27, 0
        s_mov_b32 s{sSPIN}, 0
        s_branch {l}
        {r_}:
        s_cmp_lg_u32 s43, 0
        s_cbranch_scc1 {l}
        s_sleep {self.fsleep}
        {l}:""")
        for k in range(7):
            A(f"s_load_dword s{48+k}, s[40:41], {4*k*ROWP} glc")
        A(f"""
        s_load_dword s55, s[26:27], s47 glc
        s_add_u32 s{sSPIN}, s{sSPIN}, 1
        s_cmp_gt_u32 s{sSPIN}, {SPIN_MAX}
        s_cbranch_scc1 L_end
        s_waitcnt lgkmcnt(0)""")
        A("s_mov_b32 s43, 0")
        for k in range(8):
            A(f"s_and_b32 s{48+k}, s{48+k}, s44\ns_cmp_eq_u32 s{48+k}, s{sT10}\ns_addc_u32 s43, s43, 0")
        A(f"s_cmp_ge_u32 s43, {self.fthr}\ns_cbranch_scc0 {r_}")
        A("L_fvec:")
        self.stamp(9)
        rg = self.lab("Lfg")
        loads = f"""
            s_or_b64 exec, s[48:49], 1
            global_load_dwordx4 v[{G0}:{G0+3}], v6, s[26:27] {self.fmod if self.flocal else 'sc1'}
            s_or_b64 exec, s[92:93], 1
            global_load_dwordx4 v[{G1}:{G1+3}], v7, s[26:27] {self.fmod if self.flocal else 'sc1'}
            s_mov_b64 exec, -1"""
        A("s_mov_b64 s[48:49], -1")
        for k in range(self.fdepth - 1):
            A(loads)
        A(f"{rg}:")
        A(loads)
        A(f"s_waitcnt vmcnt({2*(self.fdepth - 1)})")
        for i, k in enumerate((G0, G1)):
            A(f"v_bitop3_b32 v{vT+2*i}, v{k}, v{k+1}, s{sT10} bitop3:0x7e")
            A(f"v_bitop3_b32 v{vT+2*i+1}, v{k+2}, v{k+3}, s{sT10} bitop3:0x7e")
        for i in range(2):
            A(f"v_bitop3_b32 v{vT+2*i}, v{vT+2*i}, v{vT+2*i+1}, s44 bitop3:0xa8")
        R = vT + 12
        A(f"""
        v_cmp_ne_u32 s[48:49], 0, v{vT}
        v_cmp_ne_u32 s[92:93], 0, v{vT+2}
        s_add_u32 s{sSPIN}, s{sSPIN}, 1
        s_cmp_gt_u32 s{sSPIN}, {SPIN_MAX}
        s_cbranch_scc1 L_end
        s_or_b64 s[40:41], s[48:49], s[92:93]
        s_cbranch_scc1 {rg}""")
        self.stamp(10)
        for k in range(4):
            A(f"v_xor_b32 v{R+k}, s{sT10}, v{G0+k}\nv_xor_b32 v{R+4+k}, s{sT10}, v{G1+k}")
        for h in (0, 2):
            A(f"v_pk_add_f32 v[{R+h}:{R+h+1}], v[{R+h}:{R+h+1}], v[{R+4+h}:{R+5+h}]")
        self.reduce_scatter_rows(R)
        f = vT + 4
        A(f"""
        ds_write_b32 v10, v{R} offset:{L_RF}
        s_mov_b64 exec, 1
        ds_add_rtn_u32 v2, v12, v13
        s_mov_b64 exec, -1
        ds_read_b128 v[{f}:{f+3}], v11 offset:{L_RF}
        ds_read_b128 v[{f+4}:{f+7}], v11 offset:{L_RF+16}
        s_waitcnt lgkmcnt(0)
        v_readfirstlane_b32 s{sTMP}, v2
        s_cmp_eq_u32 s{sTMP}, 7
        s_cbranch_scc0 L_adone
        v_pk_add_f32 v[{f+4}:{f+5}], v[{f+4}:{f+5}], v[{f+6}:{f+7}]
        v_pk_add_f32 v[{f}:{f+1}], v[{f}:{f+1}], v[{f+2}:{f+3}]
        v_add_f32 v{f+2}, v{f+4}, v{f+5}
        v_add_f32 v{f}, v{f}, v{f+1}
        v_cvt_pk_bf16_f32 v{f}, v{f}, v{f+2}
        v_and_b32 v{f+2}, 0xffff0000, v{f}
        v_mul_f32 v{f+3}, {f2u(-LOG2E):#x}, v{f+2}
        v_exp_f32 v{f+3}, v{f+3}
        v_lshlrev_b32 v{f}, 16, v{f}
        v_add_f32 v{f+3}, 1.0, v{f+3}
        v_rcp_f32 v{f+3}, v{f+3}
        s_nop 0
        v_mul_f32 v{f+2}, v{f+2}, v{f+3}""")
        self.bf16_round(f + 2, f + 2)
        A(f"v_mul_f32 v{f}, v{f}, v{f+2}")
        self.bf16_round(f, f)
        A(f"""
        v_add_f32 v{f}, v{f}, v9
        v_cvt_pk_bf16_f32 v{f}, v{f}, v{f}
        global_store_short v8, v{f}, s[22:23] {self.outmod}""")
        A(f"""
        s_cmp_lg_u32 s{sR}, 0
        s_cbranch_scc1 L_adone
        s_mov_b64 exec, 1
        v_mov_b32 v1, {WS_E}
        v_mov_b32 v2, s{sT32}
        global_store_dword v1, v2, s[26:27]
        s_branch L_adone""")


class Gen(Gen0):
    def __init__(self, ldsb=None, nvo=None, **kw):
        self.ldsb, self.nvo = ldsb, nvo
        super().__init__(**kw)


if __name__ == "__main__":
    import argparse
    ap = argparse.ArgumentParser()
    ap.add_argument("-o", default="recurrent_scan__sliding_block_cached__geglu_ffn__decode.s")

    ap.add_argument("--stamps", action="store_true")
    ap.add_argument("--probe", default=None)
    ap.add_argument("--kw", default="")
    a = ap.parse_args()
    open(a.o, "w").write(Gen(stamps=a.stamps, probe=tuple(map(int, a.probe.split(','))) if a.probe else None, **eval(f'dict({a.kw})')).build())
```

```python
import sys, struct

KN = "recurrent_scan__sliding_block_cached__geglu_ffn__decode_kernel"

def f2u(x):
    return struct.unpack("<I", struct.pack("<f", x))[0]

WS_E   = 0x0
WS_FLD = 0x1000
WS_XT  = 0x3000
WS_XA  = 0x3400
WS_XV  = 0x8000
WS_BML = 0x4000
WS_BQ  = 0x10000
WS_BD  = 0x30000
ROWP   = 4352
WS_BS  = 0x50000
WS_BF  = 0x78000
WS_BO  = 0xA0000
BOP    = 4096 + 128
REPP   = 17 * 128
WS_FLA = 0x130000
WS_FLB = 0x148000
WS_ST  = 0x400000

L_RQ   = 0
L_RG   = L_RQ + 2048
L_QL   = L_RG + 4096
QLP    = 272
L_WT   = L_QL + 2304
L_VEC  = L_WT + 512
L_XQ   = L_VEC + 256
L_XG   = L_XQ + 256
L_RF   = L_XG + 512
L_CNT  = L_RF + 2048
C_Q, C_G, C_X, C_QL, C_HB, C_FO, C_GA, C_B1, C_F1 = [L_CNT + 4*i for i in range(9)]
C_LOC = L_CNT + 36
C_XN, C_K, C_V = L_CNT + 48, L_CNT + 64, L_CNT + 80
L_K    = 12288
L_V    = L_K + 32768
assert L_CNT + 128 <= L_K
LDS_BYTES = L_V + 32768
YF, YL = 16, 30

TAGM = 0x3FF
LOG2E = 1.4426950408889634
SPIN_MAX = 1 << 20

sX, sY, sRB, sHQ, sRBQ, sTL, sG, sCH = 28, 29, 30, 31, 32, 33, 34, 35
sT32, sT10, sSPIN, sTMP = 36, 37, 38, 39
sW = 3
sGATE = 100
sTY, sUP, sR = 97, 98, 99
sP = 48
sSTAMP = 64


class Gen0:
    def __init__(self, stamps=False, prefetch=True, probe=None, abl='', xnpos=11, nrepA=4, nrepB=4, psleep=1,
                 WA=(6, 6, 5), WF=(6, 8, 8), pause='gather', fthr=6, wtest=None, fsleep=16, upx=2, layout='mix', plain='', gmod='sc1', local=False, touch=False, flagpos='end', HA=0, HF=0, vlate=False, kfirst=True, localD=False, earlyD=False, warm=None, warmO=False, qmap='grp', forceloc=False, xt=False, stag=False, mag=None, ftrans=False, flocal=None, fmod='sc1', fls=4, wideg=0, widew=False, wideq=0, xsleep=10, fdepth=2, outmod='', gateA=(1, 1), gateF=(0, 0), WAe=None, WFe=None):
        self.gateA, self.gateF = gateA, gateF
        self.WAe, self.WFe = WAe, WFe
        self.local = local
        self.fdepth = fdepth
        self.touch = touch
        self.warm = warm
        self.mag = mag
        self.ftrans, self.flocal, self.fmod, self.fls = ftrans, flocal, fmod, fls
        self.wideg, self.widew, self.wideq = wideg, widew, wideq
        self.xt, self.stag, self.xsleep = xt, stag, xsleep
        if xt:
            forceloc = True
        self.qmap, self.forceloc = qmap, forceloc
        self.warmO = warmO
        self.localD, self.earlyD = localD, earlyD
        self.kfirst = kfirst
        self.flagpos, self.HA, self.HF, self.vlate = flagpos, HA, HF, vlate
        self.outmod = outmod
        assert not local or layout != 'mix'
        self.gmod = gmod
        self.layout = layout
        self.plain = plain
        self.fsleep = fsleep
        self.upx = upx
        self.wtest = wtest
        self.fthr = fthr
        self.L = []
        self.stamps = stamps
        self.prefetch = prefetch
        self.probe = probe
        self.abl = abl
        self.xnpos = xnpos
        self.nrepA, self.nrepB = nrepA, nrepB
        self.psleep = psleep
        self.relwait = False
        self.WA, self.WF = WA, WF
        self.pause = pause
        self.nlab = 0

    def A(self, s):
        for line in s.strip("\n").split("\n"):
            if line.strip():
                self.L.append("    " + line.strip() if not line.strip().endswith(":") else line.strip())

    def lab(self, p="L"):
        self.nlab += 1
        return f"{p}_{self.nlab}"

    def stamp(self, k):
        if self.stamps == 'lite' and k not in (0, 10, 14):
            return
        if self.stamps or (self.probe and k in (0, self.probe[2])):
            self.A(f"s_memrealtime s[{sSTAMP+2*k}:{sSTAMP+2*k+1}]")

    def mask(self, reg, val):
        lo, hi = val & 0xFFFFFFFF, val >> 32
        self.A(f"s_mov_b32 {reg[0]}, {lo:#x}\ns_mov_b32 {reg[1]}, {hi:#x}")

    def exec_set(self, val):
        if val == -1:
            self.A("s_mov_b64 exec, -1")
        elif val <= 64:
            self.A(f"s_mov_b64 exec, {val}")
        elif val < (1 << 31):
            self.A(f"s_mov_b64 exec, {val:#x}")
        else:
            self.mask(("exec_lo", "exec_hi"), val)

    def arrive(self, cnt, want_old=True, inc=1):
        self.A(f"""
        s_mov_b64 exec, 1
        v_mov_b32 v1, {cnt}
        v_mov_b32 v2, {inc}""")
        if want_old:
            self.A(f"""
            ds_add_rtn_u32 v2, v1, v2
            s_waitcnt lgkmcnt(0)
            v_readfirstlane_b32 s{sTMP}, v2""")
        else:
            self.A("ds_add_u32 v1, v2")
        self.A("s_mov_b64 exec, -1")

    def lds_spin(self, cnt, val, sleep=1, reads="", low8=False):
        l = self.lab("Lspin"); d = self.lab("Lgot")
        self.A(f"""
        v_mov_b32 v1, {cnt}
        s_mov_b32 s{sSPIN}, 0
        {l}:
        ds_read_b32 v2, v1
        {reads}
        s_add_u32 s{sSPIN}, s{sSPIN}, 1
        s_cmp_gt_u32 s{sSPIN}, {SPIN_MAX}
        s_cbranch_scc1 L_end
        s_waitcnt lgkmcnt(0)
        v_readfirstlane_b32 s{sTMP}, v2""")
        if low8:
            self.A(f"s_lshr_b32 s101, s{sTMP}, 8\ns_and_b32 s{sTMP}, s{sTMP}, 0xff")
        if sleep:
            self.A(f"s_cmp_eq_u32 s{sTMP}, {val}\ns_cbranch_scc1 {d}\ns_sleep {sleep}\ns_branch {l}\n{d}:")
        else:
            self.A(f"s_cmp_eq_u32 s{sTMP}, {val}\ns_cbranch_scc0 {l}")

    def flag_poll(self, n, two=False):
        if 'nopoll' in self.abl:
            return
        l = self.lab("Lpoll"); r = self.lab("Lretry"); d = self.lab("Lflag")
        self.A(f"""
        s_mov_b32 s{sSPIN}, 0
        s_mov_b32 s42, s{sT32}
        s_mov_b32 s43, s{sT32}
        s_branch {l}
        {r}:
        s_sleep {self.psleep}
        {l}:
        s_load_dwordx{n} s[{sP}:{sP+n-1}], s[26:27], s40 glc
        {'s_load_dwordx16 s[4:19], s[26:27], s41 glc' if two else ''}
        s_add_u32 s{sSPIN}, s{sSPIN}, 1
        s_cmp_gt_u32 s{sSPIN}, {SPIN_MAX}
        s_cbranch_scc1 L_end
        s_waitcnt lgkmcnt(0)""")
        for b in ((sP, 4) if two else (sP,)):
            for i in range(0, n, 2):
                self.A(f"s_cmp_eq_u64 s[{b+i}:{b+i+1}], s[42:43]\ns_cbranch_scc0 {r}")
        self.A(f"{d}:")

    def gate(self, k, used):
        if k not in used:
            return
        l = self.lab("Lgate")
        self.A(f"s_cmp_eq_u32 s{sGATE}, {k}\ns_cbranch_scc0 {l}")
        self.arrive(C_GA, want_old=False)
        self.A(f"{l}:")

    def get_loc(self, vreg=None, sleep=0):
        l = self.lab("Lloc")
        if vreg is not None:
            self.A(f"v_readfirstlane_b32 s101, v{vreg}\ns_cmp_lg_u32 s101, 0\ns_cbranch_scc1 {l}_d")
        self.A(f"""
        v_mov_b32 v1, {C_LOC}
        s_mov_b32 s{sSPIN}, 0
        {l}:
        {f's_sleep {sleep}' if sleep else ''}
        ds_read_b32 v2, v1
        s_add_u32 s{sSPIN}, s{sSPIN}, 1
        s_cmp_gt_u32 s{sSPIN}, {SPIN_MAX}
        s_cbranch_scc1 L_end
        s_waitcnt lgkmcnt(0)
        v_readfirstlane_b32 s101, v2
        s_cmp_eq_u32 s101, 0
        s_cbranch_scc1 {l}
        {l}_d:
        s_lshr_b32 s101, s101, 1""")

    def early_flag(self, pos):
        if self.flagpos != pos:
            return
        l = self.lab("Lef")
        self.A(f"s_or_b32 s40, s101, s{sW}\ns_cbranch_scc1 {l}\ns_mov_b32 s40, s95")
        self.flag_store(self.nrepB)
        self.A(f"{l}:")

    def flag_store(self, n, vaddr=None, val=sT32):
        self.exec_set((1 << n) - 1)
        self.A(f"""
        {f'v_mul_u32_u24 v1, {REPP}, v0' if vaddr is None else ''}
        v_add_u32 v1, s40, v{1 if vaddr is None else vaddr}
        v_mov_b32 v2, s{val}
        global_store_dword v1, v2, s[26:27] sc1
        s_mov_b64 exec, -1""")

    def tagcheck(self, regs, vacc, vt):
        first = True
        for r in regs:
            if first:
                self.A(f"v_bitop3_b32 v{vacc}, v{r}, v{r+1}, s{sT10} bitop3:0x7e")
                self.A(f"v_bitop3_b32 v{vt}, v{r+2}, v{r+3}, s{sT10} bitop3:0x7e")
                self.A(f"v_or_b32 v{vacc}, v{vacc}, v{vt}")
                first = False
            else:
                self.A(f"v_bitop3_b32 v{vt}, v{r}, v{r+1}, s{sT10} bitop3:0x7e")
                self.A(f"v_bitop3_b32 v{vt+1}, v{r+2}, v{r+3}, s{sT10} bitop3:0x7e")
                self.A(f"v_or3_b32 v{vacc}, v{vacc}, v{vt}, v{vt+1}")

    def tagcheck2(self, regs, vacc, vt):
        out = []
        for i, r in enumerate(regs):
            d = vacc if i == 0 else vt + (i - 1) % 2
            self.A(f"v_bitop3_b32 v{d}, v{r}, v{r+3}, s{sT10} bitop3:0x7e")
            if i and i % 2 == 0:
                self.A(f"v_or3_b32 v{vacc}, v{vacc}, v{vt}, v{vt+1}")
        if len(regs) % 2 == 0:
            self.A(f"v_or_b32 v{vacc}, v{vacc}, v{vt}")

    def untag_list(self, regs, vacc, first=True):
        out = []
        for i, r in enumerate(regs):
            out += [f"v_xor_b32 v{r+k}, s{sT10}, v{r+k}" for k in range(4)]
            if i == 0 and first:
                out += [f"v_or3_b32 v{vacc}, v{r}, v{r+1}, v{r+2}", f"v_or_b32 v{vacc}, v{vacc}, v{r+3}"]
            else:
                out += [f"v_or3_b32 v{vacc}, v{vacc}, v{r}, v{r+1}", f"v_or3_b32 v{vacc}, v{vacc}, v{r+2}, v{r+3}"]
        return out

    def untag(self, regs, vacc, counted=False):
        ins = self.untag_list(regs, vacc)
        for i in range(len(regs)):
            if counted and i % 2 == 0:
                self.A(f"s_waitcnt vmcnt({max(0, len(regs) - 2 - i)})")
            self.A("\n".join(ins[6*i:6*i+6]))

    def pad2(self, fill):
        if len(fill) >= 2:
            self.A(fill.pop(0) + "\n" + fill.pop(0))
        else:
            self.A("s_nop 1")

    def tagtest(self, vacc, retry):
        if 'notag' in self.abl:
            return
        self.A(f"""
        v_and_b32 v{vacc}, {TAGM:#x}, v{vacc}
        v_cmp_ne_u32 vcc, 0, v{vacc}
        {'s_add_u32 s96, s96, 1' if self.stamps else ''}
        s_add_u32 s{sSPIN}, s{sSPIN}, 1
        s_cmp_gt_u32 s{sSPIN}, {SPIN_MAX}
        s_cbranch_scc1 L_end
        s_nop 1
        s_cbranch_vccnz {retry}""")

    def tag(self, r):
        self.A(f"v_bfi_b32 v{r}, s44, v3, v{r}")

    def reduce_scatter_rows(self, a):
        self.A(f"""
        s_nop 1
        v_permlane32_swap_b32 v{a}, v{a+2}
        v_permlane32_swap_b32 v{a+1}, v{a+3}
        v_add_f32 v{a}, v{a}, v{a+2}
        v_add_f32 v{a+1}, v{a+1}, v{a+3}
        s_nop 1
        v_permlane16_swap_b32 v{a}, v{a+1}
        v_add_f32 v{a}, v{a}, v{a+1}""")

    def allreduce_rows(self, a, t, op):
        self.A(f"""
        v_mov_b32 v{t}, v{a}
        s_nop 1
        v_permlane32_swap_b32 v{t}, v{a}
        {op} v{a}, v{a}, v{t}
        v_mov_b32 v{t}, v{a}
        s_nop 1
        v_permlane16_swap_b32 v{t}, v{a}
        {op} v{a}, v{a}, v{t}""")

    def allreduce_in_row(self, a, op="v_add_f32", fill=None):
        for m in ("quad_perm:[1,0,3,2]", "quad_perm:[2,3,0,1]", "row_half_mirror", "row_mirror"):
            self.pad2(fill if fill is not None else [])
            self.A(f"{op}_dpp v{a}, v{a}, v{a} {m} row_mask:0xf bank_mask:0xf")

    def bf16_round(self, d, s):
        self.A(f"v_cvt_pk_bf16_f32 v{d}, v{s}, v{s}\nv_and_b32 v{d}, 0xffff0000, v{d}")

    def build(self):
        A = self.A
        self.L.append(f"; @launch grid=(256,1,1) block=(512,1,1) lds={getattr(self, 'ldsb', None) or LDS_BYTES}")
        self.L.append('.amdgcn_target "amdgcn-amd-amdhsa--gfx950"')
        self.L += [".text", f".globl {KN}", ".p2align 12", ".p2align 8", f".type {KN},@function", f"{KN}:"]
        self.stamp(0)
        if self.mag:
            A("s_memrealtime s[90:91]")
        A(f"""
        s_cmp_ge_u32 s2, 256
        s_cbranch_scc1 L_end
        s_load_dwordx16 s[4:19], s[0:1], 0
        s_load_dwordx8 s[20:27], s[0:1], 64
        v_lshrrev_b32 v1, 6, v0
        s_and_b32 s{sX}, s2, 7
        s_lshr_b32 s{sY}, s2, 3
        v_readfirstlane_b32 s{sW}, v1""")
        if self.prefetch:
            A(f"""
            s_getpc_b64 s[46:47]
            L_pc:
            s_lshl_b32 s42, s{sY}, 9
            v_add_u32 v1, s42, v0
            v_min_u32 v1, L_codeend-L_pc-4, v1
            s_mov_b64 exec, 1
            global_load_ubyte v55, v1, s[46:47]
            s_mov_b64 exec, -1""")
        A(f"""
        v_and_b32 v0, 63, v0
""")
        if self.layout == 'mix':
            A(f"""
            s_lshr_b32 s{sHQ}, s{sY}, 3
            s_lshl2_add_u32 s{sHQ}, s{sX}, s{sHQ}
            s_and_b32 s{sRBQ}, s{sY}, 7
            s_lshr_b32 s{sG}, s{sX}, 1
            s_and_b32 s{sCH}, s{sX}, 1
            s_lshl4_add_u32 s{sCH}, s{sCH}, s{sY}
            s_lshl4_add_u32 s40, s{sX}, s{sY}
            s_mul_i32 s41, s{sX}, 14
            s_add_u32 s41, s41, s{sY}
            s_sub_u32 s41, s41, {YF}
            s_cmp_lt_u32 s{sY}, {YF}
            s_cselect_b32 s40, s40, s41
            s_cselect_b32 s{sTY}, 0, 1
            s_cmp_ge_u32 s{sY}, {YL}
            s_addc_u32 s{sTY}, s{sTY}, 0
            s_lshr_b32 s{sTL}, s40, 2
            s_and_b32 s{sRB}, s40, 3
            s_xor_b32 s{sUP}, s{sTL}, {self.upx}
            s_lshl1_add_u32 s{sR}, s{sX}, s{sY}
            s_sub_u32 s{sR}, s{sR}, {YL}""")
        else:
            if self.layout == 'odd':
                A(f"s_lshr_b32 s{sG}, s{sX}, 1\ns_and_b32 s{sTY}, s{sX}, 1\ns_xor_b32 s{sTY}, s{sTY}, 1")
            else:
                A(f"s_and_b32 s{sG}, s{sX}, 3\ns_lshr_b32 s{sTY}, s{sX}, 2")
                if self.layout == 'hi':
                    A(f"s_xor_b32 s{sTY}, s{sTY}, 1")
            A(f"""
            s_mov_b32 s{sCH}, s{sY}
            s_and_b32 s{sRB}, s{sY}, 3
            s_lshr_b32 s40, s{sY}, 2
            s_lshl3_add_u32 s{sHQ}, s{sG}, s40
            s_lshl2_add_u32 s{sRBQ}, s{sTY}, s{sRB}
            s_mul_i32 s41, s{sG}, s{sTY}
            s_sub_u32 s{sTL}, s{sHQ}, s41
            s_add_u32 s{sUP}, s40, {self.upx}
            s_cmp_ge_u32 s{sUP}, 7
            s_cselect_b32 s41, 7, 0
            s_sub_u32 s{sUP}, s{sUP}, s41
            s_sub_u32 s{sUP}, s{sUP}, s40
            s_add_u32 s{sUP}, s{sUP}, s{sTL}
            s_lshl2_add_u32 s{sR}, s{sG}, s{sRB}
            s_cmp_eq_u32 s40, 7
            s_cselect_b32 s41, s{sTY}, 0
            s_add_u32 s{sTY}, s{sTY}, s41""")
        A(f"""
""")
        if self.ftrans:
            A(f"""
            s_cmp_eq_u32 s{sTY}, 1
            s_cselect_b32 s{sTL}, s{sY}, s{sTL}
            s_cselect_b32 s{sRB}, s{sG}, s{sRB}
            s_xor_b32 s{sUP}, s{sTL}, {self.upx}""")
        A(f"""
        {f's_mov_b32 s{sHQ}, s{sY}' if self.qmap == 'rows' else ''}
        {f's_mov_b32 s{sRBQ}, s{sX}' if self.qmap == 'rows' else ''}
        s_cmp_lt_u32 s{sX}, 2
        s_cselect_b32 s40, {self.gateA[0]}, {self.gateA[1]}
        s_cselect_b32 s41, {self.gateF[0]}, {self.gateF[1]}
        s_cmp_eq_u32 s{sTY}, 0
        s_cselect_b32 s{sGATE}, s40, s41
        s_movk_i32 s44, {TAGM:#x}
        v_and_b32 v4, 15, v0
        v_lshrrev_b32 v5, 4, v0""")
        if self.stamps or self.probe:
            A(f"s_mov_b32 s96, 0\ns_mov_b32 s94, s{sW}")
        if self.probe:
            A(f"s_waitcnt lgkmcnt(0)\ns_mov_b32 s{sSTAMP+2*self.probe[2]}, s{sSTAMP}")
        A(f"""
        s_cmp_lt_u32 s{sW}, 4
        s_cbranch_scc1 L_awave""")
        L0 = self.L
        self.L = []
        self.swave()
        cut = self.L.index("L_sdispatch:")
        shead, stail = self.L[:cut], self.L[cut:]
        self.L = L0 + shead
        A("s_branch L_sdispatch\nL_awave:")
        self.awave()
        self.L += stail
        self.final()
        A("L_end:")
        A("s_endpgm")
        self.L.append("L_codeend:")
        nv = getattr(self, 'nvo', None) or 200
        self.L += ['.section .rodata,"a"', ".p2align 6", f".amdhsa_kernel {KN}",
                   f"  .amdhsa_next_free_vgpr {nv}", "  .amdhsa_next_free_sgpr 102", f"  .amdhsa_accum_offset {nv}",
                   "  .amdhsa_group_segment_fixed_size 0", "  .amdhsa_kernarg_size 96", "  .amdhsa_user_sgpr_count 2",
                   "  .amdhsa_user_sgpr_kernarg_segment_ptr 1", "  .amdhsa_system_sgpr_workgroup_id_x 1",
                   "  .amdhsa_float_denorm_mode_32 3", ".end_amdhsa_kernel"]
        return "\n".join(self.L) + "\n"

    def write_stamps(self, n):
        if self.probe:
            wg, wave, k = self.probe[:3]
            ty = self.probe[3] if len(self.probe) > 3 else None
            self.stamp(n)
            d = self.lab("Lprobe_done"); l = self.lab("Lprobe")
            self.A(f"""
            s_waitcnt lgkmcnt(0)
            s_getreg_b32 s41, hwreg(HW_REG_XCC_ID, 0, 4)
            {f's_cmp_eq_u32 s41, {-wg-100}' if wg <= -100 else f"s_cmp_eq_u32 s2, {wg if wg >= 0 else 's2'}"}
            s_cbranch_scc0 {d}
            s_cmp_eq_u32 s94, {wave}
            s_cbranch_scc0 {d}
            s_cmp_eq_u32 s{sTY}, {ty if ty is not None else f's{sTY}'}
            s_cbranch_scc0 {d}
            s_add_u32 s40, s{sSTAMP+2*k}, 4000
            {l}:
            s_memrealtime s[42:43]
            s_waitcnt lgkmcnt(0)
            s_sub_u32 s41, s42, s40
            s_cmp_lt_i32 s41, 0
            s_cbranch_scc1 {l}
            {d}:""")
            return
        if not self.stamps:
            return
        self.stamp(n)
        A = self.A
        A(f"""
        s_waitcnt lgkmcnt(0)
        s_mov_b64 exec, -1
        s_lshl3_add_u32 s40, s2, s94
        s_lshl_b32 s40, s40, 6
        s_add_u32 s40, s40, {WS_ST:#x}
        v_mov_b32 v1, 0""")
        for k in range(n + 1):
            A(f"v_writelane_b32 v1, s{sSTAMP+2*k}, {k}")
        A(f"""
        s_getreg_b32 s41, hwreg(HW_REG_XCC_ID)
        s_and_b32 s41, s41, 0xf
        s_lshl4_add_u32 s41, s96, s41
        v_writelane_b32 v1, s41, 15
        v_lshl_add_u32 v2, v0, 2, s40
        s_mov_b64 exec, 0xffff
        global_store_dword v2, v1, s[26:27]""")

    def swave(self):
        A = self.A
        vI, vJ = 4, 5
        vAq, vA1, vA2, vA3, vAw, vRed, vPub = 6, 7, 8, 9, 10, 11, 14
        vPS, vXQ, vXG, vSEL, aQ, aG, aU, vT = 16, 24, 28, 36, 40, 44, 48, 52
        RING, BIG = 56, 120
        A(f"""
        L_swave:
        s_sub_u32 s{sW}, s{sW}, 4
        s_lshl2_add_u32 s40, s{sRBQ}, s{sW}
        s_lshl_b32 s40, s40, 18
        s_lshl_b32 s41, s{sHQ}, 8
        s_add_u32 s40, s40, s41
        v_lshlrev_b32 v13, 4, v{vI}
        v_lshl_add_u32 v{vAq}, v{vJ}, 13, v13
        v_add_u32 v{vAq}, s40, v{vAq}
        s_mov_b32 s45, 0x8000""")
        if self.wideq:
            A(f"""
            s_lshl2_add_u32 s40, s2, s{sW}
            s_lshl_b32 s40, s40, 13
            v_lshl_add_u32 v{vAq}, v0, 4, s40
            s_movk_i32 s45, 0x400""")
        A("s_waitcnt lgkmcnt(0)")
        for m in range(8):
            A(f"global_load_dwordx4 v[{RING+4*m}:{RING+4*m+3}], v{vAq}, s[10:11] nt")
            if m < 7:
                A(f"v_add_u32 v{vAq}, s45, v{vAq}")
        A(f"s_load_dword s{sT32}, s[26:27], {WS_E}")
        if self.mag:
            A(f"""
            s_lshl_b32 s40, s2, 2
            s_add_u32 s40, s40, 0x300000
            v_mov_b32 v1, s40
            v_mov_b32 v2, s90
            s_mov_b64 exec, 1
            global_store_dword v1, v2, s[26:27] sc1
            s_mov_b64 exec, -1""")
        self.stamp(1)
        A(f"""
        ; wo / down: rows tile*128 + 8*m + (l>>3), columns cb*256 + sw*64 + 8*(l&7)
        v_lshrrev_b32 v12, 3, v0
        v_and_b32 v1, 7, v0
        v_lshlrev_b32 v2, 4, v1
        v_lshl_add_u32 v{vAw}, v12, 11, v2
        s_lshl2_add_u32 s42, s{sRB}, s{sW}
        s_lshl_b32 s40, s42, 7
        s_lshl_b32 s41, s{sTL}, 18
        s_add_u32 s40, s40, s41
        v_add_u32 v{vAw}, s40, v{vAw}
        s_movk_i32 s45, 0x4000""")
        if self.widew:
            A(f"""
            s_lshl_b32 s40, s{sW}, 16
            s_add_u32 s41, s41, s40
            s_lshl_b32 s40, s{sRB}, 9
            s_add_u32 s41, s41, s40
            v_lshrrev_b32 v2, 5, v0
            v_lshlrev_b32 v2, 11, v2
            v_and_b32 v{vAw}, 31, v0
            v_lshl_add_u32 v{vAw}, v{vAw}, 4, v2
            v_add_u32 v{vAw}, s41, v{vAw}
            s_movk_i32 s45, 0x1000""")
        A(f"""
        v_lshl_add_u32 v1, v1, 1, v{vJ}
        s_lshl_b32 s40, s42, 8
        v_lshl_add_u32 v{vPub}, v1, 4, s40
        ; LDS offset of this lane's partial granule: (2*(l&15) + J)*16
        v_lshl_add_u32 v{vRed}, v{vI}, 1, v{vJ}
        v_lshlrev_b32 v{vRed}, 4, v{vRed}
        s_mov_b32 s40, 0xaaaaaaaa
        s_mov_b32 s41, 0xaaaaaaaa
        v_mov_b32 v1, 0x0c0c0100
        v_mov_b32 v2, 0x01000c0c
        v_cndmask_b32 v1, v1, v2, s[40:41]
        v_mov_b32 v2, 0x0c0c0302
        v_mov_b32 v3, 0x03020c0c
        v_cndmask_b32 v2, v2, v3, s[40:41]
        v_mov_b32 v3, 0x0c0c0c0c""")
        for d in range(4):
            m = 0x03030303 << (2*d)
            A(f"""
            s_mov_b32 s40, {m:#x}
            s_mov_b32 s41, {m:#x}
            v_cndmask_b32 v{vPS+d}, v3, v1, s[40:41]
            v_cndmask_b32 v{vPS+4+d}, v3, v2, s[40:41]""")
        A(f"""
        s_barrier
        s_waitcnt lgkmcnt(0)
        s_add_u32 s{sT32}, s{sT32}, 1
        s_and_b32 s{sT10}, s{sT32}, s44
        v_mov_b32 v3, s{sT10}
        s_cmp_ge_u32 s{sTY}, 1
        s_cbranch_scc1 L_s_notattn
        L_sdispatch:""")

        def sel(m, dst, src):
            for d in range(4):
                A(f"v_perm_b32 v{dst+d}, v{src+(m>>1)}, v{src+(m>>1)}, v{vPS+4*(m&1)+d}")

        def mfma(acc, s, w, first):
            c = "0" if first else f"v[{acc}:{acc+3}]"
            A(f"v_mfma_f32_16x16x32_bf16 v[{acc}:{acc+3}], v[{s}:{s+3}], v[{w}:{w+3}], {c}")

        def get_xn(ffn):
            A(f"s_lshl_b32 s41, s{sW}, 2\ns_add_u32 s41, s41, {C_XN}")
            self.lds_spin("s41", 1, sleep=0)
            A(f"""
            s_lshl_b32 s40, s{sW}, 6
            v_lshl_add_u32 v2, v{vJ}, 4, s40
            ds_read_b128 v[{vXQ}:{vXQ+3}], v2 offset:{L_XQ}""")
            if ffn:
                A(f"""
                v_lshlrev_b32 v2, 1, v2
                ds_read_b128 v[{vXG}:{vXG+3}], v2 offset:{L_XG}
                ds_read_b128 v[{vXG+4}:{vXG+7}], v2 offset:{L_XG+16}""")
            A("s_waitcnt lgkmcnt(0)")
            self.stamp(3)
            sel(0, vSEL, vXQ)
            A("s_nop 1")

        def red_write(accs, lbase, shift, cnt):
            A(f"s_lshl_b32 s40, s{sW}, {shift}\nv_add_u32 v1, s40, v{vRed}\ns_mov_b32 exec_hi, 0")
            for i, a in enumerate(accs):
                A(f"ds_write_b128 v1, v[{a}:{a+3}] offset:{lbase + 512*i}")
            self.arrive(cnt, want_old=False)

        def kvflag(c):
            A(f"""
            s_lshl_b32 s40, s{sW}, 2
            s_mov_b64 exec, 1
            v_mov_b32 v1, s40
            v_mov_b32 v2, 1
            ds_write_b32 v1, v2 offset:{c}
            s_mov_b64 exec, -1""")

        def issue(op, i):
            kind, m = op
            slot = RING + 4*(i % 16)
            if kind in "kv":
                va, sb, x = (vA1, 6, 64*(m & 3)) if kind == "k" else (vA2, 8, 128*(m & 1))
                if m % 4 == 0:
                    if i > 8:
                        A(f"s_add_u32 s47, s47, {4096 if m == 4 else L_V - L_K - 4096}")
                    A("s_mov_b32 m0, s47")
                    if m == 4:
                        A(f"v_add_u32 v{va}, 4096, v{va}")
                A(f"v_xor_b32 v1, {x}, v{va}")
                A(f"global_load_lds_dwordx4 v1, s[{sb}:{sb+1}] offset:{1024*(m&3)} nt")
            elif kind in "gu":
                va, sb = (vA1, 16) if kind == "g" else (vA2, 18)
                A(f"global_load_dwordx4 v[{slot}:{slot+3}], v{va}, s[{sb}:{sb+1}] nt")
                if m < 15:
                    A(f"v_add_u32 v{va}, s{47 if (self.stag and m % 2) else 46}, v{va}")
            elif kind in "do":
                sb = 20 if kind == "d" else 12
                A(f"global_load_dwordx4 v[{BIG+4*m}:{BIG+4*m+3}], v{vAw}, s[{sb}:{sb+1}] nt")
                if m < 15:
                    A(f"v_add_u32 v{vAw}, s45, v{vAw}")

        def process(op, i, ffn):
            kind, m = op
            slot = RING + 4*(i % 16)
            if kind == "q":
                mfma(aQ, vSEL, slot, m == 0)
                if m < 7:
                    sel(m + 1, vSEL, vXQ)
                    A("s_nop 1")
                else:
                    if ffn:
                        sel(0, vSEL, vXG)
                        A("s_nop 0")
                    else:
                        A("s_nop 4")
                    red_write([aQ], L_RQ, 9, C_Q)
                    self.stamp(4)
            elif kind in "kv" and m == 7:
                l = self.lab("Lkvf")
                if self.after_pause:
                    A(f"s_cmp_lg_u32 s43, 0\ns_cbranch_scc1 {l}")
                kvflag(C_K if kind == "k" else C_V)
                if kind == "v":
                    self.stamp(5)
                A(f"{l}:")
            elif kind == "g":
                mfma(aG, vSEL, slot, m == 0)
            elif kind == "u":
                mfma(aU, vSEL, slot, m == 0)
                if m < 15:
                    sel(m + 1, vSEL, vXG)
                    A("s_nop 1")
                else:
                    A("s_nop 4")
                    red_write([aG, aU], L_RG, 10, C_G)
                    self.stamp(6)

        def stream(ops, wfun, ffn, start=8, landed=0, hold=0, holdcnt=0):
            if 'noa' in self.abl or 'nofin' in self.abl:
                hold = 0
            for i in range(start, len(ops)):
                w = wfun(i)
                if hold and i == len(ops) - hold:
                    assert landed >= start
                    self.lds_spin(C_HB, holdcnt, sleep=1)
                if hold and i >= len(ops) - hold:
                    w = max(w, hold)
                A(f"s_waitcnt vmcnt({w-1})")
                issue(ops[i], i)
                if i < self.xnpos:
                    continue
                if i == self.xnpos:
                    get_xn(ffn)
                while landed <= i - w:
                    process(ops[landed], landed, ffn); landed += 1
            return landed

        def drain(ops, landed, upto, ffn):
            n = len(ops)
            while landed < upto:
                if ops[landed][0] in "qgu":
                    A(f"s_waitcnt vmcnt({n - 1 - landed})")
                    process(ops[landed], landed, ffn)
                landed += 1
            return landed

        def final_gemv(val, first, nops, landed, wsb):
            A(f"""
            v_lshlrev_b32 v15, 5, v12
            s_mul_i32 s40, s{sTL}, {ROWP}
            s_add_u32 s40, s40, {wsb:#x}
            v_add_u32 v{vPub}, s40, v{vPub}""")
            floc = self.flocal == 'xt' and wsb == WS_BF
            if floc:
                self.get_loc()
            rd = f"ds_read_b128 v[{vXG}:{vXG+3}], v15 offset:{L_VEC}\nds_read_b128 v[{vXG+4}:{vXG+7}], v15 offset:{L_VEC+16}"
            if 'noa' not in self.abl and 'nofin' not in self.abl:
                self.lds_spin(C_FO, val, sleep=0, reads=rd)
            else:
                A(rd + "\ns_waitcnt lgkmcnt(0)")
            self.stamp(8)
            self.L.append(".p2align 3")
            late = [m for m in range(16) if first + m >= landed]
            early = [m for m in range(16) if first + m < landed]
            for k, m in enumerate(early):
                sel(m, RING + 4*m, vXG)
                if k:
                    mfma(aQ, RING + 4*early[k-1], BIG + 4*early[k-1], k == 1)
            for k, m in enumerate(late):
                sel(m, RING + 4*m, vXG)
                if k == 0 and early:
                    mfma(aQ, RING + 4*early[-1], BIG + 4*early[-1], len(early) == 1)
            self.stamp(9)
            for k, m in enumerate(late):
                A(f"s_waitcnt vmcnt({nops - 1 - (first + m)})")
                mfma(aQ, RING + 4*m, BIG + 4*m, k == 0 and not early)
            g = vT
            A(f"""
            s_nop 7
            v_permlane32_swap_b32 v{aQ}, v{aQ+2}
            v_permlane32_swap_b32 v{aQ+1}, v{aQ+3}
            s_nop 0
            v_add_f32_dpp v{g}, v{aQ+2}, v{aQ} row_shl:8 row_mask:0xf bank_mask:0xf bound_ctrl:1
            v_add_f32_dpp v{g+1}, v{aQ+3}, v{aQ+1} row_shl:8 row_mask:0xf bank_mask:0xf bound_ctrl:1""")
            self.tag(g); self.tag(g + 1)
            A(f"""
            s_nop 0
            v_permlane32_swap_b32 v{g}, v{g+2}
            v_permlane32_swap_b32 v{g+1}, v{g+3}
            s_mov_b64 exec, 0x00ff00ff""")
            if floc:
                l = self.lab("Lfrem")
                A(f"""
                s_cmp_lg_u32 s101, 0
                s_cbranch_scc1 {l}
                global_store_dwordx4 v{vPub}, v[{g}:{g+3}], s[26:27]
                s_branch {l}_d
                {l}:
                global_store_dwordx4 v{vPub}, v[{g}:{g+3}], s[26:27] sc1
                {l}_d:""")
            else:
                A(f"global_store_dwordx4 v{vPub}, v[{g}:{g+3}], s[26:27] {'' if (self.flocal == 'force' and wsb == WS_BF) else 'sc1'}")
            A("s_mov_b64 exec, -1")

        qops = [("q", m) for m in range(8)]
        A(f"""
        s_lshl_b32 s40, s{sG}, 24
        s_lshl_b32 s41, s{sCH}, 15
        s_add_u32 s40, s40, s41
        s_lshl_b32 s47, s{sW}, 13
        s_add_u32 s40, s40, s47
        s_add_u32 s47, s47, {L_K}
        s_add_u32 s40, s40, {(65536-4096)*256:#x}
        v_xor_b32 v1, v{vI}, v{vJ}
        v_lshlrev_b32 v1, 4, v1
        v_lshl_add_u32 v1, v{vJ}, 8, v1
        v_add_u32 v{vA1}, s40, v1
        v_lshlrev_b32 v1, 1, v{vJ}
        v_xor_b32 v1, v{vI}, v1
        v_lshlrev_b32 v1, 4, v1
        v_lshl_add_u32 v1, v{vJ}, 8, v1
        v_add_u32 v{vA2}, s40, v1""")
        ops = qops + [("k", m) for m in range(8)] + [("v", m) for m in range(8)]
        WA = self.WA
        self.after_pause = False
        landed = stream(ops, lambda i: WA[0] if i < 14 else WA[1], False)
        self.after_pause = True
        A("s_mov_b32 s43, 0")
        if self.pause and 'noa' not in self.abl:
            go = self.lab("Lgo")
            if 0 in self.gateA:
                A(f"s_cmp_eq_u32 s{sGATE}, 0\ns_cbranch_scc1 {go}")
            A(f"""
            v_mov_b32 v1, {C_GA}
            ds_read_b32 v2, v1
            s_waitcnt lgkmcnt(0)
            v_readfirstlane_b32 s{sTMP}, v2
            s_cmp_eq_u32 s{sTMP}, 4
            s_cbranch_scc1 {go}
            s_waitcnt vmcnt(0)
            s_mov_b32 s43, 1""")
            assert landed >= 8
            if landed < 16:
                kvflag(C_K)
            kvflag(C_V)
            self.stamp(5)
            self.lds_spin(C_GA, 4, sleep=1)
            A(f"{go}:")
            self.stamp(6)
        ops = ops + [("o", m) for m in range(16)]
        for w3 in ([self.WAe, WA[2]] if self.WAe else [WA[2]]):
            nxt = self.lab("Lsa")
            if self.WAe and w3 == self.WAe:
                A(f"s_cmp_lt_u32 s{sX}, 2\ns_cbranch_scc0 {nxt}")
            l2 = stream(ops, lambda i: w3 if (i < 32 or len(WA) < 4) else WA[3], False, start=24, landed=landed, hold=self.HA, holdcnt=4)
            assert l2 >= 24
            self.stamp(7)
            final_gemv(4, 24, 40, l2, WS_BS)
            self.write_stamps(10)
            A(f"s_endpgm\n{nxt}:")
        A(f"""
        L_s_notattn:
        s_cmp_ge_u32 s{sTY}, 2
        s_cbranch_scc1 L_s_last
        s_lshl2_add_u32 s40, s{sRB}, s{sW}
        s_mul_i32 s40, s40, {64*7168}""")
        if self.stag:
            A(f"""
            s_and_b32 s41, s{sW}, 1
            s_mul_i32 s42, s41, {4*7168}
            s_add_u32 s40, s40, s42""")
        A(f"""
        v_mul_u32_u24 v1, 7168, v{vJ}
        v_add3_u32 v1, v1, v13, s40
        s_lshl_b32 s41, s{sTL}, 8
        v_add_u32 v{vA1}, s41, v1
        s_lshl_b32 s41, s{sUP}, 8
        v_add_u32 v{vA2}, s41, v1
        s_movk_i32 s46, {7168*4}""")
        if self.stag:
            A("s_lshl_b32 s42, s42, 1\ns_add_u32 s47, s46, s42\ns_sub_u32 s46, s46, s42")
        if self.wideg:
            wd = self.wideg; nt = 7168 // wd; rpi = 1024 // wd; lpr = wd // 16
            import math
            A(f"""
            s_lshl2_add_u32 s40, s{sTL}, s{sRB}
            s_mul_hi_u32 s41, s40, {-(-(1 << 32) // nt)}
            s_mul_i32 s42, s41, {nt}
            s_sub_u32 s42, s40, s42
            s_lshl2_add_u32 s41, s41, s{sW}
            s_mul_i32 s41, s41, {16*rpi*7168}
            s_mul_i32 s42, s42, {wd}
            s_add_u32 s41, s41, s42
            v_lshrrev_b32 v1, {int(math.log2(lpr))}, v0
            v_mul_u32_u24 v1, 7168, v1
            v_and_b32 v2, {lpr-1}, v0
            v_lshl_add_u32 v1, v2, 4, v1
            v_add_u32 v{vA1}, s41, v1
            v_mov_b32 v{vA2}, v{vA1}
            s_movk_i32 s46, {7168*rpi}""")
        ops = qops + [(k, m) for m in range(16) for k in "gu"] + [("d", m) for m in range(16)]
        WF = self.WF
        landed = stream(ops[:40], lambda i: WF[0] if i < 14 else WF[1], True)
        gated = self.lab("Lsfg")
        if any(self.gateF) and 'noa' not in self.abl:
            A(f"s_cmp_lg_u32 s{sGATE}, 0\ns_cbranch_scc1 {gated}")
        if 0 in self.gateF or 'noa' in self.abl:
            l2 = stream(ops, lambda i: WF[2] if (i < 48 or len(WF) < 4) else WF[3], True, start=40, landed=landed, hold=self.HF, holdcnt=1)
            assert l2 >= 40
            self.stamp(7)
            final_gemv(1, 40, 56, l2, WS_BF)
            self.write_stamps(10)
            A("s_endpgm")
        if any(self.gateF) and 'noa' not in self.abl:
            A(f"{gated}:")
            l2 = drain(ops[:40], landed, 40, True)
            self.lds_spin(C_GA, 1, sleep=1)
            l2 = stream(ops, lambda i: self.WFe or WF[2], True, start=40, landed=l2)
            self.stamp(7)
            final_gemv(1, 40, 56, l2, WS_BF)
            self.write_stamps(10)
            A("s_endpgm")
        A("L_s_last:")
        get_xn(False)
        drain(qops, 0, 8, False)
        A(f"s_add_u32 s{sW}, s{sW}, 4\ns_branch L_final")

    def red_publish(self, lbase, pitch, cnt, nl, addr_code, nrep, flagv=None, sleep=1, val=sT32, local=False):
        A = self.A
        t = 16
        A("v_lshlrev_b32 v10, 4, v0")
        A(addr_code)
        if local and self.warm is not None:
            self.exec_set(0x0101010101010101)
            A(f"global_load_dword v54, v11, s[26:27] {self.warm}\ns_mov_b64 exec, -1")
        self.lds_spin(cnt, 4, sleep=sleep, reads="\n".join(f"ds_read_b128 v[{t+4*k}:{t+4*k+3}], v10 offset:{lbase+pitch*k}" for k in range(4)))
        if local and self.earlyD:
            l = self.lab("Lef")
            A(f"s_cmp_lg_u32 s101, 0\ns_cbranch_scc1 {l}")
            self.flag_store(nrep, flagv, val)
            A(f"{l}:")
        if nl == 32:
            A("s_mov_b32 exec_hi, 0")
        for h in (0, 2):
            A(f"v_pk_add_f32 v[{t+h}:{t+h+1}], v[{t+h}:{t+h+1}], v[{t+4+h}:{t+5+h}]")
            A(f"v_pk_add_f32 v[{t+8+h}:{t+9+h}], v[{t+8+h}:{t+9+h}], v[{t+12+h}:{t+13+h}]")
        for h in (0, 2):
            A(f"v_pk_add_f32 v[{t+h}:{t+h+1}], v[{t+h}:{t+h+1}], v[{t+8+h}:{t+9+h}]")
        for r in range(4):
            A(f"v_add_u32 v{t+r}, {(TAGM + 1) // 2:#x}, v{t+r}")
        for r in range(4):
            self.tag(t + r)
        if local:
            rem = self.lab("Lremote"); fl = self.lab("Lpub")
            A(f"""
            s_cmp_lg_u32 s101, 0
            s_cbranch_scc1 {rem}
            global_store_dwordx4 v11, v[{t}:{t+3}], s[26:27]
            s_branch {fl if not self.earlyD else fl + '_done'}
            {rem}:
            global_store_dwordx4 v11, v[{t}:{t+3}], s[26:27] sc1
            {fl}:""")
            self.flag_store(nrep, flagv, val)
            A(f"{fl}_done:")
        else:
            A(f"global_store_dwordx4 v11, v[{t}:{t+3}], s[26:27] sc1")
            self.flag_store(nrep, flagv, val)

    def awave(self):
        A = self.A
        vKF, vVF, vGT, vU = 56, 184, 216, 232
        vQF, vS = 216, 16
        vI, vJ = 4, 5
        vA0, vA1 = 6, 7
        vT = 16
        x0, xr = 56, 72
        A(f"""
        s_setprio 3
        s_lshl2_add_u32 s40, s{sRB}, s{sW}
        s_lshl_b32 s40, s40, 6
        v_lshlrev_b32 v14, 5, v0
        v_add_lshl_u32 v1, v0, s40, 1
        s_lshl2_add_u32 s40, s{sRBQ}, s{sW}
        s_lshl_b32 s40, s40, 5
        v_and_b32 v15, 31, v0
        v_add_lshl_u32 v15, v15, s40, 1
        v_mov_b32 v10, 0
        v_and_b32 v2, 31, v0
        v_lshlrev_b32 v2, 2, v2
        ds_write_b32 v2, v10 offset:{L_CNT}
        s_waitcnt lgkmcnt(0)
        global_load_dwordx4 v[{xr}:{xr+3}], v14, s[4:5]
        global_load_dwordx4 v[{xr+4}:{xr+7}], v14, s[4:5] offset:16
        global_load_ushort v{xr+8}, v15, s[4:5]
        global_load_ushort v{xr+9}, v1, s[4:5]
        s_load_dword s{sT32}, s[26:27], {WS_E}""")
        if self.touch:
            tf = self.lab("Ltf"); td = self.lab("Ltd")
            A(f"""
            s_cmp_eq_u32 s{sW}, 0
            s_cbranch_scc0 {td}
            s_lshl_b32 s41, s{sTL}, 18
            s_cmp_eq_u32 s{sTY}, 0
            s_cbranch_scc0 {tf}
            s_lshl_b32 s40, s{sG}, 24
            s_add_u32 s40, s40, {(65536-4096)*256:#x}
            s_load_dword s48, s[6:7], s40
            s_load_dword s49, s[8:9], s40
            s_load_dword s50, s[12:13], s41
            s_branch {td}
            {tf}:
            s_load_dword s48, s[22:23], 0
            s_cmp_eq_u32 s{sTY}, 1
            s_cbranch_scc0 {td}
            s_mul_i32 s40, s{sRB}, {256*7168}
            s_add_u32 s42, s40, {255*7168}
            s_load_dword s49, s[16:17], s40
            s_load_dword s50, s[18:19], s40
            s_load_dword s51, s[16:17], s42
            s_load_dword s52, s[18:19], s42
            s_load_dword s53, s[20:21], s41
            {td}:""")
        A("s_barrier")
        self.stamp(1)
        if self.xt:
            nx = self.lab("Lnoxt")
            A(f"""
            s_waitcnt lgkmcnt(0)
            s_cmp_lg_u32 s{sW}, 0
            s_cbranch_scc1 {nx}
            ; wave 0 announces the die this workgroup runs on
            s_getreg_b32 s45, hwreg(HW_REG_XCC_ID, 0, 4)
            s_lshl_b32 s45, s45, 28
            s_add_u32 s41, s{sT32}, 1
            s_xor_b32 s45, s45, s41
            s_lshl_b32 s95, s{sX}, 7
            s_add_u32 s95, s95, {WS_XA:#x}
            s_lshl2_add_u32 s41, s{sY}, s95
            s_mov_b64 exec, 1
            v_mov_b32 v1, s41
            v_mov_b32 v2, s45
            global_store_dword v1, v2, s[26:27] sc1
            s_mov_b64 exec, -1
            s_waitcnt vmcnt(1)
            s_branch {nx}_ln
            {nx}:
            s_waitcnt vmcnt(0)
            {nx}_ln:""")
        else:
            A(f"s_waitcnt vmcnt(0) lgkmcnt(0)")
        self.stamp(11)
        for i in range(8):
            A(f"v_lshlrev_b32 v{x0+2*i}, 16, v{xr+i}\nv_and_b32 v{x0+2*i+1}, 0xffff0000, v{xr+i}")
        A(f"v_pk_add_f32 v[{vT}:{vT+1}], v[{x0}:{x0+1}], v[{x0+2}:{x0+3}]")
        A(f"v_pk_add_f32 v[{vT+2}:{vT+3}], v[{x0+4}:{x0+5}], v[{x0+6}:{x0+7}]")
        for i in range(4, 8, 2):
            A(f"v_pk_add_f32 v[{vT}:{vT+1}], v[{vT}:{vT+1}], v[{x0+2*i}:{x0+2*i+1}]")
            A(f"v_pk_add_f32 v[{vT+2}:{vT+3}], v[{vT+2}:{vT+3}], v[{x0+2*i+2}:{x0+2*i+3}]")
        A(f"v_pk_add_f32 v[{vT}:{vT+1}], v[{vT}:{vT+1}], v[{vT+2}:{vT+3}]")
        A(f"v_add_f32 v{vT}, v{vT}, v{vT+1}")
        self.allreduce_in_row(vT)
        self.allreduce_rows(vT, vT+1, "v_add_f32")
        A(f"v_mul_f32 v{vT}, {f2u(1.0/1024):#x}, v{vT}")
        for i in range(8):
            A(f"v_pk_add_f32 v[{x0+2*i}:{x0+2*i+1}], v[{x0+2*i}:{x0+2*i+1}], v[{vT}:{vT+1}] op_sel_hi:[1,0] neg_lo:[0,1] neg_hi:[0,1]")
        A(f"v_pk_mul_f32 v[{vT+2}:{vT+3}], v[{x0}:{x0+1}], v[{x0}:{x0+1}]")
        A(f"v_pk_mul_f32 v[{vT+4}:{vT+5}], v[{x0+2}:{x0+3}], v[{x0+2}:{x0+3}]")
        for i in range(2, 8):
            d = vT + 2 + 2*(i & 1)
            A(f"v_pk_fma_f32 v[{d}:{d+1}], v[{x0+2*i}:{x0+2*i+1}], v[{x0+2*i}:{x0+2*i+1}], v[{d}:{d+1}]")
        A(f"v_pk_add_f32 v[{vT+2}:{vT+3}], v[{vT+2}:{vT+3}], v[{vT+4}:{vT+5}]")
        A(f"v_add_f32 v{vT+2}, v{vT+2}, v{vT+3}")
        r = xr + 8
        self.bf16_round(vT, vT)
        self.allreduce_in_row(vT+2)
        A(f"""
        v_lshlrev_b32 v{r}, 16, v{r}
        v_lshlrev_b32 v{r+1}, 16, v{r+1}
        v_pk_add_f32 v[{r}:{r+1}], v[{r}:{r+1}], v[{vT}:{vT+1}] op_sel_hi:[1,0] neg_lo:[0,1] neg_hi:[0,1]""")
        self.allreduce_rows(vT+2, vT+3, "v_add_f32")
        A(f"v_mul_f32 v{vT+2}, {f2u(1.0/1024):#x}, v{vT+2}")
        self.bf16_round(vT+2, vT+2)
        A(f"v_add_f32 v{vT+2}, {f2u(1e-5):#x}, v{vT+2}")
        self.bf16_round(vT+2, vT+2)
        A(f"""
        v_sqrt_f32 v{vT+2}, v{vT+2}
        v_cvt_pk_bf16_f32 v{r+1}, v{r}, v{r+1}
        v_lshlrev_b32 v{r}, 16, v{r+1}
        v_and_b32 v{r+1}, 0xffff0000, v{r+1}""")
        self.bf16_round(vT+2, vT+2)
        A(f"""
        v_rcp_f32 v{vT+2}, v{vT+2}
        v_and_b32 v1, 3, v0
        v_lshrrev_b32 v2, 2, v0
        v_lshlrev_b32 v2, 1, v2
        v_pk_mul_f32 v[{r}:{r+1}], v[{r}:{r+1}], v[{vT+2}:{vT+3}] op_sel_hi:[1,0]
        s_lshl_b32 s40, s{sW}, 6
        v_lshl_add_u32 v10, v1, 4, s40
        v_lshl_add_u32 v11, v10, 1, v2
        v_add_u32 v10, v10, v2""")
        if self.stag:
            A(f"s_and_b32 s41, s{sW}, 1\ns_lshl_b32 s41, s41, 1\nv_xor_b32 v11, s41, v11")
        A(f"""
        v_cvt_pk_bf16_f32 v{r}, v{r}, v{r+1}
        s_lshl_b32 s40, s{sW}, 2
        v_mov_b32 v2, s40
        v_mov_b32 v1, 1
        ds_write_b16_d16_hi v11, v{r} offset:{L_XG}
        s_mov_b32 exec_hi, 0
        ds_write_b16 v10, v{r} offset:{L_XQ}
        s_mov_b64 exec, 1
        ds_write_b32 v2, v1 offset:{C_XN}
        s_mov_b64 exec, -1
        s_add_u32 s{sT32}, s{sT32}, 1
        s_and_b32 s{sT10}, s{sT32}, s44
        v_mov_b32 v3, s{sT10}""")
        self.stamp(12)
        if self.wtest:
            pre, mod, n = self.wtest
            A(f"s_cmp_eq_u32 s{sW}, 3\ns_cbranch_scc0 L_adone")
            A(f"s_mul_i32 s42, s2, {n*1024}\ns_add_u32 s42, s42, 0x800000\nv_lshl_add_u32 v10, v0, 4, s42")
            if pre == 's':
                A("s_add_u32 s40, s26, s42\ns_addc_u32 s41, s27, 0")
                for i in range(n*16):
                    A(f"s_load_dword s48, s[40:41], {64*i} glc")
                A("s_waitcnt lgkmcnt(0)")
            elif pre:
                for i in range(n):
                    A(f"global_load_dwordx4 v[20:23], v10, s[26:27] offset:{1024*i} {pre[1:]}")
                A("s_waitcnt vmcnt(0)")
            self.lds_spin(C_Q, 4, sleep=1)
            A("s_sleep 64")
            for i in range(n):
                A(f"global_store_dwordx4 v10, v[16:19], s[26:27] offset:{1024*i} {mod}")
        if 'noa' in self.abl:
            A("s_branch L_adone")
        if self.xt:
            pass
        elif self.local:
            A(f"""
            s_getreg_b32 s45, hwreg(HW_REG_XCC_ID, 0, 4)
            s_lshl_b32 s45, s45, 28
            s_cmp_eq_u32 s{sTY}, 0
            s_cselect_b32 s45, s45, 0
            s_xor_b32 s45, s45, s{sT32}""")
        nq = self.lab("Lnoq")
        A(f"s_cmp_eq_u32 s{sW}, 3\ns_cbranch_scc0 {nq}")
        self.red_publish(L_RQ, 512, C_Q, 32, f"""
            s_lshl3_add_u32 s41, s{sHQ}, s{sRBQ}
            s_lshl_b32 s40, s41, 9
            s_add_u32 s40, s40, {WS_BQ:#x}
            v_add_u32 v11, s40, v10
            s_lshr_b32 s40, s41, 4
            s_and_b32 s41, s41, 15
            s_lshl_b32 s40, s40, 5
            s_add_u32 s40, s40, s41
            s_lshl_b32 s40, s40, 2
            s_add_u32 s40, s40, {WS_FLA:#x}""", self.nrepA, val=(45 if (self.local and not self.forceloc) else sT32))
        self.stamp(13)
        A(f"{nq}:")
        if self.xt:
            nc = self.lab("Lnocol"); l = self.lab("Lxt"); mem = self.lab("Lxm"); lv = self.lab("Lxv")
            A(f"""
            s_cmp_lg_u32 s{sW}, 0
            s_cbranch_scc1 {nc}
            s_lshl_b32 s46, s{sX}, 10
            s_add_u32 s46, s46, {WS_XV:#x}
            s_mov_b32 s{sSPIN}, 0
            s_cmp_lg_u32 s{sY}, 0
            s_cbranch_scc1 {mem}
            s_mov_b32 s42, s45
            s_mov_b32 s43, s45
            s_mov_b32 s101, 0
            s_add_u32 s41, s95, 128
            {l}:
            s_load_dwordx16 s[{sP}:{sP+15}], s[26:27], s95 glc
            s_add_u32 s{sSPIN}, s{sSPIN}, 1
            s_cmp_gt_u32 s{sSPIN}, {SPIN_MAX}
            s_cbranch_scc1 L_end
            s_waitcnt lgkmcnt(0)""")
            pairs = [sP + 2*i for i in range(8)]
            for p in pairs:
                A(f"s_xor_b64 s[{p}:{p+1}], s[{p}:{p+1}], s[42:43]")
            for p in pairs[1:]:
                A(f"s_or_b64 s[{sP}:{sP+1}], s[{sP}:{sP+1}], s[{p}:{p+1}]")
            A(f"""
            s_or_b32 s{sP}, s{sP}, s{sP+1}
            s_and_b32 s{sP+1}, s{sP}, 0x0fffffff
            s_cbranch_scc1 {l}
            s_or_b32 s101, s101, s{sP}
            s_add_u32 s95, s95, 64
            s_cmp_lt_u32 s95, s41
            s_cbranch_scc1 {l}
            s_xor_b32 s40, s101, s{sT32}
            s_mov_b64 exec, 0xff
            v_lshl_add_u32 v1, v0, 7, s46
            v_mov_b32 v2, s40
            global_store_dword v1, v2, s[26:27] sc1
            s_branch {lv}
            {mem}:
            s_and_b32 s40, s{sY}, 7
            s_lshl_b32 s40, s40, 7
            s_add_u32 s46, s46, s40
            {mem}_l:
            s_sleep {self.xsleep}
            s_load_dword s101, s[26:27], s46 glc
            s_add_u32 s{sSPIN}, s{sSPIN}, 1
            s_cmp_gt_u32 s{sSPIN}, {SPIN_MAX}
            s_cbranch_scc1 L_end
            s_waitcnt lgkmcnt(0)
            s_xor_b32 s101, s101, s{sT32}
            s_and_b32 s40, s101, 0x0fffffff
            s_cbranch_scc1 {mem}_l
            {lv}:
            s_cmp_lg_u32 s101, 0
            s_cselect_b32 s40, 3, 1
            s_mov_b64 exec, 1
            v_mov_b32 v1, {C_LOC}
            v_mov_b32 v2, s40
            ds_write_b32 v1, v2
            s_mov_b64 exec, -1
            {nc}:""")
        A(f"""
        s_cmp_ge_u32 s{sTY}, 2
        s_cbranch_scc1 L_final
        s_cmp_ge_u32 s{sTY}, 1
        s_cbranch_scc1 L_ffn""")
        if 'stop1' in self.abl:
            self.arrive(C_GA, want_old=False); A("s_branch L_adone")
        vKF, vVF, vGT, vQF, vO = 56, 88, 120, 152, 168
        vS, U, Z = 16, 24, 28
        A(f"""
        s_lshl2_add_u32 s41, s{sG}, s{sW}
        s_lshl_b32 s40, s41, 13
        s_add_u32 s40, s40, {WS_BQ + 2048:#x}
        v_and_b32 v12, 31, v0
        v_lshrrev_b32 v13, 5, v0
        v_lshlrev_b32 v1, 4, v12
        v_lshl_add_u32 v1, v13, 12, v1
        v_add_u32 v{vA0}, s40, v1
        s_and_b32 s40, s{sCH}, {self.nrepA-1}
        s_mul_i32 s40, s40, {REPP}
        s_lshl_b32 s41, s41, 7
        s_add_u32 s40, s40, s41
        s_add_u32 s95, s40, {WS_FLA:#x}
        s_lshl_b32 s40, s{sW}, 1
        v_add_u32 v13, s40, v13
        v_mul_u32_u24 v13, {QLP}, v13
        v_lshl_add_u32 v13, v12, 3, v13
        v_and_b32 v10, 7, v0
        s_lshl_b32 s40, s{sG}, 5
        s_add_u32 s41, s40, s{sCH}
        s_mul_i32 s41, s41, {BOP}
        s_lshl_b32 s42, s{sW}, 7
        s_add_u32 s41, s41, s42
        s_add_u32 s41, s41, {WS_BO:#x}
        v_lshlrev_b32 v8, 9, v10
        v_bfe_u32 v11, v0, 3, 1
        v_lshl_add_u32 v8, v11, 6, v8
        v_lshl_add_u32 v8, v{vJ}, 4, v8
        v_add_u32 v8, s41, v8
        s_add_u32 s40, s40, s{sCH}
        s_lshl_b32 s40, s40, 7
        s_add_u32 s40, s40, {WS_BML:#x}
        v_lshl_add_u32 v9, v10, 4, s40
        v_mul_u32_u24 v12, {QLP}, v10
        v_lshl_add_u32 v12, v{vJ}, 4, v12
        s_mov_b32 s46, {f2u(128 ** -0.5):#x}
        s_mov_b32 s47, {f2u(128 ** -0.5):#x}
        s_lshl_b32 s40, s{sW}, 13
        v_xor_b32 v14, v{vI}, v{vJ}
        v_lshlrev_b32 v14, 4, v14
        v_lshl_add_u32 v14, v{vI}, 8, v14
        v_add_u32 v14, s40, v14
        v_bfe_u32 v10, v0, 2, 2
        v_lshl_add_u32 v10, v{vJ}, 2, v10
        v_and_b32 v11, 7, v10
        v_lshlrev_b32 v11, 1, v11
        v_bfe_u32 v1, v0, 1, 1
        v_xor_b32 v11, v11, v1
        v_lshlrev_b32 v11, 4, v11
        v_lshl_add_u32 v11, v10, 8, v11
        v_and_b32 v1, 1, v0
        v_lshl_add_u32 v11, v1, 3, v11
        s_add_u32 s41, s40, {L_V}
        v_add_u32 v11, s41, v11
        ; exchange area (this wave's K rows, dead once the fragments are in registers)
        v_lshl_add_u32 v15, v0, 4, s40
        s_lshl_b32 s41, s{sW}, 10
        v_lshl_add_u32 v10, v0, 4, s41""")
        self.mask(("s92", "s93"), 0xFF00FF00FF00FF00)

        def kreads():
            A(f"s_lshl_b32 s41, s{sW}, 2\ns_add_u32 s41, s41, {C_K}")
            self.lds_spin("s41", 1, sleep=1)
            for s in range(4):
                if s:
                    A(f"v_xor_b32 v2, {64*s}, v14")
                for t in range(2):
                    r = vKF + 16*t + 4*s
                    A(f"ds_read_b128 v[{r}:{r+3}], v{2 if s else 14} offset:{L_K + 4096*t}")
            self.stamp(3)

        if self.kfirst:
            kreads()
        A("s_mov_b32 s40, s95")
        if self.xt:
            self.flag_poll(16)
        elif self.forceloc:
            self.flag_poll(16)
            A("s_mov_b32 s101, 1")
        elif self.local:
            l = self.lab("Lpoll"); r = self.lab("Lretry")
            A(f"""
            s_mov_b32 s{sSPIN}, 0
            s_mov_b32 s42, s{sT32}
            s_mov_b32 s43, s{sT32}
            s_mov_b32 s4, s45
            s_mov_b32 s5, s45
            s_branch {l}
            {r}:
            s_sleep {self.psleep}
            {l}:
            s_load_dwordx16 s[{sP}:{sP+15}], s[26:27], s40 glc
            s_add_u32 s{sSPIN}, s{sSPIN}, 1
            s_cmp_gt_u32 s{sSPIN}, {SPIN_MAX}
            s_cbranch_scc1 L_end
            s_waitcnt lgkmcnt(0)""")
            for i in range(8):
                A(f"s_xor_b64 s[{sP+2*i}:{sP+2*i+1}], s[{sP+2*i}:{sP+2*i+1}], s[{'4:5' if (i & 2) == 0 else '42:43'}]")
            for step in (2, 4, 8):
                for i in range(0, 16, 2*step):
                    A(f"s_or_b64 s[{sP+i}:{sP+i+1}], s[{sP+i}:{sP+i+1}], s[{sP+i+step}:{sP+i+step+1}]")
            A(f"""
            s_or_b32 s{sP}, s{sP}, s{sP+1}
            s_and_b32 s{sP+1}, s{sP}, 0x0fffffff
            s_cbranch_scc1 {r}
            s_cmp_lg_u32 s{sP}, 0
            s_cselect_b32 s101, 0x101, 1""")
        else:
            self.flag_poll(16)
        self.stamp(2)
        if 'stop2' in self.abl:
            self.arrive(C_GA, want_old=False); A("s_branch L_adone")
        if self.warm is not None and self.warmO == 1:
            A(f"""
            s_mov_b64 exec, 0xff
            global_load_dword v46, v8, s[26:27] {self.warm}
            s_mov_b64 exec, 1
            global_load_dword v47, v9, s[26:27] {self.warm}
            s_mov_b64 exec, -1""")

        rq = self.lab("Lgq")
        A(f"s_mov_b32 s45, 0\n{rq}:")
        for n in range(8):
            A(f"global_load_dwordx4 v[{vGT+4*n}:{vGT+4*n+3}], v{vA0}, s[26:27] offset:{512*n - 2048} sc1")
        skip = self.lab("Lkvdone")
        A(f"s_cmp_lg_u32 s45, 0\ns_cbranch_scc1 {skip}\ns_mov_b32 s45, 1")
        self.gate(1, self.gateA)
        def vreads():
            A(f"s_lshl_b32 s41, s{sW}, 2\ns_add_u32 s41, s41, {C_V}")
            self.lds_spin("s41", 1, sleep=0)
            for dt in range(8):
                if dt:
                    A(f"v_xor_b32 v14, {32*dt}, v11")
                for t in range(2):
                    r = vVF + 4*dt + 2*t
                    A(f"ds_read_b64_tr_b16 v[{r}:{r+1}], v{14 if dt else 11} offset:{4096*t}")

        if not self.kfirst:
            kreads()
        if not self.vlate:
            vreads()
        A(f"""
        s_lshr_b32 s40, s{sCH}, 4
        s_lshl1_add_u32 s40, s{sG}, s40
        s_lshl_b32 s40, s40, 5
        s_and_b32 s41, s{sCH}, 15
        s_add_u32 s40, s40, s41
        s_lshl_b32 s40, s40, 2
        s_add_u32 s95, s40, {WS_FLB:#x}""")
        A(f"s_mov_b32 s{sSPIN}, 0\n{skip}:")
        self.untag([vGT+4*n for n in range(8)], vT, counted=True)
        self.tagtest(vT, rq)
        self.stamp(4)
        if 'stop3' in self.abl:
            A("s_branch L_adone")
        for step in (4, 8, 16):
            for b in range(0, 32, 2*step):
                for h in (0, 2):
                    A(f"v_pk_add_f32 v[{vGT+b+h}:{vGT+b+h+1}], v[{vGT+b+h}:{vGT+b+h+1}], v[{vGT+b+step+h}:{vGT+b+step+h+1}]")
        A(f"""
        v_cvt_pk_bf16_f32 v{vGT}, v{vGT}, v{vGT+1}
        v_cvt_pk_bf16_f32 v{vGT+1}, v{vGT+2}, v{vGT+3}
        s_mov_b32 s45, {f2u(LOG2E):#x}
        ds_write_b64 v13, v[{vGT}:{vGT+1}] offset:{L_QL}""")
        self.arrive(C_QL, want_old=False, inc=("s101" if (self.local and not self.xt) else 1))
        if self.warm is not None and self.warmO == 2:
            A(f"""
            s_mov_b64 exec, 0xff
            global_load_dword v46, v8, s[26:27] {self.warm}
            s_mov_b64 exec, 1
            global_load_dword v47, v9, s[26:27] {self.warm}
            s_mov_b64 exec, -1""")

        self.stamp(1)
        self.lds_spin(C_QL, 4, sleep=0, low8=(self.local and not self.xt),
                      reads="\n".join(f"ds_read_b128 v[{vQF+4*s}:{vQF+4*s+3}], v12 offset:{L_QL + 64*s}" for s in range(4))
                      + (f"\nds_read_b32 v54, v1 offset:{C_LOC - C_QL}" if self.xt else ""))
        if self.xt:
            self.get_loc(54)
        self.stamp(9)
        for s in range(4):
            for t in range(2):
                c = "0" if s == 0 else f"v[{vS+4*t}:{vS+4*t+3}]"
                r = vKF + 16*t + 4*s
                A(f"v_mfma_f32_16x16x32_bf16 v[{vS+4*t}:{vS+4*t+3}], v[{r}:{r+3}], v[{vQF+4*s}:{vQF+4*s+3}], {c}")
        self.early_flag('qk')
        if self.vlate:
            vreads()
        else:
            A("s_nop 7")
        for k in range(4):
            A(f"v_cndmask_b32 v{U+k}, v{vS+k}, v{vS+4+k}, s[92:93]")
        for rnd in range(2):
            for p in range(2):
                A(f"v_cvt_pk_bf16_f32 v{Z+p}, v{U+2*p}, v{U+2*p+1}")
            for p in range(2):
                A(f"v_lshlrev_b32 v{U+2*p}, 16, v{Z+p}\nv_and_b32 v{U+2*p+1}, 0xffff0000, v{Z+p}")
            if rnd == 0:
                for p in range(2):
                    A(f"v_pk_mul_f32 v[{U+2*p}:{U+2*p+1}], v[{U+2*p}:{U+2*p+1}], s[46:47]")
        vM, vL = 48, 49
        A(f"""
        v_max3_f32 v{vM}, v{U}, v{U+1}, v{U+2}
        v_max_f32 v{vM}, v{vM}, v{U+3}
        s_nop 1
        v_max_f32_dpp v{vM}, v{vM}, v{vM} row_ror:8 row_mask:0xf bank_mask:0xf""")
        self.allreduce_rows(vM, 50, "v_max_f32")
        A(f"v_mul_f32 v50, s45, v{vM}")
        for k in range(4):
            A(f"v_fma_f32 v{U+k}, v{U+k}, s45, -v50")
        for k in range(4):
            A(f"v_exp_f32 v{U+k}, v{U+k}")
        P = 32
        A(f"""
        s_nop 0
        v_cvt_pk_bf16_f32 v{P}, v{U}, v{U+1}
        v_cvt_pk_bf16_f32 v{P+1}, v{U+2}, v{U+3}
        v_pk_add_f32 v[52:53], v[{U}:{U+1}], v[{U+2}:{U+3}]
        v_mov_b32_dpp v{P+2}, v{P} row_ror:8 row_mask:0xf bank_mask:0xf
        v_mov_b32_dpp v{P+3}, v{P+1} row_ror:8 row_mask:0xf bank_mask:0xf
        v_mov_b32 v{P+4}, v{P}
        v_mov_b32 v{P+5}, v{P+1}
        v_add_f32 v{vL}, v52, v53""")
        if self.vlate:
            A("s_waitcnt lgkmcnt(0)")
        fill = [f"v_lshrrev_b32 v14, 1, v15\nv_add_f32_dpp v{vL}, v{vL}, v{vL} row_ror:8 row_mask:0xf bank_mask:0xf",
                f"v_mov_b32 v50, v{vL}\ns_lshl_b32 s40, s{sW}, 12",
                f"v_add_u32 v14, s40, v14\nv_permlane32_swap_b32 v50, v{vL}",
                f"v_add_f32 v{vL}, v{vL}, v50\nv_mov_b32 v50, v{vL}",
                f"s_nop 0",
                f"v_permlane16_swap_b32 v50, v{vL}\nv_add_f32 v{vL}, v{vL}, v50",
                f"ds_write_b64 v14, v[{vM}:{vL}] offset:{L_K + 4096}", ""]
        for dt in range(8):
            b = P + 2*(dt & 1)
            A(f"v_mfma_f32_16x16x32_bf16 v[{vO+4*dt}:{vO+4*dt+3}], v[{vVF+4*dt}:{vVF+4*dt+3}], v[{b}:{b+3}], 0")
            A(fill[dt])
        for k in range(4):
            for r in range(4):
                A(f"v_cndmask_b32 v{vO+8*k+r}, v{vO+8*k+r}, v{vO+8*k+4+r}, s[92:93]")
            A(f"ds_write_b128 v15, v[{vO+8*k}:{vO+8*k+3}] offset:{L_K + 1024*k}")
        self.arrive(C_X, want_old=False)
        A("v_lshlrev_b32 v14, 3, v0")
        self.early_flag('pv')
        self.stamp(11)
        X, ML = 56, 72
        self.lds_spin(C_X, 4, sleep=0, reads="\n".join(
            [f"ds_read_b64 v[{ML+2*w}:{ML+2*w+1}], v14 offset:{L_K + 8192*w + 4096}" for w in range(4)] +
            [f"ds_read_b128 v[{X+4*w}:{X+4*w+3}], v10 offset:{L_K + 8192*w}" for w in range(4)]))
        self.stamp(10)
        self.early_flag('xsync')
        A(f"v_max3_f32 v{vM}, v{ML}, v{ML+2}, v{ML+4}\nv_max_f32 v{vM}, v{vM}, v{ML+6}")
        for w in range(4):
            A(f"v_sub_f32 v{ML+2*w}, v{ML+2*w}, v{vM}")
        for w in range(4):
            A(f"v_mul_f32 v{ML+2*w}, s45, v{ML+2*w}")
        for w in range(4):
            A(f"v_exp_f32 v{ML+2*w}, v{ML+2*w}")
        A(f"s_nop 0\nv_mul_f32 v{vL}, v{ML}, v{ML+1}")
        for w in range(4):
            e = ML + 2*w
            for h in (0, 2):
                if w == 0:
                    A(f"v_pk_mul_f32 v[{vS+h}:{vS+h+1}], v[{X+h}:{X+h+1}], v[{e}:{e+1}] op_sel_hi:[1,0]")
                else:
                    A(f"v_pk_fma_f32 v[{vS+h}:{vS+h+1}], v[{X+4*w+h}:{X+4*w+h+1}], v[{e}:{e+1}], v[{vS+h}:{vS+h+1}] op_sel_hi:[1,0,1]")
            if w:
                A(f"v_fmac_f32 v{vL}, v{e}, v{e+1}")
        for r in range(4):
            self.tag(vS + r)
        nml = self.lab("Lnoml")

        def publish(mod):
            if 'noO' not in self.abl:
                A(f"global_store_dwordx4 v8, v[{vS}:{vS+3}], s[26:27] {mod}")
            A(f"s_cmp_lg_u32 s{sW}, 0\ns_cbranch_scc1 {nml}")
            self.tag(vM); self.tag(vL)
            A(f"""
            v_mov_b32 v50, v3
            v_mov_b32 v51, v3
            s_mov_b64 exec, 0xff
            global_store_dwordx4 v9, v[48:51], s[26:27] {mod}""")

        if self.local:
            rem = self.lab("Lremote"); fl = self.lab("Lflagb")
            A(f"s_cmp_lg_u32 s101, 0\ns_cbranch_scc1 {rem}")
            publish("")
            A(f"s_branch {fl}\n{rem}:")
            publish("sc1")
            A(f"{fl}:")
        else:
            publish("sc1")
        if self.flagpos != 'end':
            A(f"s_mov_b64 exec, -1\ns_cmp_eq_u32 s101, 0\ns_cbranch_scc1 {nml}")
        A("s_mov_b32 s40, s95")
        if 'noflagB' not in self.abl:
            self.flag_store(self.nrepB)
        A(f"{nml}:")
        self.gate(2, self.gateA)
        self.stamp(5)
        if 'stop4' in self.abl:
            A("s_branch L_adone")
        A(f"""
        s_and_b32 s40, s{sTL}, 7
        s_lshl2_add_u32 s41, s40, s{sW}
        s_lshl_b32 s41, s41, 7
        s_mul_i32 s42, s{sG}, {32*BOP}
        s_add_u32 s41, s41, s42
        s_add_u32 s41, s41, {WS_BO:#x}
        v_lshrrev_b32 v1, 3, v0
        v_mul_u32_u24 v1, {BOP}, v1
        v_and_b32 v2, 7, v0
        v_lshl_add_u32 v1, v2, 4, v1
        v_add_u32 v{vA0}, s41, v1
        v_add_u32 v13, {8*BOP}, v{vA0}
        v_add_u32 v14, {16*BOP}, v{vA0}
        v_add_u32 v15, {24*BOP}, v{vA0}
        s_lshl_b32 s41, s{sG}, 8
        s_add_u32 s40, s40, s41
        s_lshl_b32 s40, s40, 4
        s_add_u32 s40, s40, {WS_BML:#x}
        v_and_b32 v1, 31, v0
        v_lshl_add_u32 v{vA1}, v1, 7, s40
        s_lshl_b32 s40, s{sW}, 7
        v_and_b32 v2, 7, v0
        v_lshrrev_b32 v1, 3, v1
        v_lshl_add_u32 v1, v1, 2, s40
        v_lshl_add_u32 v10, v2, 4, v1
        v_lshrrev_b32 v1, 3, v0
        v_lshl_add_u32 v11, v1, 4, s40
        v_and_b32 v1, 1, v0
        v_lshl_add_u32 v1, v1, 2, v{vJ}
        v_and_b32 v2, 6, v0
        v_lshl_add_u32 v12, v1, 5, v2
        s_lshl_b32 s40, s{sW}, 3
        v_add_u32 v12, s40, v12""")
        nb = self.lab("Lnopollb")
        A(f"""
        s_cmp_ge_u32 s{sW}, 2
        s_cbranch_scc1 {nb}
        s_and_b32 s40, s{sCH}, {self.nrepB-1}
        s_mul_i32 s40, s40, {REPP}
        s_lshl1_add_u32 s41, s{sG}, s{sW}
        s_lshl_b32 s41, s41, 7
        s_add_u32 s40, s40, s41
        s_add_u32 s40, s40, {WS_FLB:#x}""")
        self.flag_poll(16)
        self.arrive(C_B1, want_old=False)
        A(f"{nb}:")
        self.lds_spin(C_B1, 2, sleep=0)
        self.stamp(6)
        rb_ = self.lab("Lgo")
        vO, vML = 56, 72
        A(f"s_mov_b32 s47, 0\n{rb_}:")
        def bloads(mod):
            A(f"global_load_dwordx4 v[{vML}:{vML+3}], v{vA1}, s[26:27] {mod}")
            for n in range(4):
                A(f"global_load_dwordx4 v[{vO+4*n}:{vO+4*n+3}], v{(vA0, 13, 14, 15)[n]}, s[26:27] {mod}")
        if self.local and self.gmod != 'sc1':
            rem = self.lab("Lremote"); fl = self.lab("Lbld")
            A(f"s_cmp_lg_u32 s101, 0\ns_cbranch_scc1 {rem}")
            bloads(self.gmod)
            A(f"s_branch {fl}\n{rem}:")
            bloads("sc1")
            A(f"{fl}:")
        else:
            bloads("sc1")
        if self.HA:
            l = self.lab("Lhb")
            A(f"s_cmp_lg_u32 s47, 0\ns_cbranch_scc1 {l}\ns_mov_b32 s47, 1")
            self.arrive(C_HB, want_old=False)
            A(f"{l}:")
        if 3 in self.gateA:
            self.gate(3, self.gateA)
            A(f"s_mov_b32 s{sGATE}, 0")
        A("s_waitcnt vmcnt(4)")
        self.untag([vML], vT + 16)
        fill = self.untag_list([vO + 4*n for n in range(4)], vT + 16, first=False)
        A(f"v_mov_b32 v{vT}, v{vML}\ns_waitcnt vmcnt(0)")
        self.allreduce_in_row(vT, "v_max_f32", fill)
        A(f"v_mov_b32 v{vT+2}, v{vT}")
        self.pad2(fill)
        A(f"""
        v_permlane16_swap_b32 v{vT+2}, v{vT}
        v_max_f32 v{vT}, v{vT}, v{vT+2}
        v_sub_f32 v{vT+4}, v{vML}, v{vT}
        v_mul_f32 v{vT+4}, s45, v{vT+4}
        v_exp_f32 v{vT+4}, v{vT+4}
        s_mov_b32 exec_hi, 0
        ds_write_b32 v10, v{vT+4} offset:{L_WT}
        s_mov_b32 exec_hi, -1
        ds_read_b128 v[{vT+8}:{vT+11}], v11 offset:{L_WT}
        v_mul_f32 v{vT+1}, v{vT+4}, v{vML+1}""")
        self.allreduce_in_row(vT + 1, "v_add_f32", fill)
        A(f"v_mov_b32 v{vT+2}, v{vT+1}")
        self.pad2(fill)
        A(f"""
        v_permlane16_swap_b32 v{vT+2}, v{vT+1}
        v_add_f32 v{vT+1}, v{vT+1}, v{vT+2}
        v_rcp_f32 v{vT+1}, v{vT+1}""")
        A("\n".join(fill))
        self.tagtest(vT + 16, rb_)
        self.stamp(7)
        A("s_waitcnt lgkmcnt(0)")
        acc = vT + 4
        for n in range(4):
            w = vT + 8 + (n & ~1)
            os_ = f"op_sel:[0,{n&1}] op_sel_hi:[1,{n&1}]" if n == 0 else f"op_sel:[0,{n&1},0] op_sel_hi:[1,{n&1},1]"
            for h in (0, 2):
                if n == 0:
                    A(f"v_pk_mul_f32 v[{acc+h}:{acc+h+1}], v[{vO+h}:{vO+h+1}], v[{w}:{w+1}] {os_}")
                else:
                    A(f"v_pk_fma_f32 v[{acc+h}:{acc+h+1}], v[{vO+4*n+h}:{vO+4*n+h+1}], v[{w}:{w+1}], v[{acc+h}:{acc+h+1}] {os_}")
        self.reduce_scatter_rows(acc)
        A(f"""
        s_nop 1
        v_add_f32_dpp v{acc}, v{acc}, v{acc} row_ror:8 row_mask:0xf bank_mask:0xf
        v_mov_b32 v1, {C_FO}
        v_mul_f32 v{acc}, v{acc}, v{vT+1}
        v_mov_b32 v2, 1
        v_cvt_pk_bf16_f32 v{acc}, v{acc}, v{acc}""")
        self.exec_set(0x00FF00FF00FF00FF)
        A(f"""
        ds_write_b16 v12, v{acc} offset:{L_VEC}
        s_mov_b64 exec, 1
        ds_add_u32 v1, v2
        s_mov_b64 exec, -1""")
        self.stamp(8)
        if 'diag' in self.abl:
            l = self.lab("Ldg")
            if 'diagx' in self.abl:
                A(f"s_getreg_b32 s41, hwreg(HW_REG_XCC_ID, 0, 4)\ns_cmp_eq_u32 s41, s{sX}")
            else:
                A("s_cmp_eq_u32 s101, 0")
            A(f"""
            s_cbranch_scc1 L_adone
            s_memrealtime s[42:43]
            s_waitcnt lgkmcnt(0)
            s_add_u32 s40, s42, 2000
            {l}:
            s_memrealtime s[42:43]
            s_waitcnt lgkmcnt(0)
            s_sub_u32 s41, s42, s40
            s_cmp_lt_i32 s41, 0
            s_cbranch_scc1 {l}""")
        A("L_adone:")
        self.write_stamps(14)
        A("s_endpgm")
        A(f"""
        L_ffn:
        s_cmp_eq_u32 s{sW}, 2
        s_cbranch_scc0 L_adone""")
        if self.localD:
            l = self.lab("Lxt")
            A(f"""
            s_getreg_b32 s45, hwreg(HW_REG_XCC_ID, 0, 4)
            s_lshl_b32 s45, s45, 28
            s_xor_b32 s42, s45, s{sT32}
            s_mov_b32 s43, s42
            s_lshl_b32 s40, s{sG}, 7
            s_add_u32 s40, s40, {WS_XT:#x}
            s_lshl2_add_u32 s41, s{sY}, s40
            s_mov_b64 exec, 1
            v_mov_b32 v1, s41
            v_mov_b32 v2, s42
            global_store_dword v1, v2, s[26:27] sc1
            s_mov_b64 exec, -1
            s_add_u32 s41, s40, 64
            s_mov_b32 s{sSPIN}, 0
            {l}:
            s_sleep 24
            s_load_dwordx16 s[{sP}:{sP+15}], s[26:27], s40 glc
            s_load_dwordx16 s[4:19], s[26:27], s41 glc
            s_add_u32 s{sSPIN}, s{sSPIN}, 1
            s_cmp_gt_u32 s{sSPIN}, {SPIN_MAX}
            s_cbranch_scc1 L_end
            s_waitcnt lgkmcnt(0)""")
            pairs = [sP + 2*i for i in range(8)] + [4 + 2*i for i in range(6)]
            for p in pairs:
                A(f"s_xor_b64 s[{p}:{p+1}], s[{p}:{p+1}], s[42:43]")
            for p in pairs[1:]:
                A(f"s_or_b64 s[{sP}:{sP+1}], s[{sP}:{sP+1}], s[{p}:{p+1}]")
            A(f"""
            s_or_b32 s101, s{sP}, s{sP+1}
            s_and_b32 s{sP}, s101, 0x0fffffff
            s_cbranch_scc1 {l}""")
        if 'noffn' in self.abl:
            A("s_branch L_adone")
        self.red_publish(L_RG, 1024, C_G, 64, f"""
            s_sub_u32 s41, s{sUP}, s{sTL}
            s_lshl2_add_u32 s40, s{sTL}, s{sRB}
            s_lshl_b32 s40, s40, 10
            s_add_u32 s40, s40, {WS_BD:#x}
            v_add_u32 v11, s40, v10
            v_lshrrev_b32 v13, 5, v0
            s_lshl_b32 s42, s41, 12
            v_mul_lo_u32 v12, s42, v13
            v_add_u32 v11, v11, v12
            s_lshl_b32 s40, s{sTL}, 5
            s_add_u32 s40, s40, s{sRB}
            s_lshl_b32 s40, s40, 2
            s_lshl_b32 s42, s41, 7
            s_add_u32 s42, s42, 16
            v_mul_lo_u32 v12, s42, v0
            v_add_u32 v12, s40, v12
            s_movk_i32 s40, {WS_FLD:#x}""", 2, 12, sleep=1, local=self.localD)
        self.gate(1, self.gateF)
        self.stamp(5)
        A(f"""
        s_lshl_b32 s40, s{sTL}, 12
        s_add_u32 s40, s40, {WS_BD:#x}
        v_add_u32 v{vA0}, s40, v10
        v_and_b32 v1, 1, v0
        v_lshl_add_u32 v1, v1, 1, v13
        v_and_b32 v2, 30, v0
        v_lshl_add_u32 v12, v1, 6, v2
        s_lshl_b32 s40, s{sTL}, 7
        s_add_u32 s40, s40, {WS_FLD:#x}""")
        self.flag_poll(8)
        self.stamp(6)
        rd = self.lab("Lgd")
        G = 56
        A(f"s_mov_b32 s47, 0\n{rd}:")
        def dloads(mod):
            for n in range(4):
                A(f"global_load_dwordx4 v[{G+4*n}:{G+4*n+3}], v{vA0}, s[26:27] offset:{1024*n} {mod}")
        if self.localD:
            rem = self.lab("Lremote"); fl = self.lab("Ldld")
            A(f"s_cmp_lg_u32 s101, 0\ns_cbranch_scc1 {rem}")
            dloads(self.gmod)
            A(f"s_branch {fl}\n{rem}:")
            dloads("sc1")
            A(f"{fl}:")
        else:
            dloads("sc1")
        if self.HF:
            l = self.lab("Lhb")
            A(f"s_cmp_lg_u32 s47, 0\ns_cbranch_scc1 {l}\ns_mov_b32 s47, 1")
            self.arrive(C_HB, want_old=False)
            A(f"{l}:")
        if 2 in self.gateF:
            self.gate(2, self.gateF)
            A(f"s_mov_b32 s{sGATE}, 0")
        self.untag([G + 4*n for n in range(4)], vT, counted=True)
        self.tagtest(vT, rd)
        self.stamp(7)
        for h in (0, 2):
            A(f"v_pk_add_f32 v[{G+h}:{G+h+1}], v[{G+h}:{G+h+1}], v[{G+4+h}:{G+5+h}]")
            A(f"v_pk_add_f32 v[{G+8+h}:{G+9+h}], v[{G+8+h}:{G+9+h}], v[{G+12+h}:{G+13+h}]")
        for h in (0, 2):
            A(f"v_pk_add_f32 v[{G+h}:{G+h+1}], v[{G+h}:{G+h+1}], v[{G+8+h}:{G+9+h}]")
        c1 = -2.0 * 0.7978845608028654 * LOG2E
        c2 = c1 * 0.044715
        A(f"""
        v_cvt_pk_bf16_f32 v{G}, v{G}, v{G+1}
        v_cvt_pk_bf16_f32 v{G+1}, v{G+2}, v{G+3}
        s_mov_b32 s46, {f2u(c2):#x}
        v_mov_b32 v{vT+4}, {f2u(c1):#x}
        v_permlane32_swap_b32 v{G}, v{G+1}
        v_lshlrev_b32 v{G+2}, 16, v{G}
        v_and_b32 v{G+3}, 0xffff0000, v{G}
        v_pk_mul_f32 v[{vT}:{vT+1}], v[{G+2}:{G+3}], v[{G+2}:{G+3}]
        v_fma_f32 v{vT}, v{vT}, s46, v{vT+4}
        v_fma_f32 v{vT+1}, v{vT+1}, s46, v{vT+4}
        v_pk_mul_f32 v[{vT}:{vT+1}], v[{vT}:{vT+1}], v[{G+2}:{G+3}]
        v_exp_f32 v{vT}, v{vT}
        v_exp_f32 v{vT+1}, v{vT+1}
        v_lshlrev_b32 v{G+4}, 16, v{G+1}
        v_add_f32 v{vT}, 1.0, v{vT}
        v_add_f32 v{vT+1}, 1.0, v{vT+1}
        v_rcp_f32 v{vT}, v{vT}
        v_rcp_f32 v{vT+1}, v{vT+1}
        v_and_b32 v{G+5}, 0xffff0000, v{G+1}
        v_pk_mul_f32 v[{G+2}:{G+3}], v[{G+2}:{G+3}], v[{vT}:{vT+1}]
        v_cvt_pk_bf16_f32 v{G}, v{G+2}, v{G+3}
        v_lshlrev_b32 v{G+2}, 16, v{G}
        v_and_b32 v{G+3}, 0xffff0000, v{G}
        v_pk_mul_f32 v[{G+2}:{G+3}], v[{G+2}:{G+3}], v[{G+4}:{G+5}]
        v_mov_b32 v1, {C_FO}
        v_cvt_pk_bf16_f32 v{G}, v{G+2}, v{G+3}
        v_mov_b32 v2, 1
        ds_write_b16 v12, v{G} offset:{L_VEC}
        ds_write_b16_d16_hi v12, v{G} offset:{L_VEC+32}
        s_mov_b64 exec, 1
        ds_write_b32 v1, v2
        s_mov_b64 exec, -1""")
        self.stamp(8)
        A("s_branch L_adone")

    def final(self):
        A = self.A
        vI, vJ, vT = 4, 5, 16
        G0, G1 = 56, 60
        A(f"""
        L_final:
        s_mov_b32 s42, s{sR}
        s_lshl_b32 s43, s42, 7
        v_lshl_add_u32 v8, v0, 1, s43
        global_load_ushort v9, v8, s[4:5]""")
        if 'nofinal' in self.abl:
            A("s_branch L_adone")
        A(f"""
        s_and_b32 s41, s{sW}, 3
        s_cmp_lt_u32 s{sW}, 4
        s_cselect_b32 s46, 0, {WS_BF - WS_BS:#x}
        s_cselect_b32 s47, {28*ROWP}, 0
        s_cselect_b32 s93, -1, 0xffff
        s_mov_b32 s92, -1
        s_mul_i32 s40, s41, {ROWP}
        s_add_u32 s40, s40, s46
        s_lshl_b32 s43, s42, 8
        s_add_u32 s40, s40, s43
        s_add_u32 s46, s40, {WS_BS:#x}
        s_add_u32 s47, s47, s46
        v_mul_u32_u24 v1, {4*ROWP}, v{vJ}
        v_lshl_add_u32 v1, v{vI}, 4, v1
        v_add_u32 v6, s46, v1
        v_add_u32 v7, {16*ROWP}, v6
        v_lshl_add_u32 v10, v{vI}, 2, v{vJ}
        v_lshlrev_b32 v10, 5, v10
        s_lshl_b32 s40, s{sW}, 2
        v_add_u32 v10, s40, v10
        v_lshlrev_b32 v11, 5, v0
        v_mov_b32 v12, {C_F1}
        v_mov_b32 v13, 1
        s_waitcnt vmcnt(0)
        v_lshlrev_b32 v9, 16, v9""")
        for r in range(4):
            A(f"v_mov_b32 v{G1+r}, v3")
        if self.flocal:
            lf = self.lab("Lfl"); ns = self.lab("Lnfl")
            A(f"""
            s_cmp_lt_u32 s{sW}, 4
            s_cbranch_scc1 {ns}""")
            if self.flocal == 'xt':
                self.get_loc(sleep=4)
                A(f"s_cmp_lg_u32 s101, 0\ns_cbranch_scc1 {ns}")
            A(f"""
            s_mov_b32 s{sSPIN}, 0
            {lf}:
            s_sleep {self.fls}
            global_load_dwordx4 v[{G0}:{G0+3}], v6, s[26:27] {self.fmod}
            s_mov_b64 exec, s[92:93]
            global_load_dwordx4 v[{G1}:{G1+3}], v7, s[26:27] {self.fmod}
            s_mov_b64 exec, -1
            s_add_u32 s{sSPIN}, s{sSPIN}, 1
            s_cmp_gt_u32 s{sSPIN}, {SPIN_MAX}
            s_cbranch_scc1 L_end
            s_waitcnt vmcnt(0)
            v_bitop3_b32 v{vT}, v{G0}, v{G0+3}, s{sT10} bitop3:0x7e
            v_and_b32 v{vT}, s44, v{vT}
            v_cmp_eq_u32 vcc, 0, v{vT}
            s_nop 4
            s_cbranch_vccz {lf}
            s_branch L_fvec
            {ns}:""")
        l = self.lab("Lfp"); r_ = self.lab("Lfr")
        A(f"""
        s_add_u32 s40, s26, s46
        s_addc_u32 s41, s27, 0
        s_mov_b32 s{sSPIN}, 0
        s_branch {l}
        {r_}:
        s_cmp_lg_u32 s43, 0
        s_cbranch_scc1 {l}
        s_sleep {self.fsleep}
        {l}:""")
        for k in range(7):
            A(f"s_load_dword s{48+k}, s[40:41], {4*k*ROWP} glc")
        A(f"""
        s_load_dword s55, s[26:27], s47 glc
        s_add_u32 s{sSPIN}, s{sSPIN}, 1
        s_cmp_gt_u32 s{sSPIN}, {SPIN_MAX}
        s_cbranch_scc1 L_end
        s_waitcnt lgkmcnt(0)""")
        A("s_mov_b32 s43, 0")
        for k in range(8):
            A(f"s_and_b32 s{48+k}, s{48+k}, s44\ns_cmp_eq_u32 s{48+k}, s{sT10}\ns_addc_u32 s43, s43, 0")
        A(f"s_cmp_ge_u32 s43, {self.fthr}\ns_cbranch_scc0 {r_}")
        A("L_fvec:")
        self.stamp(9)
        rg = self.lab("Lfg")
        loads = f"""
            s_or_b64 exec, s[48:49], 1
            global_load_dwordx4 v[{G0}:{G0+3}], v6, s[26:27] {self.fmod if self.flocal else 'sc1'}
            s_or_b64 exec, s[92:93], 1
            global_load_dwordx4 v[{G1}:{G1+3}], v7, s[26:27] {self.fmod if self.flocal else 'sc1'}
            s_mov_b64 exec, -1"""
        A("s_mov_b64 s[48:49], -1")
        for k in range(self.fdepth - 1):
            A(loads)
        A(f"{rg}:")
        A(loads)
        A(f"s_waitcnt vmcnt({2*(self.fdepth - 1)})")
        for i, k in enumerate((G0, G1)):
            A(f"v_bitop3_b32 v{vT+2*i}, v{k}, v{k+1}, s{sT10} bitop3:0x7e")
            A(f"v_bitop3_b32 v{vT+2*i+1}, v{k+2}, v{k+3}, s{sT10} bitop3:0x7e")
        for i in range(2):
            A(f"v_bitop3_b32 v{vT+2*i}, v{vT+2*i}, v{vT+2*i+1}, s44 bitop3:0xa8")
        R = vT + 12
        A(f"""
        v_cmp_ne_u32 s[48:49], 0, v{vT}
        v_cmp_ne_u32 s[92:93], 0, v{vT+2}
        s_add_u32 s{sSPIN}, s{sSPIN}, 1
        s_cmp_gt_u32 s{sSPIN}, {SPIN_MAX}
        s_cbranch_scc1 L_end
        s_or_b64 s[40:41], s[48:49], s[92:93]
        s_cbranch_scc1 {rg}""")
        self.stamp(10)
        for k in range(4):
            A(f"v_xor_b32 v{R+k}, s{sT10}, v{G0+k}\nv_xor_b32 v{R+4+k}, s{sT10}, v{G1+k}")
        for h in (0, 2):
            A(f"v_pk_add_f32 v[{R+h}:{R+h+1}], v[{R+h}:{R+h+1}], v[{R+4+h}:{R+5+h}]")
        self.reduce_scatter_rows(R)
        f = vT + 4
        A(f"""
        ds_write_b32 v10, v{R} offset:{L_RF}
        s_mov_b64 exec, 1
        ds_add_rtn_u32 v2, v12, v13
        s_mov_b64 exec, -1
        ds_read_b128 v[{f}:{f+3}], v11 offset:{L_RF}
        ds_read_b128 v[{f+4}:{f+7}], v11 offset:{L_RF+16}
        s_waitcnt lgkmcnt(0)
        v_readfirstlane_b32 s{sTMP}, v2
        s_cmp_eq_u32 s{sTMP}, 7
        s_cbranch_scc0 L_adone
        v_pk_add_f32 v[{f+4}:{f+5}], v[{f+4}:{f+5}], v[{f+6}:{f+7}]
        v_pk_add_f32 v[{f}:{f+1}], v[{f}:{f+1}], v[{f+2}:{f+3}]
        v_add_f32 v{f+2}, v{f+4}, v{f+5}
        v_add_f32 v{f}, v{f}, v{f+1}
        v_cvt_pk_bf16_f32 v{f}, v{f}, v{f+2}
        v_and_b32 v{f+2}, 0xffff0000, v{f}
        v_mul_f32 v{f+3}, {f2u(-LOG2E):#x}, v{f+2}
        v_exp_f32 v{f+3}, v{f+3}
        v_lshlrev_b32 v{f}, 16, v{f}
        v_add_f32 v{f+3}, 1.0, v{f+3}
        v_rcp_f32 v{f+3}, v{f+3}
        s_nop 0
        v_mul_f32 v{f+2}, v{f+2}, v{f+3}""")
        self.bf16_round(f + 2, f + 2)
        A(f"v_mul_f32 v{f}, v{f}, v{f+2}")
        self.bf16_round(f, f)
        A(f"""
        v_add_f32 v{f}, v{f}, v9
        v_cvt_pk_bf16_f32 v{f}, v{f}, v{f}
        global_store_short v8, v{f}, s[22:23] {self.outmod}""")
        A(f"""
        {'s_branch L_mag' if self.mag else ''}
        L_magback:
        s_cmp_lg_u32 s{sR}, 0
        s_cbranch_scc1 L_adone
        s_mov_b64 exec, 1
        v_mov_b32 v1, {WS_E}
        v_mov_b32 v2, s{sT32}
        global_store_dword v1, v2, s[26:27]
        s_branch L_adone""")
        if self.mag:
            what, K = self.mag
            A(f"""
            L_mag:
            s_memrealtime s[90:91]
            v_lshlrev_b32 v1, 4, v0
            v_add_u32 v1, 0x300000, v1
            global_load_dwordx4 v[56:59], v1, s[26:27] sc1
            s_waitcnt vmcnt(0) lgkmcnt(0)
            v_sub_u32 v56, s90, v56
            v_sub_u32 v57, s90, v57
            v_sub_u32 v58, s90, v58
            v_sub_u32 v59, s90, v59
            v_cvt_f32_u32 v56, v56
            v_cvt_f32_u32 v57, v57
            v_cvt_f32_u32 v58, v58
            v_cvt_f32_u32 v59, v59
            v_max3_f32 v60, v56, v57, v58
            v_max_f32 v60, v60, v59
            v_min3_f32 v61, v56, v57, v58
            v_min_f32 v61, v61, v59""")
            self.allreduce_in_row(60, "v_max_f32"); self.allreduce_rows(60, 62, "v_max_f32")
            self.allreduce_in_row(61, "v_min_f32"); self.allreduce_rows(61, 62, "v_min_f32")
            if what == 'skew':
                A("v_sub_f32 v60, v60, v61")
            elif what == 'max':
                A("v_mov_b32 v60, v61")
            A(f"""
            v_min_f32 v60, 0x44fa0000, v60
            v_cvt_u32_f32 v60, v60
            s_nop 1
            v_readfirstlane_b32 s40, v60
            s_mul_i32 s40, s40, {K}
            s_add_u32 s40, s40, s90
            L_magspin:
            s_memrealtime s[42:43]
            s_waitcnt lgkmcnt(0)
            s_sub_u32 s41, s42, s40
            s_cmp_lt_i32 s41, 0
            s_cbranch_scc1 L_magspin
            s_branch L_magback""")


class Gen(Gen0):
    def __init__(self, ldsb=None, nvo=None, **kw):
        self.ldsb, self.nvo = ldsb, nvo
        super().__init__(**kw)


if __name__ == "__main__":
    import argparse
    ap = argparse.ArgumentParser()
    ap.add_argument("-o", default="recurrent_scan__sliding_block_cached__geglu_ffn__decode.s")

    ap.add_argument("--stamps", action="store_true")
    ap.add_argument("--probe", default=None)
    ap.add_argument("--kw", default="")
    a = ap.parse_args()
    open(a.o, "w").write(Gen(stamps=a.stamps, probe=tuple(map(int, a.probe.split(','))) if a.probe else None, **eval(f'dict({a.kw})')).build())
```

```python
import sys, struct

KN = "recurrent_scan__sliding_block_cached__geglu_ffn__decode_kernel"

def f2u(x):
    return struct.unpack("<I", struct.pack("<f", x))[0]

WS_E   = 0x0
WS_FLD = 0x1000
WS_XT  = 0x3000
WS_XA  = 0x3400
WS_XV  = 0x8000
WS_BML = 0x4000
WS_BQ  = 0x10000
WS_BD  = 0x30000
ROWP   = 4352
WS_BS  = 0x50000
WS_BF  = 0x78000
WS_BO  = 0xA0000
BOP    = 4096 + 128
REPP   = 17 * 128
WS_FLA = 0x130000
WS_FLB = 0x148000
WS_ST  = 0x400000

L_RQ   = 0
L_RG   = L_RQ + 2048
L_QL   = L_RG + 4096
QLP    = 272
L_WT   = L_QL + 2304
L_VEC  = L_WT + 512
L_XQ   = L_VEC + 256
L_XG   = L_XQ + 256
L_RF   = L_XG + 512
L_CNT  = L_RF + 2048
C_Q, C_G, C_X, C_QL, C_HB, C_FO, C_GA, C_B1, C_F1 = [L_CNT + 4*i for i in range(9)]
C_LOC = L_CNT + 36
C_XN, C_K, C_V = L_CNT + 48, L_CNT + 64, L_CNT + 80
L_K    = 12288
L_V    = L_K + 32768
assert L_CNT + 128 <= L_K
LDS_BYTES = L_V + 32768
YF, YL = 16, 30

TAGM = 0x3FF
LOG2E = 1.4426950408889634
SPIN_MAX = 1 << 20

sX, sY, sRB, sHQ, sRBQ, sTL, sG, sCH = 28, 29, 30, 31, 32, 33, 34, 35
sT32, sT10, sSPIN, sTMP = 36, 37, 38, 39
sW = 3
sGATE = 100
sTY, sUP, sR = 97, 98, 99
sP = 48
sSTAMP = 64


class Gen0:
    def __init__(self, stamps=False, prefetch=True, probe=None, abl='', xnpos=11, nrepA=4, nrepB=4, psleep=1,
                 WA=(6, 6, 5), WF=(6, 8, 8), pause='gather', fthr=6, wtest=None, fsleep=16, upx=2, layout='mix', plain='', gmod='sc1', local=False, touch=False, flagpos='end', HA=0, HF=0, vlate=False, kfirst=True, localD=False, earlyD=False, warm=None, warmO=False, qmap='grp', forceloc=False, xt=False, stag=False, mag=None, ftrans=False, flocal=None, fmod='sc1', fls=4, wideg=0, widew=False, wideq=0, xsleep=10, fdepth=2, outmod='', gateA=(1, 1), gateF=(0, 0), WAe=None, WFe=None):
        self.gateA, self.gateF = gateA, gateF
        self.WAe, self.WFe = WAe, WFe
        self.local = local
        self.fdepth = fdepth
        self.touch = touch
        self.warm = warm
        self.mag = mag
        self.ftrans, self.flocal, self.fmod, self.fls = ftrans, flocal, fmod, fls
        self.wideg, self.widew, self.wideq = wideg, widew, wideq
        self.xt, self.stag, self.xsleep = xt, stag, xsleep
        if xt:
            forceloc = True
        self.qmap, self.forceloc = qmap, forceloc
        self.warmO = warmO
        self.localD, self.earlyD = localD, earlyD
        self.kfirst = kfirst
        self.flagpos, self.HA, self.HF, self.vlate = flagpos, HA, HF, vlate
        self.outmod = outmod
        assert not local or layout != 'mix'
        self.gmod = gmod
        self.layout = layout
        self.plain = plain
        self.fsleep = fsleep
        self.upx = upx
        self.wtest = wtest
        self.fthr = fthr
        self.L = []
        self.stamps = stamps
        self.prefetch = prefetch
        self.probe = probe
        self.abl = abl
        self.xnpos = xnpos
        self.nrepA, self.nrepB = nrepA, nrepB
        self.psleep = psleep
        self.relwait = False
        self.WA, self.WF = WA, WF
        self.pause = pause
        self.nlab = 0

    def A(self, s):
        for line in s.strip("\n").split("\n"):
            if line.strip():
                self.L.append("    " + line.strip() if not line.strip().endswith(":") else line.strip())

    def lab(self, p="L"):
        self.nlab += 1
        return f"{p}_{self.nlab}"

    def stamp(self, k):
        if self.stamps == 'lite' and k not in (0, 10, 14):
            return
        if self.stamps or (self.probe and k in (0, self.probe[2])):
            self.A(f"s_memrealtime s[{sSTAMP+2*k}:{sSTAMP+2*k+1}]")

    def mask(self, reg, val):
        lo, hi = val & 0xFFFFFFFF, val >> 32
        self.A(f"s_mov_b32 {reg[0]}, {lo:#x}\ns_mov_b32 {reg[1]}, {hi:#x}")

    def exec_set(self, val):
        if val == -1:
            self.A("s_mov_b64 exec, -1")
        elif val <= 64:
            self.A(f"s_mov_b64 exec, {val}")
        elif val < (1 << 31):
            self.A(f"s_mov_b64 exec, {val:#x}")
        else:
            self.mask(("exec_lo", "exec_hi"), val)

    def arrive(self, cnt, want_old=True, inc=1):
        self.A(f"""
        s_mov_b64 exec, 1
        v_mov_b32 v1, {cnt}
        v_mov_b32 v2, {inc}""")
        if want_old:
            self.A(f"""
            ds_add_rtn_u32 v2, v1, v2
            s_waitcnt lgkmcnt(0)
            v_readfirstlane_b32 s{sTMP}, v2""")
        else:
            self.A("ds_add_u32 v1, v2")
        self.A("s_mov_b64 exec, -1")

    def lds_spin(self, cnt, val, sleep=1, reads="", low8=False):
        l = self.lab("Lspin"); d = self.lab("Lgot")
        self.A(f"""
        v_mov_b32 v1, {cnt}
        s_mov_b32 s{sSPIN}, 0
        {l}:
        ds_read_b32 v2, v1
        {reads}
        s_add_u32 s{sSPIN}, s{sSPIN}, 1
        s_cmp_gt_u32 s{sSPIN}, {SPIN_MAX}
        s_cbranch_scc1 L_end
        s_waitcnt lgkmcnt(0)
        v_readfirstlane_b32 s{sTMP}, v2""")
        if low8:
            self.A(f"s_lshr_b32 s101, s{sTMP}, 8\ns_and_b32 s{sTMP}, s{sTMP}, 0xff")
        if sleep:
            self.A(f"s_cmp_eq_u32 s{sTMP}, {val}\ns_cbranch_scc1 {d}\ns_sleep {sleep}\ns_branch {l}\n{d}:")
        else:
            self.A(f"s_cmp_eq_u32 s{sTMP}, {val}\ns_cbranch_scc0 {l}")

    def flag_poll(self, n, two=False):
        if 'nopoll' in self.abl:
            return
        l = self.lab("Lpoll"); r = self.lab("Lretry"); d = self.lab("Lflag")
        self.A(f"""
        s_mov_b32 s{sSPIN}, 0
        s_mov_b32 s42, s{sT32}
        s_mov_b32 s43, s{sT32}
        s_branch {l}
        {r}:
        s_sleep {self.psleep}
        {l}:
        s_load_dwordx{n} s[{sP}:{sP+n-1}], s[26:27], s40 glc
        {'s_load_dwordx16 s[4:19], s[26:27], s41 glc' if two else ''}
        s_add_u32 s{sSPIN}, s{sSPIN}, 1
        s_cmp_gt_u32 s{sSPIN}, {SPIN_MAX}
        s_cbranch_scc1 L_end
        s_waitcnt lgkmcnt(0)""")
        for b in ((sP, 4) if two else (sP,)):
            for i in range(0, n, 2):
                self.A(f"s_cmp_eq_u64 s[{b+i}:{b+i+1}], s[42:43]\ns_cbranch_scc0 {r}")
        self.A(f"{d}:")

    def gate(self, k, used):
        if k not in used:
            return
        l = self.lab("Lgate")
        self.A(f"s_cmp_eq_u32 s{sGATE}, {k}\ns_cbranch_scc0 {l}")
        self.arrive(C_GA, want_old=False)
        self.A(f"{l}:")

    def get_loc(self, vreg=None, sleep=0):
        l = self.lab("Lloc")
        if vreg is not None:
            self.A(f"v_readfirstlane_b32 s101, v{vreg}\ns_cmp_lg_u32 s101, 0\ns_cbranch_scc1 {l}_d")
        self.A(f"""
        v_mov_b32 v1, {C_LOC}
        s_mov_b32 s{sSPIN}, 0
        {l}:
        {f's_sleep {sleep}' if sleep else ''}
        ds_read_b32 v2, v1
        s_add_u32 s{sSPIN}, s{sSPIN}, 1
        s_cmp_gt_u32 s{sSPIN}, {SPIN_MAX}
        s_cbranch_scc1 L_end
        s_waitcnt lgkmcnt(0)
        v_readfirstlane_b32 s101, v2
        s_cmp_eq_u32 s101, 0
        s_cbranch_scc1 {l}
        {l}_d:
        s_lshr_b32 s101, s101, 1""")

    def early_flag(self, pos):
        if self.flagpos != pos:
            return
        l = self.lab("Lef")
        self.A(f"s_or_b32 s40, s101, s{sW}\ns_cbranch_scc1 {l}\ns_mov_b32 s40, s95")
        self.flag_store(self.nrepB)
        self.A(f"{l}:")

    def flag_store(self, n, vaddr=None, val=sT32):
        self.exec_set((1 << n) - 1)
        self.A(f"""
        {f'v_mul_u32_u24 v1, {REPP}, v0' if vaddr is None else ''}
        v_add_u32 v1, s40, v{1 if vaddr is None else vaddr}
        v_mov_b32 v2, s{val}
        global_store_dword v1, v2, s[26:27] sc1
        s_mov_b64 exec, -1""")

    def tagcheck(self, regs, vacc, vt):
        first = True
        for r in regs:
            if first:
                self.A(f"v_bitop3_b32 v{vacc}, v{r}, v{r+1}, s{sT10} bitop3:0x7e")
                self.A(f"v_bitop3_b32 v{vt}, v{r+2}, v{r+3}, s{sT10} bitop3:0x7e")
                self.A(f"v_or_b32 v{vacc}, v{vacc}, v{vt}")
                first = False
            else:
                self.A(f"v_bitop3_b32 v{vt}, v{r}, v{r+1}, s{sT10} bitop3:0x7e")
                self.A(f"v_bitop3_b32 v{vt+1}, v{r+2}, v{r+3}, s{sT10} bitop3:0x7e")
                self.A(f"v_or3_b32 v{vacc}, v{vacc}, v{vt}, v{vt+1}")

    def tagcheck2(self, regs, vacc, vt):
        out = []
        for i, r in enumerate(regs):
            d = vacc if i == 0 else vt + (i - 1) % 2
            self.A(f"v_bitop3_b32 v{d}, v{r}, v{r+3}, s{sT10} bitop3:0x7e")
            if i and i % 2 == 0:
                self.A(f"v_or3_b32 v{vacc}, v{vacc}, v{vt}, v{vt+1}")
        if len(regs) % 2 == 0:
            self.A(f"v_or_b32 v{vacc}, v{vacc}, v{vt}")

    def untag_list(self, regs, vacc, first=True):
        out = []
        for i, r in enumerate(regs):
            out += [f"v_xor_b32 v{r+k}, s{sT10}, v{r+k}" for k in range(4)]
            if i == 0 and first:
                out += [f"v_or3_b32 v{vacc}, v{r}, v{r+1}, v{r+2}", f"v_or_b32 v{vacc}, v{vacc}, v{r+3}"]
            else:
                out += [f"v_or3_b32 v{vacc}, v{vacc}, v{r}, v{r+1}", f"v_or3_b32 v{vacc}, v{vacc}, v{r+2}, v{r+3}"]
        return out

    def untag(self, regs, vacc, counted=False):
        ins = self.untag_list(regs, vacc)
        for i in range(len(regs)):
            if counted and i % 2 == 0:
                self.A(f"s_waitcnt vmcnt({max(0, len(regs) - 2 - i)})")
            self.A("\n".join(ins[6*i:6*i+6]))

    def pad2(self, fill):
        if len(fill) >= 2:
            self.A(fill.pop(0) + "\n" + fill.pop(0))
        else:
            self.A("s_nop 1")

    def tagtest(self, vacc, retry):
        if 'notag' in self.abl:
            return
        self.A(f"""
        v_and_b32 v{vacc}, {TAGM:#x}, v{vacc}
        v_cmp_ne_u32 vcc, 0, v{vacc}
        {'s_add_u32 s96, s96, 1' if self.stamps else ''}
        s_add_u32 s{sSPIN}, s{sSPIN}, 1
        s_cmp_gt_u32 s{sSPIN}, {SPIN_MAX}
        s_cbranch_scc1 L_end
        s_nop 1
        s_cbranch_vccnz {retry}""")

    def tag(self, r):
        self.A(f"v_bfi_b32 v{r}, s44, v3, v{r}")

    def reduce_scatter_rows(self, a):
        self.A(f"""
        s_nop 1
        v_permlane32_swap_b32 v{a}, v{a+2}
        v_permlane32_swap_b32 v{a+1}, v{a+3}
        v_add_f32 v{a}, v{a}, v{a+2}
        v_add_f32 v{a+1}, v{a+1}, v{a+3}
        s_nop 1
        v_permlane16_swap_b32 v{a}, v{a+1}
        v_add_f32 v{a}, v{a}, v{a+1}""")

    def allreduce_rows(self, a, t, op):
        self.A(f"""
        v_mov_b32 v{t}, v{a}
        s_nop 1
        v_permlane32_swap_b32 v{t}, v{a}
        {op} v{a}, v{a}, v{t}
        v_mov_b32 v{t}, v{a}
        s_nop 1
        v_permlane16_swap_b32 v{t}, v{a}
        {op} v{a}, v{a}, v{t}""")

    def allreduce_in_row(self, a, op="v_add_f32", fill=None):
        for m in ("quad_perm:[1,0,3,2]", "quad_perm:[2,3,0,1]", "row_half_mirror", "row_mirror"):
            self.pad2(fill if fill is not None else [])
            self.A(f"{op}_dpp v{a}, v{a}, v{a} {m} row_mask:0xf bank_mask:0xf")

    def bf16_round(self, d, s):
        self.A(f"v_cvt_pk_bf16_f32 v{d}, v{s}, v{s}\nv_and_b32 v{d}, 0xffff0000, v{d}")

    def build(self):
        A = self.A
        self.L.append(f"; @launch grid=(256,1,1) block=(512,1,1) lds={getattr(self, 'ldsb', None) or LDS_BYTES}")
        self.L.append('.amdgcn_target "amdgcn-amd-amdhsa--gfx950"')
        self.L += [".text", f".globl {KN}", ".p2align 12", ".p2align 8", f".type {KN},@function", f"{KN}:"]
        self.stamp(0)
        if self.mag:
            A("s_memrealtime s[90:91]")
        A(f"""
        s_cmp_ge_u32 s2, 256
        s_cbranch_scc1 L_end
        s_load_dwordx16 s[4:19], s[0:1], 0
        s_load_dwordx8 s[20:27], s[0:1], 64
        v_lshrrev_b32 v1, 6, v0
        s_and_b32 s{sX}, s2, 7
        s_lshr_b32 s{sY}, s2, 3
        v_readfirstlane_b32 s{sW}, v1""")
        if self.prefetch:
            A(f"""
            s_getpc_b64 s[46:47]
            L_pc:
            s_lshl_b32 s42, s{sY}, 9
            v_add_u32 v1, s42, v0
            v_min_u32 v1, L_codeend-L_pc-4, v1
            s_mov_b64 exec, 1
            global_load_ubyte v55, v1, s[46:47]
            s_mov_b64 exec, -1""")
        A(f"""
        v_and_b32 v0, 63, v0
""")
        if self.layout == 'mix':
            A(f"""
            s_lshr_b32 s{sHQ}, s{sY}, 3
            s_lshl2_add_u32 s{sHQ}, s{sX}, s{sHQ}
            s_and_b32 s{sRBQ}, s{sY}, 7
            s_lshr_b32 s{sG}, s{sX}, 1
            s_and_b32 s{sCH}, s{sX}, 1
            s_lshl4_add_u32 s{sCH}, s{sCH}, s{sY}
            s_lshl4_add_u32 s40, s{sX}, s{sY}
            s_mul_i32 s41, s{sX}, 14
            s_add_u32 s41, s41, s{sY}
            s_sub_u32 s41, s41, {YF}
            s_cmp_lt_u32 s{sY}, {YF}
            s_cselect_b32 s40, s40, s41
            s_cselect_b32 s{sTY}, 0, 1
            s_cmp_ge_u32 s{sY}, {YL}
            s_addc_u32 s{sTY}, s{sTY}, 0
            s_lshr_b32 s{sTL}, s40, 2
            s_and_b32 s{sRB}, s40, 3
            s_xor_b32 s{sUP}, s{sTL}, {self.upx}
            s_lshl1_add_u32 s{sR}, s{sX}, s{sY}
            s_sub_u32 s{sR}, s{sR}, {YL}""")
        else:
            if self.layout == 'odd':
                A(f"s_lshr_b32 s{sG}, s{sX}, 1\ns_and_b32 s{sTY}, s{sX}, 1\ns_xor_b32 s{sTY}, s{sTY}, 1")
            else:
                A(f"s_and_b32 s{sG}, s{sX}, 3\ns_lshr_b32 s{sTY}, s{sX}, 2")
                if self.layout == 'hi':
                    A(f"s_xor_b32 s{sTY}, s{sTY}, 1")
            A(f"""
            s_mov_b32 s{sCH}, s{sY}
            s_and_b32 s{sRB}, s{sY}, 3
            s_lshr_b32 s40, s{sY}, 2
            s_lshl3_add_u32 s{sHQ}, s{sG}, s40
            s_lshl2_add_u32 s{sRBQ}, s{sTY}, s{sRB}
            s_mul_i32 s41, s{sG}, s{sTY}
            s_sub_u32 s{sTL}, s{sHQ}, s41
            s_add_u32 s{sUP}, s40, {self.upx}
            s_cmp_ge_u32 s{sUP}, 7
            s_cselect_b32 s41, 7, 0
            s_sub_u32 s{sUP}, s{sUP}, s41
            s_sub_u32 s{sUP}, s{sUP}, s40
            s_add_u32 s{sUP}, s{sUP}, s{sTL}
            s_lshl2_add_u32 s{sR}, s{sG}, s{sRB}
            s_cmp_eq_u32 s40, 7
            s_cselect_b32 s41, s{sTY}, 0
            s_add_u32 s{sTY}, s{sTY}, s41""")
        A(f"""
""")
        if self.ftrans:
            A(f"""
            s_cmp_eq_u32 s{sTY}, 1
            s_cselect_b32 s{sTL}, s{sY}, s{sTL}
            s_cselect_b32 s{sRB}, s{sG}, s{sRB}
            s_xor_b32 s{sUP}, s{sTL}, {self.upx}""")
        A(f"""
        {f's_mov_b32 s{sHQ}, s{sY}' if self.qmap == 'rows' else ''}
        {f's_mov_b32 s{sRBQ}, s{sX}' if self.qmap == 'rows' else ''}
        s_cmp_lt_u32 s{sX}, 2
        s_cselect_b32 s40, {self.gateA[0]}, {self.gateA[1]}
        s_cselect_b32 s41, {self.gateF[0]}, {self.gateF[1]}
        s_cmp_eq_u32 s{sTY}, 0
        s_cselect_b32 s{sGATE}, s40, s41
        s_movk_i32 s44, {TAGM:#x}
        v_and_b32 v4, 15, v0
        v_lshrrev_b32 v5, 4, v0""")
        if self.stamps or self.probe:
            A(f"s_mov_b32 s96, 0\ns_mov_b32 s94, s{sW}")
        if self.probe:
            A(f"s_waitcnt lgkmcnt(0)\ns_mov_b32 s{sSTAMP+2*self.probe[2]}, s{sSTAMP}")
        A(f"""
        s_cmp_lt_u32 s{sW}, 4
        s_cbranch_scc1 L_awave""")
        L0 = self.L
        self.L = []
        self.swave()
        cut = self.L.index("L_sdispatch:")
        shead, stail = self.L[:cut], self.L[cut:]
        self.L = L0 + shead
        A("s_branch L_sdispatch\nL_awave:")
        self.awave()
        self.L += stail
        self.final()
        A("L_end:")
        A("s_endpgm")
        self.L.append("L_codeend:")
        nv = getattr(self, 'nvo', None) or 200
        self.L += ['.section .rodata,"a"', ".p2align 6", f".amdhsa_kernel {KN}",
                   f"  .amdhsa_next_free_vgpr {nv}", "  .amdhsa_next_free_sgpr 102", f"  .amdhsa_accum_offset {nv}",
                   "  .amdhsa_group_segment_fixed_size 0", "  .amdhsa_kernarg_size 96", "  .amdhsa_user_sgpr_count 2",
                   "  .amdhsa_user_sgpr_kernarg_segment_ptr 1", "  .amdhsa_system_sgpr_workgroup_id_x 1",
                   "  .amdhsa_float_denorm_mode_32 3", ".end_amdhsa_kernel"]
        return "\n".join(self.L) + "\n"

    def write_stamps(self, n):
        if self.probe:
            wg, wave, k = self.probe[:3]
            ty = self.probe[3] if len(self.probe) > 3 else None
            self.stamp(n)
            d = self.lab("Lprobe_done"); l = self.lab("Lprobe")
            self.A(f"""
            s_waitcnt lgkmcnt(0)
            s_getreg_b32 s41, hwreg(HW_REG_XCC_ID, 0, 4)
            {f's_cmp_eq_u32 s41, {-wg-100}' if wg <= -100 else f"s_cmp_eq_u32 s2, {wg if wg >= 0 else 's2'}"}
            s_cbranch_scc0 {d}
            s_cmp_eq_u32 s94, {wave}
            s_cbranch_scc0 {d}
            s_cmp_eq_u32 s{sTY}, {ty if ty is not None else f's{sTY}'}
            s_cbranch_scc0 {d}
            s_add_u32 s40, s{sSTAMP+2*k}, 4000
            {l}:
            s_memrealtime s[42:43]
            s_waitcnt lgkmcnt(0)
            s_sub_u32 s41, s42, s40
            s_cmp_lt_i32 s41, 0
            s_cbranch_scc1 {l}
            {d}:""")
            return
        if not self.stamps:
            return
        self.stamp(n)
        A = self.A
        A(f"""
        s_waitcnt lgkmcnt(0)
        s_mov_b64 exec, -1
        s_lshl3_add_u32 s40, s2, s94
        s_lshl_b32 s40, s40, 6
        s_add_u32 s40, s40, {WS_ST:#x}
        v_mov_b32 v1, 0""")
        for k in range(n + 1):
            A(f"v_writelane_b32 v1, s{sSTAMP+2*k}, {k}")
        A(f"""
        s_getreg_b32 s41, hwreg(HW_REG_XCC_ID)
        s_and_b32 s41, s41, 0xf
        s_lshl4_add_u32 s41, s96, s41
        v_writelane_b32 v1, s41, 15
        v_lshl_add_u32 v2, v0, 2, s40
        s_mov_b64 exec, 0xffff
        global_store_dword v2, v1, s[26:27]""")

    def swave(self):
        A = self.A
        vI, vJ = 4, 5
        vAq, vA1, vA2, vA3, vAw, vRed, vPub = 6, 7, 8, 9, 10, 11, 14
        vPS, vXQ, vXG, vSEL, aQ, aG, aU, vT = 16, 24, 28, 36, 40, 44, 48, 52
        RING, BIG = 56, 120
        A(f"""
        L_swave:
        s_sub_u32 s{sW}, s{sW}, 4
        s_lshl2_add_u32 s40, s{sRBQ}, s{sW}
        s_lshl_b32 s40, s40, 18
        s_lshl_b32 s41, s{sHQ}, 8
        s_add_u32 s40, s40, s41
        v_lshlrev_b32 v13, 4, v{vI}
        v_lshl_add_u32 v{vAq}, v{vJ}, 13, v13
        v_add_u32 v{vAq}, s40, v{vAq}
        s_mov_b32 s45, 0x8000""")
        if self.wideq:
            A(f"""
            s_lshl2_add_u32 s40, s2, s{sW}
            s_lshl_b32 s40, s40, 13
            v_lshl_add_u32 v{vAq}, v0, 4, s40
            s_movk_i32 s45, 0x400""")
        A("s_waitcnt lgkmcnt(0)")
        for m in range(8):
            A(f"global_load_dwordx4 v[{RING+4*m}:{RING+4*m+3}], v{vAq}, s[10:11] nt")
            if m < 7:
                A(f"v_add_u32 v{vAq}, s45, v{vAq}")
        A(f"s_load_dword s{sT32}, s[26:27], {WS_E}")
        self.stamp(1)
        A(f"""
        ; wo / down: rows tile*128 + 8*m + (l>>3), columns cb*256 + sw*64 + 8*(l&7)
        v_lshrrev_b32 v12, 3, v0
        v_and_b32 v1, 7, v0
        v_lshlrev_b32 v2, 4, v1
        v_lshl_add_u32 v{vAw}, v12, 11, v2
        s_lshl2_add_u32 s42, s{sRB}, s{sW}
        s_lshl_b32 s40, s42, 7
        s_lshl_b32 s41, s{sTL}, 18
        s_add_u32 s40, s40, s41
        v_add_u32 v{vAw}, s40, v{vAw}
        s_movk_i32 s45, 0x4000""")
        if self.widew:
            A(f"""
            s_lshl_b32 s40, s{sW}, 16
            s_add_u32 s41, s41, s40
            s_lshl_b32 s40, s{sRB}, 9
            s_add_u32 s41, s41, s40
            v_lshrrev_b32 v2, 5, v0
            v_lshlrev_b32 v2, 11, v2
            v_and_b32 v{vAw}, 31, v0
            v_lshl_add_u32 v{vAw}, v{vAw}, 4, v2
            v_add_u32 v{vAw}, s41, v{vAw}
            s_movk_i32 s45, 0x1000""")
        A(f"""
        v_lshl_add_u32 v1, v1, 1, v{vJ}
        s_lshl_b32 s40, s42, 8
        v_lshl_add_u32 v{vPub}, v1, 4, s40
        ; LDS offset of this lane's partial granule: (2*(l&15) + J)*16
        v_lshl_add_u32 v{vRed}, v{vI}, 1, v{vJ}
        v_lshlrev_b32 v{vRed}, 4, v{vRed}
        s_mov_b32 s40, 0xaaaaaaaa
        s_mov_b32 s41, 0xaaaaaaaa
        v_mov_b32 v1, 0x0c0c0100
        v_mov_b32 v2, 0x01000c0c
        v_cndmask_b32 v1, v1, v2, s[40:41]
        v_mov_b32 v2, 0x0c0c0302
        v_mov_b32 v3, 0x03020c0c
        v_cndmask_b32 v2, v2, v3, s[40:41]
        v_mov_b32 v3, 0x0c0c0c0c""")
        for d in range(4):
            m = 0x03030303 << (2*d)
            A(f"""
            s_mov_b32 s40, {m:#x}
            s_mov_b32 s41, {m:#x}
            v_cndmask_b32 v{vPS+d}, v3, v1, s[40:41]
            v_cndmask_b32 v{vPS+4+d}, v3, v2, s[40:41]""")
        A(f"""
        s_barrier
        s_waitcnt lgkmcnt(0)
        s_add_u32 s{sT32}, s{sT32}, 1
        s_and_b32 s{sT10}, s{sT32}, s44
        v_mov_b32 v3, s{sT10}
        s_cmp_ge_u32 s{sTY}, 1
        s_cbranch_scc1 L_s_notattn
        L_sdispatch:""")

        def sel(m, dst, src):
            for d in range(4):
                A(f"v_perm_b32 v{dst+d}, v{src+(m>>1)}, v{src+(m>>1)}, v{vPS+4*(m&1)+d}")

        def mfma(acc, s, w, first):
            c = "0" if first else f"v[{acc}:{acc+3}]"
            A(f"v_mfma_f32_16x16x32_bf16 v[{acc}:{acc+3}], v[{s}:{s+3}], v[{w}:{w+3}], {c}")

        def get_xn(ffn):
            A(f"s_lshl_b32 s41, s{sW}, 2\ns_add_u32 s41, s41, {C_XN}")
            self.lds_spin("s41", 1, sleep=0)
            A(f"""
            s_lshl_b32 s40, s{sW}, 6
            v_lshl_add_u32 v2, v{vJ}, 4, s40
            ds_read_b128 v[{vXQ}:{vXQ+3}], v2 offset:{L_XQ}""")
            if ffn:
                A(f"""
                v_lshlrev_b32 v2, 1, v2
                ds_read_b128 v[{vXG}:{vXG+3}], v2 offset:{L_XG}
                ds_read_b128 v[{vXG+4}:{vXG+7}], v2 offset:{L_XG+16}""")
            A("s_waitcnt lgkmcnt(0)")
            self.stamp(3)
            sel(0, vSEL, vXQ)
            A("s_nop 1")

        def red_write(accs, lbase, shift, cnt):
            A(f"s_lshl_b32 s40, s{sW}, {shift}\nv_add_u32 v1, s40, v{vRed}\ns_mov_b32 exec_hi, 0")
            for i, a in enumerate(accs):
                A(f"ds_write_b128 v1, v[{a}:{a+3}] offset:{lbase + 512*i}")
            self.arrive(cnt, want_old=False)

        def kvflag(c):
            A(f"""
            s_lshl_b32 s40, s{sW}, 2
            s_mov_b64 exec, 1
            v_mov_b32 v1, s40
            v_mov_b32 v2, 1
            ds_write_b32 v1, v2 offset:{c}
            s_mov_b64 exec, -1""")

        def issue(op, i):
            kind, m = op
            slot = RING + 4*(i % 16)
            if kind in "kv":
                va, sb, x = (vA1, 6, 64*(m & 3)) if kind == "k" else (vA2, 8, 128*(m & 1))
                if m % 4 == 0:
                    if i > 8:
                        A(f"s_add_u32 s47, s47, {4096 if m == 4 else L_V - L_K - 4096}")
                    A("s_mov_b32 m0, s47")
                    if m == 4:
                        A(f"v_add_u32 v{va}, 4096, v{va}")
                A(f"v_xor_b32 v1, {x}, v{va}")
                A(f"global_load_lds_dwordx4 v1, s[{sb}:{sb+1}] offset:{1024*(m&3)} nt")
            elif kind in "gu":
                va, sb = (vA1, 16) if kind == "g" else (vA2, 18)
                A(f"global_load_dwordx4 v[{slot}:{slot+3}], v{va}, s[{sb}:{sb+1}] nt")
                if m < 15:
                    A(f"v_add_u32 v{va}, s{47 if (self.stag and m % 2) else 46}, v{va}")
            elif kind in "do":
                sb = 20 if kind == "d" else 12
                A(f"global_load_dwordx4 v[{BIG+4*m}:{BIG+4*m+3}], v{vAw}, s[{sb}:{sb+1}] nt")
                if m < 15:
                    A(f"v_add_u32 v{vAw}, s45, v{vAw}")

        def process(op, i, ffn):
            kind, m = op
            slot = RING + 4*(i % 16)
            if kind == "q":
                mfma(aQ, vSEL, slot, m == 0)
                if m < 7:
                    sel(m + 1, vSEL, vXQ)
                    A("s_nop 1")
                else:
                    if ffn:
                        sel(0, vSEL, vXG)
                        A("s_nop 0")
                    else:
                        A("s_nop 4")
                    red_write([aQ], L_RQ, 9, C_Q)
                    self.stamp(4)
            elif kind in "kv" and m == 7:
                l = self.lab("Lkvf")
                if self.after_pause:
                    A(f"s_cmp_lg_u32 s43, 0\ns_cbranch_scc1 {l}")
                kvflag(C_K if kind == "k" else C_V)
                if kind == "v":
                    self.stamp(5)
                A(f"{l}:")
            elif kind == "g":
                mfma(aG, vSEL, slot, m == 0)
            elif kind == "u":
                mfma(aU, vSEL, slot, m == 0)
                if m < 15:
                    sel(m + 1, vSEL, vXG)
                    A("s_nop 1")
                else:
                    A("s_nop 4")
                    red_write([aG, aU], L_RG, 10, C_G)
                    self.stamp(6)

        def stream(ops, wfun, ffn, start=8, landed=0, hold=0, holdcnt=0):
            if 'noa' in self.abl or 'nofin' in self.abl:
                hold = 0
            for i in range(start, len(ops)):
                w = wfun(i)
                if hold and i == len(ops) - hold:
                    assert landed >= start
                    self.lds_spin(C_HB, holdcnt, sleep=1)
                if hold and i >= len(ops) - hold:
                    w = max(w, hold)
                A(f"s_waitcnt vmcnt({w-1})")
                issue(ops[i], i)
                if i < self.xnpos:
                    continue
                if i == self.xnpos:
                    get_xn(ffn)
                while landed <= i - w:
                    process(ops[landed], landed, ffn); landed += 1
            return landed

        def drain(ops, landed, upto, ffn):
            n = len(ops)
            while landed < upto:
                if ops[landed][0] in "qgu":
                    A(f"s_waitcnt vmcnt({n - 1 - landed})")
                    process(ops[landed], landed, ffn)
                landed += 1
            return landed

        def final_gemv(val, first, nops, landed, wsb):
            A(f"""
            v_lshlrev_b32 v15, 5, v12
            s_mul_i32 s40, s{sTL}, {ROWP}
            s_add_u32 s40, s40, {wsb:#x}
            v_add_u32 v{vPub}, s40, v{vPub}""")
            floc = self.flocal == 'xt' and wsb == WS_BF
            if floc:
                self.get_loc()
            rd = f"ds_read_b128 v[{vXG}:{vXG+3}], v15 offset:{L_VEC}\nds_read_b128 v[{vXG+4}:{vXG+7}], v15 offset:{L_VEC+16}"
            if 'noa' not in self.abl and 'nofin' not in self.abl:
                self.lds_spin(C_FO, val, sleep=0, reads=rd)
            else:
                A(rd + "\ns_waitcnt lgkmcnt(0)")
            self.stamp(8)
            self.L.append(".p2align 3")
            late = [m for m in range(16) if first + m >= landed]
            early = [m for m in range(16) if first + m < landed]
            for k, m in enumerate(early):
                sel(m, RING + 4*m, vXG)
                if k:
                    mfma(aQ, RING + 4*early[k-1], BIG + 4*early[k-1], k == 1)
            for k, m in enumerate(late):
                sel(m, RING + 4*m, vXG)
                if k == 0 and early:
                    mfma(aQ, RING + 4*early[-1], BIG + 4*early[-1], len(early) == 1)
            self.stamp(9)
            for k, m in enumerate(late):
                A(f"s_waitcnt vmcnt({nops - 1 - (first + m)})")
                mfma(aQ, RING + 4*m, BIG + 4*m, k == 0 and not early)
            g = vT
            A(f"""
            s_nop 7
            v_permlane32_swap_b32 v{aQ}, v{aQ+2}
            v_permlane32_swap_b32 v{aQ+1}, v{aQ+3}
            s_nop 0
            v_add_f32_dpp v{g}, v{aQ+2}, v{aQ} row_shl:8 row_mask:0xf bank_mask:0xf bound_ctrl:1
            v_add_f32_dpp v{g+1}, v{aQ+3}, v{aQ+1} row_shl:8 row_mask:0xf bank_mask:0xf bound_ctrl:1""")
            self.tag(g); self.tag(g + 1)
            A(f"""
            s_nop 0
            v_permlane32_swap_b32 v{g}, v{g+2}
            v_permlane32_swap_b32 v{g+1}, v{g+3}
            s_mov_b64 exec, 0x00ff00ff""")
            if floc:
                l = self.lab("Lfrem")
                A(f"""
                s_cmp_lg_u32 s101, 0
                s_cbranch_scc1 {l}
                global_store_dwordx4 v{vPub}, v[{g}:{g+3}], s[26:27]
                s_branch {l}_d
                {l}:
                global_store_dwordx4 v{vPub}, v[{g}:{g+3}], s[26:27] sc1
                {l}_d:""")
            else:
                A(f"global_store_dwordx4 v{vPub}, v[{g}:{g+3}], s[26:27] {'' if (self.flocal == 'force' and wsb == WS_BF) else 'sc1'}")
            A("s_mov_b64 exec, -1")

        qops = [("q", m) for m in range(8)]
        A(f"""
        s_lshl_b32 s40, s{sG}, 24
        s_lshl_b32 s41, s{sCH}, 15
        s_add_u32 s40, s40, s41
        s_lshl_b32 s47, s{sW}, 13
        s_add_u32 s40, s40, s47
        s_add_u32 s47, s47, {L_K}
        s_add_u32 s40, s40, {(65536-4096)*256:#x}
        v_xor_b32 v1, v{vI}, v{vJ}
        v_lshlrev_b32 v1, 4, v1
        v_lshl_add_u32 v1, v{vJ}, 8, v1
        v_add_u32 v{vA1}, s40, v1
        v_lshlrev_b32 v1, 1, v{vJ}
        v_xor_b32 v1, v{vI}, v1
        v_lshlrev_b32 v1, 4, v1
        v_lshl_add_u32 v1, v{vJ}, 8, v1
        v_add_u32 v{vA2}, s40, v1""")
        ops = qops + [("k", m) for m in range(8)] + [("v", m) for m in range(8)]
        WA = self.WA
        self.after_pause = False
        landed = stream(ops, lambda i: WA[0] if i < 14 else WA[1], False)
        self.after_pause = True
        A("s_mov_b32 s43, 0")
        if self.pause and 'noa' not in self.abl:
            go = self.lab("Lgo")
            if 0 in self.gateA:
                A(f"s_cmp_eq_u32 s{sGATE}, 0\ns_cbranch_scc1 {go}")
            A(f"""
            v_mov_b32 v1, {C_GA}
            ds_read_b32 v2, v1
            s_waitcnt lgkmcnt(0)
            v_readfirstlane_b32 s{sTMP}, v2
            s_cmp_eq_u32 s{sTMP}, 4
            s_cbranch_scc1 {go}
            s_waitcnt vmcnt(0)
            s_mov_b32 s43, 1""")
            assert landed >= 8
            if landed < 16:
                kvflag(C_K)
            kvflag(C_V)
            self.stamp(5)
            self.lds_spin(C_GA, 4, sleep=1)
            A(f"{go}:")
            self.stamp(6)
        ops = ops + [("o", m) for m in range(16)]
        for w3 in ([self.WAe, WA[2]] if self.WAe else [WA[2]]):
            nxt = self.lab("Lsa")
            if self.WAe and w3 == self.WAe:
                A(f"s_cmp_lt_u32 s{sX}, 2\ns_cbranch_scc0 {nxt}")
            l2 = stream(ops, lambda i: w3 if (i < 32 or len(WA) < 4) else WA[3], False, start=24, landed=landed, hold=self.HA, holdcnt=4)
            assert l2 >= 24
            self.stamp(7)
            final_gemv(4, 24, 40, l2, WS_BS)
            self.write_stamps(10)
            A(f"s_endpgm\n{nxt}:")
        A(f"""
        L_s_notattn:
        s_cmp_ge_u32 s{sTY}, 2
        s_cbranch_scc1 L_s_last
        s_lshl2_add_u32 s40, s{sRB}, s{sW}
        s_mul_i32 s40, s40, {64*7168}""")
        if self.stag:
            A(f"""
            s_and_b32 s41, s{sW}, 1
            s_mul_i32 s42, s41, {4*7168}
            s_add_u32 s40, s40, s42""")
        A(f"""
        v_mul_u32_u24 v1, 7168, v{vJ}
        v_add3_u32 v1, v1, v13, s40
        s_lshl_b32 s41, s{sTL}, 8
        v_add_u32 v{vA1}, s41, v1
        s_lshl_b32 s41, s{sUP}, 8
        v_add_u32 v{vA2}, s41, v1
        s_movk_i32 s46, {7168*4}""")
        if self.stag:
            A("s_lshl_b32 s42, s42, 1\ns_add_u32 s47, s46, s42\ns_sub_u32 s46, s46, s42")
        if self.wideg:
            wd = self.wideg; nt = 7168 // wd; rpi = 1024 // wd; lpr = wd // 16
            import math
            A(f"""
            s_lshl2_add_u32 s40, s{sTL}, s{sRB}
            s_mul_hi_u32 s41, s40, {-(-(1 << 32) // nt)}
            s_mul_i32 s42, s41, {nt}
            s_sub_u32 s42, s40, s42
            s_lshl2_add_u32 s41, s41, s{sW}
            s_mul_i32 s41, s41, {16*rpi*7168}
            s_mul_i32 s42, s42, {wd}
            s_add_u32 s41, s41, s42
            v_lshrrev_b32 v1, {int(math.log2(lpr))}, v0
            v_mul_u32_u24 v1, 7168, v1
            v_and_b32 v2, {lpr-1}, v0
            v_lshl_add_u32 v1, v2, 4, v1
            v_add_u32 v{vA1}, s41, v1
            v_mov_b32 v{vA2}, v{vA1}
            s_movk_i32 s46, {7168*rpi}""")
        ops = qops + [(k, m) for m in range(16) for k in "gu"] + [("d", m) for m in range(16)]
        WF = self.WF
        landed = stream(ops[:40], lambda i: WF[0] if i < 14 else WF[1], True)
        gated = self.lab("Lsfg")
        if any(self.gateF) and 'noa' not in self.abl:
            A(f"s_cmp_lg_u32 s{sGATE}, 0\ns_cbranch_scc1 {gated}")
        if 0 in self.gateF or 'noa' in self.abl:
            l2 = stream(ops, lambda i: WF[2] if (i < 48 or len(WF) < 4) else WF[3], True, start=40, landed=landed, hold=self.HF, holdcnt=1)
            assert l2 >= 40
            self.stamp(7)
            final_gemv(1, 40, 56, l2, WS_BF)
            self.write_stamps(10)
            A("s_endpgm")
        if any(self.gateF) and 'noa' not in self.abl:
            A(f"{gated}:")
            l2 = drain(ops[:40], landed, 40, True)
            self.lds_spin(C_GA, 1, sleep=1)
            l2 = stream(ops, lambda i: self.WFe or WF[2], True, start=40, landed=l2)
            self.stamp(7)
            final_gemv(1, 40, 56, l2, WS_BF)
            self.write_stamps(10)
            A("s_endpgm")
        A("L_s_last:")
        get_xn(False)
        drain(qops, 0, 8, False)
        A(f"s_add_u32 s{sW}, s{sW}, 4\ns_branch L_final")

    def red_publish(self, lbase, pitch, cnt, nl, addr_code, nrep, flagv=None, sleep=1, val=sT32, local=False):
        A = self.A
        t = 16
        A("v_lshlrev_b32 v10, 4, v0")
        A(addr_code)
        if local and self.warm is not None:
            self.exec_set(0x0101010101010101)
            A(f"global_load_dword v54, v11, s[26:27] {self.warm}\ns_mov_b64 exec, -1")
        self.lds_spin(cnt, 4, sleep=sleep, reads="\n".join(f"ds_read_b128 v[{t+4*k}:{t+4*k+3}], v10 offset:{lbase+pitch*k}" for k in range(4)))
        if local and self.earlyD:
            l = self.lab("Lef")
            A(f"s_cmp_lg_u32 s101, 0\ns_cbranch_scc1 {l}")
            self.flag_store(nrep, flagv, val)
            A(f"{l}:")
        if nl == 32:
            A("s_mov_b32 exec_hi, 0")
        for h in (0, 2):
            A(f"v_pk_add_f32 v[{t+h}:{t+h+1}], v[{t+h}:{t+h+1}], v[{t+4+h}:{t+5+h}]")
            A(f"v_pk_add_f32 v[{t+8+h}:{t+9+h}], v[{t+8+h}:{t+9+h}], v[{t+12+h}:{t+13+h}]")
        for h in (0, 2):
            A(f"v_pk_add_f32 v[{t+h}:{t+h+1}], v[{t+h}:{t+h+1}], v[{t+8+h}:{t+9+h}]")
        for r in range(4):
            A(f"v_add_u32 v{t+r}, {(TAGM + 1) // 2:#x}, v{t+r}")
        for r in range(4):
            self.tag(t + r)
        if local:
            rem = self.lab("Lremote"); fl = self.lab("Lpub")
            A(f"""
            s_cmp_lg_u32 s101, 0
            s_cbranch_scc1 {rem}
            global_store_dwordx4 v11, v[{t}:{t+3}], s[26:27]
            s_branch {fl if not self.earlyD else fl + '_done'}
            {rem}:
            global_store_dwordx4 v11, v[{t}:{t+3}], s[26:27] sc1
            {fl}:""")
            self.flag_store(nrep, flagv, val)
            A(f"{fl}_done:")
        else:
            A(f"global_store_dwordx4 v11, v[{t}:{t+3}], s[26:27] sc1")
            self.flag_store(nrep, flagv, val)

    def awave(self):
        A = self.A
        vKF, vVF, vGT, vU = 56, 184, 216, 232
        vQF, vS = 216, 16
        vI, vJ = 4, 5
        vA0, vA1 = 6, 7
        vT = 16
        x0, xr = 56, 72
        A(f"""
        s_setprio 3
        s_lshl2_add_u32 s40, s{sRB}, s{sW}
        s_lshl_b32 s40, s40, 6
        v_lshlrev_b32 v14, 5, v0
        v_add_lshl_u32 v1, v0, s40, 1
        s_lshl2_add_u32 s40, s{sRBQ}, s{sW}
        s_lshl_b32 s40, s40, 5
        v_and_b32 v15, 31, v0
        v_add_lshl_u32 v15, v15, s40, 1
        v_mov_b32 v10, 0
        v_and_b32 v2, 31, v0
        v_lshlrev_b32 v2, 2, v2
        ds_write_b32 v2, v10 offset:{L_CNT}
        s_waitcnt lgkmcnt(0)
        global_load_dwordx4 v[{xr}:{xr+3}], v14, s[4:5]
        global_load_dwordx4 v[{xr+4}:{xr+7}], v14, s[4:5] offset:16
        global_load_ushort v{xr+8}, v15, s[4:5]
        global_load_ushort v{xr+9}, v1, s[4:5]
        s_load_dword s{sT32}, s[26:27], {WS_E}""")
        if self.touch:
            tf = self.lab("Ltf"); td = self.lab("Ltd")
            A(f"""
            s_cmp_eq_u32 s{sW}, 0
            s_cbranch_scc0 {td}
            s_lshl_b32 s41, s{sTL}, 18
            s_cmp_eq_u32 s{sTY}, 0
            s_cbranch_scc0 {tf}
            s_lshl_b32 s40, s{sG}, 24
            s_add_u32 s40, s40, {(65536-4096)*256:#x}
            s_load_dword s48, s[6:7], s40
            s_load_dword s49, s[8:9], s40
            s_load_dword s50, s[12:13], s41
            s_branch {td}
            {tf}:
            s_load_dword s48, s[22:23], 0
            s_cmp_eq_u32 s{sTY}, 1
            s_cbranch_scc0 {td}
            s_mul_i32 s40, s{sRB}, {256*7168}
            s_add_u32 s42, s40, {255*7168}
            s_load_dword s49, s[16:17], s40
            s_load_dword s50, s[18:19], s40
            s_load_dword s51, s[16:17], s42
            s_load_dword s52, s[18:19], s42
            s_load_dword s53, s[20:21], s41
            {td}:""")
        A("s_barrier")
        self.stamp(1)
        if self.xt:
            nx = self.lab("Lnoxt")
            A(f"""
            s_waitcnt lgkmcnt(0)
            s_cmp_lg_u32 s{sW}, 0
            s_cbranch_scc1 {nx}
            ; wave 0 announces the die this workgroup runs on
            s_getreg_b32 s45, hwreg(HW_REG_XCC_ID, 0, 4)
            s_lshl_b32 s45, s45, 28
            s_add_u32 s41, s{sT32}, 1
            s_xor_b32 s45, s45, s41
            s_lshl_b32 s95, s{sX}, 7
            s_add_u32 s95, s95, {WS_XA:#x}
            s_lshl2_add_u32 s41, s{sY}, s95
            s_mov_b64 exec, 1
            v_mov_b32 v1, s41
            v_mov_b32 v2, s45
            global_store_dword v1, v2, s[26:27] sc1
            s_mov_b64 exec, -1
            s_waitcnt vmcnt(1)
            s_branch {nx}_ln
            {nx}:
            s_waitcnt vmcnt(0)
            {nx}_ln:""")
        else:
            A(f"s_waitcnt vmcnt(0) lgkmcnt(0)")
        self.stamp(11)
        for i in range(8):
            A(f"v_lshlrev_b32 v{x0+2*i}, 16, v{xr+i}\nv_and_b32 v{x0+2*i+1}, 0xffff0000, v{xr+i}")
        A(f"v_pk_add_f32 v[{vT}:{vT+1}], v[{x0}:{x0+1}], v[{x0+2}:{x0+3}]")
        A(f"v_pk_add_f32 v[{vT+2}:{vT+3}], v[{x0+4}:{x0+5}], v[{x0+6}:{x0+7}]")
        for i in range(4, 8, 2):
            A(f"v_pk_add_f32 v[{vT}:{vT+1}], v[{vT}:{vT+1}], v[{x0+2*i}:{x0+2*i+1}]")
            A(f"v_pk_add_f32 v[{vT+2}:{vT+3}], v[{vT+2}:{vT+3}], v[{x0+2*i+2}:{x0+2*i+3}]")
        A(f"v_pk_add_f32 v[{vT}:{vT+1}], v[{vT}:{vT+1}], v[{vT+2}:{vT+3}]")
        A(f"v_add_f32 v{vT}, v{vT}, v{vT+1}")
        self.allreduce_in_row(vT)
        self.allreduce_rows(vT, vT+1, "v_add_f32")
        A(f"v_mul_f32 v{vT}, {f2u(1.0/1024):#x}, v{vT}")
        for i in range(8):
            A(f"v_pk_add_f32 v[{x0+2*i}:{x0+2*i+1}], v[{x0+2*i}:{x0+2*i+1}], v[{vT}:{vT+1}] op_sel_hi:[1,0] neg_lo:[0,1] neg_hi:[0,1]")
        A(f"v_pk_mul_f32 v[{vT+2}:{vT+3}], v[{x0}:{x0+1}], v[{x0}:{x0+1}]")
        A(f"v_pk_mul_f32 v[{vT+4}:{vT+5}], v[{x0+2}:{x0+3}], v[{x0+2}:{x0+3}]")
        for i in range(2, 8):
            d = vT + 2 + 2*(i & 1)
            A(f"v_pk_fma_f32 v[{d}:{d+1}], v[{x0+2*i}:{x0+2*i+1}], v[{x0+2*i}:{x0+2*i+1}], v[{d}:{d+1}]")
        A(f"v_pk_add_f32 v[{vT+2}:{vT+3}], v[{vT+2}:{vT+3}], v[{vT+4}:{vT+5}]")
        A(f"v_add_f32 v{vT+2}, v{vT+2}, v{vT+3}")
        r = xr + 8
        self.bf16_round(vT, vT)
        self.allreduce_in_row(vT+2)
        A(f"""
        v_lshlrev_b32 v{r}, 16, v{r}
        v_lshlrev_b32 v{r+1}, 16, v{r+1}
        v_pk_add_f32 v[{r}:{r+1}], v[{r}:{r+1}], v[{vT}:{vT+1}] op_sel_hi:[1,0] neg_lo:[0,1] neg_hi:[0,1]""")
        self.allreduce_rows(vT+2, vT+3, "v_add_f32")
        A(f"v_mul_f32 v{vT+2}, {f2u(1.0/1024):#x}, v{vT+2}")
        self.bf16_round(vT+2, vT+2)
        A(f"v_add_f32 v{vT+2}, {f2u(1e-5):#x}, v{vT+2}")
        self.bf16_round(vT+2, vT+2)
        A(f"""
        v_sqrt_f32 v{vT+2}, v{vT+2}
        v_cvt_pk_bf16_f32 v{r+1}, v{r}, v{r+1}
        v_lshlrev_b32 v{r}, 16, v{r+1}
        v_and_b32 v{r+1}, 0xffff0000, v{r+1}""")
        self.bf16_round(vT+2, vT+2)
        A(f"""
        v_rcp_f32 v{vT+2}, v{vT+2}
        v_and_b32 v1, 3, v0
        v_lshrrev_b32 v2, 2, v0
        v_lshlrev_b32 v2, 1, v2
        v_pk_mul_f32 v[{r}:{r+1}], v[{r}:{r+1}], v[{vT+2}:{vT+3}] op_sel_hi:[1,0]
        s_lshl_b32 s40, s{sW}, 6
        v_lshl_add_u32 v10, v1, 4, s40
        v_lshl_add_u32 v11, v10, 1, v2
        v_add_u32 v10, v10, v2""")
        if self.stag:
            A(f"s_and_b32 s41, s{sW}, 1\ns_lshl_b32 s41, s41, 1\nv_xor_b32 v11, s41, v11")
        A(f"""
        v_cvt_pk_bf16_f32 v{r}, v{r}, v{r+1}
        s_lshl_b32 s40, s{sW}, 2
        v_mov_b32 v2, s40
        v_mov_b32 v1, 1
        ds_write_b16_d16_hi v11, v{r} offset:{L_XG}
        s_mov_b32 exec_hi, 0
        ds_write_b16 v10, v{r} offset:{L_XQ}
        s_mov_b64 exec, 1
        ds_write_b32 v2, v1 offset:{C_XN}
        s_mov_b64 exec, -1
        s_add_u32 s{sT32}, s{sT32}, 1
        s_and_b32 s{sT10}, s{sT32}, s44
        v_mov_b32 v3, s{sT10}""")
        self.stamp(12)
        if self.mag:
            A(f"""
            s_cmp_eq_u32 s{sW}, 1
            s_cbranch_scc0 L_magskip
            s_lshl_b32 s40, s2, 7
            s_add_u32 s40, s40, 0x300000
            v_mov_b32 v1, s40
            v_mov_b32 v2, s90
            s_mov_b64 exec, 1
            global_store_dword v1, v2, s[26:27] sc1
            s_mov_b64 exec, -1
            L_magskip:""")
        if self.wtest:
            pre, mod, n = self.wtest
            A(f"s_cmp_eq_u32 s{sW}, 3\ns_cbranch_scc0 L_adone")
            A(f"s_mul_i32 s42, s2, {n*1024}\ns_add_u32 s42, s42, 0x800000\nv_lshl_add_u32 v10, v0, 4, s42")
            if pre == 's':
                A("s_add_u32 s40, s26, s42\ns_addc_u32 s41, s27, 0")
                for i in range(n*16):
                    A(f"s_load_dword s48, s[40:41], {64*i} glc")
                A("s_waitcnt lgkmcnt(0)")
            elif pre:
                for i in range(n):
                    A(f"global_load_dwordx4 v[20:23], v10, s[26:27] offset:{1024*i} {pre[1:]}")
                A("s_waitcnt vmcnt(0)")
            self.lds_spin(C_Q, 4, sleep=1)
            A("s_sleep 64")
            for i in range(n):
                A(f"global_store_dwordx4 v10, v[16:19], s[26:27] offset:{1024*i} {mod}")
        if 'noa' in self.abl:
            A("s_branch L_adone")
        if self.xt:
            pass
        elif self.local:
            A(f"""
            s_getreg_b32 s45, hwreg(HW_REG_XCC_ID, 0, 4)
            s_lshl_b32 s45, s45, 28
            s_cmp_eq_u32 s{sTY}, 0
            s_cselect_b32 s45, s45, 0
            s_xor_b32 s45, s45, s{sT32}""")
        nq = self.lab("Lnoq")
        A(f"s_cmp_eq_u32 s{sW}, 3\ns_cbranch_scc0 {nq}")
        self.red_publish(L_RQ, 512, C_Q, 32, f"""
            s_lshl3_add_u32 s41, s{sHQ}, s{sRBQ}
            s_lshl_b32 s40, s41, 9
            s_add_u32 s40, s40, {WS_BQ:#x}
            v_add_u32 v11, s40, v10
            s_lshr_b32 s40, s41, 4
            s_and_b32 s41, s41, 15
            s_lshl_b32 s40, s40, 5
            s_add_u32 s40, s40, s41
            s_lshl_b32 s40, s40, 2
            s_add_u32 s40, s40, {WS_FLA:#x}""", self.nrepA, val=(45 if (self.local and not self.forceloc) else sT32))
        self.stamp(13)
        A(f"{nq}:")
        if self.xt:
            nc = self.lab("Lnocol"); l = self.lab("Lxt"); mem = self.lab("Lxm"); lv = self.lab("Lxv")
            A(f"""
            s_cmp_lg_u32 s{sW}, 0
            s_cbranch_scc1 {nc}
            s_lshl_b32 s46, s{sX}, 10
            s_add_u32 s46, s46, {WS_XV:#x}
            s_mov_b32 s{sSPIN}, 0
            s_cmp_lg_u32 s{sY}, 0
            s_cbranch_scc1 {mem}
            s_mov_b32 s42, s45
            s_mov_b32 s43, s45
            s_mov_b32 s101, 0
            s_add_u32 s41, s95, 128
            {l}:
            s_load_dwordx16 s[{sP}:{sP+15}], s[26:27], s95 glc
            s_add_u32 s{sSPIN}, s{sSPIN}, 1
            s_cmp_gt_u32 s{sSPIN}, {SPIN_MAX}
            s_cbranch_scc1 L_end
            s_waitcnt lgkmcnt(0)""")
            pairs = [sP + 2*i for i in range(8)]
            for p in pairs:
                A(f"s_xor_b64 s[{p}:{p+1}], s[{p}:{p+1}], s[42:43]")
            for p in pairs[1:]:
                A(f"s_or_b64 s[{sP}:{sP+1}], s[{sP}:{sP+1}], s[{p}:{p+1}]")
            A(f"""
            s_or_b32 s{sP}, s{sP}, s{sP+1}
            s_and_b32 s{sP+1}, s{sP}, 0x0fffffff
            s_cbranch_scc1 {l}
            s_or_b32 s101, s101, s{sP}
            s_add_u32 s95, s95, 64
            s_cmp_lt_u32 s95, s41
            s_cbranch_scc1 {l}
            s_xor_b32 s40, s101, s{sT32}
            s_mov_b64 exec, 0xff
            v_lshl_add_u32 v1, v0, 7, s46
            v_mov_b32 v2, s40
            global_store_dword v1, v2, s[26:27] sc1
            s_branch {lv}
            {mem}:
            s_and_b32 s40, s{sY}, 7
            s_lshl_b32 s40, s40, 7
            s_add_u32 s46, s46, s40
            {mem}_l:
            s_sleep {self.xsleep}
            s_load_dword s101, s[26:27], s46 glc
            s_add_u32 s{sSPIN}, s{sSPIN}, 1
            s_cmp_gt_u32 s{sSPIN}, {SPIN_MAX}
            s_cbranch_scc1 L_end
            s_waitcnt lgkmcnt(0)
            s_xor_b32 s101, s101, s{sT32}
            s_and_b32 s40, s101, 0x0fffffff
            s_cbranch_scc1 {mem}_l
            {lv}:
            s_cmp_lg_u32 s101, 0
            s_cselect_b32 s40, 3, 1
            s_mov_b64 exec, 1
            v_mov_b32 v1, {C_LOC}
            v_mov_b32 v2, s40
            ds_write_b32 v1, v2
            s_mov_b64 exec, -1
            {nc}:""")
        A(f"""
        s_cmp_ge_u32 s{sTY}, 2
        s_cbranch_scc1 L_final
        s_cmp_ge_u32 s{sTY}, 1
        s_cbranch_scc1 L_ffn""")
        if 'stop1' in self.abl:
            self.arrive(C_GA, want_old=False); A("s_branch L_adone")
        vKF, vVF, vGT, vQF, vO = 56, 88, 120, 152, 168
        vS, U, Z = 16, 24, 28
        A(f"""
        s_lshl2_add_u32 s41, s{sG}, s{sW}
        s_lshl_b32 s40, s41, 13
        s_add_u32 s40, s40, {WS_BQ + 2048:#x}
        v_and_b32 v12, 31, v0
        v_lshrrev_b32 v13, 5, v0
        v_lshlrev_b32 v1, 4, v12
        v_lshl_add_u32 v1, v13, 12, v1
        v_add_u32 v{vA0}, s40, v1
        s_and_b32 s40, s{sCH}, {self.nrepA-1}
        s_mul_i32 s40, s40, {REPP}
        s_lshl_b32 s41, s41, 7
        s_add_u32 s40, s40, s41
        s_add_u32 s95, s40, {WS_FLA:#x}
        s_lshl_b32 s40, s{sW}, 1
        v_add_u32 v13, s40, v13
        v_mul_u32_u24 v13, {QLP}, v13
        v_lshl_add_u32 v13, v12, 3, v13
        v_and_b32 v10, 7, v0
        s_lshl_b32 s40, s{sG}, 5
        s_add_u32 s41, s40, s{sCH}
        s_mul_i32 s41, s41, {BOP}
        s_lshl_b32 s42, s{sW}, 7
        s_add_u32 s41, s41, s42
        s_add_u32 s41, s41, {WS_BO:#x}
        v_lshlrev_b32 v8, 9, v10
        v_bfe_u32 v11, v0, 3, 1
        v_lshl_add_u32 v8, v11, 6, v8
        v_lshl_add_u32 v8, v{vJ}, 4, v8
        v_add_u32 v8, s41, v8
        s_add_u32 s40, s40, s{sCH}
        s_lshl_b32 s40, s40, 7
        s_add_u32 s40, s40, {WS_BML:#x}
        v_lshl_add_u32 v9, v10, 4, s40
        v_mul_u32_u24 v12, {QLP}, v10
        v_lshl_add_u32 v12, v{vJ}, 4, v12
        s_mov_b32 s46, {f2u(128 ** -0.5):#x}
        s_mov_b32 s47, {f2u(128 ** -0.5):#x}
        s_lshl_b32 s40, s{sW}, 13
        v_xor_b32 v14, v{vI}, v{vJ}
        v_lshlrev_b32 v14, 4, v14
        v_lshl_add_u32 v14, v{vI}, 8, v14
        v_add_u32 v14, s40, v14
        v_bfe_u32 v10, v0, 2, 2
        v_lshl_add_u32 v10, v{vJ}, 2, v10
        v_and_b32 v11, 7, v10
        v_lshlrev_b32 v11, 1, v11
        v_bfe_u32 v1, v0, 1, 1
        v_xor_b32 v11, v11, v1
        v_lshlrev_b32 v11, 4, v11
        v_lshl_add_u32 v11, v10, 8, v11
        v_and_b32 v1, 1, v0
        v_lshl_add_u32 v11, v1, 3, v11
        s_add_u32 s41, s40, {L_V}
        v_add_u32 v11, s41, v11
        ; exchange area (this wave's K rows, dead once the fragments are in registers)
        v_lshl_add_u32 v15, v0, 4, s40
        s_lshl_b32 s41, s{sW}, 10
        v_lshl_add_u32 v10, v0, 4, s41""")
        self.mask(("s92", "s93"), 0xFF00FF00FF00FF00)

        def kreads():
            A(f"s_lshl_b32 s41, s{sW}, 2\ns_add_u32 s41, s41, {C_K}")
            self.lds_spin("s41", 1, sleep=1)
            for s in range(4):
                if s:
                    A(f"v_xor_b32 v2, {64*s}, v14")
                for t in range(2):
                    r = vKF + 16*t + 4*s
                    A(f"ds_read_b128 v[{r}:{r+3}], v{2 if s else 14} offset:{L_K + 4096*t}")
            self.stamp(3)

        if self.kfirst:
            kreads()
        A("s_mov_b32 s40, s95")
        if self.xt:
            self.flag_poll(16)
        elif self.forceloc:
            self.flag_poll(16)
            A("s_mov_b32 s101, 1")
        elif self.local:
            l = self.lab("Lpoll"); r = self.lab("Lretry")
            A(f"""
            s_mov_b32 s{sSPIN}, 0
            s_mov_b32 s42, s{sT32}
            s_mov_b32 s43, s{sT32}
            s_mov_b32 s4, s45
            s_mov_b32 s5, s45
            s_branch {l}
            {r}:
            s_sleep {self.psleep}
            {l}:
            s_load_dwordx16 s[{sP}:{sP+15}], s[26:27], s40 glc
            s_add_u32 s{sSPIN}, s{sSPIN}, 1
            s_cmp_gt_u32 s{sSPIN}, {SPIN_MAX}
            s_cbranch_scc1 L_end
            s_waitcnt lgkmcnt(0)""")
            for i in range(8):
                A(f"s_xor_b64 s[{sP+2*i}:{sP+2*i+1}], s[{sP+2*i}:{sP+2*i+1}], s[{'4:5' if (i & 2) == 0 else '42:43'}]")
            for step in (2, 4, 8):
                for i in range(0, 16, 2*step):
                    A(f"s_or_b64 s[{sP+i}:{sP+i+1}], s[{sP+i}:{sP+i+1}], s[{sP+i+step}:{sP+i+step+1}]")
            A(f"""
            s_or_b32 s{sP}, s{sP}, s{sP+1}
            s_and_b32 s{sP+1}, s{sP}, 0x0fffffff
            s_cbranch_scc1 {r}
            s_cmp_lg_u32 s{sP}, 0
            s_cselect_b32 s101, 0x101, 1""")
        else:
            self.flag_poll(16)
        self.stamp(2)
        if 'stop2' in self.abl:
            self.arrive(C_GA, want_old=False); A("s_branch L_adone")
        if self.warm is not None and self.warmO == 1:
            A(f"""
            s_mov_b64 exec, 0xff
            global_load_dword v46, v8, s[26:27] {self.warm}
            s_mov_b64 exec, 1
            global_load_dword v47, v9, s[26:27] {self.warm}
            s_mov_b64 exec, -1""")

        rq = self.lab("Lgq")
        A(f"s_mov_b32 s45, 0\n{rq}:")
        for n in range(8):
            A(f"global_load_dwordx4 v[{vGT+4*n}:{vGT+4*n+3}], v{vA0}, s[26:27] offset:{512*n - 2048} sc1")
        skip = self.lab("Lkvdone")
        A(f"s_cmp_lg_u32 s45, 0\ns_cbranch_scc1 {skip}\ns_mov_b32 s45, 1")
        self.gate(1, self.gateA)
        def vreads():
            A(f"s_lshl_b32 s41, s{sW}, 2\ns_add_u32 s41, s41, {C_V}")
            self.lds_spin("s41", 1, sleep=0)
            for dt in range(8):
                if dt:
                    A(f"v_xor_b32 v14, {32*dt}, v11")
                for t in range(2):
                    r = vVF + 4*dt + 2*t
                    A(f"ds_read_b64_tr_b16 v[{r}:{r+1}], v{14 if dt else 11} offset:{4096*t}")

        if not self.kfirst:
            kreads()
        if not self.vlate:
            vreads()
        A(f"""
        s_lshr_b32 s40, s{sCH}, 4
        s_lshl1_add_u32 s40, s{sG}, s40
        s_lshl_b32 s40, s40, 5
        s_and_b32 s41, s{sCH}, 15
        s_add_u32 s40, s40, s41
        s_lshl_b32 s40, s40, 2
        s_add_u32 s95, s40, {WS_FLB:#x}""")
        A(f"s_mov_b32 s{sSPIN}, 0\n{skip}:")
        self.untag([vGT+4*n for n in range(8)], vT, counted=True)
        self.tagtest(vT, rq)
        self.stamp(4)
        if 'stop3' in self.abl:
            A("s_branch L_adone")
        for step in (4, 8, 16):
            for b in range(0, 32, 2*step):
                for h in (0, 2):
                    A(f"v_pk_add_f32 v[{vGT+b+h}:{vGT+b+h+1}], v[{vGT+b+h}:{vGT+b+h+1}], v[{vGT+b+step+h}:{vGT+b+step+h+1}]")
        A(f"""
        v_cvt_pk_bf16_f32 v{vGT}, v{vGT}, v{vGT+1}
        v_cvt_pk_bf16_f32 v{vGT+1}, v{vGT+2}, v{vGT+3}
        s_mov_b32 s45, {f2u(LOG2E):#x}
        ds_write_b64 v13, v[{vGT}:{vGT+1}] offset:{L_QL}""")
        self.arrive(C_QL, want_old=False, inc=("s101" if (self.local and not self.xt) else 1))
        if self.warm is not None and self.warmO == 2:
            A(f"""
            s_mov_b64 exec, 0xff
            global_load_dword v46, v8, s[26:27] {self.warm}
            s_mov_b64 exec, 1
            global_load_dword v47, v9, s[26:27] {self.warm}
            s_mov_b64 exec, -1""")

        self.stamp(1)
        self.lds_spin(C_QL, 4, sleep=0, low8=(self.local and not self.xt),
                      reads="\n".join(f"ds_read_b128 v[{vQF+4*s}:{vQF+4*s+3}], v12 offset:{L_QL + 64*s}" for s in range(4))
                      + (f"\nds_read_b32 v54, v1 offset:{C_LOC - C_QL}" if self.xt else ""))
        if self.xt:
            self.get_loc(54)
        self.stamp(9)
        for s in range(4):
            for t in range(2):
                c = "0" if s == 0 else f"v[{vS+4*t}:{vS+4*t+3}]"
                r = vKF + 16*t + 4*s
                A(f"v_mfma_f32_16x16x32_bf16 v[{vS+4*t}:{vS+4*t+3}], v[{r}:{r+3}], v[{vQF+4*s}:{vQF+4*s+3}], {c}")
        self.early_flag('qk')
        if self.vlate:
            vreads()
        else:
            A("s_nop 7")
        for k in range(4):
            A(f"v_cndmask_b32 v{U+k}, v{vS+k}, v{vS+4+k}, s[92:93]")
        for rnd in range(2):
            for p in range(2):
                A(f"v_cvt_pk_bf16_f32 v{Z+p}, v{U+2*p}, v{U+2*p+1}")
            for p in range(2):
                A(f"v_lshlrev_b32 v{U+2*p}, 16, v{Z+p}\nv_and_b32 v{U+2*p+1}, 0xffff0000, v{Z+p}")
            if rnd == 0:
                for p in range(2):
                    A(f"v_pk_mul_f32 v[{U+2*p}:{U+2*p+1}], v[{U+2*p}:{U+2*p+1}], s[46:47]")
        vM, vL = 48, 49
        A(f"""
        v_max3_f32 v{vM}, v{U}, v{U+1}, v{U+2}
        v_max_f32 v{vM}, v{vM}, v{U+3}
        s_nop 1
        v_max_f32_dpp v{vM}, v{vM}, v{vM} row_ror:8 row_mask:0xf bank_mask:0xf""")
        self.allreduce_rows(vM, 50, "v_max_f32")
        A(f"v_mul_f32 v50, s45, v{vM}")
        for k in range(4):
            A(f"v_fma_f32 v{U+k}, v{U+k}, s45, -v50")
        for k in range(4):
            A(f"v_exp_f32 v{U+k}, v{U+k}")
        P = 32
        A(f"""
        s_nop 0
        v_cvt_pk_bf16_f32 v{P}, v{U}, v{U+1}
        v_cvt_pk_bf16_f32 v{P+1}, v{U+2}, v{U+3}
        v_pk_add_f32 v[52:53], v[{U}:{U+1}], v[{U+2}:{U+3}]
        v_mov_b32_dpp v{P+2}, v{P} row_ror:8 row_mask:0xf bank_mask:0xf
        v_mov_b32_dpp v{P+3}, v{P+1} row_ror:8 row_mask:0xf bank_mask:0xf
        v_mov_b32 v{P+4}, v{P}
        v_mov_b32 v{P+5}, v{P+1}
        v_add_f32 v{vL}, v52, v53""")
        if self.vlate:
            A("s_waitcnt lgkmcnt(0)")
        fill = [f"v_lshrrev_b32 v14, 1, v15\nv_add_f32_dpp v{vL}, v{vL}, v{vL} row_ror:8 row_mask:0xf bank_mask:0xf",
                f"v_mov_b32 v50, v{vL}\ns_lshl_b32 s40, s{sW}, 12",
                f"v_add_u32 v14, s40, v14\nv_permlane32_swap_b32 v50, v{vL}",
                f"v_add_f32 v{vL}, v{vL}, v50\nv_mov_b32 v50, v{vL}",
                f"s_nop 0",
                f"v_permlane16_swap_b32 v50, v{vL}\nv_add_f32 v{vL}, v{vL}, v50",
                f"ds_write_b64 v14, v[{vM}:{vL}] offset:{L_K + 4096}", ""]
        for dt in range(8):
            b = P + 2*(dt & 1)
            A(f"v_mfma_f32_16x16x32_bf16 v[{vO+4*dt}:{vO+4*dt+3}], v[{vVF+4*dt}:{vVF+4*dt+3}], v[{b}:{b+3}], 0")
            A(fill[dt])
        for k in range(4):
            for r in range(4):
                A(f"v_cndmask_b32 v{vO+8*k+r}, v{vO+8*k+r}, v{vO+8*k+4+r}, s[92:93]")
            A(f"ds_write_b128 v15, v[{vO+8*k}:{vO+8*k+3}] offset:{L_K + 1024*k}")
        self.arrive(C_X, want_old=False)
        A("v_lshlrev_b32 v14, 3, v0")
        self.early_flag('pv')
        self.stamp(11)
        X, ML = 56, 72
        self.lds_spin(C_X, 4, sleep=0, reads="\n".join(
            [f"ds_read_b64 v[{ML+2*w}:{ML+2*w+1}], v14 offset:{L_K + 8192*w + 4096}" for w in range(4)] +
            [f"ds_read_b128 v[{X+4*w}:{X+4*w+3}], v10 offset:{L_K + 8192*w}" for w in range(4)]))
        self.stamp(10)
        self.early_flag('xsync')
        A(f"v_max3_f32 v{vM}, v{ML}, v{ML+2}, v{ML+4}\nv_max_f32 v{vM}, v{vM}, v{ML+6}")
        for w in range(4):
            A(f"v_sub_f32 v{ML+2*w}, v{ML+2*w}, v{vM}")
        for w in range(4):
            A(f"v_mul_f32 v{ML+2*w}, s45, v{ML+2*w}")
        for w in range(4):
            A(f"v_exp_f32 v{ML+2*w}, v{ML+2*w}")
        A(f"s_nop 0\nv_mul_f32 v{vL}, v{ML}, v{ML+1}")
        for w in range(4):
            e = ML + 2*w
            for h in (0, 2):
                if w == 0:
                    A(f"v_pk_mul_f32 v[{vS+h}:{vS+h+1}], v[{X+h}:{X+h+1}], v[{e}:{e+1}] op_sel_hi:[1,0]")
                else:
                    A(f"v_pk_fma_f32 v[{vS+h}:{vS+h+1}], v[{X+4*w+h}:{X+4*w+h+1}], v[{e}:{e+1}], v[{vS+h}:{vS+h+1}] op_sel_hi:[1,0,1]")
            if w:
                A(f"v_fmac_f32 v{vL}, v{e}, v{e+1}")
        for r in range(4):
            self.tag(vS + r)
        nml = self.lab("Lnoml")

        def publish(mod):
            if 'noO' not in self.abl:
                A(f"global_store_dwordx4 v8, v[{vS}:{vS+3}], s[26:27] {mod}")
            A(f"s_cmp_lg_u32 s{sW}, 0\ns_cbranch_scc1 {nml}")
            self.tag(vM); self.tag(vL)
            A(f"""
            v_mov_b32 v50, v3
            v_mov_b32 v51, v3
            s_mov_b64 exec, 0xff
            global_store_dwordx4 v9, v[48:51], s[26:27] {mod}""")

        if self.local:
            rem = self.lab("Lremote"); fl = self.lab("Lflagb")
            A(f"s_cmp_lg_u32 s101, 0\ns_cbranch_scc1 {rem}")
            publish("")
            A(f"s_branch {fl}\n{rem}:")
            publish("sc1")
            A(f"{fl}:")
        else:
            publish("sc1")
        if self.flagpos != 'end':
            A(f"s_mov_b64 exec, -1\ns_cmp_eq_u32 s101, 0\ns_cbranch_scc1 {nml}")
        A("s_mov_b32 s40, s95")
        if 'noflagB' not in self.abl:
            self.flag_store(self.nrepB)
        A(f"{nml}:")
        self.gate(2, self.gateA)
        self.stamp(5)
        if 'stop4' in self.abl:
            A("s_branch L_adone")
        A(f"""
        s_and_b32 s40, s{sTL}, 7
        s_lshl2_add_u32 s41, s40, s{sW}
        s_lshl_b32 s41, s41, 7
        s_mul_i32 s42, s{sG}, {32*BOP}
        s_add_u32 s41, s41, s42
        s_add_u32 s41, s41, {WS_BO:#x}
        v_lshrrev_b32 v1, 3, v0
        v_mul_u32_u24 v1, {BOP}, v1
        v_and_b32 v2, 7, v0
        v_lshl_add_u32 v1, v2, 4, v1
        v_add_u32 v{vA0}, s41, v1
        v_add_u32 v13, {8*BOP}, v{vA0}
        v_add_u32 v14, {16*BOP}, v{vA0}
        v_add_u32 v15, {24*BOP}, v{vA0}
        s_lshl_b32 s41, s{sG}, 8
        s_add_u32 s40, s40, s41
        s_lshl_b32 s40, s40, 4
        s_add_u32 s40, s40, {WS_BML:#x}
        v_and_b32 v1, 31, v0
        v_lshl_add_u32 v{vA1}, v1, 7, s40
        s_lshl_b32 s40, s{sW}, 7
        v_and_b32 v2, 7, v0
        v_lshrrev_b32 v1, 3, v1
        v_lshl_add_u32 v1, v1, 2, s40
        v_lshl_add_u32 v10, v2, 4, v1
        v_lshrrev_b32 v1, 3, v0
        v_lshl_add_u32 v11, v1, 4, s40
        v_and_b32 v1, 1, v0
        v_lshl_add_u32 v1, v1, 2, v{vJ}
        v_and_b32 v2, 6, v0
        v_lshl_add_u32 v12, v1, 5, v2
        s_lshl_b32 s40, s{sW}, 3
        v_add_u32 v12, s40, v12""")
        nb = self.lab("Lnopollb")
        A(f"""
        s_cmp_ge_u32 s{sW}, 2
        s_cbranch_scc1 {nb}
        s_and_b32 s40, s{sCH}, {self.nrepB-1}
        s_mul_i32 s40, s40, {REPP}
        s_lshl1_add_u32 s41, s{sG}, s{sW}
        s_lshl_b32 s41, s41, 7
        s_add_u32 s40, s40, s41
        s_add_u32 s40, s40, {WS_FLB:#x}""")
        self.flag_poll(16)
        self.arrive(C_B1, want_old=False)
        A(f"{nb}:")
        self.lds_spin(C_B1, 2, sleep=0)
        self.stamp(6)
        rb_ = self.lab("Lgo")
        vO, vML = 56, 72
        A(f"s_mov_b32 s47, 0\n{rb_}:")
        def bloads(mod):
            A(f"global_load_dwordx4 v[{vML}:{vML+3}], v{vA1}, s[26:27] {mod}")
            for n in range(4):
                A(f"global_load_dwordx4 v[{vO+4*n}:{vO+4*n+3}], v{(vA0, 13, 14, 15)[n]}, s[26:27] {mod}")
        if self.local and self.gmod != 'sc1':
            rem = self.lab("Lremote"); fl = self.lab("Lbld")
            A(f"s_cmp_lg_u32 s101, 0\ns_cbranch_scc1 {rem}")
            bloads(self.gmod)
            A(f"s_branch {fl}\n{rem}:")
            bloads("sc1")
            A(f"{fl}:")
        else:
            bloads("sc1")
        if self.HA:
            l = self.lab("Lhb")
            A(f"s_cmp_lg_u32 s47, 0\ns_cbranch_scc1 {l}\ns_mov_b32 s47, 1")
            self.arrive(C_HB, want_old=False)
            A(f"{l}:")
        if 3 in self.gateA:
            self.gate(3, self.gateA)
            A(f"s_mov_b32 s{sGATE}, 0")
        A("s_waitcnt vmcnt(4)")
        self.untag([vML], vT + 16)
        fill = self.untag_list([vO + 4*n for n in range(4)], vT + 16, first=False)
        A(f"v_mov_b32 v{vT}, v{vML}\ns_waitcnt vmcnt(0)")
        self.allreduce_in_row(vT, "v_max_f32", fill)
        A(f"v_mov_b32 v{vT+2}, v{vT}")
        self.pad2(fill)
        A(f"""
        v_permlane16_swap_b32 v{vT+2}, v{vT}
        v_max_f32 v{vT}, v{vT}, v{vT+2}
        v_sub_f32 v{vT+4}, v{vML}, v{vT}
        v_mul_f32 v{vT+4}, s45, v{vT+4}
        v_exp_f32 v{vT+4}, v{vT+4}
        s_mov_b32 exec_hi, 0
        ds_write_b32 v10, v{vT+4} offset:{L_WT}
        s_mov_b32 exec_hi, -1
        ds_read_b128 v[{vT+8}:{vT+11}], v11 offset:{L_WT}
        v_mul_f32 v{vT+1}, v{vT+4}, v{vML+1}""")
        self.allreduce_in_row(vT + 1, "v_add_f32", fill)
        A(f"v_mov_b32 v{vT+2}, v{vT+1}")
        self.pad2(fill)
        A(f"""
        v_permlane16_swap_b32 v{vT+2}, v{vT+1}
        v_add_f32 v{vT+1}, v{vT+1}, v{vT+2}
        v_rcp_f32 v{vT+1}, v{vT+1}""")
        A("\n".join(fill))
        self.tagtest(vT + 16, rb_)
        self.stamp(7)
        A("s_waitcnt lgkmcnt(0)")
        acc = vT + 4
        for n in range(4):
            w = vT + 8 + (n & ~1)
            os_ = f"op_sel:[0,{n&1}] op_sel_hi:[1,{n&1}]" if n == 0 else f"op_sel:[0,{n&1},0] op_sel_hi:[1,{n&1},1]"
            for h in (0, 2):
                if n == 0:
                    A(f"v_pk_mul_f32 v[{acc+h}:{acc+h+1}], v[{vO+h}:{vO+h+1}], v[{w}:{w+1}] {os_}")
                else:
                    A(f"v_pk_fma_f32 v[{acc+h}:{acc+h+1}], v[{vO+4*n+h}:{vO+4*n+h+1}], v[{w}:{w+1}], v[{acc+h}:{acc+h+1}] {os_}")
        self.reduce_scatter_rows(acc)
        A(f"""
        s_nop 1
        v_add_f32_dpp v{acc}, v{acc}, v{acc} row_ror:8 row_mask:0xf bank_mask:0xf
        v_mov_b32 v1, {C_FO}
        v_mul_f32 v{acc}, v{acc}, v{vT+1}
        v_mov_b32 v2, 1
        v_cvt_pk_bf16_f32 v{acc}, v{acc}, v{acc}""")
        self.exec_set(0x00FF00FF00FF00FF)
        A(f"""
        ds_write_b16 v12, v{acc} offset:{L_VEC}
        s_mov_b64 exec, 1
        ds_add_u32 v1, v2
        s_mov_b64 exec, -1""")
        self.stamp(8)
        if 'diag' in self.abl:
            l = self.lab("Ldg")
            if 'diagx' in self.abl:
                A(f"s_getreg_b32 s41, hwreg(HW_REG_XCC_ID, 0, 4)\ns_cmp_eq_u32 s41, s{sX}")
            else:
                A("s_cmp_eq_u32 s101, 0")
            A(f"""
            s_cbranch_scc1 L_adone
            s_memrealtime s[42:43]
            s_waitcnt lgkmcnt(0)
            s_add_u32 s40, s42, 2000
            {l}:
            s_memrealtime s[42:43]
            s_waitcnt lgkmcnt(0)
            s_sub_u32 s41, s42, s40
            s_cmp_lt_i32 s41, 0
            s_cbranch_scc1 {l}""")
        A("L_adone:")
        self.write_stamps(14)
        A("s_endpgm")
        A(f"""
        L_ffn:
        s_cmp_eq_u32 s{sW}, 2
        s_cbranch_scc0 L_adone""")
        if self.localD:
            l = self.lab("Lxt")
            A(f"""
            s_getreg_b32 s45, hwreg(HW_REG_XCC_ID, 0, 4)
            s_lshl_b32 s45, s45, 28
            s_xor_b32 s42, s45, s{sT32}
            s_mov_b32 s43, s42
            s_lshl_b32 s40, s{sG}, 7
            s_add_u32 s40, s40, {WS_XT:#x}
            s_lshl2_add_u32 s41, s{sY}, s40
            s_mov_b64 exec, 1
            v_mov_b32 v1, s41
            v_mov_b32 v2, s42
            global_store_dword v1, v2, s[26:27] sc1
            s_mov_b64 exec, -1
            s_add_u32 s41, s40, 64
            s_mov_b32 s{sSPIN}, 0
            {l}:
            s_sleep 24
            s_load_dwordx16 s[{sP}:{sP+15}], s[26:27], s40 glc
            s_load_dwordx16 s[4:19], s[26:27], s41 glc
            s_add_u32 s{sSPIN}, s{sSPIN}, 1
            s_cmp_gt_u32 s{sSPIN}, {SPIN_MAX}
            s_cbranch_scc1 L_end
            s_waitcnt lgkmcnt(0)""")
            pairs = [sP + 2*i for i in range(8)] + [4 + 2*i for i in range(6)]
            for p in pairs:
                A(f"s_xor_b64 s[{p}:{p+1}], s[{p}:{p+1}], s[42:43]")
            for p in pairs[1:]:
                A(f"s_or_b64 s[{sP}:{sP+1}], s[{sP}:{sP+1}], s[{p}:{p+1}]")
            A(f"""
            s_or_b32 s101, s{sP}, s{sP+1}
            s_and_b32 s{sP}, s101, 0x0fffffff
            s_cbranch_scc1 {l}""")
        if 'noffn' in self.abl:
            A("s_branch L_adone")
        self.red_publish(L_RG, 1024, C_G, 64, f"""
            s_sub_u32 s41, s{sUP}, s{sTL}
            s_lshl2_add_u32 s40, s{sTL}, s{sRB}
            s_lshl_b32 s40, s40, 10
            s_add_u32 s40, s40, {WS_BD:#x}
            v_add_u32 v11, s40, v10
            v_lshrrev_b32 v13, 5, v0
            s_lshl_b32 s42, s41, 12
            v_mul_lo_u32 v12, s42, v13
            v_add_u32 v11, v11, v12
            s_lshl_b32 s40, s{sTL}, 5
            s_add_u32 s40, s40, s{sRB}
            s_lshl_b32 s40, s40, 2
            s_lshl_b32 s42, s41, 7
            s_add_u32 s42, s42, 16
            v_mul_lo_u32 v12, s42, v0
            v_add_u32 v12, s40, v12
            s_movk_i32 s40, {WS_FLD:#x}""", 2, 12, sleep=1, local=self.localD)
        self.gate(1, self.gateF)
        self.stamp(5)
        A(f"""
        s_lshl_b32 s40, s{sTL}, 12
        s_add_u32 s40, s40, {WS_BD:#x}
        v_add_u32 v{vA0}, s40, v10
        v_and_b32 v1, 1, v0
        v_lshl_add_u32 v1, v1, 1, v13
        v_and_b32 v2, 30, v0
        v_lshl_add_u32 v12, v1, 6, v2
        s_lshl_b32 s40, s{sTL}, 7
        s_add_u32 s40, s40, {WS_FLD:#x}""")
        self.flag_poll(8)
        self.stamp(6)
        rd = self.lab("Lgd")
        G = 56
        A(f"s_mov_b32 s47, 0\n{rd}:")
        def dloads(mod):
            for n in range(4):
                A(f"global_load_dwordx4 v[{G+4*n}:{G+4*n+3}], v{vA0}, s[26:27] offset:{1024*n} {mod}")
        if self.localD:
            rem = self.lab("Lremote"); fl = self.lab("Ldld")
            A(f"s_cmp_lg_u32 s101, 0\ns_cbranch_scc1 {rem}")
            dloads(self.gmod)
            A(f"s_branch {fl}\n{rem}:")
            dloads("sc1")
            A(f"{fl}:")
        else:
            dloads("sc1")
        if self.HF:
            l = self.lab("Lhb")
            A(f"s_cmp_lg_u32 s47, 0\ns_cbranch_scc1 {l}\ns_mov_b32 s47, 1")
            self.arrive(C_HB, want_old=False)
            A(f"{l}:")
        if 2 in self.gateF:
            self.gate(2, self.gateF)
            A(f"s_mov_b32 s{sGATE}, 0")
        self.untag([G + 4*n for n in range(4)], vT, counted=True)
        self.tagtest(vT, rd)
        self.stamp(7)
        for h in (0, 2):
            A(f"v_pk_add_f32 v[{G+h}:{G+h+1}], v[{G+h}:{G+h+1}], v[{G+4+h}:{G+5+h}]")
            A(f"v_pk_add_f32 v[{G+8+h}:{G+9+h}], v[{G+8+h}:{G+9+h}], v[{G+12+h}:{G+13+h}]")
        for h in (0, 2):
            A(f"v_pk_add_f32 v[{G+h}:{G+h+1}], v[{G+h}:{G+h+1}], v[{G+8+h}:{G+9+h}]")
        c1 = -2.0 * 0.7978845608028654 * LOG2E
        c2 = c1 * 0.044715
        A(f"""
        v_cvt_pk_bf16_f32 v{G}, v{G}, v{G+1}
        v_cvt_pk_bf16_f32 v{G+1}, v{G+2}, v{G+3}
        s_mov_b32 s46, {f2u(c2):#x}
        v_mov_b32 v{vT+4}, {f2u(c1):#x}
        v_permlane32_swap_b32 v{G}, v{G+1}
        v_lshlrev_b32 v{G+2}, 16, v{G}
        v_and_b32 v{G+3}, 0xffff0000, v{G}
        v_pk_mul_f32 v[{vT}:{vT+1}], v[{G+2}:{G+3}], v[{G+2}:{G+3}]
        v_fma_f32 v{vT}, v{vT}, s46, v{vT+4}
        v_fma_f32 v{vT+1}, v{vT+1}, s46, v{vT+4}
        v_pk_mul_f32 v[{vT}:{vT+1}], v[{vT}:{vT+1}], v[{G+2}:{G+3}]
        v_exp_f32 v{vT}, v{vT}
        v_exp_f32 v{vT+1}, v{vT+1}
        v_lshlrev_b32 v{G+4}, 16, v{G+1}
        v_add_f32 v{vT}, 1.0, v{vT}
        v_add_f32 v{vT+1}, 1.0, v{vT+1}
        v_rcp_f32 v{vT}, v{vT}
        v_rcp_f32 v{vT+1}, v{vT+1}
        v_and_b32 v{G+5}, 0xffff0000, v{G+1}
        v_pk_mul_f32 v[{G+2}:{G+3}], v[{G+2}:{G+3}], v[{vT}:{vT+1}]
        v_cvt_pk_bf16_f32 v{G}, v{G+2}, v{G+3}
        v_lshlrev_b32 v{G+2}, 16, v{G}
        v_and_b32 v{G+3}, 0xffff0000, v{G}
        v_pk_mul_f32 v[{G+2}:{G+3}], v[{G+2}:{G+3}], v[{G+4}:{G+5}]
        v_mov_b32 v1, {C_FO}
        v_cvt_pk_bf16_f32 v{G}, v{G+2}, v{G+3}
        v_mov_b32 v2, 1
        ds_write_b16 v12, v{G} offset:{L_VEC}
        ds_write_b16_d16_hi v12, v{G} offset:{L_VEC+32}
        s_mov_b64 exec, 1
        ds_write_b32 v1, v2
        s_mov_b64 exec, -1""")
        self.stamp(8)
        A("s_branch L_adone")

    def final(self):
        A = self.A
        vI, vJ, vT = 4, 5, 16
        G0, G1 = 56, 60
        A(f"""
        L_final:
        s_mov_b32 s42, s{sR}
        s_lshl_b32 s43, s42, 7
        v_lshl_add_u32 v8, v0, 1, s43
        global_load_ushort v9, v8, s[4:5]""")
        if 'nofinal' in self.abl:
            A("s_branch L_adone")
        A(f"""
        s_and_b32 s41, s{sW}, 3
        s_cmp_lt_u32 s{sW}, 4
        s_cselect_b32 s46, 0, {WS_BF - WS_BS:#x}
        s_cselect_b32 s47, {28*ROWP}, 0
        s_cselect_b32 s93, -1, 0xffff
        s_mov_b32 s92, -1
        s_mul_i32 s40, s41, {ROWP}
        s_add_u32 s40, s40, s46
        s_lshl_b32 s43, s42, 8
        s_add_u32 s40, s40, s43
        s_add_u32 s46, s40, {WS_BS:#x}
        s_add_u32 s47, s47, s46
        v_mul_u32_u24 v1, {4*ROWP}, v{vJ}
        v_lshl_add_u32 v1, v{vI}, 4, v1
        v_add_u32 v6, s46, v1
        v_add_u32 v7, {16*ROWP}, v6
        v_lshl_add_u32 v10, v{vI}, 2, v{vJ}
        v_lshlrev_b32 v10, 5, v10
        s_lshl_b32 s40, s{sW}, 2
        v_add_u32 v10, s40, v10
        v_lshlrev_b32 v11, 5, v0
        v_mov_b32 v12, {C_F1}
        v_mov_b32 v13, 1
        s_waitcnt vmcnt(0)
        v_lshlrev_b32 v9, 16, v9""")
        for r in range(4):
            A(f"v_mov_b32 v{G1+r}, v3")
        if self.flocal:
            lf = self.lab("Lfl"); ns = self.lab("Lnfl")
            A(f"""
            s_cmp_lt_u32 s{sW}, 4
            s_cbranch_scc1 {ns}""")
            if self.flocal == 'xt':
                self.get_loc(sleep=4)
                A(f"s_cmp_lg_u32 s101, 0\ns_cbranch_scc1 {ns}")
            A(f"""
            s_mov_b32 s{sSPIN}, 0
            {lf}:
            s_sleep {self.fls}
            global_load_dwordx4 v[{G0}:{G0+3}], v6, s[26:27] {self.fmod}
            s_mov_b64 exec, s[92:93]
            global_load_dwordx4 v[{G1}:{G1+3}], v7, s[26:27] {self.fmod}
            s_mov_b64 exec, -1
            s_add_u32 s{sSPIN}, s{sSPIN}, 1
            s_cmp_gt_u32 s{sSPIN}, {SPIN_MAX}
            s_cbranch_scc1 L_end
            s_waitcnt vmcnt(0)
            v_bitop3_b32 v{vT}, v{G0}, v{G0+3}, s{sT10} bitop3:0x7e
            v_and_b32 v{vT}, s44, v{vT}
            v_cmp_eq_u32 vcc, 0, v{vT}
            s_nop 4
            s_cbranch_vccz {lf}
            s_branch L_fvec
            {ns}:""")
        l = self.lab("Lfp"); r_ = self.lab("Lfr")
        A(f"""
        s_add_u32 s40, s26, s46
        s_addc_u32 s41, s27, 0
        s_mov_b32 s{sSPIN}, 0
        s_branch {l}
        {r_}:
        s_cmp_lg_u32 s43, 0
        s_cbranch_scc1 {l}
        s_sleep {self.fsleep}
        {l}:""")
        for k in range(7):
            A(f"s_load_dword s{48+k}, s[40:41], {4*k*ROWP} glc")
        A(f"""
        s_load_dword s55, s[26:27], s47 glc
        s_add_u32 s{sSPIN}, s{sSPIN}, 1
        s_cmp_gt_u32 s{sSPIN}, {SPIN_MAX}
        s_cbranch_scc1 L_end
        s_waitcnt lgkmcnt(0)""")
        A("s_mov_b32 s43, 0")
        for k in range(8):
            A(f"s_and_b32 s{48+k}, s{48+k}, s44\ns_cmp_eq_u32 s{48+k}, s{sT10}\ns_addc_u32 s43, s43, 0")
        A(f"s_cmp_ge_u32 s43, {self.fthr}\ns_cbranch_scc0 {r_}")
        A("L_fvec:")
        self.stamp(9)
        rg = self.lab("Lfg")
        loads = f"""
            s_or_b64 exec, s[48:49], 1
            global_load_dwordx4 v[{G0}:{G0+3}], v6, s[26:27] {self.fmod if self.flocal else 'sc1'}
            s_or_b64 exec, s[92:93], 1
            global_load_dwordx4 v[{G1}:{G1+3}], v7, s[26:27] {self.fmod if self.flocal else 'sc1'}
            s_mov_b64 exec, -1"""
        A("s_mov_b64 s[48:49], -1")
        for k in range(self.fdepth - 1):
            A(loads)
        A(f"{rg}:")
        A(loads)
        A(f"s_waitcnt vmcnt({2*(self.fdepth - 1)})")
        for i, k in enumerate((G0, G1)):
            A(f"v_bitop3_b32 v{vT+2*i}, v{k}, v{k+1}, s{sT10} bitop3:0x7e")
            A(f"v_bitop3_b32 v{vT+2*i+1}, v{k+2}, v{k+3}, s{sT10} bitop3:0x7e")
        for i in range(2):
            A(f"v_bitop3_b32 v{vT+2*i}, v{vT+2*i}, v{vT+2*i+1}, s44 bitop3:0xa8")
        R = vT + 12
        A(f"""
        v_cmp_ne_u32 s[48:49], 0, v{vT}
        v_cmp_ne_u32 s[92:93], 0, v{vT+2}
        s_add_u32 s{sSPIN}, s{sSPIN}, 1
        s_cmp_gt_u32 s{sSPIN}, {SPIN_MAX}
        s_cbranch_scc1 L_end
        s_or_b64 s[40:41], s[48:49], s[92:93]
        s_cbranch_scc1 {rg}""")
        self.stamp(10)
        for k in range(4):
            A(f"v_xor_b32 v{R+k}, s{sT10}, v{G0+k}\nv_xor_b32 v{R+4+k}, s{sT10}, v{G1+k}")
        for h in (0, 2):
            A(f"v_pk_add_f32 v[{R+h}:{R+h+1}], v[{R+h}:{R+h+1}], v[{R+4+h}:{R+5+h}]")
        self.reduce_scatter_rows(R)
        f = vT + 4
        A(f"""
        ds_write_b32 v10, v{R} offset:{L_RF}
        s_mov_b64 exec, 1
        ds_add_rtn_u32 v2, v12, v13
        s_mov_b64 exec, -1
        ds_read_b128 v[{f}:{f+3}], v11 offset:{L_RF}
        ds_read_b128 v[{f+4}:{f+7}], v11 offset:{L_RF+16}
        s_waitcnt lgkmcnt(0)
        v_readfirstlane_b32 s{sTMP}, v2
        s_cmp_eq_u32 s{sTMP}, 7
        s_cbranch_scc0 L_adone
        v_pk_add_f32 v[{f+4}:{f+5}], v[{f+4}:{f+5}], v[{f+6}:{f+7}]
        v_pk_add_f32 v[{f}:{f+1}], v[{f}:{f+1}], v[{f+2}:{f+3}]
        v_add_f32 v{f+2}, v{f+4}, v{f+5}
        v_add_f32 v{f}, v{f}, v{f+1}
        v_cvt_pk_bf16_f32 v{f}, v{f}, v{f+2}
        v_and_b32 v{f+2}, 0xffff0000, v{f}
        v_mul_f32 v{f+3}, {f2u(-LOG2E):#x}, v{f+2}
        v_exp_f32 v{f+3}, v{f+3}
        v_lshlrev_b32 v{f}, 16, v{f}
        v_add_f32 v{f+3}, 1.0, v{f+3}
        v_rcp_f32 v{f+3}, v{f+3}
        s_nop 0
        v_mul_f32 v{f+2}, v{f+2}, v{f+3}""")
        self.bf16_round(f + 2, f + 2)
        A(f"v_mul_f32 v{f}, v{f}, v{f+2}")
        self.bf16_round(f, f)
        A(f"""
        v_add_f32 v{f}, v{f}, v9
        v_cvt_pk_bf16_f32 v{f}, v{f}, v{f}
        global_store_short v8, v{f}, s[22:23] {self.outmod}""")
        A(f"""
        {'s_branch L_mag' if self.mag else ''}
        L_magback:
        s_cmp_lg_u32 s{sR}, 0
        s_cbranch_scc1 L_adone
        s_mov_b64 exec, 1
        v_mov_b32 v1, {WS_E}
        v_mov_b32 v2, s{sT32}
        global_store_dword v1, v2, s[26:27]
        s_branch L_adone""")
        if self.mag:
            what, K = self.mag
            A(f"""
            L_mag:
            s_memrealtime s[90:91]
            v_lshlrev_b32 v1, 9, v0
            v_add_u32 v1, 0x300000, v1
            global_load_dword v56, v1, s[26:27] sc1
            global_load_dword v57, v1, s[26:27] offset:128 sc1
            global_load_dword v58, v1, s[26:27] offset:256 sc1
            global_load_dword v59, v1, s[26:27] offset:384 sc1
            s_waitcnt vmcnt(0) lgkmcnt(0)
            v_sub_u32 v56, s90, v56
            v_sub_u32 v57, s90, v57
            v_sub_u32 v58, s90, v58
            v_sub_u32 v59, s90, v59
            v_cvt_f32_u32 v56, v56
            v_cvt_f32_u32 v57, v57
            v_cvt_f32_u32 v58, v58
            v_cvt_f32_u32 v59, v59
            v_max3_f32 v60, v56, v57, v58
            v_max_f32 v60, v60, v59
            v_min3_f32 v61, v56, v57, v58
            v_min_f32 v61, v61, v59""")
            self.allreduce_in_row(60, "v_max_f32"); self.allreduce_rows(60, 62, "v_max_f32")
            self.allreduce_in_row(61, "v_min_f32"); self.allreduce_rows(61, 62, "v_min_f32")
            if what == 'skew':
                A("v_sub_f32 v60, v60, v61")
            elif what == 'max':
                A("v_mov_b32 v60, v61")
            A(f"""
            v_min_f32 v60, 0x44fa0000, v60
            v_cvt_u32_f32 v60, v60
            s_nop 1
            v_readfirstlane_b32 s40, v60
            s_mul_i32 s40, s40, {K}
            s_add_u32 s40, s40, s90
            L_magspin:
            s_memrealtime s[42:43]
            s_waitcnt lgkmcnt(0)
            s_sub_u32 s41, s42, s40
            s_cmp_lt_i32 s41, 0
            s_cbranch_scc1 L_magspin
            s_branch L_magback""")


class Gen(Gen0):
    def __init__(self, ldsb=None, nvo=None, **kw):
        self.ldsb, self.nvo = ldsb, nvo
        super().__init__(**kw)


if __name__ == "__main__":
    import argparse
    ap = argparse.ArgumentParser()
    ap.add_argument("-o", default="recurrent_scan__sliding_block_cached__geglu_ffn__decode.s")

    ap.add_argument("--stamps", action="store_true")
    ap.add_argument("--probe", default=None)
    ap.add_argument("--kw", default="")
    a = ap.parse_args()
    open(a.o, "w").write(Gen(stamps=a.stamps, probe=tuple(map(int, a.probe.split(','))) if a.probe else None, **eval(f'dict({a.kw})')).build())
```

```python
import sys, struct

KN = "recurrent_scan__sliding_block_cached__geglu_ffn__decode_kernel"

def f2u(x):
    return struct.unpack("<I", struct.pack("<f", x))[0]

WS_E   = 0x0
WS_FLD = 0x1000
WS_XT  = 0x3000
WS_XA  = 0x3400
WS_XV  = 0x8000
WS_BML = 0x4000
WS_BQ  = 0x10000
WS_BD  = 0x30000
ROWP   = 4352
WS_BS  = 0x50000
WS_BF  = 0x78000
WS_BO  = 0xA0000
BOP    = 4096 + 128
REPP   = 17 * 128
WS_FLA = 0x130000
WS_FLB = 0x148000
WS_ST  = 0x400000

L_RQ   = 0
L_RG   = L_RQ + 2048
L_QL   = L_RG + 4096
QLP    = 272
L_WT   = L_QL + 2304
L_VEC  = L_WT + 512
L_XQ   = L_VEC + 256
L_XG   = L_XQ + 256
L_RF   = L_XG + 512
L_CNT  = L_RF + 2048
C_Q, C_G, C_X, C_QL, C_HB, C_FO, C_GA, C_B1, C_F1 = [L_CNT + 4*i for i in range(9)]
C_LOC = L_CNT + 36
C_XN, C_K, C_V = L_CNT + 48, L_CNT + 64, L_CNT + 80
L_K    = 12288
L_V    = L_K + 32768
assert L_CNT + 128 <= L_K
LDS_BYTES = L_V + 32768
YF, YL = 16, 30

TAGM = 0x3FF
LOG2E = 1.4426950408889634
SPIN_MAX = 1 << 20

sX, sY, sRB, sHQ, sRBQ, sTL, sG, sCH = 28, 29, 30, 31, 32, 33, 34, 35
sT32, sT10, sSPIN, sTMP = 36, 37, 38, 39
sW = 3
sGATE = 100
sTY, sUP, sR = 97, 98, 99
sP = 48
sSTAMP = 64


class Gen0:
    def __init__(self, stamps=False, prefetch=True, probe=None, abl='', xnpos=11, nrepA=4, nrepB=4, psleep=1,
                 WA=(6, 6, 5), WF=(6, 8, 8), pause='gather', fthr=6, wtest=None, fsleep=16, upx=2, layout='mix', plain='', gmod='sc1', local=False, touch=False, flagpos='end', HA=0, HF=0, vlate=False, kfirst=True, localD=False, earlyD=False, warm=None, warmO=False, qmap='grp', forceloc=False, xt=False, stag=False, sync0=False, mag=None, ftrans=False, flocal=None, fmod='sc1', fls=4, wideg=0, widew=False, wideq=0, xsleep=10, fdepth=2, outmod='', gateA=(1, 1), gateF=(0, 0), WAe=None, WFe=None):
        self.gateA, self.gateF = gateA, gateF
        self.WAe, self.WFe = WAe, WFe
        self.local = local
        self.fdepth = fdepth
        self.touch = touch
        self.warm = warm
        self.sync0 = sync0
        self.mag = mag
        self.ftrans, self.flocal, self.fmod, self.fls = ftrans, flocal, fmod, fls
        self.wideg, self.widew, self.wideq = wideg, widew, wideq
        self.xt, self.stag, self.xsleep = xt, stag, xsleep
        if xt:
            forceloc = True
        self.qmap, self.forceloc = qmap, forceloc
        self.warmO = warmO
        self.localD, self.earlyD = localD, earlyD
        self.kfirst = kfirst
        self.flagpos, self.HA, self.HF, self.vlate = flagpos, HA, HF, vlate
        self.outmod = outmod
        assert not local or layout != 'mix'
        self.gmod = gmod
        self.layout = layout
        self.plain = plain
        self.fsleep = fsleep
        self.upx = upx
        self.wtest = wtest
        self.fthr = fthr
        self.L = []
        self.stamps = stamps
        self.prefetch = prefetch
        self.probe = probe
        self.abl = abl
        self.xnpos = xnpos
        self.nrepA, self.nrepB = nrepA, nrepB
        self.psleep = psleep
        self.relwait = False
        self.WA, self.WF = WA, WF
        self.pause = pause
        self.nlab = 0

    def A(self, s):
        for line in s.strip("\n").split("\n"):
            if line.strip():
                self.L.append("    " + line.strip() if not line.strip().endswith(":") else line.strip())

    def lab(self, p="L"):
        self.nlab += 1
        return f"{p}_{self.nlab}"

    def stamp(self, k):
        if self.mag and len(self.mag) > 2:
            if k == self.mag[3]:
                self.A(f"s_memrealtime s[88:89]")
            return
        if self.stamps == 'lite' and k not in (0, 10, 14):
            return
        if self.stamps or (self.probe and k in (0, self.probe[2])):
            self.A(f"s_memrealtime s[{sSTAMP+2*k}:{sSTAMP+2*k+1}]")

    def mask(self, reg, val):
        lo, hi = val & 0xFFFFFFFF, val >> 32
        self.A(f"s_mov_b32 {reg[0]}, {lo:#x}\ns_mov_b32 {reg[1]}, {hi:#x}")

    def exec_set(self, val):
        if val == -1:
            self.A("s_mov_b64 exec, -1")
        elif val <= 64:
            self.A(f"s_mov_b64 exec, {val}")
        elif val < (1 << 31):
            self.A(f"s_mov_b64 exec, {val:#x}")
        else:
            self.mask(("exec_lo", "exec_hi"), val)

    def arrive(self, cnt, want_old=True, inc=1):
        self.A(f"""
        s_mov_b64 exec, 1
        v_mov_b32 v1, {cnt}
        v_mov_b32 v2, {inc}""")
        if want_old:
            self.A(f"""
            ds_add_rtn_u32 v2, v1, v2
            s_waitcnt lgkmcnt(0)
            v_readfirstlane_b32 s{sTMP}, v2""")
        else:
            self.A("ds_add_u32 v1, v2")
        self.A("s_mov_b64 exec, -1")

    def lds_spin(self, cnt, val, sleep=1, reads="", low8=False):
        l = self.lab("Lspin"); d = self.lab("Lgot")
        self.A(f"""
        v_mov_b32 v1, {cnt}
        s_mov_b32 s{sSPIN}, 0
        {l}:
        ds_read_b32 v2, v1
        {reads}
        s_add_u32 s{sSPIN}, s{sSPIN}, 1
        s_cmp_gt_u32 s{sSPIN}, {SPIN_MAX}
        s_cbranch_scc1 L_end
        s_waitcnt lgkmcnt(0)
        v_readfirstlane_b32 s{sTMP}, v2""")
        if low8:
            self.A(f"s_lshr_b32 s101, s{sTMP}, 8\ns_and_b32 s{sTMP}, s{sTMP}, 0xff")
        if sleep:
            self.A(f"s_cmp_eq_u32 s{sTMP}, {val}\ns_cbranch_scc1 {d}\ns_sleep {sleep}\ns_branch {l}\n{d}:")
        else:
            self.A(f"s_cmp_eq_u32 s{sTMP}, {val}\ns_cbranch_scc0 {l}")

    def flag_poll(self, n, two=False):
        if 'nopoll' in self.abl:
            return
        l = self.lab("Lpoll"); r = self.lab("Lretry"); d = self.lab("Lflag")
        self.A(f"""
        s_mov_b32 s{sSPIN}, 0
        s_mov_b32 s42, s{sT32}
        s_mov_b32 s43, s{sT32}
        s_branch {l}
        {r}:
        s_sleep {self.psleep}
        {l}:
        s_load_dwordx{n} s[{sP}:{sP+n-1}], s[26:27], s40 glc
        {'s_load_dwordx16 s[4:19], s[26:27], s41 glc' if two else ''}
        s_add_u32 s{sSPIN}, s{sSPIN}, 1
        s_cmp_gt_u32 s{sSPIN}, {SPIN_MAX}
        s_cbranch_scc1 L_end
        s_waitcnt lgkmcnt(0)""")
        for b in ((sP, 4) if two else (sP,)):
            for i in range(0, n, 2):
                self.A(f"s_cmp_eq_u64 s[{b+i}:{b+i+1}], s[42:43]\ns_cbranch_scc0 {r}")
        self.A(f"{d}:")

    def gate(self, k, used):
        if k not in used:
            return
        l = self.lab("Lgate")
        self.A(f"s_cmp_eq_u32 s{sGATE}, {k}\ns_cbranch_scc0 {l}")
        self.arrive(C_GA, want_old=False)
        self.A(f"{l}:")

    def get_loc(self, vreg=None, sleep=0):
        l = self.lab("Lloc")
        if vreg is not None:
            self.A(f"v_readfirstlane_b32 s101, v{vreg}\ns_cmp_lg_u32 s101, 0\ns_cbranch_scc1 {l}_d")
        self.A(f"""
        v_mov_b32 v1, {C_LOC}
        s_mov_b32 s{sSPIN}, 0
        {l}:
        {f's_sleep {sleep}' if sleep else ''}
        ds_read_b32 v2, v1
        s_add_u32 s{sSPIN}, s{sSPIN}, 1
        s_cmp_gt_u32 s{sSPIN}, {SPIN_MAX}
        s_cbranch_scc1 L_end
        s_waitcnt lgkmcnt(0)
        v_readfirstlane_b32 s101, v2
        s_cmp_eq_u32 s101, 0
        s_cbranch_scc1 {l}
        {l}_d:
        s_lshr_b32 s101, s101, 1""")

    def early_flag(self, pos):
        if self.flagpos != pos:
            return
        l = self.lab("Lef")
        self.A(f"s_or_b32 s40, s101, s{sW}\ns_cbranch_scc1 {l}\ns_mov_b32 s40, s95")
        self.flag_store(self.nrepB)
        self.A(f"{l}:")

    def flag_store(self, n, vaddr=None, val=sT32):
        self.exec_set((1 << n) - 1)
        self.A(f"""
        {f'v_mul_u32_u24 v1, {REPP}, v0' if vaddr is None else ''}
        v_add_u32 v1, s40, v{1 if vaddr is None else vaddr}
        v_mov_b32 v2, s{val}
        global_store_dword v1, v2, s[26:27] sc1
        s_mov_b64 exec, -1""")

    def tagcheck(self, regs, vacc, vt):
        first = True
        for r in regs:
            if first:
                self.A(f"v_bitop3_b32 v{vacc}, v{r}, v{r+1}, s{sT10} bitop3:0x7e")
                self.A(f"v_bitop3_b32 v{vt}, v{r+2}, v{r+3}, s{sT10} bitop3:0x7e")
                self.A(f"v_or_b32 v{vacc}, v{vacc}, v{vt}")
                first = False
            else:
                self.A(f"v_bitop3_b32 v{vt}, v{r}, v{r+1}, s{sT10} bitop3:0x7e")
                self.A(f"v_bitop3_b32 v{vt+1}, v{r+2}, v{r+3}, s{sT10} bitop3:0x7e")
                self.A(f"v_or3_b32 v{vacc}, v{vacc}, v{vt}, v{vt+1}")

    def tagcheck2(self, regs, vacc, vt):
        out = []
        for i, r in enumerate(regs):
            d = vacc if i == 0 else vt + (i - 1) % 2
            self.A(f"v_bitop3_b32 v{d}, v{r}, v{r+3}, s{sT10} bitop3:0x7e")
            if i and i % 2 == 0:
                self.A(f"v_or3_b32 v{vacc}, v{vacc}, v{vt}, v{vt+1}")
        if len(regs) % 2 == 0:
            self.A(f"v_or_b32 v{vacc}, v{vacc}, v{vt}")

    def untag_list(self, regs, vacc, first=True):
        out = []
        for i, r in enumerate(regs):
            out += [f"v_xor_b32 v{r+k}, s{sT10}, v{r+k}" for k in range(4)]
            if i == 0 and first:
                out += [f"v_or3_b32 v{vacc}, v{r}, v{r+1}, v{r+2}", f"v_or_b32 v{vacc}, v{vacc}, v{r+3}"]
            else:
                out += [f"v_or3_b32 v{vacc}, v{vacc}, v{r}, v{r+1}", f"v_or3_b32 v{vacc}, v{vacc}, v{r+2}, v{r+3}"]
        return out

    def untag(self, regs, vacc, counted=False):
        ins = self.untag_list(regs, vacc)
        for i in range(len(regs)):
            if counted and i % 2 == 0:
                self.A(f"s_waitcnt vmcnt({max(0, len(regs) - 2 - i)})")
            self.A("\n".join(ins[6*i:6*i+6]))

    def pad2(self, fill):
        if len(fill) >= 2:
            self.A(fill.pop(0) + "\n" + fill.pop(0))
        else:
            self.A("s_nop 1")

    def tagtest(self, vacc, retry):
        if 'notag' in self.abl:
            return
        self.A(f"""
        v_and_b32 v{vacc}, {TAGM:#x}, v{vacc}
        v_cmp_ne_u32 vcc, 0, v{vacc}
        {'s_add_u32 s96, s96, 1' if self.stamps else ''}
        s_add_u32 s{sSPIN}, s{sSPIN}, 1
        s_cmp_gt_u32 s{sSPIN}, {SPIN_MAX}
        s_cbranch_scc1 L_end
        s_nop 1
        s_cbranch_vccnz {retry}""")

    def tag(self, r):
        self.A(f"v_bfi_b32 v{r}, s44, v3, v{r}")

    def reduce_scatter_rows(self, a):
        self.A(f"""
        s_nop 1
        v_permlane32_swap_b32 v{a}, v{a+2}
        v_permlane32_swap_b32 v{a+1}, v{a+3}
        v_add_f32 v{a}, v{a}, v{a+2}
        v_add_f32 v{a+1}, v{a+1}, v{a+3}
        s_nop 1
        v_permlane16_swap_b32 v{a}, v{a+1}
        v_add_f32 v{a}, v{a}, v{a+1}""")

    def allreduce_rows(self, a, t, op):
        self.A(f"""
        v_mov_b32 v{t}, v{a}
        s_nop 1
        v_permlane32_swap_b32 v{t}, v{a}
        {op} v{a}, v{a}, v{t}
        v_mov_b32 v{t}, v{a}
        s_nop 1
        v_permlane16_swap_b32 v{t}, v{a}
        {op} v{a}, v{a}, v{t}""")

    def allreduce_in_row(self, a, op="v_add_f32", fill=None):
        for m in ("quad_perm:[1,0,3,2]", "quad_perm:[2,3,0,1]", "row_half_mirror", "row_mirror"):
            self.pad2(fill if fill is not None else [])
            self.A(f"{op}_dpp v{a}, v{a}, v{a} {m} row_mask:0xf bank_mask:0xf")

    def bf16_round(self, d, s):
        self.A(f"v_cvt_pk_bf16_f32 v{d}, v{s}, v{s}\nv_and_b32 v{d}, 0xffff0000, v{d}")

    def build(self):
        A = self.A
        self.L.append(f"; @launch grid=(256,1,1) block=(512,1,1) lds={getattr(self, 'ldsb', None) or LDS_BYTES}")
        self.L.append('.amdgcn_target "amdgcn-amd-amdhsa--gfx950"')
        self.L += [".text", f".globl {KN}", ".p2align 12", ".p2align 8", f".type {KN},@function", f"{KN}:"]
        if self.sync0:
            A("""
            s_memrealtime s[40:41]
            s_waitcnt lgkmcnt(0)
            s_lshr_b32 s40, s40, 9
            s_add_u32 s40, s40, 1
            s_lshl_b32 s40, s40, 9
            L_sync0:
            s_memrealtime s[42:43]
            s_waitcnt lgkmcnt(0)
            s_sub_u32 s41, s42, s40
            s_cmp_lt_i32 s41, 0
            s_cbranch_scc1 L_sync0""")
        self.stamp(0)
        if self.mag:
            A("s_memrealtime s[90:91]")
        A(f"""
        s_cmp_ge_u32 s2, 256
        s_cbranch_scc1 L_end
        s_load_dwordx16 s[4:19], s[0:1], 0
        s_load_dwordx8 s[20:27], s[0:1], 64
        v_lshrrev_b32 v1, 6, v0
        s_and_b32 s{sX}, s2, 7
        s_lshr_b32 s{sY}, s2, 3
        v_readfirstlane_b32 s{sW}, v1""")
        if self.prefetch:
            A(f"""
            s_getpc_b64 s[46:47]
            L_pc:
            s_lshl_b32 s42, s{sY}, 9
            v_add_u32 v1, s42, v0
            v_min_u32 v1, L_codeend-L_pc-4, v1
            s_mov_b64 exec, 1
            global_load_ubyte v55, v1, s[46:47]
            s_mov_b64 exec, -1""")
        A(f"""
        v_and_b32 v0, 63, v0
""")
        if self.layout == 'mix':
            A(f"""
            s_lshr_b32 s{sHQ}, s{sY}, 3
            s_lshl2_add_u32 s{sHQ}, s{sX}, s{sHQ}
            s_and_b32 s{sRBQ}, s{sY}, 7
            s_lshr_b32 s{sG}, s{sX}, 1
            s_and_b32 s{sCH}, s{sX}, 1
            s_lshl4_add_u32 s{sCH}, s{sCH}, s{sY}
            s_lshl4_add_u32 s40, s{sX}, s{sY}
            s_mul_i32 s41, s{sX}, 14
            s_add_u32 s41, s41, s{sY}
            s_sub_u32 s41, s41, {YF}
            s_cmp_lt_u32 s{sY}, {YF}
            s_cselect_b32 s40, s40, s41
            s_cselect_b32 s{sTY}, 0, 1
            s_cmp_ge_u32 s{sY}, {YL}
            s_addc_u32 s{sTY}, s{sTY}, 0
            s_lshr_b32 s{sTL}, s40, 2
            s_and_b32 s{sRB}, s40, 3
            s_xor_b32 s{sUP}, s{sTL}, {self.upx}
            s_lshl1_add_u32 s{sR}, s{sX}, s{sY}
            s_sub_u32 s{sR}, s{sR}, {YL}""")
        else:
            if self.layout == 'odd':
                A(f"s_lshr_b32 s{sG}, s{sX}, 1\ns_and_b32 s{sTY}, s{sX}, 1\ns_xor_b32 s{sTY}, s{sTY}, 1")
            else:
                A(f"s_and_b32 s{sG}, s{sX}, 3\ns_lshr_b32 s{sTY}, s{sX}, 2")
                if self.layout == 'hi':
                    A(f"s_xor_b32 s{sTY}, s{sTY}, 1")
            A(f"""
            s_mov_b32 s{sCH}, s{sY}
            s_and_b32 s{sRB}, s{sY}, 3
            s_lshr_b32 s40, s{sY}, 2
            s_lshl3_add_u32 s{sHQ}, s{sG}, s40
            s_lshl2_add_u32 s{sRBQ}, s{sTY}, s{sRB}
            s_mul_i32 s41, s{sG}, s{sTY}
            s_sub_u32 s{sTL}, s{sHQ}, s41
            s_add_u32 s{sUP}, s40, {self.upx}
            s_cmp_ge_u32 s{sUP}, 7
            s_cselect_b32 s41, 7, 0
            s_sub_u32 s{sUP}, s{sUP}, s41
            s_sub_u32 s{sUP}, s{sUP}, s40
            s_add_u32 s{sUP}, s{sUP}, s{sTL}
            s_lshl2_add_u32 s{sR}, s{sG}, s{sRB}
            s_cmp_eq_u32 s40, 7
            s_cselect_b32 s41, s{sTY}, 0
            s_add_u32 s{sTY}, s{sTY}, s41""")
        A(f"""
""")
        if self.ftrans:
            A(f"""
            s_cmp_eq_u32 s{sTY}, 1
            s_cselect_b32 s{sTL}, s{sY}, s{sTL}
            s_cselect_b32 s{sRB}, s{sG}, s{sRB}
            s_xor_b32 s{sUP}, s{sTL}, {self.upx}""")
        A(f"""
        {f's_mov_b32 s{sHQ}, s{sY}' if self.qmap == 'rows' else ''}
        {f's_mov_b32 s{sRBQ}, s{sX}' if self.qmap == 'rows' else ''}
        s_cmp_lt_u32 s{sX}, 2
        s_cselect_b32 s40, {self.gateA[0]}, {self.gateA[1]}
        s_cselect_b32 s41, {self.gateF[0]}, {self.gateF[1]}
        s_cmp_eq_u32 s{sTY}, 0
        s_cselect_b32 s{sGATE}, s40, s41
        s_movk_i32 s44, {TAGM:#x}
        v_and_b32 v4, 15, v0
        v_lshrrev_b32 v5, 4, v0""")
        if self.stamps or self.probe or self.mag:
            A(f"s_mov_b32 s96, 0\ns_mov_b32 s94, s{sW}")
        if self.probe:
            A(f"s_waitcnt lgkmcnt(0)\ns_mov_b32 s{sSTAMP+2*self.probe[2]}, s{sSTAMP}")
        A(f"""
        s_cmp_lt_u32 s{sW}, 4
        s_cbranch_scc1 L_awave""")
        L0 = self.L
        self.L = []
        self.swave()
        cut = self.L.index("L_sdispatch:")
        shead, stail = self.L[:cut], self.L[cut:]
        self.L = L0 + shead
        A("s_branch L_sdispatch\nL_awave:")
        self.awave()
        self.L += stail
        self.final()
        A("L_end:")
        A("s_endpgm")
        self.L.append("L_codeend:")
        nv = getattr(self, 'nvo', None) or 200
        self.L += ['.section .rodata,"a"', ".p2align 6", f".amdhsa_kernel {KN}",
                   f"  .amdhsa_next_free_vgpr {nv}", "  .amdhsa_next_free_sgpr 102", f"  .amdhsa_accum_offset {nv}",
                   "  .amdhsa_group_segment_fixed_size 0", "  .amdhsa_kernarg_size 96", "  .amdhsa_user_sgpr_count 2",
                   "  .amdhsa_user_sgpr_kernarg_segment_ptr 1", "  .amdhsa_system_sgpr_workgroup_id_x 1",
                   "  .amdhsa_float_denorm_mode_32 3", ".end_amdhsa_kernel"]
        return "\n".join(self.L) + "\n"

    def write_stamps(self, n):
        if self.mag and len(self.mag) > 2:
            self.stamp(n)
            d = self.lab("Lmg")
            self.A(f"""
            s_waitcnt lgkmcnt(0)
            s_cmp_eq_u32 s94, {self.mag[2]}
            s_cbranch_scc0 {d}
            s_cmp_eq_u32 s{sTY}, {self.mag[4]}
            s_cbranch_scc0 {d}
            s_lshl_b32 s40, s2, 7
            s_add_u32 s40, s40, 0x310000
            s_mov_b64 exec, 1
            v_mov_b32 v1, s40
            v_mov_b32 v2, s88
            global_store_dword v1, v2, s[26:27] sc1
            {d}:""")
            return
        if self.probe:
            wg, wave, k = self.probe[:3]
            ty = self.probe[3] if len(self.probe) > 3 else None
            self.stamp(n)
            d = self.lab("Lprobe_done"); l = self.lab("Lprobe")
            self.A(f"""
            s_waitcnt lgkmcnt(0)
            s_getreg_b32 s41, hwreg(HW_REG_XCC_ID, 0, 4)
            {f's_cmp_eq_u32 s41, {-wg-100}' if wg <= -100 else f"s_cmp_eq_u32 s2, {wg if wg >= 0 else 's2'}"}
            s_cbranch_scc0 {d}
            s_cmp_eq_u32 s94, {wave}
            s_cbranch_scc0 {d}
            s_cmp_eq_u32 s{sTY}, {ty if ty is not None else f's{sTY}'}
            s_cbranch_scc0 {d}
            s_add_u32 s40, s{sSTAMP+2*k}, 4000
            {l}:
            s_memrealtime s[42:43]
            s_waitcnt lgkmcnt(0)
            s_sub_u32 s41, s42, s40
            s_cmp_lt_i32 s41, 0
            s_cbranch_scc1 {l}
            {d}:""")
            return
        if not self.stamps:
            return
        self.stamp(n)
        A = self.A
        A(f"""
        s_waitcnt lgkmcnt(0)
        s_mov_b64 exec, -1
        s_lshl3_add_u32 s40, s2, s94
        s_lshl_b32 s40, s40, 6
        s_add_u32 s40, s40, {WS_ST:#x}
        v_mov_b32 v1, 0""")
        for k in range(n + 1):
            A(f"v_writelane_b32 v1, s{sSTAMP+2*k}, {k}")
        A(f"""
        s_getreg_b32 s41, hwreg(HW_REG_XCC_ID)
        s_and_b32 s41, s41, 0xf
        s_lshl4_add_u32 s41, s96, s41
        v_writelane_b32 v1, s41, 15
        v_lshl_add_u32 v2, v0, 2, s40
        s_mov_b64 exec, 0xffff
        global_store_dword v2, v1, s[26:27]""")

    def swave(self):
        A = self.A
        vI, vJ = 4, 5
        vAq, vA1, vA2, vA3, vAw, vRed, vPub = 6, 7, 8, 9, 10, 11, 14
        vPS, vXQ, vXG, vSEL, aQ, aG, aU, vT = 16, 24, 28, 36, 40, 44, 48, 52
        RING, BIG = 56, 120
        A(f"""
        L_swave:
        s_sub_u32 s{sW}, s{sW}, 4
        s_lshl2_add_u32 s40, s{sRBQ}, s{sW}
        s_lshl_b32 s40, s40, 18
        s_lshl_b32 s41, s{sHQ}, 8
        s_add_u32 s40, s40, s41
        v_lshlrev_b32 v13, 4, v{vI}
        v_lshl_add_u32 v{vAq}, v{vJ}, 13, v13
        v_add_u32 v{vAq}, s40, v{vAq}
        s_mov_b32 s45, 0x8000""")
        if self.wideq:
            A(f"""
            s_lshl2_add_u32 s40, s2, s{sW}
            s_lshl_b32 s40, s40, 13
            v_lshl_add_u32 v{vAq}, v0, 4, s40
            s_movk_i32 s45, 0x400""")
        A("s_waitcnt lgkmcnt(0)")
        for m in range(8):
            A(f"global_load_dwordx4 v[{RING+4*m}:{RING+4*m+3}], v{vAq}, s[10:11] nt")
            if m < 7:
                A(f"v_add_u32 v{vAq}, s45, v{vAq}")
        A(f"s_load_dword s{sT32}, s[26:27], {WS_E}")
        self.stamp(1)
        A(f"""
        ; wo / down: rows tile*128 + 8*m + (l>>3), columns cb*256 + sw*64 + 8*(l&7)
        v_lshrrev_b32 v12, 3, v0
        v_and_b32 v1, 7, v0
        v_lshlrev_b32 v2, 4, v1
        v_lshl_add_u32 v{vAw}, v12, 11, v2
        s_lshl2_add_u32 s42, s{sRB}, s{sW}
        s_lshl_b32 s40, s42, 7
        s_lshl_b32 s41, s{sTL}, 18
        s_add_u32 s40, s40, s41
        v_add_u32 v{vAw}, s40, v{vAw}
        s_movk_i32 s45, 0x4000""")
        if self.widew:
            A(f"""
            s_lshl_b32 s40, s{sW}, 16
            s_add_u32 s41, s41, s40
            s_lshl_b32 s40, s{sRB}, 9
            s_add_u32 s41, s41, s40
            v_lshrrev_b32 v2, 5, v0
            v_lshlrev_b32 v2, 11, v2
            v_and_b32 v{vAw}, 31, v0
            v_lshl_add_u32 v{vAw}, v{vAw}, 4, v2
            v_add_u32 v{vAw}, s41, v{vAw}
            s_movk_i32 s45, 0x1000""")
        A(f"""
        v_lshl_add_u32 v1, v1, 1, v{vJ}
        s_lshl_b32 s40, s42, 8
        v_lshl_add_u32 v{vPub}, v1, 4, s40
        ; LDS offset of this lane's partial granule: (2*(l&15) + J)*16
        v_lshl_add_u32 v{vRed}, v{vI}, 1, v{vJ}
        v_lshlrev_b32 v{vRed}, 4, v{vRed}
        s_mov_b32 s40, 0xaaaaaaaa
        s_mov_b32 s41, 0xaaaaaaaa
        v_mov_b32 v1, 0x0c0c0100
        v_mov_b32 v2, 0x01000c0c
        v_cndmask_b32 v1, v1, v2, s[40:41]
        v_mov_b32 v2, 0x0c0c0302
        v_mov_b32 v3, 0x03020c0c
        v_cndmask_b32 v2, v2, v3, s[40:41]
        v_mov_b32 v3, 0x0c0c0c0c""")
        for d in range(4):
            m = 0x03030303 << (2*d)
            A(f"""
            s_mov_b32 s40, {m:#x}
            s_mov_b32 s41, {m:#x}
            v_cndmask_b32 v{vPS+d}, v3, v1, s[40:41]
            v_cndmask_b32 v{vPS+4+d}, v3, v2, s[40:41]""")
        A(f"""
        s_barrier
        s_waitcnt lgkmcnt(0)
        s_add_u32 s{sT32}, s{sT32}, 1
        s_and_b32 s{sT10}, s{sT32}, s44
        v_mov_b32 v3, s{sT10}
        s_cmp_ge_u32 s{sTY}, 1
        s_cbranch_scc1 L_s_notattn
        L_sdispatch:""")

        def sel(m, dst, src):
            for d in range(4):
                A(f"v_perm_b32 v{dst+d}, v{src+(m>>1)}, v{src+(m>>1)}, v{vPS+4*(m&1)+d}")

        def mfma(acc, s, w, first):
            c = "0" if first else f"v[{acc}:{acc+3}]"
            A(f"v_mfma_f32_16x16x32_bf16 v[{acc}:{acc+3}], v[{s}:{s+3}], v[{w}:{w+3}], {c}")

        def get_xn(ffn):
            A(f"s_lshl_b32 s41, s{sW}, 2\ns_add_u32 s41, s41, {C_XN}")
            self.lds_spin("s41", 1, sleep=0)
            A(f"""
            s_lshl_b32 s40, s{sW}, 6
            v_lshl_add_u32 v2, v{vJ}, 4, s40
            ds_read_b128 v[{vXQ}:{vXQ+3}], v2 offset:{L_XQ}""")
            if ffn:
                A(f"""
                v_lshlrev_b32 v2, 1, v2
                ds_read_b128 v[{vXG}:{vXG+3}], v2 offset:{L_XG}
                ds_read_b128 v[{vXG+4}:{vXG+7}], v2 offset:{L_XG+16}""")
            A("s_waitcnt lgkmcnt(0)")
            self.stamp(3)
            sel(0, vSEL, vXQ)
            A("s_nop 1")

        def red_write(accs, lbase, shift, cnt):
            A(f"s_lshl_b32 s40, s{sW}, {shift}\nv_add_u32 v1, s40, v{vRed}\ns_mov_b32 exec_hi, 0")
            for i, a in enumerate(accs):
                A(f"ds_write_b128 v1, v[{a}:{a+3}] offset:{lbase + 512*i}")
            self.arrive(cnt, want_old=False)

        def kvflag(c):
            A(f"""
            s_lshl_b32 s40, s{sW}, 2
            s_mov_b64 exec, 1
            v_mov_b32 v1, s40
            v_mov_b32 v2, 1
            ds_write_b32 v1, v2 offset:{c}
            s_mov_b64 exec, -1""")

        def issue(op, i):
            kind, m = op
            slot = RING + 4*(i % 16)
            if kind in "kv":
                va, sb, x = (vA1, 6, 64*(m & 3)) if kind == "k" else (vA2, 8, 128*(m & 1))
                if m % 4 == 0:
                    if i > 8:
                        A(f"s_add_u32 s47, s47, {4096 if m == 4 else L_V - L_K - 4096}")
                    A("s_mov_b32 m0, s47")
                    if m == 4:
                        A(f"v_add_u32 v{va}, 4096, v{va}")
                A(f"v_xor_b32 v1, {x}, v{va}")
                A(f"global_load_lds_dwordx4 v1, s[{sb}:{sb+1}] offset:{1024*(m&3)} nt")
            elif kind in "gu":
                va, sb = (vA1, 16) if kind == "g" else (vA2, 18)
                A(f"global_load_dwordx4 v[{slot}:{slot+3}], v{va}, s[{sb}:{sb+1}] nt")
                if m < 15:
                    A(f"v_add_u32 v{va}, s{47 if (self.stag and m % 2) else 46}, v{va}")
            elif kind in "do":
                sb = 20 if kind == "d" else 12
                A(f"global_load_dwordx4 v[{BIG+4*m}:{BIG+4*m+3}], v{vAw}, s[{sb}:{sb+1}] nt")
                if m < 15:
                    A(f"v_add_u32 v{vAw}, s45, v{vAw}")

        def process(op, i, ffn):
            kind, m = op
            slot = RING + 4*(i % 16)
            if kind == "q":
                mfma(aQ, vSEL, slot, m == 0)
                if m < 7:
                    sel(m + 1, vSEL, vXQ)
                    A("s_nop 1")
                else:
                    if ffn:
                        sel(0, vSEL, vXG)
                        A("s_nop 0")
                    else:
                        A("s_nop 4")
                    red_write([aQ], L_RQ, 9, C_Q)
                    self.stamp(4)
            elif kind in "kv" and m == 7:
                l = self.lab("Lkvf")
                if self.after_pause:
                    A(f"s_cmp_lg_u32 s43, 0\ns_cbranch_scc1 {l}")
                kvflag(C_K if kind == "k" else C_V)
                if kind == "v":
                    self.stamp(5)
                A(f"{l}:")
            elif kind == "g":
                mfma(aG, vSEL, slot, m == 0)
            elif kind == "u":
                mfma(aU, vSEL, slot, m == 0)
                if m < 15:
                    sel(m + 1, vSEL, vXG)
                    A("s_nop 1")
                else:
                    A("s_nop 4")
                    red_write([aG, aU], L_RG, 10, C_G)
                    self.stamp(6)

        def stream(ops, wfun, ffn, start=8, landed=0, hold=0, holdcnt=0):
            if 'noa' in self.abl or 'nofin' in self.abl:
                hold = 0
            for i in range(start, len(ops)):
                w = wfun(i)
                if hold and i == len(ops) - hold:
                    assert landed >= start
                    self.lds_spin(C_HB, holdcnt, sleep=1)
                if hold and i >= len(ops) - hold:
                    w = max(w, hold)
                A(f"s_waitcnt vmcnt({w-1})")
                issue(ops[i], i)
                if i < self.xnpos:
                    continue
                if i == self.xnpos:
                    get_xn(ffn)
                while landed <= i - w:
                    process(ops[landed], landed, ffn); landed += 1
            return landed

        def drain(ops, landed, upto, ffn):
            n = len(ops)
            while landed < upto:
                if ops[landed][0] in "qgu":
                    A(f"s_waitcnt vmcnt({n - 1 - landed})")
                    process(ops[landed], landed, ffn)
                landed += 1
            return landed

        def final_gemv(val, first, nops, landed, wsb):
            A(f"""
            v_lshlrev_b32 v15, 5, v12
            s_mul_i32 s40, s{sTL}, {ROWP}
            s_add_u32 s40, s40, {wsb:#x}
            v_add_u32 v{vPub}, s40, v{vPub}""")
            floc = self.flocal == 'xt' and wsb == WS_BF
            if floc:
                self.get_loc()
            rd = f"ds_read_b128 v[{vXG}:{vXG+3}], v15 offset:{L_VEC}\nds_read_b128 v[{vXG+4}:{vXG+7}], v15 offset:{L_VEC+16}"
            if 'noa' not in self.abl and 'nofin' not in self.abl:
                self.lds_spin(C_FO, val, sleep=0, reads=rd)
            else:
                A(rd + "\ns_waitcnt lgkmcnt(0)")
            self.stamp(8)
            self.L.append(".p2align 3")
            late = [m for m in range(16) if first + m >= landed]
            early = [m for m in range(16) if first + m < landed]
            for k, m in enumerate(early):
                sel(m, RING + 4*m, vXG)
                if k:
                    mfma(aQ, RING + 4*early[k-1], BIG + 4*early[k-1], k == 1)
            for k, m in enumerate(late):
                sel(m, RING + 4*m, vXG)
                if k == 0 and early:
                    mfma(aQ, RING + 4*early[-1], BIG + 4*early[-1], len(early) == 1)
            self.stamp(9)
            for k, m in enumerate(late):
                A(f"s_waitcnt vmcnt({nops - 1 - (first + m)})")
                mfma(aQ, RING + 4*m, BIG + 4*m, k == 0 and not early)
            g = vT
            A(f"""
            s_nop 7
            v_permlane32_swap_b32 v{aQ}, v{aQ+2}
            v_permlane32_swap_b32 v{aQ+1}, v{aQ+3}
            s_nop 0
            v_add_f32_dpp v{g}, v{aQ+2}, v{aQ} row_shl:8 row_mask:0xf bank_mask:0xf bound_ctrl:1
            v_add_f32_dpp v{g+1}, v{aQ+3}, v{aQ+1} row_shl:8 row_mask:0xf bank_mask:0xf bound_ctrl:1""")
            self.tag(g); self.tag(g + 1)
            A(f"""
            s_nop 0
            v_permlane32_swap_b32 v{g}, v{g+2}
            v_permlane32_swap_b32 v{g+1}, v{g+3}
            s_mov_b64 exec, 0x00ff00ff""")
            if floc:
                l = self.lab("Lfrem")
                A(f"""
                s_cmp_lg_u32 s101, 0
                s_cbranch_scc1 {l}
                global_store_dwordx4 v{vPub}, v[{g}:{g+3}], s[26:27]
                s_branch {l}_d
                {l}:
                global_store_dwordx4 v{vPub}, v[{g}:{g+3}], s[26:27] sc1
                {l}_d:""")
            else:
                A(f"global_store_dwordx4 v{vPub}, v[{g}:{g+3}], s[26:27] {'' if (self.flocal == 'force' and wsb == WS_BF) else 'sc1'}")
            A("s_mov_b64 exec, -1")

        qops = [("q", m) for m in range(8)]
        A(f"""
        s_lshl_b32 s40, s{sG}, 24
        s_lshl_b32 s41, s{sCH}, 15
        s_add_u32 s40, s40, s41
        s_lshl_b32 s47, s{sW}, 13
        s_add_u32 s40, s40, s47
        s_add_u32 s47, s47, {L_K}
        s_add_u32 s40, s40, {(65536-4096)*256:#x}
        v_xor_b32 v1, v{vI}, v{vJ}
        v_lshlrev_b32 v1, 4, v1
        v_lshl_add_u32 v1, v{vJ}, 8, v1
        v_add_u32 v{vA1}, s40, v1
        v_lshlrev_b32 v1, 1, v{vJ}
        v_xor_b32 v1, v{vI}, v1
        v_lshlrev_b32 v1, 4, v1
        v_lshl_add_u32 v1, v{vJ}, 8, v1
        v_add_u32 v{vA2}, s40, v1""")
        ops = qops + [("k", m) for m in range(8)] + [("v", m) for m in range(8)]
        WA = self.WA
        self.after_pause = False
        landed = stream(ops, lambda i: WA[0] if i < 14 else WA[1], False)
        self.after_pause = True
        A("s_mov_b32 s43, 0")
        if self.pause and 'noa' not in self.abl:
            go = self.lab("Lgo")
            if 0 in self.gateA:
                A(f"s_cmp_eq_u32 s{sGATE}, 0\ns_cbranch_scc1 {go}")
            A(f"""
            v_mov_b32 v1, {C_GA}
            ds_read_b32 v2, v1
            s_waitcnt lgkmcnt(0)
            v_readfirstlane_b32 s{sTMP}, v2
            s_cmp_eq_u32 s{sTMP}, 4
            s_cbranch_scc1 {go}
            s_waitcnt vmcnt(0)
            s_mov_b32 s43, 1""")
            assert landed >= 8
            if landed < 16:
                kvflag(C_K)
            kvflag(C_V)
            self.stamp(5)
            self.lds_spin(C_GA, 4, sleep=1)
            A(f"{go}:")
            self.stamp(6)
        ops = ops + [("o", m) for m in range(16)]
        for w3 in ([self.WAe, WA[2]] if self.WAe else [WA[2]]):
            nxt = self.lab("Lsa")
            if self.WAe and w3 == self.WAe:
                A(f"s_cmp_lt_u32 s{sX}, 2\ns_cbranch_scc0 {nxt}")
            l2 = stream(ops, lambda i: w3 if (i < 32 or len(WA) < 4) else WA[3], False, start=24, landed=landed, hold=self.HA, holdcnt=4)
            assert l2 >= 24
            self.stamp(7)
            final_gemv(4, 24, 40, l2, WS_BS)
            self.write_stamps(10)
            A(f"s_endpgm\n{nxt}:")
        A(f"""
        L_s_notattn:
        s_cmp_ge_u32 s{sTY}, 2
        s_cbranch_scc1 L_s_last
        s_lshl2_add_u32 s40, s{sRB}, s{sW}
        s_mul_i32 s40, s40, {64*7168}""")
        if self.stag:
            A(f"""
            s_and_b32 s41, s{sW}, 1
            s_mul_i32 s42, s41, {4*7168}
            s_add_u32 s40, s40, s42""")
        A(f"""
        v_mul_u32_u24 v1, 7168, v{vJ}
        v_add3_u32 v1, v1, v13, s40
        s_lshl_b32 s41, s{sTL}, 8
        v_add_u32 v{vA1}, s41, v1
        s_lshl_b32 s41, s{sUP}, 8
        v_add_u32 v{vA2}, s41, v1
        s_movk_i32 s46, {7168*4}""")
        if self.stag:
            A("s_lshl_b32 s42, s42, 1\ns_add_u32 s47, s46, s42\ns_sub_u32 s46, s46, s42")
        if self.wideg:
            wd = self.wideg; nt = 7168 // wd; rpi = 1024 // wd; lpr = wd // 16
            import math
            A(f"""
            s_lshl2_add_u32 s40, s{sTL}, s{sRB}
            s_mul_hi_u32 s41, s40, {-(-(1 << 32) // nt)}
            s_mul_i32 s42, s41, {nt}
            s_sub_u32 s42, s40, s42
            s_lshl2_add_u32 s41, s41, s{sW}
            s_mul_i32 s41, s41, {16*rpi*7168}
            s_mul_i32 s42, s42, {wd}
            s_add_u32 s41, s41, s42
            v_lshrrev_b32 v1, {int(math.log2(lpr))}, v0
            v_mul_u32_u24 v1, 7168, v1
            v_and_b32 v2, {lpr-1}, v0
            v_lshl_add_u32 v1, v2, 4, v1
            v_add_u32 v{vA1}, s41, v1
            v_mov_b32 v{vA2}, v{vA1}
            s_movk_i32 s46, {7168*rpi}""")
        ops = qops + [(k, m) for m in range(16) for k in "gu"] + [("d", m) for m in range(16)]
        WF = self.WF
        landed = stream(ops[:40], lambda i: WF[0] if i < 14 else WF[1], True)
        gated = self.lab("Lsfg")
        if any(self.gateF) and 'noa' not in self.abl:
            A(f"s_cmp_lg_u32 s{sGATE}, 0\ns_cbranch_scc1 {gated}")
        if 0 in self.gateF or 'noa' in self.abl:
            l2 = stream(ops, lambda i: WF[2] if (i < 48 or len(WF) < 4) else WF[3], True, start=40, landed=landed, hold=self.HF, holdcnt=1)
            assert l2 >= 40
            self.stamp(7)
            final_gemv(1, 40, 56, l2, WS_BF)
            self.write_stamps(10)
            A("s_endpgm")
        if any(self.gateF) and 'noa' not in self.abl:
            A(f"{gated}:")
            l2 = drain(ops[:40], landed, 40, True)
            self.lds_spin(C_GA, 1, sleep=1)
            l2 = stream(ops, lambda i: self.WFe or WF[2], True, start=40, landed=l2)
            self.stamp(7)
            final_gemv(1, 40, 56, l2, WS_BF)
            self.write_stamps(10)
            A("s_endpgm")
        A("L_s_last:")
        get_xn(False)
        drain(qops, 0, 8, False)
        A(f"s_add_u32 s{sW}, s{sW}, 4\ns_branch L_final")

    def red_publish(self, lbase, pitch, cnt, nl, addr_code, nrep, flagv=None, sleep=1, val=sT32, local=False):
        A = self.A
        t = 16
        A("v_lshlrev_b32 v10, 4, v0")
        A(addr_code)
        if local and self.warm is not None:
            self.exec_set(0x0101010101010101)
            A(f"global_load_dword v54, v11, s[26:27] {self.warm}\ns_mov_b64 exec, -1")
        self.lds_spin(cnt, 4, sleep=sleep, reads="\n".join(f"ds_read_b128 v[{t+4*k}:{t+4*k+3}], v10 offset:{lbase+pitch*k}" for k in range(4)))
        if local and self.earlyD:
            l = self.lab("Lef")
            A(f"s_cmp_lg_u32 s101, 0\ns_cbranch_scc1 {l}")
            self.flag_store(nrep, flagv, val)
            A(f"{l}:")
        if nl == 32:
            A("s_mov_b32 exec_hi, 0")
        for h in (0, 2):
            A(f"v_pk_add_f32 v[{t+h}:{t+h+1}], v[{t+h}:{t+h+1}], v[{t+4+h}:{t+5+h}]")
            A(f"v_pk_add_f32 v[{t+8+h}:{t+9+h}], v[{t+8+h}:{t+9+h}], v[{t+12+h}:{t+13+h}]")
        for h in (0, 2):
            A(f"v_pk_add_f32 v[{t+h}:{t+h+1}], v[{t+h}:{t+h+1}], v[{t+8+h}:{t+9+h}]")
        for r in range(4):
            A(f"v_add_u32 v{t+r}, {(TAGM + 1) // 2:#x}, v{t+r}")
        for r in range(4):
            self.tag(t + r)
        if local:
            rem = self.lab("Lremote"); fl = self.lab("Lpub")
            A(f"""
            s_cmp_lg_u32 s101, 0
            s_cbranch_scc1 {rem}
            global_store_dwordx4 v11, v[{t}:{t+3}], s[26:27]
            s_branch {fl if not self.earlyD else fl + '_done'}
            {rem}:
            global_store_dwordx4 v11, v[{t}:{t+3}], s[26:27] sc1
            {fl}:""")
            self.flag_store(nrep, flagv, val)
            A(f"{fl}_done:")
        else:
            A(f"global_store_dwordx4 v11, v[{t}:{t+3}], s[26:27] sc1")
            self.flag_store(nrep, flagv, val)

    def awave(self):
        A = self.A
        vKF, vVF, vGT, vU = 56, 184, 216, 232
        vQF, vS = 216, 16
        vI, vJ = 4, 5
        vA0, vA1 = 6, 7
        vT = 16
        x0, xr = 56, 72
        A(f"""
        s_setprio 3
        s_lshl2_add_u32 s40, s{sRB}, s{sW}
        s_lshl_b32 s40, s40, 6
        v_lshlrev_b32 v14, 5, v0
        v_add_lshl_u32 v1, v0, s40, 1
        s_lshl2_add_u32 s40, s{sRBQ}, s{sW}
        s_lshl_b32 s40, s40, 5
        v_and_b32 v15, 31, v0
        v_add_lshl_u32 v15, v15, s40, 1
        v_mov_b32 v10, 0
        v_and_b32 v2, 31, v0
        v_lshlrev_b32 v2, 2, v2
        ds_write_b32 v2, v10 offset:{L_CNT}
        s_waitcnt lgkmcnt(0)
        global_load_dwordx4 v[{xr}:{xr+3}], v14, s[4:5]
        global_load_dwordx4 v[{xr+4}:{xr+7}], v14, s[4:5] offset:16
        global_load_ushort v{xr+8}, v15, s[4:5]
        global_load_ushort v{xr+9}, v1, s[4:5]
        s_load_dword s{sT32}, s[26:27], {WS_E}""")
        if self.touch:
            tf = self.lab("Ltf"); td = self.lab("Ltd")
            A(f"""
            s_cmp_eq_u32 s{sW}, 0
            s_cbranch_scc0 {td}
            s_lshl_b32 s41, s{sTL}, 18
            s_cmp_eq_u32 s{sTY}, 0
            s_cbranch_scc0 {tf}
            s_lshl_b32 s40, s{sG}, 24
            s_add_u32 s40, s40, {(65536-4096)*256:#x}
            s_load_dword s48, s[6:7], s40
            s_load_dword s49, s[8:9], s40
            s_load_dword s50, s[12:13], s41
            s_branch {td}
            {tf}:
            s_load_dword s48, s[22:23], 0
            s_cmp_eq_u32 s{sTY}, 1
            s_cbranch_scc0 {td}
            s_mul_i32 s40, s{sRB}, {256*7168}
            s_add_u32 s42, s40, {255*7168}
            s_load_dword s49, s[16:17], s40
            s_load_dword s50, s[18:19], s40
            s_load_dword s51, s[16:17], s42
            s_load_dword s52, s[18:19], s42
            s_load_dword s53, s[20:21], s41
            {td}:""")
        A("s_barrier")
        self.stamp(1)
        if self.xt:
            nx = self.lab("Lnoxt")
            A(f"""
            s_waitcnt lgkmcnt(0)
            s_cmp_lg_u32 s{sW}, 0
            s_cbranch_scc1 {nx}
            ; wave 0 announces the die this workgroup runs on
            s_getreg_b32 s45, hwreg(HW_REG_XCC_ID, 0, 4)
            s_lshl_b32 s45, s45, 28
            s_add_u32 s41, s{sT32}, 1
            s_xor_b32 s45, s45, s41
            s_lshl_b32 s95, s{sX}, 7
            s_add_u32 s95, s95, {WS_XA:#x}
            s_lshl2_add_u32 s41, s{sY}, s95
            s_mov_b64 exec, 1
            v_mov_b32 v1, s41
            v_mov_b32 v2, s45
            global_store_dword v1, v2, s[26:27] sc1
            s_mov_b64 exec, -1
            s_waitcnt vmcnt(1)
            s_branch {nx}_ln
            {nx}:
            s_waitcnt vmcnt(0)
            {nx}_ln:""")
        else:
            A(f"s_waitcnt vmcnt(0) lgkmcnt(0)")
        self.stamp(11)
        for i in range(8):
            A(f"v_lshlrev_b32 v{x0+2*i}, 16, v{xr+i}\nv_and_b32 v{x0+2*i+1}, 0xffff0000, v{xr+i}")
        A(f"v_pk_add_f32 v[{vT}:{vT+1}], v[{x0}:{x0+1}], v[{x0+2}:{x0+3}]")
        A(f"v_pk_add_f32 v[{vT+2}:{vT+3}], v[{x0+4}:{x0+5}], v[{x0+6}:{x0+7}]")
        for i in range(4, 8, 2):
            A(f"v_pk_add_f32 v[{vT}:{vT+1}], v[{vT}:{vT+1}], v[{x0+2*i}:{x0+2*i+1}]")
            A(f"v_pk_add_f32 v[{vT+2}:{vT+3}], v[{vT+2}:{vT+3}], v[{x0+2*i+2}:{x0+2*i+3}]")
        A(f"v_pk_add_f32 v[{vT}:{vT+1}], v[{vT}:{vT+1}], v[{vT+2}:{vT+3}]")
        A(f"v_add_f32 v{vT}, v{vT}, v{vT+1}")
        self.allreduce_in_row(vT)
        self.allreduce_rows(vT, vT+1, "v_add_f32")
        A(f"v_mul_f32 v{vT}, {f2u(1.0/1024):#x}, v{vT}")
        for i in range(8):
            A(f"v_pk_add_f32 v[{x0+2*i}:{x0+2*i+1}], v[{x0+2*i}:{x0+2*i+1}], v[{vT}:{vT+1}] op_sel_hi:[1,0] neg_lo:[0,1] neg_hi:[0,1]")
        A(f"v_pk_mul_f32 v[{vT+2}:{vT+3}], v[{x0}:{x0+1}], v[{x0}:{x0+1}]")
        A(f"v_pk_mul_f32 v[{vT+4}:{vT+5}], v[{x0+2}:{x0+3}], v[{x0+2}:{x0+3}]")
        for i in range(2, 8):
            d = vT + 2 + 2*(i & 1)
            A(f"v_pk_fma_f32 v[{d}:{d+1}], v[{x0+2*i}:{x0+2*i+1}], v[{x0+2*i}:{x0+2*i+1}], v[{d}:{d+1}]")
        A(f"v_pk_add_f32 v[{vT+2}:{vT+3}], v[{vT+2}:{vT+3}], v[{vT+4}:{vT+5}]")
        A(f"v_add_f32 v{vT+2}, v{vT+2}, v{vT+3}")
        r = xr + 8
        self.bf16_round(vT, vT)
        self.allreduce_in_row(vT+2)
        A(f"""
        v_lshlrev_b32 v{r}, 16, v{r}
        v_lshlrev_b32 v{r+1}, 16, v{r+1}
        v_pk_add_f32 v[{r}:{r+1}], v[{r}:{r+1}], v[{vT}:{vT+1}] op_sel_hi:[1,0] neg_lo:[0,1] neg_hi:[0,1]""")
        self.allreduce_rows(vT+2, vT+3, "v_add_f32")
        A(f"v_mul_f32 v{vT+2}, {f2u(1.0/1024):#x}, v{vT+2}")
        self.bf16_round(vT+2, vT+2)
        A(f"v_add_f32 v{vT+2}, {f2u(1e-5):#x}, v{vT+2}")
        self.bf16_round(vT+2, vT+2)
        A(f"""
        v_sqrt_f32 v{vT+2}, v{vT+2}
        v_cvt_pk_bf16_f32 v{r+1}, v{r}, v{r+1}
        v_lshlrev_b32 v{r}, 16, v{r+1}
        v_and_b32 v{r+1}, 0xffff0000, v{r+1}""")
        self.bf16_round(vT+2, vT+2)
        A(f"""
        v_rcp_f32 v{vT+2}, v{vT+2}
        v_and_b32 v1, 3, v0
        v_lshrrev_b32 v2, 2, v0
        v_lshlrev_b32 v2, 1, v2
        v_pk_mul_f32 v[{r}:{r+1}], v[{r}:{r+1}], v[{vT+2}:{vT+3}] op_sel_hi:[1,0]
        s_lshl_b32 s40, s{sW}, 6
        v_lshl_add_u32 v10, v1, 4, s40
        v_lshl_add_u32 v11, v10, 1, v2
        v_add_u32 v10, v10, v2""")
        if self.stag:
            A(f"s_and_b32 s41, s{sW}, 1\ns_lshl_b32 s41, s41, 1\nv_xor_b32 v11, s41, v11")
        A(f"""
        v_cvt_pk_bf16_f32 v{r}, v{r}, v{r+1}
        s_lshl_b32 s40, s{sW}, 2
        v_mov_b32 v2, s40
        v_mov_b32 v1, 1
        ds_write_b16_d16_hi v11, v{r} offset:{L_XG}
        s_mov_b32 exec_hi, 0
        ds_write_b16 v10, v{r} offset:{L_XQ}
        s_mov_b64 exec, 1
        ds_write_b32 v2, v1 offset:{C_XN}
        s_mov_b64 exec, -1
        s_add_u32 s{sT32}, s{sT32}, 1
        s_and_b32 s{sT10}, s{sT32}, s44
        v_mov_b32 v3, s{sT10}""")
        self.stamp(12)
        if self.mag:
            A(f"""
            s_cmp_eq_u32 s{sW}, 1
            s_cbranch_scc0 L_magskip
            s_lshl_b32 s40, s2, 7
            s_add_u32 s40, s40, 0x300000
            v_mov_b32 v1, s40
            v_mov_b32 v2, s90
            s_mov_b64 exec, 1
            global_store_dword v1, v2, s[26:27] sc1
            v_add_u32 v1, 0x10000, v1
            global_store_dword v1, v2, s[26:27] sc1
            s_mov_b64 exec, -1
            L_magskip:""")
        if self.wtest:
            pre, mod, n = self.wtest
            A(f"s_cmp_eq_u32 s{sW}, 3\ns_cbranch_scc0 L_adone")
            A(f"s_mul_i32 s42, s2, {n*1024}\ns_add_u32 s42, s42, 0x800000\nv_lshl_add_u32 v10, v0, 4, s42")
            if pre == 's':
                A("s_add_u32 s40, s26, s42\ns_addc_u32 s41, s27, 0")
                for i in range(n*16):
                    A(f"s_load_dword s48, s[40:41], {64*i} glc")
                A("s_waitcnt lgkmcnt(0)")
            elif pre:
                for i in range(n):
                    A(f"global_load_dwordx4 v[20:23], v10, s[26:27] offset:{1024*i} {pre[1:]}")
                A("s_waitcnt vmcnt(0)")
            self.lds_spin(C_Q, 4, sleep=1)
            A("s_sleep 64")
            for i in range(n):
                A(f"global_store_dwordx4 v10, v[16:19], s[26:27] offset:{1024*i} {mod}")
        if 'noa' in self.abl:
            A("s_branch L_adone")
        if self.xt:
            pass
        elif self.local:
            A(f"""
            s_getreg_b32 s45, hwreg(HW_REG_XCC_ID, 0, 4)
            s_lshl_b32 s45, s45, 28
            s_cmp_eq_u32 s{sTY}, 0
            s_cselect_b32 s45, s45, 0
            s_xor_b32 s45, s45, s{sT32}""")
        nq = self.lab("Lnoq")
        A(f"s_cmp_eq_u32 s{sW}, 3\ns_cbranch_scc0 {nq}")
        self.red_publish(L_RQ, 512, C_Q, 32, f"""
            s_lshl3_add_u32 s41, s{sHQ}, s{sRBQ}
            s_lshl_b32 s40, s41, 9
            s_add_u32 s40, s40, {WS_BQ:#x}
            v_add_u32 v11, s40, v10
            s_lshr_b32 s40, s41, 4
            s_and_b32 s41, s41, 15
            s_lshl_b32 s40, s40, 5
            s_add_u32 s40, s40, s41
            s_lshl_b32 s40, s40, 2
            s_add_u32 s40, s40, {WS_FLA:#x}""", self.nrepA, val=(45 if (self.local and not self.forceloc) else sT32))
        self.stamp(13)
        A(f"{nq}:")
        if self.xt:
            nc = self.lab("Lnocol"); l = self.lab("Lxt"); mem = self.lab("Lxm"); lv = self.lab("Lxv")
            A(f"""
            s_cmp_lg_u32 s{sW}, 0
            s_cbranch_scc1 {nc}
            s_lshl_b32 s46, s{sX}, 10
            s_add_u32 s46, s46, {WS_XV:#x}
            s_mov_b32 s{sSPIN}, 0
            s_cmp_lg_u32 s{sY}, 0
            s_cbranch_scc1 {mem}
            s_mov_b32 s42, s45
            s_mov_b32 s43, s45
            s_mov_b32 s101, 0
            s_add_u32 s41, s95, 128
            {l}:
            s_load_dwordx16 s[{sP}:{sP+15}], s[26:27], s95 glc
            s_add_u32 s{sSPIN}, s{sSPIN}, 1
            s_cmp_gt_u32 s{sSPIN}, {SPIN_MAX}
            s_cbranch_scc1 L_end
            s_waitcnt lgkmcnt(0)""")
            pairs = [sP + 2*i for i in range(8)]
            for p in pairs:
                A(f"s_xor_b64 s[{p}:{p+1}], s[{p}:{p+1}], s[42:43]")
            for p in pairs[1:]:
                A(f"s_or_b64 s[{sP}:{sP+1}], s[{sP}:{sP+1}], s[{p}:{p+1}]")
            A(f"""
            s_or_b32 s{sP}, s{sP}, s{sP+1}
            s_and_b32 s{sP+1}, s{sP}, 0x0fffffff
            s_cbranch_scc1 {l}
            s_or_b32 s101, s101, s{sP}
            s_add_u32 s95, s95, 64
            s_cmp_lt_u32 s95, s41
            s_cbranch_scc1 {l}
            s_xor_b32 s40, s101, s{sT32}
            s_mov_b64 exec, 0xff
            v_lshl_add_u32 v1, v0, 7, s46
            v_mov_b32 v2, s40
            global_store_dword v1, v2, s[26:27] sc1
            s_branch {lv}
            {mem}:
            s_and_b32 s40, s{sY}, 7
            s_lshl_b32 s40, s40, 7
            s_add_u32 s46, s46, s40
            {mem}_l:
            s_sleep {self.xsleep}
            s_load_dword s101, s[26:27], s46 glc
            s_add_u32 s{sSPIN}, s{sSPIN}, 1
            s_cmp_gt_u32 s{sSPIN}, {SPIN_MAX}
            s_cbranch_scc1 L_end
            s_waitcnt lgkmcnt(0)
            s_xor_b32 s101, s101, s{sT32}
            s_and_b32 s40, s101, 0x0fffffff
            s_cbranch_scc1 {mem}_l
            {lv}:
            s_cmp_lg_u32 s101, 0
            s_cselect_b32 s40, 3, 1
            s_mov_b64 exec, 1
            v_mov_b32 v1, {C_LOC}
            v_mov_b32 v2, s40
            ds_write_b32 v1, v2
            s_mov_b64 exec, -1
            {nc}:""")
        A(f"""
        s_cmp_ge_u32 s{sTY}, 2
        s_cbranch_scc1 L_final
        s_cmp_ge_u32 s{sTY}, 1
        s_cbranch_scc1 L_ffn""")
        if 'stop1' in self.abl:
            self.arrive(C_GA, want_old=False); A("s_branch L_adone")
        vKF, vVF, vGT, vQF, vO = 56, 88, 120, 152, 168
        vS, U, Z = 16, 24, 28
        A(f"""
        s_lshl2_add_u32 s41, s{sG}, s{sW}
        s_lshl_b32 s40, s41, 13
        s_add_u32 s40, s40, {WS_BQ + 2048:#x}
        v_and_b32 v12, 31, v0
        v_lshrrev_b32 v13, 5, v0
        v_lshlrev_b32 v1, 4, v12
        v_lshl_add_u32 v1, v13, 12, v1
        v_add_u32 v{vA0}, s40, v1
        s_and_b32 s40, s{sCH}, {self.nrepA-1}
        s_mul_i32 s40, s40, {REPP}
        s_lshl_b32 s41, s41, 7
        s_add_u32 s40, s40, s41
        s_add_u32 s95, s40, {WS_FLA:#x}
        s_lshl_b32 s40, s{sW}, 1
        v_add_u32 v13, s40, v13
        v_mul_u32_u24 v13, {QLP}, v13
        v_lshl_add_u32 v13, v12, 3, v13
        v_and_b32 v10, 7, v0
        s_lshl_b32 s40, s{sG}, 5
        s_add_u32 s41, s40, s{sCH}
        s_mul_i32 s41, s41, {BOP}
        s_lshl_b32 s42, s{sW}, 7
        s_add_u32 s41, s41, s42
        s_add_u32 s41, s41, {WS_BO:#x}
        v_lshlrev_b32 v8, 9, v10
        v_bfe_u32 v11, v0, 3, 1
        v_lshl_add_u32 v8, v11, 6, v8
        v_lshl_add_u32 v8, v{vJ}, 4, v8
        v_add_u32 v8, s41, v8
        s_add_u32 s40, s40, s{sCH}
        s_lshl_b32 s40, s40, 7
        s_add_u32 s40, s40, {WS_BML:#x}
        v_lshl_add_u32 v9, v10, 4, s40
        v_mul_u32_u24 v12, {QLP}, v10
        v_lshl_add_u32 v12, v{vJ}, 4, v12
        s_mov_b32 s46, {f2u(128 ** -0.5):#x}
        s_mov_b32 s47, {f2u(128 ** -0.5):#x}
        s_lshl_b32 s40, s{sW}, 13
        v_xor_b32 v14, v{vI}, v{vJ}
        v_lshlrev_b32 v14, 4, v14
        v_lshl_add_u32 v14, v{vI}, 8, v14
        v_add_u32 v14, s40, v14
        v_bfe_u32 v10, v0, 2, 2
        v_lshl_add_u32 v10, v{vJ}, 2, v10
        v_and_b32 v11, 7, v10
        v_lshlrev_b32 v11, 1, v11
        v_bfe_u32 v1, v0, 1, 1
        v_xor_b32 v11, v11, v1
        v_lshlrev_b32 v11, 4, v11
        v_lshl_add_u32 v11, v10, 8, v11
        v_and_b32 v1, 1, v0
        v_lshl_add_u32 v11, v1, 3, v11
        s_add_u32 s41, s40, {L_V}
        v_add_u32 v11, s41, v11
        ; exchange area (this wave's K rows, dead once the fragments are in registers)
        v_lshl_add_u32 v15, v0, 4, s40
        s_lshl_b32 s41, s{sW}, 10
        v_lshl_add_u32 v10, v0, 4, s41""")
        self.mask(("s92", "s93"), 0xFF00FF00FF00FF00)

        def kreads():
            A(f"s_lshl_b32 s41, s{sW}, 2\ns_add_u32 s41, s41, {C_K}")
            self.lds_spin("s41", 1, sleep=1)
            for s in range(4):
                if s:
                    A(f"v_xor_b32 v2, {64*s}, v14")
                for t in range(2):
                    r = vKF + 16*t + 4*s
                    A(f"ds_read_b128 v[{r}:{r+3}], v{2 if s else 14} offset:{L_K + 4096*t}")
            self.stamp(3)

        if self.kfirst:
            kreads()
        A("s_mov_b32 s40, s95")
        if self.xt:
            self.flag_poll(16)
        elif self.forceloc:
            self.flag_poll(16)
            A("s_mov_b32 s101, 1")
        elif self.local:
            l = self.lab("Lpoll"); r = self.lab("Lretry")
            A(f"""
            s_mov_b32 s{sSPIN}, 0
            s_mov_b32 s42, s{sT32}
            s_mov_b32 s43, s{sT32}
            s_mov_b32 s4, s45
            s_mov_b32 s5, s45
            s_branch {l}
            {r}:
            s_sleep {self.psleep}
            {l}:
            s_load_dwordx16 s[{sP}:{sP+15}], s[26:27], s40 glc
            s_add_u32 s{sSPIN}, s{sSPIN}, 1
            s_cmp_gt_u32 s{sSPIN}, {SPIN_MAX}
            s_cbranch_scc1 L_end
            s_waitcnt lgkmcnt(0)""")
            for i in range(8):
                A(f"s_xor_b64 s[{sP+2*i}:{sP+2*i+1}], s[{sP+2*i}:{sP+2*i+1}], s[{'4:5' if (i & 2) == 0 else '42:43'}]")
            for step in (2, 4, 8):
                for i in range(0, 16, 2*step):
                    A(f"s_or_b64 s[{sP+i}:{sP+i+1}], s[{sP+i}:{sP+i+1}], s[{sP+i+step}:{sP+i+step+1}]")
            A(f"""
            s_or_b32 s{sP}, s{sP}, s{sP+1}
            s_and_b32 s{sP+1}, s{sP}, 0x0fffffff
            s_cbranch_scc1 {r}
            s_cmp_lg_u32 s{sP}, 0
            s_cselect_b32 s101, 0x101, 1""")
        else:
            self.flag_poll(16)
        self.stamp(2)
        if 'stop2' in self.abl:
            self.arrive(C_GA, want_old=False); A("s_branch L_adone")
        if self.warm is not None and self.warmO == 1:
            A(f"""
            s_mov_b64 exec, 0xff
            global_load_dword v46, v8, s[26:27] {self.warm}
            s_mov_b64 exec, 1
            global_load_dword v47, v9, s[26:27] {self.warm}
            s_mov_b64 exec, -1""")

        rq = self.lab("Lgq")
        A(f"s_mov_b32 s45, 0\n{rq}:")
        for n in range(8):
            A(f"global_load_dwordx4 v[{vGT+4*n}:{vGT+4*n+3}], v{vA0}, s[26:27] offset:{512*n - 2048} sc1")
        skip = self.lab("Lkvdone")
        A(f"s_cmp_lg_u32 s45, 0\ns_cbranch_scc1 {skip}\ns_mov_b32 s45, 1")
        self.gate(1, self.gateA)
        def vreads():
            A(f"s_lshl_b32 s41, s{sW}, 2\ns_add_u32 s41, s41, {C_V}")
            self.lds_spin("s41", 1, sleep=0)
            for dt in range(8):
                if dt:
                    A(f"v_xor_b32 v14, {32*dt}, v11")
                for t in range(2):
                    r = vVF + 4*dt + 2*t
                    A(f"ds_read_b64_tr_b16 v[{r}:{r+1}], v{14 if dt else 11} offset:{4096*t}")

        if not self.kfirst:
            kreads()
        if not self.vlate:
            vreads()
        A(f"""
        s_lshr_b32 s40, s{sCH}, 4
        s_lshl1_add_u32 s40, s{sG}, s40
        s_lshl_b32 s40, s40, 5
        s_and_b32 s41, s{sCH}, 15
        s_add_u32 s40, s40, s41
        s_lshl_b32 s40, s40, 2
        s_add_u32 s95, s40, {WS_FLB:#x}""")
        A(f"s_mov_b32 s{sSPIN}, 0\n{skip}:")
        self.untag([vGT+4*n for n in range(8)], vT, counted=True)
        self.tagtest(vT, rq)
        self.stamp(4)
        if 'stop3' in self.abl:
            A("s_branch L_adone")
        for step in (4, 8, 16):
            for b in range(0, 32, 2*step):
                for h in (0, 2):
                    A(f"v_pk_add_f32 v[{vGT+b+h}:{vGT+b+h+1}], v[{vGT+b+h}:{vGT+b+h+1}], v[{vGT+b+step+h}:{vGT+b+step+h+1}]")
        A(f"""
        v_cvt_pk_bf16_f32 v{vGT}, v{vGT}, v{vGT+1}
        v_cvt_pk_bf16_f32 v{vGT+1}, v{vGT+2}, v{vGT+3}
        s_mov_b32 s45, {f2u(LOG2E):#x}
        ds_write_b64 v13, v[{vGT}:{vGT+1}] offset:{L_QL}""")
        self.arrive(C_QL, want_old=False, inc=("s101" if (self.local and not self.xt) else 1))
        if self.warm is not None and self.warmO == 2:
            A(f"""
            s_mov_b64 exec, 0xff
            global_load_dword v46, v8, s[26:27] {self.warm}
            s_mov_b64 exec, 1
            global_load_dword v47, v9, s[26:27] {self.warm}
            s_mov_b64 exec, -1""")

        self.stamp(1)
        self.lds_spin(C_QL, 4, sleep=0, low8=(self.local and not self.xt),
                      reads="\n".join(f"ds_read_b128 v[{vQF+4*s}:{vQF+4*s+3}], v12 offset:{L_QL + 64*s}" for s in range(4))
                      + (f"\nds_read_b32 v54, v1 offset:{C_LOC - C_QL}" if self.xt else ""))
        if self.xt:
            self.get_loc(54)
        self.stamp(9)
        for s in range(4):
            for t in range(2):
                c = "0" if s == 0 else f"v[{vS+4*t}:{vS+4*t+3}]"
                r = vKF + 16*t + 4*s
                A(f"v_mfma_f32_16x16x32_bf16 v[{vS+4*t}:{vS+4*t+3}], v[{r}:{r+3}], v[{vQF+4*s}:{vQF+4*s+3}], {c}")
        self.early_flag('qk')
        if self.vlate:
            vreads()
        else:
            A("s_nop 7")
        for k in range(4):
            A(f"v_cndmask_b32 v{U+k}, v{vS+k}, v{vS+4+k}, s[92:93]")
        for rnd in range(2):
            for p in range(2):
                A(f"v_cvt_pk_bf16_f32 v{Z+p}, v{U+2*p}, v{U+2*p+1}")
            for p in range(2):
                A(f"v_lshlrev_b32 v{U+2*p}, 16, v{Z+p}\nv_and_b32 v{U+2*p+1}, 0xffff0000, v{Z+p}")
            if rnd == 0:
                for p in range(2):
                    A(f"v_pk_mul_f32 v[{U+2*p}:{U+2*p+1}], v[{U+2*p}:{U+2*p+1}], s[46:47]")
        vM, vL = 48, 49
        A(f"""
        v_max3_f32 v{vM}, v{U}, v{U+1}, v{U+2}
        v_max_f32 v{vM}, v{vM}, v{U+3}
        s_nop 1
        v_max_f32_dpp v{vM}, v{vM}, v{vM} row_ror:8 row_mask:0xf bank_mask:0xf""")
        self.allreduce_rows(vM, 50, "v_max_f32")
        A(f"v_mul_f32 v50, s45, v{vM}")
        for k in range(4):
            A(f"v_fma_f32 v{U+k}, v{U+k}, s45, -v50")
        for k in range(4):
            A(f"v_exp_f32 v{U+k}, v{U+k}")
        P = 32
        A(f"""
        s_nop 0
        v_cvt_pk_bf16_f32 v{P}, v{U}, v{U+1}
        v_cvt_pk_bf16_f32 v{P+1}, v{U+2}, v{U+3}
        v_pk_add_f32 v[52:53], v[{U}:{U+1}], v[{U+2}:{U+3}]
        v_mov_b32_dpp v{P+2}, v{P} row_ror:8 row_mask:0xf bank_mask:0xf
        v_mov_b32_dpp v{P+3}, v{P+1} row_ror:8 row_mask:0xf bank_mask:0xf
        v_mov_b32 v{P+4}, v{P}
        v_mov_b32 v{P+5}, v{P+1}
        v_add_f32 v{vL}, v52, v53""")
        if self.vlate:
            A("s_waitcnt lgkmcnt(0)")
        fill = [f"v_lshrrev_b32 v14, 1, v15\nv_add_f32_dpp v{vL}, v{vL}, v{vL} row_ror:8 row_mask:0xf bank_mask:0xf",
                f"v_mov_b32 v50, v{vL}\ns_lshl_b32 s40, s{sW}, 12",
                f"v_add_u32 v14, s40, v14\nv_permlane32_swap_b32 v50, v{vL}",
                f"v_add_f32 v{vL}, v{vL}, v50\nv_mov_b32 v50, v{vL}",
                f"s_nop 0",
                f"v_permlane16_swap_b32 v50, v{vL}\nv_add_f32 v{vL}, v{vL}, v50",
                f"ds_write_b64 v14, v[{vM}:{vL}] offset:{L_K + 4096}", ""]
        for dt in range(8):
            b = P + 2*(dt & 1)
            A(f"v_mfma_f32_16x16x32_bf16 v[{vO+4*dt}:{vO+4*dt+3}], v[{vVF+4*dt}:{vVF+4*dt+3}], v[{b}:{b+3}], 0")
            A(fill[dt])
        for k in range(4):
            for r in range(4):
                A(f"v_cndmask_b32 v{vO+8*k+r}, v{vO+8*k+r}, v{vO+8*k+4+r}, s[92:93]")
            A(f"ds_write_b128 v15, v[{vO+8*k}:{vO+8*k+3}] offset:{L_K + 1024*k}")
        self.arrive(C_X, want_old=False)
        A("v_lshlrev_b32 v14, 3, v0")
        self.early_flag('pv')
        self.stamp(11)
        X, ML = 56, 72
        self.lds_spin(C_X, 4, sleep=0, reads="\n".join(
            [f"ds_read_b64 v[{ML+2*w}:{ML+2*w+1}], v14 offset:{L_K + 8192*w + 4096}" for w in range(4)] +
            [f"ds_read_b128 v[{X+4*w}:{X+4*w+3}], v10 offset:{L_K + 8192*w}" for w in range(4)]))
        self.stamp(10)
        self.early_flag('xsync')
        A(f"v_max3_f32 v{vM}, v{ML}, v{ML+2}, v{ML+4}\nv_max_f32 v{vM}, v{vM}, v{ML+6}")
        for w in range(4):
            A(f"v_sub_f32 v{ML+2*w}, v{ML+2*w}, v{vM}")
        for w in range(4):
            A(f"v_mul_f32 v{ML+2*w}, s45, v{ML+2*w}")
        for w in range(4):
            A(f"v_exp_f32 v{ML+2*w}, v{ML+2*w}")
        A(f"s_nop 0\nv_mul_f32 v{vL}, v{ML}, v{ML+1}")
        for w in range(4):
            e = ML + 2*w
            for h in (0, 2):
                if w == 0:
                    A(f"v_pk_mul_f32 v[{vS+h}:{vS+h+1}], v[{X+h}:{X+h+1}], v[{e}:{e+1}] op_sel_hi:[1,0]")
                else:
                    A(f"v_pk_fma_f32 v[{vS+h}:{vS+h+1}], v[{X+4*w+h}:{X+4*w+h+1}], v[{e}:{e+1}], v[{vS+h}:{vS+h+1}] op_sel_hi:[1,0,1]")
            if w:
                A(f"v_fmac_f32 v{vL}, v{e}, v{e+1}")
        for r in range(4):
            self.tag(vS + r)
        nml = self.lab("Lnoml")

        def publish(mod):
            if 'noO' not in self.abl:
                A(f"global_store_dwordx4 v8, v[{vS}:{vS+3}], s[26:27] {mod}")
            A(f"s_cmp_lg_u32 s{sW}, 0\ns_cbranch_scc1 {nml}")
            self.tag(vM); self.tag(vL)
            A(f"""
            v_mov_b32 v50, v3
            v_mov_b32 v51, v3
            s_mov_b64 exec, 0xff
            global_store_dwordx4 v9, v[48:51], s[26:27] {mod}""")

        if self.local:
            rem = self.lab("Lremote"); fl = self.lab("Lflagb")
            A(f"s_cmp_lg_u32 s101, 0\ns_cbranch_scc1 {rem}")
            publish("")
            A(f"s_branch {fl}\n{rem}:")
            publish("sc1")
            A(f"{fl}:")
        else:
            publish("sc1")
        if self.flagpos != 'end':
            A(f"s_mov_b64 exec, -1\ns_cmp_eq_u32 s101, 0\ns_cbranch_scc1 {nml}")
        A("s_mov_b32 s40, s95")
        if 'noflagB' not in self.abl:
            self.flag_store(self.nrepB)
        A(f"{nml}:")
        self.gate(2, self.gateA)
        self.stamp(5)
        if 'stop4' in self.abl:
            A("s_branch L_adone")
        A(f"""
        s_and_b32 s40, s{sTL}, 7
        s_lshl2_add_u32 s41, s40, s{sW}
        s_lshl_b32 s41, s41, 7
        s_mul_i32 s42, s{sG}, {32*BOP}
        s_add_u32 s41, s41, s42
        s_add_u32 s41, s41, {WS_BO:#x}
        v_lshrrev_b32 v1, 3, v0
        v_mul_u32_u24 v1, {BOP}, v1
        v_and_b32 v2, 7, v0
        v_lshl_add_u32 v1, v2, 4, v1
        v_add_u32 v{vA0}, s41, v1
        v_add_u32 v13, {8*BOP}, v{vA0}
        v_add_u32 v14, {16*BOP}, v{vA0}
        v_add_u32 v15, {24*BOP}, v{vA0}
        s_lshl_b32 s41, s{sG}, 8
        s_add_u32 s40, s40, s41
        s_lshl_b32 s40, s40, 4
        s_add_u32 s40, s40, {WS_BML:#x}
        v_and_b32 v1, 31, v0
        v_lshl_add_u32 v{vA1}, v1, 7, s40
        s_lshl_b32 s40, s{sW}, 7
        v_and_b32 v2, 7, v0
        v_lshrrev_b32 v1, 3, v1
        v_lshl_add_u32 v1, v1, 2, s40
        v_lshl_add_u32 v10, v2, 4, v1
        v_lshrrev_b32 v1, 3, v0
        v_lshl_add_u32 v11, v1, 4, s40
        v_and_b32 v1, 1, v0
        v_lshl_add_u32 v1, v1, 2, v{vJ}
        v_and_b32 v2, 6, v0
        v_lshl_add_u32 v12, v1, 5, v2
        s_lshl_b32 s40, s{sW}, 3
        v_add_u32 v12, s40, v12""")
        nb = self.lab("Lnopollb")
        A(f"""
        s_cmp_ge_u32 s{sW}, 2
        s_cbranch_scc1 {nb}
        s_and_b32 s40, s{sCH}, {self.nrepB-1}
        s_mul_i32 s40, s40, {REPP}
        s_lshl1_add_u32 s41, s{sG}, s{sW}
        s_lshl_b32 s41, s41, 7
        s_add_u32 s40, s40, s41
        s_add_u32 s40, s40, {WS_FLB:#x}""")
        self.flag_poll(16)
        self.arrive(C_B1, want_old=False)
        A(f"{nb}:")
        self.lds_spin(C_B1, 2, sleep=0)
        self.stamp(6)
        rb_ = self.lab("Lgo")
        vO, vML = 56, 72
        A(f"s_mov_b32 s47, 0\n{rb_}:")
        def bloads(mod):
            A(f"global_load_dwordx4 v[{vML}:{vML+3}], v{vA1}, s[26:27] {mod}")
            for n in range(4):
                A(f"global_load_dwordx4 v[{vO+4*n}:{vO+4*n+3}], v{(vA0, 13, 14, 15)[n]}, s[26:27] {mod}")
        if self.local and self.gmod != 'sc1':
            rem = self.lab("Lremote"); fl = self.lab("Lbld")
            A(f"s_cmp_lg_u32 s101, 0\ns_cbranch_scc1 {rem}")
            bloads(self.gmod)
            A(f"s_branch {fl}\n{rem}:")
            bloads("sc1")
            A(f"{fl}:")
        else:
            bloads("sc1")
        if self.HA:
            l = self.lab("Lhb")
            A(f"s_cmp_lg_u32 s47, 0\ns_cbranch_scc1 {l}\ns_mov_b32 s47, 1")
            self.arrive(C_HB, want_old=False)
            A(f"{l}:")
        if 3 in self.gateA:
            self.gate(3, self.gateA)
            A(f"s_mov_b32 s{sGATE}, 0")
        A("s_waitcnt vmcnt(4)")
        self.untag([vML], vT + 16)
        fill = self.untag_list([vO + 4*n for n in range(4)], vT + 16, first=False)
        A(f"v_mov_b32 v{vT}, v{vML}\ns_waitcnt vmcnt(0)")
        self.allreduce_in_row(vT, "v_max_f32", fill)
        A(f"v_mov_b32 v{vT+2}, v{vT}")
        self.pad2(fill)
        A(f"""
        v_permlane16_swap_b32 v{vT+2}, v{vT}
        v_max_f32 v{vT}, v{vT}, v{vT+2}
        v_sub_f32 v{vT+4}, v{vML}, v{vT}
        v_mul_f32 v{vT+4}, s45, v{vT+4}
        v_exp_f32 v{vT+4}, v{vT+4}
        s_mov_b32 exec_hi, 0
        ds_write_b32 v10, v{vT+4} offset:{L_WT}
        s_mov_b32 exec_hi, -1
        ds_read_b128 v[{vT+8}:{vT+11}], v11 offset:{L_WT}
        v_mul_f32 v{vT+1}, v{vT+4}, v{vML+1}""")
        self.allreduce_in_row(vT + 1, "v_add_f32", fill)
        A(f"v_mov_b32 v{vT+2}, v{vT+1}")
        self.pad2(fill)
        A(f"""
        v_permlane16_swap_b32 v{vT+2}, v{vT+1}
        v_add_f32 v{vT+1}, v{vT+1}, v{vT+2}
        v_rcp_f32 v{vT+1}, v{vT+1}""")
        A("\n".join(fill))
        self.tagtest(vT + 16, rb_)
        self.stamp(7)
        A("s_waitcnt lgkmcnt(0)")
        acc = vT + 4
        for n in range(4):
            w = vT + 8 + (n & ~1)
            os_ = f"op_sel:[0,{n&1}] op_sel_hi:[1,{n&1}]" if n == 0 else f"op_sel:[0,{n&1},0] op_sel_hi:[1,{n&1},1]"
            for h in (0, 2):
                if n == 0:
                    A(f"v_pk_mul_f32 v[{acc+h}:{acc+h+1}], v[{vO+h}:{vO+h+1}], v[{w}:{w+1}] {os_}")
                else:
                    A(f"v_pk_fma_f32 v[{acc+h}:{acc+h+1}], v[{vO+4*n+h}:{vO+4*n+h+1}], v[{w}:{w+1}], v[{acc+h}:{acc+h+1}] {os_}")
        self.reduce_scatter_rows(acc)
        A(f"""
        s_nop 1
        v_add_f32_dpp v{acc}, v{acc}, v{acc} row_ror:8 row_mask:0xf bank_mask:0xf
        v_mov_b32 v1, {C_FO}
        v_mul_f32 v{acc}, v{acc}, v{vT+1}
        v_mov_b32 v2, 1
        v_cvt_pk_bf16_f32 v{acc}, v{acc}, v{acc}""")
        self.exec_set(0x00FF00FF00FF00FF)
        A(f"""
        ds_write_b16 v12, v{acc} offset:{L_VEC}
        s_mov_b64 exec, 1
        ds_add_u32 v1, v2
        s_mov_b64 exec, -1""")
        self.stamp(8)
        if 'diag' in self.abl:
            l = self.lab("Ldg")
            if 'diagx' in self.abl:
                A(f"s_getreg_b32 s41, hwreg(HW_REG_XCC_ID, 0, 4)\ns_cmp_eq_u32 s41, s{sX}")
            else:
                A("s_cmp_eq_u32 s101, 0")
            A(f"""
            s_cbranch_scc1 L_adone
            s_memrealtime s[42:43]
            s_waitcnt lgkmcnt(0)
            s_add_u32 s40, s42, 2000
            {l}:
            s_memrealtime s[42:43]
            s_waitcnt lgkmcnt(0)
            s_sub_u32 s41, s42, s40
            s_cmp_lt_i32 s41, 0
            s_cbranch_scc1 {l}""")
        A("L_adone:")
        self.write_stamps(14)
        A("s_endpgm")
        A(f"""
        L_ffn:
        s_cmp_eq_u32 s{sW}, 2
        s_cbranch_scc0 L_adone""")
        if self.localD:
            l = self.lab("Lxt")
            A(f"""
            s_getreg_b32 s45, hwreg(HW_REG_XCC_ID, 0, 4)
            s_lshl_b32 s45, s45, 28
            s_xor_b32 s42, s45, s{sT32}
            s_mov_b32 s43, s42
            s_lshl_b32 s40, s{sG}, 7
            s_add_u32 s40, s40, {WS_XT:#x}
            s_lshl2_add_u32 s41, s{sY}, s40
            s_mov_b64 exec, 1
            v_mov_b32 v1, s41
            v_mov_b32 v2, s42
            global_store_dword v1, v2, s[26:27] sc1
            s_mov_b64 exec, -1
            s_add_u32 s41, s40, 64
            s_mov_b32 s{sSPIN}, 0
            {l}:
            s_sleep 24
            s_load_dwordx16 s[{sP}:{sP+15}], s[26:27], s40 glc
            s_load_dwordx16 s[4:19], s[26:27], s41 glc
            s_add_u32 s{sSPIN}, s{sSPIN}, 1
            s_cmp_gt_u32 s{sSPIN}, {SPIN_MAX}
            s_cbranch_scc1 L_end
            s_waitcnt lgkmcnt(0)""")
            pairs = [sP + 2*i for i in range(8)] + [4 + 2*i for i in range(6)]
            for p in pairs:
                A(f"s_xor_b64 s[{p}:{p+1}], s[{p}:{p+1}], s[42:43]")
            for p in pairs[1:]:
                A(f"s_or_b64 s[{sP}:{sP+1}], s[{sP}:{sP+1}], s[{p}:{p+1}]")
            A(f"""
            s_or_b32 s101, s{sP}, s{sP+1}
            s_and_b32 s{sP}, s101, 0x0fffffff
            s_cbranch_scc1 {l}""")
        if 'noffn' in self.abl:
            A("s_branch L_adone")
        self.red_publish(L_RG, 1024, C_G, 64, f"""
            s_sub_u32 s41, s{sUP}, s{sTL}
            s_lshl2_add_u32 s40, s{sTL}, s{sRB}
            s_lshl_b32 s40, s40, 10
            s_add_u32 s40, s40, {WS_BD:#x}
            v_add_u32 v11, s40, v10
            v_lshrrev_b32 v13, 5, v0
            s_lshl_b32 s42, s41, 12
            v_mul_lo_u32 v12, s42, v13
            v_add_u32 v11, v11, v12
            s_lshl_b32 s40, s{sTL}, 5
            s_add_u32 s40, s40, s{sRB}
            s_lshl_b32 s40, s40, 2
            s_lshl_b32 s42, s41, 7
            s_add_u32 s42, s42, 16
            v_mul_lo_u32 v12, s42, v0
            v_add_u32 v12, s40, v12
            s_movk_i32 s40, {WS_FLD:#x}""", 2, 12, sleep=1, local=self.localD)
        self.gate(1, self.gateF)
        self.stamp(5)
        A(f"""
        s_lshl_b32 s40, s{sTL}, 12
        s_add_u32 s40, s40, {WS_BD:#x}
        v_add_u32 v{vA0}, s40, v10
        v_and_b32 v1, 1, v0
        v_lshl_add_u32 v1, v1, 1, v13
        v_and_b32 v2, 30, v0
        v_lshl_add_u32 v12, v1, 6, v2
        s_lshl_b32 s40, s{sTL}, 7
        s_add_u32 s40, s40, {WS_FLD:#x}""")
        self.flag_poll(8)
        self.stamp(6)
        rd = self.lab("Lgd")
        G = 56
        A(f"s_mov_b32 s47, 0\n{rd}:")
        def dloads(mod):
            for n in range(4):
                A(f"global_load_dwordx4 v[{G+4*n}:{G+4*n+3}], v{vA0}, s[26:27] offset:{1024*n} {mod}")
        if self.localD:
            rem = self.lab("Lremote"); fl = self.lab("Ldld")
            A(f"s_cmp_lg_u32 s101, 0\ns_cbranch_scc1 {rem}")
            dloads(self.gmod)
            A(f"s_branch {fl}\n{rem}:")
            dloads("sc1")
            A(f"{fl}:")
        else:
            dloads("sc1")
        if self.HF:
            l = self.lab("Lhb")
            A(f"s_cmp_lg_u32 s47, 0\ns_cbranch_scc1 {l}\ns_mov_b32 s47, 1")
            self.arrive(C_HB, want_old=False)
            A(f"{l}:")
        if 2 in self.gateF:
            self.gate(2, self.gateF)
            A(f"s_mov_b32 s{sGATE}, 0")
        self.untag([G + 4*n for n in range(4)], vT, counted=True)
        self.tagtest(vT, rd)
        self.stamp(7)
        for h in (0, 2):
            A(f"v_pk_add_f32 v[{G+h}:{G+h+1}], v[{G+h}:{G+h+1}], v[{G+4+h}:{G+5+h}]")
            A(f"v_pk_add_f32 v[{G+8+h}:{G+9+h}], v[{G+8+h}:{G+9+h}], v[{G+12+h}:{G+13+h}]")
        for h in (0, 2):
            A(f"v_pk_add_f32 v[{G+h}:{G+h+1}], v[{G+h}:{G+h+1}], v[{G+8+h}:{G+9+h}]")
        c1 = -2.0 * 0.7978845608028654 * LOG2E
        c2 = c1 * 0.044715
        A(f"""
        v_cvt_pk_bf16_f32 v{G}, v{G}, v{G+1}
        v_cvt_pk_bf16_f32 v{G+1}, v{G+2}, v{G+3}
        s_mov_b32 s46, {f2u(c2):#x}
        v_mov_b32 v{vT+4}, {f2u(c1):#x}
        v_permlane32_swap_b32 v{G}, v{G+1}
        v_lshlrev_b32 v{G+2}, 16, v{G}
        v_and_b32 v{G+3}, 0xffff0000, v{G}
        v_pk_mul_f32 v[{vT}:{vT+1}], v[{G+2}:{G+3}], v[{G+2}:{G+3}]
        v_fma_f32 v{vT}, v{vT}, s46, v{vT+4}
        v_fma_f32 v{vT+1}, v{vT+1}, s46, v{vT+4}
        v_pk_mul_f32 v[{vT}:{vT+1}], v[{vT}:{vT+1}], v[{G+2}:{G+3}]
        v_exp_f32 v{vT}, v{vT}
        v_exp_f32 v{vT+1}, v{vT+1}
        v_lshlrev_b32 v{G+4}, 16, v{G+1}
        v_add_f32 v{vT}, 1.0, v{vT}
        v_add_f32 v{vT+1}, 1.0, v{vT+1}
        v_rcp_f32 v{vT}, v{vT}
        v_rcp_f32 v{vT+1}, v{vT+1}
        v_and_b32 v{G+5}, 0xffff0000, v{G+1}
        v_pk_mul_f32 v[{G+2}:{G+3}], v[{G+2}:{G+3}], v[{vT}:{vT+1}]
        v_cvt_pk_bf16_f32 v{G}, v{G+2}, v{G+3}
        v_lshlrev_b32 v{G+2}, 16, v{G}
        v_and_b32 v{G+3}, 0xffff0000, v{G}
        v_pk_mul_f32 v[{G+2}:{G+3}], v[{G+2}:{G+3}], v[{G+4}:{G+5}]
        v_mov_b32 v1, {C_FO}
        v_cvt_pk_bf16_f32 v{G}, v{G+2}, v{G+3}
        v_mov_b32 v2, 1
        ds_write_b16 v12, v{G} offset:{L_VEC}
        ds_write_b16_d16_hi v12, v{G} offset:{L_VEC+32}
        s_mov_b64 exec, 1
        ds_write_b32 v1, v2
        s_mov_b64 exec, -1""")
        self.stamp(8)
        A("s_branch L_adone")

    def final(self):
        A = self.A
        vI, vJ, vT = 4, 5, 16
        G0, G1 = 56, 60
        A(f"""
        L_final:
        s_mov_b32 s42, s{sR}
        s_lshl_b32 s43, s42, 7
        v_lshl_add_u32 v8, v0, 1, s43
        global_load_ushort v9, v8, s[4:5]""")
        if 'nofinal' in self.abl:
            A("s_branch L_adone")
        A(f"""
        s_and_b32 s41, s{sW}, 3
        s_cmp_lt_u32 s{sW}, 4
        s_cselect_b32 s46, 0, {WS_BF - WS_BS:#x}
        s_cselect_b32 s47, {28*ROWP}, 0
        s_cselect_b32 s93, -1, 0xffff
        s_mov_b32 s92, -1
        s_mul_i32 s40, s41, {ROWP}
        s_add_u32 s40, s40, s46
        s_lshl_b32 s43, s42, 8
        s_add_u32 s40, s40, s43
        s_add_u32 s46, s40, {WS_BS:#x}
        s_add_u32 s47, s47, s46
        v_mul_u32_u24 v1, {4*ROWP}, v{vJ}
        v_lshl_add_u32 v1, v{vI}, 4, v1
        v_add_u32 v6, s46, v1
        v_add_u32 v7, {16*ROWP}, v6
        v_lshl_add_u32 v10, v{vI}, 2, v{vJ}
        v_lshlrev_b32 v10, 5, v10
        s_lshl_b32 s40, s{sW}, 2
        v_add_u32 v10, s40, v10
        v_lshlrev_b32 v11, 5, v0
        v_mov_b32 v12, {C_F1}
        v_mov_b32 v13, 1
        s_waitcnt vmcnt(0)
        v_lshlrev_b32 v9, 16, v9""")
        for r in range(4):
            A(f"v_mov_b32 v{G1+r}, v3")
        if self.flocal:
            lf = self.lab("Lfl"); ns = self.lab("Lnfl")
            A(f"""
            s_cmp_lt_u32 s{sW}, 4
            s_cbranch_scc1 {ns}""")
            if self.flocal == 'xt':
                self.get_loc(sleep=4)
                A(f"s_cmp_lg_u32 s101, 0\ns_cbranch_scc1 {ns}")
            A(f"""
            s_mov_b32 s{sSPIN}, 0
            {lf}:
            s_sleep {self.fls}
            global_load_dwordx4 v[{G0}:{G0+3}], v6, s[26:27] {self.fmod}
            s_mov_b64 exec, s[92:93]
            global_load_dwordx4 v[{G1}:{G1+3}], v7, s[26:27] {self.fmod}
            s_mov_b64 exec, -1
            s_add_u32 s{sSPIN}, s{sSPIN}, 1
            s_cmp_gt_u32 s{sSPIN}, {SPIN_MAX}
            s_cbranch_scc1 L_end
            s_waitcnt vmcnt(0)
            v_bitop3_b32 v{vT}, v{G0}, v{G0+3}, s{sT10} bitop3:0x7e
            v_and_b32 v{vT}, s44, v{vT}
            v_cmp_eq_u32 vcc, 0, v{vT}
            s_nop 4
            s_cbranch_vccz {lf}
            s_branch L_fvec
            {ns}:""")
        l = self.lab("Lfp"); r_ = self.lab("Lfr")
        A(f"""
        s_add_u32 s40, s26, s46
        s_addc_u32 s41, s27, 0
        s_mov_b32 s{sSPIN}, 0
        s_branch {l}
        {r_}:
        s_cmp_lg_u32 s43, 0
        s_cbranch_scc1 {l}
        s_sleep {self.fsleep}
        {l}:""")
        for k in range(7):
            A(f"s_load_dword s{48+k}, s[40:41], {4*k*ROWP} glc")
        A(f"""
        s_load_dword s55, s[26:27], s47 glc
        s_add_u32 s{sSPIN}, s{sSPIN}, 1
        s_cmp_gt_u32 s{sSPIN}, {SPIN_MAX}
        s_cbranch_scc1 L_end
        s_waitcnt lgkmcnt(0)""")
        A("s_mov_b32 s43, 0")
        for k in range(8):
            A(f"s_and_b32 s{48+k}, s{48+k}, s44\ns_cmp_eq_u32 s{48+k}, s{sT10}\ns_addc_u32 s43, s43, 0")
        A(f"s_cmp_ge_u32 s43, {self.fthr}\ns_cbranch_scc0 {r_}")
        A("L_fvec:")
        self.stamp(9)
        rg = self.lab("Lfg")
        loads = f"""
            s_or_b64 exec, s[48:49], 1
            global_load_dwordx4 v[{G0}:{G0+3}], v6, s[26:27] {self.fmod if self.flocal else 'sc1'}
            s_or_b64 exec, s[92:93], 1
            global_load_dwordx4 v[{G1}:{G1+3}], v7, s[26:27] {self.fmod if self.flocal else 'sc1'}
            s_mov_b64 exec, -1"""
        A("s_mov_b64 s[48:49], -1")
        for k in range(self.fdepth - 1):
            A(loads)
        A(f"{rg}:")
        A(loads)
        A(f"s_waitcnt vmcnt({2*(self.fdepth - 1)})")
        for i, k in enumerate((G0, G1)):
            A(f"v_bitop3_b32 v{vT+2*i}, v{k}, v{k+1}, s{sT10} bitop3:0x7e")
            A(f"v_bitop3_b32 v{vT+2*i+1}, v{k+2}, v{k+3}, s{sT10} bitop3:0x7e")
        for i in range(2):
            A(f"v_bitop3_b32 v{vT+2*i}, v{vT+2*i}, v{vT+2*i+1}, s44 bitop3:0xa8")
        R = vT + 12
        A(f"""
        v_cmp_ne_u32 s[48:49], 0, v{vT}
        v_cmp_ne_u32 s[92:93], 0, v{vT+2}
        s_add_u32 s{sSPIN}, s{sSPIN}, 1
        s_cmp_gt_u32 s{sSPIN}, {SPIN_MAX}
        s_cbranch_scc1 L_end
        s_or_b64 s[40:41], s[48:49], s[92:93]
        s_cbranch_scc1 {rg}""")
        self.stamp(10)
        for k in range(4):
            A(f"v_xor_b32 v{R+k}, s{sT10}, v{G0+k}\nv_xor_b32 v{R+4+k}, s{sT10}, v{G1+k}")
        for h in (0, 2):
            A(f"v_pk_add_f32 v[{R+h}:{R+h+1}], v[{R+h}:{R+h+1}], v[{R+4+h}:{R+5+h}]")
        self.reduce_scatter_rows(R)
        f = vT + 4
        A(f"""
        ds_write_b32 v10, v{R} offset:{L_RF}
        s_mov_b64 exec, 1
        ds_add_rtn_u32 v2, v12, v13
        s_mov_b64 exec, -1
        ds_read_b128 v[{f}:{f+3}], v11 offset:{L_RF}
        ds_read_b128 v[{f+4}:{f+7}], v11 offset:{L_RF+16}
        s_waitcnt lgkmcnt(0)
        v_readfirstlane_b32 s{sTMP}, v2
        s_cmp_eq_u32 s{sTMP}, 7
        s_cbranch_scc0 L_adone
        v_pk_add_f32 v[{f+4}:{f+5}], v[{f+4}:{f+5}], v[{f+6}:{f+7}]
        v_pk_add_f32 v[{f}:{f+1}], v[{f}:{f+1}], v[{f+2}:{f+3}]
        v_add_f32 v{f+2}, v{f+4}, v{f+5}
        v_add_f32 v{f}, v{f}, v{f+1}
        v_cvt_pk_bf16_f32 v{f}, v{f}, v{f+2}
        v_and_b32 v{f+2}, 0xffff0000, v{f}
        v_mul_f32 v{f+3}, {f2u(-LOG2E):#x}, v{f+2}
        v_exp_f32 v{f+3}, v{f+3}
        v_lshlrev_b32 v{f}, 16, v{f}
        v_add_f32 v{f+3}, 1.0, v{f+3}
        v_rcp_f32 v{f+3}, v{f+3}
        s_nop 0
        v_mul_f32 v{f+2}, v{f+2}, v{f+3}""")
        self.bf16_round(f + 2, f + 2)
        A(f"v_mul_f32 v{f}, v{f}, v{f+2}")
        self.bf16_round(f, f)
        A(f"""
        v_add_f32 v{f}, v{f}, v9
        v_cvt_pk_bf16_f32 v{f}, v{f}, v{f}
        global_store_short v8, v{f}, s[22:23] {self.outmod}""")
        A(f"""
        {'s_branch L_mag' if self.mag else ''}
        L_magback:
        s_cmp_lg_u32 s{sR}, 0
        s_cbranch_scc1 L_adone
        s_mov_b64 exec, 1
        v_mov_b32 v1, {WS_E}
        v_mov_b32 v2, s{sT32}
        global_store_dword v1, v2, s[26:27]
        s_branch L_adone""")
        if self.mag:
            what, K = self.mag[:2]
            A(f"""
            L_mag:
            s_memrealtime s[90:91]
            s_sleep 64
            v_lshlrev_b32 v1, 9, v0
            v_add_u32 v1, 0x300000, v1
            global_load_dword v56, v1, s[26:27] sc1
            global_load_dword v57, v1, s[26:27] offset:128 sc1
            global_load_dword v58, v1, s[26:27] offset:256 sc1
            global_load_dword v59, v1, s[26:27] offset:384 sc1
            s_waitcnt vmcnt(0) lgkmcnt(0)
            v_sub_u32 v56, s90, v56
            v_sub_u32 v57, s90, v57
            v_sub_u32 v58, s90, v58
            v_sub_u32 v59, s90, v59
            v_cvt_f32_u32 v56, v56
            v_cvt_f32_u32 v57, v57
            v_cvt_f32_u32 v58, v58
            v_cvt_f32_u32 v59, v59
            v_max3_f32 v60, v56, v57, v58
            v_max_f32 v60, v60, v59
            v_min3_f32 v61, v56, v57, v58
            v_min_f32 v61, v61, v59""")
            self.allreduce_in_row(60, "v_max_f32"); self.allreduce_rows(60, 62, "v_max_f32")
            self.allreduce_in_row(61, "v_min_f32"); self.allreduce_rows(61, 62, "v_min_f32")
            if what == 'ev':
                A("""
                v_add_u32 v1, 0x10000, v1
                global_load_dword v56, v1, s[26:27] sc1
                global_load_dword v57, v1, s[26:27] offset:128 sc1
                global_load_dword v58, v1, s[26:27] offset:256 sc1
                global_load_dword v59, v1, s[26:27] offset:384 sc1
                s_waitcnt vmcnt(0)
                v_sub_u32 v56, s90, v56
                v_sub_u32 v57, s90, v57
                v_sub_u32 v58, s90, v58
                v_sub_u32 v59, s90, v59
                v_cvt_f32_i32 v56, v56
                v_cvt_f32_i32 v57, v57
                v_cvt_f32_i32 v58, v58
                v_cvt_f32_i32 v59, v59
                v_min3_f32 v61, v56, v57, v58
                v_min_f32 v61, v61, v59""")
                self.allreduce_in_row(61, "v_min_f32"); self.allreduce_rows(61, 62, "v_min_f32")
                A("v_sub_f32 v60, v60, v61")
            if what == 'skew':
                A("v_sub_f32 v60, v60, v61")
            elif what == 'max':
                A("v_mov_b32 v60, v61")
            A(f"""
            v_min_f32 v60, 0x44fa0000, v60
            v_cvt_u32_f32 v60, v60
            s_nop 1
            v_readfirstlane_b32 s40, v60
            s_mul_i32 s40, s40, {K}
            s_add_u32 s40, s40, s90
            L_magspin:
            s_memrealtime s[42:43]
            s_waitcnt lgkmcnt(0)
            s_sub_u32 s41, s42, s40
            s_cmp_lt_i32 s41, 0
            s_cbranch_scc1 L_magspin
            s_branch L_magback""")


class Gen(Gen0):
    def __init__(self, ldsb=None, nvo=None, **kw):
        self.ldsb, self.nvo = ldsb, nvo
        super().__init__(**kw)


if __name__ == "__main__":
    import argparse
    ap = argparse.ArgumentParser()
    ap.add_argument("-o", default="recurrent_scan__sliding_block_cached__geglu_ffn__decode.s")

    ap.add_argument("--stamps", action="store_true")
    ap.add_argument("--probe", default=None)
    ap.add_argument("--kw", default="")
    a = ap.parse_args()
    open(a.o, "w").write(Gen(stamps=a.stamps, probe=tuple(map(int, a.probe.split(','))) if a.probe else None, **eval(f'dict({a.kw})')).build())
```

```python
import sys, struct

KN = "recurrent_scan__sliding_block_cached__geglu_ffn__decode_kernel"

def f2u(x):
    return struct.unpack("<I", struct.pack("<f", x))[0]

WS_E   = 0x0
WS_FLD = 0x1000
WS_XT  = 0x3000
WS_XA  = 0x3400
WS_XV  = 0x8000
WS_BML = 0x4000
WS_BQ  = 0x10000
WS_BD  = 0x30000
ROWP   = 4352
WS_BS  = 0x50000
WS_BF  = 0x78000
WS_BO  = 0xA0000
BOP    = 4096 + 128
REPP   = 17 * 128
WS_FLA = 0x130000
WS_FLB = 0x148000
WS_ST  = 0x400000

L_RQ   = 0
L_RG   = L_RQ + 2048
L_QL   = L_RG + 4096
QLP    = 272
L_WT   = L_QL + 2304
L_VEC  = L_WT + 512
L_XQ   = L_VEC + 256
L_XG   = L_XQ + 256
L_RF   = L_XG + 512
L_CNT  = L_RF + 2048
C_Q, C_G, C_X, C_QL, C_HB, C_FO, C_GA, C_B1, C_F1 = [L_CNT + 4*i for i in range(9)]
C_LOC = L_CNT + 36
C_XN, C_K, C_V = L_CNT + 48, L_CNT + 64, L_CNT + 80
L_K    = 12288
L_V    = L_K + 32768
assert L_CNT + 128 <= L_K
LDS_BYTES = L_V + 32768
YF, YL = 16, 30

TAGM = 0x3FF
LOG2E = 1.4426950408889634
SPIN_MAX = 1 << 20

sX, sY, sRB, sHQ, sRBQ, sTL, sG, sCH = 28, 29, 30, 31, 32, 33, 34, 35
sT32, sT10, sSPIN, sTMP = 36, 37, 38, 39
sW = 3
sGATE = 100
sTY, sUP, sR = 97, 98, 99
sP = 48
sSTAMP = 64


HEADER = """
; 56 w_up, 64 w_down, 72 out, 80 debug, 88 ws.
;
;
;   every workgroup : a 128 x 128 tile of wq (q partials, 8 per column)
;   x odd           : kv group x>>1, keys 128*y .. +128 of the window, then a 128 x 256 tile of wo
;   x even, y < 28  : gate / up tiles (256 rows x 128 columns), then a 128 x 256 tile of w_down
;   x even, y >= 28 : final reduction of 64 output columns
; a one-hot selector carrying the vector element of each row.  Waves 0..3 do the layernorm, the hand-offs,
; the attention (running maximum per 32 keys, merged exactly) and the activations.
; bits; a reader re-reads until every tag matches and clears the tag bits before it uses a value.  The words
; other stays in that die's L2 (plain stores); otherwise it is written through (sc1).  Placement costs speed only.
"""


class Gen0:
    def __init__(self, stamps=False, prefetch=True, probe=None, abl='', xnpos=11, nrepA=4, nrepB=4, psleep=1,
                 WA=(6, 6, 5), WF=(6, 8, 8), pause='gather', fthr=6, wtest=None, fsleep=16, upx=2, layout='mix', plain='', gmod='sc1', local=False, touch=False, flagpos='end', HA=0, HF=0, vlate=False, kfirst=True, localD=False, earlyD=False, warm=None, warmO=False, qmap='grp', forceloc=False, xt=False, stag=False, staged=(), stouch=False, sync0=False, mag=None, ftrans=False, flocal=None, fmod='sc1', fls=4, wideg=0, widew=False, wideq=0, xsleep=10, fdepth=2, outmod='', gateA=(1, 1), gateF=(0, 0), WAe=None, WFe=None):
        self.gateA, self.gateF = gateA, gateF
        self.WAe, self.WFe = WAe, WFe
        self.local = local
        self.fdepth = fdepth
        self.touch = touch
        self.warm = warm
        self.staged = staged
        self.stouch = stouch
        self.sync0 = sync0
        self.mag = mag
        self.ftrans, self.flocal, self.fmod, self.fls = ftrans, flocal, fmod, fls
        self.wideg, self.widew, self.wideq = wideg, widew, wideq
        self.xt, self.stag, self.xsleep = xt, stag, xsleep
        if xt:
            forceloc = True
        self.qmap, self.forceloc = qmap, forceloc
        self.warmO = warmO
        self.localD, self.earlyD = localD, earlyD
        self.kfirst = kfirst
        self.flagpos, self.HA, self.HF, self.vlate = flagpos, HA, HF, vlate
        self.outmod = outmod
        assert not local or layout != 'mix'
        self.gmod = gmod
        self.layout = layout
        self.plain = plain
        self.fsleep = fsleep
        self.upx = upx
        self.wtest = wtest
        self.fthr = fthr
        self.L = []
        self.stamps = stamps
        self.prefetch = prefetch
        self.probe = probe
        self.abl = abl
        self.xnpos = xnpos
        self.nrepA, self.nrepB = nrepA, nrepB
        self.psleep = psleep
        self.relwait = False
        self.WA, self.WF = WA, WF
        self.pause = pause
        self.nlab = 0

    def A(self, s):
        for line in s.strip("\n").split("\n"):
            if line.strip():
                self.L.append("    " + line.strip() if not line.strip().endswith(":") else line.strip())

    def lab(self, p="L"):
        self.nlab += 1
        return f"{p}_{self.nlab}"

    def stamp(self, k):
        if self.mag and len(self.mag) > 2:
            if k == self.mag[3]:
                self.A(f"s_memrealtime s[88:89]")
            return
        if self.stamps == 'lite' and k not in (0, 10, 14):
            return
        if self.stamps or (self.probe and k in (0, self.probe[2])):
            self.A(f"s_memrealtime s[{sSTAMP+2*k}:{sSTAMP+2*k+1}]")

    def mask(self, reg, val):
        lo, hi = val & 0xFFFFFFFF, val >> 32
        self.A(f"s_mov_b32 {reg[0]}, {lo:#x}\ns_mov_b32 {reg[1]}, {hi:#x}")

    def exec_set(self, val):
        if val == -1:
            self.A("s_mov_b64 exec, -1")
        elif val <= 64:
            self.A(f"s_mov_b64 exec, {val}")
        elif val < (1 << 31):
            self.A(f"s_mov_b64 exec, {val:#x}")
        else:
            self.mask(("exec_lo", "exec_hi"), val)

    def arrive(self, cnt, want_old=True, inc=1):
        self.A(f"""
        s_mov_b64 exec, 1
        v_mov_b32 v1, {cnt}
        v_mov_b32 v2, {inc}""")
        if want_old:
            self.A(f"""
            ds_add_rtn_u32 v2, v1, v2
            s_waitcnt lgkmcnt(0)
            v_readfirstlane_b32 s{sTMP}, v2""")
        else:
            self.A("ds_add_u32 v1, v2")
        self.A("s_mov_b64 exec, -1")

    def lds_spin(self, cnt, val, sleep=1, reads="", low8=False):
        l = self.lab("Lspin"); d = self.lab("Lgot")
        self.A(f"""
        v_mov_b32 v1, {cnt}
        s_mov_b32 s{sSPIN}, 0
        {l}:
        ds_read_b32 v2, v1
        {reads}
        s_add_u32 s{sSPIN}, s{sSPIN}, 1
        s_cmp_gt_u32 s{sSPIN}, {SPIN_MAX}
        s_cbranch_scc1 L_end
        s_waitcnt lgkmcnt(0)
        v_readfirstlane_b32 s{sTMP}, v2""")
        if low8:
            self.A(f"s_lshr_b32 s101, s{sTMP}, 8\ns_and_b32 s{sTMP}, s{sTMP}, 0xff")
        if sleep:
            self.A(f"s_cmp_eq_u32 s{sTMP}, {val}\ns_cbranch_scc1 {d}\ns_sleep {sleep}\ns_branch {l}\n{d}:")
        else:
            self.A(f"s_cmp_eq_u32 s{sTMP}, {val}\ns_cbranch_scc0 {l}")

    def flag_poll(self, n, two=False):
        if 'nopoll' in self.abl:
            return
        l = self.lab("Lpoll"); r = self.lab("Lretry"); d = self.lab("Lflag")
        self.A(f"""
        s_mov_b32 s{sSPIN}, 0
        s_mov_b32 s42, s{sT32}
        s_mov_b32 s43, s{sT32}
        s_branch {l}
        {r}:
        s_sleep {self.psleep}
        {l}:
        s_load_dwordx{n} s[{sP}:{sP+n-1}], s[26:27], s40 glc
        {'s_load_dwordx16 s[4:19], s[26:27], s41 glc' if two else ''}
        s_add_u32 s{sSPIN}, s{sSPIN}, 1
        s_cmp_gt_u32 s{sSPIN}, {SPIN_MAX}
        s_cbranch_scc1 L_end
        s_waitcnt lgkmcnt(0)""")
        for b in ((sP, 4) if two else (sP,)):
            for i in range(0, n, 2):
                self.A(f"s_cmp_eq_u64 s[{b+i}:{b+i+1}], s[42:43]\ns_cbranch_scc0 {r}")
        self.A(f"{d}:")

    def gate(self, k, used):
        if k not in used:
            return
        l = self.lab("Lgate")
        self.A(f"s_cmp_eq_u32 s{sGATE}, {k}\ns_cbranch_scc0 {l}")
        self.arrive(C_GA, want_old=False)
        self.A(f"{l}:")

    def get_loc(self, vreg=None, sleep=0):
        l = self.lab("Lloc")
        if vreg is not None:
            self.A(f"v_readfirstlane_b32 s101, v{vreg}\ns_cmp_lg_u32 s101, 0\ns_cbranch_scc1 {l}_d")
        self.A(f"""
        v_mov_b32 v1, {C_LOC}
        s_mov_b32 s{sSPIN}, 0
        {l}:
        {f's_sleep {sleep}' if sleep else ''}
        ds_read_b32 v2, v1
        s_add_u32 s{sSPIN}, s{sSPIN}, 1
        s_cmp_gt_u32 s{sSPIN}, {SPIN_MAX}
        s_cbranch_scc1 L_end
        s_waitcnt lgkmcnt(0)
        v_readfirstlane_b32 s101, v2
        s_cmp_eq_u32 s101, 0
        s_cbranch_scc1 {l}
        {l}_d:
        s_lshr_b32 s101, s101, 1""")

    def early_flag(self, pos):
        if self.flagpos != pos:
            return
        l = self.lab("Lef")
        self.A(f"s_or_b32 s40, s101, s{sW}\ns_cbranch_scc1 {l}\ns_mov_b32 s40, s95")
        self.flag_store(self.nrepB)
        self.A(f"{l}:")

    def flag_store(self, n, vaddr=None, val=sT32):
        self.exec_set((1 << n) - 1)
        self.A(f"""
        {f'v_mul_u32_u24 v1, {REPP}, v0' if vaddr is None else ''}
        v_add_u32 v1, s40, v{1 if vaddr is None else vaddr}
        v_mov_b32 v2, s{val}
        global_store_dword v1, v2, s[26:27] sc1
        s_mov_b64 exec, -1""")

    def tagcheck(self, regs, vacc, vt):
        first = True
        for r in regs:
            if first:
                self.A(f"v_bitop3_b32 v{vacc}, v{r}, v{r+1}, s{sT10} bitop3:0x7e")
                self.A(f"v_bitop3_b32 v{vt}, v{r+2}, v{r+3}, s{sT10} bitop3:0x7e")
                self.A(f"v_or_b32 v{vacc}, v{vacc}, v{vt}")
                first = False
            else:
                self.A(f"v_bitop3_b32 v{vt}, v{r}, v{r+1}, s{sT10} bitop3:0x7e")
                self.A(f"v_bitop3_b32 v{vt+1}, v{r+2}, v{r+3}, s{sT10} bitop3:0x7e")
                self.A(f"v_or3_b32 v{vacc}, v{vacc}, v{vt}, v{vt+1}")

    def tagcheck2(self, regs, vacc, vt):
        out = []
        for i, r in enumerate(regs):
            d = vacc if i == 0 else vt + (i - 1) % 2
            self.A(f"v_bitop3_b32 v{d}, v{r}, v{r+3}, s{sT10} bitop3:0x7e")
            if i and i % 2 == 0:
                self.A(f"v_or3_b32 v{vacc}, v{vacc}, v{vt}, v{vt+1}")
        if len(regs) % 2 == 0:
            self.A(f"v_or_b32 v{vacc}, v{vacc}, v{vt}")

    def untag_list(self, regs, vacc, first=True):
        out = []
        for i, r in enumerate(regs):
            out += [f"v_xor_b32 v{r+k}, s{sT10}, v{r+k}" for k in range(4)]
            if i == 0 and first:
                out += [f"v_or3_b32 v{vacc}, v{r}, v{r+1}, v{r+2}", f"v_or_b32 v{vacc}, v{vacc}, v{r+3}"]
            else:
                out += [f"v_or3_b32 v{vacc}, v{vacc}, v{r}, v{r+1}", f"v_or3_b32 v{vacc}, v{vacc}, v{r+2}, v{r+3}"]
        return out

    def untag(self, regs, vacc, counted=False):
        ins = self.untag_list(regs, vacc)
        for i in range(len(regs)):
            if counted and i % 2 == 0:
                self.A(f"s_waitcnt vmcnt({max(0, len(regs) - 2 - i)})")
            self.A("\n".join(ins[6*i:6*i+6]))

    def pad2(self, fill):
        if len(fill) >= 2:
            self.A(fill.pop(0) + "\n" + fill.pop(0))
        else:
            self.A("s_nop 1")

    def tagtest(self, vacc, retry):
        if 'notag' in self.abl:
            return
        self.A(f"""
        v_and_b32 v{vacc}, {TAGM:#x}, v{vacc}
        v_cmp_ne_u32 vcc, 0, v{vacc}
        {'s_add_u32 s96, s96, 1' if self.stamps else ''}
        s_add_u32 s{sSPIN}, s{sSPIN}, 1
        s_cmp_gt_u32 s{sSPIN}, {SPIN_MAX}
        s_cbranch_scc1 L_end
        s_nop 1
        s_cbranch_vccnz {retry}""")

    def tag(self, r):
        self.A(f"v_bfi_b32 v{r}, s44, v3, v{r}")

    def reduce_scatter_rows(self, a):
        self.A(f"""
        s_nop 1
        v_permlane32_swap_b32 v{a}, v{a+2}
        v_permlane32_swap_b32 v{a+1}, v{a+3}
        v_add_f32 v{a}, v{a}, v{a+2}
        v_add_f32 v{a+1}, v{a+1}, v{a+3}
        s_nop 1
        v_permlane16_swap_b32 v{a}, v{a+1}
        v_add_f32 v{a}, v{a}, v{a+1}""")

    def allreduce_rows(self, a, t, op):
        self.A(f"""
        v_mov_b32 v{t}, v{a}
        s_nop 1
        v_permlane32_swap_b32 v{t}, v{a}
        {op} v{a}, v{a}, v{t}
        v_mov_b32 v{t}, v{a}
        s_nop 1
        v_permlane16_swap_b32 v{t}, v{a}
        {op} v{a}, v{a}, v{t}""")

    def allreduce_in_row(self, a, op="v_add_f32", fill=None):
        for m in ("quad_perm:[1,0,3,2]", "quad_perm:[2,3,0,1]", "row_half_mirror", "row_mirror"):
            self.pad2(fill if fill is not None else [])
            self.A(f"{op}_dpp v{a}, v{a}, v{a} {m} row_mask:0xf bank_mask:0xf")

    def bf16_round(self, d, s):
        self.A(f"v_cvt_pk_bf16_f32 v{d}, v{s}, v{s}\nv_and_b32 v{d}, 0xffff0000, v{d}")

    def build(self):
        A = self.A
        self.L.append(f"; @launch grid=(256,1,1) block=(512,1,1) lds={getattr(self, 'ldsb', None) or LDS_BYTES}")
        self.L += HEADER.strip("\n").split("\n")
        self.L.append('.amdgcn_target "amdgcn-amd-amdhsa--gfx950"')
        self.L += [".text", f".globl {KN}", ".p2align 12", ".p2align 8", f".type {KN},@function", f"{KN}:"]
        if self.sync0:
            A("""
            s_memrealtime s[40:41]
            s_waitcnt lgkmcnt(0)
            s_lshr_b32 s40, s40, 9
            s_add_u32 s40, s40, 1
            s_lshl_b32 s40, s40, 9
            L_sync0:
            s_memrealtime s[42:43]
            s_waitcnt lgkmcnt(0)
            s_sub_u32 s41, s42, s40
            s_cmp_lt_i32 s41, 0
            s_cbranch_scc1 L_sync0""")
        self.stamp(0)
        if self.mag:
            A("s_memrealtime s[90:91]")
        A(f"""
        s_cmp_ge_u32 s2, 256
        s_cbranch_scc1 L_end
        s_load_dwordx16 s[4:19], s[0:1], 0
        s_load_dwordx8 s[20:27], s[0:1], 64
        v_lshrrev_b32 v1, 6, v0
        s_and_b32 s{sX}, s2, 7
        s_lshr_b32 s{sY}, s2, 3
        v_readfirstlane_b32 s{sW}, v1""")
        if self.prefetch:
            A(f"""
            s_getpc_b64 s[46:47]
            L_pc:
            s_lshl_b32 s42, s{sY}, 9
            v_add_u32 v1, s42, v0
            v_min_u32 v1, L_codeend-L_pc-4, v1
            s_mov_b64 exec, 1
            global_load_ubyte v55, v1, s[46:47]
            s_mov_b64 exec, -1""")
        A(f"""
        v_and_b32 v0, 63, v0
""")
        if self.layout == 'mix':
            A(f"""
            s_lshr_b32 s{sHQ}, s{sY}, 3
            s_lshl2_add_u32 s{sHQ}, s{sX}, s{sHQ}
            s_and_b32 s{sRBQ}, s{sY}, 7
            s_lshr_b32 s{sG}, s{sX}, 1
            s_and_b32 s{sCH}, s{sX}, 1
            s_lshl4_add_u32 s{sCH}, s{sCH}, s{sY}
            s_lshl4_add_u32 s40, s{sX}, s{sY}
            s_mul_i32 s41, s{sX}, 14
            s_add_u32 s41, s41, s{sY}
            s_sub_u32 s41, s41, {YF}
            s_cmp_lt_u32 s{sY}, {YF}
            s_cselect_b32 s40, s40, s41
            s_cselect_b32 s{sTY}, 0, 1
            s_cmp_ge_u32 s{sY}, {YL}
            s_addc_u32 s{sTY}, s{sTY}, 0
            s_lshr_b32 s{sTL}, s40, 2
            s_and_b32 s{sRB}, s40, 3
            s_xor_b32 s{sUP}, s{sTL}, {self.upx}
            s_lshl1_add_u32 s{sR}, s{sX}, s{sY}
            s_sub_u32 s{sR}, s{sR}, {YL}""")
        else:
            if self.layout == 'odd':
                A(f"s_lshr_b32 s{sG}, s{sX}, 1\ns_and_b32 s{sTY}, s{sX}, 1\ns_xor_b32 s{sTY}, s{sTY}, 1")
            else:
                A(f"s_and_b32 s{sG}, s{sX}, 3\ns_lshr_b32 s{sTY}, s{sX}, 2")
                if self.layout == 'hi':
                    A(f"s_xor_b32 s{sTY}, s{sTY}, 1")
            A(f"""
            s_mov_b32 s{sCH}, s{sY}
            s_and_b32 s{sRB}, s{sY}, 3
            s_lshr_b32 s40, s{sY}, 2
            s_lshl3_add_u32 s{sHQ}, s{sG}, s40
            s_lshl2_add_u32 s{sRBQ}, s{sTY}, s{sRB}
            s_mul_i32 s41, s{sG}, s{sTY}
            s_sub_u32 s{sTL}, s{sHQ}, s41
            s_add_u32 s{sUP}, s40, {self.upx}
            s_cmp_ge_u32 s{sUP}, 7
            s_cselect_b32 s41, 7, 0
            s_sub_u32 s{sUP}, s{sUP}, s41
            s_sub_u32 s{sUP}, s{sUP}, s40
            s_add_u32 s{sUP}, s{sUP}, s{sTL}
            s_lshl2_add_u32 s{sR}, s{sG}, s{sRB}
            s_cmp_eq_u32 s40, 7
            s_cselect_b32 s41, s{sTY}, 0
            s_add_u32 s{sTY}, s{sTY}, s41""")
        A(f"""
""")
        if self.ftrans:
            A(f"""
            s_cmp_eq_u32 s{sTY}, 1
            s_cselect_b32 s{sTL}, s{sY}, s{sTL}
            s_cselect_b32 s{sRB}, s{sG}, s{sRB}
            s_xor_b32 s{sUP}, s{sTL}, {self.upx}""")
        A(f"""
        {f's_mov_b32 s{sHQ}, s{sY}' if self.qmap == 'rows' else ''}
        {f's_mov_b32 s{sRBQ}, s{sX}' if self.qmap == 'rows' else ''}
        s_cmp_lt_u32 s{sX}, 2
        s_cselect_b32 s40, {self.gateA[0]}, {self.gateA[1]}
        s_cselect_b32 s41, {self.gateF[0]}, {self.gateF[1]}
        s_cmp_eq_u32 s{sTY}, 0
        s_cselect_b32 s{sGATE}, s40, s41
        s_movk_i32 s44, {TAGM:#x}
        v_and_b32 v4, 15, v0
        v_lshrrev_b32 v5, 4, v0""")
        if self.stamps or self.probe or self.mag:
            A(f"s_mov_b32 s96, 0\ns_mov_b32 s94, s{sW}")
        if self.probe:
            A(f"s_waitcnt lgkmcnt(0)\ns_mov_b32 s{sSTAMP+2*self.probe[2]}, s{sSTAMP}")
        A(f"""
        s_cmp_lt_u32 s{sW}, 4
        s_cbranch_scc1 L_awave""")
        L0 = self.L
        self.L = []
        self.swave()
        cut = self.L.index("L_sdispatch:")
        shead, stail = self.L[:cut], self.L[cut:]
        self.L = L0 + shead
        A("s_branch L_sdispatch\nL_awave:")
        self.awave()
        self.L += stail
        self.final()
        A("L_end:")
        A("s_endpgm")
        self.L.append("L_codeend:")
        nv = getattr(self, 'nvo', None) or 200
        self.L += ['.section .rodata,"a"', ".p2align 6", f".amdhsa_kernel {KN}",
                   f"  .amdhsa_next_free_vgpr {nv}", "  .amdhsa_next_free_sgpr 102", f"  .amdhsa_accum_offset {nv}",
                   "  .amdhsa_group_segment_fixed_size 0", "  .amdhsa_kernarg_size 96", "  .amdhsa_user_sgpr_count 2",
                   "  .amdhsa_user_sgpr_kernarg_segment_ptr 1", "  .amdhsa_system_sgpr_workgroup_id_x 1",
                   "  .amdhsa_float_denorm_mode_32 3", ".end_amdhsa_kernel"]
        return "\n".join(self.L) + "\n"

    def write_stamps(self, n):
        if self.mag and len(self.mag) > 2:
            self.stamp(n)
            d = self.lab("Lmg")
            self.A(f"""
            s_waitcnt lgkmcnt(0)
            s_cmp_eq_u32 s94, {self.mag[2]}
            s_cbranch_scc0 {d}
            s_cmp_eq_u32 s{sTY}, {self.mag[4]}
            s_cbranch_scc0 {d}
            s_lshl_b32 s40, s2, 7
            s_add_u32 s40, s40, 0x310000
            s_mov_b64 exec, 1
            v_mov_b32 v1, s40
            v_mov_b32 v2, s88
            global_store_dword v1, v2, s[26:27] sc1
            {d}:""")
            return
        if self.probe:
            wg, wave, k = self.probe[:3]
            ty = self.probe[3] if len(self.probe) > 3 else None
            self.stamp(n)
            d = self.lab("Lprobe_done"); l = self.lab("Lprobe")
            self.A(f"""
            s_waitcnt lgkmcnt(0)
            s_getreg_b32 s41, hwreg(HW_REG_XCC_ID, 0, 4)
            {f's_cmp_eq_u32 s41, {-wg-100}' if wg <= -100 else f"s_cmp_eq_u32 s2, {wg if wg >= 0 else 's2'}"}
            s_cbranch_scc0 {d}
            s_cmp_eq_u32 s94, {wave}
            s_cbranch_scc0 {d}
            s_cmp_eq_u32 s{sTY}, {ty if ty is not None else f's{sTY}'}
            s_cbranch_scc0 {d}
            s_add_u32 s40, s{sSTAMP+2*k}, 4000
            {l}:
            s_memrealtime s[42:43]
            s_waitcnt lgkmcnt(0)
            s_sub_u32 s41, s42, s40
            s_cmp_lt_i32 s41, 0
            s_cbranch_scc1 {l}
            {d}:""")
            return
        if not self.stamps:
            return
        self.stamp(n)
        A = self.A
        A(f"""
        s_waitcnt lgkmcnt(0)
        s_mov_b64 exec, -1
        s_lshl3_add_u32 s40, s2, s94
        s_lshl_b32 s40, s40, 6
        s_add_u32 s40, s40, {WS_ST:#x}
        v_mov_b32 v1, 0""")
        for k in range(n + 1):
            A(f"v_writelane_b32 v1, s{sSTAMP+2*k}, {k}")
        A(f"""
        s_getreg_b32 s41, hwreg(HW_REG_XCC_ID)
        s_and_b32 s41, s41, 0xf
        s_lshl4_add_u32 s41, s96, s41
        v_writelane_b32 v1, s41, 15
        v_lshl_add_u32 v2, v0, 2, s40
        s_mov_b64 exec, 0xffff
        global_store_dword v2, v1, s[26:27]""")

    def swave(self):
        A = self.A
        vI, vJ = 4, 5
        vAq, vA1, vA2, vA3, vAw, vRed, vPub = 6, 7, 8, 9, 10, 11, 14
        vPS, vXQ, vXG, vSEL, aQ, aG, aU, vT = 16, 24, 28, 36, 40, 44, 48, 52
        RING, BIG = 56, 120
        A(f"""
        L_swave:
        s_sub_u32 s{sW}, s{sW}, 4
        s_lshl2_add_u32 s40, s{sRBQ}, s{sW}
        s_lshl_b32 s40, s40, 18
        s_lshl_b32 s41, s{sHQ}, 8
        s_add_u32 s40, s40, s41
        v_lshlrev_b32 v13, 4, v{vI}
        v_lshl_add_u32 v{vAq}, v{vJ}, 13, v13
        v_add_u32 v{vAq}, s40, v{vAq}
        s_mov_b32 s45, 0x8000""")
        if self.wideq:
            A(f"""
            s_lshl2_add_u32 s40, s2, s{sW}
            s_lshl_b32 s40, s40, 13
            v_lshl_add_u32 v{vAq}, v0, 4, s40
            s_movk_i32 s45, 0x400""")
        A("s_waitcnt lgkmcnt(0)")
        for m in range(8):
            A(f"global_load_dwordx4 v[{RING+4*m}:{RING+4*m+3}], v{vAq}, s[10:11] nt")
            if m < 7:
                A(f"v_add_u32 v{vAq}, s45, v{vAq}")
        A(f"s_load_dword s{sT32}, s[26:27], {WS_E}")
        self.stamp(1)
        A(f"""
        ; wo / down: rows tile*128 + 8*m + (l>>3), columns cb*256 + sw*64 + 8*(l&7)
        v_lshrrev_b32 v12, 3, v0
        v_and_b32 v1, 7, v0
        v_lshlrev_b32 v2, 4, v1
        v_lshl_add_u32 v{vAw}, v12, 11, v2
        s_lshl2_add_u32 s42, s{sRB}, s{sW}
        s_lshl_b32 s40, s42, 7
        s_lshl_b32 s41, s{sTL}, 18
        s_add_u32 s40, s40, s41
        v_add_u32 v{vAw}, s40, v{vAw}
        s_movk_i32 s45, 0x4000""")
        if self.widew:
            A(f"""
            s_lshl_b32 s40, s{sW}, 16
            s_add_u32 s41, s41, s40
            s_lshl_b32 s40, s{sRB}, 9
            s_add_u32 s41, s41, s40
            v_lshrrev_b32 v2, 5, v0
            v_lshlrev_b32 v2, 11, v2
            v_and_b32 v{vAw}, 31, v0
            v_lshl_add_u32 v{vAw}, v{vAw}, 4, v2
            v_add_u32 v{vAw}, s41, v{vAw}
            s_movk_i32 s45, 0x1000""")
        A(f"""
        v_lshl_add_u32 v1, v1, 1, v{vJ}
        s_lshl_b32 s40, s42, 8
        v_lshl_add_u32 v{vPub}, v1, 4, s40
        ; LDS offset of this lane's partial granule: (2*(l&15) + J)*16
        v_lshl_add_u32 v{vRed}, v{vI}, 1, v{vJ}
        v_lshlrev_b32 v{vRed}, 4, v{vRed}
        s_mov_b32 s40, 0xaaaaaaaa
        s_mov_b32 s41, 0xaaaaaaaa
        v_mov_b32 v1, 0x0c0c0100
        v_mov_b32 v2, 0x01000c0c
        v_cndmask_b32 v1, v1, v2, s[40:41]
        v_mov_b32 v2, 0x0c0c0302
        v_mov_b32 v3, 0x03020c0c
        v_cndmask_b32 v2, v2, v3, s[40:41]
        v_mov_b32 v3, 0x0c0c0c0c""")
        for d in range(4):
            m = 0x03030303 << (2*d)
            A(f"""
            s_mov_b32 s40, {m:#x}
            s_mov_b32 s41, {m:#x}
            v_cndmask_b32 v{vPS+d}, v3, v1, s[40:41]
            v_cndmask_b32 v{vPS+4+d}, v3, v2, s[40:41]""")
        A(f"""
        s_barrier
        s_waitcnt lgkmcnt(0)
        s_add_u32 s{sT32}, s{sT32}, 1
        s_and_b32 s{sT10}, s{sT32}, s44
        v_mov_b32 v3, s{sT10}
        s_cmp_ge_u32 s{sTY}, 1
        s_cbranch_scc1 L_s_notattn
        L_sdispatch:""")

        def sel(m, dst, src):
            for d in range(4):
                A(f"v_perm_b32 v{dst+d}, v{src+(m>>1)}, v{src+(m>>1)}, v{vPS+4*(m&1)+d}")

        def mfma(acc, s, w, first):
            c = "0" if first else f"v[{acc}:{acc+3}]"
            A(f"v_mfma_f32_16x16x32_bf16 v[{acc}:{acc+3}], v[{s}:{s+3}], v[{w}:{w+3}], {c}")

        def get_xn(ffn):
            A(f"s_lshl_b32 s41, s{sW}, 2\ns_add_u32 s41, s41, {C_XN}")
            self.lds_spin("s41", 1, sleep=0)
            A(f"""
            s_lshl_b32 s40, s{sW}, 6
            v_lshl_add_u32 v2, v{vJ}, 4, s40
            ds_read_b128 v[{vXQ}:{vXQ+3}], v2 offset:{L_XQ}""")
            if ffn:
                A(f"""
                v_lshlrev_b32 v2, 1, v2
                ds_read_b128 v[{vXG}:{vXG+3}], v2 offset:{L_XG}
                ds_read_b128 v[{vXG+4}:{vXG+7}], v2 offset:{L_XG+16}""")
            A("s_waitcnt lgkmcnt(0)")
            self.stamp(3)
            sel(0, vSEL, vXQ)
            A("s_nop 1")

        def red_write(accs, lbase, shift, cnt):
            A(f"s_lshl_b32 s40, s{sW}, {shift}\nv_add_u32 v1, s40, v{vRed}\ns_mov_b32 exec_hi, 0")
            for i, a in enumerate(accs):
                A(f"ds_write_b128 v1, v[{a}:{a+3}] offset:{lbase + 512*i}")
            self.arrive(cnt, want_old=False)

        def kvflag(c):
            A(f"""
            s_lshl_b32 s40, s{sW}, 2
            s_mov_b64 exec, 1
            v_mov_b32 v1, s40
            v_mov_b32 v2, 1
            ds_write_b32 v1, v2 offset:{c}
            s_mov_b64 exec, -1""")

        def issue(op, i):
            kind, m = op
            slot = RING + 4*(i % 16)
            if kind in "kv":
                va, sb, x = (vA1, 6, 64*(m & 3)) if kind == "k" else (vA2, 8, 128*(m & 1))
                if m % 4 == 0:
                    if i > 8:
                        A(f"s_add_u32 s47, s47, {4096 if m == 4 else L_V - L_K - 4096}")
                    A("s_mov_b32 m0, s47")
                    if m == 4:
                        A(f"v_add_u32 v{va}, 4096, v{va}")
                A(f"v_xor_b32 v1, {x}, v{va}")
                A(f"global_load_lds_dwordx4 v1, s[{sb}:{sb+1}] offset:{1024*(m&3)} nt")
            elif kind in "gu":
                va, sb = (vA1, 16) if kind == "g" else (vA2, 18)
                A(f"global_load_dwordx4 v[{slot}:{slot+3}], v{va}, s[{sb}:{sb+1}] nt")
                if m < 15:
                    A(f"v_add_u32 v{va}, s{47 if (self.stag and m % 2) else 46}, v{va}")
            elif kind in "do":
                sb = 20 if kind == "d" else 12
                A(f"global_load_dwordx4 v[{BIG+4*m}:{BIG+4*m+3}], v{vAw}, s[{sb}:{sb+1}] nt")
                if m < 15:
                    A(f"v_add_u32 v{vAw}, s45, v{vAw}")

        def process(op, i, ffn):
            kind, m = op
            slot = RING + 4*(i % 16)
            if kind == "q":
                mfma(aQ, vSEL, slot, m == 0)
                if m < 7:
                    sel(m + 1, vSEL, vXQ)
                    A("s_nop 1")
                else:
                    if ffn:
                        sel(0, vSEL, vXG)
                        A("s_nop 0")
                    else:
                        A("s_nop 4")
                    red_write([aQ], L_RQ, 9, C_Q)
                    self.stamp(4)
            elif kind in "kv" and m == 7:
                l = self.lab("Lkvf")
                if self.after_pause:
                    A(f"s_cmp_lg_u32 s43, 0\ns_cbranch_scc1 {l}")
                kvflag(C_K if kind == "k" else C_V)
                if kind == "v":
                    self.stamp(5)
                A(f"{l}:")
            elif kind == "g":
                mfma(aG, vSEL, slot, m == 0)
            elif kind == "u":
                mfma(aU, vSEL, slot, m == 0)
                if m < 15:
                    sel(m + 1, vSEL, vXG)
                    A("s_nop 1")
                else:
                    A("s_nop 4")
                    red_write([aG, aU], L_RG, 10, C_G)
                    self.stamp(6)

        def stream(ops, wfun, ffn, start=8, landed=0, hold=0, holdcnt=0):
            if 'noa' in self.abl or 'nofin' in self.abl:
                hold = 0
            for i in range(start, len(ops)):
                w = wfun(i)
                if hold and i == len(ops) - hold:
                    assert landed >= start
                    self.lds_spin(C_HB, holdcnt, sleep=1)
                if hold and i >= len(ops) - hold:
                    w = max(w, hold)
                A(f"s_waitcnt vmcnt({w-1})")
                issue(ops[i], i)
                if i < self.xnpos:
                    continue
                if i == self.xnpos:
                    get_xn(ffn)
                while landed <= i - w:
                    process(ops[landed], landed, ffn); landed += 1
            return landed

        def drain(ops, landed, upto, ffn):
            n = len(ops)
            while landed < upto:
                if ops[landed][0] in "qgu":
                    A(f"s_waitcnt vmcnt({n - 1 - landed})")
                    process(ops[landed], landed, ffn)
                landed += 1
            return landed

        def final_gemv(val, first, nops, landed, wsb):
            A(f"""
            v_lshlrev_b32 v15, 5, v12
            s_mul_i32 s40, s{sTL}, {ROWP}
            s_add_u32 s40, s40, {wsb:#x}
            v_add_u32 v{vPub}, s40, v{vPub}""")
            floc = self.flocal == 'xt' and wsb == WS_BF
            if floc:
                self.get_loc()
            rd = f"ds_read_b128 v[{vXG}:{vXG+3}], v15 offset:{L_VEC}\nds_read_b128 v[{vXG+4}:{vXG+7}], v15 offset:{L_VEC+16}"
            if 'noa' not in self.abl and 'nofin' not in self.abl:
                self.lds_spin(C_FO, val, sleep=0, reads=rd)
            else:
                A(rd + "\ns_waitcnt lgkmcnt(0)")
            self.stamp(8)
            self.L.append(".p2align 3")
            sel(0, RING, vXG)
            for m in range(16):
                if m < 15:
                    sel(m + 1, RING + 4*(m + 1), vXG)
                else:
                    self.stamp(9)
                if first + m >= landed:
                    A(f"s_waitcnt vmcnt({nops - 1 - (first + m)})")
                    if m < 15:
                        A("s_nop 0")
                mfma(aQ, RING + 4*m, BIG + 4*m, m == 0)
            g = vT
            A(f"""
            s_nop 7
            v_permlane32_swap_b32 v{aQ}, v{aQ+2}
            v_permlane32_swap_b32 v{aQ+1}, v{aQ+3}
            s_nop 0
            v_add_f32_dpp v{g}, v{aQ+2}, v{aQ} row_shl:8 row_mask:0xf bank_mask:0xf bound_ctrl:1
            v_add_f32_dpp v{g+1}, v{aQ+3}, v{aQ+1} row_shl:8 row_mask:0xf bank_mask:0xf bound_ctrl:1""")
            self.tag(g); self.tag(g + 1)
            A(f"""
            s_nop 0
            v_permlane32_swap_b32 v{g}, v{g+2}
            v_permlane32_swap_b32 v{g+1}, v{g+3}
            s_mov_b64 exec, 0x00ff00ff""")
            if floc:
                l = self.lab("Lfrem")
                A(f"""
                s_cmp_lg_u32 s101, 0
                s_cbranch_scc1 {l}
                global_store_dwordx4 v{vPub}, v[{g}:{g+3}], s[26:27]
                s_branch {l}_d
                {l}:
                global_store_dwordx4 v{vPub}, v[{g}:{g+3}], s[26:27] sc1
                {l}_d:""")
            else:
                A(f"global_store_dwordx4 v{vPub}, v[{g}:{g+3}], s[26:27] {'' if (self.flocal == 'force' and wsb == WS_BF) else 'sc1'}")
            A("s_mov_b64 exec, -1")

        qops = [("q", m) for m in range(8)]
        A(f"""
        s_lshl_b32 s40, s{sG}, 24
        s_lshl_b32 s41, s{sCH}, 15
        s_add_u32 s40, s40, s41
        s_lshl_b32 s47, s{sW}, 13
        s_add_u32 s40, s40, s47
        s_add_u32 s47, s47, {L_K}
        s_add_u32 s40, s40, {(65536-4096)*256:#x}
        v_xor_b32 v1, v{vI}, v{vJ}
        v_lshlrev_b32 v1, 4, v1
        v_lshl_add_u32 v1, v{vJ}, 8, v1
        v_add_u32 v{vA1}, s40, v1
        v_lshlrev_b32 v1, 1, v{vJ}
        v_xor_b32 v1, v{vI}, v1
        v_lshlrev_b32 v1, 4, v1
        v_lshl_add_u32 v1, v{vJ}, 8, v1
        v_add_u32 v{vA2}, s40, v1""")
        ops = qops + [("k", m) for m in range(8)] + [("v", m) for m in range(8)]
        WA = self.WA
        self.after_pause = False
        landed = stream(ops, lambda i: WA[0] if i < 14 else WA[1], False)
        self.after_pause = True
        A("s_mov_b32 s43, 0")
        if self.pause and 'noa' not in self.abl:
            go = self.lab("Lgo")
            if 0 in self.gateA:
                A(f"s_cmp_eq_u32 s{sGATE}, 0\ns_cbranch_scc1 {go}")
            A(f"""
            v_mov_b32 v1, {C_GA}
            ds_read_b32 v2, v1
            s_waitcnt lgkmcnt(0)
            v_readfirstlane_b32 s{sTMP}, v2
            s_cmp_eq_u32 s{sTMP}, 4
            s_cbranch_scc1 {go}""")
            for c in self.staged:
                A(f"""
                s_waitcnt vmcnt({c})
                ds_read_b32 v2, v1
                s_waitcnt lgkmcnt(0)
                v_readfirstlane_b32 s{sTMP}, v2
                s_cmp_eq_u32 s{sTMP}, 4
                s_cbranch_scc1 {go}""")
            A(f"""
            s_waitcnt vmcnt(0)
            s_mov_b32 s43, 1""")
            assert landed >= 8
            if landed < 16:
                kvflag(C_K)
            kvflag(C_V)
            self.stamp(5)
            self.lds_spin(C_GA, 4, sleep=1)
            A(f"{go}:")
            self.stamp(6)
        ops = ops + [("o", m) for m in range(16)]
        for w3 in ([self.WAe, WA[2]] if self.WAe else [WA[2]]):
            nxt = self.lab("Lsa")
            if self.WAe and w3 == self.WAe:
                A(f"s_cmp_lt_u32 s{sX}, 2\ns_cbranch_scc0 {nxt}")
            l2 = stream(ops, lambda i: w3 if (i < 32 or len(WA) < 4) else WA[3], False, start=24, landed=landed, hold=self.HA, holdcnt=4)
            assert l2 >= 24
            self.stamp(7)
            final_gemv(4, 24, 40, l2, WS_BS)
            self.write_stamps(10)
            A(f"s_endpgm\n{nxt}:")
        A(f"""
        L_s_notattn:
        s_cmp_ge_u32 s{sTY}, 2
        s_cbranch_scc1 L_s_last
        s_lshl2_add_u32 s40, s{sRB}, s{sW}
        s_mul_i32 s40, s40, {64*7168}""")
        if self.stag:
            A(f"""
            s_and_b32 s41, s{sW}, 1
            s_mul_i32 s42, s41, {4*7168}
            s_add_u32 s40, s40, s42""")
        A(f"""
        v_mul_u32_u24 v1, 7168, v{vJ}
        v_add3_u32 v1, v1, v13, s40
        s_lshl_b32 s41, s{sTL}, 8
        v_add_u32 v{vA1}, s41, v1
        s_lshl_b32 s41, s{sUP}, 8
        v_add_u32 v{vA2}, s41, v1
        s_movk_i32 s46, {7168*4}""")
        if self.stag:
            A("s_lshl_b32 s42, s42, 1\ns_add_u32 s47, s46, s42\ns_sub_u32 s46, s46, s42")
        if self.wideg:
            wd = self.wideg; nt = 7168 // wd; rpi = 1024 // wd; lpr = wd // 16
            import math
            A(f"""
            s_lshl2_add_u32 s40, s{sTL}, s{sRB}
            s_mul_hi_u32 s41, s40, {-(-(1 << 32) // nt)}
            s_mul_i32 s42, s41, {nt}
            s_sub_u32 s42, s40, s42
            s_lshl2_add_u32 s41, s41, s{sW}
            s_mul_i32 s41, s41, {16*rpi*7168}
            s_mul_i32 s42, s42, {wd}
            s_add_u32 s41, s41, s42
            v_lshrrev_b32 v1, {int(math.log2(lpr))}, v0
            v_mul_u32_u24 v1, 7168, v1
            v_and_b32 v2, {lpr-1}, v0
            v_lshl_add_u32 v1, v2, 4, v1
            v_add_u32 v{vA1}, s41, v1
            v_mov_b32 v{vA2}, v{vA1}
            s_movk_i32 s46, {7168*rpi}""")
        ops = qops + [(k, m) for m in range(16) for k in "gu"] + [("d", m) for m in range(16)]
        WF = self.WF
        landed = stream(ops[:40], lambda i: WF[0] if i < 14 else WF[1], True)
        gated = self.lab("Lsfg")
        if any(self.gateF) and 'noa' not in self.abl:
            A(f"s_cmp_lg_u32 s{sGATE}, 0\ns_cbranch_scc1 {gated}")
        if 0 in self.gateF or 'noa' in self.abl:
            l2 = stream(ops, lambda i: WF[2] if (i < 48 or len(WF) < 4) else WF[3], True, start=40, landed=landed, hold=self.HF, holdcnt=1)
            assert l2 >= 40
            self.stamp(7)
            final_gemv(1, 40, 56, l2, WS_BF)
            self.write_stamps(10)
            A("s_endpgm")
        if any(self.gateF) and 'noa' not in self.abl:
            A(f"{gated}:")
            l2 = drain(ops[:40], landed, 40, True)
            self.lds_spin(C_GA, 1, sleep=1)
            l2 = stream(ops, lambda i: self.WFe or WF[2], True, start=40, landed=l2)
            self.stamp(7)
            final_gemv(1, 40, 56, l2, WS_BF)
            self.write_stamps(10)
            A("s_endpgm")
        A("L_s_last:")
        get_xn(False)
        drain(qops, 0, 8, False)
        A(f"s_add_u32 s{sW}, s{sW}, 4\ns_branch L_final")

    def red_publish(self, lbase, pitch, cnt, nl, addr_code, nrep, flagv=None, sleep=1, val=sT32, local=False):
        A = self.A
        t = 16
        A("v_lshlrev_b32 v10, 4, v0")
        A(addr_code)
        if local and self.warm is not None:
            self.exec_set(0x0101010101010101)
            A(f"global_load_dword v54, v11, s[26:27] {self.warm}\ns_mov_b64 exec, -1")
        self.lds_spin(cnt, 4, sleep=sleep, reads="\n".join(f"ds_read_b128 v[{t+4*k}:{t+4*k+3}], v10 offset:{lbase+pitch*k}" for k in range(4)))
        if local and self.earlyD:
            l = self.lab("Lef")
            A(f"s_cmp_lg_u32 s101, 0\ns_cbranch_scc1 {l}")
            self.flag_store(nrep, flagv, val)
            A(f"{l}:")
        if nl == 32:
            A("s_mov_b32 exec_hi, 0")
        for h in (0, 2):
            A(f"v_pk_add_f32 v[{t+h}:{t+h+1}], v[{t+h}:{t+h+1}], v[{t+4+h}:{t+5+h}]")
            A(f"v_pk_add_f32 v[{t+8+h}:{t+9+h}], v[{t+8+h}:{t+9+h}], v[{t+12+h}:{t+13+h}]")
        for h in (0, 2):
            A(f"v_pk_add_f32 v[{t+h}:{t+h+1}], v[{t+h}:{t+h+1}], v[{t+8+h}:{t+9+h}]")
        for r in range(4):
            A(f"v_add_u32 v{t+r}, {(TAGM + 1) // 2:#x}, v{t+r}")
        for r in range(4):
            self.tag(t + r)
        if local:
            rem = self.lab("Lremote"); fl = self.lab("Lpub")
            A(f"""
            s_cmp_lg_u32 s101, 0
            s_cbranch_scc1 {rem}
            global_store_dwordx4 v11, v[{t}:{t+3}], s[26:27]
            s_branch {fl if not self.earlyD else fl + '_done'}
            {rem}:
            global_store_dwordx4 v11, v[{t}:{t+3}], s[26:27] sc1
            {fl}:""")
            self.flag_store(nrep, flagv, val)
            A(f"{fl}_done:")
        else:
            A(f"global_store_dwordx4 v11, v[{t}:{t+3}], s[26:27] sc1")
            self.flag_store(nrep, flagv, val)

    def awave(self):
        A = self.A
        vKF, vVF, vGT, vU = 56, 184, 216, 232
        vQF, vS = 216, 16
        vI, vJ = 4, 5
        vA0, vA1 = 6, 7
        vT = 16
        x0, xr = 56, 72
        A(f"""
        s_setprio 3
        s_lshl2_add_u32 s40, s{sRB}, s{sW}
        s_lshl_b32 s40, s40, 6
        v_lshlrev_b32 v14, 5, v0
        v_add_lshl_u32 v1, v0, s40, 1
        s_lshl2_add_u32 s40, s{sRBQ}, s{sW}
        s_lshl_b32 s40, s40, 5
        v_and_b32 v15, 31, v0
        v_add_lshl_u32 v15, v15, s40, 1
        v_mov_b32 v10, 0
        v_and_b32 v2, 31, v0
        v_lshlrev_b32 v2, 2, v2
        ds_write_b32 v2, v10 offset:{L_CNT}
        s_waitcnt lgkmcnt(0)
        global_load_dwordx4 v[{xr}:{xr+3}], v14, s[4:5]
        global_load_dwordx4 v[{xr+4}:{xr+7}], v14, s[4:5] offset:16
        global_load_ushort v{xr+8}, v15, s[4:5]
        global_load_ushort v{xr+9}, v1, s[4:5]
        s_load_dword s{sT32}, s[26:27], {WS_E}""")
        if self.touch:
            tf = self.lab("Ltf"); td = self.lab("Ltd")
            A(f"""
            s_cmp_eq_u32 s{sW}, 0
            s_cbranch_scc0 {td}
            s_lshl_b32 s41, s{sTL}, 18
            s_cmp_eq_u32 s{sTY}, 0
            s_cbranch_scc0 {tf}
            s_lshl_b32 s40, s{sG}, 24
            s_add_u32 s40, s40, {(65536-4096)*256:#x}
            s_load_dword s48, s[6:7], s40
            s_load_dword s49, s[8:9], s40
            s_load_dword s50, s[12:13], s41
            s_branch {td}
            {tf}:
            s_load_dword s48, s[22:23], 0
            s_cmp_eq_u32 s{sTY}, 1
            s_cbranch_scc0 {td}
            s_mul_i32 s40, s{sRB}, {256*7168}
            s_add_u32 s42, s40, {255*7168}
            s_load_dword s49, s[16:17], s40
            s_load_dword s50, s[18:19], s40
            s_load_dword s51, s[16:17], s42
            s_load_dword s52, s[18:19], s42
            s_load_dword s53, s[20:21], s41
            {td}:""")
        A("s_barrier")
        self.stamp(1)
        if self.xt:
            nx = self.lab("Lnoxt")
            A(f"""
            s_waitcnt lgkmcnt(0)
            s_cmp_lg_u32 s{sW}, 0
            s_cbranch_scc1 {nx}
            ; wave 0 announces the die this workgroup runs on
            s_getreg_b32 s45, hwreg(HW_REG_XCC_ID, 0, 4)
            s_lshl_b32 s45, s45, 28
            s_add_u32 s41, s{sT32}, 1
            s_xor_b32 s45, s45, s41
            s_lshl_b32 s95, s{sX}, 7
            s_add_u32 s95, s95, {WS_XA:#x}
            s_lshl2_add_u32 s41, s{sY}, s95
            s_mov_b64 exec, 1
            v_mov_b32 v1, s41
            v_mov_b32 v2, s45
            global_store_dword v1, v2, s[26:27] sc1
            s_mov_b64 exec, -1
            s_waitcnt vmcnt(1)
            s_branch {nx}_ln
            {nx}:
            s_waitcnt vmcnt(0)
            {nx}_ln:""")
        else:
            A(f"s_waitcnt vmcnt(0) lgkmcnt(0)")
        self.stamp(11)
        for i in range(8):
            A(f"v_lshlrev_b32 v{x0+2*i}, 16, v{xr+i}\nv_and_b32 v{x0+2*i+1}, 0xffff0000, v{xr+i}")
        A(f"v_pk_add_f32 v[{vT}:{vT+1}], v[{x0}:{x0+1}], v[{x0+2}:{x0+3}]")
        A(f"v_pk_add_f32 v[{vT+2}:{vT+3}], v[{x0+4}:{x0+5}], v[{x0+6}:{x0+7}]")
        for i in range(4, 8, 2):
            A(f"v_pk_add_f32 v[{vT}:{vT+1}], v[{vT}:{vT+1}], v[{x0+2*i}:{x0+2*i+1}]")
            A(f"v_pk_add_f32 v[{vT+2}:{vT+3}], v[{vT+2}:{vT+3}], v[{x0+2*i+2}:{x0+2*i+3}]")
        A(f"v_pk_add_f32 v[{vT}:{vT+1}], v[{vT}:{vT+1}], v[{vT+2}:{vT+3}]")
        A(f"v_add_f32 v{vT}, v{vT}, v{vT+1}")
        self.allreduce_in_row(vT)
        self.allreduce_rows(vT, vT+1, "v_add_f32")
        A(f"v_mul_f32 v{vT}, {f2u(1.0/1024):#x}, v{vT}")
        for i in range(8):
            A(f"v_pk_add_f32 v[{x0+2*i}:{x0+2*i+1}], v[{x0+2*i}:{x0+2*i+1}], v[{vT}:{vT+1}] op_sel_hi:[1,0] neg_lo:[0,1] neg_hi:[0,1]")
        A(f"v_pk_mul_f32 v[{vT+2}:{vT+3}], v[{x0}:{x0+1}], v[{x0}:{x0+1}]")
        A(f"v_pk_mul_f32 v[{vT+4}:{vT+5}], v[{x0+2}:{x0+3}], v[{x0+2}:{x0+3}]")
        for i in range(2, 8):
            d = vT + 2 + 2*(i & 1)
            A(f"v_pk_fma_f32 v[{d}:{d+1}], v[{x0+2*i}:{x0+2*i+1}], v[{x0+2*i}:{x0+2*i+1}], v[{d}:{d+1}]")
        A(f"v_pk_add_f32 v[{vT+2}:{vT+3}], v[{vT+2}:{vT+3}], v[{vT+4}:{vT+5}]")
        A(f"v_add_f32 v{vT+2}, v{vT+2}, v{vT+3}")
        r = xr + 8
        self.bf16_round(vT, vT)
        self.allreduce_in_row(vT+2)
        A(f"""
        v_lshlrev_b32 v{r}, 16, v{r}
        v_lshlrev_b32 v{r+1}, 16, v{r+1}
        v_pk_add_f32 v[{r}:{r+1}], v[{r}:{r+1}], v[{vT}:{vT+1}] op_sel_hi:[1,0] neg_lo:[0,1] neg_hi:[0,1]""")
        self.allreduce_rows(vT+2, vT+3, "v_add_f32")
        A(f"v_mul_f32 v{vT+2}, {f2u(1.0/1024):#x}, v{vT+2}")
        self.bf16_round(vT+2, vT+2)
        A(f"v_add_f32 v{vT+2}, {f2u(1e-5):#x}, v{vT+2}")
        self.bf16_round(vT+2, vT+2)
        A(f"""
        v_sqrt_f32 v{vT+2}, v{vT+2}
        v_cvt_pk_bf16_f32 v{r+1}, v{r}, v{r+1}
        v_lshlrev_b32 v{r}, 16, v{r+1}
        v_and_b32 v{r+1}, 0xffff0000, v{r+1}""")
        self.bf16_round(vT+2, vT+2)
        A(f"""
        v_rcp_f32 v{vT+2}, v{vT+2}
        v_and_b32 v1, 3, v0
        v_lshrrev_b32 v2, 2, v0
        v_lshlrev_b32 v2, 1, v2
        v_pk_mul_f32 v[{r}:{r+1}], v[{r}:{r+1}], v[{vT+2}:{vT+3}] op_sel_hi:[1,0]
        s_lshl_b32 s40, s{sW}, 6
        v_lshl_add_u32 v10, v1, 4, s40
        v_lshl_add_u32 v11, v10, 1, v2
        v_add_u32 v10, v10, v2""")
        if self.stag:
            A(f"s_and_b32 s41, s{sW}, 1\ns_lshl_b32 s41, s41, 1\nv_xor_b32 v11, s41, v11")
        A(f"""
        v_cvt_pk_bf16_f32 v{r}, v{r}, v{r+1}
        s_lshl_b32 s40, s{sW}, 2
        v_mov_b32 v2, s40
        v_mov_b32 v1, 1
        ds_write_b16_d16_hi v11, v{r} offset:{L_XG}
        s_mov_b32 exec_hi, 0
        ds_write_b16 v10, v{r} offset:{L_XQ}
        s_mov_b64 exec, 1
        ds_write_b32 v2, v1 offset:{C_XN}
        s_mov_b64 exec, -1
        s_add_u32 s{sT32}, s{sT32}, 1
        s_and_b32 s{sT10}, s{sT32}, s44
        v_mov_b32 v3, s{sT10}""")
        self.stamp(12)
        if self.mag:
            A(f"""
            s_cmp_eq_u32 s{sW}, 1
            s_cbranch_scc0 L_magskip
            s_lshl_b32 s40, s2, 7
            s_add_u32 s40, s40, 0x300000
            v_mov_b32 v1, s40
            v_mov_b32 v2, s90
            s_mov_b64 exec, 1
            global_store_dword v1, v2, s[26:27] sc1
            v_add_u32 v1, 0x10000, v1
            global_store_dword v1, v2, s[26:27] sc1
            s_mov_b64 exec, -1
            L_magskip:""")
        if self.wtest:
            pre, mod, n = self.wtest
            A(f"s_cmp_eq_u32 s{sW}, 3\ns_cbranch_scc0 L_adone")
            A(f"s_mul_i32 s42, s2, {n*1024}\ns_add_u32 s42, s42, 0x800000\nv_lshl_add_u32 v10, v0, 4, s42")
            if pre == 's':
                A("s_add_u32 s40, s26, s42\ns_addc_u32 s41, s27, 0")
                for i in range(n*16):
                    A(f"s_load_dword s48, s[40:41], {64*i} glc")
                A("s_waitcnt lgkmcnt(0)")
            elif pre:
                for i in range(n):
                    A(f"global_load_dwordx4 v[20:23], v10, s[26:27] offset:{1024*i} {pre[1:]}")
                A("s_waitcnt vmcnt(0)")
            self.lds_spin(C_Q, 4, sleep=1)
            A("s_sleep 64")
            for i in range(n):
                A(f"global_store_dwordx4 v10, v[16:19], s[26:27] offset:{1024*i} {mod}")
        if 'noa' in self.abl:
            A("s_branch L_adone")
        if self.xt:
            pass
        elif self.local:
            A(f"""
            s_getreg_b32 s45, hwreg(HW_REG_XCC_ID, 0, 4)
            s_lshl_b32 s45, s45, 28
            s_cmp_eq_u32 s{sTY}, 0
            s_cselect_b32 s45, s45, 0
            s_xor_b32 s45, s45, s{sT32}""")
        nq = self.lab("Lnoq")
        A(f"s_cmp_eq_u32 s{sW}, 3\ns_cbranch_scc0 {nq}")
        self.red_publish(L_RQ, 512, C_Q, 32, f"""
            s_lshl3_add_u32 s41, s{sHQ}, s{sRBQ}
            s_lshl_b32 s40, s41, 9
            s_add_u32 s40, s40, {WS_BQ:#x}
            v_add_u32 v11, s40, v10
            s_lshr_b32 s40, s41, 4
            s_and_b32 s41, s41, 15
            s_lshl_b32 s40, s40, 5
            s_add_u32 s40, s40, s41
            s_lshl_b32 s40, s40, 2
            s_add_u32 s40, s40, {WS_FLA:#x}""", self.nrepA, val=(45 if (self.local and not self.forceloc) else sT32))
        self.stamp(13)
        A(f"{nq}:")
        if self.xt:
            nc = self.lab("Lnocol"); l = self.lab("Lxt"); mem = self.lab("Lxm"); lv = self.lab("Lxv")
            A(f"""
            s_cmp_lg_u32 s{sW}, 0
            s_cbranch_scc1 {nc}
            s_lshl_b32 s46, s{sX}, 10
            s_add_u32 s46, s46, {WS_XV:#x}
            s_mov_b32 s{sSPIN}, 0
            s_cmp_lg_u32 s{sY}, 0
            s_cbranch_scc1 {mem}
            s_mov_b32 s42, s45
            s_mov_b32 s43, s45
            s_mov_b32 s101, 0
            s_add_u32 s41, s95, 128
            {l}:
            s_load_dwordx16 s[{sP}:{sP+15}], s[26:27], s95 glc
            s_add_u32 s{sSPIN}, s{sSPIN}, 1
            s_cmp_gt_u32 s{sSPIN}, {SPIN_MAX}
            s_cbranch_scc1 L_end
            s_waitcnt lgkmcnt(0)""")
            pairs = [sP + 2*i for i in range(8)]
            for p in pairs:
                A(f"s_xor_b64 s[{p}:{p+1}], s[{p}:{p+1}], s[42:43]")
            for p in pairs[1:]:
                A(f"s_or_b64 s[{sP}:{sP+1}], s[{sP}:{sP+1}], s[{p}:{p+1}]")
            A(f"""
            s_or_b32 s{sP}, s{sP}, s{sP+1}
            s_and_b32 s{sP+1}, s{sP}, 0x0fffffff
            s_cbranch_scc1 {l}
            s_or_b32 s101, s101, s{sP}
            s_add_u32 s95, s95, 64
            s_cmp_lt_u32 s95, s41
            s_cbranch_scc1 {l}
            s_xor_b32 s40, s101, s{sT32}
            s_mov_b64 exec, 0xff
            v_lshl_add_u32 v1, v0, 7, s46
            v_mov_b32 v2, s40
            global_store_dword v1, v2, s[26:27] sc1
            s_branch {lv}
            {mem}:
            s_and_b32 s40, s{sY}, 7
            s_lshl_b32 s40, s40, 7
            s_add_u32 s46, s46, s40
            {mem}_l:
            s_sleep {self.xsleep}
            s_load_dword s101, s[26:27], s46 glc
            s_add_u32 s{sSPIN}, s{sSPIN}, 1
            s_cmp_gt_u32 s{sSPIN}, {SPIN_MAX}
            s_cbranch_scc1 L_end
            s_waitcnt lgkmcnt(0)
            s_xor_b32 s101, s101, s{sT32}
            s_and_b32 s40, s101, 0x0fffffff
            s_cbranch_scc1 {mem}_l
            {lv}:
            s_cmp_lg_u32 s101, 0
            s_cselect_b32 s40, 3, 1
            s_mov_b64 exec, 1
            v_mov_b32 v1, {C_LOC}
            v_mov_b32 v2, s40
            ds_write_b32 v1, v2
            s_mov_b64 exec, -1
            {nc}:""")
        A(f"""
        s_cmp_ge_u32 s{sTY}, 2
        s_cbranch_scc1 L_final
        s_cmp_ge_u32 s{sTY}, 1
        s_cbranch_scc1 L_ffn""")
        if 'stop1' in self.abl:
            self.arrive(C_GA, want_old=False); A("s_branch L_adone")
        vKF, vVF, vGT, vQF, vO = 56, 88, 120, 152, 168
        vS, U, Z = 16, 24, 28
        A(f"""
        s_lshl2_add_u32 s41, s{sG}, s{sW}
        s_lshl_b32 s40, s41, 13
        s_add_u32 s40, s40, {WS_BQ + 2048:#x}
        v_and_b32 v12, 31, v0
        v_lshrrev_b32 v13, 5, v0
        v_lshlrev_b32 v1, 4, v12
        v_lshl_add_u32 v1, v13, 12, v1
        v_add_u32 v{vA0}, s40, v1
        s_and_b32 s40, s{sCH}, {self.nrepA-1}
        s_mul_i32 s40, s40, {REPP}
        s_lshl_b32 s41, s41, 7
        s_add_u32 s40, s40, s41
        s_add_u32 s95, s40, {WS_FLA:#x}
        s_lshl_b32 s40, s{sW}, 1
        v_add_u32 v13, s40, v13
        v_mul_u32_u24 v13, {QLP}, v13
        v_lshl_add_u32 v13, v12, 3, v13
        v_and_b32 v10, 7, v0
        s_lshl_b32 s40, s{sG}, 5
        s_add_u32 s41, s40, s{sCH}
        s_mul_i32 s41, s41, {BOP}
        s_lshl_b32 s42, s{sW}, 7
        s_add_u32 s41, s41, s42
        s_add_u32 s41, s41, {WS_BO:#x}
        v_lshlrev_b32 v8, 9, v10
        v_bfe_u32 v11, v0, 3, 1
        v_lshl_add_u32 v8, v11, 6, v8
        v_lshl_add_u32 v8, v{vJ}, 4, v8
        v_add_u32 v8, s41, v8
        s_add_u32 s40, s40, s{sCH}
        s_lshl_b32 s40, s40, 7
        s_add_u32 s40, s40, {WS_BML:#x}
        v_lshl_add_u32 v9, v10, 4, s40
        v_mul_u32_u24 v12, {QLP}, v10
        v_lshl_add_u32 v12, v{vJ}, 4, v12
        s_mov_b32 s46, {f2u(128 ** -0.5):#x}
        s_mov_b32 s47, {f2u(128 ** -0.5):#x}
        s_lshl_b32 s40, s{sW}, 13
        v_xor_b32 v14, v{vI}, v{vJ}
        v_lshlrev_b32 v14, 4, v14
        v_lshl_add_u32 v14, v{vI}, 8, v14
        v_add_u32 v14, s40, v14
        v_bfe_u32 v10, v0, 2, 2
        v_lshl_add_u32 v10, v{vJ}, 2, v10
        v_and_b32 v11, 7, v10
        v_lshlrev_b32 v11, 1, v11
        v_bfe_u32 v1, v0, 1, 1
        v_xor_b32 v11, v11, v1
        v_lshlrev_b32 v11, 4, v11
        v_lshl_add_u32 v11, v10, 8, v11
        v_and_b32 v1, 1, v0
        v_lshl_add_u32 v11, v1, 3, v11
        s_add_u32 s41, s40, {L_V}
        v_add_u32 v11, s41, v11
        ; exchange area (this wave's K rows, dead once the fragments are in registers)
        v_lshl_add_u32 v15, v0, 4, s40
        s_lshl_b32 s41, s{sW}, 10
        v_lshl_add_u32 v10, v0, 4, s41""")
        self.mask(("s92", "s93"), 0xFF00FF00FF00FF00)

        def kreads():
            A(f"s_lshl_b32 s41, s{sW}, 2\ns_add_u32 s41, s41, {C_K}")
            self.lds_spin("s41", 1, sleep=1)
            for s in range(4):
                if s:
                    A(f"v_xor_b32 v2, {64*s}, v14")
                for t in range(2):
                    r = vKF + 16*t + 4*s
                    A(f"ds_read_b128 v[{r}:{r+3}], v{2 if s else 14} offset:{L_K + 4096*t}")
            self.stamp(3)

        if self.kfirst:
            kreads()
        A("s_mov_b32 s40, s95")
        if self.xt:
            self.flag_poll(16)
        elif self.forceloc:
            self.flag_poll(16)
            A("s_mov_b32 s101, 1")
        elif self.local:
            l = self.lab("Lpoll"); r = self.lab("Lretry")
            A(f"""
            s_mov_b32 s{sSPIN}, 0
            s_mov_b32 s42, s{sT32}
            s_mov_b32 s43, s{sT32}
            s_mov_b32 s4, s45
            s_mov_b32 s5, s45
            s_branch {l}
            {r}:
            s_sleep {self.psleep}
            {l}:
            s_load_dwordx16 s[{sP}:{sP+15}], s[26:27], s40 glc
            s_add_u32 s{sSPIN}, s{sSPIN}, 1
            s_cmp_gt_u32 s{sSPIN}, {SPIN_MAX}
            s_cbranch_scc1 L_end
            s_waitcnt lgkmcnt(0)""")
            for i in range(8):
                A(f"s_xor_b64 s[{sP+2*i}:{sP+2*i+1}], s[{sP+2*i}:{sP+2*i+1}], s[{'4:5' if (i & 2) == 0 else '42:43'}]")
            for step in (2, 4, 8):
                for i in range(0, 16, 2*step):
                    A(f"s_or_b64 s[{sP+i}:{sP+i+1}], s[{sP+i}:{sP+i+1}], s[{sP+i+step}:{sP+i+step+1}]")
            A(f"""
            s_or_b32 s{sP}, s{sP}, s{sP+1}
            s_and_b32 s{sP+1}, s{sP}, 0x0fffffff
            s_cbranch_scc1 {r}
            s_cmp_lg_u32 s{sP}, 0
            s_cselect_b32 s101, 0x101, 1""")
        else:
            self.flag_poll(16)
        self.stamp(2)
        if 'stop2' in self.abl:
            self.arrive(C_GA, want_old=False); A("s_branch L_adone")
        if self.warm is not None and self.warmO == 1:
            A(f"""
            s_mov_b64 exec, 0xff
            global_load_dword v46, v8, s[26:27] {self.warm}
            s_mov_b64 exec, 1
            global_load_dword v47, v9, s[26:27] {self.warm}
            s_mov_b64 exec, -1""")

        rq = self.lab("Lgq")
        A(f"s_mov_b32 s45, 0\n{rq}:")
        for n in range(8):
            A(f"global_load_dwordx4 v[{vGT+4*n}:{vGT+4*n+3}], v{vA0}, s[26:27] offset:{512*n - 2048} sc1")
        skip = self.lab("Lkvdone")
        A(f"s_cmp_lg_u32 s45, 0\ns_cbranch_scc1 {skip}\ns_mov_b32 s45, 1")
        self.gate(1, self.gateA)
        def vreads():
            A(f"s_lshl_b32 s41, s{sW}, 2\ns_add_u32 s41, s41, {C_V}")
            self.lds_spin("s41", 1, sleep=0)
            for dt in range(8):
                if dt:
                    A(f"v_xor_b32 v14, {32*dt}, v11")
                for t in range(2):
                    r = vVF + 4*dt + 2*t
                    A(f"ds_read_b64_tr_b16 v[{r}:{r+1}], v{14 if dt else 11} offset:{4096*t}")

        if not self.kfirst:
            kreads()
        if not self.vlate:
            vreads()
        A(f"""
        s_lshr_b32 s40, s{sCH}, 4
        s_lshl1_add_u32 s40, s{sG}, s40
        s_lshl_b32 s40, s40, 5
        s_and_b32 s41, s{sCH}, 15
        s_add_u32 s40, s40, s41
        s_lshl_b32 s40, s40, 2
        s_add_u32 s95, s40, {WS_FLB:#x}""")
        A(f"s_mov_b32 s{sSPIN}, 0\n{skip}:")
        self.untag([vGT+4*n for n in range(8)], vT, counted=True)
        self.tagtest(vT, rq)
        self.stamp(4)
        if 'stop3' in self.abl:
            A("s_branch L_adone")
        for step in (4, 8, 16):
            for b in range(0, 32, 2*step):
                for h in (0, 2):
                    A(f"v_pk_add_f32 v[{vGT+b+h}:{vGT+b+h+1}], v[{vGT+b+h}:{vGT+b+h+1}], v[{vGT+b+step+h}:{vGT+b+step+h+1}]")
        A(f"""
        v_cvt_pk_bf16_f32 v{vGT}, v{vGT}, v{vGT+1}
        v_cvt_pk_bf16_f32 v{vGT+1}, v{vGT+2}, v{vGT+3}
        s_mov_b32 s45, {f2u(LOG2E):#x}
        ds_write_b64 v13, v[{vGT}:{vGT+1}] offset:{L_QL}""")
        self.arrive(C_QL, want_old=False, inc=("s101" if (self.local and not self.xt) else 1))
        if self.warm is not None and self.warmO == 2:
            A(f"""
            s_mov_b64 exec, 0xff
            global_load_dword v46, v8, s[26:27] {self.warm}
            s_mov_b64 exec, 1
            global_load_dword v47, v9, s[26:27] {self.warm}
            s_mov_b64 exec, -1""")

        self.stamp(1)
        self.lds_spin(C_QL, 4, sleep=0, low8=(self.local and not self.xt),
                      reads="\n".join(f"ds_read_b128 v[{vQF+4*s}:{vQF+4*s+3}], v12 offset:{L_QL + 64*s}" for s in range(4))
                      + (f"\nds_read_b32 v54, v1 offset:{C_LOC - C_QL}" if self.xt else ""))
        if self.xt:
            self.get_loc(54)
        self.stamp(9)
        for s in range(4):
            for t in range(2):
                c = "0" if s == 0 else f"v[{vS+4*t}:{vS+4*t+3}]"
                r = vKF + 16*t + 4*s
                A(f"v_mfma_f32_16x16x32_bf16 v[{vS+4*t}:{vS+4*t+3}], v[{r}:{r+3}], v[{vQF+4*s}:{vQF+4*s+3}], {c}")
        self.early_flag('qk')
        if self.vlate:
            vreads()
        else:
            A("s_nop 7")
        for k in range(4):
            A(f"v_cndmask_b32 v{U+k}, v{vS+k}, v{vS+4+k}, s[92:93]")
        for rnd in range(2):
            for p in range(2):
                A(f"v_cvt_pk_bf16_f32 v{Z+p}, v{U+2*p}, v{U+2*p+1}")
            for p in range(2):
                A(f"v_lshlrev_b32 v{U+2*p}, 16, v{Z+p}\nv_and_b32 v{U+2*p+1}, 0xffff0000, v{Z+p}")
            if rnd == 0:
                for p in range(2):
                    A(f"v_pk_mul_f32 v[{U+2*p}:{U+2*p+1}], v[{U+2*p}:{U+2*p+1}], s[46:47]")
        vM, vL = 48, 49
        A(f"""
        v_max3_f32 v{vM}, v{U}, v{U+1}, v{U+2}
        v_max_f32 v{vM}, v{vM}, v{U+3}
        s_nop 1
        v_max_f32_dpp v{vM}, v{vM}, v{vM} row_ror:8 row_mask:0xf bank_mask:0xf""")
        self.allreduce_rows(vM, 50, "v_max_f32")
        A(f"v_mul_f32 v50, s45, v{vM}")
        for k in range(4):
            A(f"v_fma_f32 v{U+k}, v{U+k}, s45, -v50")
        for k in range(4):
            A(f"v_exp_f32 v{U+k}, v{U+k}")
        P = 32
        A(f"""
        s_nop 0
        v_cvt_pk_bf16_f32 v{P}, v{U}, v{U+1}
        v_cvt_pk_bf16_f32 v{P+1}, v{U+2}, v{U+3}
        v_pk_add_f32 v[52:53], v[{U}:{U+1}], v[{U+2}:{U+3}]
        v_mov_b32_dpp v{P+2}, v{P} row_ror:8 row_mask:0xf bank_mask:0xf
        v_mov_b32_dpp v{P+3}, v{P+1} row_ror:8 row_mask:0xf bank_mask:0xf
        v_mov_b32 v{P+4}, v{P}
        v_mov_b32 v{P+5}, v{P+1}
        v_add_f32 v{vL}, v52, v53""")
        if self.vlate:
            A("s_waitcnt lgkmcnt(0)")
        fill = [f"v_lshrrev_b32 v14, 1, v15\nv_add_f32_dpp v{vL}, v{vL}, v{vL} row_ror:8 row_mask:0xf bank_mask:0xf",
                f"v_mov_b32 v50, v{vL}\ns_lshl_b32 s40, s{sW}, 12",
                f"v_add_u32 v14, s40, v14\nv_permlane32_swap_b32 v50, v{vL}",
                f"v_add_f32 v{vL}, v{vL}, v50\nv_mov_b32 v50, v{vL}",
                f"s_nop 0",
                f"v_permlane16_swap_b32 v50, v{vL}\nv_add_f32 v{vL}, v{vL}, v50",
                f"ds_write_b64 v14, v[{vM}:{vL}] offset:{L_K + 4096}", ""]
        for dt in range(8):
            b = P + 2*(dt & 1)
            A(f"v_mfma_f32_16x16x32_bf16 v[{vO+4*dt}:{vO+4*dt+3}], v[{vVF+4*dt}:{vVF+4*dt+3}], v[{b}:{b+3}], 0")
            A(fill[dt])
        for k in range(4):
            for r in range(4):
                A(f"v_cndmask_b32 v{vO+8*k+r}, v{vO+8*k+r}, v{vO+8*k+4+r}, s[92:93]")
            A(f"ds_write_b128 v15, v[{vO+8*k}:{vO+8*k+3}] offset:{L_K + 1024*k}")
        self.arrive(C_X, want_old=False)
        A("v_lshlrev_b32 v14, 3, v0")
        self.early_flag('pv')
        self.stamp(11)
        X, ML = 56, 72
        self.lds_spin(C_X, 4, sleep=0, reads="\n".join(
            [f"ds_read_b64 v[{ML+2*w}:{ML+2*w+1}], v14 offset:{L_K + 8192*w + 4096}" for w in range(4)] +
            [f"ds_read_b128 v[{X+4*w}:{X+4*w+3}], v10 offset:{L_K + 8192*w}" for w in range(4)]))
        self.stamp(10)
        self.early_flag('xsync')
        A(f"v_max3_f32 v{vM}, v{ML}, v{ML+2}, v{ML+4}\nv_max_f32 v{vM}, v{vM}, v{ML+6}")
        for w in range(4):
            A(f"v_sub_f32 v{ML+2*w}, v{ML+2*w}, v{vM}")
        for w in range(4):
            A(f"v_mul_f32 v{ML+2*w}, s45, v{ML+2*w}")
        for w in range(4):
            A(f"v_exp_f32 v{ML+2*w}, v{ML+2*w}")
        A(f"s_nop 0\nv_mul_f32 v{vL}, v{ML}, v{ML+1}")
        for w in range(4):
            e = ML + 2*w
            for h in (0, 2):
                if w == 0:
                    A(f"v_pk_mul_f32 v[{vS+h}:{vS+h+1}], v[{X+h}:{X+h+1}], v[{e}:{e+1}] op_sel_hi:[1,0]")
                else:
                    A(f"v_pk_fma_f32 v[{vS+h}:{vS+h+1}], v[{X+4*w+h}:{X+4*w+h+1}], v[{e}:{e+1}], v[{vS+h}:{vS+h+1}] op_sel_hi:[1,0,1]")
            if w:
                A(f"v_fmac_f32 v{vL}, v{e}, v{e+1}")
        for r in range(4):
            self.tag(vS + r)
        nml = self.lab("Lnoml")

        def publish(mod):
            if 'noO' not in self.abl:
                A(f"global_store_dwordx4 v8, v[{vS}:{vS+3}], s[26:27] {mod}")
            A(f"s_cmp_lg_u32 s{sW}, 0\ns_cbranch_scc1 {nml}")
            self.tag(vM); self.tag(vL)
            A(f"""
            v_mov_b32 v50, v3
            v_mov_b32 v51, v3
            s_mov_b64 exec, 0xff
            global_store_dwordx4 v9, v[48:51], s[26:27] {mod}""")

        if self.local:
            rem = self.lab("Lremote"); fl = self.lab("Lflagb")
            A(f"s_cmp_lg_u32 s101, 0\ns_cbranch_scc1 {rem}")
            publish("")
            A(f"s_branch {fl}\n{rem}:")
            publish("sc1")
            A(f"{fl}:")
        else:
            publish("sc1")
        if self.flagpos != 'end':
            A(f"s_mov_b64 exec, -1\ns_cmp_eq_u32 s101, 0\ns_cbranch_scc1 {nml}")
        A("s_mov_b32 s40, s95")
        if 'noflagB' not in self.abl:
            self.flag_store(self.nrepB)
        A(f"{nml}:")
        self.gate(2, self.gateA)
        self.stamp(5)
        if 'stop4' in self.abl:
            A("s_branch L_adone")
        A(f"""
        s_and_b32 s40, s{sTL}, 7
        s_lshl2_add_u32 s41, s40, s{sW}
        s_lshl_b32 s41, s41, 7
        s_mul_i32 s42, s{sG}, {32*BOP}
        s_add_u32 s41, s41, s42
        s_add_u32 s41, s41, {WS_BO:#x}
        v_lshrrev_b32 v1, 3, v0
        v_mul_u32_u24 v1, {BOP}, v1
        v_and_b32 v2, 7, v0
        v_lshl_add_u32 v1, v2, 4, v1
        v_add_u32 v{vA0}, s41, v1
        v_add_u32 v13, {8*BOP}, v{vA0}
        v_add_u32 v14, {16*BOP}, v{vA0}
        v_add_u32 v15, {24*BOP}, v{vA0}
        s_lshl_b32 s41, s{sG}, 8
        s_add_u32 s40, s40, s41
        s_lshl_b32 s40, s40, 4
        s_add_u32 s40, s40, {WS_BML:#x}
        v_and_b32 v1, 31, v0
        v_lshl_add_u32 v{vA1}, v1, 7, s40
        s_lshl_b32 s40, s{sW}, 7
        v_and_b32 v2, 7, v0
        v_lshrrev_b32 v1, 3, v1
        v_lshl_add_u32 v1, v1, 2, s40
        v_lshl_add_u32 v10, v2, 4, v1
        v_lshrrev_b32 v1, 3, v0
        v_lshl_add_u32 v11, v1, 4, s40
        v_and_b32 v1, 1, v0
        v_lshl_add_u32 v1, v1, 2, v{vJ}
        v_and_b32 v2, 6, v0
        v_lshl_add_u32 v12, v1, 5, v2
        s_lshl_b32 s40, s{sW}, 3
        v_add_u32 v12, s40, v12""")
        nb = self.lab("Lnopollb")
        A(f"""
        s_cmp_ge_u32 s{sW}, 2
        s_cbranch_scc1 {nb}
        s_and_b32 s40, s{sCH}, {self.nrepB-1}
        s_mul_i32 s40, s40, {REPP}
        s_lshl1_add_u32 s41, s{sG}, s{sW}
        s_lshl_b32 s41, s41, 7
        s_add_u32 s40, s40, s41
        s_add_u32 s40, s40, {WS_FLB:#x}""")
        self.flag_poll(16)
        self.arrive(C_B1, want_old=False)
        A(f"{nb}:")
        self.lds_spin(C_B1, 2, sleep=0)
        self.stamp(6)
        rb_ = self.lab("Lgo")
        vO, vML = 56, 72
        A(f"s_mov_b32 s47, 0\n{rb_}:")
        def bloads(mod):
            A(f"global_load_dwordx4 v[{vML}:{vML+3}], v{vA1}, s[26:27] {mod}")
            for n in range(4):
                A(f"global_load_dwordx4 v[{vO+4*n}:{vO+4*n+3}], v{(vA0, 13, 14, 15)[n]}, s[26:27] {mod}")
        if self.local and self.gmod != 'sc1':
            rem = self.lab("Lremote"); fl = self.lab("Lbld")
            A(f"s_cmp_lg_u32 s101, 0\ns_cbranch_scc1 {rem}")
            bloads(self.gmod)
            A(f"s_branch {fl}\n{rem}:")
            bloads("sc1")
            A(f"{fl}:")
        else:
            bloads("sc1")
        if self.HA:
            l = self.lab("Lhb")
            A(f"s_cmp_lg_u32 s47, 0\ns_cbranch_scc1 {l}\ns_mov_b32 s47, 1")
            self.arrive(C_HB, want_old=False)
            A(f"{l}:")
        if 3 in self.gateA:
            self.gate(3, self.gateA)
            A(f"s_mov_b32 s{sGATE}, 0")
        A("s_waitcnt vmcnt(4)")
        self.untag([vML], vT + 16)
        fill = self.untag_list([vO + 4*n for n in range(4)], vT + 16, first=False)
        A(f"v_mov_b32 v{vT}, v{vML}\ns_waitcnt vmcnt(0)")
        self.allreduce_in_row(vT, "v_max_f32", fill)
        A(f"v_mov_b32 v{vT+2}, v{vT}")
        self.pad2(fill)
        A(f"""
        v_permlane16_swap_b32 v{vT+2}, v{vT}
        v_max_f32 v{vT}, v{vT}, v{vT+2}
        v_sub_f32 v{vT+4}, v{vML}, v{vT}
        v_mul_f32 v{vT+4}, s45, v{vT+4}
        v_exp_f32 v{vT+4}, v{vT+4}
        s_mov_b32 exec_hi, 0
        ds_write_b32 v10, v{vT+4} offset:{L_WT}
        s_mov_b32 exec_hi, -1
        ds_read_b128 v[{vT+8}:{vT+11}], v11 offset:{L_WT}
        v_mul_f32 v{vT+1}, v{vT+4}, v{vML+1}""")
        self.allreduce_in_row(vT + 1, "v_add_f32", fill)
        A(f"v_mov_b32 v{vT+2}, v{vT+1}")
        self.pad2(fill)
        A(f"""
        v_permlane16_swap_b32 v{vT+2}, v{vT+1}
        v_add_f32 v{vT+1}, v{vT+1}, v{vT+2}
        v_rcp_f32 v{vT+1}, v{vT+1}""")
        A("\n".join(fill))
        self.tagtest(vT + 16, rb_)
        self.stamp(7)
        A("s_waitcnt lgkmcnt(0)")
        acc = vT + 4
        for n in range(4):
            w = vT + 8 + (n & ~1)
            os_ = f"op_sel:[0,{n&1}] op_sel_hi:[1,{n&1}]" if n == 0 else f"op_sel:[0,{n&1},0] op_sel_hi:[1,{n&1},1]"
            for h in (0, 2):
                if n == 0:
                    A(f"v_pk_mul_f32 v[{acc+h}:{acc+h+1}], v[{vO+h}:{vO+h+1}], v[{w}:{w+1}] {os_}")
                else:
                    A(f"v_pk_fma_f32 v[{acc+h}:{acc+h+1}], v[{vO+4*n+h}:{vO+4*n+h+1}], v[{w}:{w+1}], v[{acc+h}:{acc+h+1}] {os_}")
        self.reduce_scatter_rows(acc)
        A(f"""
        s_nop 1
        v_add_f32_dpp v{acc}, v{acc}, v{acc} row_ror:8 row_mask:0xf bank_mask:0xf
        v_mov_b32 v1, {C_FO}
        v_mul_f32 v{acc}, v{acc}, v{vT+1}
        v_mov_b32 v2, 1
        v_cvt_pk_bf16_f32 v{acc}, v{acc}, v{acc}""")
        self.exec_set(0x00FF00FF00FF00FF)
        A(f"""
        ds_write_b16 v12, v{acc} offset:{L_VEC}
        s_mov_b64 exec, 1
        ds_add_u32 v1, v2
        s_mov_b64 exec, -1""")
        self.stamp(8)
        if 'diag' in self.abl:
            l = self.lab("Ldg")
            if 'diagx' in self.abl:
                A(f"s_getreg_b32 s41, hwreg(HW_REG_XCC_ID, 0, 4)\ns_cmp_eq_u32 s41, s{sX}")
            else:
                A("s_cmp_eq_u32 s101, 0")
            A(f"""
            s_cbranch_scc1 L_adone
            s_memrealtime s[42:43]
            s_waitcnt lgkmcnt(0)
            s_add_u32 s40, s42, 2000
            {l}:
            s_memrealtime s[42:43]
            s_waitcnt lgkmcnt(0)
            s_sub_u32 s41, s42, s40
            s_cmp_lt_i32 s41, 0
            s_cbranch_scc1 {l}""")
        A("L_adone:")
        self.write_stamps(14)
        A("s_endpgm")
        A(f"""
        L_ffn:
        s_cmp_eq_u32 s{sW}, 2
        s_cbranch_scc0 L_adone""")
        if self.localD:
            l = self.lab("Lxt")
            A(f"""
            s_getreg_b32 s45, hwreg(HW_REG_XCC_ID, 0, 4)
            s_lshl_b32 s45, s45, 28
            s_xor_b32 s42, s45, s{sT32}
            s_mov_b32 s43, s42
            s_lshl_b32 s40, s{sG}, 7
            s_add_u32 s40, s40, {WS_XT:#x}
            s_lshl2_add_u32 s41, s{sY}, s40
            s_mov_b64 exec, 1
            v_mov_b32 v1, s41
            v_mov_b32 v2, s42
            global_store_dword v1, v2, s[26:27] sc1
            s_mov_b64 exec, -1
            s_add_u32 s41, s40, 64
            s_mov_b32 s{sSPIN}, 0
            {l}:
            s_sleep 24
            s_load_dwordx16 s[{sP}:{sP+15}], s[26:27], s40 glc
            s_load_dwordx16 s[4:19], s[26:27], s41 glc
            s_add_u32 s{sSPIN}, s{sSPIN}, 1
            s_cmp_gt_u32 s{sSPIN}, {SPIN_MAX}
            s_cbranch_scc1 L_end
            s_waitcnt lgkmcnt(0)""")
            pairs = [sP + 2*i for i in range(8)] + [4 + 2*i for i in range(6)]
            for p in pairs:
                A(f"s_xor_b64 s[{p}:{p+1}], s[{p}:{p+1}], s[42:43]")
            for p in pairs[1:]:
                A(f"s_or_b64 s[{sP}:{sP+1}], s[{sP}:{sP+1}], s[{p}:{p+1}]")
            A(f"""
            s_or_b32 s101, s{sP}, s{sP+1}
            s_and_b32 s{sP}, s101, 0x0fffffff
            s_cbranch_scc1 {l}""")
        if 'noffn' in self.abl:
            A("s_branch L_adone")
        self.red_publish(L_RG, 1024, C_G, 64, f"""
            s_sub_u32 s41, s{sUP}, s{sTL}
            s_lshl2_add_u32 s40, s{sTL}, s{sRB}
            s_lshl_b32 s40, s40, 10
            s_add_u32 s40, s40, {WS_BD:#x}
            v_add_u32 v11, s40, v10
            v_lshrrev_b32 v13, 5, v0
            s_lshl_b32 s42, s41, 12
            v_mul_lo_u32 v12, s42, v13
            v_add_u32 v11, v11, v12
            s_lshl_b32 s40, s{sTL}, 5
            s_add_u32 s40, s40, s{sRB}
            s_lshl_b32 s40, s40, 2
            s_lshl_b32 s42, s41, 7
            s_add_u32 s42, s42, 16
            v_mul_lo_u32 v12, s42, v0
            v_add_u32 v12, s40, v12
            s_movk_i32 s40, {WS_FLD:#x}""", 2, 12, sleep=1, local=self.localD)
        self.gate(1, self.gateF)
        self.stamp(5)
        A(f"""
        s_lshl_b32 s40, s{sTL}, 12
        s_add_u32 s40, s40, {WS_BD:#x}
        v_add_u32 v{vA0}, s40, v10
        v_and_b32 v1, 1, v0
        v_lshl_add_u32 v1, v1, 1, v13
        v_and_b32 v2, 30, v0
        v_lshl_add_u32 v12, v1, 6, v2
        s_lshl_b32 s40, s{sTL}, 7
        s_add_u32 s40, s40, {WS_FLD:#x}""")
        self.flag_poll(8)
        self.stamp(6)
        rd = self.lab("Lgd")
        G = 56
        A(f"s_mov_b32 s47, 0\n{rd}:")
        def dloads(mod):
            for n in range(4):
                A(f"global_load_dwordx4 v[{G+4*n}:{G+4*n+3}], v{vA0}, s[26:27] offset:{1024*n} {mod}")
        if self.localD:
            rem = self.lab("Lremote"); fl = self.lab("Ldld")
            A(f"s_cmp_lg_u32 s101, 0\ns_cbranch_scc1 {rem}")
            dloads(self.gmod)
            A(f"s_branch {fl}\n{rem}:")
            dloads("sc1")
            A(f"{fl}:")
        else:
            dloads("sc1")
        if self.HF:
            l = self.lab("Lhb")
            A(f"s_cmp_lg_u32 s47, 0\ns_cbranch_scc1 {l}\ns_mov_b32 s47, 1")
            self.arrive(C_HB, want_old=False)
            A(f"{l}:")
        if 2 in self.gateF:
            self.gate(2, self.gateF)
            A(f"s_mov_b32 s{sGATE}, 0")
        self.untag([G + 4*n for n in range(4)], vT, counted=True)
        self.tagtest(vT, rd)
        self.stamp(7)
        for h in (0, 2):
            A(f"v_pk_add_f32 v[{G+h}:{G+h+1}], v[{G+h}:{G+h+1}], v[{G+4+h}:{G+5+h}]")
            A(f"v_pk_add_f32 v[{G+8+h}:{G+9+h}], v[{G+8+h}:{G+9+h}], v[{G+12+h}:{G+13+h}]")
        for h in (0, 2):
            A(f"v_pk_add_f32 v[{G+h}:{G+h+1}], v[{G+h}:{G+h+1}], v[{G+8+h}:{G+9+h}]")
        c1 = -2.0 * 0.7978845608028654 * LOG2E
        c2 = c1 * 0.044715
        A(f"""
        v_cvt_pk_bf16_f32 v{G}, v{G}, v{G+1}
        v_cvt_pk_bf16_f32 v{G+1}, v{G+2}, v{G+3}
        s_mov_b32 s46, {f2u(c2):#x}
        v_mov_b32 v{vT+4}, {f2u(c1):#x}
        v_permlane32_swap_b32 v{G}, v{G+1}
        v_lshlrev_b32 v{G+2}, 16, v{G}
        v_and_b32 v{G+3}, 0xffff0000, v{G}
        v_pk_mul_f32 v[{vT}:{vT+1}], v[{G+2}:{G+3}], v[{G+2}:{G+3}]
        v_fma_f32 v{vT}, v{vT}, s46, v{vT+4}
        v_fma_f32 v{vT+1}, v{vT+1}, s46, v{vT+4}
        v_pk_mul_f32 v[{vT}:{vT+1}], v[{vT}:{vT+1}], v[{G+2}:{G+3}]
        v_exp_f32 v{vT}, v{vT}
        v_exp_f32 v{vT+1}, v{vT+1}
        v_lshlrev_b32 v{G+4}, 16, v{G+1}
        v_add_f32 v{vT}, 1.0, v{vT}
        v_add_f32 v{vT+1}, 1.0, v{vT+1}
        v_rcp_f32 v{vT}, v{vT}
        v_rcp_f32 v{vT+1}, v{vT+1}
        v_and_b32 v{G+5}, 0xffff0000, v{G+1}
        v_pk_mul_f32 v[{G+2}:{G+3}], v[{G+2}:{G+3}], v[{vT}:{vT+1}]
        v_cvt_pk_bf16_f32 v{G}, v{G+2}, v{G+3}
        v_lshlrev_b32 v{G+2}, 16, v{G}
        v_and_b32 v{G+3}, 0xffff0000, v{G}
        v_pk_mul_f32 v[{G+2}:{G+3}], v[{G+2}:{G+3}], v[{G+4}:{G+5}]
        v_mov_b32 v1, {C_FO}
        v_cvt_pk_bf16_f32 v{G}, v{G+2}, v{G+3}
        v_mov_b32 v2, 1
        ds_write_b16 v12, v{G} offset:{L_VEC}
        ds_write_b16_d16_hi v12, v{G} offset:{L_VEC+32}
        s_mov_b64 exec, 1
        ds_write_b32 v1, v2
        s_mov_b64 exec, -1""")
        self.stamp(8)
        A("s_branch L_adone")

    def final(self):
        A = self.A
        vI, vJ, vT = 4, 5, 16
        G0, G1 = 56, 60
        A(f"""
        L_final:
        s_mov_b32 s42, s{sR}
        s_lshl_b32 s43, s42, 7
        v_lshl_add_u32 v8, v0, 1, s43
        global_load_ushort v9, v8, s[4:5]""")
        if 'nofinal' in self.abl:
            A("s_branch L_adone")
        A(f"""
        s_and_b32 s41, s{sW}, 3
        s_cmp_lt_u32 s{sW}, 4
        s_cselect_b32 s46, 0, {WS_BF - WS_BS:#x}
        s_cselect_b32 s47, {28*ROWP}, 0
        s_cselect_b32 s93, -1, 0xffff
        s_mov_b32 s92, -1
        s_mul_i32 s40, s41, {ROWP}
        s_add_u32 s40, s40, s46
        s_lshl_b32 s43, s42, 8
        s_add_u32 s40, s40, s43
        s_add_u32 s46, s40, {WS_BS:#x}
        s_add_u32 s47, s47, s46
        v_mul_u32_u24 v1, {4*ROWP}, v{vJ}
        v_lshl_add_u32 v1, v{vI}, 4, v1
        v_add_u32 v6, s46, v1
        v_add_u32 v7, {16*ROWP}, v6
        v_lshl_add_u32 v10, v{vI}, 2, v{vJ}
        v_lshlrev_b32 v10, 5, v10
        s_lshl_b32 s40, s{sW}, 2
        v_add_u32 v10, s40, v10
        v_lshlrev_b32 v11, 5, v0
        v_mov_b32 v12, {C_F1}
        v_mov_b32 v13, 1
        s_waitcnt vmcnt(0)
        v_lshlrev_b32 v9, 16, v9""")
        for r in range(4):
            A(f"v_mov_b32 v{G1+r}, v3")
        if self.flocal:
            lf = self.lab("Lfl"); ns = self.lab("Lnfl")
            A(f"""
            s_cmp_lt_u32 s{sW}, 4
            s_cbranch_scc1 {ns}""")
            if self.flocal == 'xt':
                self.get_loc(sleep=4)
                A(f"s_cmp_lg_u32 s101, 0\ns_cbranch_scc1 {ns}")
            A(f"""
            s_mov_b32 s{sSPIN}, 0
            {lf}:
            s_sleep {self.fls}
            global_load_dwordx4 v[{G0}:{G0+3}], v6, s[26:27] {self.fmod}
            s_mov_b64 exec, s[92:93]
            global_load_dwordx4 v[{G1}:{G1+3}], v7, s[26:27] {self.fmod}
            s_mov_b64 exec, -1
            s_add_u32 s{sSPIN}, s{sSPIN}, 1
            s_cmp_gt_u32 s{sSPIN}, {SPIN_MAX}
            s_cbranch_scc1 L_end
            s_waitcnt vmcnt(0)
            v_bitop3_b32 v{vT}, v{G0}, v{G0+3}, s{sT10} bitop3:0x7e
            v_and_b32 v{vT}, s44, v{vT}
            v_cmp_eq_u32 vcc, 0, v{vT}
            s_nop 4
            s_cbranch_vccz {lf}
            s_branch L_fvec
            {ns}:""")
        l = self.lab("Lfp"); r_ = self.lab("Lfr")
        A(f"""
        s_add_u32 s40, s26, s46
        s_addc_u32 s41, s27, 0""")
        if self.stouch:
            for k in range(8):
                for h in (64, 128, 192):
                    A(f"s_load_dword s{48+k}, s[40:41], {4*min(k, 7)*ROWP + h} glc")
        A(f"""
        s_mov_b32 s{sSPIN}, 0
        s_branch {l}
        {r_}:
        s_cmp_lg_u32 s43, 0
        s_cbranch_scc1 {l}
        s_sleep {self.fsleep}
        {l}:""")
        for k in range(7):
            A(f"s_load_dword s{48+k}, s[40:41], {4*k*ROWP} glc")
        A(f"""
        s_load_dword s55, s[26:27], s47 glc
        s_add_u32 s{sSPIN}, s{sSPIN}, 1
        s_cmp_gt_u32 s{sSPIN}, {SPIN_MAX}
        s_cbranch_scc1 L_end
        s_waitcnt lgkmcnt(0)""")
        A("s_mov_b32 s43, 0")
        for k in range(8):
            A(f"s_and_b32 s{48+k}, s{48+k}, s44\ns_cmp_eq_u32 s{48+k}, s{sT10}\ns_addc_u32 s43, s43, 0")
        A(f"s_cmp_ge_u32 s43, {self.fthr}\ns_cbranch_scc0 {r_}")
        A("L_fvec:")
        self.stamp(9)
        rg = self.lab("Lfg")
        loads = f"""
            s_or_b64 exec, s[48:49], 1
            global_load_dwordx4 v[{G0}:{G0+3}], v6, s[26:27] {self.fmod if self.flocal else 'sc1'}
            s_or_b64 exec, s[92:93], 1
            global_load_dwordx4 v[{G1}:{G1+3}], v7, s[26:27] {self.fmod if self.flocal else 'sc1'}
            s_mov_b64 exec, -1"""
        A("s_mov_b64 s[48:49], -1")
        for k in range(self.fdepth - 1):
            A(loads)
        A(f"{rg}:")
        A(loads)
        A(f"s_waitcnt vmcnt({2*(self.fdepth - 1)})")
        for i, k in enumerate((G0, G1)):
            A(f"v_bitop3_b32 v{vT+2*i}, v{k}, v{k+1}, s{sT10} bitop3:0x7e")
            A(f"v_bitop3_b32 v{vT+2*i+1}, v{k+2}, v{k+3}, s{sT10} bitop3:0x7e")
        for i in range(2):
            A(f"v_bitop3_b32 v{vT+2*i}, v{vT+2*i}, v{vT+2*i+1}, s44 bitop3:0xa8")
        R = vT + 12
        A(f"""
        v_cmp_ne_u32 s[48:49], 0, v{vT}
        v_cmp_ne_u32 s[92:93], 0, v{vT+2}
        s_add_u32 s{sSPIN}, s{sSPIN}, 1
        s_cmp_gt_u32 s{sSPIN}, {SPIN_MAX}
        s_cbranch_scc1 L_end
        s_or_b64 s[40:41], s[48:49], s[92:93]
        s_cbranch_scc1 {rg}""")
        self.stamp(10)
        for k in range(4):
            A(f"v_xor_b32 v{R+k}, s{sT10}, v{G0+k}\nv_xor_b32 v{R+4+k}, s{sT10}, v{G1+k}")
        for h in (0, 2):
            A(f"v_pk_add_f32 v[{R+h}:{R+h+1}], v[{R+h}:{R+h+1}], v[{R+4+h}:{R+5+h}]")
        self.reduce_scatter_rows(R)
        f = vT + 4
        A(f"""
        ds_write_b32 v10, v{R} offset:{L_RF}
        s_mov_b64 exec, 1
        ds_add_rtn_u32 v2, v12, v13
        s_mov_b64 exec, -1
        ds_read_b128 v[{f}:{f+3}], v11 offset:{L_RF}
        ds_read_b128 v[{f+4}:{f+7}], v11 offset:{L_RF+16}
        s_waitcnt lgkmcnt(0)
        v_readfirstlane_b32 s{sTMP}, v2
        s_cmp_eq_u32 s{sTMP}, 7
        s_cbranch_scc0 L_adone
        v_pk_add_f32 v[{f+4}:{f+5}], v[{f+4}:{f+5}], v[{f+6}:{f+7}]
        v_pk_add_f32 v[{f}:{f+1}], v[{f}:{f+1}], v[{f+2}:{f+3}]
        v_add_f32 v{f+2}, v{f+4}, v{f+5}
        v_add_f32 v{f}, v{f}, v{f+1}
        v_cvt_pk_bf16_f32 v{f}, v{f}, v{f+2}
        v_and_b32 v{f+2}, 0xffff0000, v{f}
        v_mul_f32 v{f+3}, {f2u(-LOG2E):#x}, v{f+2}
        v_exp_f32 v{f+3}, v{f+3}
        v_lshlrev_b32 v{f}, 16, v{f}
        v_add_f32 v{f+3}, 1.0, v{f+3}
        v_rcp_f32 v{f+3}, v{f+3}
        s_nop 0
        v_mul_f32 v{f+2}, v{f+2}, v{f+3}""")
        self.bf16_round(f + 2, f + 2)
        A(f"v_mul_f32 v{f}, v{f}, v{f+2}")
        self.bf16_round(f, f)
        A(f"""
        v_add_f32 v{f}, v{f}, v9
        v_cvt_pk_bf16_f32 v{f}, v{f}, v{f}
        global_store_short v8, v{f}, s[22:23] {self.outmod}""")
        A(f"""
        {'s_branch L_mag' if self.mag else ''}
        L_magback:
        s_cmp_lg_u32 s{sR}, 0
        s_cbranch_scc1 L_adone
        s_mov_b64 exec, 1
        v_mov_b32 v1, {WS_E}
        v_mov_b32 v2, s{sT32}
        global_store_dword v1, v2, s[26:27]
        s_branch L_adone""")
        if self.mag:
            what, K = self.mag[:2]
            A(f"""
            L_mag:
            s_memrealtime s[90:91]
            s_sleep 64
            v_lshlrev_b32 v1, 9, v0
            v_add_u32 v1, 0x300000, v1
            global_load_dword v56, v1, s[26:27] sc1
            global_load_dword v57, v1, s[26:27] offset:128 sc1
            global_load_dword v58, v1, s[26:27] offset:256 sc1
            global_load_dword v59, v1, s[26:27] offset:384 sc1
            s_waitcnt vmcnt(0) lgkmcnt(0)
            v_sub_u32 v56, s90, v56
            v_sub_u32 v57, s90, v57
            v_sub_u32 v58, s90, v58
            v_sub_u32 v59, s90, v59
            v_cvt_f32_u32 v56, v56
            v_cvt_f32_u32 v57, v57
            v_cvt_f32_u32 v58, v58
            v_cvt_f32_u32 v59, v59
            v_max3_f32 v60, v56, v57, v58
            v_max_f32 v60, v60, v59
            v_min3_f32 v61, v56, v57, v58
            v_min_f32 v61, v61, v59""")
            self.allreduce_in_row(60, "v_max_f32"); self.allreduce_rows(60, 62, "v_max_f32")
            self.allreduce_in_row(61, "v_min_f32"); self.allreduce_rows(61, 62, "v_min_f32")
            if what == 'ev':
                A("""
                v_add_u32 v1, 0x10000, v1
                global_load_dword v56, v1, s[26:27] sc1
                global_load_dword v57, v1, s[26:27] offset:128 sc1
                global_load_dword v58, v1, s[26:27] offset:256 sc1
                global_load_dword v59, v1, s[26:27] offset:384 sc1
                s_waitcnt vmcnt(0)
                v_sub_u32 v56, s90, v56
                v_sub_u32 v57, s90, v57
                v_sub_u32 v58, s90, v58
                v_sub_u32 v59, s90, v59
                v_cvt_f32_i32 v56, v56
                v_cvt_f32_i32 v57, v57
                v_cvt_f32_i32 v58, v58
                v_cvt_f32_i32 v59, v59
                v_min3_f32 v61, v56, v57, v58
                v_min_f32 v61, v61, v59""")
                self.allreduce_in_row(61, "v_min_f32"); self.allreduce_rows(61, 62, "v_min_f32")
                A("v_sub_f32 v60, v60, v61")
            if what == 'skew':
                A("v_sub_f32 v60, v60, v61")
            elif what == 'max':
                A("v_mov_b32 v60, v61")
            A(f"""
            v_min_f32 v60, 0x44fa0000, v60
            v_cvt_u32_f32 v60, v60
            s_nop 1
            v_readfirstlane_b32 s40, v60
            s_mul_i32 s40, s40, {K}
            s_add_u32 s40, s40, s90
            L_magspin:
            s_memrealtime s[42:43]
            s_waitcnt lgkmcnt(0)
            s_sub_u32 s41, s42, s40
            s_cmp_lt_i32 s41, 0
            s_cbranch_scc1 L_magspin
            s_branch L_magback""")


class Gen(Gen0):
    def __init__(self, ldsb=None, nvo=None, **kw):
        self.ldsb, self.nvo = ldsb, nvo
        super().__init__(**kw)


if __name__ == "__main__":
    import argparse
    ap = argparse.ArgumentParser()
    ap.add_argument("-o", default="recurrent_scan__sliding_block_cached__geglu_ffn__decode.s")

    ap.add_argument("--stamps", action="store_true")
    ap.add_argument("--probe", default=None)
    ap.add_argument("--kw", default="")
    a = ap.parse_args()
    open(a.o, "w").write(Gen(stamps=a.stamps, probe=tuple(map(int, a.probe.split(','))) if a.probe else None, **eval(f'dict({a.kw})')).build())
```

```python
import sys, struct

KN = "recurrent_scan__sliding_block_cached__geglu_ffn__decode_kernel"

def f2u(x):
    return struct.unpack("<I", struct.pack("<f", x))[0]

WS_E   = 0x0
WS_FLD = 0x1000
WS_XT  = 0x3000
WS_XA  = 0x3400
WS_XV  = 0x8000
WS_BML = 0x4000
WS_BQ  = 0x10000
WS_BD  = 0x30000
ROWP   = 4352
WS_BS  = 0x50000
WS_BF  = 0x78000
WS_BO  = 0xA0000
BOP    = 4096 + 128
REPP   = 17 * 128
WS_FLA = 0x130000
WS_FLB = 0x148000
WS_ST  = 0x400000

L_RQ   = 0
L_RG   = L_RQ + 2048
L_QL   = L_RG + 4096
QLP    = 272
L_WT   = L_QL + 2304
L_VEC  = L_WT + 512
L_XQ   = L_VEC + 256
L_XG   = L_XQ + 256
L_RF   = L_XG + 512
L_CNT  = L_RF + 2048
C_Q, C_G, C_X, C_QL, C_HB, C_FO, C_GA, C_B1, C_F1 = [L_CNT + 4*i for i in range(9)]
C_LOC = L_CNT + 36
C_TR = L_CNT + 40
C_XN, C_K, C_V = L_CNT + 48, L_CNT + 64, L_CNT + 80
L_K    = 12288
L_V    = L_K + 32768
assert L_CNT + 128 <= L_K
LDS_BYTES = L_V + 32768
YF, YL = 16, 30

TAGM = 0x3FF
LOG2E = 1.4426950408889634
SPIN_MAX = 1 << 20

sX, sY, sRB, sHQ, sRBQ, sTL, sG, sCH = 28, 29, 30, 31, 32, 33, 34, 35
sT32, sT10, sSPIN, sTMP = 36, 37, 38, 39
sW = 3
sGATE = 100
sTY, sUP, sR = 97, 98, 99
sP = 48
sSTAMP = 64


HEADER = """
; 56 w_up, 64 w_down, 72 out, 80 debug, 88 ws.
;
;
;   every workgroup : a 128 x 128 tile of wq (q partials, 8 per column)
;   x odd           : kv group x>>1, keys 128*y .. +128 of the window, then a 128 x 256 tile of wo
;   x even, y < 28  : gate / up tiles (256 rows x 128 columns), then a 128 x 256 tile of w_down
;   x even, y >= 28 : final reduction of 64 output columns
; a one-hot selector carrying the vector element of each row.  Waves 0..3 do the layernorm, the hand-offs,
; the attention (running maximum per 32 keys, merged exactly) and the activations.
; bits; a reader re-reads until every tag matches and clears the tag bits before it uses a value.  The words
; other stays in that die's L2 (plain stores); otherwise it is written through (sc1).  Placement costs speed only.
"""


class Gen0:
    def __init__(self, stamps=False, prefetch=True, probe=None, abl='', xnpos=11, nrepA=4, nrepB=4, psleep=1,
                 WA=(6, 6, 5), WF=(6, 8, 8), pause='gather', fthr=6, wtest=None, fsleep=16, upx=2, layout='mix', plain='', gmod='sc1', local=False, touch=False, flagpos='end', HA=0, HF=0, vlate=False, kfirst=True, localD=False, earlyD=False, warm=None, warmO=False, qmap='grp', forceloc=False, xt=False, stag=False, dtouch=False, qtouch=False, strig=False, svec=False, staged=(), stouch=False, sync0=False, mag=None, ftrans=False, flocal=None, fmod='sc1', fls=4, wideg=0, widew=False, wideq=0, xsleep=10, fdepth=2, outmod='', gateA=(1, 1), gateF=(0, 0), WAe=None, WFe=None):
        self.gateA, self.gateF = gateA, gateF
        self.WAe, self.WFe = WAe, WFe
        self.local = local
        self.fdepth = fdepth
        self.touch = touch
        self.warm = warm
        self.dtouch, self.qtouch = dtouch, qtouch
        self.strig = strig
        self.svec = svec
        self.staged = staged
        self.stouch = stouch
        self.sync0 = sync0
        self.mag = mag
        self.ftrans, self.flocal, self.fmod, self.fls = ftrans, flocal, fmod, fls
        self.wideg, self.widew, self.wideq = wideg, widew, wideq
        self.xt, self.stag, self.xsleep = xt, stag, xsleep
        if xt:
            forceloc = True
        self.qmap, self.forceloc = qmap, forceloc
        self.warmO = warmO
        self.localD, self.earlyD = localD, earlyD
        self.kfirst = kfirst
        self.flagpos, self.HA, self.HF, self.vlate = flagpos, HA, HF, vlate
        self.outmod = outmod
        assert not local or layout != 'mix'
        self.gmod = gmod
        self.layout = layout
        self.plain = plain
        self.fsleep = fsleep
        self.upx = upx
        self.wtest = wtest
        self.fthr = fthr
        self.L = []
        self.stamps = stamps
        self.prefetch = prefetch
        self.probe = probe
        self.abl = abl
        self.xnpos = xnpos
        self.nrepA, self.nrepB = nrepA, nrepB
        self.psleep = psleep
        self.relwait = False
        self.WA, self.WF = WA, WF
        self.pause = pause
        self.nlab = 0

    def A(self, s):
        for line in s.strip("\n").split("\n"):
            if line.strip():
                self.L.append("    " + line.strip() if not line.strip().endswith(":") else line.strip())

    def lab(self, p="L"):
        self.nlab += 1
        return f"{p}_{self.nlab}"

    def stamp(self, k):
        if self.mag and len(self.mag) > 2:
            if k == self.mag[3]:
                self.A(f"s_memrealtime s[88:89]")
            return
        if self.stamps == 'lite' and k not in (0, 10, 14):
            return
        if self.stamps or (self.probe and k in (0, self.probe[2])):
            self.A(f"s_memrealtime s[{sSTAMP+2*k}:{sSTAMP+2*k+1}]")

    def mask(self, reg, val):
        lo, hi = val & 0xFFFFFFFF, val >> 32
        self.A(f"s_mov_b32 {reg[0]}, {lo:#x}\ns_mov_b32 {reg[1]}, {hi:#x}")

    def exec_set(self, val):
        if val == -1:
            self.A("s_mov_b64 exec, -1")
        elif val <= 64:
            self.A(f"s_mov_b64 exec, {val}")
        elif val < (1 << 31):
            self.A(f"s_mov_b64 exec, {val:#x}")
        else:
            self.mask(("exec_lo", "exec_hi"), val)

    def arrive(self, cnt, want_old=True, inc=1):
        self.A(f"""
        s_mov_b64 exec, 1
        v_mov_b32 v1, {cnt}
        v_mov_b32 v2, {inc}""")
        if want_old:
            self.A(f"""
            ds_add_rtn_u32 v2, v1, v2
            s_waitcnt lgkmcnt(0)
            v_readfirstlane_b32 s{sTMP}, v2""")
        else:
            self.A("ds_add_u32 v1, v2")
        self.A("s_mov_b64 exec, -1")

    def lds_spin(self, cnt, val, sleep=1, reads="", low8=False):
        l = self.lab("Lspin"); d = self.lab("Lgot")
        self.A(f"""
        v_mov_b32 v1, {cnt}
        s_mov_b32 s{sSPIN}, 0
        {l}:
        ds_read_b32 v2, v1
        {reads}
        s_add_u32 s{sSPIN}, s{sSPIN}, 1
        s_cmp_gt_u32 s{sSPIN}, {SPIN_MAX}
        s_cbranch_scc1 L_end
        s_waitcnt lgkmcnt(0)
        v_readfirstlane_b32 s{sTMP}, v2""")
        if low8:
            self.A(f"s_lshr_b32 s101, s{sTMP}, 8\ns_and_b32 s{sTMP}, s{sTMP}, 0xff")
        if sleep:
            self.A(f"s_cmp_eq_u32 s{sTMP}, {val}\ns_cbranch_scc1 {d}\ns_sleep {sleep}\ns_branch {l}\n{d}:")
        else:
            self.A(f"s_cmp_eq_u32 s{sTMP}, {val}\ns_cbranch_scc0 {l}")

    def flag_poll(self, n, two=False):
        if 'nopoll' in self.abl:
            return
        l = self.lab("Lpoll"); r = self.lab("Lretry"); d = self.lab("Lflag")
        self.A(f"""
        s_mov_b32 s{sSPIN}, 0
        s_mov_b32 s42, s{sT32}
        s_mov_b32 s43, s{sT32}
        s_branch {l}
        {r}:
        s_sleep {self.psleep}
        {l}:
        s_load_dwordx{n} s[{sP}:{sP+n-1}], s[26:27], s40 glc
        {'s_load_dwordx16 s[4:19], s[26:27], s41 glc' if two else ''}
        s_add_u32 s{sSPIN}, s{sSPIN}, 1
        s_cmp_gt_u32 s{sSPIN}, {SPIN_MAX}
        s_cbranch_scc1 L_end
        s_waitcnt lgkmcnt(0)""")
        for b in ((sP, 4) if two else (sP,)):
            for i in range(0, n, 2):
                self.A(f"s_cmp_eq_u64 s[{b+i}:{b+i+1}], s[42:43]\ns_cbranch_scc0 {r}")
        self.A(f"{d}:")

    def gate(self, k, used):
        if k not in used:
            return
        l = self.lab("Lgate")
        self.A(f"s_cmp_eq_u32 s{sGATE}, {k}\ns_cbranch_scc0 {l}")
        self.arrive(C_GA, want_old=False)
        self.A(f"{l}:")

    def get_loc(self, vreg=None, sleep=0):
        l = self.lab("Lloc")
        if vreg is not None:
            self.A(f"v_readfirstlane_b32 s101, v{vreg}\ns_cmp_lg_u32 s101, 0\ns_cbranch_scc1 {l}_d")
        self.A(f"""
        v_mov_b32 v1, {C_LOC}
        s_mov_b32 s{sSPIN}, 0
        {l}:
        {f's_sleep {sleep}' if sleep else ''}
        ds_read_b32 v2, v1
        s_add_u32 s{sSPIN}, s{sSPIN}, 1
        s_cmp_gt_u32 s{sSPIN}, {SPIN_MAX}
        s_cbranch_scc1 L_end
        s_waitcnt lgkmcnt(0)
        v_readfirstlane_b32 s101, v2
        s_cmp_eq_u32 s101, 0
        s_cbranch_scc1 {l}
        {l}_d:
        s_lshr_b32 s101, s101, 1""")

    def early_flag(self, pos):
        if self.flagpos != pos:
            return
        l = self.lab("Lef")
        self.A(f"s_or_b32 s40, s101, s{sW}\ns_cbranch_scc1 {l}\ns_mov_b32 s40, s95")
        self.flag_store(self.nrepB)
        self.A(f"{l}:")

    def flag_store(self, n, vaddr=None, val=sT32):
        self.exec_set((1 << n) - 1)
        self.A(f"""
        {f'v_mul_u32_u24 v1, {REPP}, v0' if vaddr is None else ''}
        v_add_u32 v1, s40, v{1 if vaddr is None else vaddr}
        v_mov_b32 v2, s{val}
        global_store_dword v1, v2, s[26:27] sc1
        s_mov_b64 exec, -1""")

    def tagcheck(self, regs, vacc, vt):
        first = True
        for r in regs:
            if first:
                self.A(f"v_bitop3_b32 v{vacc}, v{r}, v{r+1}, s{sT10} bitop3:0x7e")
                self.A(f"v_bitop3_b32 v{vt}, v{r+2}, v{r+3}, s{sT10} bitop3:0x7e")
                self.A(f"v_or_b32 v{vacc}, v{vacc}, v{vt}")
                first = False
            else:
                self.A(f"v_bitop3_b32 v{vt}, v{r}, v{r+1}, s{sT10} bitop3:0x7e")
                self.A(f"v_bitop3_b32 v{vt+1}, v{r+2}, v{r+3}, s{sT10} bitop3:0x7e")
                self.A(f"v_or3_b32 v{vacc}, v{vacc}, v{vt}, v{vt+1}")

    def tagcheck2(self, regs, vacc, vt):
        out = []
        for i, r in enumerate(regs):
            d = vacc if i == 0 else vt + (i - 1) % 2
            self.A(f"v_bitop3_b32 v{d}, v{r}, v{r+3}, s{sT10} bitop3:0x7e")
            if i and i % 2 == 0:
                self.A(f"v_or3_b32 v{vacc}, v{vacc}, v{vt}, v{vt+1}")
        if len(regs) % 2 == 0:
            self.A(f"v_or_b32 v{vacc}, v{vacc}, v{vt}")

    def untag_list(self, regs, vacc, first=True):
        out = []
        for i, r in enumerate(regs):
            out += [f"v_xor_b32 v{r+k}, s{sT10}, v{r+k}" for k in range(4)]
            if i == 0 and first:
                out += [f"v_or3_b32 v{vacc}, v{r}, v{r+1}, v{r+2}", f"v_or_b32 v{vacc}, v{vacc}, v{r+3}"]
            else:
                out += [f"v_or3_b32 v{vacc}, v{vacc}, v{r}, v{r+1}", f"v_or3_b32 v{vacc}, v{vacc}, v{r+2}, v{r+3}"]
        return out

    def untag(self, regs, vacc, counted=False):
        ins = self.untag_list(regs, vacc)
        for i in range(len(regs)):
            if counted and i % 2 == 0:
                self.A(f"s_waitcnt vmcnt({max(0, len(regs) - 2 - i)})")
            self.A("\n".join(ins[6*i:6*i+6]))

    def pad2(self, fill):
        if len(fill) >= 2:
            self.A(fill.pop(0) + "\n" + fill.pop(0))
        else:
            self.A("s_nop 1")

    def tagtest(self, vacc, retry):
        if 'notag' in self.abl:
            return
        self.A(f"""
        v_and_b32 v{vacc}, {TAGM:#x}, v{vacc}
        v_cmp_ne_u32 vcc, 0, v{vacc}
        {'s_add_u32 s96, s96, 1' if self.stamps else ''}
        s_add_u32 s{sSPIN}, s{sSPIN}, 1
        s_cmp_gt_u32 s{sSPIN}, {SPIN_MAX}
        s_cbranch_scc1 L_end
        s_nop 1
        s_cbranch_vccnz {retry}""")

    def tag(self, r):
        self.A(f"v_bfi_b32 v{r}, s44, v3, v{r}")

    def reduce_scatter_rows(self, a):
        self.A(f"""
        s_nop 1
        v_permlane32_swap_b32 v{a}, v{a+2}
        v_permlane32_swap_b32 v{a+1}, v{a+3}
        v_add_f32 v{a}, v{a}, v{a+2}
        v_add_f32 v{a+1}, v{a+1}, v{a+3}
        s_nop 1
        v_permlane16_swap_b32 v{a}, v{a+1}
        v_add_f32 v{a}, v{a}, v{a+1}""")

    def allreduce_rows(self, a, t, op):
        self.A(f"""
        v_mov_b32 v{t}, v{a}
        s_nop 1
        v_permlane32_swap_b32 v{t}, v{a}
        {op} v{a}, v{a}, v{t}
        v_mov_b32 v{t}, v{a}
        s_nop 1
        v_permlane16_swap_b32 v{t}, v{a}
        {op} v{a}, v{a}, v{t}""")

    def allreduce_in_row(self, a, op="v_add_f32", fill=None):
        for m in ("quad_perm:[1,0,3,2]", "quad_perm:[2,3,0,1]", "row_half_mirror", "row_mirror"):
            self.pad2(fill if fill is not None else [])
            self.A(f"{op}_dpp v{a}, v{a}, v{a} {m} row_mask:0xf bank_mask:0xf")

    def bf16_round(self, d, s):
        self.A(f"v_cvt_pk_bf16_f32 v{d}, v{s}, v{s}\nv_and_b32 v{d}, 0xffff0000, v{d}")

    def build(self):
        A = self.A
        self.L.append(f"; @launch grid=(256,1,1) block=(512,1,1) lds={getattr(self, 'ldsb', None) or LDS_BYTES}")
        self.L += HEADER.strip("\n").split("\n")
        self.L.append('.amdgcn_target "amdgcn-amd-amdhsa--gfx950"')
        self.L += [".text", f".globl {KN}", ".p2align 12", ".p2align 8", f".type {KN},@function", f"{KN}:"]
        if self.sync0:
            A("""
            s_memrealtime s[40:41]
            s_waitcnt lgkmcnt(0)
            s_lshr_b32 s40, s40, 9
            s_add_u32 s40, s40, 1
            s_lshl_b32 s40, s40, 9
            L_sync0:
            s_memrealtime s[42:43]
            s_waitcnt lgkmcnt(0)
            s_sub_u32 s41, s42, s40
            s_cmp_lt_i32 s41, 0
            s_cbranch_scc1 L_sync0""")
        self.stamp(0)
        if self.mag:
            A("s_memrealtime s[90:91]")
        A(f"""
        s_cmp_ge_u32 s2, 256
        s_cbranch_scc1 L_end
        s_load_dwordx16 s[4:19], s[0:1], 0
        s_load_dwordx8 s[20:27], s[0:1], 64
        v_lshrrev_b32 v1, 6, v0
        s_and_b32 s{sX}, s2, 7
        s_lshr_b32 s{sY}, s2, 3
        v_readfirstlane_b32 s{sW}, v1""")
        if self.prefetch:
            A(f"""
            s_getpc_b64 s[46:47]
            L_pc:
            s_lshl_b32 s42, s{sY}, 9
            v_add_u32 v1, s42, v0
            v_min_u32 v1, L_codeend-L_pc-4, v1
            s_mov_b64 exec, 1
            global_load_ubyte v55, v1, s[46:47]
            s_mov_b64 exec, -1""")
        A(f"""
        v_and_b32 v0, 63, v0
""")
        if self.layout == 'mix':
            A(f"""
            s_lshr_b32 s{sHQ}, s{sY}, 3
            s_lshl2_add_u32 s{sHQ}, s{sX}, s{sHQ}
            s_and_b32 s{sRBQ}, s{sY}, 7
            s_lshr_b32 s{sG}, s{sX}, 1
            s_and_b32 s{sCH}, s{sX}, 1
            s_lshl4_add_u32 s{sCH}, s{sCH}, s{sY}
            s_lshl4_add_u32 s40, s{sX}, s{sY}
            s_mul_i32 s41, s{sX}, 14
            s_add_u32 s41, s41, s{sY}
            s_sub_u32 s41, s41, {YF}
            s_cmp_lt_u32 s{sY}, {YF}
            s_cselect_b32 s40, s40, s41
            s_cselect_b32 s{sTY}, 0, 1
            s_cmp_ge_u32 s{sY}, {YL}
            s_addc_u32 s{sTY}, s{sTY}, 0
            s_lshr_b32 s{sTL}, s40, 2
            s_and_b32 s{sRB}, s40, 3
            s_xor_b32 s{sUP}, s{sTL}, {self.upx}
            s_lshl1_add_u32 s{sR}, s{sX}, s{sY}
            s_sub_u32 s{sR}, s{sR}, {YL}""")
        else:
            if self.layout == 'odd':
                A(f"s_lshr_b32 s{sG}, s{sX}, 1\ns_and_b32 s{sTY}, s{sX}, 1\ns_xor_b32 s{sTY}, s{sTY}, 1")
            else:
                A(f"s_and_b32 s{sG}, s{sX}, 3\ns_lshr_b32 s{sTY}, s{sX}, 2")
                if self.layout == 'hi':
                    A(f"s_xor_b32 s{sTY}, s{sTY}, 1")
            A(f"""
            s_mov_b32 s{sCH}, s{sY}
            s_and_b32 s{sRB}, s{sY}, 3
            s_lshr_b32 s40, s{sY}, 2
            s_lshl3_add_u32 s{sHQ}, s{sG}, s40
            s_lshl2_add_u32 s{sRBQ}, s{sTY}, s{sRB}
            s_mul_i32 s41, s{sG}, s{sTY}
            s_sub_u32 s{sTL}, s{sHQ}, s41
            s_add_u32 s{sUP}, s40, {self.upx}
            s_cmp_ge_u32 s{sUP}, 7
            s_cselect_b32 s41, 7, 0
            s_sub_u32 s{sUP}, s{sUP}, s41
            s_sub_u32 s{sUP}, s{sUP}, s40
            s_add_u32 s{sUP}, s{sUP}, s{sTL}
            s_lshl2_add_u32 s{sR}, s{sG}, s{sRB}
            s_cmp_eq_u32 s40, 7
            s_cselect_b32 s41, s{sTY}, 0
            s_add_u32 s{sTY}, s{sTY}, s41""")
        A(f"""
""")
        if self.ftrans:
            A(f"""
            s_cmp_eq_u32 s{sTY}, 1
            s_cselect_b32 s{sTL}, s{sY}, s{sTL}
            s_cselect_b32 s{sRB}, s{sG}, s{sRB}
            s_xor_b32 s{sUP}, s{sTL}, {self.upx}""")
        A(f"""
        {f's_mov_b32 s{sHQ}, s{sY}' if self.qmap == 'rows' else ''}
        {f's_mov_b32 s{sRBQ}, s{sX}' if self.qmap == 'rows' else ''}
        s_cmp_lt_u32 s{sX}, 2
        s_cselect_b32 s40, {self.gateA[0]}, {self.gateA[1]}
        s_cselect_b32 s41, {self.gateF[0]}, {self.gateF[1]}
        s_cmp_eq_u32 s{sTY}, 0
        s_cselect_b32 s{sGATE}, s40, s41
        s_movk_i32 s44, {TAGM:#x}
        v_and_b32 v4, 15, v0
        v_lshrrev_b32 v5, 4, v0""")
        if self.stamps or self.probe or self.mag:
            A(f"s_mov_b32 s96, 0\ns_mov_b32 s94, s{sW}")
        if self.probe:
            A(f"s_waitcnt lgkmcnt(0)\ns_mov_b32 s{sSTAMP+2*self.probe[2]}, s{sSTAMP}")
        A(f"""
        s_cmp_lt_u32 s{sW}, 4
        s_cbranch_scc1 L_awave""")
        L0 = self.L
        self.L = []
        self.swave()
        cut = self.L.index("L_sdispatch:")
        shead, stail = self.L[:cut], self.L[cut:]
        self.L = L0 + shead
        A("s_branch L_sdispatch\nL_awave:")
        self.awave()
        self.L += stail
        self.final()
        A("L_end:")
        A("s_endpgm")
        self.L.append("L_codeend:")
        nv = getattr(self, 'nvo', None) or 200
        self.L += ['.section .rodata,"a"', ".p2align 6", f".amdhsa_kernel {KN}",
                   f"  .amdhsa_next_free_vgpr {nv}", "  .amdhsa_next_free_sgpr 102", f"  .amdhsa_accum_offset {nv}",
                   "  .amdhsa_group_segment_fixed_size 0", "  .amdhsa_kernarg_size 96", "  .amdhsa_user_sgpr_count 2",
                   "  .amdhsa_user_sgpr_kernarg_segment_ptr 1", "  .amdhsa_system_sgpr_workgroup_id_x 1",
                   "  .amdhsa_float_denorm_mode_32 3", ".end_amdhsa_kernel"]
        return "\n".join(self.L) + "\n"

    def write_stamps(self, n):
        if self.mag and len(self.mag) > 2:
            self.stamp(n)
            d = self.lab("Lmg")
            self.A(f"""
            s_waitcnt lgkmcnt(0)
            s_cmp_eq_u32 s94, {self.mag[2]}
            s_cbranch_scc0 {d}
            s_cmp_eq_u32 s{sTY}, {self.mag[4]}
            s_cbranch_scc0 {d}
            s_lshl_b32 s40, s2, 7
            s_add_u32 s40, s40, 0x310000
            s_mov_b64 exec, 1
            v_mov_b32 v1, s40
            v_mov_b32 v2, s88
            global_store_dword v1, v2, s[26:27] sc1
            {d}:""")
            return
        if self.probe:
            wg, wave, k = self.probe[:3]
            ty = self.probe[3] if len(self.probe) > 3 else None
            self.stamp(n)
            d = self.lab("Lprobe_done"); l = self.lab("Lprobe")
            self.A(f"""
            s_waitcnt lgkmcnt(0)
            s_getreg_b32 s41, hwreg(HW_REG_XCC_ID, 0, 4)
            {f's_cmp_eq_u32 s41, {-wg-100}' if wg <= -100 else f"s_cmp_eq_u32 s2, {wg if wg >= 0 else 's2'}"}
            s_cbranch_scc0 {d}
            s_cmp_eq_u32 s94, {wave}
            s_cbranch_scc0 {d}
            s_cmp_eq_u32 s{sTY}, {ty if ty is not None else f's{sTY}'}
            s_cbranch_scc0 {d}
            s_add_u32 s40, s{sSTAMP+2*k}, 4000
            {l}:
            s_memrealtime s[42:43]
            s_waitcnt lgkmcnt(0)
            s_sub_u32 s41, s42, s40
            s_cmp_lt_i32 s41, 0
            s_cbranch_scc1 {l}
            {d}:""")
            return
        if not self.stamps:
            return
        self.stamp(n)
        A = self.A
        A(f"""
        s_waitcnt lgkmcnt(0)
        s_mov_b64 exec, -1
        s_lshl3_add_u32 s40, s2, s94
        s_lshl_b32 s40, s40, 6
        s_add_u32 s40, s40, {WS_ST:#x}
        v_mov_b32 v1, 0""")
        for k in range(n + 1):
            A(f"v_writelane_b32 v1, s{sSTAMP+2*k}, {k}")
        A(f"""
        s_getreg_b32 s41, hwreg(HW_REG_XCC_ID)
        s_and_b32 s41, s41, 0xf
        s_lshl4_add_u32 s41, s96, s41
        v_writelane_b32 v1, s41, 15
        v_lshl_add_u32 v2, v0, 2, s40
        s_mov_b64 exec, 0xffff
        global_store_dword v2, v1, s[26:27]""")

    def swave(self):
        A = self.A
        vI, vJ = 4, 5
        vAq, vA1, vA2, vA3, vAw, vRed, vPub = 6, 7, 8, 9, 10, 11, 14
        vPS, vXQ, vXG, vSEL, aQ, aG, aU, vT = 16, 24, 28, 36, 40, 44, 48, 52
        RING, BIG = 56, 120
        A(f"""
        L_swave:
        s_sub_u32 s{sW}, s{sW}, 4
        s_lshl2_add_u32 s40, s{sRBQ}, s{sW}
        s_lshl_b32 s40, s40, 18
        s_lshl_b32 s41, s{sHQ}, 8
        s_add_u32 s40, s40, s41
        v_lshlrev_b32 v13, 4, v{vI}
        v_lshl_add_u32 v{vAq}, v{vJ}, 13, v13
        v_add_u32 v{vAq}, s40, v{vAq}
        s_mov_b32 s45, 0x8000""")
        if self.wideq:
            A(f"""
            s_lshl2_add_u32 s40, s2, s{sW}
            s_lshl_b32 s40, s40, 13
            v_lshl_add_u32 v{vAq}, v0, 4, s40
            s_movk_i32 s45, 0x400""")
        A("s_waitcnt lgkmcnt(0)")
        for m in range(8):
            A(f"global_load_dwordx4 v[{RING+4*m}:{RING+4*m+3}], v{vAq}, s[10:11] nt")
            if m < 7:
                A(f"v_add_u32 v{vAq}, s45, v{vAq}")
        A(f"s_load_dword s{sT32}, s[26:27], {WS_E}")
        self.stamp(1)
        A(f"""
        ; wo / down: rows tile*128 + 8*m + (l>>3), columns cb*256 + sw*64 + 8*(l&7)
        v_lshrrev_b32 v12, 3, v0
        v_and_b32 v1, 7, v0
        v_lshlrev_b32 v2, 4, v1
        v_lshl_add_u32 v{vAw}, v12, 11, v2
        s_lshl2_add_u32 s42, s{sRB}, s{sW}
        s_lshl_b32 s40, s42, 7
        s_lshl_b32 s41, s{sTL}, 18
        s_add_u32 s40, s40, s41
        v_add_u32 v{vAw}, s40, v{vAw}
        s_movk_i32 s45, 0x4000""")
        if self.widew:
            A(f"""
            s_lshl_b32 s40, s{sW}, 16
            s_add_u32 s41, s41, s40
            s_lshl_b32 s40, s{sRB}, 9
            s_add_u32 s41, s41, s40
            v_lshrrev_b32 v2, 5, v0
            v_lshlrev_b32 v2, 11, v2
            v_and_b32 v{vAw}, 31, v0
            v_lshl_add_u32 v{vAw}, v{vAw}, 4, v2
            v_add_u32 v{vAw}, s41, v{vAw}
            s_movk_i32 s45, 0x1000""")
        A(f"""
        v_lshl_add_u32 v1, v1, 1, v{vJ}
        s_lshl_b32 s40, s42, 8
        v_lshl_add_u32 v{vPub}, v1, 4, s40
        ; LDS offset of this lane's partial granule: (2*(l&15) + J)*16
        v_lshl_add_u32 v{vRed}, v{vI}, 1, v{vJ}
        v_lshlrev_b32 v{vRed}, 4, v{vRed}
        s_mov_b32 s40, 0xaaaaaaaa
        s_mov_b32 s41, 0xaaaaaaaa
        v_mov_b32 v1, 0x0c0c0100
        v_mov_b32 v2, 0x01000c0c
        v_cndmask_b32 v1, v1, v2, s[40:41]
        v_mov_b32 v2, 0x0c0c0302
        v_mov_b32 v3, 0x03020c0c
        v_cndmask_b32 v2, v2, v3, s[40:41]
        v_mov_b32 v3, 0x0c0c0c0c""")
        for d in range(4):
            m = 0x03030303 << (2*d)
            A(f"""
            s_mov_b32 s40, {m:#x}
            s_mov_b32 s41, {m:#x}
            v_cndmask_b32 v{vPS+d}, v3, v1, s[40:41]
            v_cndmask_b32 v{vPS+4+d}, v3, v2, s[40:41]""")
        A(f"""
        s_barrier
        s_waitcnt lgkmcnt(0)
        s_add_u32 s{sT32}, s{sT32}, 1
        s_and_b32 s{sT10}, s{sT32}, s44
        v_mov_b32 v3, s{sT10}
        s_cmp_ge_u32 s{sTY}, 1
        s_cbranch_scc1 L_s_notattn
        L_sdispatch:""")

        def sel(m, dst, src):
            for d in range(4):
                A(f"v_perm_b32 v{dst+d}, v{src+(m>>1)}, v{src+(m>>1)}, v{vPS+4*(m&1)+d}")

        def mfma(acc, s, w, first):
            c = "0" if first else f"v[{acc}:{acc+3}]"
            A(f"v_mfma_f32_16x16x32_bf16 v[{acc}:{acc+3}], v[{s}:{s+3}], v[{w}:{w+3}], {c}")

        def get_xn(ffn):
            A(f"s_lshl_b32 s41, s{sW}, 2\ns_add_u32 s41, s41, {C_XN}")
            self.lds_spin("s41", 1, sleep=0)
            A(f"""
            s_lshl_b32 s40, s{sW}, 6
            v_lshl_add_u32 v2, v{vJ}, 4, s40
            ds_read_b128 v[{vXQ}:{vXQ+3}], v2 offset:{L_XQ}""")
            if ffn:
                A(f"""
                v_lshlrev_b32 v2, 1, v2
                ds_read_b128 v[{vXG}:{vXG+3}], v2 offset:{L_XG}
                ds_read_b128 v[{vXG+4}:{vXG+7}], v2 offset:{L_XG+16}""")
            A("s_waitcnt lgkmcnt(0)")
            self.stamp(3)
            sel(0, vSEL, vXQ)
            A("s_nop 1")

        def red_write(accs, lbase, shift, cnt):
            A(f"s_lshl_b32 s40, s{sW}, {shift}\nv_add_u32 v1, s40, v{vRed}\ns_mov_b32 exec_hi, 0")
            for i, a in enumerate(accs):
                A(f"ds_write_b128 v1, v[{a}:{a+3}] offset:{lbase + 512*i}")
            self.arrive(cnt, want_old=False)

        def kvflag(c):
            A(f"""
            s_lshl_b32 s40, s{sW}, 2
            s_mov_b64 exec, 1
            v_mov_b32 v1, s40
            v_mov_b32 v2, 1
            ds_write_b32 v1, v2 offset:{c}
            s_mov_b64 exec, -1""")

        def issue(op, i):
            kind, m = op
            slot = RING + 4*(i % 16)
            if kind in "kv":
                va, sb, x = (vA1, 6, 64*(m & 3)) if kind == "k" else (vA2, 8, 128*(m & 1))
                if m % 4 == 0:
                    if i > 8:
                        A(f"s_add_u32 s47, s47, {4096 if m == 4 else L_V - L_K - 4096}")
                    A("s_mov_b32 m0, s47")
                    if m == 4:
                        A(f"v_add_u32 v{va}, 4096, v{va}")
                A(f"v_xor_b32 v1, {x}, v{va}")
                A(f"global_load_lds_dwordx4 v1, s[{sb}:{sb+1}] offset:{1024*(m&3)} nt")
            elif kind in "gu":
                va, sb = (vA1, 16) if kind == "g" else (vA2, 18)
                A(f"global_load_dwordx4 v[{slot}:{slot+3}], v{va}, s[{sb}:{sb+1}] nt")
                if m < 15:
                    A(f"v_add_u32 v{va}, s{47 if (self.stag and m % 2) else 46}, v{va}")
            elif kind in "do":
                sb = 20 if kind == "d" else 12
                A(f"global_load_dwordx4 v[{BIG+4*m}:{BIG+4*m+3}], v{vAw}, s[{sb}:{sb+1}] nt")
                if m < 15:
                    A(f"v_add_u32 v{vAw}, s45, v{vAw}")

        def process(op, i, ffn):
            kind, m = op
            slot = RING + 4*(i % 16)
            if kind == "q":
                mfma(aQ, vSEL, slot, m == 0)
                if m < 7:
                    sel(m + 1, vSEL, vXQ)
                    A("s_nop 1")
                else:
                    if ffn:
                        sel(0, vSEL, vXG)
                        A("s_nop 0")
                    else:
                        A("s_nop 4")
                    red_write([aQ], L_RQ, 9, C_Q)
                    self.stamp(4)
            elif kind in "kv" and m == 7:
                l = self.lab("Lkvf")
                if self.after_pause:
                    A(f"s_cmp_lg_u32 s43, 0\ns_cbranch_scc1 {l}")
                kvflag(C_K if kind == "k" else C_V)
                if kind == "v":
                    self.stamp(5)
                A(f"{l}:")
            elif kind == "g":
                mfma(aG, vSEL, slot, m == 0)
            elif kind == "u":
                mfma(aU, vSEL, slot, m == 0)
                if m < 15:
                    sel(m + 1, vSEL, vXG)
                    A("s_nop 1")
                else:
                    A("s_nop 4")
                    red_write([aG, aU], L_RG, 10, C_G)
                    self.stamp(6)

        def stream(ops, wfun, ffn, start=8, landed=0, hold=0, holdcnt=0):
            if 'noa' in self.abl or 'nofin' in self.abl:
                hold = 0
            for i in range(start, len(ops)):
                w = wfun(i)
                if hold and i == len(ops) - hold:
                    assert landed >= start, (landed, start)
                    self.lds_spin(C_HB, holdcnt, sleep=1)
                if hold and i >= len(ops) - hold:
                    w = max(w, hold)
                A(f"s_waitcnt vmcnt({w-1})")
                issue(ops[i], i)
                if i < self.xnpos:
                    continue
                if i == self.xnpos:
                    get_xn(ffn)
                while landed <= i - w:
                    process(ops[landed], landed, ffn); landed += 1
            return landed

        def drain(ops, landed, upto, ffn):
            n = len(ops)
            while landed < upto:
                if ops[landed][0] in "qgu":
                    A(f"s_waitcnt vmcnt({n - 1 - landed})")
                    process(ops[landed], landed, ffn)
                landed += 1
            return landed

        def final_gemv(val, first, nops, landed, wsb):
            A(f"""
            v_lshlrev_b32 v15, 5, v12
            s_mul_i32 s40, s{sTL}, {ROWP}
            s_add_u32 s40, s40, {wsb:#x}
            v_add_u32 v{vPub}, s40, v{vPub}""")
            floc = self.flocal == 'xt' and wsb == WS_BF
            if floc:
                self.get_loc()
            rd = f"ds_read_b128 v[{vXG}:{vXG+3}], v15 offset:{L_VEC}\nds_read_b128 v[{vXG+4}:{vXG+7}], v15 offset:{L_VEC+16}"
            if 'noa' not in self.abl and 'nofin' not in self.abl:
                self.lds_spin(C_FO, val, sleep=0, reads=rd)
            else:
                A(rd + "\ns_waitcnt lgkmcnt(0)")
            self.stamp(8)
            self.L.append(".p2align 3")
            sel(0, RING, vXG)
            for m in range(16):
                if m < 15:
                    sel(m + 1, RING + 4*(m + 1), vXG)
                else:
                    self.stamp(9)
                if first + m >= landed:
                    A(f"s_waitcnt vmcnt({nops - 1 - (first + m)})")
                    if m < 15:
                        A("s_nop 0")
                mfma(aQ, RING + 4*m, BIG + 4*m, m == 0)
            g = vT
            A(f"""
            s_nop 7
            v_permlane32_swap_b32 v{aQ}, v{aQ+2}
            v_permlane32_swap_b32 v{aQ+1}, v{aQ+3}
            s_nop 0
            v_add_f32_dpp v{g}, v{aQ+2}, v{aQ} row_shl:8 row_mask:0xf bank_mask:0xf bound_ctrl:1
            v_add_f32_dpp v{g+1}, v{aQ+3}, v{aQ+1} row_shl:8 row_mask:0xf bank_mask:0xf bound_ctrl:1""")
            self.tag(g); self.tag(g + 1)
            A(f"""
            s_nop 0
            v_permlane32_swap_b32 v{g}, v{g+2}
            v_permlane32_swap_b32 v{g+1}, v{g+3}
            s_mov_b64 exec, 0x00ff00ff""")
            if floc:
                l = self.lab("Lfrem")
                A(f"""
                s_cmp_lg_u32 s101, 0
                s_cbranch_scc1 {l}
                global_store_dwordx4 v{vPub}, v[{g}:{g+3}], s[26:27]
                s_branch {l}_d
                {l}:
                global_store_dwordx4 v{vPub}, v[{g}:{g+3}], s[26:27] sc1
                {l}_d:""")
            else:
                A(f"global_store_dwordx4 v{vPub}, v[{g}:{g+3}], s[26:27] {'' if (self.flocal == 'force' and wsb == WS_BF) else 'sc1'}")
            A("s_mov_b64 exec, -1")

        qops = [("q", m) for m in range(8)]
        A(f"""
        s_lshl_b32 s40, s{sG}, 24
        s_lshl_b32 s41, s{sCH}, 15
        s_add_u32 s40, s40, s41
        s_lshl_b32 s47, s{sW}, 13
        s_add_u32 s40, s40, s47
        s_add_u32 s47, s47, {L_K}
        s_add_u32 s40, s40, {(65536-4096)*256:#x}
        v_xor_b32 v1, v{vI}, v{vJ}
        v_lshlrev_b32 v1, 4, v1
        v_lshl_add_u32 v1, v{vJ}, 8, v1
        v_add_u32 v{vA1}, s40, v1
        v_lshlrev_b32 v1, 1, v{vJ}
        v_xor_b32 v1, v{vI}, v1
        v_lshlrev_b32 v1, 4, v1
        v_lshl_add_u32 v1, v{vJ}, 8, v1
        v_add_u32 v{vA2}, s40, v1""")
        ops = qops + [("k", m) for m in range(8)] + [("v", m) for m in range(8)]
        WA = self.WA
        self.after_pause = False
        landed = stream(ops, lambda i: WA[0] if i < 14 else WA[1], False)
        self.after_pause = True
        A("s_mov_b32 s43, 0")
        if self.pause and 'noa' not in self.abl:
            go = self.lab("Lgo")
            if 0 in self.gateA:
                A(f"s_cmp_eq_u32 s{sGATE}, 0\ns_cbranch_scc1 {go}")
            A(f"""
            v_mov_b32 v1, {C_GA}
            ds_read_b32 v2, v1
            s_waitcnt lgkmcnt(0)
            v_readfirstlane_b32 s{sTMP}, v2
            s_cmp_eq_u32 s{sTMP}, 4
            s_cbranch_scc1 {go}""")
            for c in self.staged:
                A(f"""
                s_waitcnt vmcnt({c})
                ds_read_b32 v2, v1
                s_waitcnt lgkmcnt(0)
                v_readfirstlane_b32 s{sTMP}, v2
                s_cmp_eq_u32 s{sTMP}, 4
                s_cbranch_scc1 {go}""")
            A(f"""
            s_waitcnt vmcnt(0)
            s_mov_b32 s43, 1""")
            assert landed >= 8
            if landed < 16:
                kvflag(C_K)
            kvflag(C_V)
            self.stamp(5)
            self.lds_spin(C_GA, 4, sleep=1)
            A(f"{go}:")
            self.stamp(6)
        ops = ops + [("o", m) for m in range(16)]
        for w3 in ([self.WAe, WA[2]] if self.WAe else [WA[2]]):
            nxt = self.lab("Lsa")
            if self.WAe and w3 == self.WAe:
                A(f"s_cmp_lt_u32 s{sX}, 2\ns_cbranch_scc0 {nxt}")
            l2 = stream(ops, lambda i: w3 if (len(WA) < 4 or i < 24 + (WA[4] if len(WA) > 4 else 8)) else WA[3], False, start=24, landed=landed, hold=self.HA, holdcnt=4)
            assert l2 >= 24
            self.stamp(7)
            final_gemv(4, 24, 40, l2, WS_BS)
            self.write_stamps(10)
            A(f"s_endpgm\n{nxt}:")
        A(f"""
        L_s_notattn:
        s_cmp_ge_u32 s{sTY}, 2
        s_cbranch_scc1 L_s_last
        s_lshl2_add_u32 s40, s{sRB}, s{sW}
        s_mul_i32 s40, s40, {64*7168}""")
        if self.stag:
            A(f"""
            s_and_b32 s41, s{sW}, 1
            s_mul_i32 s42, s41, {4*7168}
            s_add_u32 s40, s40, s42""")
        A(f"""
        v_mul_u32_u24 v1, 7168, v{vJ}
        v_add3_u32 v1, v1, v13, s40
        s_lshl_b32 s41, s{sTL}, 8
        v_add_u32 v{vA1}, s41, v1
        s_lshl_b32 s41, s{sUP}, 8
        v_add_u32 v{vA2}, s41, v1
        s_movk_i32 s46, {7168*4}""")
        if self.stag:
            A("s_lshl_b32 s42, s42, 1\ns_add_u32 s47, s46, s42\ns_sub_u32 s46, s46, s42")
        if self.wideg:
            wd = self.wideg; nt = 7168 // wd; rpi = 1024 // wd; lpr = wd // 16
            import math
            A(f"""
            s_lshl2_add_u32 s40, s{sTL}, s{sRB}
            s_mul_hi_u32 s41, s40, {-(-(1 << 32) // nt)}
            s_mul_i32 s42, s41, {nt}
            s_sub_u32 s42, s40, s42
            s_lshl2_add_u32 s41, s41, s{sW}
            s_mul_i32 s41, s41, {16*rpi*7168}
            s_mul_i32 s42, s42, {wd}
            s_add_u32 s41, s41, s42
            v_lshrrev_b32 v1, {int(math.log2(lpr))}, v0
            v_mul_u32_u24 v1, 7168, v1
            v_and_b32 v2, {lpr-1}, v0
            v_lshl_add_u32 v1, v2, 4, v1
            v_add_u32 v{vA1}, s41, v1
            v_mov_b32 v{vA2}, v{vA1}
            s_movk_i32 s46, {7168*rpi}""")
        ops = qops + [(k, m) for m in range(16) for k in "gu"] + [("d", m) for m in range(16)]
        WF = self.WF
        landed = stream(ops[:40], lambda i: WF[0] if i < 14 else WF[1], True)
        gated = self.lab("Lsfg")
        if any(self.gateF) and 'noa' not in self.abl:
            A(f"s_cmp_lg_u32 s{sGATE}, 0\ns_cbranch_scc1 {gated}")
        if 0 in self.gateF or 'noa' in self.abl:
            l2 = stream(ops, lambda i: WF[2] if (len(WF) < 4 or i < 40 + (WF[4] if len(WF) > 4 else 8)) else WF[3], True, start=40, landed=landed, hold=self.HF, holdcnt=1)
            assert l2 >= 40
            self.stamp(7)
            final_gemv(1, 40, 56, l2, WS_BF)
            self.write_stamps(10)
            A("s_endpgm")
        if any(self.gateF) and 'noa' not in self.abl:
            A(f"{gated}:")
            l2 = drain(ops[:40], landed, 40, True)
            self.lds_spin(C_GA, 1, sleep=1)
            l2 = stream(ops, lambda i: self.WFe or WF[2], True, start=40, landed=l2)
            self.stamp(7)
            final_gemv(1, 40, 56, l2, WS_BF)
            self.write_stamps(10)
            A("s_endpgm")
        A("L_s_last:")
        get_xn(False)
        drain(qops, 0, 8, False)
        A(f"s_add_u32 s{sW}, s{sW}, 4\ns_branch L_final")

    def red_publish(self, lbase, pitch, cnt, nl, addr_code, nrep, flagv=None, sleep=1, val=sT32, local=False):
        A = self.A
        t = 16
        A("v_lshlrev_b32 v10, 4, v0")
        A(addr_code)
        if local and self.warm is not None:
            self.exec_set(0x0101010101010101)
            A(f"global_load_dword v54, v11, s[26:27] {self.warm}\ns_mov_b64 exec, -1")
        self.lds_spin(cnt, 4, sleep=sleep, reads="\n".join(f"ds_read_b128 v[{t+4*k}:{t+4*k+3}], v10 offset:{lbase+pitch*k}" for k in range(4)))
        if self.earlyD == 2 and nl == 64:
            self.flag_store(nrep, flagv, val)
        elif local and self.earlyD:
            l = self.lab("Lef")
            A(f"s_cmp_lg_u32 s101, 0\ns_cbranch_scc1 {l}")
            self.flag_store(nrep, flagv, val)
            A(f"{l}:")
        if nl == 32:
            A("s_mov_b32 exec_hi, 0")
        for h in (0, 2):
            A(f"v_pk_add_f32 v[{t+h}:{t+h+1}], v[{t+h}:{t+h+1}], v[{t+4+h}:{t+5+h}]")
            A(f"v_pk_add_f32 v[{t+8+h}:{t+9+h}], v[{t+8+h}:{t+9+h}], v[{t+12+h}:{t+13+h}]")
        for h in (0, 2):
            A(f"v_pk_add_f32 v[{t+h}:{t+h+1}], v[{t+h}:{t+h+1}], v[{t+8+h}:{t+9+h}]")
        for r in range(4):
            A(f"v_add_u32 v{t+r}, {(TAGM + 1) // 2:#x}, v{t+r}")
        for r in range(4):
            self.tag(t + r)
        if local:
            rem = self.lab("Lremote"); fl = self.lab("Lpub")
            A(f"""
            s_cmp_lg_u32 s101, 0
            s_cbranch_scc1 {rem}
            global_store_dwordx4 v11, v[{t}:{t+3}], s[26:27]
            s_branch {fl if not self.earlyD else fl + '_done'}
            {rem}:
            global_store_dwordx4 v11, v[{t}:{t+3}], s[26:27] sc1
            {fl}:""")
            self.flag_store(nrep, flagv, val)
            A(f"{fl}_done:")
        else:
            A(f"global_store_dwordx4 v11, v[{t}:{t+3}], s[26:27] sc1")
            if not (self.earlyD == 2 and nl == 64):
                self.flag_store(nrep, flagv, val)

    def awave(self):
        A = self.A
        vKF, vVF, vGT, vU = 56, 184, 216, 232
        vQF, vS = 216, 16
        vI, vJ = 4, 5
        vA0, vA1 = 6, 7
        vT = 16
        x0, xr = 56, 72
        A(f"""
        s_setprio 3
        s_lshl2_add_u32 s40, s{sRB}, s{sW}
        s_lshl_b32 s40, s40, 6
        v_lshlrev_b32 v14, 5, v0
        v_add_lshl_u32 v1, v0, s40, 1
        s_lshl2_add_u32 s40, s{sRBQ}, s{sW}
        s_lshl_b32 s40, s40, 5
        v_and_b32 v15, 31, v0
        v_add_lshl_u32 v15, v15, s40, 1
        v_mov_b32 v10, 0
        v_and_b32 v2, 31, v0
        v_lshlrev_b32 v2, 2, v2
        ds_write_b32 v2, v10 offset:{L_CNT}
        s_waitcnt lgkmcnt(0)
        global_load_dwordx4 v[{xr}:{xr+3}], v14, s[4:5]
        global_load_dwordx4 v[{xr+4}:{xr+7}], v14, s[4:5] offset:16
        global_load_ushort v{xr+8}, v15, s[4:5]
        global_load_ushort v{xr+9}, v1, s[4:5]
        s_load_dword s{sT32}, s[26:27], {WS_E}""")
        if self.touch:
            tf = self.lab("Ltf"); td = self.lab("Ltd")
            A(f"""
            s_cmp_eq_u32 s{sW}, 0
            s_cbranch_scc0 {td}
            s_lshl_b32 s41, s{sTL}, 18
            s_cmp_eq_u32 s{sTY}, 0
            s_cbranch_scc0 {tf}
            s_lshl_b32 s40, s{sG}, 24
            s_add_u32 s40, s40, {(65536-4096)*256:#x}
            s_load_dword s48, s[6:7], s40
            s_load_dword s49, s[8:9], s40
            s_load_dword s50, s[12:13], s41
            s_branch {td}
            {tf}:
            s_load_dword s48, s[22:23], 0
            s_cmp_eq_u32 s{sTY}, 1
            s_cbranch_scc0 {td}
            s_mul_i32 s40, s{sRB}, {256*7168}
            s_add_u32 s42, s40, {255*7168}
            s_load_dword s49, s[16:17], s40
            s_load_dword s50, s[18:19], s40
            s_load_dword s51, s[16:17], s42
            s_load_dword s52, s[18:19], s42
            s_load_dword s53, s[20:21], s41
            {td}:""")
        A("s_barrier")
        self.stamp(1)
        if self.xt:
            nx = self.lab("Lnoxt")
            A(f"""
            s_waitcnt lgkmcnt(0)
            s_cmp_lg_u32 s{sW}, 0
            s_cbranch_scc1 {nx}
            ; wave 0 announces the die this workgroup runs on
            s_getreg_b32 s45, hwreg(HW_REG_XCC_ID, 0, 4)
            s_lshl_b32 s45, s45, 28
            s_add_u32 s41, s{sT32}, 1
            s_xor_b32 s45, s45, s41
            s_lshl_b32 s95, s{sX}, 7
            s_add_u32 s95, s95, {WS_XA:#x}
            s_lshl2_add_u32 s41, s{sY}, s95
            s_mov_b64 exec, 1
            v_mov_b32 v1, s41
            v_mov_b32 v2, s45
            global_store_dword v1, v2, s[26:27] sc1
            s_mov_b64 exec, -1
            s_waitcnt vmcnt(1)
            s_branch {nx}_ln
            {nx}:
            s_waitcnt vmcnt(0)
            {nx}_ln:""")
        else:
            A(f"s_waitcnt vmcnt(0) lgkmcnt(0)")
        self.stamp(11)
        for i in range(8):
            A(f"v_lshlrev_b32 v{x0+2*i}, 16, v{xr+i}\nv_and_b32 v{x0+2*i+1}, 0xffff0000, v{xr+i}")
        A(f"v_pk_add_f32 v[{vT}:{vT+1}], v[{x0}:{x0+1}], v[{x0+2}:{x0+3}]")
        A(f"v_pk_add_f32 v[{vT+2}:{vT+3}], v[{x0+4}:{x0+5}], v[{x0+6}:{x0+7}]")
        for i in range(4, 8, 2):
            A(f"v_pk_add_f32 v[{vT}:{vT+1}], v[{vT}:{vT+1}], v[{x0+2*i}:{x0+2*i+1}]")
            A(f"v_pk_add_f32 v[{vT+2}:{vT+3}], v[{vT+2}:{vT+3}], v[{x0+2*i+2}:{x0+2*i+3}]")
        A(f"v_pk_add_f32 v[{vT}:{vT+1}], v[{vT}:{vT+1}], v[{vT+2}:{vT+3}]")
        A(f"v_add_f32 v{vT}, v{vT}, v{vT+1}")
        self.allreduce_in_row(vT)
        self.allreduce_rows(vT, vT+1, "v_add_f32")
        A(f"v_mul_f32 v{vT}, {f2u(1.0/1024):#x}, v{vT}")
        for i in range(8):
            A(f"v_pk_add_f32 v[{x0+2*i}:{x0+2*i+1}], v[{x0+2*i}:{x0+2*i+1}], v[{vT}:{vT+1}] op_sel_hi:[1,0] neg_lo:[0,1] neg_hi:[0,1]")
        A(f"v_pk_mul_f32 v[{vT+2}:{vT+3}], v[{x0}:{x0+1}], v[{x0}:{x0+1}]")
        A(f"v_pk_mul_f32 v[{vT+4}:{vT+5}], v[{x0+2}:{x0+3}], v[{x0+2}:{x0+3}]")
        for i in range(2, 8):
            d = vT + 2 + 2*(i & 1)
            A(f"v_pk_fma_f32 v[{d}:{d+1}], v[{x0+2*i}:{x0+2*i+1}], v[{x0+2*i}:{x0+2*i+1}], v[{d}:{d+1}]")
        A(f"v_pk_add_f32 v[{vT+2}:{vT+3}], v[{vT+2}:{vT+3}], v[{vT+4}:{vT+5}]")
        A(f"v_add_f32 v{vT+2}, v{vT+2}, v{vT+3}")
        r = xr + 8
        self.bf16_round(vT, vT)
        self.allreduce_in_row(vT+2)
        A(f"""
        v_lshlrev_b32 v{r}, 16, v{r}
        v_lshlrev_b32 v{r+1}, 16, v{r+1}
        v_pk_add_f32 v[{r}:{r+1}], v[{r}:{r+1}], v[{vT}:{vT+1}] op_sel_hi:[1,0] neg_lo:[0,1] neg_hi:[0,1]""")
        self.allreduce_rows(vT+2, vT+3, "v_add_f32")
        A(f"v_mul_f32 v{vT+2}, {f2u(1.0/1024):#x}, v{vT+2}")
        self.bf16_round(vT+2, vT+2)
        A(f"v_add_f32 v{vT+2}, {f2u(1e-5):#x}, v{vT+2}")
        self.bf16_round(vT+2, vT+2)
        A(f"""
        v_sqrt_f32 v{vT+2}, v{vT+2}
        v_cvt_pk_bf16_f32 v{r+1}, v{r}, v{r+1}
        v_lshlrev_b32 v{r}, 16, v{r+1}
        v_and_b32 v{r+1}, 0xffff0000, v{r+1}""")
        self.bf16_round(vT+2, vT+2)
        A(f"""
        v_rcp_f32 v{vT+2}, v{vT+2}
        v_and_b32 v1, 3, v0
        v_lshrrev_b32 v2, 2, v0
        v_lshlrev_b32 v2, 1, v2
        v_pk_mul_f32 v[{r}:{r+1}], v[{r}:{r+1}], v[{vT+2}:{vT+3}] op_sel_hi:[1,0]
        s_lshl_b32 s40, s{sW}, 6
        v_lshl_add_u32 v10, v1, 4, s40
        v_lshl_add_u32 v11, v10, 1, v2
        v_add_u32 v10, v10, v2""")
        if self.stag:
            A(f"s_and_b32 s41, s{sW}, 1\ns_lshl_b32 s41, s41, 1\nv_xor_b32 v11, s41, v11")
        A(f"""
        v_cvt_pk_bf16_f32 v{r}, v{r}, v{r+1}
        s_lshl_b32 s40, s{sW}, 2
        v_mov_b32 v2, s40
        v_mov_b32 v1, 1
        ds_write_b16_d16_hi v11, v{r} offset:{L_XG}
        s_mov_b32 exec_hi, 0
        ds_write_b16 v10, v{r} offset:{L_XQ}
        s_mov_b64 exec, 1
        ds_write_b32 v2, v1 offset:{C_XN}
        s_mov_b64 exec, -1
        s_add_u32 s{sT32}, s{sT32}, 1
        s_and_b32 s{sT10}, s{sT32}, s44
        v_mov_b32 v3, s{sT10}""")
        self.stamp(12)
        if self.mag:
            A(f"""
            s_cmp_eq_u32 s{sW}, 1
            s_cbranch_scc0 L_magskip
            s_lshl_b32 s40, s2, 7
            s_add_u32 s40, s40, 0x300000
            v_mov_b32 v1, s40
            v_mov_b32 v2, s90
            s_mov_b64 exec, 1
            global_store_dword v1, v2, s[26:27] sc1
            v_add_u32 v1, 0x10000, v1
            global_store_dword v1, v2, s[26:27] sc1
            s_mov_b64 exec, -1
            L_magskip:""")
        if self.wtest:
            pre, mod, n = self.wtest
            A(f"s_cmp_eq_u32 s{sW}, 3\ns_cbranch_scc0 L_adone")
            A(f"s_mul_i32 s42, s2, {n*1024}\ns_add_u32 s42, s42, 0x800000\nv_lshl_add_u32 v10, v0, 4, s42")
            if pre == 's':
                A("s_add_u32 s40, s26, s42\ns_addc_u32 s41, s27, 0")
                for i in range(n*16):
                    A(f"s_load_dword s48, s[40:41], {64*i} glc")
                A("s_waitcnt lgkmcnt(0)")
            elif pre:
                for i in range(n):
                    A(f"global_load_dwordx4 v[20:23], v10, s[26:27] offset:{1024*i} {pre[1:]}")
                A("s_waitcnt vmcnt(0)")
            self.lds_spin(C_Q, 4, sleep=1)
            A("s_sleep 64")
            for i in range(n):
                A(f"global_store_dwordx4 v10, v[16:19], s[26:27] offset:{1024*i} {mod}")
        if 'noa' in self.abl:
            A("s_branch L_adone")
        if self.xt:
            pass
        elif self.local:
            A(f"""
            s_getreg_b32 s45, hwreg(HW_REG_XCC_ID, 0, 4)
            s_lshl_b32 s45, s45, 28
            s_cmp_eq_u32 s{sTY}, 0
            s_cselect_b32 s45, s45, 0
            s_xor_b32 s45, s45, s{sT32}""")
        nq = self.lab("Lnoq")
        A(f"s_cmp_eq_u32 s{sW}, 3\ns_cbranch_scc0 {nq}")
        if self.qtouch:
            A(f"""
            s_lshl3_add_u32 s40, s{sHQ}, s{sRBQ}
            s_lshl_b32 s40, s40, 9
            s_add_u32 s40, s40, {WS_BQ:#x}
            s_add_u32 s40, s26, s40
            s_addc_u32 s41, s27, 0""")
            for k in range(8):
                A(f"s_load_dword s48, s[40:41], {64*k} glc")
            A("s_waitcnt lgkmcnt(0)")
        self.red_publish(L_RQ, 512, C_Q, 32, f"""
            s_lshl3_add_u32 s41, s{sHQ}, s{sRBQ}
            s_lshl_b32 s40, s41, 9
            s_add_u32 s40, s40, {WS_BQ:#x}
            v_add_u32 v11, s40, v10
            s_lshr_b32 s40, s41, 4
            s_and_b32 s41, s41, 15
            s_lshl_b32 s40, s40, 5
            s_add_u32 s40, s40, s41
            s_lshl_b32 s40, s40, 2
            s_add_u32 s40, s40, {WS_FLA:#x}""", self.nrepA, val=(45 if (self.local and not self.forceloc) else sT32))
        self.stamp(13)
        A(f"{nq}:")
        if self.xt:
            nc = self.lab("Lnocol"); l = self.lab("Lxt"); mem = self.lab("Lxm"); lv = self.lab("Lxv")
            A(f"""
            s_cmp_lg_u32 s{sW}, 0
            s_cbranch_scc1 {nc}
            s_lshl_b32 s46, s{sX}, 10
            s_add_u32 s46, s46, {WS_XV:#x}
            s_mov_b32 s{sSPIN}, 0
            s_cmp_lg_u32 s{sY}, 0
            s_cbranch_scc1 {mem}
            s_mov_b32 s42, s45
            s_mov_b32 s43, s45
            s_mov_b32 s101, 0
            s_add_u32 s41, s95, 128
            {l}:
            s_load_dwordx16 s[{sP}:{sP+15}], s[26:27], s95 glc
            s_add_u32 s{sSPIN}, s{sSPIN}, 1
            s_cmp_gt_u32 s{sSPIN}, {SPIN_MAX}
            s_cbranch_scc1 L_end
            s_waitcnt lgkmcnt(0)""")
            pairs = [sP + 2*i for i in range(8)]
            for p in pairs:
                A(f"s_xor_b64 s[{p}:{p+1}], s[{p}:{p+1}], s[42:43]")
            for p in pairs[1:]:
                A(f"s_or_b64 s[{sP}:{sP+1}], s[{sP}:{sP+1}], s[{p}:{p+1}]")
            A(f"""
            s_or_b32 s{sP}, s{sP}, s{sP+1}
            s_and_b32 s{sP+1}, s{sP}, 0x0fffffff
            s_cbranch_scc1 {l}
            s_or_b32 s101, s101, s{sP}
            s_add_u32 s95, s95, 64
            s_cmp_lt_u32 s95, s41
            s_cbranch_scc1 {l}
            s_xor_b32 s40, s101, s{sT32}
            s_mov_b64 exec, 0xff
            v_lshl_add_u32 v1, v0, 7, s46
            v_mov_b32 v2, s40
            global_store_dword v1, v2, s[26:27] sc1
            s_branch {lv}
            {mem}:
            s_and_b32 s40, s{sY}, 7
            s_lshl_b32 s40, s40, 7
            s_add_u32 s46, s46, s40
            {mem}_l:
            s_sleep {self.xsleep}
            s_load_dword s101, s[26:27], s46 glc
            s_add_u32 s{sSPIN}, s{sSPIN}, 1
            s_cmp_gt_u32 s{sSPIN}, {SPIN_MAX}
            s_cbranch_scc1 L_end
            s_waitcnt lgkmcnt(0)
            s_xor_b32 s101, s101, s{sT32}
            s_and_b32 s40, s101, 0x0fffffff
            s_cbranch_scc1 {mem}_l
            {lv}:
            s_cmp_lg_u32 s101, 0
            s_cselect_b32 s40, 3, 1
            s_mov_b64 exec, 1
            v_mov_b32 v1, {C_LOC}
            v_mov_b32 v2, s40
            ds_write_b32 v1, v2
            s_mov_b64 exec, -1
            {nc}:""")
        A(f"""
        s_cmp_ge_u32 s{sTY}, 2
        s_cbranch_scc1 L_final
        s_cmp_ge_u32 s{sTY}, 1
        s_cbranch_scc1 L_ffn""")
        if 'stop1' in self.abl:
            self.arrive(C_GA, want_old=False); A("s_branch L_adone")
        vKF, vVF, vGT, vQF, vO = 56, 88, 120, 152, 168
        vS, U, Z = 16, 24, 28
        A(f"""
        s_lshl2_add_u32 s41, s{sG}, s{sW}
        s_lshl_b32 s40, s41, 13
        s_add_u32 s40, s40, {WS_BQ + 2048:#x}
        v_and_b32 v12, 31, v0
        v_lshrrev_b32 v13, 5, v0
        v_lshlrev_b32 v1, 4, v12
        v_lshl_add_u32 v1, v13, 12, v1
        v_add_u32 v{vA0}, s40, v1
        s_and_b32 s40, s{sCH}, {self.nrepA-1}
        s_mul_i32 s40, s40, {REPP}
        s_lshl_b32 s41, s41, 7
        s_add_u32 s40, s40, s41
        s_add_u32 s95, s40, {WS_FLA:#x}
        s_lshl_b32 s40, s{sW}, 1
        v_add_u32 v13, s40, v13
        v_mul_u32_u24 v13, {QLP}, v13
        v_lshl_add_u32 v13, v12, 3, v13
        v_and_b32 v10, 7, v0
        s_lshl_b32 s40, s{sG}, 5
        s_add_u32 s41, s40, s{sCH}
        s_mul_i32 s41, s41, {BOP}
        s_lshl_b32 s42, s{sW}, 7
        s_add_u32 s41, s41, s42
        s_add_u32 s41, s41, {WS_BO:#x}
        v_lshlrev_b32 v8, 9, v10
        v_bfe_u32 v11, v0, 3, 1
        v_lshl_add_u32 v8, v11, 6, v8
        v_lshl_add_u32 v8, v{vJ}, 4, v8
        v_add_u32 v8, s41, v8
        s_add_u32 s40, s40, s{sCH}
        s_lshl_b32 s40, s40, 7
        s_add_u32 s40, s40, {WS_BML:#x}
        v_lshl_add_u32 v9, v10, 4, s40
        v_mul_u32_u24 v12, {QLP}, v10
        v_lshl_add_u32 v12, v{vJ}, 4, v12
        s_mov_b32 s46, {f2u(128 ** -0.5):#x}
        s_mov_b32 s47, {f2u(128 ** -0.5):#x}
        s_lshl_b32 s40, s{sW}, 13
        v_xor_b32 v14, v{vI}, v{vJ}
        v_lshlrev_b32 v14, 4, v14
        v_lshl_add_u32 v14, v{vI}, 8, v14
        v_add_u32 v14, s40, v14
        v_bfe_u32 v10, v0, 2, 2
        v_lshl_add_u32 v10, v{vJ}, 2, v10
        v_and_b32 v11, 7, v10
        v_lshlrev_b32 v11, 1, v11
        v_bfe_u32 v1, v0, 1, 1
        v_xor_b32 v11, v11, v1
        v_lshlrev_b32 v11, 4, v11
        v_lshl_add_u32 v11, v10, 8, v11
        v_and_b32 v1, 1, v0
        v_lshl_add_u32 v11, v1, 3, v11
        s_add_u32 s41, s40, {L_V}
        v_add_u32 v11, s41, v11
        ; exchange area (this wave's K rows, dead once the fragments are in registers)
        v_lshl_add_u32 v15, v0, 4, s40
        s_lshl_b32 s41, s{sW}, 10
        v_lshl_add_u32 v10, v0, 4, s41""")
        self.mask(("s92", "s93"), 0xFF00FF00FF00FF00)

        def kreads():
            A(f"s_lshl_b32 s41, s{sW}, 2\ns_add_u32 s41, s41, {C_K}")
            self.lds_spin("s41", 1, sleep=1)
            for s in range(4):
                if s:
                    A(f"v_xor_b32 v2, {64*s}, v14")
                for t in range(2):
                    r = vKF + 16*t + 4*s
                    A(f"ds_read_b128 v[{r}:{r+3}], v{2 if s else 14} offset:{L_K + 4096*t}")
            self.stamp(3)

        if self.kfirst:
            kreads()
        A("s_mov_b32 s40, s95")
        if self.xt:
            self.flag_poll(16)
        elif self.forceloc:
            self.flag_poll(16)
            A("s_mov_b32 s101, 1")
        elif self.local:
            l = self.lab("Lpoll"); r = self.lab("Lretry")
            A(f"""
            s_mov_b32 s{sSPIN}, 0
            s_mov_b32 s42, s{sT32}
            s_mov_b32 s43, s{sT32}
            s_mov_b32 s4, s45
            s_mov_b32 s5, s45
            s_branch {l}
            {r}:
            s_sleep {self.psleep}
            {l}:
            s_load_dwordx16 s[{sP}:{sP+15}], s[26:27], s40 glc
            s_add_u32 s{sSPIN}, s{sSPIN}, 1
            s_cmp_gt_u32 s{sSPIN}, {SPIN_MAX}
            s_cbranch_scc1 L_end
            s_waitcnt lgkmcnt(0)""")
            for i in range(8):
                A(f"s_xor_b64 s[{sP+2*i}:{sP+2*i+1}], s[{sP+2*i}:{sP+2*i+1}], s[{'4:5' if (i & 2) == 0 else '42:43'}]")
            for step in (2, 4, 8):
                for i in range(0, 16, 2*step):
                    A(f"s_or_b64 s[{sP+i}:{sP+i+1}], s[{sP+i}:{sP+i+1}], s[{sP+i+step}:{sP+i+step+1}]")
            A(f"""
            s_or_b32 s{sP}, s{sP}, s{sP+1}
            s_and_b32 s{sP+1}, s{sP}, 0x0fffffff
            s_cbranch_scc1 {r}
            s_cmp_lg_u32 s{sP}, 0
            s_cselect_b32 s101, 0x101, 1""")
        else:
            self.flag_poll(16)
        self.stamp(2)
        if 'stop2' in self.abl:
            self.arrive(C_GA, want_old=False); A("s_branch L_adone")
        if self.warm is not None and self.warmO == 1:
            A(f"""
            s_mov_b64 exec, 0xff
            global_load_dword v46, v8, s[26:27] {self.warm}
            s_mov_b64 exec, 1
            global_load_dword v47, v9, s[26:27] {self.warm}
            s_mov_b64 exec, -1""")

        rq = self.lab("Lgq")
        A(f"s_mov_b32 s45, 0\n{rq}:")
        for n in range(8):
            A(f"global_load_dwordx4 v[{vGT+4*n}:{vGT+4*n+3}], v{vA0}, s[26:27] offset:{512*n - 2048} sc1")
        skip = self.lab("Lkvdone")
        A(f"s_cmp_lg_u32 s45, 0\ns_cbranch_scc1 {skip}\ns_mov_b32 s45, 1")
        self.gate(1, self.gateA)
        def vreads():
            A(f"s_lshl_b32 s41, s{sW}, 2\ns_add_u32 s41, s41, {C_V}")
            self.lds_spin("s41", 1, sleep=0)
            for dt in range(8):
                if dt:
                    A(f"v_xor_b32 v14, {32*dt}, v11")
                for t in range(2):
                    r = vVF + 4*dt + 2*t
                    A(f"ds_read_b64_tr_b16 v[{r}:{r+1}], v{14 if dt else 11} offset:{4096*t}")

        if not self.kfirst:
            kreads()
        if not self.vlate:
            vreads()
        A(f"""
        s_lshr_b32 s40, s{sCH}, 4
        s_lshl1_add_u32 s40, s{sG}, s40
        s_lshl_b32 s40, s40, 5
        s_and_b32 s41, s{sCH}, 15
        s_add_u32 s40, s40, s41
        s_lshl_b32 s40, s40, 2
        s_add_u32 s95, s40, {WS_FLB:#x}""")
        A(f"s_mov_b32 s{sSPIN}, 0\n{skip}:")
        self.untag([vGT+4*n for n in range(8)], vT, counted=True)
        self.tagtest(vT, rq)
        self.stamp(4)
        if 'stop3' in self.abl:
            A("s_branch L_adone")
        for step in (4, 8, 16):
            for b in range(0, 32, 2*step):
                for h in (0, 2):
                    A(f"v_pk_add_f32 v[{vGT+b+h}:{vGT+b+h+1}], v[{vGT+b+h}:{vGT+b+h+1}], v[{vGT+b+step+h}:{vGT+b+step+h+1}]")
        A(f"""
        v_cvt_pk_bf16_f32 v{vGT}, v{vGT}, v{vGT+1}
        v_cvt_pk_bf16_f32 v{vGT+1}, v{vGT+2}, v{vGT+3}
        s_mov_b32 s45, {f2u(LOG2E):#x}
        ds_write_b64 v13, v[{vGT}:{vGT+1}] offset:{L_QL}""")
        self.arrive(C_QL, want_old=False, inc=("s101" if (self.local and not self.xt) else 1))
        if self.warm is not None and self.warmO == 2:
            A(f"""
            s_mov_b64 exec, 0xff
            global_load_dword v46, v8, s[26:27] {self.warm}
            s_mov_b64 exec, 1
            global_load_dword v47, v9, s[26:27] {self.warm}
            s_mov_b64 exec, -1""")

        self.stamp(1)
        self.lds_spin(C_QL, 4, sleep=0, low8=(self.local and not self.xt),
                      reads="\n".join(f"ds_read_b128 v[{vQF+4*s}:{vQF+4*s+3}], v12 offset:{L_QL + 64*s}" for s in range(4))
                      + (f"\nds_read_b32 v54, v1 offset:{C_LOC - C_QL}" if self.xt else ""))
        if self.xt:
            self.get_loc(54)
        self.stamp(9)
        for s in range(4):
            for t in range(2):
                c = "0" if s == 0 else f"v[{vS+4*t}:{vS+4*t+3}]"
                r = vKF + 16*t + 4*s
                A(f"v_mfma_f32_16x16x32_bf16 v[{vS+4*t}:{vS+4*t+3}], v[{r}:{r+3}], v[{vQF+4*s}:{vQF+4*s+3}], {c}")
        self.early_flag('qk')
        if self.vlate:
            vreads()
        else:
            A("s_nop 7")
        for k in range(4):
            A(f"v_cndmask_b32 v{U+k}, v{vS+k}, v{vS+4+k}, s[92:93]")
        for rnd in range(2):
            for p in range(2):
                A(f"v_cvt_pk_bf16_f32 v{Z+p}, v{U+2*p}, v{U+2*p+1}")
            for p in range(2):
                A(f"v_lshlrev_b32 v{U+2*p}, 16, v{Z+p}\nv_and_b32 v{U+2*p+1}, 0xffff0000, v{Z+p}")
            if rnd == 0:
                for p in range(2):
                    A(f"v_pk_mul_f32 v[{U+2*p}:{U+2*p+1}], v[{U+2*p}:{U+2*p+1}], s[46:47]")
        vM, vL = 48, 49
        A(f"""
        v_max3_f32 v{vM}, v{U}, v{U+1}, v{U+2}
        v_max_f32 v{vM}, v{vM}, v{U+3}
        s_nop 1
        v_max_f32_dpp v{vM}, v{vM}, v{vM} row_ror:8 row_mask:0xf bank_mask:0xf""")
        self.allreduce_rows(vM, 50, "v_max_f32")
        A(f"v_mul_f32 v50, s45, v{vM}")
        for k in range(4):
            A(f"v_fma_f32 v{U+k}, v{U+k}, s45, -v50")
        for k in range(4):
            A(f"v_exp_f32 v{U+k}, v{U+k}")
        P = 32
        A(f"""
        s_nop 0
        v_cvt_pk_bf16_f32 v{P}, v{U}, v{U+1}
        v_cvt_pk_bf16_f32 v{P+1}, v{U+2}, v{U+3}
        v_pk_add_f32 v[52:53], v[{U}:{U+1}], v[{U+2}:{U+3}]
        v_mov_b32_dpp v{P+2}, v{P} row_ror:8 row_mask:0xf bank_mask:0xf
        v_mov_b32_dpp v{P+3}, v{P+1} row_ror:8 row_mask:0xf bank_mask:0xf
        v_mov_b32 v{P+4}, v{P}
        v_mov_b32 v{P+5}, v{P+1}
        v_add_f32 v{vL}, v52, v53""")
        if self.vlate:
            A("s_waitcnt lgkmcnt(0)")
        fill = [f"v_lshrrev_b32 v14, 1, v15\nv_add_f32_dpp v{vL}, v{vL}, v{vL} row_ror:8 row_mask:0xf bank_mask:0xf",
                f"v_mov_b32 v50, v{vL}\ns_lshl_b32 s40, s{sW}, 12",
                f"v_add_u32 v14, s40, v14\nv_permlane32_swap_b32 v50, v{vL}",
                f"v_add_f32 v{vL}, v{vL}, v50\nv_mov_b32 v50, v{vL}",
                f"s_nop 0",
                f"v_permlane16_swap_b32 v50, v{vL}\nv_add_f32 v{vL}, v{vL}, v50",
                f"ds_write_b64 v14, v[{vM}:{vL}] offset:{L_K + 4096}", ""]
        for dt in range(8):
            b = P + 2*(dt & 1)
            A(f"v_mfma_f32_16x16x32_bf16 v[{vO+4*dt}:{vO+4*dt+3}], v[{vVF+4*dt}:{vVF+4*dt+3}], v[{b}:{b+3}], 0")
            A(fill[dt])
        for k in range(4):
            for r in range(4):
                A(f"v_cndmask_b32 v{vO+8*k+r}, v{vO+8*k+r}, v{vO+8*k+4+r}, s[92:93]")
            A(f"ds_write_b128 v15, v[{vO+8*k}:{vO+8*k+3}] offset:{L_K + 1024*k}")
        self.arrive(C_X, want_old=False)
        A("v_lshlrev_b32 v14, 3, v0")
        self.early_flag('pv')
        self.stamp(11)
        X, ML = 56, 72
        self.lds_spin(C_X, 4, sleep=0, reads="\n".join(
            [f"ds_read_b64 v[{ML+2*w}:{ML+2*w+1}], v14 offset:{L_K + 8192*w + 4096}" for w in range(4)] +
            [f"ds_read_b128 v[{X+4*w}:{X+4*w+3}], v10 offset:{L_K + 8192*w}" for w in range(4)]))
        self.stamp(10)
        self.early_flag('xsync')
        A(f"v_max3_f32 v{vM}, v{ML}, v{ML+2}, v{ML+4}\nv_max_f32 v{vM}, v{vM}, v{ML+6}")
        for w in range(4):
            A(f"v_sub_f32 v{ML+2*w}, v{ML+2*w}, v{vM}")
        for w in range(4):
            A(f"v_mul_f32 v{ML+2*w}, s45, v{ML+2*w}")
        for w in range(4):
            A(f"v_exp_f32 v{ML+2*w}, v{ML+2*w}")
        A(f"s_nop 0\nv_mul_f32 v{vL}, v{ML}, v{ML+1}")
        for w in range(4):
            e = ML + 2*w
            for h in (0, 2):
                if w == 0:
                    A(f"v_pk_mul_f32 v[{vS+h}:{vS+h+1}], v[{X+h}:{X+h+1}], v[{e}:{e+1}] op_sel_hi:[1,0]")
                else:
                    A(f"v_pk_fma_f32 v[{vS+h}:{vS+h+1}], v[{X+4*w+h}:{X+4*w+h+1}], v[{e}:{e+1}], v[{vS+h}:{vS+h+1}] op_sel_hi:[1,0,1]")
            if w:
                A(f"v_fmac_f32 v{vL}, v{e}, v{e+1}")
        for r in range(4):
            self.tag(vS + r)
        nml = self.lab("Lnoml")

        def publish(mod):
            if 'noO' not in self.abl:
                A(f"global_store_dwordx4 v8, v[{vS}:{vS+3}], s[26:27] {mod}")
            A(f"s_cmp_lg_u32 s{sW}, 0\ns_cbranch_scc1 {nml}")
            self.tag(vM); self.tag(vL)
            A(f"""
            v_mov_b32 v50, v3
            v_mov_b32 v51, v3
            s_mov_b64 exec, 0xff
            global_store_dwordx4 v9, v[48:51], s[26:27] {mod}""")

        if self.local:
            rem = self.lab("Lremote"); fl = self.lab("Lflagb")
            A(f"s_cmp_lg_u32 s101, 0\ns_cbranch_scc1 {rem}")
            publish("")
            A(f"s_branch {fl}\n{rem}:")
            publish("sc1")
            A(f"{fl}:")
        else:
            publish("sc1")
        if self.flagpos != 'end':
            A(f"s_mov_b64 exec, -1\ns_cmp_eq_u32 s101, 0\ns_cbranch_scc1 {nml}")
        A("s_mov_b32 s40, s95")
        if 'noflagB' not in self.abl:
            self.flag_store(self.nrepB)
        A(f"{nml}:")
        self.gate(2, self.gateA)
        self.stamp(5)
        if 'stop4' in self.abl:
            A("s_branch L_adone")
        A(f"""
        s_and_b32 s40, s{sTL}, 7
        s_lshl2_add_u32 s41, s40, s{sW}
        s_lshl_b32 s41, s41, 7
        s_mul_i32 s42, s{sG}, {32*BOP}
        s_add_u32 s41, s41, s42
        s_add_u32 s41, s41, {WS_BO:#x}
        v_lshrrev_b32 v1, 3, v0
        v_mul_u32_u24 v1, {BOP}, v1
        v_and_b32 v2, 7, v0
        v_lshl_add_u32 v1, v2, 4, v1
        v_add_u32 v{vA0}, s41, v1
        v_add_u32 v13, {8*BOP}, v{vA0}
        v_add_u32 v14, {16*BOP}, v{vA0}
        v_add_u32 v15, {24*BOP}, v{vA0}
        s_lshl_b32 s41, s{sG}, 8
        s_add_u32 s40, s40, s41
        s_lshl_b32 s40, s40, 4
        s_add_u32 s40, s40, {WS_BML:#x}
        v_and_b32 v1, 31, v0
        v_lshl_add_u32 v{vA1}, v1, 7, s40
        s_lshl_b32 s40, s{sW}, 7
        v_and_b32 v2, 7, v0
        v_lshrrev_b32 v1, 3, v1
        v_lshl_add_u32 v1, v1, 2, s40
        v_lshl_add_u32 v10, v2, 4, v1
        v_lshrrev_b32 v1, 3, v0
        v_lshl_add_u32 v11, v1, 4, s40
        v_and_b32 v1, 1, v0
        v_lshl_add_u32 v1, v1, 2, v{vJ}
        v_and_b32 v2, 6, v0
        v_lshl_add_u32 v12, v1, 5, v2
        s_lshl_b32 s40, s{sW}, 3
        v_add_u32 v12, s40, v12""")
        nb = self.lab("Lnopollb")
        A(f"""
        s_cmp_ge_u32 s{sW}, 2
        s_cbranch_scc1 {nb}
        s_and_b32 s40, s{sCH}, {self.nrepB-1}
        s_mul_i32 s40, s40, {REPP}
        s_lshl1_add_u32 s41, s{sG}, s{sW}
        s_lshl_b32 s41, s41, 7
        s_add_u32 s40, s40, s41
        s_add_u32 s40, s40, {WS_FLB:#x}""")
        self.flag_poll(16)
        self.arrive(C_B1, want_old=False)
        A(f"{nb}:")
        self.lds_spin(C_B1, 2, sleep=0)
        self.stamp(6)
        rb_ = self.lab("Lgo")
        vO, vML = 56, 72
        A(f"s_mov_b32 s47, 0\n{rb_}:")
        def bloads(mod):
            A(f"global_load_dwordx4 v[{vML}:{vML+3}], v{vA1}, s[26:27] {mod}")
            for n in range(4):
                A(f"global_load_dwordx4 v[{vO+4*n}:{vO+4*n+3}], v{(vA0, 13, 14, 15)[n]}, s[26:27] {mod}")
        if self.local and self.gmod != 'sc1':
            rem = self.lab("Lremote"); fl = self.lab("Lbld")
            A(f"s_cmp_lg_u32 s101, 0\ns_cbranch_scc1 {rem}")
            bloads(self.gmod)
            A(f"s_branch {fl}\n{rem}:")
            bloads("sc1")
            A(f"{fl}:")
        else:
            bloads("sc1")
        if self.HA:
            l = self.lab("Lhb")
            A(f"s_cmp_lg_u32 s47, 0\ns_cbranch_scc1 {l}\ns_mov_b32 s47, 1")
            self.arrive(C_HB, want_old=False)
            A(f"{l}:")
        if 3 in self.gateA:
            self.gate(3, self.gateA)
            A(f"s_mov_b32 s{sGATE}, 0")
        A("s_waitcnt vmcnt(4)")
        self.untag([vML], vT + 16)
        fill = self.untag_list([vO + 4*n for n in range(4)], vT + 16, first=False)
        A(f"v_mov_b32 v{vT}, v{vML}\ns_waitcnt vmcnt(0)")
        self.allreduce_in_row(vT, "v_max_f32", fill)
        A(f"v_mov_b32 v{vT+2}, v{vT}")
        self.pad2(fill)
        A(f"""
        v_permlane16_swap_b32 v{vT+2}, v{vT}
        v_max_f32 v{vT}, v{vT}, v{vT+2}
        v_sub_f32 v{vT+4}, v{vML}, v{vT}
        v_mul_f32 v{vT+4}, s45, v{vT+4}
        v_exp_f32 v{vT+4}, v{vT+4}
        s_mov_b32 exec_hi, 0
        ds_write_b32 v10, v{vT+4} offset:{L_WT}
        s_mov_b32 exec_hi, -1
        ds_read_b128 v[{vT+8}:{vT+11}], v11 offset:{L_WT}
        v_mul_f32 v{vT+1}, v{vT+4}, v{vML+1}""")
        self.allreduce_in_row(vT + 1, "v_add_f32", fill)
        A(f"v_mov_b32 v{vT+2}, v{vT+1}")
        self.pad2(fill)
        A(f"""
        v_permlane16_swap_b32 v{vT+2}, v{vT+1}
        v_add_f32 v{vT+1}, v{vT+1}, v{vT+2}
        v_rcp_f32 v{vT+1}, v{vT+1}""")
        A("\n".join(fill))
        self.tagtest(vT + 16, rb_)
        self.stamp(7)
        A("s_waitcnt lgkmcnt(0)")
        acc = vT + 4
        for n in range(4):
            w = vT + 8 + (n & ~1)
            os_ = f"op_sel:[0,{n&1}] op_sel_hi:[1,{n&1}]" if n == 0 else f"op_sel:[0,{n&1},0] op_sel_hi:[1,{n&1},1]"
            for h in (0, 2):
                if n == 0:
                    A(f"v_pk_mul_f32 v[{acc+h}:{acc+h+1}], v[{vO+h}:{vO+h+1}], v[{w}:{w+1}] {os_}")
                else:
                    A(f"v_pk_fma_f32 v[{acc+h}:{acc+h+1}], v[{vO+4*n+h}:{vO+4*n+h+1}], v[{w}:{w+1}], v[{acc+h}:{acc+h+1}] {os_}")
        self.reduce_scatter_rows(acc)
        A(f"""
        s_nop 1
        v_add_f32_dpp v{acc}, v{acc}, v{acc} row_ror:8 row_mask:0xf bank_mask:0xf
        v_mov_b32 v1, {C_FO}
        v_mul_f32 v{acc}, v{acc}, v{vT+1}
        v_mov_b32 v2, 1
        v_cvt_pk_bf16_f32 v{acc}, v{acc}, v{acc}""")
        self.exec_set(0x00FF00FF00FF00FF)
        A(f"""
        ds_write_b16 v12, v{acc} offset:{L_VEC}
        s_mov_b64 exec, 1
        ds_add_u32 v1, v2
        s_mov_b64 exec, -1""")
        self.stamp(8)
        if 'diag' in self.abl:
            l = self.lab("Ldg")
            if 'diagx' in self.abl:
                A(f"s_getreg_b32 s41, hwreg(HW_REG_XCC_ID, 0, 4)\ns_cmp_eq_u32 s41, s{sX}")
            else:
                A("s_cmp_eq_u32 s101, 0")
            A(f"""
            s_cbranch_scc1 L_adone
            s_memrealtime s[42:43]
            s_waitcnt lgkmcnt(0)
            s_add_u32 s40, s42, 2000
            {l}:
            s_memrealtime s[42:43]
            s_waitcnt lgkmcnt(0)
            s_sub_u32 s41, s42, s40
            s_cmp_lt_i32 s41, 0
            s_cbranch_scc1 {l}""")
        A("L_adone:")
        self.write_stamps(14)
        A("s_endpgm")
        A(f"""
        L_ffn:
        s_cmp_eq_u32 s{sW}, 2
        s_cbranch_scc0 L_adone""")
        if self.localD:
            l = self.lab("Lxt")
            A(f"""
            s_getreg_b32 s45, hwreg(HW_REG_XCC_ID, 0, 4)
            s_lshl_b32 s45, s45, 28
            s_xor_b32 s42, s45, s{sT32}
            s_mov_b32 s43, s42
            s_lshl_b32 s40, s{sG}, 7
            s_add_u32 s40, s40, {WS_XT:#x}
            s_lshl2_add_u32 s41, s{sY}, s40
            s_mov_b64 exec, 1
            v_mov_b32 v1, s41
            v_mov_b32 v2, s42
            global_store_dword v1, v2, s[26:27] sc1
            s_mov_b64 exec, -1
            s_add_u32 s41, s40, 64
            s_mov_b32 s{sSPIN}, 0
            {l}:
            s_sleep 24
            s_load_dwordx16 s[{sP}:{sP+15}], s[26:27], s40 glc
            s_load_dwordx16 s[4:19], s[26:27], s41 glc
            s_add_u32 s{sSPIN}, s{sSPIN}, 1
            s_cmp_gt_u32 s{sSPIN}, {SPIN_MAX}
            s_cbranch_scc1 L_end
            s_waitcnt lgkmcnt(0)""")
            pairs = [sP + 2*i for i in range(8)] + [4 + 2*i for i in range(6)]
            for p in pairs:
                A(f"s_xor_b64 s[{p}:{p+1}], s[{p}:{p+1}], s[42:43]")
            for p in pairs[1:]:
                A(f"s_or_b64 s[{sP}:{sP+1}], s[{sP}:{sP+1}], s[{p}:{p+1}]")
            A(f"""
            s_or_b32 s101, s{sP}, s{sP+1}
            s_and_b32 s{sP}, s101, 0x0fffffff
            s_cbranch_scc1 {l}""")
        if 'noffn' in self.abl:
            A("s_branch L_adone")
        if self.dtouch:
            A(f"""
            s_lshl2_add_u32 s40, s{sTL}, s{sRB}
            s_lshl_b32 s40, s40, 10
            s_add_u32 s40, s40, {WS_BD:#x}
            s_add_u32 s40, s26, s40
            s_addc_u32 s41, s27, 0
            s_lshl2_add_u32 s42, s{sUP}, s{sRB}
            s_lshl_b32 s42, s42, 10
            s_add_u32 s42, s42, {WS_BD + 512:#x}
            s_add_u32 s42, s26, s42
            s_addc_u32 s43, s27, 0""")
            for k in range(8):
                A(f"s_load_dword s48, s[40:41], {64*k} glc\ns_load_dword s49, s[42:43], {64*k} glc")
            A("s_waitcnt lgkmcnt(0)")
        self.red_publish(L_RG, 1024, C_G, 64, f"""
            s_sub_u32 s41, s{sUP}, s{sTL}
            s_lshl2_add_u32 s40, s{sTL}, s{sRB}
            s_lshl_b32 s40, s40, 10
            s_add_u32 s40, s40, {WS_BD:#x}
            v_add_u32 v11, s40, v10
            v_lshrrev_b32 v13, 5, v0
            s_lshl_b32 s42, s41, 12
            v_mul_lo_u32 v12, s42, v13
            v_add_u32 v11, v11, v12
            s_lshl_b32 s40, s{sTL}, 5
            s_add_u32 s40, s40, s{sRB}
            s_lshl_b32 s40, s40, 2
            s_lshl_b32 s42, s41, 7
            s_add_u32 s42, s42, 16
            v_mul_lo_u32 v12, s42, v0
            v_add_u32 v12, s40, v12
            s_movk_i32 s40, {WS_FLD:#x}""", 2, 12, sleep=1, local=self.localD)
        self.gate(1, self.gateF)
        self.stamp(5)
        A(f"""
        s_lshl_b32 s40, s{sTL}, 12
        s_add_u32 s40, s40, {WS_BD:#x}
        v_add_u32 v{vA0}, s40, v10
        v_and_b32 v1, 1, v0
        v_lshl_add_u32 v1, v1, 1, v13
        v_and_b32 v2, 30, v0
        v_lshl_add_u32 v12, v1, 6, v2
        s_lshl_b32 s40, s{sTL}, 7
        s_add_u32 s40, s40, {WS_FLD:#x}""")
        self.flag_poll(8)
        self.stamp(6)
        rd = self.lab("Lgd")
        G = 56
        A(f"s_mov_b32 s47, 0\n{rd}:")
        def dloads(mod):
            for n in range(4):
                A(f"global_load_dwordx4 v[{G+4*n}:{G+4*n+3}], v{vA0}, s[26:27] offset:{1024*n} {mod}")
        if self.localD:
            rem = self.lab("Lremote"); fl = self.lab("Ldld")
            A(f"s_cmp_lg_u32 s101, 0\ns_cbranch_scc1 {rem}")
            dloads(self.gmod)
            A(f"s_branch {fl}\n{rem}:")
            dloads("sc1")
            A(f"{fl}:")
        else:
            dloads("sc1")
        if self.HF:
            l = self.lab("Lhb")
            A(f"s_cmp_lg_u32 s47, 0\ns_cbranch_scc1 {l}\ns_mov_b32 s47, 1")
            self.arrive(C_HB, want_old=False)
            A(f"{l}:")
        if 2 in self.gateF:
            self.gate(2, self.gateF)
            A(f"s_mov_b32 s{sGATE}, 0")
        self.untag([G + 4*n for n in range(4)], vT, counted=True)
        self.tagtest(vT, rd)
        self.stamp(7)
        for h in (0, 2):
            A(f"v_pk_add_f32 v[{G+h}:{G+h+1}], v[{G+h}:{G+h+1}], v[{G+4+h}:{G+5+h}]")
            A(f"v_pk_add_f32 v[{G+8+h}:{G+9+h}], v[{G+8+h}:{G+9+h}], v[{G+12+h}:{G+13+h}]")
        for h in (0, 2):
            A(f"v_pk_add_f32 v[{G+h}:{G+h+1}], v[{G+h}:{G+h+1}], v[{G+8+h}:{G+9+h}]")
        c1 = -2.0 * 0.7978845608028654 * LOG2E
        c2 = c1 * 0.044715
        A(f"""
        v_cvt_pk_bf16_f32 v{G}, v{G}, v{G+1}
        v_cvt_pk_bf16_f32 v{G+1}, v{G+2}, v{G+3}
        s_mov_b32 s46, {f2u(c2):#x}
        v_mov_b32 v{vT+4}, {f2u(c1):#x}
        v_permlane32_swap_b32 v{G}, v{G+1}
        v_lshlrev_b32 v{G+2}, 16, v{G}
        v_and_b32 v{G+3}, 0xffff0000, v{G}
        v_pk_mul_f32 v[{vT}:{vT+1}], v[{G+2}:{G+3}], v[{G+2}:{G+3}]
        v_fma_f32 v{vT}, v{vT}, s46, v{vT+4}
        v_fma_f32 v{vT+1}, v{vT+1}, s46, v{vT+4}
        v_pk_mul_f32 v[{vT}:{vT+1}], v[{vT}:{vT+1}], v[{G+2}:{G+3}]
        v_exp_f32 v{vT}, v{vT}
        v_exp_f32 v{vT+1}, v{vT+1}
        v_lshlrev_b32 v{G+4}, 16, v{G+1}
        v_add_f32 v{vT}, 1.0, v{vT}
        v_add_f32 v{vT+1}, 1.0, v{vT+1}
        v_rcp_f32 v{vT}, v{vT}
        v_rcp_f32 v{vT+1}, v{vT+1}
        v_and_b32 v{G+5}, 0xffff0000, v{G+1}
        v_pk_mul_f32 v[{G+2}:{G+3}], v[{G+2}:{G+3}], v[{vT}:{vT+1}]
        v_cvt_pk_bf16_f32 v{G}, v{G+2}, v{G+3}
        v_lshlrev_b32 v{G+2}, 16, v{G}
        v_and_b32 v{G+3}, 0xffff0000, v{G}
        v_pk_mul_f32 v[{G+2}:{G+3}], v[{G+2}:{G+3}], v[{G+4}:{G+5}]
        v_mov_b32 v1, {C_FO}
        v_cvt_pk_bf16_f32 v{G}, v{G+2}, v{G+3}
        v_mov_b32 v2, 1
        ds_write_b16 v12, v{G} offset:{L_VEC}
        ds_write_b16_d16_hi v12, v{G} offset:{L_VEC+32}
        s_mov_b64 exec, 1
        ds_write_b32 v1, v2
        s_mov_b64 exec, -1""")
        self.stamp(8)
        A("s_branch L_adone")

    def final(self):
        A = self.A
        vI, vJ, vT = 4, 5, 16
        G0, G1 = 56, 60
        A(f"""
        L_final:
        s_mov_b32 s42, s{sR}
        s_lshl_b32 s43, s42, 7
        v_lshl_add_u32 v8, v0, 1, s43
        global_load_ushort v9, v8, s[4:5]""")
        if 'nofinal' in self.abl:
            A("s_branch L_adone")
        A(f"""
        s_and_b32 s41, s{sW}, 3
        s_cmp_lt_u32 s{sW}, 4
        s_cselect_b32 s46, 0, {WS_BF - WS_BS:#x}
        s_cselect_b32 s47, {28*ROWP}, 0
        s_cselect_b32 s93, -1, 0xffff
        s_mov_b32 s92, -1
        s_mul_i32 s40, s41, {ROWP}
        s_add_u32 s40, s40, s46
        s_lshl_b32 s43, s42, 8
        s_add_u32 s40, s40, s43
        s_add_u32 s46, s40, {WS_BS:#x}
        s_add_u32 s47, s47, s46
        v_mul_u32_u24 v1, {4*ROWP}, v{vJ}
        v_lshl_add_u32 v1, v{vI}, 4, v1
        v_add_u32 v6, s46, v1
        v_add_u32 v7, {16*ROWP}, v6
        v_lshl_add_u32 v10, v{vI}, 2, v{vJ}
        v_lshlrev_b32 v10, 5, v10
        s_lshl_b32 s40, s{sW}, 2
        v_add_u32 v10, s40, v10
        v_lshlrev_b32 v11, 5, v0
        v_mov_b32 v12, {C_F1}
        v_mov_b32 v13, 1
        s_waitcnt vmcnt(0)
        v_lshlrev_b32 v9, 16, v9""")
        for r in range(4):
            A(f"v_mov_b32 v{G1+r}, v3")
        if self.flocal:
            lf = self.lab("Lfl"); ns = self.lab("Lnfl")
            A(f"""
            {'' if (self.svec or self.strig) else f's_cmp_lt_u32 s{sW}, 4'}
            {'' if (self.svec or self.strig) else f's_cbranch_scc1 {ns}'}""")
            if self.flocal == 'xt' and not self.svec:
                self.get_loc(sleep=4)
                A(f"s_cmp_lg_u32 s101, 0\ns_cbranch_scc1 {ns}")
            if self.strig:
                fw = self.lab("Lfw")
                A(f"s_cmp_ge_u32 s{sW}, 4\ns_cbranch_scc1 {fw}")
                self.lds_spin(C_TR, 1, sleep=2)
                A(f"s_branch L_fvec\n{fw}:")
            if self.svec and self.svec > 1:
                A(f"s_sleep {self.svec}")
            A(f"""
            s_mov_b32 s{sSPIN}, 0
            {lf}:
            s_sleep {self.fls}
            global_load_dwordx4 v[{G0}:{G0+3}], v6, s[26:27] {self.fmod}
            s_mov_b64 exec, s[92:93]
            global_load_dwordx4 v[{G1}:{G1+3}], v7, s[26:27] {self.fmod}
            s_mov_b64 exec, -1
            s_add_u32 s{sSPIN}, s{sSPIN}, 1
            s_cmp_gt_u32 s{sSPIN}, {SPIN_MAX}
            s_cbranch_scc1 L_end
            s_waitcnt vmcnt(0)
            v_bitop3_b32 v{vT}, v{G0}, v{G0+3}, s{sT10} bitop3:0x7e
            v_and_b32 v{vT}, s44, v{vT}
            v_cmp_eq_u32 vcc, 0, v{vT}
            s_nop 4
            s_cbranch_vccz {lf}""")
            if self.strig:
                A(f"s_mov_b64 exec, 1\nv_mov_b32 v1, {C_TR}\nds_write_b32 v1, v13\ns_mov_b64 exec, -1")
            A(f"""
            s_branch L_fvec
            {ns}:""")
        l = self.lab("Lfp"); r_ = self.lab("Lfr")
        A(f"""
        s_add_u32 s40, s26, s46
        s_addc_u32 s41, s27, 0""")
        if self.stouch:
            for k in range(8):
                for h in (64, 128, 192):
                    A(f"s_load_dword s{48+k}, s[40:41], {4*min(k, 7)*ROWP + h} glc")
        A(f"""
        s_mov_b32 s{sSPIN}, 0
        s_branch {l}
        {r_}:
        s_cmp_lg_u32 s43, 0
        s_cbranch_scc1 {l}
        s_sleep {self.fsleep}
        {l}:""")
        for k in range(7):
            A(f"s_load_dword s{48+k}, s[40:41], {4*k*ROWP} glc")
        A(f"""
        s_load_dword s55, s[26:27], s47 glc
        s_add_u32 s{sSPIN}, s{sSPIN}, 1
        s_cmp_gt_u32 s{sSPIN}, {SPIN_MAX}
        s_cbranch_scc1 L_end
        s_waitcnt lgkmcnt(0)""")
        A("s_mov_b32 s43, 0")
        for k in range(8):
            A(f"s_and_b32 s{48+k}, s{48+k}, s44\ns_cmp_eq_u32 s{48+k}, s{sT10}\ns_addc_u32 s43, s43, 0")
        A(f"s_cmp_ge_u32 s43, {self.fthr}\ns_cbranch_scc0 {r_}")
        A("L_fvec:")
        self.stamp(9)
        rg = self.lab("Lfg")
        loads = f"""
            s_or_b64 exec, s[48:49], 1
            global_load_dwordx4 v[{G0}:{G0+3}], v6, s[26:27] {self.fmod if self.flocal else 'sc1'}
            s_or_b64 exec, s[92:93], 1
            global_load_dwordx4 v[{G1}:{G1+3}], v7, s[26:27] {self.fmod if self.flocal else 'sc1'}
            s_mov_b64 exec, -1"""
        A("s_mov_b64 s[48:49], -1")
        for k in range(self.fdepth - 1):
            A(loads)
        A(f"{rg}:")
        A(loads)
        A(f"s_waitcnt vmcnt({2*(self.fdepth - 1)})")
        for i, k in enumerate((G0, G1)):
            A(f"v_bitop3_b32 v{vT+2*i}, v{k}, v{k+1}, s{sT10} bitop3:0x7e")
            A(f"v_bitop3_b32 v{vT+2*i+1}, v{k+2}, v{k+3}, s{sT10} bitop3:0x7e")
        for i in range(2):
            A(f"v_bitop3_b32 v{vT+2*i}, v{vT+2*i}, v{vT+2*i+1}, s44 bitop3:0xa8")
        R = vT + 12
        A(f"""
        v_cmp_ne_u32 s[48:49], 0, v{vT}
        v_cmp_ne_u32 s[92:93], 0, v{vT+2}
        s_add_u32 s{sSPIN}, s{sSPIN}, 1
        s_cmp_gt_u32 s{sSPIN}, {SPIN_MAX}
        s_cbranch_scc1 L_end
        s_or_b64 s[40:41], s[48:49], s[92:93]
        s_cbranch_scc1 {rg}""")
        self.stamp(10)
        for k in range(4):
            A(f"v_xor_b32 v{R+k}, s{sT10}, v{G0+k}\nv_xor_b32 v{R+4+k}, s{sT10}, v{G1+k}")
        for h in (0, 2):
            A(f"v_pk_add_f32 v[{R+h}:{R+h+1}], v[{R+h}:{R+h+1}], v[{R+4+h}:{R+5+h}]")
        self.reduce_scatter_rows(R)
        f = vT + 4
        A(f"""
        ds_write_b32 v10, v{R} offset:{L_RF}
        s_mov_b64 exec, 1
        ds_add_rtn_u32 v2, v12, v13
        s_mov_b64 exec, -1
        ds_read_b128 v[{f}:{f+3}], v11 offset:{L_RF}
        ds_read_b128 v[{f+4}:{f+7}], v11 offset:{L_RF+16}
        s_waitcnt lgkmcnt(0)
        v_readfirstlane_b32 s{sTMP}, v2
        s_cmp_eq_u32 s{sTMP}, 7
        s_cbranch_scc0 L_adone
        v_pk_add_f32 v[{f+4}:{f+5}], v[{f+4}:{f+5}], v[{f+6}:{f+7}]
        v_pk_add_f32 v[{f}:{f+1}], v[{f}:{f+1}], v[{f+2}:{f+3}]
        v_add_f32 v{f+2}, v{f+4}, v{f+5}
        v_add_f32 v{f}, v{f}, v{f+1}
        v_cvt_pk_bf16_f32 v{f}, v{f}, v{f+2}
        v_and_b32 v{f+2}, 0xffff0000, v{f}
        v_mul_f32 v{f+3}, {f2u(-LOG2E):#x}, v{f+2}
        v_exp_f32 v{f+3}, v{f+3}
        v_lshlrev_b32 v{f}, 16, v{f}
        v_add_f32 v{f+3}, 1.0, v{f+3}
        v_rcp_f32 v{f+3}, v{f+3}
        s_nop 0
        v_mul_f32 v{f+2}, v{f+2}, v{f+3}""")
        self.bf16_round(f + 2, f + 2)
        A(f"v_mul_f32 v{f}, v{f}, v{f+2}")
        self.bf16_round(f, f)
        A(f"""
        v_add_f32 v{f}, v{f}, v9
        v_cvt_pk_bf16_f32 v{f}, v{f}, v{f}
        global_store_short v8, v{f}, s[22:23] {self.outmod}""")
        A(f"""
        {'s_branch L_mag' if self.mag else ''}
        L_magback:
        s_cmp_lg_u32 s{sR}, 0
        s_cbranch_scc1 L_adone
        s_mov_b64 exec, 1
        v_mov_b32 v1, {WS_E}
        v_mov_b32 v2, s{sT32}
        global_store_dword v1, v2, s[26:27]
        s_branch L_adone""")
        if self.mag:
            what, K = self.mag[:2]
            A(f"""
            L_mag:
            s_memrealtime s[90:91]
            s_sleep 64
            v_lshlrev_b32 v1, 9, v0
            v_add_u32 v1, 0x300000, v1
            global_load_dword v56, v1, s[26:27] sc1
            global_load_dword v57, v1, s[26:27] offset:128 sc1
            global_load_dword v58, v1, s[26:27] offset:256 sc1
            global_load_dword v59, v1, s[26:27] offset:384 sc1
            s_waitcnt vmcnt(0) lgkmcnt(0)
            v_sub_u32 v56, s90, v56
            v_sub_u32 v57, s90, v57
            v_sub_u32 v58, s90, v58
            v_sub_u32 v59, s90, v59
            v_cvt_f32_u32 v56, v56
            v_cvt_f32_u32 v57, v57
            v_cvt_f32_u32 v58, v58
            v_cvt_f32_u32 v59, v59
            v_max3_f32 v60, v56, v57, v58
            v_max_f32 v60, v60, v59
            v_min3_f32 v61, v56, v57, v58
            v_min_f32 v61, v61, v59""")
            self.allreduce_in_row(60, "v_max_f32"); self.allreduce_rows(60, 62, "v_max_f32")
            self.allreduce_in_row(61, "v_min_f32"); self.allreduce_rows(61, 62, "v_min_f32")
            if what == 'ev':
                A("""
                v_add_u32 v1, 0x10000, v1
                global_load_dword v56, v1, s[26:27] sc1
                global_load_dword v57, v1, s[26:27] offset:128 sc1
                global_load_dword v58, v1, s[26:27] offset:256 sc1
                global_load_dword v59, v1, s[26:27] offset:384 sc1
                s_waitcnt vmcnt(0)
                v_sub_u32 v56, s90, v56
                v_sub_u32 v57, s90, v57
                v_sub_u32 v58, s90, v58
                v_sub_u32 v59, s90, v59
                v_cvt_f32_i32 v56, v56
                v_cvt_f32_i32 v57, v57
                v_cvt_f32_i32 v58, v58
                v_cvt_f32_i32 v59, v59
                v_min3_f32 v61, v56, v57, v58
                v_min_f32 v61, v61, v59""")
                self.allreduce_in_row(61, "v_min_f32"); self.allreduce_rows(61, 62, "v_min_f32")
                A("v_sub_f32 v60, v60, v61")
            if what == 'skew':
                A("v_sub_f32 v60, v60, v61")
            elif what == 'max':
                A("v_mov_b32 v60, v61")
            A(f"""
            v_min_f32 v60, 0x44fa0000, v60
            v_cvt_u32_f32 v60, v60
            s_nop 1
            v_readfirstlane_b32 s40, v60
            s_mul_i32 s40, s40, {K}
            s_add_u32 s40, s40, s90
            L_magspin:
            s_memrealtime s[42:43]
            s_waitcnt lgkmcnt(0)
            s_sub_u32 s41, s42, s40
            s_cmp_lt_i32 s41, 0
            s_cbranch_scc1 L_magspin
            s_branch L_magback""")


class Gen(Gen0):
    def __init__(self, ldsb=None, nvo=None, **kw):
        self.ldsb, self.nvo = ldsb, nvo
        super().__init__(**kw)


if __name__ == "__main__":
    import argparse
    ap = argparse.ArgumentParser()
    ap.add_argument("-o", default="recurrent_scan__sliding_block_cached__geglu_ffn__decode.s")

    ap.add_argument("--stamps", action="store_true")
    ap.add_argument("--probe", default=None)
    ap.add_argument("--kw", default="")
    a = ap.parse_args()
    open(a.o, "w").write(Gen(stamps=a.stamps, probe=tuple(map(int, a.probe.split(','))) if a.probe else None, **eval(f'dict({a.kw})')).build())
```

```python
import sys, struct

KN = "recurrent_scan__sliding_block_cached__geglu_ffn__decode_kernel"

def f2u(x):
    return struct.unpack("<I", struct.pack("<f", x))[0]

WS_E   = 0x0
WS_FLD = 0x1000
WS_XT  = 0x3000
WS_XA  = 0x3400
WS_XV  = 0x8000
WS_BML = 0x4000
WS_BQ  = 0x10000
WS_BD  = 0x30000
ROWP   = 4352
WS_BS  = 0x50000
WS_BF  = 0x78000
WS_BO  = 0xA0000
BOP    = 4096 + 128
REPP   = 17 * 128
WS_FLA = 0x130000
WS_FLB = 0x148000
WS_ST  = 0x400000

L_RQ   = 0
L_RG   = L_RQ + 2048
L_QL   = L_RG + 4096
QLP    = 272
L_WT   = L_QL + 2304
L_VEC  = L_WT + 512
L_XQ   = L_VEC + 256
L_XG   = L_XQ + 256
L_RF   = L_XG + 512
L_CNT  = L_RF + 2048
C_Q, C_G, C_X, C_QL, C_HB, C_FO, C_GA, C_B1, C_F1 = [L_CNT + 4*i for i in range(9)]
C_LOC = L_CNT + 36
C_TR = L_CNT + 40
C_XN, C_K, C_V = L_CNT + 48, L_CNT + 64, L_CNT + 80
L_K    = 12288
L_V    = L_K + 32768
assert L_CNT + 128 <= L_K
LDS_BYTES = L_V + 32768
YF, YL = 16, 30

TAGM = 0x3FF
LOG2E = 1.4426950408889634
SPIN_MAX = 1 << 20

sX, sY, sRB, sHQ, sRBQ, sTL, sG, sCH = 28, 29, 30, 31, 32, 33, 34, 35
sT32, sT10, sSPIN, sTMP = 36, 37, 38, 39
sW = 3
sGATE = 100
sTY, sUP, sR = 97, 98, 99
sP = 48
sSTAMP = 64


HEADER = """
; 56 w_up, 64 w_down, 72 out, 80 debug, 88 ws.
;
;
;   every workgroup : a 128 x 128 tile of wq (q partials, 8 per column)
;   x odd           : kv group x>>1, keys 128*y .. +128 of the window, then a 128 x 256 tile of wo
;   x even, y < 28  : gate / up tiles (256 rows x 128 columns), then a 128 x 256 tile of w_down
;   x even, y >= 28 : final reduction of 64 output columns
; a one-hot selector carrying the vector element of each row.  Waves 0..3 do the layernorm, the hand-offs,
; the attention (running maximum per 32 keys, merged exactly) and the activations.
; bits; a reader re-reads until every tag matches and clears the tag bits before it uses a value.  The words
; other stays in that die's L2 (plain stores); otherwise it is written through (sc1).  Placement costs speed only.
"""


class Gen0:
    def __init__(self, stamps=False, prefetch=True, probe=None, abl='', xnpos=11, nrepA=4, nrepB=4, psleep=1,
                 WA=(6, 6, 5), WF=(6, 8, 8), pause='gather', fthr=6, wtest=None, fsleep=16, upx=2, layout='mix', plain='', gmod='sc1', local=False, touch=False, flagpos='end', HA=0, HF=0, vlate=False, kfirst=True, localD=False, earlyD=False, warm=None, warmO=False, qmap='grp', forceloc=False, xt=False, stag=False, dtouch=False, qtouch=False, strig=False, svec=False, staged=(), stouch=False, sync0=False, mag=None, ftrans=False, flocal=None, fmod='sc1', fls=4, wideg=0, widew=False, wideq=0, xsleep=10, fdepth=2, outmod='', gateA=(1, 1), gateF=(0, 0), WAe=None, WFe=None):
        self.gateA, self.gateF = gateA, gateF
        self.WAe, self.WFe = WAe, WFe
        self.nogate = gateA == (1, 1) and gateF == (0, 0)
        self.local = local
        self.fdepth = fdepth
        self.touch = touch
        self.warm = warm
        self.dtouch, self.qtouch = dtouch, qtouch
        self.strig = strig
        self.svec = svec
        self.staged = staged
        self.stouch = stouch
        self.sync0 = sync0
        self.mag = mag
        self.ftrans, self.flocal, self.fmod, self.fls = ftrans, flocal, fmod, fls
        self.wideg, self.widew, self.wideq = wideg, widew, wideq
        self.xt, self.stag, self.xsleep = xt, stag, xsleep
        if xt:
            forceloc = True
        self.qmap, self.forceloc = qmap, forceloc
        self.warmO = warmO
        self.localD, self.earlyD = localD, earlyD
        self.kfirst = kfirst
        self.flagpos, self.HA, self.HF, self.vlate = flagpos, HA, HF, vlate
        self.outmod = outmod
        assert not local or layout != 'mix'
        self.gmod = gmod
        self.layout = layout
        self.plain = plain
        self.fsleep = fsleep
        self.upx = upx
        self.wtest = wtest
        self.fthr = fthr
        self.L = []
        self.stamps = stamps
        self.prefetch = prefetch
        self.probe = probe
        self.abl = abl
        self.xnpos = xnpos
        self.nrepA, self.nrepB = nrepA, nrepB
        self.psleep = psleep
        self.relwait = False
        self.WA, self.WF = WA, WF
        self.pause = pause
        self.nlab = 0

    def A(self, s):
        for line in s.strip("\n").split("\n"):
            if line.strip():
                self.L.append("    " + line.strip() if not line.strip().endswith(":") else line.strip())

    def lab(self, p="L"):
        self.nlab += 1
        return f"{p}_{self.nlab}"

    def stamp(self, k):
        if self.mag and len(self.mag) > 2:
            if k == self.mag[3]:
                self.A(f"s_memrealtime s[88:89]")
            return
        if self.stamps == 'lite' and k not in (0, 10, 14):
            return
        if self.stamps or (self.probe and k in (0, self.probe[2])):
            self.A(f"s_memrealtime s[{sSTAMP+2*k}:{sSTAMP+2*k+1}]")

    def mask(self, reg, val):
        lo, hi = val & 0xFFFFFFFF, val >> 32
        self.A(f"s_mov_b32 {reg[0]}, {lo:#x}\ns_mov_b32 {reg[1]}, {hi:#x}")

    def exec_set(self, val):
        if val == -1:
            self.A("s_mov_b64 exec, -1")
        elif val <= 64:
            self.A(f"s_mov_b64 exec, {val}")
        elif val < (1 << 31):
            self.A(f"s_mov_b64 exec, {val:#x}")
        else:
            self.mask(("exec_lo", "exec_hi"), val)

    def arrive(self, cnt, want_old=True, inc=1):
        self.A(f"""
        s_mov_b64 exec, 1
        v_mov_b32 v1, {cnt}
        v_mov_b32 v2, {inc}""")
        if want_old:
            self.A(f"""
            ds_add_rtn_u32 v2, v1, v2
            s_waitcnt lgkmcnt(0)
            v_readfirstlane_b32 s{sTMP}, v2""")
        else:
            self.A("ds_add_u32 v1, v2")
        self.A("s_mov_b64 exec, -1")

    def lds_spin(self, cnt, val, sleep=1, reads="", low8=False):
        l = self.lab("Lspin"); d = self.lab("Lgot")
        self.A(f"""
        v_mov_b32 v1, {cnt}
        s_mov_b32 s{sSPIN}, 0
        {l}:
        ds_read_b32 v2, v1
        {reads}
        s_add_u32 s{sSPIN}, s{sSPIN}, 1
        s_cmp_gt_u32 s{sSPIN}, {SPIN_MAX}
        s_cbranch_scc1 L_end
        s_waitcnt lgkmcnt(0)
        v_readfirstlane_b32 s{sTMP}, v2""")
        if low8:
            self.A(f"s_lshr_b32 s101, s{sTMP}, 8\ns_and_b32 s{sTMP}, s{sTMP}, 0xff")
        if sleep:
            self.A(f"s_cmp_eq_u32 s{sTMP}, {val}\ns_cbranch_scc1 {d}\ns_sleep {sleep}\ns_branch {l}\n{d}:")
        else:
            self.A(f"s_cmp_eq_u32 s{sTMP}, {val}\ns_cbranch_scc0 {l}")

    def flag_poll(self, n, two=False):
        if 'nopoll' in self.abl:
            return
        l = self.lab("Lpoll"); r = self.lab("Lretry"); d = self.lab("Lflag")
        self.A(f"""
        s_mov_b32 s{sSPIN}, 0
        s_mov_b32 s42, s{sT32}
        s_mov_b32 s43, s{sT32}
        s_branch {l}
        {r}:
        s_sleep {self.psleep}
        {l}:
        s_load_dwordx{n} s[{sP}:{sP+n-1}], s[26:27], s40 glc
        {'s_load_dwordx16 s[4:19], s[26:27], s41 glc' if two else ''}
        s_add_u32 s{sSPIN}, s{sSPIN}, 1
        s_cmp_gt_u32 s{sSPIN}, {SPIN_MAX}
        s_cbranch_scc1 L_end
        s_waitcnt lgkmcnt(0)""")
        for b in ((sP, 4) if two else (sP,)):
            for i in range(0, n, 2):
                self.A(f"s_cmp_eq_u64 s[{b+i}:{b+i+1}], s[42:43]\ns_cbranch_scc0 {r}")
        self.A(f"{d}:")

    def gate(self, k, used):
        if k not in used:
            return
        if self.nogate:
            self.arrive(C_GA, want_old=False)
            return
        l = self.lab("Lgate")
        self.A(f"s_cmp_eq_u32 s{sGATE}, {k}\ns_cbranch_scc0 {l}")
        self.arrive(C_GA, want_old=False)
        self.A(f"{l}:")

    def get_loc(self, vreg=None, sleep=0):
        l = self.lab("Lloc")
        if vreg is not None:
            self.A(f"v_readfirstlane_b32 s101, v{vreg}\ns_cmp_lg_u32 s101, 0\ns_cbranch_scc1 {l}_d")
        self.A(f"""
        v_mov_b32 v1, {C_LOC}
        s_mov_b32 s{sSPIN}, 0
        {l}:
        {f's_sleep {sleep}' if sleep else ''}
        ds_read_b32 v2, v1
        s_add_u32 s{sSPIN}, s{sSPIN}, 1
        s_cmp_gt_u32 s{sSPIN}, {SPIN_MAX}
        s_cbranch_scc1 L_end
        s_waitcnt lgkmcnt(0)
        v_readfirstlane_b32 s101, v2
        s_cmp_eq_u32 s101, 0
        s_cbranch_scc1 {l}
        {l}_d:
        s_lshr_b32 s101, s101, 1""")

    def early_flag(self, pos):
        if self.flagpos != pos:
            return
        l = self.lab("Lef")
        self.A(f"s_or_b32 s40, s101, s{sW}\ns_cbranch_scc1 {l}\ns_mov_b32 s40, s95")
        self.flag_store(self.nrepB)
        self.A(f"{l}:")

    def flag_store(self, n, vaddr=None, val=sT32):
        self.exec_set((1 << n) - 1)
        self.A(f"""
        {f'v_mul_u32_u24 v1, {REPP}, v0' if vaddr is None else ''}
        v_add_u32 v1, s40, v{1 if vaddr is None else vaddr}
        v_mov_b32 v2, s{val}
        global_store_dword v1, v2, s[26:27] sc1
        s_mov_b64 exec, -1""")

    def tagcheck(self, regs, vacc, vt):
        first = True
        for r in regs:
            if first:
                self.A(f"v_bitop3_b32 v{vacc}, v{r}, v{r+1}, s{sT10} bitop3:0x7e")
                self.A(f"v_bitop3_b32 v{vt}, v{r+2}, v{r+3}, s{sT10} bitop3:0x7e")
                self.A(f"v_or_b32 v{vacc}, v{vacc}, v{vt}")
                first = False
            else:
                self.A(f"v_bitop3_b32 v{vt}, v{r}, v{r+1}, s{sT10} bitop3:0x7e")
                self.A(f"v_bitop3_b32 v{vt+1}, v{r+2}, v{r+3}, s{sT10} bitop3:0x7e")
                self.A(f"v_or3_b32 v{vacc}, v{vacc}, v{vt}, v{vt+1}")

    def tagcheck2(self, regs, vacc, vt):
        out = []
        for i, r in enumerate(regs):
            d = vacc if i == 0 else vt + (i - 1) % 2
            self.A(f"v_bitop3_b32 v{d}, v{r}, v{r+3}, s{sT10} bitop3:0x7e")
            if i and i % 2 == 0:
                self.A(f"v_or3_b32 v{vacc}, v{vacc}, v{vt}, v{vt+1}")
        if len(regs) % 2 == 0:
            self.A(f"v_or_b32 v{vacc}, v{vacc}, v{vt}")

    def untag_list(self, regs, vacc, first=True):
        out = []
        for i, r in enumerate(regs):
            out += [f"v_xor_b32 v{r+k}, s{sT10}, v{r+k}" for k in range(4)]
            if i == 0 and first:
                out += [f"v_or3_b32 v{vacc}, v{r}, v{r+1}, v{r+2}", f"v_or_b32 v{vacc}, v{vacc}, v{r+3}"]
            else:
                out += [f"v_or3_b32 v{vacc}, v{vacc}, v{r}, v{r+1}", f"v_or3_b32 v{vacc}, v{vacc}, v{r+2}, v{r+3}"]
        return out

    def untag(self, regs, vacc, counted=False):
        ins = self.untag_list(regs, vacc)
        for i in range(len(regs)):
            if counted and i % 2 == 0:
                self.A(f"s_waitcnt vmcnt({max(0, len(regs) - 2 - i)})")
            self.A("\n".join(ins[6*i:6*i+6]))

    def pad2(self, fill):
        if len(fill) >= 2:
            self.A(fill.pop(0) + "\n" + fill.pop(0))
        else:
            self.A("s_nop 1")

    def tagtest(self, vacc, retry):
        if 'notag' in self.abl:
            return
        self.A(f"""
        v_and_b32 v{vacc}, {TAGM:#x}, v{vacc}
        v_cmp_ne_u32 vcc, 0, v{vacc}
        {'s_add_u32 s96, s96, 1' if self.stamps else ''}
        s_add_u32 s{sSPIN}, s{sSPIN}, 1
        s_cmp_gt_u32 s{sSPIN}, {SPIN_MAX}
        s_cbranch_scc1 L_end
        s_nop 1
        s_cbranch_vccnz {retry}""")

    def tag(self, r):
        self.A(f"v_bfi_b32 v{r}, s44, v3, v{r}")

    def reduce_scatter_rows(self, a):
        self.A(f"""
        s_nop 1
        v_permlane32_swap_b32 v{a}, v{a+2}
        v_permlane32_swap_b32 v{a+1}, v{a+3}
        v_add_f32 v{a}, v{a}, v{a+2}
        v_add_f32 v{a+1}, v{a+1}, v{a+3}
        s_nop 1
        v_permlane16_swap_b32 v{a}, v{a+1}
        v_add_f32 v{a}, v{a}, v{a+1}""")

    def allreduce_rows(self, a, t, op):
        self.A(f"""
        v_mov_b32 v{t}, v{a}
        s_nop 1
        v_permlane32_swap_b32 v{t}, v{a}
        {op} v{a}, v{a}, v{t}
        v_mov_b32 v{t}, v{a}
        s_nop 1
        v_permlane16_swap_b32 v{t}, v{a}
        {op} v{a}, v{a}, v{t}""")

    def allreduce_in_row(self, a, op="v_add_f32", fill=None):
        for m in ("quad_perm:[1,0,3,2]", "quad_perm:[2,3,0,1]", "row_half_mirror", "row_mirror"):
            self.pad2(fill if fill is not None else [])
            self.A(f"{op}_dpp v{a}, v{a}, v{a} {m} row_mask:0xf bank_mask:0xf")

    def bf16_round(self, d, s):
        self.A(f"v_cvt_pk_bf16_f32 v{d}, v{s}, v{s}\nv_and_b32 v{d}, 0xffff0000, v{d}")

    def build(self):
        A = self.A
        self.L.append(f"; @launch grid=(256,1,1) block=(512,1,1) lds={getattr(self, 'ldsb', None) or LDS_BYTES}")
        self.L += HEADER.strip("\n").split("\n")
        self.L.append('.amdgcn_target "amdgcn-amd-amdhsa--gfx950"')
        self.L += [".text", f".globl {KN}", ".p2align 12", ".p2align 8", f".type {KN},@function", f"{KN}:"]
        if self.sync0:
            A("""
            s_memrealtime s[40:41]
            s_waitcnt lgkmcnt(0)
            s_lshr_b32 s40, s40, 9
            s_add_u32 s40, s40, 1
            s_lshl_b32 s40, s40, 9
            L_sync0:
            s_memrealtime s[42:43]
            s_waitcnt lgkmcnt(0)
            s_sub_u32 s41, s42, s40
            s_cmp_lt_i32 s41, 0
            s_cbranch_scc1 L_sync0""")
        self.stamp(0)
        if self.mag:
            A("s_memrealtime s[90:91]")
        A(f"""
        s_cmp_ge_u32 s2, 256
        s_cbranch_scc1 L_end
        s_load_dwordx16 s[4:19], s[0:1], 0
        s_load_dwordx8 s[20:27], s[0:1], 64
        v_lshrrev_b32 v1, 6, v0
        s_and_b32 s{sX}, s2, 7
        s_lshr_b32 s{sY}, s2, 3
        v_readfirstlane_b32 s{sW}, v1""")
        if self.prefetch:
            A(f"""
            s_getpc_b64 s[46:47]
            L_pc:
            s_lshl_b32 s42, s{sY}, 9
            v_add_u32 v1, s42, v0
            v_min_u32 v1, L_codeend-L_pc-4, v1
            s_mov_b64 exec, 1
            global_load_ubyte v55, v1, s[46:47]
            s_mov_b64 exec, -1""")
        A(f"""
        v_and_b32 v0, 63, v0
""")
        if self.layout == 'mix':
            A(f"""
            s_lshr_b32 s{sHQ}, s{sY}, 3
            s_lshl2_add_u32 s{sHQ}, s{sX}, s{sHQ}
            s_and_b32 s{sRBQ}, s{sY}, 7
            s_lshr_b32 s{sG}, s{sX}, 1
            s_and_b32 s{sCH}, s{sX}, 1
            s_lshl4_add_u32 s{sCH}, s{sCH}, s{sY}
            s_lshl4_add_u32 s40, s{sX}, s{sY}
            s_mul_i32 s41, s{sX}, 14
            s_add_u32 s41, s41, s{sY}
            s_sub_u32 s41, s41, {YF}
            s_cmp_lt_u32 s{sY}, {YF}
            s_cselect_b32 s40, s40, s41
            s_cselect_b32 s{sTY}, 0, 1
            s_cmp_ge_u32 s{sY}, {YL}
            s_addc_u32 s{sTY}, s{sTY}, 0
            s_lshr_b32 s{sTL}, s40, 2
            s_and_b32 s{sRB}, s40, 3
            s_xor_b32 s{sUP}, s{sTL}, {self.upx}
            s_lshl1_add_u32 s{sR}, s{sX}, s{sY}
            s_sub_u32 s{sR}, s{sR}, {YL}""")
        else:
            if self.layout == 'odd':
                A(f"s_lshr_b32 s{sG}, s{sX}, 1\ns_and_b32 s{sTY}, s{sX}, 1\ns_xor_b32 s{sTY}, s{sTY}, 1")
            else:
                A(f"s_and_b32 s{sG}, s{sX}, 3\ns_lshr_b32 s{sTY}, s{sX}, 2")
                if self.layout == 'hi':
                    A(f"s_xor_b32 s{sTY}, s{sTY}, 1")
            A(f"""
            s_mov_b32 s{sCH}, s{sY}
            s_and_b32 s{sRB}, s{sY}, 3
            s_lshr_b32 s40, s{sY}, 2
            s_lshl3_add_u32 s{sHQ}, s{sG}, s40
            s_lshl2_add_u32 s{sRBQ}, s{sTY}, s{sRB}
            s_mul_i32 s41, s{sG}, s{sTY}
            s_sub_u32 s{sTL}, s{sHQ}, s41
            s_add_u32 s{sUP}, s40, {self.upx}
            s_cmp_ge_u32 s{sUP}, 7
            s_cselect_b32 s41, 7, 0
            s_sub_u32 s{sUP}, s{sUP}, s41
            s_sub_u32 s{sUP}, s{sUP}, s40
            s_add_u32 s{sUP}, s{sUP}, s{sTL}
            s_lshl2_add_u32 s{sR}, s{sG}, s{sRB}
            s_cmp_eq_u32 s40, 7
            s_cselect_b32 s41, s{sTY}, 0
            s_add_u32 s{sTY}, s{sTY}, s41""")
        A(f"""
""")
        if self.ftrans:
            A(f"""
            s_cmp_eq_u32 s{sTY}, 1
            s_cselect_b32 s{sTL}, s{sY}, s{sTL}
            s_cselect_b32 s{sRB}, s{sG}, s{sRB}
            s_xor_b32 s{sUP}, s{sTL}, {self.upx}""")
        A(f"""
        {f's_mov_b32 s{sHQ}, s{sY}' if self.qmap == 'rows' else ''}
        {f's_mov_b32 s{sRBQ}, s{sX}' if self.qmap == 'rows' else ''}
""")
        if not self.nogate:
            A(f"""
            s_cmp_lt_u32 s{sX}, 2
            s_cselect_b32 s40, {self.gateA[0]}, {self.gateA[1]}
            s_cselect_b32 s41, {self.gateF[0]}, {self.gateF[1]}
            s_cmp_eq_u32 s{sTY}, 0
            s_cselect_b32 s{sGATE}, s40, s41""")
        A(f"""
        s_movk_i32 s44, {TAGM:#x}
        v_and_b32 v4, 15, v0
        v_lshrrev_b32 v5, 4, v0""")
        if self.stamps or self.probe or self.mag:
            A(f"s_mov_b32 s96, 0\ns_mov_b32 s94, s{sW}")
        if self.probe:
            A(f"s_waitcnt lgkmcnt(0)\ns_mov_b32 s{sSTAMP+2*self.probe[2]}, s{sSTAMP}")
        A(f"""
        s_cmp_lt_u32 s{sW}, 4
        s_cbranch_scc1 L_awave""")
        L0 = self.L
        self.L = []
        self.swave()
        cut = self.L.index("L_sdispatch:")
        shead, stail = self.L[:cut], self.L[cut:]
        self.L = L0 + shead
        A("s_branch L_sdispatch\nL_awave:")
        self.awave()
        self.L += stail
        self.final()
        A("L_end:")
        A("s_endpgm")
        self.L.append("L_codeend:")
        nv = getattr(self, 'nvo', None) or 200
        self.L += ['.section .rodata,"a"', ".p2align 6", f".amdhsa_kernel {KN}",
                   f"  .amdhsa_next_free_vgpr {nv}", "  .amdhsa_next_free_sgpr 102", f"  .amdhsa_accum_offset {nv}",
                   "  .amdhsa_group_segment_fixed_size 0", "  .amdhsa_kernarg_size 96", "  .amdhsa_user_sgpr_count 2",
                   "  .amdhsa_user_sgpr_kernarg_segment_ptr 1", "  .amdhsa_system_sgpr_workgroup_id_x 1",
                   "  .amdhsa_float_denorm_mode_32 3", ".end_amdhsa_kernel"]
        return "\n".join(self.L) + "\n"

    def write_stamps(self, n):
        if self.mag and len(self.mag) > 2:
            self.stamp(n)
            d = self.lab("Lmg")
            self.A(f"""
            s_waitcnt lgkmcnt(0)
            s_cmp_eq_u32 s94, {self.mag[2]}
            s_cbranch_scc0 {d}
            s_cmp_eq_u32 s{sTY}, {self.mag[4]}
            s_cbranch_scc0 {d}
            s_lshl_b32 s40, s2, 7
            s_add_u32 s40, s40, 0x310000
            s_mov_b64 exec, 1
            v_mov_b32 v1, s40
            v_mov_b32 v2, s88
            global_store_dword v1, v2, s[26:27] sc1
            {d}:""")
            return
        if self.probe:
            wg, wave, k = self.probe[:3]
            ty = self.probe[3] if len(self.probe) > 3 else None
            self.stamp(n)
            d = self.lab("Lprobe_done"); l = self.lab("Lprobe")
            self.A(f"""
            s_waitcnt lgkmcnt(0)
            s_getreg_b32 s41, hwreg(HW_REG_XCC_ID, 0, 4)
            {f's_cmp_eq_u32 s41, {-wg-100}' if wg <= -100 else f"s_cmp_eq_u32 s2, {wg if wg >= 0 else 's2'}"}
            s_cbranch_scc0 {d}
            s_cmp_eq_u32 s94, {wave}
            s_cbranch_scc0 {d}
            s_cmp_eq_u32 s{sTY}, {ty if ty is not None else f's{sTY}'}
            s_cbranch_scc0 {d}
            s_add_u32 s40, s{sSTAMP+2*k}, 4000
            {l}:
            s_memrealtime s[42:43]
            s_waitcnt lgkmcnt(0)
            s_sub_u32 s41, s42, s40
            s_cmp_lt_i32 s41, 0
            s_cbranch_scc1 {l}
            {d}:""")
            return
        if not self.stamps:
            return
        self.stamp(n)
        A = self.A
        A(f"""
        s_waitcnt lgkmcnt(0)
        s_mov_b64 exec, -1
        s_lshl3_add_u32 s40, s2, s94
        s_lshl_b32 s40, s40, 6
        s_add_u32 s40, s40, {WS_ST:#x}
        v_mov_b32 v1, 0""")
        for k in range(n + 1):
            A(f"v_writelane_b32 v1, s{sSTAMP+2*k}, {k}")
        A(f"""
        s_getreg_b32 s41, hwreg(HW_REG_XCC_ID)
        s_and_b32 s41, s41, 0xf
        s_lshl4_add_u32 s41, s96, s41
        v_writelane_b32 v1, s41, 15
        v_lshl_add_u32 v2, v0, 2, s40
        s_mov_b64 exec, 0xffff
        global_store_dword v2, v1, s[26:27]""")

    def swave(self):
        A = self.A
        vI, vJ = 4, 5
        vAq, vA1, vA2, vA3, vAw, vRed, vPub = 6, 7, 8, 9, 10, 11, 14
        vPS, vXQ, vXG, vSEL, aQ, aG, aU, vT = 16, 24, 28, 36, 40, 44, 48, 52
        RING, BIG = 56, 120
        A(f"""
        L_swave:
        s_sub_u32 s{sW}, s{sW}, 4
        s_lshl2_add_u32 s40, s{sRBQ}, s{sW}
        s_lshl_b32 s40, s40, 18
        s_lshl_b32 s41, s{sHQ}, 8
        s_add_u32 s40, s40, s41
        v_lshlrev_b32 v13, 4, v{vI}
        v_lshl_add_u32 v{vAq}, v{vJ}, 13, v13
        v_add_u32 v{vAq}, s40, v{vAq}
        s_mov_b32 s45, 0x8000""")
        if self.wideq:
            A(f"""
            s_lshl2_add_u32 s40, s2, s{sW}
            s_lshl_b32 s40, s40, 13
            v_lshl_add_u32 v{vAq}, v0, 4, s40
            s_movk_i32 s45, 0x400""")
        A("s_waitcnt lgkmcnt(0)")
        for m in range(8):
            A(f"global_load_dwordx4 v[{RING+4*m}:{RING+4*m+3}], v{vAq}, s[10:11] nt")
            if m < 7:
                A(f"v_add_u32 v{vAq}, s45, v{vAq}")
        A(f"s_load_dword s{sT32}, s[26:27], {WS_E}")
        self.stamp(1)
        A(f"""
        ; wo / down: rows tile*128 + 8*m + (l>>3), columns cb*256 + sw*64 + 8*(l&7)
        v_lshrrev_b32 v12, 3, v0
        v_and_b32 v1, 7, v0
        v_lshlrev_b32 v2, 4, v1
        v_lshl_add_u32 v{vAw}, v12, 11, v2
        s_lshl2_add_u32 s42, s{sRB}, s{sW}
        s_lshl_b32 s40, s42, 7
        s_lshl_b32 s41, s{sTL}, 18
        s_add_u32 s40, s40, s41
        v_add_u32 v{vAw}, s40, v{vAw}
        s_movk_i32 s45, 0x4000""")
        if self.widew:
            A(f"""
            s_lshl_b32 s40, s{sW}, 16
            s_add_u32 s41, s41, s40
            s_lshl_b32 s40, s{sRB}, 9
            s_add_u32 s41, s41, s40
            v_lshrrev_b32 v2, 5, v0
            v_lshlrev_b32 v2, 11, v2
            v_and_b32 v{vAw}, 31, v0
            v_lshl_add_u32 v{vAw}, v{vAw}, 4, v2
            v_add_u32 v{vAw}, s41, v{vAw}
            s_movk_i32 s45, 0x1000""")
        A(f"""
        v_lshl_add_u32 v1, v1, 1, v{vJ}
        s_lshl_b32 s40, s42, 8
        v_lshl_add_u32 v{vPub}, v1, 4, s40
        ; LDS offset of this lane's partial granule: (2*(l&15) + J)*16
        v_lshl_add_u32 v{vRed}, v{vI}, 1, v{vJ}
        v_lshlrev_b32 v{vRed}, 4, v{vRed}
        s_mov_b32 s40, 0xaaaaaaaa
        s_mov_b32 s41, 0xaaaaaaaa
        v_mov_b32 v1, 0x0c0c0100
        v_mov_b32 v2, 0x01000c0c
        v_cndmask_b32 v1, v1, v2, s[40:41]
        v_mov_b32 v2, 0x0c0c0302
        v_mov_b32 v3, 0x03020c0c
        v_cndmask_b32 v2, v2, v3, s[40:41]
        v_mov_b32 v3, 0x0c0c0c0c""")
        for d in range(4):
            m = 0x03030303 << (2*d)
            A(f"""
            s_mov_b32 s40, {m:#x}
            s_mov_b32 s41, {m:#x}
            v_cndmask_b32 v{vPS+d}, v3, v1, s[40:41]
            v_cndmask_b32 v{vPS+4+d}, v3, v2, s[40:41]""")
        A(f"""
        s_barrier
        s_waitcnt lgkmcnt(0)
        s_add_u32 s{sT32}, s{sT32}, 1
        s_and_b32 s{sT10}, s{sT32}, s44
        v_mov_b32 v3, s{sT10}
        s_cmp_ge_u32 s{sTY}, 1
        s_cbranch_scc1 L_s_notattn
        L_sdispatch:""")

        def sel(m, dst, src):
            for d in range(4):
                A(f"v_perm_b32 v{dst+d}, v{src+(m>>1)}, v{src+(m>>1)}, v{vPS+4*(m&1)+d}")

        def mfma(acc, s, w, first):
            c = "0" if first else f"v[{acc}:{acc+3}]"
            A(f"v_mfma_f32_16x16x32_bf16 v[{acc}:{acc+3}], v[{s}:{s+3}], v[{w}:{w+3}], {c}")

        def get_xn(ffn):
            A(f"s_lshl_b32 s41, s{sW}, 2\ns_add_u32 s41, s41, {C_XN}")
            self.lds_spin("s41", 1, sleep=0)
            A(f"""
            s_lshl_b32 s40, s{sW}, 6
            v_lshl_add_u32 v2, v{vJ}, 4, s40
            ds_read_b128 v[{vXQ}:{vXQ+3}], v2 offset:{L_XQ}""")
            if ffn:
                A(f"""
                v_lshlrev_b32 v2, 1, v2
                ds_read_b128 v[{vXG}:{vXG+3}], v2 offset:{L_XG}
                ds_read_b128 v[{vXG+4}:{vXG+7}], v2 offset:{L_XG+16}""")
            A("s_waitcnt lgkmcnt(0)")
            self.stamp(3)
            sel(0, vSEL, vXQ)
            A("s_nop 1")

        def red_write(accs, lbase, shift, cnt):
            A(f"s_lshl_b32 s40, s{sW}, {shift}\nv_add_u32 v1, s40, v{vRed}\ns_mov_b32 exec_hi, 0")
            for i, a in enumerate(accs):
                A(f"ds_write_b128 v1, v[{a}:{a+3}] offset:{lbase + 512*i}")
            self.arrive(cnt, want_old=False)

        def kvflag(c):
            A(f"""
            s_lshl_b32 s40, s{sW}, 2
            s_mov_b64 exec, 1
            v_mov_b32 v1, s40
            v_mov_b32 v2, 1
            ds_write_b32 v1, v2 offset:{c}
            s_mov_b64 exec, -1""")

        def issue(op, i):
            kind, m = op
            slot = RING + 4*(i % 16)
            if kind in "kv":
                va, sb, x = (vA1, 6, 64*(m & 3)) if kind == "k" else (vA2, 8, 128*(m & 1))
                if m % 4 == 0:
                    if i > 8:
                        A(f"s_add_u32 s47, s47, {4096 if m == 4 else L_V - L_K - 4096}")
                    A("s_mov_b32 m0, s47")
                    if m == 4:
                        A(f"v_add_u32 v{va}, 4096, v{va}")
                A(f"v_xor_b32 v1, {x}, v{va}")
                A(f"global_load_lds_dwordx4 v1, s[{sb}:{sb+1}] offset:{1024*(m&3)} nt")
            elif kind in "gu":
                va, sb = (vA1, 16) if kind == "g" else (vA2, 18)
                A(f"global_load_dwordx4 v[{slot}:{slot+3}], v{va}, s[{sb}:{sb+1}] nt")
                if m < 15:
                    A(f"v_add_u32 v{va}, s{47 if (self.stag and m % 2) else 46}, v{va}")
            elif kind in "do":
                sb = 20 if kind == "d" else 12
                A(f"global_load_dwordx4 v[{BIG+4*m}:{BIG+4*m+3}], v{vAw}, s[{sb}:{sb+1}] nt")
                if m < 15:
                    A(f"v_add_u32 v{vAw}, s45, v{vAw}")

        def process(op, i, ffn):
            kind, m = op
            slot = RING + 4*(i % 16)
            if kind == "q":
                mfma(aQ, vSEL, slot, m == 0)
                if m < 7:
                    sel(m + 1, vSEL, vXQ)
                    A("s_nop 1")
                else:
                    if ffn:
                        sel(0, vSEL, vXG)
                        A("s_nop 0")
                    else:
                        A("s_nop 4")
                    red_write([aQ], L_RQ, 9, C_Q)
                    self.stamp(4)
            elif kind in "kv" and m == 7:
                l = self.lab("Lkvf")
                if self.after_pause:
                    A(f"s_cmp_lg_u32 s43, 0\ns_cbranch_scc1 {l}")
                kvflag(C_K if kind == "k" else C_V)
                if kind == "v":
                    self.stamp(5)
                A(f"{l}:")
            elif kind == "g":
                mfma(aG, vSEL, slot, m == 0)
            elif kind == "u":
                mfma(aU, vSEL, slot, m == 0)
                if m < 15:
                    sel(m + 1, vSEL, vXG)
                    A("s_nop 1")
                else:
                    A("s_nop 4")
                    red_write([aG, aU], L_RG, 10, C_G)
                    self.stamp(6)

        def stream(ops, wfun, ffn, start=8, landed=0, hold=0, holdcnt=0):
            if 'noa' in self.abl or 'nofin' in self.abl:
                hold = 0
            for i in range(start, len(ops)):
                w = wfun(i)
                if hold and i == len(ops) - hold:
                    assert landed >= start, (landed, start)
                    self.lds_spin(C_HB, holdcnt, sleep=1)
                if hold and i >= len(ops) - hold:
                    w = max(w, hold)
                A(f"s_waitcnt vmcnt({w-1})")
                issue(ops[i], i)
                if i < self.xnpos:
                    continue
                if i == self.xnpos:
                    get_xn(ffn)
                while landed <= i - w:
                    process(ops[landed], landed, ffn); landed += 1
            return landed

        def drain(ops, landed, upto, ffn):
            n = len(ops)
            while landed < upto:
                if ops[landed][0] in "qgu":
                    A(f"s_waitcnt vmcnt({n - 1 - landed})")
                    process(ops[landed], landed, ffn)
                landed += 1
            return landed

        def final_gemv(val, first, nops, landed, wsb):
            A(f"""
            v_lshlrev_b32 v15, 5, v12
            s_mul_i32 s40, s{sTL}, {ROWP}
            s_add_u32 s40, s40, {wsb:#x}
            v_add_u32 v{vPub}, s40, v{vPub}""")
            floc = self.flocal == 'xt' and wsb == WS_BF
            if floc:
                self.get_loc()
            rd = f"ds_read_b128 v[{vXG}:{vXG+3}], v15 offset:{L_VEC}\nds_read_b128 v[{vXG+4}:{vXG+7}], v15 offset:{L_VEC+16}"
            if 'noa' not in self.abl and 'nofin' not in self.abl:
                self.lds_spin(C_FO, val, sleep=0, reads=rd)
            else:
                A(rd + "\ns_waitcnt lgkmcnt(0)")
            self.stamp(8)
            self.L.append(".p2align 3")
            sel(0, RING, vXG)
            for m in range(16):
                if m < 15:
                    sel(m + 1, RING + 4*(m + 1), vXG)
                else:
                    self.stamp(9)
                if first + m >= landed:
                    A(f"s_waitcnt vmcnt({nops - 1 - (first + m)})")
                    if m < 15:
                        A("s_nop 0")
                mfma(aQ, RING + 4*m, BIG + 4*m, m == 0)
            g = vT
            A(f"""
            s_nop 7
            v_permlane32_swap_b32 v{aQ}, v{aQ+2}
            v_permlane32_swap_b32 v{aQ+1}, v{aQ+3}
            s_nop 0
            v_add_f32_dpp v{g}, v{aQ+2}, v{aQ} row_shl:8 row_mask:0xf bank_mask:0xf bound_ctrl:1
            v_add_f32_dpp v{g+1}, v{aQ+3}, v{aQ+1} row_shl:8 row_mask:0xf bank_mask:0xf bound_ctrl:1""")
            self.tag(g); self.tag(g + 1)
            A(f"""
            s_nop 0
            v_permlane32_swap_b32 v{g}, v{g+2}
            v_permlane32_swap_b32 v{g+1}, v{g+3}
            s_mov_b64 exec, 0x00ff00ff""")
            if floc:
                l = self.lab("Lfrem")
                A(f"""
                s_cmp_lg_u32 s101, 0
                s_cbranch_scc1 {l}
                global_store_dwordx4 v{vPub}, v[{g}:{g+3}], s[26:27]
                s_branch {l}_d
                {l}:
                global_store_dwordx4 v{vPub}, v[{g}:{g+3}], s[26:27] sc1
                {l}_d:""")
            else:
                A(f"global_store_dwordx4 v{vPub}, v[{g}:{g+3}], s[26:27] {'' if (self.flocal == 'force' and wsb == WS_BF) else 'sc1'}")
            A("s_mov_b64 exec, -1")

        qops = [("q", m) for m in range(8)]
        A(f"""
        s_lshl_b32 s40, s{sG}, 24
        s_lshl_b32 s41, s{sCH}, 15
        s_add_u32 s40, s40, s41
        s_lshl_b32 s47, s{sW}, 13
        s_add_u32 s40, s40, s47
        s_add_u32 s47, s47, {L_K}
        s_add_u32 s40, s40, {(65536-4096)*256:#x}
        v_xor_b32 v1, v{vI}, v{vJ}
        v_lshlrev_b32 v1, 4, v1
        v_lshl_add_u32 v1, v{vJ}, 8, v1
        v_add_u32 v{vA1}, s40, v1
        v_lshlrev_b32 v1, 1, v{vJ}
        v_xor_b32 v1, v{vI}, v1
        v_lshlrev_b32 v1, 4, v1
        v_lshl_add_u32 v1, v{vJ}, 8, v1
        v_add_u32 v{vA2}, s40, v1""")
        ops = qops + [("k", m) for m in range(8)] + [("v", m) for m in range(8)]
        WA = self.WA
        self.after_pause = False
        landed = stream(ops, lambda i: WA[0] if i < 14 else WA[1], False)
        self.after_pause = True
        A("s_mov_b32 s43, 0")
        if self.pause and 'noa' not in self.abl:
            go = self.lab("Lgo")
            if 0 in self.gateA:
                A(f"s_cmp_eq_u32 s{sGATE}, 0\ns_cbranch_scc1 {go}")
            A(f"""
            v_mov_b32 v1, {C_GA}
            ds_read_b32 v2, v1
            s_waitcnt lgkmcnt(0)
            v_readfirstlane_b32 s{sTMP}, v2
            s_cmp_eq_u32 s{sTMP}, 4
            s_cbranch_scc1 {go}""")
            for c in self.staged:
                A(f"""
                s_waitcnt vmcnt({c})
                ds_read_b32 v2, v1
                s_waitcnt lgkmcnt(0)
                v_readfirstlane_b32 s{sTMP}, v2
                s_cmp_eq_u32 s{sTMP}, 4
                s_cbranch_scc1 {go}""")
            A(f"""
            s_waitcnt vmcnt(0)
            s_mov_b32 s43, 1""")
            assert landed >= 8
            if landed < 16:
                kvflag(C_K)
            kvflag(C_V)
            self.stamp(5)
            self.lds_spin(C_GA, 4, sleep=1)
            A(f"{go}:")
            self.stamp(6)
        ops = ops + [("o", m) for m in range(16)]
        for w3 in ([self.WAe, WA[2]] if self.WAe else [WA[2]]):
            nxt = self.lab("Lsa")
            if self.WAe and w3 == self.WAe:
                A(f"s_cmp_lt_u32 s{sX}, 2\ns_cbranch_scc0 {nxt}")
            l2 = stream(ops, lambda i: w3 if (len(WA) < 4 or i < 24 + (WA[4] if len(WA) > 4 else 8)) else WA[3], False, start=24, landed=landed, hold=self.HA, holdcnt=4)
            assert l2 >= 24
            self.stamp(7)
            final_gemv(4, 24, 40, l2, WS_BS)
            self.write_stamps(10)
            A(f"s_endpgm\n{nxt}:")
        A(f"""
        L_s_notattn:
        s_cmp_ge_u32 s{sTY}, 2
        s_cbranch_scc1 L_s_last
        s_lshl2_add_u32 s40, s{sRB}, s{sW}
        s_mul_i32 s40, s40, {64*7168}""")
        if self.stag:
            A(f"""
            s_and_b32 s41, s{sW}, 1
            s_mul_i32 s42, s41, {4*7168}
            s_add_u32 s40, s40, s42""")
        A(f"""
        v_mul_u32_u24 v1, 7168, v{vJ}
        v_add3_u32 v1, v1, v13, s40
        s_lshl_b32 s41, s{sTL}, 8
        v_add_u32 v{vA1}, s41, v1
        s_lshl_b32 s41, s{sUP}, 8
        v_add_u32 v{vA2}, s41, v1
        s_movk_i32 s46, {7168*4}""")
        if self.stag:
            A("s_lshl_b32 s42, s42, 1\ns_add_u32 s47, s46, s42\ns_sub_u32 s46, s46, s42")
        if self.wideg:
            wd = self.wideg; nt = 7168 // wd; rpi = 1024 // wd; lpr = wd // 16
            import math
            A(f"""
            s_lshl2_add_u32 s40, s{sTL}, s{sRB}
            s_mul_hi_u32 s41, s40, {-(-(1 << 32) // nt)}
            s_mul_i32 s42, s41, {nt}
            s_sub_u32 s42, s40, s42
            s_lshl2_add_u32 s41, s41, s{sW}
            s_mul_i32 s41, s41, {16*rpi*7168}
            s_mul_i32 s42, s42, {wd}
            s_add_u32 s41, s41, s42
            v_lshrrev_b32 v1, {int(math.log2(lpr))}, v0
            v_mul_u32_u24 v1, 7168, v1
            v_and_b32 v2, {lpr-1}, v0
            v_lshl_add_u32 v1, v2, 4, v1
            v_add_u32 v{vA1}, s41, v1
            v_mov_b32 v{vA2}, v{vA1}
            s_movk_i32 s46, {7168*rpi}""")
        ops = qops + [(k, m) for m in range(16) for k in "gu"] + [("d", m) for m in range(16)]
        WF = self.WF
        landed = stream(ops[:40], lambda i: WF[0] if i < 14 else WF[1], True)
        gated = self.lab("Lsfg")
        if any(self.gateF) and 'noa' not in self.abl:
            A(f"s_cmp_lg_u32 s{sGATE}, 0\ns_cbranch_scc1 {gated}")
        if 0 in self.gateF or 'noa' in self.abl:
            l2 = stream(ops, lambda i: WF[2] if (len(WF) < 4 or i < 40 + (WF[4] if len(WF) > 4 else 8)) else WF[3], True, start=40, landed=landed, hold=self.HF, holdcnt=1)
            assert l2 >= 40
            self.stamp(7)
            final_gemv(1, 40, 56, l2, WS_BF)
            self.write_stamps(10)
            A("s_endpgm")
        if any(self.gateF) and 'noa' not in self.abl:
            A(f"{gated}:")
            l2 = drain(ops[:40], landed, 40, True)
            self.lds_spin(C_GA, 1, sleep=1)
            l2 = stream(ops, lambda i: self.WFe or WF[2], True, start=40, landed=l2)
            self.stamp(7)
            final_gemv(1, 40, 56, l2, WS_BF)
            self.write_stamps(10)
            A("s_endpgm")
        A("L_s_last:")
        get_xn(False)
        drain(qops, 0, 8, False)
        A(f"s_add_u32 s{sW}, s{sW}, 4\ns_branch L_final")

    def red_publish(self, lbase, pitch, cnt, nl, addr_code, nrep, flagv=None, sleep=1, val=sT32, local=False):
        A = self.A
        t = 16
        A("v_lshlrev_b32 v10, 4, v0")
        A(addr_code)
        if local and self.warm is not None:
            self.exec_set(0x0101010101010101)
            A(f"global_load_dword v54, v11, s[26:27] {self.warm}\ns_mov_b64 exec, -1")
        self.lds_spin(cnt, 4, sleep=sleep, reads="\n".join(f"ds_read_b128 v[{t+4*k}:{t+4*k+3}], v10 offset:{lbase+pitch*k}" for k in range(4)))
        if self.earlyD == 2 and nl == 64:
            self.flag_store(nrep, flagv, val)
        elif local and self.earlyD:
            l = self.lab("Lef")
            A(f"s_cmp_lg_u32 s101, 0\ns_cbranch_scc1 {l}")
            self.flag_store(nrep, flagv, val)
            A(f"{l}:")
        if nl == 32:
            A("s_mov_b32 exec_hi, 0")
        for h in (0, 2):
            A(f"v_pk_add_f32 v[{t+h}:{t+h+1}], v[{t+h}:{t+h+1}], v[{t+4+h}:{t+5+h}]")
            A(f"v_pk_add_f32 v[{t+8+h}:{t+9+h}], v[{t+8+h}:{t+9+h}], v[{t+12+h}:{t+13+h}]")
        for h in (0, 2):
            A(f"v_pk_add_f32 v[{t+h}:{t+h+1}], v[{t+h}:{t+h+1}], v[{t+8+h}:{t+9+h}]")
        for r in range(4):
            A(f"v_add_u32 v{t+r}, {(TAGM + 1) // 2:#x}, v{t+r}")
        for r in range(4):
            self.tag(t + r)
        if local:
            rem = self.lab("Lremote"); fl = self.lab("Lpub")
            A(f"""
            s_cmp_lg_u32 s101, 0
            s_cbranch_scc1 {rem}
            global_store_dwordx4 v11, v[{t}:{t+3}], s[26:27]
            s_branch {fl if not self.earlyD else fl + '_done'}
            {rem}:
            global_store_dwordx4 v11, v[{t}:{t+3}], s[26:27] sc1
            {fl}:""")
            self.flag_store(nrep, flagv, val)
            A(f"{fl}_done:")
        else:
            A(f"global_store_dwordx4 v11, v[{t}:{t+3}], s[26:27] sc1")
            if not (self.earlyD == 2 and nl == 64):
                self.flag_store(nrep, flagv, val)

    def awave(self):
        A = self.A
        vKF, vVF, vGT, vU = 56, 184, 216, 232
        vQF, vS = 216, 16
        vI, vJ = 4, 5
        vA0, vA1 = 6, 7
        vT = 16
        x0, xr = 56, 72
        A(f"""
        s_setprio 3
        s_lshl2_add_u32 s40, s{sRB}, s{sW}
        s_lshl_b32 s40, s40, 6
        v_lshlrev_b32 v14, 5, v0
        v_add_lshl_u32 v1, v0, s40, 1
        s_lshl2_add_u32 s40, s{sRBQ}, s{sW}
        s_lshl_b32 s40, s40, 5
        v_and_b32 v15, 31, v0
        v_add_lshl_u32 v15, v15, s40, 1
        v_mov_b32 v10, 0
        v_and_b32 v2, 31, v0
        v_lshlrev_b32 v2, 2, v2
        ds_write_b32 v2, v10 offset:{L_CNT}
        s_waitcnt lgkmcnt(0)
        global_load_dwordx4 v[{xr}:{xr+3}], v14, s[4:5]
        global_load_dwordx4 v[{xr+4}:{xr+7}], v14, s[4:5] offset:16
        global_load_ushort v{xr+8}, v15, s[4:5]
        global_load_ushort v{xr+9}, v1, s[4:5]
        s_load_dword s{sT32}, s[26:27], {WS_E}""")
        if self.touch:
            tf = self.lab("Ltf"); td = self.lab("Ltd")
            A(f"""
            s_cmp_eq_u32 s{sW}, 0
            s_cbranch_scc0 {td}
            s_lshl_b32 s41, s{sTL}, 18
            s_cmp_eq_u32 s{sTY}, 0
            s_cbranch_scc0 {tf}
            s_lshl_b32 s40, s{sG}, 24
            s_add_u32 s40, s40, {(65536-4096)*256:#x}
            s_load_dword s48, s[6:7], s40
            s_load_dword s49, s[8:9], s40
            s_load_dword s50, s[12:13], s41
            s_branch {td}
            {tf}:
            s_load_dword s48, s[22:23], 0
            s_cmp_eq_u32 s{sTY}, 1
            s_cbranch_scc0 {td}
            s_mul_i32 s40, s{sRB}, {256*7168}
            s_add_u32 s42, s40, {255*7168}
            s_load_dword s49, s[16:17], s40
            s_load_dword s50, s[18:19], s40
            s_load_dword s51, s[16:17], s42
            s_load_dword s52, s[18:19], s42
            s_load_dword s53, s[20:21], s41
            {td}:""")
        A("s_barrier")
        self.stamp(1)
        if self.xt:
            nx = self.lab("Lnoxt")
            A(f"""
            s_waitcnt lgkmcnt(0)
            s_cmp_lg_u32 s{sW}, 0
            s_cbranch_scc1 {nx}
            ; wave 0 announces the die this workgroup runs on
            s_getreg_b32 s45, hwreg(HW_REG_XCC_ID, 0, 4)
            s_lshl_b32 s45, s45, 28
            s_add_u32 s41, s{sT32}, 1
            s_xor_b32 s45, s45, s41
            s_lshl_b32 s95, s{sX}, 7
            s_add_u32 s95, s95, {WS_XA:#x}
            s_lshl2_add_u32 s41, s{sY}, s95
            s_mov_b64 exec, 1
            v_mov_b32 v1, s41
            v_mov_b32 v2, s45
            global_store_dword v1, v2, s[26:27] sc1
            s_mov_b64 exec, -1
            s_waitcnt vmcnt(1)
            s_branch {nx}_ln
            {nx}:
            s_waitcnt vmcnt(0)
            {nx}_ln:""")
        else:
            A(f"s_waitcnt vmcnt(0) lgkmcnt(0)")
        self.stamp(11)
        for i in range(8):
            A(f"v_lshlrev_b32 v{x0+2*i}, 16, v{xr+i}\nv_and_b32 v{x0+2*i+1}, 0xffff0000, v{xr+i}")
        A(f"v_pk_add_f32 v[{vT}:{vT+1}], v[{x0}:{x0+1}], v[{x0+2}:{x0+3}]")
        A(f"v_pk_add_f32 v[{vT+2}:{vT+3}], v[{x0+4}:{x0+5}], v[{x0+6}:{x0+7}]")
        for i in range(4, 8, 2):
            A(f"v_pk_add_f32 v[{vT}:{vT+1}], v[{vT}:{vT+1}], v[{x0+2*i}:{x0+2*i+1}]")
            A(f"v_pk_add_f32 v[{vT+2}:{vT+3}], v[{vT+2}:{vT+3}], v[{x0+2*i+2}:{x0+2*i+3}]")
        A(f"v_pk_add_f32 v[{vT}:{vT+1}], v[{vT}:{vT+1}], v[{vT+2}:{vT+3}]")
        A(f"v_add_f32 v{vT}, v{vT}, v{vT+1}")
        self.allreduce_in_row(vT)
        self.allreduce_rows(vT, vT+1, "v_add_f32")
        A(f"v_mul_f32 v{vT}, {f2u(1.0/1024):#x}, v{vT}")
        for i in range(8):
            A(f"v_pk_add_f32 v[{x0+2*i}:{x0+2*i+1}], v[{x0+2*i}:{x0+2*i+1}], v[{vT}:{vT+1}] op_sel_hi:[1,0] neg_lo:[0,1] neg_hi:[0,1]")
        A(f"v_pk_mul_f32 v[{vT+2}:{vT+3}], v[{x0}:{x0+1}], v[{x0}:{x0+1}]")
        A(f"v_pk_mul_f32 v[{vT+4}:{vT+5}], v[{x0+2}:{x0+3}], v[{x0+2}:{x0+3}]")
        for i in range(2, 8):
            d = vT + 2 + 2*(i & 1)
            A(f"v_pk_fma_f32 v[{d}:{d+1}], v[{x0+2*i}:{x0+2*i+1}], v[{x0+2*i}:{x0+2*i+1}], v[{d}:{d+1}]")
        A(f"v_pk_add_f32 v[{vT+2}:{vT+3}], v[{vT+2}:{vT+3}], v[{vT+4}:{vT+5}]")
        A(f"v_add_f32 v{vT+2}, v{vT+2}, v{vT+3}")
        r = xr + 8
        self.bf16_round(vT, vT)
        self.allreduce_in_row(vT+2)
        A(f"""
        v_lshlrev_b32 v{r}, 16, v{r}
        v_lshlrev_b32 v{r+1}, 16, v{r+1}
        v_pk_add_f32 v[{r}:{r+1}], v[{r}:{r+1}], v[{vT}:{vT+1}] op_sel_hi:[1,0] neg_lo:[0,1] neg_hi:[0,1]""")
        self.allreduce_rows(vT+2, vT+3, "v_add_f32")
        A(f"v_mul_f32 v{vT+2}, {f2u(1.0/1024):#x}, v{vT+2}")
        self.bf16_round(vT+2, vT+2)
        A(f"v_add_f32 v{vT+2}, {f2u(1e-5):#x}, v{vT+2}")
        self.bf16_round(vT+2, vT+2)
        A(f"""
        v_sqrt_f32 v{vT+2}, v{vT+2}
        v_cvt_pk_bf16_f32 v{r+1}, v{r}, v{r+1}
        v_lshlrev_b32 v{r}, 16, v{r+1}
        v_and_b32 v{r+1}, 0xffff0000, v{r+1}""")
        self.bf16_round(vT+2, vT+2)
        A(f"""
        v_rcp_f32 v{vT+2}, v{vT+2}
        v_and_b32 v1, 3, v0
        v_lshrrev_b32 v2, 2, v0
        v_lshlrev_b32 v2, 1, v2
        v_pk_mul_f32 v[{r}:{r+1}], v[{r}:{r+1}], v[{vT+2}:{vT+3}] op_sel_hi:[1,0]
        s_lshl_b32 s40, s{sW}, 6
        v_lshl_add_u32 v10, v1, 4, s40
        v_lshl_add_u32 v11, v10, 1, v2
        v_add_u32 v10, v10, v2""")
        if self.stag:
            A(f"s_and_b32 s41, s{sW}, 1\ns_lshl_b32 s41, s41, 1\nv_xor_b32 v11, s41, v11")
        A(f"""
        v_cvt_pk_bf16_f32 v{r}, v{r}, v{r+1}
        s_lshl_b32 s40, s{sW}, 2
        v_mov_b32 v2, s40
        v_mov_b32 v1, 1
        ds_write_b16_d16_hi v11, v{r} offset:{L_XG}
        s_mov_b32 exec_hi, 0
        ds_write_b16 v10, v{r} offset:{L_XQ}
        s_mov_b64 exec, 1
        ds_write_b32 v2, v1 offset:{C_XN}
        s_mov_b64 exec, -1
        s_add_u32 s{sT32}, s{sT32}, 1
        s_and_b32 s{sT10}, s{sT32}, s44
        v_mov_b32 v3, s{sT10}""")
        self.stamp(12)
        if self.mag:
            A(f"""
            s_cmp_eq_u32 s{sW}, 1
            s_cbranch_scc0 L_magskip
            s_lshl_b32 s40, s2, 7
            s_add_u32 s40, s40, 0x300000
            v_mov_b32 v1, s40
            v_mov_b32 v2, s90
            s_mov_b64 exec, 1
            global_store_dword v1, v2, s[26:27] sc1
            v_add_u32 v1, 0x10000, v1
            global_store_dword v1, v2, s[26:27] sc1
            s_mov_b64 exec, -1
            L_magskip:""")
        if self.wtest:
            pre, mod, n = self.wtest
            A(f"s_cmp_eq_u32 s{sW}, 3\ns_cbranch_scc0 L_adone")
            A(f"s_mul_i32 s42, s2, {n*1024}\ns_add_u32 s42, s42, 0x800000\nv_lshl_add_u32 v10, v0, 4, s42")
            if pre == 's':
                A("s_add_u32 s40, s26, s42\ns_addc_u32 s41, s27, 0")
                for i in range(n*16):
                    A(f"s_load_dword s48, s[40:41], {64*i} glc")
                A("s_waitcnt lgkmcnt(0)")
            elif pre:
                for i in range(n):
                    A(f"global_load_dwordx4 v[20:23], v10, s[26:27] offset:{1024*i} {pre[1:]}")
                A("s_waitcnt vmcnt(0)")
            self.lds_spin(C_Q, 4, sleep=1)
            A("s_sleep 64")
            for i in range(n):
                A(f"global_store_dwordx4 v10, v[16:19], s[26:27] offset:{1024*i} {mod}")
        if 'noa' in self.abl:
            A("s_branch L_adone")
        if self.xt:
            pass
        elif self.local:
            A(f"""
            s_getreg_b32 s45, hwreg(HW_REG_XCC_ID, 0, 4)
            s_lshl_b32 s45, s45, 28
            s_cmp_eq_u32 s{sTY}, 0
            s_cselect_b32 s45, s45, 0
            s_xor_b32 s45, s45, s{sT32}""")
        nq = self.lab("Lnoq")
        A(f"s_cmp_eq_u32 s{sW}, 3\ns_cbranch_scc0 {nq}")
        if self.qtouch:
            A(f"""
            s_lshl3_add_u32 s40, s{sHQ}, s{sRBQ}
            s_lshl_b32 s40, s40, 9
            s_add_u32 s40, s40, {WS_BQ:#x}
            s_add_u32 s40, s26, s40
            s_addc_u32 s41, s27, 0""")
            for k in range(8):
                A(f"s_load_dword s48, s[40:41], {64*k} glc")
            A("s_waitcnt lgkmcnt(0)")
        self.red_publish(L_RQ, 512, C_Q, 32, f"""
            s_lshl3_add_u32 s41, s{sHQ}, s{sRBQ}
            s_lshl_b32 s40, s41, 9
            s_add_u32 s40, s40, {WS_BQ:#x}
            v_add_u32 v11, s40, v10
            s_lshr_b32 s40, s41, 4
            s_and_b32 s41, s41, 15
            s_lshl_b32 s40, s40, 5
            s_add_u32 s40, s40, s41
            s_lshl_b32 s40, s40, 2
            s_add_u32 s40, s40, {WS_FLA:#x}""", self.nrepA, val=(45 if (self.local and not self.forceloc) else sT32))
        self.stamp(13)
        A(f"{nq}:")
        if self.xt:
            nc = self.lab("Lnocol"); l = self.lab("Lxt"); mem = self.lab("Lxm"); lv = self.lab("Lxv")
            A(f"""
            s_cmp_lg_u32 s{sW}, 0
            s_cbranch_scc1 {nc}
            s_lshl_b32 s46, s{sX}, 10
            s_add_u32 s46, s46, {WS_XV:#x}
            s_mov_b32 s{sSPIN}, 0
            s_cmp_lg_u32 s{sY}, 0
            s_cbranch_scc1 {mem}
            s_mov_b32 s42, s45
            s_mov_b32 s43, s45
            s_mov_b32 s101, 0
            s_add_u32 s41, s95, 128
            {l}:
            s_load_dwordx16 s[{sP}:{sP+15}], s[26:27], s95 glc
            s_add_u32 s{sSPIN}, s{sSPIN}, 1
            s_cmp_gt_u32 s{sSPIN}, {SPIN_MAX}
            s_cbranch_scc1 L_end
            s_waitcnt lgkmcnt(0)""")
            pairs = [sP + 2*i for i in range(8)]
            for p in pairs:
                A(f"s_xor_b64 s[{p}:{p+1}], s[{p}:{p+1}], s[42:43]")
            for p in pairs[1:]:
                A(f"s_or_b64 s[{sP}:{sP+1}], s[{sP}:{sP+1}], s[{p}:{p+1}]")
            A(f"""
            s_or_b32 s{sP}, s{sP}, s{sP+1}
            s_and_b32 s{sP+1}, s{sP}, 0x0fffffff
            s_cbranch_scc1 {l}
            s_or_b32 s101, s101, s{sP}
            s_add_u32 s95, s95, 64
            s_cmp_lt_u32 s95, s41
            s_cbranch_scc1 {l}
            s_xor_b32 s40, s101, s{sT32}
            s_mov_b64 exec, 0xff
            v_lshl_add_u32 v1, v0, 7, s46
            v_mov_b32 v2, s40
            global_store_dword v1, v2, s[26:27] sc1
            s_branch {lv}
            {mem}:
            s_and_b32 s40, s{sY}, 7
            s_lshl_b32 s40, s40, 7
            s_add_u32 s46, s46, s40
            {mem}_l:
            s_sleep {self.xsleep}
            s_load_dword s101, s[26:27], s46 glc
            s_add_u32 s{sSPIN}, s{sSPIN}, 1
            s_cmp_gt_u32 s{sSPIN}, {SPIN_MAX}
            s_cbranch_scc1 L_end
            s_waitcnt lgkmcnt(0)
            s_xor_b32 s101, s101, s{sT32}
            s_and_b32 s40, s101, 0x0fffffff
            s_cbranch_scc1 {mem}_l
            {lv}:
            s_cmp_lg_u32 s101, 0
            s_cselect_b32 s40, 3, 1
            s_mov_b64 exec, 1
            v_mov_b32 v1, {C_LOC}
            v_mov_b32 v2, s40
            ds_write_b32 v1, v2
            s_mov_b64 exec, -1
            {nc}:""")
        A(f"""
        s_cmp_ge_u32 s{sTY}, 2
        s_cbranch_scc1 L_final
        s_cmp_ge_u32 s{sTY}, 1
        s_cbranch_scc1 L_ffn""")
        if 'stop1' in self.abl:
            self.arrive(C_GA, want_old=False); A("s_branch L_adone")
        vKF, vVF, vGT, vQF, vO = 56, 88, 120, 152, 168
        vS, U, Z = 16, 24, 28
        A(f"""
        s_lshl2_add_u32 s41, s{sG}, s{sW}
        s_lshl_b32 s40, s41, 13
        s_add_u32 s40, s40, {WS_BQ + 2048:#x}
        v_and_b32 v12, 31, v0
        v_lshrrev_b32 v13, 5, v0
        v_lshlrev_b32 v1, 4, v12
        v_lshl_add_u32 v1, v13, 12, v1
        v_add_u32 v{vA0}, s40, v1
        s_and_b32 s40, s{sCH}, {self.nrepA-1}
        s_mul_i32 s40, s40, {REPP}
        s_lshl_b32 s41, s41, 7
        s_add_u32 s40, s40, s41
        s_add_u32 s95, s40, {WS_FLA:#x}
        s_lshl_b32 s40, s{sW}, 1
        v_add_u32 v13, s40, v13
        v_mul_u32_u24 v13, {QLP}, v13
        v_lshl_add_u32 v13, v12, 3, v13
        v_and_b32 v10, 7, v0
        s_lshl_b32 s40, s{sG}, 5
        s_add_u32 s41, s40, s{sCH}
        s_mul_i32 s41, s41, {BOP}
        s_lshl_b32 s42, s{sW}, 7
        s_add_u32 s41, s41, s42
        s_add_u32 s41, s41, {WS_BO:#x}
        v_lshlrev_b32 v8, 9, v10
        v_bfe_u32 v11, v0, 3, 1
        v_lshl_add_u32 v8, v11, 6, v8
        v_lshl_add_u32 v8, v{vJ}, 4, v8
        v_add_u32 v8, s41, v8
        s_add_u32 s40, s40, s{sCH}
        s_lshl_b32 s40, s40, 7
        s_add_u32 s40, s40, {WS_BML:#x}
        v_lshl_add_u32 v9, v10, 4, s40
        v_mul_u32_u24 v12, {QLP}, v10
        v_lshl_add_u32 v12, v{vJ}, 4, v12
        s_mov_b32 s46, {f2u(128 ** -0.5):#x}
        s_mov_b32 s47, {f2u(128 ** -0.5):#x}
        s_lshl_b32 s40, s{sW}, 13
        v_xor_b32 v14, v{vI}, v{vJ}
        v_lshlrev_b32 v14, 4, v14
        v_lshl_add_u32 v14, v{vI}, 8, v14
        v_add_u32 v14, s40, v14
        v_bfe_u32 v10, v0, 2, 2
        v_lshl_add_u32 v10, v{vJ}, 2, v10
        v_and_b32 v11, 7, v10
        v_lshlrev_b32 v11, 1, v11
        v_bfe_u32 v1, v0, 1, 1
        v_xor_b32 v11, v11, v1
        v_lshlrev_b32 v11, 4, v11
        v_lshl_add_u32 v11, v10, 8, v11
        v_and_b32 v1, 1, v0
        v_lshl_add_u32 v11, v1, 3, v11
        s_add_u32 s41, s40, {L_V}
        v_add_u32 v11, s41, v11
        ; exchange area (this wave's K rows, dead once the fragments are in registers)
        v_lshl_add_u32 v15, v0, 4, s40
        s_lshl_b32 s41, s{sW}, 10
        v_lshl_add_u32 v10, v0, 4, s41""")
        self.mask(("s92", "s93"), 0xFF00FF00FF00FF00)

        def kreads():
            A(f"s_lshl_b32 s41, s{sW}, 2\ns_add_u32 s41, s41, {C_K}")
            self.lds_spin("s41", 1, sleep=1)
            for s in range(4):
                if s:
                    A(f"v_xor_b32 v2, {64*s}, v14")
                for t in range(2):
                    r = vKF + 16*t + 4*s
                    A(f"ds_read_b128 v[{r}:{r+3}], v{2 if s else 14} offset:{L_K + 4096*t}")
            self.stamp(3)

        if self.kfirst:
            kreads()
        A("s_mov_b32 s40, s95")
        if self.xt:
            self.flag_poll(16)
        elif self.forceloc:
            self.flag_poll(16)
            A("s_mov_b32 s101, 1")
        elif self.local:
            l = self.lab("Lpoll"); r = self.lab("Lretry")
            A(f"""
            s_mov_b32 s{sSPIN}, 0
            s_mov_b32 s42, s{sT32}
            s_mov_b32 s43, s{sT32}
            s_mov_b32 s4, s45
            s_mov_b32 s5, s45
            s_branch {l}
            {r}:
            s_sleep {self.psleep}
            {l}:
            s_load_dwordx16 s[{sP}:{sP+15}], s[26:27], s40 glc
            s_add_u32 s{sSPIN}, s{sSPIN}, 1
            s_cmp_gt_u32 s{sSPIN}, {SPIN_MAX}
            s_cbranch_scc1 L_end
            s_waitcnt lgkmcnt(0)""")
            for i in range(8):
                A(f"s_xor_b64 s[{sP+2*i}:{sP+2*i+1}], s[{sP+2*i}:{sP+2*i+1}], s[{'4:5' if (i & 2) == 0 else '42:43'}]")
            for step in (2, 4, 8):
                for i in range(0, 16, 2*step):
                    A(f"s_or_b64 s[{sP+i}:{sP+i+1}], s[{sP+i}:{sP+i+1}], s[{sP+i+step}:{sP+i+step+1}]")
            A(f"""
            s_or_b32 s{sP}, s{sP}, s{sP+1}
            s_and_b32 s{sP+1}, s{sP}, 0x0fffffff
            s_cbranch_scc1 {r}
            s_cmp_lg_u32 s{sP}, 0
            s_cselect_b32 s101, 0x101, 1""")
        else:
            self.flag_poll(16)
        self.stamp(2)
        if 'stop2' in self.abl:
            self.arrive(C_GA, want_old=False); A("s_branch L_adone")
        if self.warm is not None and self.warmO == 1:
            A(f"""
            s_mov_b64 exec, 0xff
            global_load_dword v46, v8, s[26:27] {self.warm}
            s_mov_b64 exec, 1
            global_load_dword v47, v9, s[26:27] {self.warm}
            s_mov_b64 exec, -1""")

        rq = self.lab("Lgq")
        A(f"s_mov_b32 s45, 0\n{rq}:")
        for n in range(8):
            A(f"global_load_dwordx4 v[{vGT+4*n}:{vGT+4*n+3}], v{vA0}, s[26:27] offset:{512*n - 2048} sc1")
        skip = self.lab("Lkvdone")
        A(f"s_cmp_lg_u32 s45, 0\ns_cbranch_scc1 {skip}\ns_mov_b32 s45, 1")
        self.gate(1, self.gateA)
        def vreads():
            A(f"s_lshl_b32 s41, s{sW}, 2\ns_add_u32 s41, s41, {C_V}")
            self.lds_spin("s41", 1, sleep=0)
            for dt in range(8):
                if dt:
                    A(f"v_xor_b32 v14, {32*dt}, v11")
                for t in range(2):
                    r = vVF + 4*dt + 2*t
                    A(f"ds_read_b64_tr_b16 v[{r}:{r+1}], v{14 if dt else 11} offset:{4096*t}")

        if not self.kfirst:
            kreads()
        if not self.vlate:
            vreads()
        A(f"""
        s_lshr_b32 s40, s{sCH}, 4
        s_lshl1_add_u32 s40, s{sG}, s40
        s_lshl_b32 s40, s40, 5
        s_and_b32 s41, s{sCH}, 15
        s_add_u32 s40, s40, s41
        s_lshl_b32 s40, s40, 2
        s_add_u32 s95, s40, {WS_FLB:#x}""")
        A(f"s_mov_b32 s{sSPIN}, 0\n{skip}:")
        self.untag([vGT+4*n for n in range(8)], vT, counted=True)
        self.tagtest(vT, rq)
        self.stamp(4)
        if 'stop3' in self.abl:
            A("s_branch L_adone")
        for step in (4, 8, 16):
            for b in range(0, 32, 2*step):
                for h in (0, 2):
                    A(f"v_pk_add_f32 v[{vGT+b+h}:{vGT+b+h+1}], v[{vGT+b+h}:{vGT+b+h+1}], v[{vGT+b+step+h}:{vGT+b+step+h+1}]")
        A(f"""
        v_cvt_pk_bf16_f32 v{vGT}, v{vGT}, v{vGT+1}
        v_cvt_pk_bf16_f32 v{vGT+1}, v{vGT+2}, v{vGT+3}
        s_mov_b32 s45, {f2u(LOG2E):#x}
        ds_write_b64 v13, v[{vGT}:{vGT+1}] offset:{L_QL}""")
        self.arrive(C_QL, want_old=False, inc=("s101" if (self.local and not self.xt) else 1))
        if self.warm is not None and self.warmO == 2:
            A(f"""
            s_mov_b64 exec, 0xff
            global_load_dword v46, v8, s[26:27] {self.warm}
            s_mov_b64 exec, 1
            global_load_dword v47, v9, s[26:27] {self.warm}
            s_mov_b64 exec, -1""")

        self.stamp(1)
        self.lds_spin(C_QL, 4, sleep=0, low8=(self.local and not self.xt),
                      reads="\n".join(f"ds_read_b128 v[{vQF+4*s}:{vQF+4*s+3}], v12 offset:{L_QL + 64*s}" for s in range(4))
                      + (f"\nds_read_b32 v54, v1 offset:{C_LOC - C_QL}" if self.xt else ""))
        if self.xt:
            self.get_loc(54)
        self.stamp(9)
        for s in range(4):
            for t in range(2):
                c = "0" if s == 0 else f"v[{vS+4*t}:{vS+4*t+3}]"
                r = vKF + 16*t + 4*s
                A(f"v_mfma_f32_16x16x32_bf16 v[{vS+4*t}:{vS+4*t+3}], v[{r}:{r+3}], v[{vQF+4*s}:{vQF+4*s+3}], {c}")
        self.early_flag('qk')
        if self.vlate:
            vreads()
        else:
            A("s_nop 7")
        for k in range(4):
            A(f"v_cndmask_b32 v{U+k}, v{vS+k}, v{vS+4+k}, s[92:93]")
        for rnd in range(2):
            for p in range(2):
                A(f"v_cvt_pk_bf16_f32 v{Z+p}, v{U+2*p}, v{U+2*p+1}")
            for p in range(2):
                A(f"v_lshlrev_b32 v{U+2*p}, 16, v{Z+p}\nv_and_b32 v{U+2*p+1}, 0xffff0000, v{Z+p}")
            if rnd == 0:
                for p in range(2):
                    A(f"v_pk_mul_f32 v[{U+2*p}:{U+2*p+1}], v[{U+2*p}:{U+2*p+1}], s[46:47]")
        vM, vL = 48, 49
        A(f"""
        v_max3_f32 v{vM}, v{U}, v{U+1}, v{U+2}
        v_max_f32 v{vM}, v{vM}, v{U+3}
        s_nop 1
        v_max_f32_dpp v{vM}, v{vM}, v{vM} row_ror:8 row_mask:0xf bank_mask:0xf""")
        self.allreduce_rows(vM, 50, "v_max_f32")
        A(f"v_mul_f32 v50, s45, v{vM}")
        for k in range(4):
            A(f"v_fma_f32 v{U+k}, v{U+k}, s45, -v50")
        for k in range(4):
            A(f"v_exp_f32 v{U+k}, v{U+k}")
        P = 32
        A(f"""
        s_nop 0
        v_cvt_pk_bf16_f32 v{P}, v{U}, v{U+1}
        v_cvt_pk_bf16_f32 v{P+1}, v{U+2}, v{U+3}
        v_pk_add_f32 v[52:53], v[{U}:{U+1}], v[{U+2}:{U+3}]
        v_mov_b32_dpp v{P+2}, v{P} row_ror:8 row_mask:0xf bank_mask:0xf
        v_mov_b32_dpp v{P+3}, v{P+1} row_ror:8 row_mask:0xf bank_mask:0xf
        v_mov_b32 v{P+4}, v{P}
        v_mov_b32 v{P+5}, v{P+1}
        v_add_f32 v{vL}, v52, v53""")
        if self.vlate:
            A("s_waitcnt lgkmcnt(0)")
        fill = [f"v_lshrrev_b32 v14, 1, v15\nv_add_f32_dpp v{vL}, v{vL}, v{vL} row_ror:8 row_mask:0xf bank_mask:0xf",
                f"v_mov_b32 v50, v{vL}\ns_lshl_b32 s40, s{sW}, 12",
                f"v_add_u32 v14, s40, v14\nv_permlane32_swap_b32 v50, v{vL}",
                f"v_add_f32 v{vL}, v{vL}, v50\nv_mov_b32 v50, v{vL}",
                f"s_nop 0",
                f"v_permlane16_swap_b32 v50, v{vL}\nv_add_f32 v{vL}, v{vL}, v50",
                f"ds_write_b64 v14, v[{vM}:{vL}] offset:{L_K + 4096}", ""]
        for dt in range(8):
            b = P + 2*(dt & 1)
            A(f"v_mfma_f32_16x16x32_bf16 v[{vO+4*dt}:{vO+4*dt+3}], v[{vVF+4*dt}:{vVF+4*dt+3}], v[{b}:{b+3}], 0")
            A(fill[dt])
        for k in range(4):
            for r in range(4):
                A(f"v_cndmask_b32 v{vO+8*k+r}, v{vO+8*k+r}, v{vO+8*k+4+r}, s[92:93]")
            A(f"ds_write_b128 v15, v[{vO+8*k}:{vO+8*k+3}] offset:{L_K + 1024*k}")
        self.arrive(C_X, want_old=False)
        A("v_lshlrev_b32 v14, 3, v0")
        self.early_flag('pv')
        self.stamp(11)
        X, ML = 56, 72
        self.lds_spin(C_X, 4, sleep=0, reads="\n".join(
            [f"ds_read_b64 v[{ML+2*w}:{ML+2*w+1}], v14 offset:{L_K + 8192*w + 4096}" for w in range(4)] +
            [f"ds_read_b128 v[{X+4*w}:{X+4*w+3}], v10 offset:{L_K + 8192*w}" for w in range(4)]))
        self.stamp(10)
        self.early_flag('xsync')
        A(f"v_max3_f32 v{vM}, v{ML}, v{ML+2}, v{ML+4}\nv_max_f32 v{vM}, v{vM}, v{ML+6}")
        for w in range(4):
            A(f"v_sub_f32 v{ML+2*w}, v{ML+2*w}, v{vM}")
        for w in range(4):
            A(f"v_mul_f32 v{ML+2*w}, s45, v{ML+2*w}")
        for w in range(4):
            A(f"v_exp_f32 v{ML+2*w}, v{ML+2*w}")
        A(f"s_nop 0\nv_mul_f32 v{vL}, v{ML}, v{ML+1}")
        for w in range(4):
            e = ML + 2*w
            for h in (0, 2):
                if w == 0:
                    A(f"v_pk_mul_f32 v[{vS+h}:{vS+h+1}], v[{X+h}:{X+h+1}], v[{e}:{e+1}] op_sel_hi:[1,0]")
                else:
                    A(f"v_pk_fma_f32 v[{vS+h}:{vS+h+1}], v[{X+4*w+h}:{X+4*w+h+1}], v[{e}:{e+1}], v[{vS+h}:{vS+h+1}] op_sel_hi:[1,0,1]")
            if w:
                A(f"v_fmac_f32 v{vL}, v{e}, v{e+1}")
        for r in range(4):
            self.tag(vS + r)
        nml = self.lab("Lnoml")

        def publish(mod):
            if 'noO' not in self.abl:
                A(f"global_store_dwordx4 v8, v[{vS}:{vS+3}], s[26:27] {mod}")
            A(f"s_cmp_lg_u32 s{sW}, 0\ns_cbranch_scc1 {nml}")
            self.tag(vM); self.tag(vL)
            A(f"""
            v_mov_b32 v50, v3
            v_mov_b32 v51, v3
            s_mov_b64 exec, 0xff
            global_store_dwordx4 v9, v[48:51], s[26:27] {mod}""")

        if self.local:
            rem = self.lab("Lremote"); fl = self.lab("Lflagb")
            A(f"s_cmp_lg_u32 s101, 0\ns_cbranch_scc1 {rem}")
            publish("")
            A(f"s_branch {fl}\n{rem}:")
            publish("sc1")
            A(f"{fl}:")
        else:
            publish("sc1")
        if self.flagpos != 'end':
            A(f"s_mov_b64 exec, -1\ns_cmp_eq_u32 s101, 0\ns_cbranch_scc1 {nml}")
        A("s_mov_b32 s40, s95")
        if 'noflagB' not in self.abl:
            self.flag_store(self.nrepB)
        A(f"{nml}:")
        self.gate(2, self.gateA)
        self.stamp(5)
        if 'stop4' in self.abl:
            A("s_branch L_adone")
        A(f"""
        s_and_b32 s40, s{sTL}, 7
        s_lshl2_add_u32 s41, s40, s{sW}
        s_lshl_b32 s41, s41, 7
        s_mul_i32 s42, s{sG}, {32*BOP}
        s_add_u32 s41, s41, s42
        s_add_u32 s41, s41, {WS_BO:#x}
        v_lshrrev_b32 v1, 3, v0
        v_mul_u32_u24 v1, {BOP}, v1
        v_and_b32 v2, 7, v0
        v_lshl_add_u32 v1, v2, 4, v1
        v_add_u32 v{vA0}, s41, v1
        v_add_u32 v13, {8*BOP}, v{vA0}
        v_add_u32 v14, {16*BOP}, v{vA0}
        v_add_u32 v15, {24*BOP}, v{vA0}
        s_lshl_b32 s41, s{sG}, 8
        s_add_u32 s40, s40, s41
        s_lshl_b32 s40, s40, 4
        s_add_u32 s40, s40, {WS_BML:#x}
        v_and_b32 v1, 31, v0
        v_lshl_add_u32 v{vA1}, v1, 7, s40
        s_lshl_b32 s40, s{sW}, 7
        v_and_b32 v2, 7, v0
        v_lshrrev_b32 v1, 3, v1
        v_lshl_add_u32 v1, v1, 2, s40
        v_lshl_add_u32 v10, v2, 4, v1
        v_lshrrev_b32 v1, 3, v0
        v_lshl_add_u32 v11, v1, 4, s40
        v_and_b32 v1, 1, v0
        v_lshl_add_u32 v1, v1, 2, v{vJ}
        v_and_b32 v2, 6, v0
        v_lshl_add_u32 v12, v1, 5, v2
        s_lshl_b32 s40, s{sW}, 3
        v_add_u32 v12, s40, v12""")
        nb = self.lab("Lnopollb")
        A(f"""
        s_cmp_ge_u32 s{sW}, 2
        s_cbranch_scc1 {nb}
        s_and_b32 s40, s{sCH}, {self.nrepB-1}
        s_mul_i32 s40, s40, {REPP}
        s_lshl1_add_u32 s41, s{sG}, s{sW}
        s_lshl_b32 s41, s41, 7
        s_add_u32 s40, s40, s41
        s_add_u32 s40, s40, {WS_FLB:#x}""")
        self.flag_poll(16)
        self.arrive(C_B1, want_old=False)
        A(f"{nb}:")
        self.lds_spin(C_B1, 2, sleep=0)
        self.stamp(6)
        rb_ = self.lab("Lgo")
        vO, vML = 56, 72
        A(f"s_mov_b32 s47, 0\n{rb_}:")
        def bloads(mod):
            A(f"global_load_dwordx4 v[{vML}:{vML+3}], v{vA1}, s[26:27] {mod}")
            for n in range(4):
                A(f"global_load_dwordx4 v[{vO+4*n}:{vO+4*n+3}], v{(vA0, 13, 14, 15)[n]}, s[26:27] {mod}")
        if self.local and self.gmod != 'sc1':
            rem = self.lab("Lremote"); fl = self.lab("Lbld")
            A(f"s_cmp_lg_u32 s101, 0\ns_cbranch_scc1 {rem}")
            bloads(self.gmod)
            A(f"s_branch {fl}\n{rem}:")
            bloads("sc1")
            A(f"{fl}:")
        else:
            bloads("sc1")
        if self.HA:
            l = self.lab("Lhb")
            A(f"s_cmp_lg_u32 s47, 0\ns_cbranch_scc1 {l}\ns_mov_b32 s47, 1")
            self.arrive(C_HB, want_old=False)
            A(f"{l}:")
        if 3 in self.gateA:
            self.gate(3, self.gateA)
            A(f"s_mov_b32 s{sGATE}, 0")
        A("s_waitcnt vmcnt(4)")
        self.untag([vML], vT + 16)
        fill = self.untag_list([vO + 4*n for n in range(4)], vT + 16, first=False)
        A(f"v_mov_b32 v{vT}, v{vML}\ns_waitcnt vmcnt(0)")
        self.allreduce_in_row(vT, "v_max_f32", fill)
        A(f"v_mov_b32 v{vT+2}, v{vT}")
        self.pad2(fill)
        A(f"""
        v_permlane16_swap_b32 v{vT+2}, v{vT}
        v_max_f32 v{vT}, v{vT}, v{vT+2}
        v_sub_f32 v{vT+4}, v{vML}, v{vT}
        v_mul_f32 v{vT+4}, s45, v{vT+4}
        v_exp_f32 v{vT+4}, v{vT+4}
        s_mov_b32 exec_hi, 0
        ds_write_b32 v10, v{vT+4} offset:{L_WT}
        s_mov_b32 exec_hi, -1
        ds_read_b128 v[{vT+8}:{vT+11}], v11 offset:{L_WT}
        v_mul_f32 v{vT+1}, v{vT+4}, v{vML+1}""")
        self.allreduce_in_row(vT + 1, "v_add_f32", fill)
        A(f"v_mov_b32 v{vT+2}, v{vT+1}")
        self.pad2(fill)
        A(f"""
        v_permlane16_swap_b32 v{vT+2}, v{vT+1}
        v_add_f32 v{vT+1}, v{vT+1}, v{vT+2}
        v_rcp_f32 v{vT+1}, v{vT+1}""")
        A("\n".join(fill))
        self.tagtest(vT + 16, rb_)
        self.stamp(7)
        A("s_waitcnt lgkmcnt(0)")
        acc = vT + 4
        for n in range(4):
            w = vT + 8 + (n & ~1)
            os_ = f"op_sel:[0,{n&1}] op_sel_hi:[1,{n&1}]" if n == 0 else f"op_sel:[0,{n&1},0] op_sel_hi:[1,{n&1},1]"
            for h in (0, 2):
                if n == 0:
                    A(f"v_pk_mul_f32 v[{acc+h}:{acc+h+1}], v[{vO+h}:{vO+h+1}], v[{w}:{w+1}] {os_}")
                else:
                    A(f"v_pk_fma_f32 v[{acc+h}:{acc+h+1}], v[{vO+4*n+h}:{vO+4*n+h+1}], v[{w}:{w+1}], v[{acc+h}:{acc+h+1}] {os_}")
        self.reduce_scatter_rows(acc)
        A(f"""
        s_nop 1
        v_add_f32_dpp v{acc}, v{acc}, v{acc} row_ror:8 row_mask:0xf bank_mask:0xf
        v_mov_b32 v1, {C_FO}
        v_mul_f32 v{acc}, v{acc}, v{vT+1}
        v_mov_b32 v2, 1
        v_cvt_pk_bf16_f32 v{acc}, v{acc}, v{acc}""")
        self.exec_set(0x00FF00FF00FF00FF)
        A(f"""
        ds_write_b16 v12, v{acc} offset:{L_VEC}
        s_mov_b64 exec, 1
        ds_add_u32 v1, v2
        s_mov_b64 exec, -1""")
        self.stamp(8)
        if 'diag' in self.abl:
            l = self.lab("Ldg")
            if 'diagx' in self.abl:
                A(f"s_getreg_b32 s41, hwreg(HW_REG_XCC_ID, 0, 4)\ns_cmp_eq_u32 s41, s{sX}")
            else:
                A("s_cmp_eq_u32 s101, 0")
            A(f"""
            s_cbranch_scc1 L_adone
            s_memrealtime s[42:43]
            s_waitcnt lgkmcnt(0)
            s_add_u32 s40, s42, 2000
            {l}:
            s_memrealtime s[42:43]
            s_waitcnt lgkmcnt(0)
            s_sub_u32 s41, s42, s40
            s_cmp_lt_i32 s41, 0
            s_cbranch_scc1 {l}""")
        A("L_adone:")
        self.write_stamps(14)
        A("s_endpgm")
        A(f"""
        L_ffn:
        s_cmp_eq_u32 s{sW}, 2
        s_cbranch_scc0 L_adone""")
        if self.localD:
            l = self.lab("Lxt")
            A(f"""
            s_getreg_b32 s45, hwreg(HW_REG_XCC_ID, 0, 4)
            s_lshl_b32 s45, s45, 28
            s_xor_b32 s42, s45, s{sT32}
            s_mov_b32 s43, s42
            s_lshl_b32 s40, s{sG}, 7
            s_add_u32 s40, s40, {WS_XT:#x}
            s_lshl2_add_u32 s41, s{sY}, s40
            s_mov_b64 exec, 1
            v_mov_b32 v1, s41
            v_mov_b32 v2, s42
            global_store_dword v1, v2, s[26:27] sc1
            s_mov_b64 exec, -1
            s_add_u32 s41, s40, 64
            s_mov_b32 s{sSPIN}, 0
            {l}:
            s_sleep 24
            s_load_dwordx16 s[{sP}:{sP+15}], s[26:27], s40 glc
            s_load_dwordx16 s[4:19], s[26:27], s41 glc
            s_add_u32 s{sSPIN}, s{sSPIN}, 1
            s_cmp_gt_u32 s{sSPIN}, {SPIN_MAX}
            s_cbranch_scc1 L_end
            s_waitcnt lgkmcnt(0)""")
            pairs = [sP + 2*i for i in range(8)] + [4 + 2*i for i in range(6)]
            for p in pairs:
                A(f"s_xor_b64 s[{p}:{p+1}], s[{p}:{p+1}], s[42:43]")
            for p in pairs[1:]:
                A(f"s_or_b64 s[{sP}:{sP+1}], s[{sP}:{sP+1}], s[{p}:{p+1}]")
            A(f"""
            s_or_b32 s101, s{sP}, s{sP+1}
            s_and_b32 s{sP}, s101, 0x0fffffff
            s_cbranch_scc1 {l}""")
        if 'noffn' in self.abl:
            A("s_branch L_adone")
        if self.dtouch:
            A(f"""
            s_lshl2_add_u32 s40, s{sTL}, s{sRB}
            s_lshl_b32 s40, s40, 10
            s_add_u32 s40, s40, {WS_BD:#x}
            s_add_u32 s40, s26, s40
            s_addc_u32 s41, s27, 0
            s_lshl2_add_u32 s42, s{sUP}, s{sRB}
            s_lshl_b32 s42, s42, 10
            s_add_u32 s42, s42, {WS_BD + 512:#x}
            s_add_u32 s42, s26, s42
            s_addc_u32 s43, s27, 0""")
            for k in range(8):
                A(f"s_load_dword s48, s[40:41], {64*k} glc\ns_load_dword s49, s[42:43], {64*k} glc")
            A("s_waitcnt lgkmcnt(0)")
        self.red_publish(L_RG, 1024, C_G, 64, f"""
            s_sub_u32 s41, s{sUP}, s{sTL}
            s_lshl2_add_u32 s40, s{sTL}, s{sRB}
            s_lshl_b32 s40, s40, 10
            s_add_u32 s40, s40, {WS_BD:#x}
            v_add_u32 v11, s40, v10
            v_lshrrev_b32 v13, 5, v0
            s_lshl_b32 s42, s41, 12
            v_mul_lo_u32 v12, s42, v13
            v_add_u32 v11, v11, v12
            s_lshl_b32 s40, s{sTL}, 5
            s_add_u32 s40, s40, s{sRB}
            s_lshl_b32 s40, s40, 2
            s_lshl_b32 s42, s41, 7
            s_add_u32 s42, s42, 16
            v_mul_lo_u32 v12, s42, v0
            v_add_u32 v12, s40, v12
            s_movk_i32 s40, {WS_FLD:#x}""", 2, 12, sleep=1, local=self.localD)
        self.gate(1, self.gateF)
        self.stamp(5)
        A(f"""
        s_lshl_b32 s40, s{sTL}, 12
        s_add_u32 s40, s40, {WS_BD:#x}
        v_add_u32 v{vA0}, s40, v10
        v_and_b32 v1, 1, v0
        v_lshl_add_u32 v1, v1, 1, v13
        v_and_b32 v2, 30, v0
        v_lshl_add_u32 v12, v1, 6, v2
        s_lshl_b32 s40, s{sTL}, 7
        s_add_u32 s40, s40, {WS_FLD:#x}""")
        self.flag_poll(8)
        self.stamp(6)
        rd = self.lab("Lgd")
        G = 56
        A(f"s_mov_b32 s47, 0\n{rd}:")
        def dloads(mod):
            for n in range(4):
                A(f"global_load_dwordx4 v[{G+4*n}:{G+4*n+3}], v{vA0}, s[26:27] offset:{1024*n} {mod}")
        if self.localD:
            rem = self.lab("Lremote"); fl = self.lab("Ldld")
            A(f"s_cmp_lg_u32 s101, 0\ns_cbranch_scc1 {rem}")
            dloads(self.gmod)
            A(f"s_branch {fl}\n{rem}:")
            dloads("sc1")
            A(f"{fl}:")
        else:
            dloads("sc1")
        if self.HF:
            l = self.lab("Lhb")
            A(f"s_cmp_lg_u32 s47, 0\ns_cbranch_scc1 {l}\ns_mov_b32 s47, 1")
            self.arrive(C_HB, want_old=False)
            A(f"{l}:")
        if 2 in self.gateF:
            self.gate(2, self.gateF)
            A(f"s_mov_b32 s{sGATE}, 0")
        self.untag([G + 4*n for n in range(4)], vT, counted=True)
        self.tagtest(vT, rd)
        self.stamp(7)
        for h in (0, 2):
            A(f"v_pk_add_f32 v[{G+h}:{G+h+1}], v[{G+h}:{G+h+1}], v[{G+4+h}:{G+5+h}]")
            A(f"v_pk_add_f32 v[{G+8+h}:{G+9+h}], v[{G+8+h}:{G+9+h}], v[{G+12+h}:{G+13+h}]")
        for h in (0, 2):
            A(f"v_pk_add_f32 v[{G+h}:{G+h+1}], v[{G+h}:{G+h+1}], v[{G+8+h}:{G+9+h}]")
        c1 = -2.0 * 0.7978845608028654 * LOG2E
        c2 = c1 * 0.044715
        A(f"""
        v_cvt_pk_bf16_f32 v{G}, v{G}, v{G+1}
        v_cvt_pk_bf16_f32 v{G+1}, v{G+2}, v{G+3}
        s_mov_b32 s46, {f2u(c2):#x}
        v_mov_b32 v{vT+4}, {f2u(c1):#x}
        v_permlane32_swap_b32 v{G}, v{G+1}
        v_lshlrev_b32 v{G+2}, 16, v{G}
        v_and_b32 v{G+3}, 0xffff0000, v{G}
        v_pk_mul_f32 v[{vT}:{vT+1}], v[{G+2}:{G+3}], v[{G+2}:{G+3}]
        v_fma_f32 v{vT}, v{vT}, s46, v{vT+4}
        v_fma_f32 v{vT+1}, v{vT+1}, s46, v{vT+4}
        v_pk_mul_f32 v[{vT}:{vT+1}], v[{vT}:{vT+1}], v[{G+2}:{G+3}]
        v_exp_f32 v{vT}, v{vT}
        v_exp_f32 v{vT+1}, v{vT+1}
        v_lshlrev_b32 v{G+4}, 16, v{G+1}
        v_add_f32 v{vT}, 1.0, v{vT}
        v_add_f32 v{vT+1}, 1.0, v{vT+1}
        v_rcp_f32 v{vT}, v{vT}
        v_rcp_f32 v{vT+1}, v{vT+1}
        v_and_b32 v{G+5}, 0xffff0000, v{G+1}
        v_pk_mul_f32 v[{G+2}:{G+3}], v[{G+2}:{G+3}], v[{vT}:{vT+1}]
        v_cvt_pk_bf16_f32 v{G}, v{G+2}, v{G+3}
        v_lshlrev_b32 v{G+2}, 16, v{G}
        v_and_b32 v{G+3}, 0xffff0000, v{G}
        v_pk_mul_f32 v[{G+2}:{G+3}], v[{G+2}:{G+3}], v[{G+4}:{G+5}]
        v_mov_b32 v1, {C_FO}
        v_cvt_pk_bf16_f32 v{G}, v{G+2}, v{G+3}
        v_mov_b32 v2, 1
        ds_write_b16 v12, v{G} offset:{L_VEC}
        ds_write_b16_d16_hi v12, v{G} offset:{L_VEC+32}
        s_mov_b64 exec, 1
        ds_write_b32 v1, v2
        s_mov_b64 exec, -1""")
        self.stamp(8)
        A("s_branch L_adone")

    def final(self):
        A = self.A
        vI, vJ, vT = 4, 5, 16
        G0, G1 = 56, 60
        A(f"""
        L_final:
        s_mov_b32 s42, s{sR}
        s_lshl_b32 s43, s42, 7
        v_lshl_add_u32 v8, v0, 1, s43
        global_load_ushort v9, v8, s[4:5]""")
        if 'nofinal' in self.abl:
            A("s_branch L_adone")
        A(f"""
        s_and_b32 s41, s{sW}, 3
        s_cmp_lt_u32 s{sW}, 4
        s_cselect_b32 s46, 0, {WS_BF - WS_BS:#x}
        s_cselect_b32 s47, {28*ROWP}, 0
        s_cselect_b32 s93, -1, 0xffff
        s_mov_b32 s92, -1
        s_mul_i32 s40, s41, {ROWP}
        s_add_u32 s40, s40, s46
        s_lshl_b32 s43, s42, 8
        s_add_u32 s40, s40, s43
        s_add_u32 s46, s40, {WS_BS:#x}
        s_add_u32 s47, s47, s46
        v_mul_u32_u24 v1, {4*ROWP}, v{vJ}
        v_lshl_add_u32 v1, v{vI}, 4, v1
        v_add_u32 v6, s46, v1
        v_add_u32 v7, {16*ROWP}, v6
        v_lshl_add_u32 v10, v{vI}, 2, v{vJ}
        v_lshlrev_b32 v10, 5, v10
        s_lshl_b32 s40, s{sW}, 2
        v_add_u32 v10, s40, v10
        v_lshlrev_b32 v11, 5, v0
        v_mov_b32 v12, {C_F1}
        v_mov_b32 v13, 1
        s_waitcnt vmcnt(0)
        v_lshlrev_b32 v9, 16, v9""")
        for r in range(4):
            A(f"v_mov_b32 v{G1+r}, v3")
        if self.flocal:
            lf = self.lab("Lfl"); ns = self.lab("Lnfl")
            A(f"""
            {'' if (self.svec or self.strig) else f's_cmp_lt_u32 s{sW}, 4'}
            {'' if (self.svec or self.strig) else f's_cbranch_scc1 {ns}'}""")
            if self.flocal == 'xt' and not self.svec:
                self.get_loc(sleep=4)
                A(f"s_cmp_lg_u32 s101, 0\ns_cbranch_scc1 {ns}")
            if self.strig:
                fw = self.lab("Lfw")
                A(f"s_cmp_ge_u32 s{sW}, 4\ns_cbranch_scc1 {fw}")
                self.lds_spin(C_TR, 1, sleep=2)
                A(f"s_branch L_fvec\n{fw}:")
            if self.svec and self.svec > 1:
                A(f"s_sleep {self.svec}")
            A(f"""
            s_mov_b32 s{sSPIN}, 0
            {lf}:
            s_sleep {self.fls}
            global_load_dwordx4 v[{G0}:{G0+3}], v6, s[26:27] {self.fmod}
            s_mov_b64 exec, s[92:93]
            global_load_dwordx4 v[{G1}:{G1+3}], v7, s[26:27] {self.fmod}
            s_mov_b64 exec, -1
            s_add_u32 s{sSPIN}, s{sSPIN}, 1
            s_cmp_gt_u32 s{sSPIN}, {SPIN_MAX}
            s_cbranch_scc1 L_end
            s_waitcnt vmcnt(0)
            v_bitop3_b32 v{vT}, v{G0}, v{G0+3}, s{sT10} bitop3:0x7e
            v_and_b32 v{vT}, s44, v{vT}
            v_cmp_eq_u32 vcc, 0, v{vT}
            s_nop 4
            s_cbranch_vccz {lf}""")
            if self.strig:
                A(f"s_mov_b64 exec, 1\nv_mov_b32 v1, {C_TR}\nds_write_b32 v1, v13\ns_mov_b64 exec, -1")
            A(f"""
            s_branch L_fvec
            {ns}:""")
        l = self.lab("Lfp"); r_ = self.lab("Lfr")
        A(f"""
        s_add_u32 s40, s26, s46
        s_addc_u32 s41, s27, 0""")
        if self.stouch:
            for k in range(8):
                for h in (64, 128, 192):
                    A(f"s_load_dword s{48+k}, s[40:41], {4*min(k, 7)*ROWP + h} glc")
        A(f"""
        s_mov_b32 s{sSPIN}, 0
        s_branch {l}
        {r_}:
        s_cmp_lg_u32 s43, 0
        s_cbranch_scc1 {l}
        s_sleep {self.fsleep}
        {l}:""")
        for k in range(7):
            A(f"s_load_dword s{48+k}, s[40:41], {4*k*ROWP} glc")
        A(f"""
        s_load_dword s55, s[26:27], s47 glc
        s_add_u32 s{sSPIN}, s{sSPIN}, 1
        s_cmp_gt_u32 s{sSPIN}, {SPIN_MAX}
        s_cbranch_scc1 L_end
        s_waitcnt lgkmcnt(0)""")
        A("s_mov_b32 s43, 0")
        for k in range(8):
            A(f"s_and_b32 s{48+k}, s{48+k}, s44\ns_cmp_eq_u32 s{48+k}, s{sT10}\ns_addc_u32 s43, s43, 0")
        A(f"s_cmp_ge_u32 s43, {self.fthr}\ns_cbranch_scc0 {r_}")
        A("L_fvec:")
        self.stamp(9)
        rg = self.lab("Lfg")
        loads = f"""
            s_or_b64 exec, s[48:49], 1
            global_load_dwordx4 v[{G0}:{G0+3}], v6, s[26:27] {self.fmod if self.flocal else 'sc1'}
            s_or_b64 exec, s[92:93], 1
            global_load_dwordx4 v[{G1}:{G1+3}], v7, s[26:27] {self.fmod if self.flocal else 'sc1'}
            s_mov_b64 exec, -1"""
        A("s_mov_b64 s[48:49], -1")
        for k in range(self.fdepth - 1):
            A(loads)
        A(f"{rg}:")
        A(loads)
        A(f"s_waitcnt vmcnt({2*(self.fdepth - 1)})")
        for i, k in enumerate((G0, G1)):
            A(f"v_bitop3_b32 v{vT+2*i}, v{k}, v{k+1}, s{sT10} bitop3:0x7e")
            A(f"v_bitop3_b32 v{vT+2*i+1}, v{k+2}, v{k+3}, s{sT10} bitop3:0x7e")
        for i in range(2):
            A(f"v_bitop3_b32 v{vT+2*i}, v{vT+2*i}, v{vT+2*i+1}, s44 bitop3:0xa8")
        R = vT + 12
        A(f"""
        v_cmp_ne_u32 s[48:49], 0, v{vT}
        v_cmp_ne_u32 s[92:93], 0, v{vT+2}
        s_add_u32 s{sSPIN}, s{sSPIN}, 1
        s_cmp_gt_u32 s{sSPIN}, {SPIN_MAX}
        s_cbranch_scc1 L_end
        s_or_b64 s[40:41], s[48:49], s[92:93]
        s_cbranch_scc1 {rg}""")
        self.stamp(10)
        for k in range(4):
            A(f"v_xor_b32 v{R+k}, s{sT10}, v{G0+k}\nv_xor_b32 v{R+4+k}, s{sT10}, v{G1+k}")
        for h in (0, 2):
            A(f"v_pk_add_f32 v[{R+h}:{R+h+1}], v[{R+h}:{R+h+1}], v[{R+4+h}:{R+5+h}]")
        self.reduce_scatter_rows(R)
        f = vT + 4
        A(f"""
        ds_write_b32 v10, v{R} offset:{L_RF}
        s_mov_b64 exec, 1
        ds_add_rtn_u32 v2, v12, v13
        s_mov_b64 exec, -1
        ds_read_b128 v[{f}:{f+3}], v11 offset:{L_RF}
        ds_read_b128 v[{f+4}:{f+7}], v11 offset:{L_RF+16}
        s_waitcnt lgkmcnt(0)
        v_readfirstlane_b32 s{sTMP}, v2
        s_cmp_eq_u32 s{sTMP}, 7
        s_cbranch_scc0 L_adone
        v_pk_add_f32 v[{f+4}:{f+5}], v[{f+4}:{f+5}], v[{f+6}:{f+7}]
        v_pk_add_f32 v[{f}:{f+1}], v[{f}:{f+1}], v[{f+2}:{f+3}]
        v_add_f32 v{f+2}, v{f+4}, v{f+5}
        v_add_f32 v{f}, v{f}, v{f+1}
        v_cvt_pk_bf16_f32 v{f}, v{f}, v{f+2}
        v_and_b32 v{f+2}, 0xffff0000, v{f}
        v_mul_f32 v{f+3}, {f2u(-LOG2E):#x}, v{f+2}
        v_exp_f32 v{f+3}, v{f+3}
        v_lshlrev_b32 v{f}, 16, v{f}
        v_add_f32 v{f+3}, 1.0, v{f+3}
        v_rcp_f32 v{f+3}, v{f+3}
        s_nop 0
        v_mul_f32 v{f+2}, v{f+2}, v{f+3}""")
        self.bf16_round(f + 2, f + 2)
        A(f"v_mul_f32 v{f}, v{f}, v{f+2}")
        self.bf16_round(f, f)
        A(f"""
        v_add_f32 v{f}, v{f}, v9
        v_cvt_pk_bf16_f32 v{f}, v{f}, v{f}
        global_store_short v8, v{f}, s[22:23] {self.outmod}""")
        A(f"""
        {'s_branch L_mag' if self.mag else ''}
        {'L_magback:' if self.mag else ''}
        s_cmp_lg_u32 s{sR}, 0
        s_cbranch_scc1 L_adone
        s_mov_b64 exec, 1
        v_mov_b32 v1, {WS_E}
        v_mov_b32 v2, s{sT32}
        global_store_dword v1, v2, s[26:27] sc1
        s_branch L_adone""")
        if self.mag:
            what, K = self.mag[:2]
            A(f"""
            L_mag:
            s_memrealtime s[90:91]
            s_sleep 64
            v_lshlrev_b32 v1, 9, v0
            v_add_u32 v1, 0x300000, v1
            global_load_dword v56, v1, s[26:27] sc1
            global_load_dword v57, v1, s[26:27] offset:128 sc1
            global_load_dword v58, v1, s[26:27] offset:256 sc1
            global_load_dword v59, v1, s[26:27] offset:384 sc1
            s_waitcnt vmcnt(0) lgkmcnt(0)
            v_sub_u32 v56, s90, v56
            v_sub_u32 v57, s90, v57
            v_sub_u32 v58, s90, v58
            v_sub_u32 v59, s90, v59
            v_cvt_f32_u32 v56, v56
            v_cvt_f32_u32 v57, v57
            v_cvt_f32_u32 v58, v58
            v_cvt_f32_u32 v59, v59
            v_max3_f32 v60, v56, v57, v58
            v_max_f32 v60, v60, v59
            v_min3_f32 v61, v56, v57, v58
            v_min_f32 v61, v61, v59""")
            self.allreduce_in_row(60, "v_max_f32"); self.allreduce_rows(60, 62, "v_max_f32")
            self.allreduce_in_row(61, "v_min_f32"); self.allreduce_rows(61, 62, "v_min_f32")
            if what == 'ev':
                A("""
                v_add_u32 v1, 0x10000, v1
                global_load_dword v56, v1, s[26:27] sc1
                global_load_dword v57, v1, s[26:27] offset:128 sc1
                global_load_dword v58, v1, s[26:27] offset:256 sc1
                global_load_dword v59, v1, s[26:27] offset:384 sc1
                s_waitcnt vmcnt(0)
                v_sub_u32 v56, s90, v56
                v_sub_u32 v57, s90, v57
                v_sub_u32 v58, s90, v58
                v_sub_u32 v59, s90, v59
                v_cvt_f32_i32 v56, v56
                v_cvt_f32_i32 v57, v57
                v_cvt_f32_i32 v58, v58
                v_cvt_f32_i32 v59, v59
                v_min3_f32 v61, v56, v57, v58
                v_min_f32 v61, v61, v59""")
                self.allreduce_in_row(61, "v_min_f32"); self.allreduce_rows(61, 62, "v_min_f32")
                A("v_sub_f32 v60, v60, v61")
            if what == 'skew':
                A("v_sub_f32 v60, v60, v61")
            elif what == 'max':
                A("v_mov_b32 v60, v61")
            A(f"""
            v_min_f32 v60, 0x44fa0000, v60
            v_cvt_u32_f32 v60, v60
            s_nop 1
            v_readfirstlane_b32 s40, v60
            s_mul_i32 s40, s40, {K}
            s_add_u32 s40, s40, s90
            L_magspin:
            s_memrealtime s[42:43]
            s_waitcnt lgkmcnt(0)
            s_sub_u32 s41, s42, s40
            s_cmp_lt_i32 s41, 0
            s_cbranch_scc1 L_magspin
            s_branch L_magback""")


class Gen(Gen0):
    def __init__(self, ldsb=None, nvo=None, **kw):
        self.ldsb, self.nvo = ldsb, nvo
        super().__init__(**kw)


if __name__ == "__main__":
    import argparse
    ap = argparse.ArgumentParser()
    ap.add_argument("-o", default="recurrent_scan__sliding_block_cached__geglu_ffn__decode.s")

    ap.add_argument("--stamps", action="store_true")
    ap.add_argument("--probe", default=None)
    ap.add_argument("--kw", default="")
    a = ap.parse_args()
    open(a.o, "w").write(Gen(stamps=a.stamps, probe=tuple(map(int, a.probe.split(','))) if a.probe else None, **eval(f'dict({a.kw})')).build())
```

```python
import sys, struct

KN = "recurrent_scan__sliding_block_cached__geglu_ffn__decode_kernel"

def f2u(x):
    return struct.unpack("<I", struct.pack("<f", x))[0]

WS_E   = 0x0
WS_FLD = 0x1000
WS_XT  = 0x3000
WS_XA  = 0x3400
WS_XV  = 0x8000
WS_BML = 0x4000
WS_BQ  = 0x10000
WS_BD  = 0x30000
ROWP   = 4352
WS_BS  = 0x50000
WS_BF  = 0x78000
WS_BO  = 0xA0000
BOP    = 4096 + 128
REPP   = 17 * 128
WS_FLA = 0x130000
WS_FLB = 0x148000
WS_ST  = 0x400000

L_RQ   = 0
L_RG   = L_RQ + 2048
L_QL   = L_RG + 4096
QLP    = 272
L_WT   = L_QL + 2304
L_VEC  = L_WT + 512
L_XQ   = L_VEC + 256
L_XG   = L_XQ + 256
L_RF   = L_XG + 512
L_CNT  = L_RF + 2048
C_Q, C_G, C_X, C_QL, C_HB, C_FO, C_GA, C_B1, C_F1 = [L_CNT + 4*i for i in range(9)]
C_LOC = L_CNT + 36
C_TR = L_CNT + 40
C_XN, C_K, C_V = L_CNT + 48, L_CNT + 64, L_CNT + 80
L_K    = 12288
L_V    = L_K + 32768
assert L_CNT + 128 <= L_K
LDS_BYTES = L_V + 32768
YF, YL = 16, 30

TAGM = 0x3FF
LOG2E = 1.4426950408889634
SPIN_MAX = 1 << 20

sX, sY, sRB, sHQ, sRBQ, sTL, sG, sCH = 28, 29, 30, 31, 32, 33, 34, 35
sT32, sT10, sSPIN, sTMP = 36, 37, 38, 39
sW = 3
sGATE = 100
sTY, sUP, sR = 97, 98, 99
sP = 48
sSTAMP = 64


HEADER = """
; 56 w_up, 64 w_down, 72 out, 80 debug, 88 ws.
;
;
;   every workgroup : a 128 x 128 tile of wq (q partials, 8 per column)
;   x odd           : kv group x>>1, keys 128*y .. +128 of the window, then a 128 x 256 tile of wo
;   x even, y < 28  : gate / up tiles (256 rows x 128 columns), then a 128 x 256 tile of w_down
;   x even, y >= 28 : final reduction of 64 output columns
; a one-hot selector carrying the vector element of each row.  Waves 0..3 do the layernorm, the hand-offs,
; the attention (running maximum per 32 keys, merged exactly) and the activations.
; bits; a reader re-reads until every tag matches and clears the tag bits before it uses a value.  The words
; other stays in that die's L2 (plain stores); otherwise it is written through (sc1).  Placement costs speed only.
"""


class Gen0:
    def __init__(self, stamps=False, prefetch=True, probe=None, abl='', xnpos=11, nrepA=4, nrepB=4, psleep=1,
                 WA=(6, 6, 5), WF=(6, 8, 8), pause='gather', fthr=6, wtest=None, fsleep=16, upx=2, layout='mix', plain='', gmod='sc1', local=False, touch=False, flagpos='end', HA=0, HF=0, vlate=False, kfirst=True, localD=False, earlyD=False, warm=None, warmO=False, qmap='grp', forceloc=False, xt=False, stag=False, sw0=(14, 14), dtouch=False, qtouch=False, strig=False, svec=False, staged=(), stouch=False, sync0=False, mag=None, ftrans=False, flocal=None, fmod='sc1', fls=4, wideg=0, widew=False, wideq=0, xsleep=10, fdepth=2, outmod='', gateA=(1, 1), gateF=(0, 0), WAe=None, WFe=None):
        self.gateA, self.gateF = gateA, gateF
        self.WAe, self.WFe = WAe, WFe
        self.nogate = gateA == (1, 1) and gateF == (0, 0)
        self.local = local
        self.fdepth = fdepth
        self.touch = touch
        self.warm = warm
        self.sw0 = sw0
        self.dtouch, self.qtouch = dtouch, qtouch
        self.strig = strig
        self.svec = svec
        self.staged = staged
        self.stouch = stouch
        self.sync0 = sync0
        self.mag = mag
        self.ftrans, self.flocal, self.fmod, self.fls = ftrans, flocal, fmod, fls
        self.wideg, self.widew, self.wideq = wideg, widew, wideq
        self.xt, self.stag, self.xsleep = xt, stag, xsleep
        if xt:
            forceloc = True
        self.qmap, self.forceloc = qmap, forceloc
        self.warmO = warmO
        self.localD, self.earlyD = localD, earlyD
        self.kfirst = kfirst
        self.flagpos, self.HA, self.HF, self.vlate = flagpos, HA, HF, vlate
        self.outmod = outmod
        assert not local or layout != 'mix'
        self.gmod = gmod
        self.layout = layout
        self.plain = plain
        self.fsleep = fsleep
        self.upx = upx
        self.wtest = wtest
        self.fthr = fthr
        self.L = []
        self.stamps = stamps
        self.prefetch = prefetch
        self.probe = probe
        self.abl = abl
        self.xnpos = xnpos
        self.nrepA, self.nrepB = nrepA, nrepB
        self.psleep = psleep
        self.relwait = False
        self.WA, self.WF = WA, WF
        self.pause = pause
        self.nlab = 0

    def A(self, s):
        for line in s.strip("\n").split("\n"):
            if line.strip():
                self.L.append("    " + line.strip() if not line.strip().endswith(":") else line.strip())

    def lab(self, p="L"):
        self.nlab += 1
        return f"{p}_{self.nlab}"

    def stamp(self, k):
        if self.mag and len(self.mag) > 2:
            if k == self.mag[3]:
                self.A(f"s_memrealtime s[88:89]")
            return
        if self.stamps == 'lite' and k not in (0, 10, 14):
            return
        if self.stamps or (self.probe and k in (0, self.probe[2])):
            self.A(f"s_memrealtime s[{sSTAMP+2*k}:{sSTAMP+2*k+1}]")

    def mask(self, reg, val):
        lo, hi = val & 0xFFFFFFFF, val >> 32
        self.A(f"s_mov_b32 {reg[0]}, {lo:#x}\ns_mov_b32 {reg[1]}, {hi:#x}")

    def exec_set(self, val):
        if val == -1:
            self.A("s_mov_b64 exec, -1")
        elif val <= 64:
            self.A(f"s_mov_b64 exec, {val}")
        elif val < (1 << 31):
            self.A(f"s_mov_b64 exec, {val:#x}")
        else:
            self.mask(("exec_lo", "exec_hi"), val)

    def arrive(self, cnt, want_old=True, inc=1):
        self.A(f"""
        s_mov_b64 exec, 1
        v_mov_b32 v1, {cnt}
        v_mov_b32 v2, {inc}""")
        if want_old:
            self.A(f"""
            ds_add_rtn_u32 v2, v1, v2
            s_waitcnt lgkmcnt(0)
            v_readfirstlane_b32 s{sTMP}, v2""")
        else:
            self.A("ds_add_u32 v1, v2")
        self.A("s_mov_b64 exec, -1")

    def lds_spin(self, cnt, val, sleep=1, reads="", low8=False):
        l = self.lab("Lspin"); d = self.lab("Lgot")
        self.A(f"""
        v_mov_b32 v1, {cnt}
        s_mov_b32 s{sSPIN}, 0
        {l}:
        ds_read_b32 v2, v1
        {reads}
        s_add_u32 s{sSPIN}, s{sSPIN}, 1
        s_cmp_gt_u32 s{sSPIN}, {SPIN_MAX}
        s_cbranch_scc1 L_end
        s_waitcnt lgkmcnt(0)
        v_readfirstlane_b32 s{sTMP}, v2""")
        if low8:
            self.A(f"s_lshr_b32 s101, s{sTMP}, 8\ns_and_b32 s{sTMP}, s{sTMP}, 0xff")
        if sleep:
            self.A(f"s_cmp_eq_u32 s{sTMP}, {val}\ns_cbranch_scc1 {d}\ns_sleep {sleep}\ns_branch {l}\n{d}:")
        else:
            self.A(f"s_cmp_eq_u32 s{sTMP}, {val}\ns_cbranch_scc0 {l}")

    def flag_poll(self, n, two=False):
        if 'nopoll' in self.abl:
            return
        l = self.lab("Lpoll"); r = self.lab("Lretry"); d = self.lab("Lflag")
        self.A(f"""
        s_mov_b32 s{sSPIN}, 0
        s_mov_b32 s42, s{sT32}
        s_mov_b32 s43, s{sT32}
        s_branch {l}
        {r}:
        s_sleep {self.psleep}
        {l}:
        s_load_dwordx{n} s[{sP}:{sP+n-1}], s[26:27], s40 glc
        {'s_load_dwordx16 s[4:19], s[26:27], s41 glc' if two else ''}
        s_add_u32 s{sSPIN}, s{sSPIN}, 1
        s_cmp_gt_u32 s{sSPIN}, {SPIN_MAX}
        s_cbranch_scc1 L_end
        s_waitcnt lgkmcnt(0)""")
        for b in ((sP, 4) if two else (sP,)):
            for i in range(0, n, 2):
                self.A(f"s_cmp_eq_u64 s[{b+i}:{b+i+1}], s[42:43]\ns_cbranch_scc0 {r}")
        self.A(f"{d}:")

    def gate(self, k, used):
        if k not in used:
            return
        if self.nogate:
            self.arrive(C_GA, want_old=False)
            return
        l = self.lab("Lgate")
        self.A(f"s_cmp_eq_u32 s{sGATE}, {k}\ns_cbranch_scc0 {l}")
        self.arrive(C_GA, want_old=False)
        self.A(f"{l}:")

    def get_loc(self, vreg=None, sleep=0):
        l = self.lab("Lloc")
        if 'noa' in self.abl:
            self.A("s_mov_b32 s101, 0")
            return
        if vreg is not None:
            self.A(f"v_readfirstlane_b32 s101, v{vreg}\ns_cmp_lg_u32 s101, 0\ns_cbranch_scc1 {l}_d")
        self.A(f"""
        v_mov_b32 v1, {C_LOC}
        s_mov_b32 s{sSPIN}, 0
        {l}:
        {f's_sleep {sleep}' if sleep else ''}
        ds_read_b32 v2, v1
        s_add_u32 s{sSPIN}, s{sSPIN}, 1
        s_cmp_gt_u32 s{sSPIN}, {SPIN_MAX}
        s_cbranch_scc1 L_end
        s_waitcnt lgkmcnt(0)
        v_readfirstlane_b32 s101, v2
        s_cmp_eq_u32 s101, 0
        s_cbranch_scc1 {l}
        {l}_d:
        s_lshr_b32 s101, s101, 1""")

    def handshake(self, entry=None):
        A = self.A
        nc = self.lab("Lnocol"); l = self.lab("Lxt"); mem = self.lab("Lxm"); lv = self.lab("Lxv")
        A(f"""
        s_cmp_lg_u32 s{sW}, 0
        s_cbranch_scc1 {nc}
        {entry + ':' if entry else ''}
        s_lshl_b32 s46, s{sX}, 10
        s_add_u32 s46, s46, {WS_XV:#x}
        s_mov_b32 s{sSPIN}, 0
        s_cmp_lg_u32 s{sY}, 0
        s_cbranch_scc1 {mem}
        s_mov_b32 s42, s45
        s_mov_b32 s43, s45
        s_mov_b32 s101, 0
        s_add_u32 s41, s95, 128
        {l}:
        s_load_dwordx16 s[{sP}:{sP+15}], s[26:27], s95 glc
        s_add_u32 s{sSPIN}, s{sSPIN}, 1
        s_cmp_gt_u32 s{sSPIN}, {SPIN_MAX}
        s_cbranch_scc1 L_end
        s_waitcnt lgkmcnt(0)""")
        pairs = [sP + 2*i for i in range(8)]
        for p in pairs:
            A(f"s_xor_b64 s[{p}:{p+1}], s[{p}:{p+1}], s[42:43]")
        for p in pairs[1:]:
            A(f"s_or_b64 s[{sP}:{sP+1}], s[{sP}:{sP+1}], s[{p}:{p+1}]")
        A(f"""
        s_or_b32 s{sP}, s{sP}, s{sP+1}
        s_and_b32 s{sP+1}, s{sP}, 0x0fffffff
        s_cbranch_scc1 {l}
        s_or_b32 s101, s101, s{sP}
        s_add_u32 s95, s95, 64
        s_cmp_lt_u32 s95, s41
        s_cbranch_scc1 {l}
        s_xor_b32 s40, s101, s{sT32}
        s_mov_b64 exec, 0xff
        v_lshl_add_u32 v1, v0, 7, s46
        v_mov_b32 v2, s40
        global_store_dword v1, v2, s[26:27] sc1
        s_branch {lv}
        {mem}:
        s_and_b32 s40, s{sY}, 7
        s_lshl_b32 s40, s40, 7
        s_add_u32 s46, s46, s40
        {mem}_l:
        s_sleep {self.xsleep}
        s_load_dword s101, s[26:27], s46 glc
        s_add_u32 s{sSPIN}, s{sSPIN}, 1
        s_cmp_gt_u32 s{sSPIN}, {SPIN_MAX}
        s_cbranch_scc1 L_end
        s_waitcnt lgkmcnt(0)
        s_xor_b32 s101, s101, s{sT32}
        s_and_b32 s40, s101, 0x0fffffff
        s_cbranch_scc1 {mem}_l
        {lv}:
        s_cmp_lg_u32 s101, 0
        s_cselect_b32 s40, 3, 1
        s_mov_b64 exec, 1
        v_mov_b32 v1, {C_LOC}
        v_mov_b32 v2, s40
        ds_write_b32 v1, v2
        s_mov_b64 exec, -1
        {nc}:""")

    def magstore(self):
        A = self.A
        if self.mag:
            ms = self.lab("Lmagskip")
            A(f"""
            s_cmp_eq_u32 s{sW}, 1
            s_cbranch_scc0 {ms}
            s_lshl_b32 s40, s2, 7
            s_add_u32 s40, s40, 0x300000
            v_mov_b32 v1, s40
            v_mov_b32 v2, s90
            s_mov_b64 exec, 1
            global_store_dword v1, v2, s[26:27] sc1
            v_add_u32 v1, 0x10000, v1
            global_store_dword v1, v2, s[26:27] sc1
            s_mov_b64 exec, -1
            {ms}:""")

    def early_flag(self, pos):
        if self.flagpos != pos:
            return
        l = self.lab("Lef")
        self.A(f"s_or_b32 s40, s101, s{sW}\ns_cbranch_scc1 {l}\ns_mov_b32 s40, s95")
        self.flag_store(self.nrepB)
        self.A(f"{l}:")

    def flag_store(self, n, vaddr=None, val=sT32):
        self.exec_set((1 << n) - 1)
        self.A(f"""
        {f'v_mul_u32_u24 v1, {REPP}, v0' if vaddr is None else ''}
        v_add_u32 v1, s40, v{1 if vaddr is None else vaddr}
        v_mov_b32 v2, s{val}
        global_store_dword v1, v2, s[26:27] sc1
        s_mov_b64 exec, -1""")

    def tagcheck(self, regs, vacc, vt):
        first = True
        for r in regs:
            if first:
                self.A(f"v_bitop3_b32 v{vacc}, v{r}, v{r+1}, s{sT10} bitop3:0x7e")
                self.A(f"v_bitop3_b32 v{vt}, v{r+2}, v{r+3}, s{sT10} bitop3:0x7e")
                self.A(f"v_or_b32 v{vacc}, v{vacc}, v{vt}")
                first = False
            else:
                self.A(f"v_bitop3_b32 v{vt}, v{r}, v{r+1}, s{sT10} bitop3:0x7e")
                self.A(f"v_bitop3_b32 v{vt+1}, v{r+2}, v{r+3}, s{sT10} bitop3:0x7e")
                self.A(f"v_or3_b32 v{vacc}, v{vacc}, v{vt}, v{vt+1}")

    def tagcheck2(self, regs, vacc, vt):
        out = []
        for i, r in enumerate(regs):
            d = vacc if i == 0 else vt + (i - 1) % 2
            self.A(f"v_bitop3_b32 v{d}, v{r}, v{r+3}, s{sT10} bitop3:0x7e")
            if i and i % 2 == 0:
                self.A(f"v_or3_b32 v{vacc}, v{vacc}, v{vt}, v{vt+1}")
        if len(regs) % 2 == 0:
            self.A(f"v_or_b32 v{vacc}, v{vacc}, v{vt}")

    def untag_list(self, regs, vacc, first=True):
        out = []
        for i, r in enumerate(regs):
            out += [f"v_xor_b32 v{r+k}, s{sT10}, v{r+k}" for k in range(4)]
            if i == 0 and first:
                out += [f"v_or3_b32 v{vacc}, v{r}, v{r+1}, v{r+2}", f"v_or_b32 v{vacc}, v{vacc}, v{r+3}"]
            else:
                out += [f"v_or3_b32 v{vacc}, v{vacc}, v{r}, v{r+1}", f"v_or3_b32 v{vacc}, v{vacc}, v{r+2}, v{r+3}"]
        return out

    def untag(self, regs, vacc, counted=False):
        ins = self.untag_list(regs, vacc)
        for i in range(len(regs)):
            if counted and i % 2 == 0:
                self.A(f"s_waitcnt vmcnt({max(0, len(regs) - 2 - i)})")
            self.A("\n".join(ins[6*i:6*i+6]))

    def pad2(self, fill):
        if len(fill) >= 2:
            self.A(fill.pop(0) + "\n" + fill.pop(0))
        else:
            self.A("s_nop 1")

    def tagtest(self, vacc, retry):
        if 'notag' in self.abl:
            return
        self.A(f"""
        v_and_b32 v{vacc}, {TAGM:#x}, v{vacc}
        v_cmp_ne_u32 vcc, 0, v{vacc}
        {'s_add_u32 s96, s96, 1' if self.stamps else ''}
        s_add_u32 s{sSPIN}, s{sSPIN}, 1
        s_cmp_gt_u32 s{sSPIN}, {SPIN_MAX}
        s_cbranch_scc1 L_end
        s_nop 1
        s_cbranch_vccnz {retry}""")

    def tag(self, r):
        self.A(f"v_bfi_b32 v{r}, s44, v3, v{r}")

    def reduce_scatter_rows(self, a):
        self.A(f"""
        s_nop 1
        v_permlane32_swap_b32 v{a}, v{a+2}
        v_permlane32_swap_b32 v{a+1}, v{a+3}
        v_add_f32 v{a}, v{a}, v{a+2}
        v_add_f32 v{a+1}, v{a+1}, v{a+3}
        s_nop 1
        v_permlane16_swap_b32 v{a}, v{a+1}
        v_add_f32 v{a}, v{a}, v{a+1}""")

    def allreduce_rows(self, a, t, op):
        self.A(f"""
        v_mov_b32 v{t}, v{a}
        s_nop 1
        v_permlane32_swap_b32 v{t}, v{a}
        {op} v{a}, v{a}, v{t}
        v_mov_b32 v{t}, v{a}
        s_nop 1
        v_permlane16_swap_b32 v{t}, v{a}
        {op} v{a}, v{a}, v{t}""")

    def allreduce_in_row(self, a, op="v_add_f32", fill=None):
        for m in ("quad_perm:[1,0,3,2]", "quad_perm:[2,3,0,1]", "row_half_mirror", "row_mirror"):
            self.pad2(fill if fill is not None else [])
            self.A(f"{op}_dpp v{a}, v{a}, v{a} {m} row_mask:0xf bank_mask:0xf")

    def bf16_round(self, d, s):
        self.A(f"v_cvt_pk_bf16_f32 v{d}, v{s}, v{s}\nv_and_b32 v{d}, 0xffff0000, v{d}")

    def build(self):
        A = self.A
        self.L.append(f"; @launch grid=(256,1,1) block=(512,1,1) lds={getattr(self, 'ldsb', None) or LDS_BYTES}")
        self.L += HEADER.strip("\n").split("\n")
        self.L.append('.amdgcn_target "amdgcn-amd-amdhsa--gfx950"')
        self.L += [".text", f".globl {KN}", ".p2align 12", ".p2align 8", f".type {KN},@function", f"{KN}:"]
        if self.sync0:
            A("""
            s_memrealtime s[40:41]
            s_waitcnt lgkmcnt(0)
            s_lshr_b32 s40, s40, 9
            s_add_u32 s40, s40, 1
            s_lshl_b32 s40, s40, 9
            L_sync0:
            s_memrealtime s[42:43]
            s_waitcnt lgkmcnt(0)
            s_sub_u32 s41, s42, s40
            s_cmp_lt_i32 s41, 0
            s_cbranch_scc1 L_sync0""")
        self.stamp(0)
        if self.mag:
            A("s_memrealtime s[90:91]")
        A(f"""
        s_cmp_ge_u32 s2, 256
        s_cbranch_scc1 L_end
        s_load_dwordx16 s[4:19], s[0:1], 0
        s_load_dwordx8 s[20:27], s[0:1], 64
        v_lshrrev_b32 v1, 6, v0
        s_and_b32 s{sX}, s2, 7
        s_lshr_b32 s{sY}, s2, 3
        v_readfirstlane_b32 s{sW}, v1""")
        if self.prefetch:
            A(f"""
            s_getpc_b64 s[46:47]
            L_pc:
            s_lshl_b32 s42, s{sY}, 9
            v_add_u32 v1, s42, v0
            v_min_u32 v1, L_codeend-L_pc-4, v1
            s_mov_b64 exec, 1
            global_load_ubyte v55, v1, s[46:47]
            s_mov_b64 exec, -1""")
        A(f"""
        v_and_b32 v0, 63, v0
""")
        if self.layout == 'mix':
            A(f"""
            s_lshr_b32 s{sHQ}, s{sY}, 3
            s_lshl2_add_u32 s{sHQ}, s{sX}, s{sHQ}
            s_and_b32 s{sRBQ}, s{sY}, 7
            s_lshr_b32 s{sG}, s{sX}, 1
            s_and_b32 s{sCH}, s{sX}, 1
            s_lshl4_add_u32 s{sCH}, s{sCH}, s{sY}
            s_lshl4_add_u32 s40, s{sX}, s{sY}
            s_mul_i32 s41, s{sX}, 14
            s_add_u32 s41, s41, s{sY}
            s_sub_u32 s41, s41, {YF}
            s_cmp_lt_u32 s{sY}, {YF}
            s_cselect_b32 s40, s40, s41
            s_cselect_b32 s{sTY}, 0, 1
            s_cmp_ge_u32 s{sY}, {YL}
            s_addc_u32 s{sTY}, s{sTY}, 0
            s_lshr_b32 s{sTL}, s40, 2
            s_and_b32 s{sRB}, s40, 3
            s_xor_b32 s{sUP}, s{sTL}, {self.upx}
            s_lshl1_add_u32 s{sR}, s{sX}, s{sY}
            s_sub_u32 s{sR}, s{sR}, {YL}""")
        else:
            if self.layout == 'odd':
                A(f"s_lshr_b32 s{sG}, s{sX}, 1\ns_and_b32 s{sTY}, s{sX}, 1\ns_xor_b32 s{sTY}, s{sTY}, 1")
            else:
                A(f"s_and_b32 s{sG}, s{sX}, 3\ns_lshr_b32 s{sTY}, s{sX}, 2")
                if self.layout == 'hi':
                    A(f"s_xor_b32 s{sTY}, s{sTY}, 1")
            A(f"""
            s_mov_b32 s{sCH}, s{sY}
            s_and_b32 s{sRB}, s{sY}, 3
            s_lshr_b32 s40, s{sY}, 2
            s_lshl3_add_u32 s{sHQ}, s{sG}, s40
            s_lshl2_add_u32 s{sRBQ}, s{sTY}, s{sRB}
            s_mul_i32 s41, s{sG}, s{sTY}
            s_sub_u32 s{sTL}, s{sHQ}, s41
            s_add_u32 s{sUP}, s40, {self.upx}
            s_cmp_ge_u32 s{sUP}, 7
            s_cselect_b32 s41, 7, 0
            s_sub_u32 s{sUP}, s{sUP}, s41
            s_sub_u32 s{sUP}, s{sUP}, s40
            s_add_u32 s{sUP}, s{sUP}, s{sTL}
            s_lshl2_add_u32 s{sR}, s{sG}, s{sRB}
            s_cmp_eq_u32 s40, 7
            s_cselect_b32 s41, s{sTY}, 0
            s_add_u32 s{sTY}, s{sTY}, s41""")
        A(f"""
""")
        if self.ftrans:
            A(f"""
            s_cmp_eq_u32 s{sTY}, 1
            s_cselect_b32 s{sTL}, s{sY}, s{sTL}
            s_cselect_b32 s{sRB}, s{sG}, s{sRB}
            s_xor_b32 s{sUP}, s{sTL}, {self.upx}""")
        A(f"""
        {f's_mov_b32 s{sHQ}, s{sY}' if self.qmap == 'rows' else ''}
        {f's_mov_b32 s{sRBQ}, s{sX}' if self.qmap == 'rows' else ''}
""")
        if not self.nogate:
            A(f"""
            s_cmp_lt_u32 s{sX}, 2
            s_cselect_b32 s40, {self.gateA[0]}, {self.gateA[1]}
            s_cselect_b32 s41, {self.gateF[0]}, {self.gateF[1]}
            s_cmp_eq_u32 s{sTY}, 0
            s_cselect_b32 s{sGATE}, s40, s41""")
        A(f"""
        s_movk_i32 s44, {TAGM:#x}
        v_and_b32 v4, 15, v0
        v_lshrrev_b32 v5, 4, v0""")
        if self.stamps or self.probe or self.mag:
            A(f"s_mov_b32 s96, 0\ns_mov_b32 s94, s{sW}")
        if self.probe:
            A(f"s_waitcnt lgkmcnt(0)\ns_mov_b32 s{sSTAMP+2*self.probe[2]}, s{sSTAMP}")
        A(f"""
        s_cmp_lt_u32 s{sW}, 4
        s_cbranch_scc1 L_awave""")
        L0 = self.L
        self.L = []
        self.swave()
        cut = self.L.index("L_sdispatch:")
        shead, stail = self.L[:cut], self.L[cut:]
        self.L = L0 + shead
        A("s_branch L_sdispatch\nL_awave:")
        self.awave()
        self.L += stail
        self.final()
        A("L_end:")
        A("s_endpgm")
        self.L.append("L_codeend:")
        nv = getattr(self, 'nvo', None) or 200
        self.L += ['.section .rodata,"a"', ".p2align 6", f".amdhsa_kernel {KN}",
                   f"  .amdhsa_next_free_vgpr {nv}", "  .amdhsa_next_free_sgpr 102", f"  .amdhsa_accum_offset {nv}",
                   "  .amdhsa_group_segment_fixed_size 0", "  .amdhsa_kernarg_size 96", "  .amdhsa_user_sgpr_count 2",
                   "  .amdhsa_user_sgpr_kernarg_segment_ptr 1", "  .amdhsa_system_sgpr_workgroup_id_x 1",
                   "  .amdhsa_float_denorm_mode_32 3", ".end_amdhsa_kernel"]
        return "\n".join(self.L) + "\n"

    def write_stamps(self, n):
        if self.mag and len(self.mag) > 2:
            self.stamp(n)
            d = self.lab("Lmg")
            self.A(f"""
            s_waitcnt lgkmcnt(0)
            s_cmp_eq_u32 s94, {self.mag[2]}
            s_cbranch_scc0 {d}
            s_cmp_eq_u32 s{sTY}, {self.mag[4]}
            s_cbranch_scc0 {d}
            s_lshl_b32 s40, s2, 7
            s_add_u32 s40, s40, 0x310000
            s_mov_b64 exec, 1
            v_mov_b32 v1, s40
            v_mov_b32 v2, s88
            global_store_dword v1, v2, s[26:27] sc1
            {d}:""")
            return
        if self.probe:
            wg, wave, k = self.probe[:3]
            ty = self.probe[3] if len(self.probe) > 3 else None
            self.stamp(n)
            d = self.lab("Lprobe_done"); l = self.lab("Lprobe")
            self.A(f"""
            s_waitcnt lgkmcnt(0)
            s_getreg_b32 s41, hwreg(HW_REG_XCC_ID, 0, 4)
            {f's_cmp_eq_u32 s41, {-wg-100}' if wg <= -100 else f"s_cmp_eq_u32 s2, {wg if wg >= 0 else 's2'}"}
            s_cbranch_scc0 {d}
            s_cmp_eq_u32 s94, {wave}
            s_cbranch_scc0 {d}
            s_cmp_eq_u32 s{sTY}, {ty if ty is not None else f's{sTY}'}
            s_cbranch_scc0 {d}
            s_add_u32 s40, s{sSTAMP+2*k}, 4000
            {l}:
            s_memrealtime s[42:43]
            s_waitcnt lgkmcnt(0)
            s_sub_u32 s41, s42, s40
            s_cmp_lt_i32 s41, 0
            s_cbranch_scc1 {l}
            {d}:""")
            return
        if not self.stamps:
            return
        self.stamp(n)
        A = self.A
        A(f"""
        s_waitcnt lgkmcnt(0)
        s_mov_b64 exec, -1
        s_lshl3_add_u32 s40, s2, s94
        s_lshl_b32 s40, s40, 6
        s_add_u32 s40, s40, {WS_ST:#x}
        v_mov_b32 v1, 0""")
        for k in range(n + 1):
            A(f"v_writelane_b32 v1, s{sSTAMP+2*k}, {k}")
        A(f"""
        s_getreg_b32 s41, hwreg(HW_REG_XCC_ID)
        s_and_b32 s41, s41, 0xf
        s_lshl4_add_u32 s41, s96, s41
        v_writelane_b32 v1, s41, 15
        v_lshl_add_u32 v2, v0, 2, s40
        s_mov_b64 exec, 0xffff
        global_store_dword v2, v1, s[26:27]""")

    def swave(self):
        A = self.A
        vI, vJ = 4, 5
        vAq, vA1, vA2, vA3, vAw, vRed, vPub = 6, 7, 8, 9, 10, 11, 14
        vPS, vXQ, vXG, vSEL, aQ, aG, aU, vT = 16, 24, 28, 36, 40, 44, 48, 52
        RING, BIG = 56, 120
        A(f"""
        L_swave:
        s_sub_u32 s{sW}, s{sW}, 4
        s_lshl2_add_u32 s40, s{sRBQ}, s{sW}
        s_lshl_b32 s40, s40, 18
        s_lshl_b32 s41, s{sHQ}, 8
        s_add_u32 s40, s40, s41
        v_lshlrev_b32 v13, 4, v{vI}
        v_lshl_add_u32 v{vAq}, v{vJ}, 13, v13
        v_add_u32 v{vAq}, s40, v{vAq}
        s_mov_b32 s45, 0x8000""")
        if self.wideq:
            A(f"""
            s_lshl2_add_u32 s40, s2, s{sW}
            s_lshl_b32 s40, s40, 13
            v_lshl_add_u32 v{vAq}, v0, 4, s40
            s_movk_i32 s45, 0x400""")
        A("s_waitcnt lgkmcnt(0)")
        for m in range(8):
            A(f"global_load_dwordx4 v[{RING+4*m}:{RING+4*m+3}], v{vAq}, s[10:11] nt")
            if m < 7:
                A(f"v_add_u32 v{vAq}, s45, v{vAq}")
        A(f"s_load_dword s{sT32}, s[26:27], {WS_E}")
        self.stamp(1)
        A(f"""
        ; wo / down: rows tile*128 + 8*m + (l>>3), columns cb*256 + sw*64 + 8*(l&7)
        v_lshrrev_b32 v12, 3, v0
        v_and_b32 v1, 7, v0
        v_lshlrev_b32 v2, 4, v1
        v_lshl_add_u32 v{vAw}, v12, 11, v2
        s_lshl2_add_u32 s42, s{sRB}, s{sW}
        s_lshl_b32 s40, s42, 7
        s_lshl_b32 s41, s{sTL}, 18
        s_add_u32 s40, s40, s41
        v_add_u32 v{vAw}, s40, v{vAw}
        s_movk_i32 s45, 0x4000""")
        if self.widew:
            A(f"""
            s_lshl_b32 s40, s{sW}, 16
            s_add_u32 s41, s41, s40
            s_lshl_b32 s40, s{sRB}, 9
            s_add_u32 s41, s41, s40
            v_lshrrev_b32 v2, 5, v0
            v_lshlrev_b32 v2, 11, v2
            v_and_b32 v{vAw}, 31, v0
            v_lshl_add_u32 v{vAw}, v{vAw}, 4, v2
            v_add_u32 v{vAw}, s41, v{vAw}
            s_movk_i32 s45, 0x1000""")
        A(f"""
        v_lshl_add_u32 v1, v1, 1, v{vJ}
        s_lshl_b32 s40, s42, 8
        v_lshl_add_u32 v{vPub}, v1, 4, s40
        ; LDS offset of this lane's partial granule: (2*(l&15) + J)*16
        v_lshl_add_u32 v{vRed}, v{vI}, 1, v{vJ}
        v_lshlrev_b32 v{vRed}, 4, v{vRed}
        s_mov_b32 s40, 0xaaaaaaaa
        s_mov_b32 s41, 0xaaaaaaaa
        v_mov_b32 v1, 0x0c0c0100
        v_mov_b32 v2, 0x01000c0c
        v_cndmask_b32 v1, v1, v2, s[40:41]
        v_mov_b32 v2, 0x0c0c0302
        v_mov_b32 v3, 0x03020c0c
        v_cndmask_b32 v2, v2, v3, s[40:41]
        v_mov_b32 v3, 0x0c0c0c0c""")
        for d in range(4):
            m = 0x03030303 << (2*d)
            A(f"""
            s_mov_b32 s40, {m:#x}
            s_mov_b32 s41, {m:#x}
            v_cndmask_b32 v{vPS+d}, v3, v1, s[40:41]
            v_cndmask_b32 v{vPS+4+d}, v3, v2, s[40:41]""")
        A(f"""
        s_barrier
        s_waitcnt lgkmcnt(0)
        s_add_u32 s{sT32}, s{sT32}, 1
        s_and_b32 s{sT10}, s{sT32}, s44
        v_mov_b32 v3, s{sT10}
        s_cmp_ge_u32 s{sTY}, 1
        s_cbranch_scc1 L_s_notattn
        L_sdispatch:""")

        def sel(m, dst, src):
            for d in range(4):
                A(f"v_perm_b32 v{dst+d}, v{src+(m>>1)}, v{src+(m>>1)}, v{vPS+4*(m&1)+d}")

        def mfma(acc, s, w, first):
            c = "0" if first else f"v[{acc}:{acc+3}]"
            A(f"v_mfma_f32_16x16x32_bf16 v[{acc}:{acc+3}], v[{s}:{s+3}], v[{w}:{w+3}], {c}")

        def get_xn(ffn):
            A(f"s_lshl_b32 s41, s{sW}, 2\ns_add_u32 s41, s41, {C_XN}")
            self.lds_spin("s41", 1, sleep=0)
            A(f"""
            s_lshl_b32 s40, s{sW}, 6
            v_lshl_add_u32 v2, v{vJ}, 4, s40
            ds_read_b128 v[{vXQ}:{vXQ+3}], v2 offset:{L_XQ}""")
            if ffn:
                A(f"""
                v_lshlrev_b32 v2, 1, v2
                ds_read_b128 v[{vXG}:{vXG+3}], v2 offset:{L_XG}
                ds_read_b128 v[{vXG+4}:{vXG+7}], v2 offset:{L_XG+16}""")
            A("s_waitcnt lgkmcnt(0)")
            self.stamp(3)
            sel(0, vSEL, vXQ)
            A("s_nop 1")

        def red_write(accs, lbase, shift, cnt):
            A(f"s_lshl_b32 s40, s{sW}, {shift}\nv_add_u32 v1, s40, v{vRed}\ns_mov_b32 exec_hi, 0")
            for i, a in enumerate(accs):
                A(f"ds_write_b128 v1, v[{a}:{a+3}] offset:{lbase + 512*i}")
            self.arrive(cnt, want_old=False)

        def kvflag(c):
            A(f"""
            s_lshl_b32 s40, s{sW}, 2
            s_mov_b64 exec, 1
            v_mov_b32 v1, s40
            v_mov_b32 v2, 1
            ds_write_b32 v1, v2 offset:{c}
            s_mov_b64 exec, -1""")

        def issue(op, i):
            kind, m = op
            slot = RING + 4*(i % 16)
            if kind in "kv":
                va, sb, x = (vA1, 6, 64*(m & 3)) if kind == "k" else (vA2, 8, 128*(m & 1))
                if m % 4 == 0:
                    if i > 8:
                        A(f"s_add_u32 s47, s47, {4096 if m == 4 else L_V - L_K - 4096}")
                    A("s_mov_b32 m0, s47")
                    if m == 4:
                        A(f"v_add_u32 v{va}, 4096, v{va}")
                A(f"v_xor_b32 v1, {x}, v{va}")
                A(f"global_load_lds_dwordx4 v1, s[{sb}:{sb+1}] offset:{1024*(m&3)} nt")
            elif kind in "gu":
                va, sb = (vA1, 16) if kind == "g" else (vA2, 18)
                A(f"global_load_dwordx4 v[{slot}:{slot+3}], v{va}, s[{sb}:{sb+1}] nt")
                if m < 15:
                    A(f"v_add_u32 v{va}, s{47 if (self.stag and m % 2) else 46}, v{va}")
            elif kind in "do":
                sb = 20 if kind == "d" else 12
                A(f"global_load_dwordx4 v[{BIG+4*m}:{BIG+4*m+3}], v{vAw}, s[{sb}:{sb+1}] nt")
                if m < 15:
                    A(f"v_add_u32 v{vAw}, s45, v{vAw}")

        def process(op, i, ffn):
            kind, m = op
            slot = RING + 4*(i % 16)
            if kind == "q":
                mfma(aQ, vSEL, slot, m == 0)
                if m < 7:
                    sel(m + 1, vSEL, vXQ)
                    A("s_nop 1")
                else:
                    if ffn:
                        sel(0, vSEL, vXG)
                        A("s_nop 0")
                    else:
                        A("s_nop 4")
                    red_write([aQ], L_RQ, 9, C_Q)
                    self.stamp(4)
            elif kind in "kv" and m == 7:
                l = self.lab("Lkvf")
                if self.after_pause:
                    A(f"s_cmp_lg_u32 s43, 0\ns_cbranch_scc1 {l}")
                kvflag(C_K if kind == "k" else C_V)
                if kind == "v":
                    self.stamp(5)
                A(f"{l}:")
            elif kind == "g":
                mfma(aG, vSEL, slot, m == 0)
            elif kind == "u":
                mfma(aU, vSEL, slot, m == 0)
                if m < 15:
                    sel(m + 1, vSEL, vXG)
                    A("s_nop 1")
                else:
                    A("s_nop 4")
                    red_write([aG, aU], L_RG, 10, C_G)
                    self.stamp(6)

        def stream(ops, wfun, ffn, start=8, landed=0, hold=0, holdcnt=0):
            if 'noa' in self.abl or 'nofin' in self.abl:
                hold = 0
            for i in range(start, len(ops)):
                w = wfun(i)
                if hold and i == len(ops) - hold:
                    assert landed >= start, (landed, start)
                    self.lds_spin(C_HB, holdcnt, sleep=1)
                if hold and i >= len(ops) - hold:
                    w = max(w, hold)
                A(f"s_waitcnt vmcnt({w-1})")
                issue(ops[i], i)
                if i < self.xnpos:
                    continue
                if i == self.xnpos:
                    get_xn(ffn)
                while landed <= i - w:
                    process(ops[landed], landed, ffn); landed += 1
            return landed

        def drain(ops, landed, upto, ffn):
            n = len(ops)
            while landed < upto:
                if ops[landed][0] in "qgu":
                    A(f"s_waitcnt vmcnt({n - 1 - landed})")
                    process(ops[landed], landed, ffn)
                landed += 1
            return landed

        def final_gemv(val, first, nops, landed, wsb):
            A(f"""
            v_lshlrev_b32 v15, 5, v12
            s_mul_i32 s40, s{sTL}, {ROWP}
            s_add_u32 s40, s40, {wsb:#x}
            v_add_u32 v{vPub}, s40, v{vPub}""")
            floc = self.flocal == 'xt' and wsb == WS_BF
            if floc:
                self.get_loc()
            rd = f"ds_read_b128 v[{vXG}:{vXG+3}], v15 offset:{L_VEC}\nds_read_b128 v[{vXG+4}:{vXG+7}], v15 offset:{L_VEC+16}"
            if 'noa' not in self.abl and 'nofin' not in self.abl:
                self.lds_spin(C_FO, val, sleep=0, reads=rd)
            else:
                A(rd + "\ns_waitcnt lgkmcnt(0)")
            self.stamp(8)
            self.L.append(".p2align 3")
            sel(0, RING, vXG)
            for m in range(16):
                if m < 15:
                    sel(m + 1, RING + 4*(m + 1), vXG)
                else:
                    self.stamp(9)
                if first + m >= landed:
                    A(f"s_waitcnt vmcnt({nops - 1 - (first + m)})")
                    if m < 15:
                        A("s_nop 0")
                mfma(aQ, RING + 4*m, BIG + 4*m, m == 0)
            g = vT
            A(f"""
            s_nop 7
            v_permlane32_swap_b32 v{aQ}, v{aQ+2}
            v_permlane32_swap_b32 v{aQ+1}, v{aQ+3}
            s_nop 0
            v_add_f32_dpp v{g}, v{aQ+2}, v{aQ} row_shl:8 row_mask:0xf bank_mask:0xf bound_ctrl:1
            v_add_f32_dpp v{g+1}, v{aQ+3}, v{aQ+1} row_shl:8 row_mask:0xf bank_mask:0xf bound_ctrl:1""")
            self.tag(g); self.tag(g + 1)
            A(f"""
            s_nop 0
            v_permlane32_swap_b32 v{g}, v{g+2}
            v_permlane32_swap_b32 v{g+1}, v{g+3}
            s_mov_b64 exec, 0x00ff00ff""")
            if floc:
                l = self.lab("Lfrem")
                A(f"""
                s_cmp_lg_u32 s101, 0
                s_cbranch_scc1 {l}
                global_store_dwordx4 v{vPub}, v[{g}:{g+3}], s[26:27]
                s_branch {l}_d
                {l}:
                global_store_dwordx4 v{vPub}, v[{g}:{g+3}], s[26:27] sc1
                {l}_d:""")
            else:
                A(f"global_store_dwordx4 v{vPub}, v[{g}:{g+3}], s[26:27] {'' if (self.flocal == 'force' and wsb == WS_BF) else 'sc1'}")
            A("s_mov_b64 exec, -1")

        qops = [("q", m) for m in range(8)]
        A(f"""
        s_lshl_b32 s40, s{sG}, 24
        s_lshl_b32 s41, s{sCH}, 15
        s_add_u32 s40, s40, s41
        s_lshl_b32 s47, s{sW}, 13
        s_add_u32 s40, s40, s47
        s_add_u32 s47, s47, {L_K}
        s_add_u32 s40, s40, {(65536-4096)*256:#x}
        v_xor_b32 v1, v{vI}, v{vJ}
        v_lshlrev_b32 v1, 4, v1
        v_lshl_add_u32 v1, v{vJ}, 8, v1
        v_add_u32 v{vA1}, s40, v1
        v_lshlrev_b32 v1, 1, v{vJ}
        v_xor_b32 v1, v{vI}, v1
        v_lshlrev_b32 v1, 4, v1
        v_lshl_add_u32 v1, v{vJ}, 8, v1
        v_add_u32 v{vA2}, s40, v1""")
        ops = qops + [("k", m) for m in range(8)] + [("v", m) for m in range(8)]
        WA = self.WA
        self.after_pause = False
        landed = stream(ops, lambda i: WA[0] if i < self.sw0[0] else WA[1], False)
        self.after_pause = True
        A("s_mov_b32 s43, 0")
        if self.pause and 'noa' not in self.abl:
            go = self.lab("Lgo")
            if 0 in self.gateA:
                A(f"s_cmp_eq_u32 s{sGATE}, 0\ns_cbranch_scc1 {go}")
            A(f"""
            v_mov_b32 v1, {C_GA}
            ds_read_b32 v2, v1
            s_waitcnt lgkmcnt(0)
            v_readfirstlane_b32 s{sTMP}, v2
            s_cmp_eq_u32 s{sTMP}, 4
            s_cbranch_scc1 {go}""")
            for c in self.staged:
                A(f"""
                s_waitcnt vmcnt({c})
                ds_read_b32 v2, v1
                s_waitcnt lgkmcnt(0)
                v_readfirstlane_b32 s{sTMP}, v2
                s_cmp_eq_u32 s{sTMP}, 4
                s_cbranch_scc1 {go}""")
            A(f"""
            s_waitcnt vmcnt(0)
            s_mov_b32 s43, 1""")
            assert landed >= 8
            if landed < 16:
                kvflag(C_K)
            kvflag(C_V)
            self.stamp(5)
            self.lds_spin(C_GA, 4, sleep=1)
            A(f"{go}:")
            self.stamp(6)
        ops = ops + [("o", m) for m in range(16)]
        for w3 in ([self.WAe, WA[2]] if self.WAe else [WA[2]]):
            nxt = self.lab("Lsa")
            if self.WAe and w3 == self.WAe:
                A(f"s_cmp_lt_u32 s{sX}, 2\ns_cbranch_scc0 {nxt}")
            l2 = stream(ops, lambda i: w3 if (len(WA) < 4 or i < 24 + (WA[4] if len(WA) > 4 else 8)) else WA[3], False, start=24, landed=landed, hold=self.HA, holdcnt=4)
            assert l2 >= 24
            self.stamp(7)
            final_gemv(4, 24, 40, l2, WS_BS)
            self.write_stamps(10)
            A(f"s_endpgm\n{nxt}:")
        A(f"""
        L_s_notattn:
        s_cmp_ge_u32 s{sTY}, 2
        s_cbranch_scc1 L_s_last
        s_lshl2_add_u32 s40, s{sRB}, s{sW}
        s_mul_i32 s40, s40, {64*7168}""")
        if self.stag:
            A(f"""
            s_and_b32 s41, s{sW}, 1
            s_mul_i32 s42, s41, {4*7168}
            s_add_u32 s40, s40, s42""")
        A(f"""
        v_mul_u32_u24 v1, 7168, v{vJ}
        v_add3_u32 v1, v1, v13, s40
        s_lshl_b32 s41, s{sTL}, 8
        v_add_u32 v{vA1}, s41, v1
        s_lshl_b32 s41, s{sUP}, 8
        v_add_u32 v{vA2}, s41, v1
        s_movk_i32 s46, {7168*4}""")
        if self.stag:
            A("s_lshl_b32 s42, s42, 1\ns_add_u32 s47, s46, s42\ns_sub_u32 s46, s46, s42")
        if self.wideg:
            wd = self.wideg; nt = 7168 // wd; rpi = 1024 // wd; lpr = wd // 16
            import math
            A(f"""
            s_lshl2_add_u32 s40, s{sTL}, s{sRB}
            s_mul_hi_u32 s41, s40, {-(-(1 << 32) // nt)}
            s_mul_i32 s42, s41, {nt}
            s_sub_u32 s42, s40, s42
            s_lshl2_add_u32 s41, s41, s{sW}
            s_mul_i32 s41, s41, {16*rpi*7168}
            s_mul_i32 s42, s42, {wd}
            s_add_u32 s41, s41, s42
            v_lshrrev_b32 v1, {int(math.log2(lpr))}, v0
            v_mul_u32_u24 v1, 7168, v1
            v_and_b32 v2, {lpr-1}, v0
            v_lshl_add_u32 v1, v2, 4, v1
            v_add_u32 v{vA1}, s41, v1
            v_mov_b32 v{vA2}, v{vA1}
            s_movk_i32 s46, {7168*rpi}""")
        ops = qops + [(k, m) for m in range(16) for k in "gu"] + [("d", m) for m in range(16)]
        WF = self.WF
        landed = stream(ops[:40], lambda i: WF[0] if i < self.sw0[1] else WF[1], True)
        gated = self.lab("Lsfg")
        if any(self.gateF) and 'noa' not in self.abl:
            A(f"s_cmp_lg_u32 s{sGATE}, 0\ns_cbranch_scc1 {gated}")
        if 0 in self.gateF or 'noa' in self.abl:
            l2 = stream(ops, lambda i: WF[2] if (len(WF) < 4 or i < 40 + (WF[4] if len(WF) > 4 else 8)) else WF[3], True, start=40, landed=landed, hold=self.HF, holdcnt=1)
            assert l2 >= 40
            self.stamp(7)
            final_gemv(1, 40, 56, l2, WS_BF)
            self.write_stamps(10)
            A("s_endpgm")
        if any(self.gateF) and 'noa' not in self.abl:
            A(f"{gated}:")
            l2 = drain(ops[:40], landed, 40, True)
            self.lds_spin(C_GA, 1, sleep=1)
            l2 = stream(ops, lambda i: self.WFe or WF[2], True, start=40, landed=l2)
            self.stamp(7)
            final_gemv(1, 40, 56, l2, WS_BF)
            self.write_stamps(10)
            A("s_endpgm")
        A("L_s_last:")
        get_xn(False)
        drain(qops, 0, 8, False)
        A(f"s_add_u32 s{sW}, s{sW}, 4\ns_branch L_final")

    def red_publish(self, lbase, pitch, cnt, nl, addr_code, nrep, flagv=None, sleep=1, val=sT32, local=False):
        A = self.A
        t = 16
        A("v_lshlrev_b32 v10, 4, v0")
        A(addr_code)
        if local and self.warm is not None:
            self.exec_set(0x0101010101010101)
            A(f"global_load_dword v54, v11, s[26:27] {self.warm}\ns_mov_b64 exec, -1")
        self.lds_spin(cnt, 4, sleep=sleep, reads="\n".join(f"ds_read_b128 v[{t+4*k}:{t+4*k+3}], v10 offset:{lbase+pitch*k}" for k in range(4)))
        if self.earlyD == 2 and nl == 64:
            self.flag_store(nrep, flagv, val)
        elif local and self.earlyD:
            l = self.lab("Lef")
            A(f"s_cmp_lg_u32 s101, 0\ns_cbranch_scc1 {l}")
            self.flag_store(nrep, flagv, val)
            A(f"{l}:")
        if nl == 32:
            A("s_mov_b32 exec_hi, 0")
        for h in (0, 2):
            A(f"v_pk_add_f32 v[{t+h}:{t+h+1}], v[{t+h}:{t+h+1}], v[{t+4+h}:{t+5+h}]")
            A(f"v_pk_add_f32 v[{t+8+h}:{t+9+h}], v[{t+8+h}:{t+9+h}], v[{t+12+h}:{t+13+h}]")
        for h in (0, 2):
            A(f"v_pk_add_f32 v[{t+h}:{t+h+1}], v[{t+h}:{t+h+1}], v[{t+8+h}:{t+9+h}]")
        for r in range(4):
            A(f"v_add_u32 v{t+r}, {(TAGM + 1) // 2:#x}, v{t+r}")
        for r in range(4):
            self.tag(t + r)
        if local:
            rem = self.lab("Lremote"); fl = self.lab("Lpub")
            A(f"""
            s_cmp_lg_u32 s101, 0
            s_cbranch_scc1 {rem}
            global_store_dwordx4 v11, v[{t}:{t+3}], s[26:27]
            s_branch {fl if not self.earlyD else fl + '_done'}
            {rem}:
            global_store_dwordx4 v11, v[{t}:{t+3}], s[26:27] sc1
            {fl}:""")
            self.flag_store(nrep, flagv, val)
            A(f"{fl}_done:")
        else:
            A(f"global_store_dwordx4 v11, v[{t}:{t+3}], s[26:27] sc1")
            if not (self.earlyD == 2 and nl == 64):
                self.flag_store(nrep, flagv, val)

    def awave(self):
        A = self.A
        vKF, vVF, vGT, vU = 56, 184, 216, 232
        vQF, vS = 216, 16
        vI, vJ = 4, 5
        vA0, vA1 = 6, 7
        vT = 16
        x0, xr = 56, 72
        A(f"""
        s_setprio 3
        s_lshl2_add_u32 s40, s{sRB}, s{sW}
        s_lshl_b32 s40, s40, 6
        v_lshlrev_b32 v14, 5, v0
        v_add_lshl_u32 v1, v0, s40, 1
        s_lshl2_add_u32 s40, s{sRBQ}, s{sW}
        s_lshl_b32 s40, s40, 5
        v_and_b32 v15, 31, v0
        v_add_lshl_u32 v15, v15, s40, 1
        v_mov_b32 v10, 0
        v_and_b32 v2, 31, v0
        v_lshlrev_b32 v2, 2, v2
        ds_write_b32 v2, v10 offset:{L_CNT}
        s_waitcnt lgkmcnt(0)
        global_load_dwordx4 v[{xr}:{xr+3}], v14, s[4:5]
        global_load_dwordx4 v[{xr+4}:{xr+7}], v14, s[4:5] offset:16
        global_load_ushort v{xr+8}, v15, s[4:5]
        global_load_ushort v{xr+9}, v1, s[4:5]
        s_load_dword s{sT32}, s[26:27], {WS_E}""")
        if self.touch:
            tf = self.lab("Ltf"); td = self.lab("Ltd")
            A(f"""
            s_cmp_eq_u32 s{sW}, 0
            s_cbranch_scc0 {td}
            s_lshl_b32 s41, s{sTL}, 18
            s_cmp_eq_u32 s{sTY}, 0
            s_cbranch_scc0 {tf}
            s_lshl_b32 s40, s{sG}, 24
            s_add_u32 s40, s40, {(65536-4096)*256:#x}
            s_load_dword s48, s[6:7], s40
            s_load_dword s49, s[8:9], s40
            s_load_dword s50, s[12:13], s41
            s_branch {td}
            {tf}:
            s_load_dword s48, s[22:23], 0
            s_cmp_eq_u32 s{sTY}, 1
            s_cbranch_scc0 {td}
            s_mul_i32 s40, s{sRB}, {256*7168}
            s_add_u32 s42, s40, {255*7168}
            s_load_dword s49, s[16:17], s40
            s_load_dword s50, s[18:19], s40
            s_load_dword s51, s[16:17], s42
            s_load_dword s52, s[18:19], s42
            s_load_dword s53, s[20:21], s41
            {td}:""")
        A("s_barrier")
        self.stamp(1)
        if self.xt:
            nx = self.lab("Lnoxt")
            A(f"""
            s_waitcnt lgkmcnt(0)
            s_cmp_lg_u32 s{sW}, 0
            s_cbranch_scc1 {nx}
            ; wave 0 announces the die this workgroup runs on
            s_getreg_b32 s45, hwreg(HW_REG_XCC_ID, 0, 4)
            s_lshl_b32 s45, s45, 28
            s_add_u32 s41, s{sT32}, 1
            s_xor_b32 s45, s45, s41
            s_lshl_b32 s95, s{sX}, 7
            s_add_u32 s95, s95, {WS_XA:#x}
            s_lshl2_add_u32 s41, s{sY}, s95
            s_mov_b64 exec, 1
            v_mov_b32 v1, s41
            v_mov_b32 v2, s45
            global_store_dword v1, v2, s[26:27] sc1
            s_mov_b64 exec, -1
            s_waitcnt vmcnt(1)
            s_branch {nx}_ln
            {nx}:
            s_waitcnt vmcnt(0)
            {nx}_ln:""")
        else:
            A(f"s_waitcnt vmcnt(0) lgkmcnt(0)")
        self.stamp(11)
        for i in range(8):
            A(f"v_lshlrev_b32 v{x0+2*i}, 16, v{xr+i}\nv_and_b32 v{x0+2*i+1}, 0xffff0000, v{xr+i}")
        A(f"v_pk_add_f32 v[{vT}:{vT+1}], v[{x0}:{x0+1}], v[{x0+2}:{x0+3}]")
        A(f"v_pk_add_f32 v[{vT+2}:{vT+3}], v[{x0+4}:{x0+5}], v[{x0+6}:{x0+7}]")
        for i in range(4, 8, 2):
            A(f"v_pk_add_f32 v[{vT}:{vT+1}], v[{vT}:{vT+1}], v[{x0+2*i}:{x0+2*i+1}]")
            A(f"v_pk_add_f32 v[{vT+2}:{vT+3}], v[{vT+2}:{vT+3}], v[{x0+2*i+2}:{x0+2*i+3}]")
        A(f"v_pk_add_f32 v[{vT}:{vT+1}], v[{vT}:{vT+1}], v[{vT+2}:{vT+3}]")
        A(f"v_add_f32 v{vT}, v{vT}, v{vT+1}")
        self.allreduce_in_row(vT)
        self.allreduce_rows(vT, vT+1, "v_add_f32")
        A(f"v_mul_f32 v{vT}, {f2u(1.0/1024):#x}, v{vT}")
        for i in range(8):
            A(f"v_pk_add_f32 v[{x0+2*i}:{x0+2*i+1}], v[{x0+2*i}:{x0+2*i+1}], v[{vT}:{vT+1}] op_sel_hi:[1,0] neg_lo:[0,1] neg_hi:[0,1]")
        A(f"v_pk_mul_f32 v[{vT+2}:{vT+3}], v[{x0}:{x0+1}], v[{x0}:{x0+1}]")
        A(f"v_pk_mul_f32 v[{vT+4}:{vT+5}], v[{x0+2}:{x0+3}], v[{x0+2}:{x0+3}]")
        for i in range(2, 8):
            d = vT + 2 + 2*(i & 1)
            A(f"v_pk_fma_f32 v[{d}:{d+1}], v[{x0+2*i}:{x0+2*i+1}], v[{x0+2*i}:{x0+2*i+1}], v[{d}:{d+1}]")
        A(f"v_pk_add_f32 v[{vT+2}:{vT+3}], v[{vT+2}:{vT+3}], v[{vT+4}:{vT+5}]")
        A(f"v_add_f32 v{vT+2}, v{vT+2}, v{vT+3}")
        r = xr + 8
        self.bf16_round(vT, vT)
        self.allreduce_in_row(vT+2)
        A(f"""
        v_lshlrev_b32 v{r}, 16, v{r}
        v_lshlrev_b32 v{r+1}, 16, v{r+1}
        v_pk_add_f32 v[{r}:{r+1}], v[{r}:{r+1}], v[{vT}:{vT+1}] op_sel_hi:[1,0] neg_lo:[0,1] neg_hi:[0,1]""")
        self.allreduce_rows(vT+2, vT+3, "v_add_f32")
        A(f"v_mul_f32 v{vT+2}, {f2u(1.0/1024):#x}, v{vT+2}")
        self.bf16_round(vT+2, vT+2)
        A(f"v_add_f32 v{vT+2}, {f2u(1e-5):#x}, v{vT+2}")
        self.bf16_round(vT+2, vT+2)
        A(f"""
        v_sqrt_f32 v{vT+2}, v{vT+2}
        v_cvt_pk_bf16_f32 v{r+1}, v{r}, v{r+1}
        v_lshlrev_b32 v{r}, 16, v{r+1}
        v_and_b32 v{r+1}, 0xffff0000, v{r+1}""")
        self.bf16_round(vT+2, vT+2)
        A(f"""
        v_rcp_f32 v{vT+2}, v{vT+2}
        v_and_b32 v1, 3, v0
        v_lshrrev_b32 v2, 2, v0
        v_lshlrev_b32 v2, 1, v2
        v_pk_mul_f32 v[{r}:{r+1}], v[{r}:{r+1}], v[{vT+2}:{vT+3}] op_sel_hi:[1,0]
        s_lshl_b32 s40, s{sW}, 6
        v_lshl_add_u32 v10, v1, 4, s40
        v_lshl_add_u32 v11, v10, 1, v2
        v_add_u32 v10, v10, v2""")
        if self.stag:
            A(f"s_and_b32 s41, s{sW}, 1\ns_lshl_b32 s41, s41, 1\nv_xor_b32 v11, s41, v11")
        A(f"""
        v_cvt_pk_bf16_f32 v{r}, v{r}, v{r+1}
        s_lshl_b32 s40, s{sW}, 2
        v_mov_b32 v2, s40
        v_mov_b32 v1, 1
        ds_write_b16_d16_hi v11, v{r} offset:{L_XG}
        s_mov_b32 exec_hi, 0
        ds_write_b16 v10, v{r} offset:{L_XQ}
        s_mov_b64 exec, 1
        ds_write_b32 v2, v1 offset:{C_XN}
        s_mov_b64 exec, -1
        s_add_u32 s{sT32}, s{sT32}, 1
        s_and_b32 s{sT10}, s{sT32}, s44
        v_mov_b32 v3, s{sT10}""")
        self.stamp(12)
        self.magstore()
        if self.wtest:
            pre, mod, n = self.wtest
            A(f"s_cmp_eq_u32 s{sW}, 3\ns_cbranch_scc0 L_adone")
            A(f"s_mul_i32 s42, s2, {n*1024}\ns_add_u32 s42, s42, 0x800000\nv_lshl_add_u32 v10, v0, 4, s42")
            if pre == 's':
                A("s_add_u32 s40, s26, s42\ns_addc_u32 s41, s27, 0")
                for i in range(n*16):
                    A(f"s_load_dword s48, s[40:41], {64*i} glc")
                A("s_waitcnt lgkmcnt(0)")
            elif pre:
                for i in range(n):
                    A(f"global_load_dwordx4 v[20:23], v10, s[26:27] offset:{1024*i} {pre[1:]}")
                A("s_waitcnt vmcnt(0)")
            self.lds_spin(C_Q, 4, sleep=1)
            A("s_sleep 64")
            for i in range(n):
                A(f"global_store_dwordx4 v10, v[16:19], s[26:27] offset:{1024*i} {mod}")
        if 'noa' in self.abl:
            A(f"s_cmp_ge_u32 s{sTY}, 2\ns_cbranch_scc1 L_final\ns_branch L_adone")
        if self.xt:
            pass
        elif self.local:
            A(f"""
            s_getreg_b32 s45, hwreg(HW_REG_XCC_ID, 0, 4)
            s_lshl_b32 s45, s45, 28
            s_cmp_eq_u32 s{sTY}, 0
            s_cselect_b32 s45, s45, 0
            s_xor_b32 s45, s45, s{sT32}""")
        nq = self.lab("Lnoq")
        A(f"s_cmp_eq_u32 s{sW}, 3\ns_cbranch_scc0 {nq}")
        if self.qtouch:
            A(f"""
            s_lshl3_add_u32 s40, s{sHQ}, s{sRBQ}
            s_lshl_b32 s40, s40, 9
            s_add_u32 s40, s40, {WS_BQ:#x}
            s_add_u32 s40, s26, s40
            s_addc_u32 s41, s27, 0""")
            for k in range(8):
                A(f"s_load_dword s48, s[40:41], {64*k} glc")
            A("s_waitcnt lgkmcnt(0)")
        self.red_publish(L_RQ, 512, C_Q, 32, f"""
            s_lshl3_add_u32 s41, s{sHQ}, s{sRBQ}
            s_lshl_b32 s40, s41, 9
            s_add_u32 s40, s40, {WS_BQ:#x}
            v_add_u32 v11, s40, v10
            s_lshr_b32 s40, s41, 4
            s_and_b32 s41, s41, 15
            s_lshl_b32 s40, s40, 5
            s_add_u32 s40, s40, s41
            s_lshl_b32 s40, s40, 2
            s_add_u32 s40, s40, {WS_FLA:#x}""", self.nrepA, val=(45 if (self.local and not self.forceloc) else sT32))
        self.stamp(13)
        A(f"{nq}:")
        if self.xt:
            self.handshake()
        A(f"""
        s_cmp_ge_u32 s{sTY}, 2
        s_cbranch_scc1 L_final
        s_cmp_ge_u32 s{sTY}, 1
        s_cbranch_scc1 L_ffn""")
        if 'stop1' in self.abl:
            self.arrive(C_GA, want_old=False); A("s_branch L_adone")
        vKF, vVF, vGT, vQF, vO = 56, 88, 120, 152, 168
        vS, U, Z = 16, 24, 28
        A(f"""
        s_lshl2_add_u32 s41, s{sG}, s{sW}
        s_lshl_b32 s40, s41, 13
        s_add_u32 s40, s40, {WS_BQ + 2048:#x}
        v_and_b32 v12, 31, v0
        v_lshrrev_b32 v13, 5, v0
        v_lshlrev_b32 v1, 4, v12
        v_lshl_add_u32 v1, v13, 12, v1
        v_add_u32 v{vA0}, s40, v1
        s_and_b32 s40, s{sCH}, {self.nrepA-1}
        s_mul_i32 s40, s40, {REPP}
        s_lshl_b32 s41, s41, 7
        s_add_u32 s40, s40, s41
        s_add_u32 s95, s40, {WS_FLA:#x}
        s_lshl_b32 s40, s{sW}, 1
        v_add_u32 v13, s40, v13
        v_mul_u32_u24 v13, {QLP}, v13
        v_lshl_add_u32 v13, v12, 3, v13
        v_and_b32 v10, 7, v0
        s_lshl_b32 s40, s{sG}, 5
        s_add_u32 s41, s40, s{sCH}
        s_mul_i32 s41, s41, {BOP}
        s_lshl_b32 s42, s{sW}, 7
        s_add_u32 s41, s41, s42
        s_add_u32 s41, s41, {WS_BO:#x}
        v_lshlrev_b32 v8, 9, v10
        v_bfe_u32 v11, v0, 3, 1
        v_lshl_add_u32 v8, v11, 6, v8
        v_lshl_add_u32 v8, v{vJ}, 4, v8
        v_add_u32 v8, s41, v8
        s_add_u32 s40, s40, s{sCH}
        s_lshl_b32 s40, s40, 7
        s_add_u32 s40, s40, {WS_BML:#x}
        v_lshl_add_u32 v9, v10, 4, s40
        v_mul_u32_u24 v12, {QLP}, v10
        v_lshl_add_u32 v12, v{vJ}, 4, v12
        s_mov_b32 s46, {f2u(128 ** -0.5):#x}
        s_mov_b32 s47, {f2u(128 ** -0.5):#x}
        s_lshl_b32 s40, s{sW}, 13
        v_xor_b32 v14, v{vI}, v{vJ}
        v_lshlrev_b32 v14, 4, v14
        v_lshl_add_u32 v14, v{vI}, 8, v14
        v_add_u32 v14, s40, v14
        v_bfe_u32 v10, v0, 2, 2
        v_lshl_add_u32 v10, v{vJ}, 2, v10
        v_and_b32 v11, 7, v10
        v_lshlrev_b32 v11, 1, v11
        v_bfe_u32 v1, v0, 1, 1
        v_xor_b32 v11, v11, v1
        v_lshlrev_b32 v11, 4, v11
        v_lshl_add_u32 v11, v10, 8, v11
        v_and_b32 v1, 1, v0
        v_lshl_add_u32 v11, v1, 3, v11
        s_add_u32 s41, s40, {L_V}
        v_add_u32 v11, s41, v11
        ; exchange area (this wave's K rows, dead once the fragments are in registers)
        v_lshl_add_u32 v15, v0, 4, s40
        s_lshl_b32 s41, s{sW}, 10
        v_lshl_add_u32 v10, v0, 4, s41""")
        self.mask(("s92", "s93"), 0xFF00FF00FF00FF00)

        def kreads():
            A(f"s_lshl_b32 s41, s{sW}, 2\ns_add_u32 s41, s41, {C_K}")
            self.lds_spin("s41", 1, sleep=1)
            for s in range(4):
                if s:
                    A(f"v_xor_b32 v2, {64*s}, v14")
                for t in range(2):
                    r = vKF + 16*t + 4*s
                    A(f"ds_read_b128 v[{r}:{r+3}], v{2 if s else 14} offset:{L_K + 4096*t}")
            self.stamp(3)

        if self.kfirst:
            kreads()
        A("s_mov_b32 s40, s95")
        if self.xt:
            self.flag_poll(16)
        elif self.forceloc:
            self.flag_poll(16)
            A("s_mov_b32 s101, 1")
        elif self.local:
            l = self.lab("Lpoll"); r = self.lab("Lretry")
            A(f"""
            s_mov_b32 s{sSPIN}, 0
            s_mov_b32 s42, s{sT32}
            s_mov_b32 s43, s{sT32}
            s_mov_b32 s4, s45
            s_mov_b32 s5, s45
            s_branch {l}
            {r}:
            s_sleep {self.psleep}
            {l}:
            s_load_dwordx16 s[{sP}:{sP+15}], s[26:27], s40 glc
            s_add_u32 s{sSPIN}, s{sSPIN}, 1
            s_cmp_gt_u32 s{sSPIN}, {SPIN_MAX}
            s_cbranch_scc1 L_end
            s_waitcnt lgkmcnt(0)""")
            for i in range(8):
                A(f"s_xor_b64 s[{sP+2*i}:{sP+2*i+1}], s[{sP+2*i}:{sP+2*i+1}], s[{'4:5' if (i & 2) == 0 else '42:43'}]")
            for step in (2, 4, 8):
                for i in range(0, 16, 2*step):
                    A(f"s_or_b64 s[{sP+i}:{sP+i+1}], s[{sP+i}:{sP+i+1}], s[{sP+i+step}:{sP+i+step+1}]")
            A(f"""
            s_or_b32 s{sP}, s{sP}, s{sP+1}
            s_and_b32 s{sP+1}, s{sP}, 0x0fffffff
            s_cbranch_scc1 {r}
            s_cmp_lg_u32 s{sP}, 0
            s_cselect_b32 s101, 0x101, 1""")
        else:
            self.flag_poll(16)
        self.stamp(2)
        if 'stop2' in self.abl:
            self.arrive(C_GA, want_old=False); A("s_branch L_adone")
        if self.warm is not None and self.warmO == 1:
            A(f"""
            s_mov_b64 exec, 0xff
            global_load_dword v46, v8, s[26:27] {self.warm}
            s_mov_b64 exec, 1
            global_load_dword v47, v9, s[26:27] {self.warm}
            s_mov_b64 exec, -1""")

        rq = self.lab("Lgq")
        A(f"s_mov_b32 s45, 0\n{rq}:")
        for n in range(8):
            A(f"global_load_dwordx4 v[{vGT+4*n}:{vGT+4*n+3}], v{vA0}, s[26:27] offset:{512*n - 2048} sc1")
        skip = self.lab("Lkvdone")
        A(f"s_cmp_lg_u32 s45, 0\ns_cbranch_scc1 {skip}\ns_mov_b32 s45, 1")
        self.gate(1, self.gateA)
        def vreads():
            A(f"s_lshl_b32 s41, s{sW}, 2\ns_add_u32 s41, s41, {C_V}")
            self.lds_spin("s41", 1, sleep=0)
            for dt in range(8):
                if dt:
                    A(f"v_xor_b32 v14, {32*dt}, v11")
                for t in range(2):
                    r = vVF + 4*dt + 2*t
                    A(f"ds_read_b64_tr_b16 v[{r}:{r+1}], v{14 if dt else 11} offset:{4096*t}")

        if not self.kfirst:
            kreads()
        if not self.vlate:
            vreads()
        A(f"""
        s_lshr_b32 s40, s{sCH}, 4
        s_lshl1_add_u32 s40, s{sG}, s40
        s_lshl_b32 s40, s40, 5
        s_and_b32 s41, s{sCH}, 15
        s_add_u32 s40, s40, s41
        s_lshl_b32 s40, s40, 2
        s_add_u32 s95, s40, {WS_FLB:#x}""")
        A(f"s_mov_b32 s{sSPIN}, 0\n{skip}:")
        self.untag([vGT+4*n for n in range(8)], vT, counted=True)
        self.tagtest(vT, rq)
        self.stamp(4)
        if 'stop3' in self.abl:
            A("s_branch L_adone")
        for step in (4, 8, 16):
            for b in range(0, 32, 2*step):
                for h in (0, 2):
                    A(f"v_pk_add_f32 v[{vGT+b+h}:{vGT+b+h+1}], v[{vGT+b+h}:{vGT+b+h+1}], v[{vGT+b+step+h}:{vGT+b+step+h+1}]")
        A(f"""
        v_cvt_pk_bf16_f32 v{vGT}, v{vGT}, v{vGT+1}
        v_cvt_pk_bf16_f32 v{vGT+1}, v{vGT+2}, v{vGT+3}
        s_mov_b32 s45, {f2u(LOG2E):#x}
        ds_write_b64 v13, v[{vGT}:{vGT+1}] offset:{L_QL}""")
        self.arrive(C_QL, want_old=False, inc=("s101" if (self.local and not self.xt) else 1))
        if self.warm is not None and self.warmO == 2:
            A(f"""
            s_mov_b64 exec, 0xff
            global_load_dword v46, v8, s[26:27] {self.warm}
            s_mov_b64 exec, 1
            global_load_dword v47, v9, s[26:27] {self.warm}
            s_mov_b64 exec, -1""")

        self.stamp(1)
        self.lds_spin(C_QL, 4, sleep=0, low8=(self.local and not self.xt),
                      reads="\n".join(f"ds_read_b128 v[{vQF+4*s}:{vQF+4*s+3}], v12 offset:{L_QL + 64*s}" for s in range(4))
                      + (f"\nds_read_b32 v54, v1 offset:{C_LOC - C_QL}" if self.xt else ""))
        if self.xt:
            self.get_loc(54)
        self.stamp(9)
        for s in range(4):
            for t in range(2):
                c = "0" if s == 0 else f"v[{vS+4*t}:{vS+4*t+3}]"
                r = vKF + 16*t + 4*s
                A(f"v_mfma_f32_16x16x32_bf16 v[{vS+4*t}:{vS+4*t+3}], v[{r}:{r+3}], v[{vQF+4*s}:{vQF+4*s+3}], {c}")
        self.early_flag('qk')
        if self.vlate:
            vreads()
        else:
            A("s_nop 7")
        for k in range(4):
            A(f"v_cndmask_b32 v{U+k}, v{vS+k}, v{vS+4+k}, s[92:93]")
        for rnd in range(2):
            for p in range(2):
                A(f"v_cvt_pk_bf16_f32 v{Z+p}, v{U+2*p}, v{U+2*p+1}")
            for p in range(2):
                A(f"v_lshlrev_b32 v{U+2*p}, 16, v{Z+p}\nv_and_b32 v{U+2*p+1}, 0xffff0000, v{Z+p}")
            if rnd == 0:
                for p in range(2):
                    A(f"v_pk_mul_f32 v[{U+2*p}:{U+2*p+1}], v[{U+2*p}:{U+2*p+1}], s[46:47]")
        vM, vL = 48, 49
        A(f"""
        v_max3_f32 v{vM}, v{U}, v{U+1}, v{U+2}
        v_max_f32 v{vM}, v{vM}, v{U+3}
        s_nop 1
        v_max_f32_dpp v{vM}, v{vM}, v{vM} row_ror:8 row_mask:0xf bank_mask:0xf""")
        self.allreduce_rows(vM, 50, "v_max_f32")
        A(f"v_mul_f32 v50, s45, v{vM}")
        for k in range(4):
            A(f"v_fma_f32 v{U+k}, v{U+k}, s45, -v50")
        for k in range(4):
            A(f"v_exp_f32 v{U+k}, v{U+k}")
        P = 32
        A(f"""
        s_nop 0
        v_cvt_pk_bf16_f32 v{P}, v{U}, v{U+1}
        v_cvt_pk_bf16_f32 v{P+1}, v{U+2}, v{U+3}
        v_pk_add_f32 v[52:53], v[{U}:{U+1}], v[{U+2}:{U+3}]
        v_mov_b32_dpp v{P+2}, v{P} row_ror:8 row_mask:0xf bank_mask:0xf
        v_mov_b32_dpp v{P+3}, v{P+1} row_ror:8 row_mask:0xf bank_mask:0xf
        v_mov_b32 v{P+4}, v{P}
        v_mov_b32 v{P+5}, v{P+1}
        v_add_f32 v{vL}, v52, v53""")
        if self.vlate:
            A("s_waitcnt lgkmcnt(0)")
        fill = [f"v_lshrrev_b32 v14, 1, v15\nv_add_f32_dpp v{vL}, v{vL}, v{vL} row_ror:8 row_mask:0xf bank_mask:0xf",
                f"v_mov_b32 v50, v{vL}\ns_lshl_b32 s40, s{sW}, 12",
                f"v_add_u32 v14, s40, v14\nv_permlane32_swap_b32 v50, v{vL}",
                f"v_add_f32 v{vL}, v{vL}, v50\nv_mov_b32 v50, v{vL}",
                f"s_nop 0",
                f"v_permlane16_swap_b32 v50, v{vL}\nv_add_f32 v{vL}, v{vL}, v50",
                f"ds_write_b64 v14, v[{vM}:{vL}] offset:{L_K + 4096}", ""]
        for dt in range(8):
            b = P + 2*(dt & 1)
            A(f"v_mfma_f32_16x16x32_bf16 v[{vO+4*dt}:{vO+4*dt+3}], v[{vVF+4*dt}:{vVF+4*dt+3}], v[{b}:{b+3}], 0")
            A(fill[dt])
        for k in range(4):
            for r in range(4):
                A(f"v_cndmask_b32 v{vO+8*k+r}, v{vO+8*k+r}, v{vO+8*k+4+r}, s[92:93]")
            A(f"ds_write_b128 v15, v[{vO+8*k}:{vO+8*k+3}] offset:{L_K + 1024*k}")
        self.arrive(C_X, want_old=False)
        A("v_lshlrev_b32 v14, 3, v0")
        self.early_flag('pv')
        self.stamp(11)
        X, ML = 56, 72
        self.lds_spin(C_X, 4, sleep=0, reads="\n".join(
            [f"ds_read_b64 v[{ML+2*w}:{ML+2*w+1}], v14 offset:{L_K + 8192*w + 4096}" for w in range(4)] +
            [f"ds_read_b128 v[{X+4*w}:{X+4*w+3}], v10 offset:{L_K + 8192*w}" for w in range(4)]))
        self.stamp(10)
        self.early_flag('xsync')
        A(f"v_max3_f32 v{vM}, v{ML}, v{ML+2}, v{ML+4}\nv_max_f32 v{vM}, v{vM}, v{ML+6}")
        for w in range(4):
            A(f"v_sub_f32 v{ML+2*w}, v{ML+2*w}, v{vM}")
        for w in range(4):
            A(f"v_mul_f32 v{ML+2*w}, s45, v{ML+2*w}")
        for w in range(4):
            A(f"v_exp_f32 v{ML+2*w}, v{ML+2*w}")
        A(f"s_nop 0\nv_mul_f32 v{vL}, v{ML}, v{ML+1}")
        for w in range(4):
            e = ML + 2*w
            for h in (0, 2):
                if w == 0:
                    A(f"v_pk_mul_f32 v[{vS+h}:{vS+h+1}], v[{X+h}:{X+h+1}], v[{e}:{e+1}] op_sel_hi:[1,0]")
                else:
                    A(f"v_pk_fma_f32 v[{vS+h}:{vS+h+1}], v[{X+4*w+h}:{X+4*w+h+1}], v[{e}:{e+1}], v[{vS+h}:{vS+h+1}] op_sel_hi:[1,0,1]")
            if w:
                A(f"v_fmac_f32 v{vL}, v{e}, v{e+1}")
        for r in range(4):
            self.tag(vS + r)
        nml = self.lab("Lnoml")

        def publish(mod):
            if 'noO' not in self.abl:
                A(f"global_store_dwordx4 v8, v[{vS}:{vS+3}], s[26:27] {mod}")
            A(f"s_cmp_lg_u32 s{sW}, 0\ns_cbranch_scc1 {nml}")
            self.tag(vM); self.tag(vL)
            A(f"""
            v_mov_b32 v50, v3
            v_mov_b32 v51, v3
            s_mov_b64 exec, 0xff
            global_store_dwordx4 v9, v[48:51], s[26:27] {mod}""")

        if self.local:
            rem = self.lab("Lremote"); fl = self.lab("Lflagb")
            A(f"s_cmp_lg_u32 s101, 0\ns_cbranch_scc1 {rem}")
            publish("")
            A(f"s_branch {fl}\n{rem}:")
            publish("sc1")
            A(f"{fl}:")
        else:
            publish("sc1")
        if self.flagpos != 'end':
            A(f"s_mov_b64 exec, -1\ns_cmp_eq_u32 s101, 0\ns_cbranch_scc1 {nml}")
        A("s_mov_b32 s40, s95")
        if 'noflagB' not in self.abl:
            self.flag_store(self.nrepB)
        A(f"{nml}:")
        self.gate(2, self.gateA)
        self.stamp(5)
        if 'stop4' in self.abl:
            A("s_branch L_adone")
        A(f"""
        s_and_b32 s40, s{sTL}, 7
        s_lshl2_add_u32 s41, s40, s{sW}
        s_lshl_b32 s41, s41, 7
        s_mul_i32 s42, s{sG}, {32*BOP}
        s_add_u32 s41, s41, s42
        s_add_u32 s41, s41, {WS_BO:#x}
        v_lshrrev_b32 v1, 3, v0
        v_mul_u32_u24 v1, {BOP}, v1
        v_and_b32 v2, 7, v0
        v_lshl_add_u32 v1, v2, 4, v1
        v_add_u32 v{vA0}, s41, v1
        v_add_u32 v13, {8*BOP}, v{vA0}
        v_add_u32 v14, {16*BOP}, v{vA0}
        v_add_u32 v15, {24*BOP}, v{vA0}
        s_lshl_b32 s41, s{sG}, 8
        s_add_u32 s40, s40, s41
        s_lshl_b32 s40, s40, 4
        s_add_u32 s40, s40, {WS_BML:#x}
        v_and_b32 v1, 31, v0
        v_lshl_add_u32 v{vA1}, v1, 7, s40
        s_lshl_b32 s40, s{sW}, 7
        v_and_b32 v2, 7, v0
        v_lshrrev_b32 v1, 3, v1
        v_lshl_add_u32 v1, v1, 2, s40
        v_lshl_add_u32 v10, v2, 4, v1
        v_lshrrev_b32 v1, 3, v0
        v_lshl_add_u32 v11, v1, 4, s40
        v_and_b32 v1, 1, v0
        v_lshl_add_u32 v1, v1, 2, v{vJ}
        v_and_b32 v2, 6, v0
        v_lshl_add_u32 v12, v1, 5, v2
        s_lshl_b32 s40, s{sW}, 3
        v_add_u32 v12, s40, v12""")
        nb = self.lab("Lnopollb")
        A(f"""
        s_cmp_ge_u32 s{sW}, 2
        s_cbranch_scc1 {nb}
        s_and_b32 s40, s{sCH}, {self.nrepB-1}
        s_mul_i32 s40, s40, {REPP}
        s_lshl1_add_u32 s41, s{sG}, s{sW}
        s_lshl_b32 s41, s41, 7
        s_add_u32 s40, s40, s41
        s_add_u32 s40, s40, {WS_FLB:#x}""")
        self.flag_poll(16)
        self.arrive(C_B1, want_old=False)
        A(f"{nb}:")
        self.lds_spin(C_B1, 2, sleep=0)
        self.stamp(6)
        rb_ = self.lab("Lgo")
        vO, vML = 56, 72
        A(f"s_mov_b32 s47, 0\n{rb_}:")
        def bloads(mod):
            A(f"global_load_dwordx4 v[{vML}:{vML+3}], v{vA1}, s[26:27] {mod}")
            for n in range(4):
                A(f"global_load_dwordx4 v[{vO+4*n}:{vO+4*n+3}], v{(vA0, 13, 14, 15)[n]}, s[26:27] {mod}")
        if self.local and self.gmod != 'sc1':
            rem = self.lab("Lremote"); fl = self.lab("Lbld")
            A(f"s_cmp_lg_u32 s101, 0\ns_cbranch_scc1 {rem}")
            bloads(self.gmod)
            A(f"s_branch {fl}\n{rem}:")
            bloads("sc1")
            A(f"{fl}:\ns_mov_b32 s101, 1")
        else:
            bloads("sc1")
        if self.HA:
            l = self.lab("Lhb")
            A(f"s_cmp_lg_u32 s47, 0\ns_cbranch_scc1 {l}\ns_mov_b32 s47, 1")
            self.arrive(C_HB, want_old=False)
            A(f"{l}:")
        if 3 in self.gateA:
            self.gate(3, self.gateA)
            A(f"s_mov_b32 s{sGATE}, 0")
        A("s_waitcnt vmcnt(4)")
        self.untag([vML], vT + 16)
        fill = self.untag_list([vO + 4*n for n in range(4)], vT + 16, first=False)
        A(f"v_mov_b32 v{vT}, v{vML}\ns_waitcnt vmcnt(0)")
        self.allreduce_in_row(vT, "v_max_f32", fill)
        A(f"v_mov_b32 v{vT+2}, v{vT}")
        self.pad2(fill)
        A(f"""
        v_permlane16_swap_b32 v{vT+2}, v{vT}
        v_max_f32 v{vT}, v{vT}, v{vT+2}
        v_sub_f32 v{vT+4}, v{vML}, v{vT}
        v_mul_f32 v{vT+4}, s45, v{vT+4}
        v_exp_f32 v{vT+4}, v{vT+4}
        s_mov_b32 exec_hi, 0
        ds_write_b32 v10, v{vT+4} offset:{L_WT}
        s_mov_b32 exec_hi, -1
        ds_read_b128 v[{vT+8}:{vT+11}], v11 offset:{L_WT}
        v_mul_f32 v{vT+1}, v{vT+4}, v{vML+1}""")
        self.allreduce_in_row(vT + 1, "v_add_f32", fill)
        A(f"v_mov_b32 v{vT+2}, v{vT+1}")
        self.pad2(fill)
        A(f"""
        v_permlane16_swap_b32 v{vT+2}, v{vT+1}
        v_add_f32 v{vT+1}, v{vT+1}, v{vT+2}
        v_rcp_f32 v{vT+1}, v{vT+1}""")
        A("\n".join(fill))
        self.tagtest(vT + 16, rb_)
        self.stamp(7)
        A("s_waitcnt lgkmcnt(0)")
        acc = vT + 4
        for n in range(4):
            w = vT + 8 + (n & ~1)
            os_ = f"op_sel:[0,{n&1}] op_sel_hi:[1,{n&1}]" if n == 0 else f"op_sel:[0,{n&1},0] op_sel_hi:[1,{n&1},1]"
            for h in (0, 2):
                if n == 0:
                    A(f"v_pk_mul_f32 v[{acc+h}:{acc+h+1}], v[{vO+h}:{vO+h+1}], v[{w}:{w+1}] {os_}")
                else:
                    A(f"v_pk_fma_f32 v[{acc+h}:{acc+h+1}], v[{vO+4*n+h}:{vO+4*n+h+1}], v[{w}:{w+1}], v[{acc+h}:{acc+h+1}] {os_}")
        self.reduce_scatter_rows(acc)
        A(f"""
        s_nop 1
        v_add_f32_dpp v{acc}, v{acc}, v{acc} row_ror:8 row_mask:0xf bank_mask:0xf
        v_mov_b32 v1, {C_FO}
        v_mul_f32 v{acc}, v{acc}, v{vT+1}
        v_mov_b32 v2, 1
        v_cvt_pk_bf16_f32 v{acc}, v{acc}, v{acc}""")
        self.exec_set(0x00FF00FF00FF00FF)
        A(f"""
        ds_write_b16 v12, v{acc} offset:{L_VEC}
        s_mov_b64 exec, 1
        ds_add_u32 v1, v2
        s_mov_b64 exec, -1""")
        self.stamp(8)
        if 'diag' in self.abl:
            l = self.lab("Ldg")
            if 'diagx' in self.abl:
                A(f"s_getreg_b32 s41, hwreg(HW_REG_XCC_ID, 0, 4)\ns_cmp_eq_u32 s41, s{sX}")
            else:
                A("s_cmp_eq_u32 s101, 0")
            A(f"""
            s_cbranch_scc1 L_adone
            s_memrealtime s[42:43]
            s_waitcnt lgkmcnt(0)
            s_add_u32 s40, s42, 2000
            {l}:
            s_memrealtime s[42:43]
            s_waitcnt lgkmcnt(0)
            s_sub_u32 s41, s42, s40
            s_cmp_lt_i32 s41, 0
            s_cbranch_scc1 {l}""")
        A("L_adone:")
        self.write_stamps(14)
        A("s_endpgm")
        A(f"""
        L_ffn:
        s_cmp_eq_u32 s{sW}, 2
        s_cbranch_scc0 L_adone""")
        if self.localD:
            l = self.lab("Lxt")
            A(f"""
            s_getreg_b32 s45, hwreg(HW_REG_XCC_ID, 0, 4)
            s_lshl_b32 s45, s45, 28
            s_xor_b32 s42, s45, s{sT32}
            s_mov_b32 s43, s42
            s_lshl_b32 s40, s{sG}, 7
            s_add_u32 s40, s40, {WS_XT:#x}
            s_lshl2_add_u32 s41, s{sY}, s40
            s_mov_b64 exec, 1
            v_mov_b32 v1, s41
            v_mov_b32 v2, s42
            global_store_dword v1, v2, s[26:27] sc1
            s_mov_b64 exec, -1
            s_add_u32 s41, s40, 64
            s_mov_b32 s{sSPIN}, 0
            {l}:
            s_sleep 24
            s_load_dwordx16 s[{sP}:{sP+15}], s[26:27], s40 glc
            s_load_dwordx16 s[4:19], s[26:27], s41 glc
            s_add_u32 s{sSPIN}, s{sSPIN}, 1
            s_cmp_gt_u32 s{sSPIN}, {SPIN_MAX}
            s_cbranch_scc1 L_end
            s_waitcnt lgkmcnt(0)""")
            pairs = [sP + 2*i for i in range(8)] + [4 + 2*i for i in range(6)]
            for p in pairs:
                A(f"s_xor_b64 s[{p}:{p+1}], s[{p}:{p+1}], s[42:43]")
            for p in pairs[1:]:
                A(f"s_or_b64 s[{sP}:{sP+1}], s[{sP}:{sP+1}], s[{p}:{p+1}]")
            A(f"""
            s_or_b32 s101, s{sP}, s{sP+1}
            s_and_b32 s{sP}, s101, 0x0fffffff
            s_cbranch_scc1 {l}""")
        if 'noffn' in self.abl:
            A("s_branch L_adone")
        if self.dtouch:
            A(f"""
            s_lshl2_add_u32 s40, s{sTL}, s{sRB}
            s_lshl_b32 s40, s40, 10
            s_add_u32 s40, s40, {WS_BD:#x}
            s_add_u32 s40, s26, s40
            s_addc_u32 s41, s27, 0
            s_lshl2_add_u32 s42, s{sUP}, s{sRB}
            s_lshl_b32 s42, s42, 10
            s_add_u32 s42, s42, {WS_BD + 512:#x}
            s_add_u32 s42, s26, s42
            s_addc_u32 s43, s27, 0""")
            for k in range(8):
                A(f"s_load_dword s48, s[40:41], {64*k} glc\ns_load_dword s49, s[42:43], {64*k} glc")
            A("s_waitcnt lgkmcnt(0)")
        self.red_publish(L_RG, 1024, C_G, 64, f"""
            s_sub_u32 s41, s{sUP}, s{sTL}
            s_lshl2_add_u32 s40, s{sTL}, s{sRB}
            s_lshl_b32 s40, s40, 10
            s_add_u32 s40, s40, {WS_BD:#x}
            v_add_u32 v11, s40, v10
            v_lshrrev_b32 v13, 5, v0
            s_lshl_b32 s42, s41, 12
            v_mul_lo_u32 v12, s42, v13
            v_add_u32 v11, v11, v12
            s_lshl_b32 s40, s{sTL}, 5
            s_add_u32 s40, s40, s{sRB}
            s_lshl_b32 s40, s40, 2
            s_lshl_b32 s42, s41, 7
            s_add_u32 s42, s42, 16
            v_mul_lo_u32 v12, s42, v0
            v_add_u32 v12, s40, v12
            s_movk_i32 s40, {WS_FLD:#x}""", 2, 12, sleep=1, local=self.localD)
        self.gate(1, self.gateF)
        self.stamp(5)
        A(f"""
        s_lshl_b32 s40, s{sTL}, 12
        s_add_u32 s40, s40, {WS_BD:#x}
        v_add_u32 v{vA0}, s40, v10
        v_and_b32 v1, 1, v0
        v_lshl_add_u32 v1, v1, 1, v13
        v_and_b32 v2, 30, v0
        v_lshl_add_u32 v12, v1, 6, v2
        s_lshl_b32 s40, s{sTL}, 7
        s_add_u32 s40, s40, {WS_FLD:#x}""")
        self.flag_poll(8)
        self.stamp(6)
        rd = self.lab("Lgd")
        G = 56
        A(f"s_mov_b32 s47, 0\n{rd}:")
        def dloads(mod):
            for n in range(4):
                A(f"global_load_dwordx4 v[{G+4*n}:{G+4*n+3}], v{vA0}, s[26:27] offset:{1024*n} {mod}")
        if self.localD:
            rem = self.lab("Lremote"); fl = self.lab("Ldld")
            A(f"s_cmp_lg_u32 s101, 0\ns_cbranch_scc1 {rem}")
            dloads(self.gmod)
            A(f"s_branch {fl}\n{rem}:")
            dloads("sc1")
            A(f"{fl}:")
        else:
            dloads("sc1")
        if self.HF:
            l = self.lab("Lhb")
            A(f"s_cmp_lg_u32 s47, 0\ns_cbranch_scc1 {l}\ns_mov_b32 s47, 1")
            self.arrive(C_HB, want_old=False)
            A(f"{l}:")
        if 2 in self.gateF:
            self.gate(2, self.gateF)
            A(f"s_mov_b32 s{sGATE}, 0")
        self.untag([G + 4*n for n in range(4)], vT, counted=True)
        self.tagtest(vT, rd)
        self.stamp(7)
        for h in (0, 2):
            A(f"v_pk_add_f32 v[{G+h}:{G+h+1}], v[{G+h}:{G+h+1}], v[{G+4+h}:{G+5+h}]")
            A(f"v_pk_add_f32 v[{G+8+h}:{G+9+h}], v[{G+8+h}:{G+9+h}], v[{G+12+h}:{G+13+h}]")
        for h in (0, 2):
            A(f"v_pk_add_f32 v[{G+h}:{G+h+1}], v[{G+h}:{G+h+1}], v[{G+8+h}:{G+9+h}]")
        c1 = -2.0 * 0.7978845608028654 * LOG2E
        c2 = c1 * 0.044715
        A(f"""
        v_cvt_pk_bf16_f32 v{G}, v{G}, v{G+1}
        v_cvt_pk_bf16_f32 v{G+1}, v{G+2}, v{G+3}
        s_mov_b32 s46, {f2u(c2):#x}
        v_mov_b32 v{vT+4}, {f2u(c1):#x}
        v_permlane32_swap_b32 v{G}, v{G+1}
        v_lshlrev_b32 v{G+2}, 16, v{G}
        v_and_b32 v{G+3}, 0xffff0000, v{G}
        v_pk_mul_f32 v[{vT}:{vT+1}], v[{G+2}:{G+3}], v[{G+2}:{G+3}]
        v_fma_f32 v{vT}, v{vT}, s46, v{vT+4}
        v_fma_f32 v{vT+1}, v{vT+1}, s46, v{vT+4}
        v_pk_mul_f32 v[{vT}:{vT+1}], v[{vT}:{vT+1}], v[{G+2}:{G+3}]
        v_exp_f32 v{vT}, v{vT}
        v_exp_f32 v{vT+1}, v{vT+1}
        v_lshlrev_b32 v{G+4}, 16, v{G+1}
        v_add_f32 v{vT}, 1.0, v{vT}
        v_add_f32 v{vT+1}, 1.0, v{vT+1}
        v_rcp_f32 v{vT}, v{vT}
        v_rcp_f32 v{vT+1}, v{vT+1}
        v_and_b32 v{G+5}, 0xffff0000, v{G+1}
        v_pk_mul_f32 v[{G+2}:{G+3}], v[{G+2}:{G+3}], v[{vT}:{vT+1}]
        v_cvt_pk_bf16_f32 v{G}, v{G+2}, v{G+3}
        v_lshlrev_b32 v{G+2}, 16, v{G}
        v_and_b32 v{G+3}, 0xffff0000, v{G}
        v_pk_mul_f32 v[{G+2}:{G+3}], v[{G+2}:{G+3}], v[{G+4}:{G+5}]
        v_mov_b32 v1, {C_FO}
        v_cvt_pk_bf16_f32 v{G}, v{G+2}, v{G+3}
        v_mov_b32 v2, 1
        ds_write_b16 v12, v{G} offset:{L_VEC}
        ds_write_b16_d16_hi v12, v{G} offset:{L_VEC+32}
        s_mov_b64 exec, 1
        ds_write_b32 v1, v2
        s_mov_b64 exec, -1""")
        self.stamp(8)
        A("s_branch L_adone")

    def final(self):
        A = self.A
        vI, vJ, vT = 4, 5, 16
        G0, G1 = 56, 60
        A(f"""
        L_final:""")
        if getattr(self, 'magL', False):
            A("s_waitcnt lgkmcnt(0)")
            self.magstore()
        A(f"""
        s_mov_b32 s42, s{sR}
        s_lshl_b32 s43, s42, 7
        v_lshl_add_u32 v8, v0, 1, s43
        global_load_ushort v9, v8, s[4:5]""")
        if 'nofinal' in self.abl:
            A("s_branch L_adone")
        A(f"""
        s_and_b32 s41, s{sW}, 3
        s_cmp_lt_u32 s{sW}, 4
        s_cselect_b32 s46, 0, {WS_BF - WS_BS:#x}
        s_cselect_b32 s47, {28*ROWP}, 0
        s_cselect_b32 s93, -1, 0xffff
        s_mov_b32 s92, -1
        s_mul_i32 s40, s41, {ROWP}
        s_add_u32 s40, s40, s46
        s_lshl_b32 s43, s42, 8
        s_add_u32 s40, s40, s43
        s_add_u32 s46, s40, {WS_BS:#x}
        s_add_u32 s47, s47, s46
        v_mul_u32_u24 v1, {4*ROWP}, v{vJ}
        v_lshl_add_u32 v1, v{vI}, 4, v1
        v_add_u32 v6, s46, v1
        v_add_u32 v7, {16*ROWP}, v6
        v_lshl_add_u32 v10, v{vI}, 2, v{vJ}
        v_lshlrev_b32 v10, 5, v10
        s_lshl_b32 s40, s{sW}, 2
        v_add_u32 v10, s40, v10
        v_lshlrev_b32 v11, 5, v0
        v_mov_b32 v12, {C_F1}
        v_mov_b32 v13, 1
        s_waitcnt vmcnt(0)
        v_lshlrev_b32 v9, 16, v9""")
        for r in range(4):
            A(f"v_mov_b32 v{G1+r}, v3")
        if self.flocal:
            lf = self.lab("Lfl"); ns = self.lab("Lnfl")
            A(f"""
            {'' if (self.svec or self.strig) else f's_cmp_lt_u32 s{sW}, 4'}
            {'' if (self.svec or self.strig) else f's_cbranch_scc1 {ns}'}""")
            if self.flocal == 'xt' and not self.svec:
                self.get_loc(sleep=4)
                A(f"s_cmp_lg_u32 s101, 0\ns_cbranch_scc1 {ns}")
            if self.strig:
                fw = self.lab("Lfw")
                A(f"s_cmp_ge_u32 s{sW}, 4\ns_cbranch_scc1 {fw}")
                self.lds_spin(C_TR, 1, sleep=2)
                A(f"s_branch L_fvec\n{fw}:")
            if self.svec and self.svec > 1:
                A(f"s_sleep {self.svec}")
            A(f"""
            s_mov_b32 s{sSPIN}, 0
            {lf}:
            s_sleep {self.fls}
            global_load_dwordx4 v[{G0}:{G0+3}], v6, s[26:27] {self.fmod}
            s_mov_b64 exec, s[92:93]
            global_load_dwordx4 v[{G1}:{G1+3}], v7, s[26:27] {self.fmod}
            s_mov_b64 exec, -1
            s_add_u32 s{sSPIN}, s{sSPIN}, 1
            s_cmp_gt_u32 s{sSPIN}, {SPIN_MAX}
            s_cbranch_scc1 L_end
            s_waitcnt vmcnt(0)
            v_bitop3_b32 v{vT}, v{G0}, v{G0+3}, s{sT10} bitop3:0x7e
            v_and_b32 v{vT}, s44, v{vT}
            v_cmp_eq_u32 vcc, 0, v{vT}
            s_nop 4
            s_cbranch_vccz {lf}""")
            if self.strig:
                A(f"s_mov_b64 exec, 1\nv_mov_b32 v1, {C_TR}\nds_write_b32 v1, v13\ns_mov_b64 exec, -1")
            A(f"""
            s_branch L_fvec
            {ns}:""")
        l = self.lab("Lfp"); r_ = self.lab("Lfr")
        A(f"""
        s_add_u32 s40, s26, s46
        s_addc_u32 s41, s27, 0""")
        if self.stouch:
            for k in range(8):
                for h in (64, 128, 192):
                    A(f"s_load_dword s{48+k}, s[40:41], {4*min(k, 7)*ROWP + h} glc")
        A(f"""
        s_mov_b32 s{sSPIN}, 0
        s_branch {l}
        {r_}:
        s_cmp_lg_u32 s43, 0
        s_cbranch_scc1 {l}
        s_sleep {self.fsleep}
        {l}:""")
        for k in range(7):
            A(f"s_load_dword s{48+k}, s[40:41], {4*k*ROWP} glc")
        A(f"""
        s_load_dword s55, s[26:27], s47 glc
        s_add_u32 s{sSPIN}, s{sSPIN}, 1
        s_cmp_gt_u32 s{sSPIN}, {SPIN_MAX}
        s_cbranch_scc1 L_end
        s_waitcnt lgkmcnt(0)""")
        A("s_mov_b32 s43, 0")
        for k in range(8):
            A(f"s_and_b32 s{48+k}, s{48+k}, s44\ns_cmp_eq_u32 s{48+k}, s{sT10}\ns_addc_u32 s43, s43, 0")
        A(f"s_cmp_ge_u32 s43, {self.fthr}\ns_cbranch_scc0 {r_}")
        A("L_fvec:")
        self.stamp(9)
        rg = self.lab("Lfg")
        loads = f"""
            s_or_b64 exec, s[48:49], 1
            global_load_dwordx4 v[{G0}:{G0+3}], v6, s[26:27] {self.fmod if self.flocal else 'sc1'}
            s_or_b64 exec, s[92:93], 1
            global_load_dwordx4 v[{G1}:{G1+3}], v7, s[26:27] {self.fmod if self.flocal else 'sc1'}
            s_mov_b64 exec, -1"""
        A("s_mov_b64 s[48:49], -1")
        for k in range(self.fdepth - 1):
            A(loads)
        A(f"{rg}:")
        A(loads)
        A(f"s_waitcnt vmcnt({2*(self.fdepth - 1)})")
        for i, k in enumerate((G0, G1)):
            A(f"v_bitop3_b32 v{vT+2*i}, v{k}, v{k+1}, s{sT10} bitop3:0x7e")
            A(f"v_bitop3_b32 v{vT+2*i+1}, v{k+2}, v{k+3}, s{sT10} bitop3:0x7e")
        for i in range(2):
            A(f"v_bitop3_b32 v{vT+2*i}, v{vT+2*i}, v{vT+2*i+1}, s44 bitop3:0xa8")
        R = vT + 12
        A(f"""
        v_cmp_ne_u32 s[48:49], 0, v{vT}
        v_cmp_ne_u32 s[92:93], 0, v{vT+2}
        s_add_u32 s{sSPIN}, s{sSPIN}, 1
        s_cmp_gt_u32 s{sSPIN}, {SPIN_MAX}
        s_cbranch_scc1 L_end
        s_or_b64 s[40:41], s[48:49], s[92:93]
        s_cbranch_scc1 {rg}""")
        self.stamp(10)
        for k in range(4):
            A(f"v_xor_b32 v{R+k}, s{sT10}, v{G0+k}\nv_xor_b32 v{R+4+k}, s{sT10}, v{G1+k}")
        for h in (0, 2):
            A(f"v_pk_add_f32 v[{R+h}:{R+h+1}], v[{R+h}:{R+h+1}], v[{R+4+h}:{R+5+h}]")
        self.reduce_scatter_rows(R)
        f = vT + 4
        A(f"""
        ds_write_b32 v10, v{R} offset:{L_RF}
        s_mov_b64 exec, 1
        ds_add_rtn_u32 v2, v12, v13
        s_mov_b64 exec, -1
        ds_read_b128 v[{f}:{f+3}], v11 offset:{L_RF}
        ds_read_b128 v[{f+4}:{f+7}], v11 offset:{L_RF+16}
        s_waitcnt lgkmcnt(0)
        v_readfirstlane_b32 s{sTMP}, v2
        s_cmp_eq_u32 s{sTMP}, 7
        s_cbranch_scc0 L_adone
        v_pk_add_f32 v[{f+4}:{f+5}], v[{f+4}:{f+5}], v[{f+6}:{f+7}]
        v_pk_add_f32 v[{f}:{f+1}], v[{f}:{f+1}], v[{f+2}:{f+3}]
        v_add_f32 v{f+2}, v{f+4}, v{f+5}
        v_add_f32 v{f}, v{f}, v{f+1}
        v_cvt_pk_bf16_f32 v{f}, v{f}, v{f+2}
        v_and_b32 v{f+2}, 0xffff0000, v{f}
        v_mul_f32 v{f+3}, {f2u(-LOG2E):#x}, v{f+2}
        v_exp_f32 v{f+3}, v{f+3}
        v_lshlrev_b32 v{f}, 16, v{f}
        v_add_f32 v{f+3}, 1.0, v{f+3}
        v_rcp_f32 v{f+3}, v{f+3}
        s_nop 0
        v_mul_f32 v{f+2}, v{f+2}, v{f+3}""")
        self.bf16_round(f + 2, f + 2)
        A(f"v_mul_f32 v{f}, v{f}, v{f+2}")
        self.bf16_round(f, f)
        A(f"""
        v_add_f32 v{f}, v{f}, v9
        v_cvt_pk_bf16_f32 v{f}, v{f}, v{f}
        global_store_short v8, v{f}, s[22:23] {self.outmod}""")
        A(f"""
        {'s_branch L_mag' if self.mag else ''}
        {'L_magback:' if self.mag else ''}
        s_cmp_lg_u32 s{sR}, 0
        s_cbranch_scc1 L_adone
        s_mov_b64 exec, 1
        v_mov_b32 v1, {WS_E}
        v_mov_b32 v2, s{sT32}
        global_store_dword v1, v2, s[26:27] sc1
        s_branch L_adone""")
        if self.mag:
            what, K = self.mag[:2]
            A(f"""
            L_mag:
            s_memrealtime s[90:91]
            s_sleep 64
            v_lshlrev_b32 v1, 9, v0
            v_add_u32 v1, 0x300000, v1
            global_load_dword v56, v1, s[26:27] sc1
            global_load_dword v57, v1, s[26:27] offset:128 sc1
            global_load_dword v58, v1, s[26:27] offset:256 sc1
            global_load_dword v59, v1, s[26:27] offset:384 sc1
            s_waitcnt vmcnt(0) lgkmcnt(0)
            v_sub_u32 v56, s90, v56
            v_sub_u32 v57, s90, v57
            v_sub_u32 v58, s90, v58
            v_sub_u32 v59, s90, v59
            v_cvt_f32_u32 v56, v56
            v_cvt_f32_u32 v57, v57
            v_cvt_f32_u32 v58, v58
            v_cvt_f32_u32 v59, v59
            v_max3_f32 v60, v56, v57, v58
            v_max_f32 v60, v60, v59
            v_min3_f32 v61, v56, v57, v58
            v_min_f32 v61, v61, v59""")
            self.allreduce_in_row(60, "v_max_f32"); self.allreduce_rows(60, 62, "v_max_f32")
            self.allreduce_in_row(61, "v_min_f32"); self.allreduce_rows(61, 62, "v_min_f32")
            if what == 'ev':
                A("""
                v_add_u32 v1, 0x10000, v1
                global_load_dword v56, v1, s[26:27] sc1
                global_load_dword v57, v1, s[26:27] offset:128 sc1
                global_load_dword v58, v1, s[26:27] offset:256 sc1
                global_load_dword v59, v1, s[26:27] offset:384 sc1
                s_waitcnt vmcnt(0)
                v_sub_u32 v56, s90, v56
                v_sub_u32 v57, s90, v57
                v_sub_u32 v58, s90, v58
                v_sub_u32 v59, s90, v59
                v_cvt_f32_i32 v56, v56
                v_cvt_f32_i32 v57, v57
                v_cvt_f32_i32 v58, v58
                v_cvt_f32_i32 v59, v59
                v_min3_f32 v61, v56, v57, v58
                v_min_f32 v61, v61, v59""")
                self.allreduce_in_row(61, "v_min_f32"); self.allreduce_rows(61, 62, "v_min_f32")
                A("v_sub_f32 v60, v60, v61")
            if what == 'skew':
                A("v_sub_f32 v60, v60, v61")
            elif what == 'max':
                A("v_mov_b32 v60, v61")
            A(f"""
            v_min_f32 v60, 0x44fa0000, v60
            v_cvt_u32_f32 v60, v60
            s_nop 1
            v_readfirstlane_b32 s40, v60
            s_mul_i32 s40, s40, {K}
            s_add_u32 s40, s40, s90
            L_magspin:
            s_memrealtime s[42:43]
            s_waitcnt lgkmcnt(0)
            s_sub_u32 s41, s42, s40
            s_cmp_lt_i32 s41, 0
            s_cbranch_scc1 L_magspin
            s_branch L_magback""")


class Gen(Gen0):
    def __init__(self, ldsb=None, nvo=None, **kw):
        self.ldsb, self.nvo = ldsb, nvo
        super().__init__(**kw)


if __name__ == "__main__":
    import argparse
    ap = argparse.ArgumentParser()
    ap.add_argument("-o", default="recurrent_scan__sliding_block_cached__geglu_ffn__decode.s")

    ap.add_argument("--stamps", action="store_true")
    ap.add_argument("--probe", default=None)
    ap.add_argument("--kw", default="")
    a = ap.parse_args()
    open(a.o, "w").write(Gen(stamps=a.stamps, probe=tuple(map(int, a.probe.split(','))) if a.probe else None, **eval(f'dict({a.kw})')).build())
```
